```python
import torch

def _softmax(x, axis=-1):
    return torch.softmax(x, dim=axis)
def _gelu(x):
    return torch.nn.functional.gelu(x, approximate="tanh")
def _silu(x):
    return torch.nn.functional.silu(x)
def _sigmoid(x):
    return torch.sigmoid(x)
def _layernorm(x, axis=-1, eps=1e-5):
    m = x.mean(dim=axis, keepdim=True)
    v = x.var(dim=axis, keepdim=True, unbiased=False)
    return (x - m) / torch.sqrt(v + eps)
def _scatter_add(tgt, idx, src, axis=0):
    return tgt.clone().index_add_(axis, idx, src)
def _segment_sum(src, seg, n):
    out = torch.zeros((n,) + src.shape[1:], dtype=src.dtype)
    return out.index_add_(0, seg, src)
def _pad(x, pw):
    flat = tuple(v for pair in reversed(pw) for v in pair)
    return torch.nn.functional.pad(x, flat)

kernel_name = 'standalone__cheap_equivariant_egnn__graph'

def setup_inputs():

    _w = (lambda a: (lambda t: t.to(torch.bfloat16) if t.is_floating_point() else t)(torch.as_tensor(a)))
    N, deg, D, De = 12500, 32, 128, max(0, 1)
    E = N * deg
    return {
        "h": _w((lambda *s: torch.randn(*s, dtype=torch.bfloat16) * 0.1)(N, D)),
        "pos": _w((lambda *s: torch.randn(*s, dtype=torch.bfloat16) * 0.8)(N, 3)),
        "e_attr": _w((lambda *s: torch.randn(*s, dtype=torch.bfloat16) * 0.8)(E, De)),
        "src": _w((lambda lo, hi, *s: torch.randint(lo, hi, s))(0, N, E).to(torch.int64)),
        "dst": _w((lambda lo, hi, *s: torch.randint(lo, hi, s))(0, N, E).to(torch.int64)),
        "w_e": _w(0.1 * (lambda *s: torch.randn(*s, dtype=torch.bfloat16) * 0.8)(2 * D + 1 + De, D)),
        "w_x": _w(0.1 * (lambda *s: torch.randn(*s, dtype=torch.bfloat16) * 0.1)(D, 1)),
        "w_h": _w(0.1 * (lambda *s: torch.randn(*s, dtype=torch.bfloat16) * 0.1)(2 * D, D)),
    }

def reference(h, pos, e_attr, src, dst, w_e, w_x, w_h):
    N, D = h.shape[0], h.shape[1]
    diff = pos[dst] - pos[src]
    dist2 = torch.sum(diff * diff, axis=-1, keepdims=True)
    e_in = torch.concatenate([h[dst], h[src], dist2, e_attr], axis=-1)
    m_ij = _silu(e_in @ w_e)
    coord_scale = m_ij @ w_x
    pos_new = pos + _segment_sum(diff * coord_scale, dst, N)
    m_i = _segment_sum(m_ij, dst, N)
    h_new = h + _silu(torch.concatenate([h, m_i], axis=-1) @ w_h)
    return h_new, pos_new
```

```python
import re
import sys

TRANS = ("v_exp_", "v_log_", "v_rcp_", "v_rsq_", "v_sqrt_", "v_sin_", "v_cos_")


def regs_of(tok):
    tok = tok.strip()
    neg = tok.startswith("-")
    if neg:
        tok = tok[1:]
    m = re.fullmatch(r"abs\((.*)\)", tok)
    if m:
        tok = m.group(1)
    m = re.fullmatch(r"\|(.*)\|", tok)
    if m:
        tok = m.group(1)
    m = re.fullmatch(r"([vsa])\[(\d+):(\d+)\]", tok)
    if m:
        return [f"{m.group(1)}{i}" for i in range(int(m.group(2)), int(m.group(3)) + 1)]
    m = re.fullmatch(r"([vsa])(\d+)", tok)
    if m:
        return [tok]
    if tok == "vcc":
        return ["vcc"]
    if tok in ("vcc_lo", "vcc_hi"):
        return ["vcc"]
    if tok in ("exec", "exec_lo", "exec_hi"):
        return ["exec"]
    if tok == "m0":
        return ["m0"]
    return []


class Ins:
    def __init__(self, text, lineno):
        self.lineno = lineno
        self.text = text
        code, _, com = text.partition(";")
        self.tags_w = re.findall(r"@w:(\w+)", com)
        self.tags_r = re.findall(r"@r:(\w+)", com)
        code = code.strip()
        parts = code.split(None, 1)
        self.op = parts[0]
        rest = parts[1] if len(parts) > 1 else ""
        ops = []
        depth = 0
        cur = ""
        for ch in rest:
            if ch == "[":
                depth += 1
            if ch == "]":
                depth -= 1
            if ch == "," and depth == 0:
                ops.append(cur.strip())
                cur = ""
            else:
                cur += ch
        if cur.strip():
            ops.append(cur.strip())
        self.mods = ""
        if ops:
            last = ops[-1].split(None, 1)
            ops[-1] = last[0]
            self.mods = last[1] if len(last) > 1 else ""
        self.ops = ops
        self.classify()

    def classify(self):
        op, ops = self.op, self.ops
        R = [regs_of(o) for o in ops]
        self.kind = "other"
        self.dst, self.src = [], []
        self.srcC = []
        self.lanesel = []
        self.ws = 1
        self.target = None
        flat = lambda L: [x for l in L for x in l]
        if op == "s_nop":
            self.ws = int(ops[0], 0) + 1
            self.kind = "nop"
        elif op.startswith("v_mfma"):
            self.kind = "mfma"
            self.dst = R[0]
            self.src = R[1] + R[2] + R[3]
            self.srcAB = R[1] + R[2]
            self.srcC = R[3]
            self.passes = 8 if "32x32" in op else 4
        elif op.startswith("v_cmp"):
            self.kind = "valu"
            self.dst = R[0] + (["exec"] if op.startswith("v_cmpx") else [])
            self.src = flat(R[1:])
        elif op in ("v_readlane_b32", "v_readfirstlane_b32"):
            self.kind = "valu"
            self.dst = R[0]
            self.src = flat(R[1:])
            if op == "v_readlane_b32":
                self.lanesel = R[2]
        elif op == "v_writelane_b32":
            self.kind = "valu"
            self.dst = R[0]
            self.src = flat(R)
            self.lanesel = R[2]
        elif op.startswith("v_"):
            self.kind = "valu"
            self.dst = R[0]
            self.src = flat(R[1:])
            if "_co_" in op or op.startswith("v_mad_u64"):
                self.dst = R[0] + R[1]
                self.src = flat(R[2:])
            if op.startswith(("v_fmac", "v_pk_fmac", "v_dot2c")) or "_dpp" in op or "row_" in self.mods or "quad_perm" in self.mods:
                self.src = self.src + R[0]
            if "UNUSED_PRESERVE" in self.mods:
                self.src = self.src + R[0]
            if op.startswith("v_permlane") or op.startswith("v_swap"):
                self.dst = R[0] + R[1]
                self.src = R[0] + R[1]
        elif op.startswith("ds_"):
            self.kind = "ds"
            if op.startswith(("ds_read", "ds_bpermute", "ds_permute", "ds_swizzle")) or "_rtn" in op:
                self.dst = R[0]
                self.src = flat(R[1:])
                if "d16" in op:
                    self.partial = True
            else:
                self.src = flat(R)
        elif op.startswith(("buffer_", "global_")):
            self.kind = "vm"
            if " lds" in " " + self.mods:
                self.src = flat(R) + ["m0"]
                self.isdma = True
            elif "_load" in op:
                self.dst = R[0]
                self.src = flat(R[1:])
            else:
                self.src = flat(R)
                self.stdata = R[0] if op.startswith("buffer_") else R[1]
                if "atomic" in op and "sc0" in self.mods:
                    self.dst = R[0]
        elif op.startswith(("s_load", "s_memtime", "s_memrealtime", "s_buffer_load")):
            self.kind = "smem"
            self.dst = R[0]
            self.src = flat(R[1:])
        elif op == "s_waitcnt":
            self.kind = "wait"
            t = " ".join(ops) + " " + self.mods
            m = re.search(r"vmcnt\((\d+)\)", t)
            self.vm = int(m.group(1)) if m else None
            m = re.search(r"lgkmcnt\((\d+)\)", t)
            self.lg = int(m.group(1)) if m else None
        elif op.startswith("s_cbranch") or op == "s_branch":
            self.kind = "branch"
            self.target = ops[0]
            if "vcc" in op:
                self.src = ["vcc"]
            if "exec" in op:
                self.src = ["exec"]
        elif op == "s_endpgm":
            self.kind = "end"
        elif op.startswith("s_cmp") or op.startswith("s_bitcmp"):
            self.kind = "salu"
            self.src = flat(R)
        elif op in ("s_barrier", "s_setprio", "s_sleep"):
            self.kind = "other"
        elif op.startswith("s_"):
            self.kind = "salu"
            self.dst = R[0] + (["exec"] if "saveexec" in op else [])
            self.src = flat(R[1:])
            if op in ("s_addk_i32", "s_mulk_i32"):
                self.src = self.src + R[0]
        else:
            raise ValueError(f"unknown op {op} line {self.lineno}")
        self.trans = op.startswith(TRANS)
        self.dpp = self.kind == "valu" and ("_dpp" in op or "row_" in self.mods or "quad_perm" in self.mods)
        self.dot = op.startswith("v_dot")
        m = re.search(r"dst_sel:(\w+)", self.mods)
        self.movesbits = bool(m and m.group(1) != "DWORD")
        m = re.search(r"op_sel:\[([\d,]+)\]", self.mods)
        if m and not op.startswith("v_pk_") and not self.dot and self.kind == "valu":
            bits = m.group(1).split(",")
            if len(bits) == len(self.ops) and bits[-1] == "1":
                self.movesbits = True


def parse(text):
    ins, labels = [], {}
    for n, line in enumerate(text.split("\n"), 1):
        s = line.strip()
        if not s or s.startswith((";", ".", "//")):
            continue
        m = re.fullmatch(r"([\w.$]+):\s*(;.*)?", s)
        if m:
            labels[m.group(1)] = len(ins)
            continue
        ins.append(Ins(s, n))
    return ins, labels


def succs(ins, labels, i):
    x = ins[i]
    if x.kind == "end":
        return []
    if x.kind == "branch":
        t = labels[x.target]
        return [t] if x.op == "s_branch" else [t, i + 1]
    return [i + 1] if i + 1 < len(ins) else []


def need(p, c):
    n = 0
    pd = set(p.dst)
    ov = lambda a, b: bool(set(a) & set(b))
    if p.kind == "valu":
        vd = {r for r in pd if r[0] in "va" and r != "vcc"}
        sd = {r for r in pd if r[0] == "s" or r == "vcc"}
        if c.kind == "mfma" and ov(vd, c.src):
            n = max(n, 3 if p.dot else 2)
        if c.kind == "mfma" and "exec" in pd:
            n = max(n, 4)
        if c.kind == "valu":
            if p.trans and not c.trans and ov(vd, c.src):
                n = max(n, 1)
            if p.movesbits and ov(vd, c.src + c.dst):
                n = max(n, 1)
            if c.op in ("v_readlane_b32", "v_readfirstlane_b32") and ov(vd, c.src):
                n = max(n, 1)
            if (c.dpp or c.op.startswith("v_permlane")) and ov(vd, c.src):
                n = max(n, 2)
            if ov(sd, c.src):
                n = max(n, 2)
            if ov(sd, c.lanesel):
                n = max(n, 4)
            if "exec" in pd and c.dpp:
                n = max(n, 5)
            if "exec" in pd and c.op.startswith(("v_readlane", "v_readfirstlane", "v_writelane", "v_permlane")):
                n = max(n, 4)
            if p.dot and ov(vd, c.src + c.dst):
                same = c.op == p.op and not ov(vd, regs_of(c.ops[1]) + regs_of(c.ops[2]))
                n = max(n, 0 if same else 3)
        if p.dot and c.kind in ("ds", "vm") and ov(vd, c.src + c.dst):
            n = max(n, 3)
        if c.kind == "vm" and ov(sd, c.src):
            n = max(n, 5)
        if c.kind in ("salu", "branch", "smem") and ov(sd, c.src):
            n = max(n, 0)
    if p.kind in ("ds", "vm") and c.dpp and ov(pd, c.src):
        n = max(n, 0)
    if p.kind == "mfma":
        big = {4: 8, 8: 12}[p.passes]
        if c.kind == "mfma":
            if ov(pd, c.srcAB):
                n = max(n, big)
            if ov(pd, c.srcC):
                if not (c.srcC == p.dst and c.passes == p.passes):
                    n = max(n, {4: 6, 8: 10}[p.passes])
            elif ov(pd, c.dst):
                n = max(n, {4: 6, 8: 10}[p.passes])
        elif c.kind in ("valu", "ds", "vm"):
            if ov(pd, c.src + c.dst):
                n = max(n, big)
            if c.kind == "valu" and ov(p.srcC, c.dst):
                n = max(n, {4: 3, 8: 7}[p.passes])
    if p.kind == "salu" and "m0" in pd and c.kind == "vm" and getattr(c, "isdma", False):
        n = max(n, 1)
    if p.kind == "vm" and hasattr(p, "stdata") and len(p.stdata) >= 3 and ov(p.stdata, c.dst):
        n = max(n, 2 if c.kind in ("valu", "mfma") else 1)
    return n


def check_hazards(ins, labels):
    errs = []
    for i, p in enumerate(ins):
        if p.kind not in ("valu", "mfma", "salu", "vm"):
            continue
        stack = [(j, 0) for j in succs(ins, labels, i)]
        seen = {}
        while stack:
            j, d = stack.pop()
            if d >= 13 or seen.get(j, 99) <= d:
                continue
            seen[j] = d
            c = ins[j]
            k = need(p, c)
            if k > d:
                errs.append(f"hazard: line {p.lineno} `{p.text}` -> line {c.lineno} `{c.text}` need {k} have {d}")
            for q in succs(ins, labels, j):
                stack.append((q, d + c.ws))
    return errs


def check_waits(ins, labels, entry):
    errs = set()
    seen = set()
    stack = [(entry, (), (), ())]
    steps = 0
    while stack:
        i, vm, lg, sm = stack.pop()
        key = (i, vm, lg, sm)
        if key in seen:
            continue
        seen.add(key)
        steps += 1
        if steps > 3000000:
            errs.add("wait check: state limit reached")
            break
        x = ins[i]
        reads = set(x.src) | {"@" + t for t in x.tags_r}
        writes = set(x.dst) | {"@" + t for t in x.tags_w}
        for q, name in ((vm, "vm"), (lg, "lgkm"), (sm, "smem")):
            for j in q:
                o = ins[j]
                od = set(o.dst) | {"@" + t for t in o.tags_w}
                ord_ = {"@" + t for t in o.tags_r}
                samecls = (name == "vm" and x.kind == "vm") or (name == "lgkm" and x.kind == "ds")
                bad = od & reads
                if samecls and name == "lgkm":
                    bad = {r for r in bad if not r.startswith("@")}
                if not samecls:
                    bad = bad | (od & writes) | (ord_ & writes)
                if bad:
                    errs.add(f"wait: line {x.lineno} `{x.text}` uses {sorted(bad)} pending from line {o.lineno} `{o.text}` ({name})")
        if x.kind == "vm":
            vm = (vm + (i,))[-64:]
        elif x.kind == "ds":
            lg = (lg + (i,))[-40:]
        elif x.kind == "smem":
            sm = sm + (i,)
        elif x.kind == "wait":
            if x.vm is not None:
                vm = vm[len(vm) - x.vm:] if x.vm < len(vm) else vm
                if x.vm == 0:
                    vm = ()
            if x.lg is not None:
                if x.lg == 0:
                    lg, sm = (), ()
                elif not sm:
                    lg = lg[len(lg) - x.lg:] if x.lg < len(lg) else lg
                if x.lg > 15:
                    errs.add(f"lgkmcnt > 15 at line {x.lineno}")
        elif x.op == "s_barrier":
            for j in lg:
                o = ins[j]
                if not o.dst or "_rtn" in o.op:
                    if "nobar" not in o.text:
                        errs.add(f"barrier line {x.lineno}: LDS write pending from line {o.lineno} `{o.text}`")
        for q in succs(ins, labels, i):
            stack.append((q, vm, lg, sm))
    return sorted(errs)


def lint(text, entries):
    ins, labels = parse(text)
    errs = check_hazards(ins, labels)
    for e in entries:
        errs += check_waits(ins, labels, labels[e])
    return errs


if __name__ == "__main__":
    t = open(sys.argv[1]).read()
    for e in lint(t, sys.argv[2:]):
        print(e)
```

```python
import os
import re
import struct
import sys

sys.path.insert(0, os.path.dirname(os.path.abspath(__file__)))
from lint import lint

NAME = "standalone__cheap_equivariant_egnn__graph"
K1 = "egnn_prep_kernel"
K2 = NAME + "_kernel"

N, E = 12500, 400000
NB = 49
WS_Q, QBYTES = 0, 12576 * 256
WS_REC = 0x400000
WS_WF = 0x780000
WS_TAB = 0x800000
WS_END = WS_TAB + 125 * 1024
WS_DIAG = 0x900000
OOB = 0x30000
LOG2E = 1.4426950408889634
LN2 = 0.6931471805599453


def f32(x):
    return "0x%08x" % struct.unpack("<I", struct.pack("<f", x))[0]


def vr(a, n=1):
    return f"v{a}" if n == 1 else f"v[{a}:{a + n - 1}]"


def sr(a, n=1):
    return f"s{a}" if n == 1 else f"s[{a}:{a + n - 1}]"


class Asm:
    def __init__(self):
        self.L = []

    def __call__(self, text):
        for line in text.split("\n"):
            s = line.strip()
            if not s:
                continue
            self.L.append(s if re.fullmatch(r"[\w.$]+:", s) else "    " + s)

    def text(self):
        return "\n".join(self.L) + "\n"


def srd(a, d, base, nrec, add=None):
    if add is None:
        a(f"s_mov_b32 s{d}, s{base}\ns_mov_b32 s{d + 1}, s{base + 1}")
    else:
        a(f"s_add_u32 s{d}, s{base}, {add}\ns_addc_u32 s{d + 1}, s{base + 1}, 0")
    a(f"s_mov_b32 s{d + 2}, {nrec}\ns_mov_b32 s{d + 3}, 0x20000")


def scan64(a, v):
    for c in ("row_shr:1 row_mask:0xf", "row_shr:2 row_mask:0xf", "row_shr:4 row_mask:0xf", "row_shr:8 row_mask:0xf",
              "row_bcast:15 row_mask:0xa", "row_bcast:31 row_mask:0xc"):
        a(f"s_nop 1\nv_add_u32_dpp v{v}, v{v}, v{v} {c} bank_mask:0xf")


def stamp(a, cfg, kern, idx, ws):
    if not cfg.get("diag"):
        return
    a(f"""
    s_waitcnt lgkmcnt(0)
    s_memrealtime s[90:91]
    s_memtime s[92:93]
    s_lshl_b32 s94, s2, 4
    s_add_u32 s94, s94, s3
    s_lshl_b32 s94, s94, 7
    s_add_u32 s94, s94, {WS_DIAG + kern * 0x80000 + idx * 8}
    s_add_u32 s94, s94, s{ws}
    s_addc_u32 s95, s{ws + 1}, 0
    s_waitcnt lgkmcnt(0)
    s_mov_b64 s[96:97], exec
    s_mov_b64 exec, 1
    v_mov_b32 v{cfg['dv']}, s90
    v_mov_b32 v{cfg['dv'] + 1}, s92
    v_mov_b32 v{cfg['dv'] + 2}, 0
    global_store_dwordx2 v{cfg['dv'] + 2}, v[{cfg['dv']}:{cfg['dv'] + 1}], s[94:95]
    s_waitcnt vmcnt(0)
    s_mov_b64 exec, s[96:97]
    """)


def gen_k1(cfg):
    a = Asm()
    cfg = dict(cfg, dv=100)
    HIST, OFF, LST = 0, 1024, 4096
    a(f"""
    s_load_dwordx16 s[4:19], s[0:1], 0
    s_load_dwordx2 s[20:21], s[0:1], 80
    v_lshrrev_b32 v1, 6, v0
    s_cmp_ge_u32 s2, 256
    s_cbranch_scc1 K1_END
    v_readfirstlane_b32 s3, v1
    v_and_b32 v1, 63, v0
    s_cmp_ge_u32 s2, 125
    s_cbranch_scc1 K1_Q
    s_cmp_ge_u32 s3, 13
    s_cbranch_scc1 K1_AUX
    """)
    a(f"""
    v_lshlrev_b32 v2, 2, v0
    v_mov_b32 v3, 0
    ds_write_b32 v2, v3
    s_mul_i32 s22, s2, 12800
    v_lshlrev_b32 v28, 4, v0
    v_add_u32 v2, s22, v28
    v_lshrrev_b32 v3, 1, v2
    v_cmp_gt_u32 s[24:25], 800, v0
    """.replace("v_cmp_gt_u32 s[24:25], 800, v0", "v_cmp_gt_u32 vcc, 800, v0\ns_mov_b64 s[24:25], vcc"))
    a(f"""
    s_mov_b64 exec, s[24:25]
    s_waitcnt lgkmcnt(0)
    global_load_dwordx4 v[4:7], v2, s[12:13]
    global_load_dwordx4 v[8:11], v2, s[10:11]
    global_load_dwordx2 v[12:13], v3, s[8:9]
    """)
    stamp(a, cfg, 0, 0, 20)
    a(f"""
    s_movk_i32 s26, 21400
    s_movk_i32 s27, -49
    v_mov_b32 v29, 1
    s_barrier
    s_waitcnt vmcnt(2)
    """)
    for j in range(4):
        a(f"""
        v_mul_u32_u24 v{14 + j}, s26, v{4 + j}
        v_lshrrev_b32 v{14 + j}, 18, v{14 + j}
        v_and_b32 v{14 + j}, 0x3fc, v{14 + j}
        ds_add_rtn_u32 v{18 + j}, v{14 + j}, v29 offset:{HIST}
        """)
    for j in range(4):
        a(f"""
        v_lshlrev_b32 v{4 + j}, 2, v{4 + j}
        v_mad_i32_i24 v{4 + j}, v{14 + j}, s27, v{4 + j}
        """)
    a("s_waitcnt vmcnt(0)")
    for j in range(4):
        a(f"v_lshl_or_b32 v{32 + 2 * j}, v{4 + j}, 16, v{8 + j}")
        if j & 1:
            a(f"v_and_b32 v{33 + 2 * j}, 0xffff0000, v{12 + j // 2}")
        else:
            a(f"v_lshlrev_b32 v{33 + 2 * j}, 16, v{12 + j // 2}")
    a(f"""
    s_mov_b64 exec, -1
    v_lshlrev_b32 v2, 4, v1
    s_waitcnt lgkmcnt(0)
    s_barrier
    ds_read_b128 v[4:7], v2 offset:{HIST}
    s_waitcnt lgkmcnt(0)
    v_add_u32 v9, v4, v5
    v_add_u32 v10, v9, v6
    v_add_u32 v11, v10, v7
    v_mov_b32 v3, v11
    """)
    scan64(a, 3)
    a(f"""
    v_sub_u32 v8, v3, v11
    v_add_u32 v11, v8, v10
    v_add_u32 v10, v8, v9
    v_add_u32 v9, v8, v4
    ds_write_b128 v2, v[8:11] offset:{OFF}
    s_cmp_lg_u32 s3, 0
    s_cbranch_scc1 K1_NOTAB
    s_lshl_b32 s22, s2, 10
    s_add_u32 s22, s22, {WS_TAB}
    v_lshl_or_b32 v24, v4, 16, v8
    v_lshl_or_b32 v25, v5, 16, v9
    v_lshl_or_b32 v26, v6, 16, v10
    v_lshl_or_b32 v27, v7, 16, v11
    v_add_u32 v3, s22, v2
    global_store_dwordx4 v3, v[24:27], s[20:21]
    K1_NOTAB:
    s_mov_b64 exec, s[24:25]
    """)
    for j in range(4):
        a(f"ds_read_b32 v{14 + j}, v{14 + j} offset:{OFF}")
    for j in range(4):
        a(f"""
        s_waitcnt lgkmcnt(3)
        v_add_lshl_u32 v{14 + j}, v{14 + j}, v{18 + j}, 3
        ds_write_b64 v{14 + j}, v[{32 + 2 * j}:{33 + 2 * j}] offset:{LST}
        """)
    a(f"""
    s_mul_i32 s22, s2, 25600
    s_add_u32 s22, s22, {WS_REC}
    v_add_u32 v2, s22, v28
    v_add_u32 v3, 12800, v2
    s_waitcnt lgkmcnt(0)
    s_barrier
    ds_read_b128 v[4:7], v28 offset:{LST}
    ds_read_b128 v[8:11], v28 offset:{LST + 12800}
    s_waitcnt lgkmcnt(1)
    global_store_dwordx4 v2, v[4:7], s[20:21]
    s_waitcnt lgkmcnt(0)
    global_store_dwordx4 v3, v[8:11], s[20:21]
    """)
    stamp(a, cfg, 0, 1, 20)
    a("s_endpgm")
    a(f"""
    K1_AUX:
    s_cmp_lg_u32 s3, 13
    s_cbranch_scc1 K1_END
    s_cmp_ge_u32 s2, 96
    s_cbranch_scc1 K1_END
    s_bfe_u32 s22, s2, 0x30002
    s_and_b32 s23, s2, 3
    v_and_b32 v2, 15, v1
    v_lshrrev_b32 v3, 4, v1
    s_waitcnt lgkmcnt(0)
    s_mov_b32 s28, s18
    s_mov_b32 s29, s19
    s_mov_b32 s30, 65536
    s_mov_b32 s31, 0x20000
    s_movk_i32 s25, 256
    s_cmp_ge_u32 s2, 64
    s_cbranch_scc1 K1_M2
    s_lshl_b32 s24, s23, 13
    v_lshlrev_b32 v3, 11, v3
    s_cmp_ge_u32 s2, 32
    s_cbranch_scc1 K1_M1
    s_mov_b32 s28, s14
    s_mov_b32 s29, s15
    s_lshr_b32 s26, s22, 2
    s_lshl_b32 s26, s26, 7
    s_add_u32 s24, s24, s26
    s_and_b32 s26, s22, 2
    s_lshl_b32 s26, s26, 3
    s_add_u32 s24, s24, s26
    s_and_b32 s26, s22, 1
    s_lshl_b32 s26, s26, 1
    s_add_u32 s24, s24, s26
    v_and_b32 v4, 3, v2
    v_and_b32 v2, 12, v2
    v_lshl_or_b32 v2, v4, 5, v2
    v_add_u32 v2, v2, v3
    s_branch K1_WLD
    K1_M2:
    s_lshr_b32 s24, s23, 1
    s_lshl_b32 s24, s24, 3
    s_and_b32 s26, s23, 1
    s_add_u32 s24, s24, s26
    s_add_u32 s24, s24, 128
    s_lshl_b32 s24, s24, 8
    s_movk_i32 s25, 4096
    v_lshlrev_b32 v3, 9, v3
    K1_M1:
    s_lshl_b32 s26, s22, 5
    s_add_u32 s24, s24, s26
    v_lshl_add_u32 v2, v2, 1, v3
    K1_WLD:
    """)
    for j in range(8):
        a(f"buffer_load_ushort v{8 + j}, v2, s[28:31], s24 offen")
        if j < 7:
            a("s_add_u32 s24, s24, s25")
    a(f"""
    s_lshl_b32 s22, s2, 10
    s_add_u32 s22, s22, {WS_WF}
    v_lshl_add_u32 v3, v1, 4, s22
    s_waitcnt vmcnt(0)
    v_lshl_or_b32 v4, v9, 16, v8
    v_lshl_or_b32 v5, v11, 16, v10
    v_lshl_or_b32 v6, v13, 16, v12
    v_lshl_or_b32 v7, v15, 16, v14
    global_store_dwordx4 v3, v[4:7], s[20:21]
    s_endpgm
    """)
    WL, HL = 0, 32768
    a(f"""
    K1_Q:
    s_sub_u32 s22, s2, 125
    s_mul_i32 s22, s22, 96
    v_lshrrev_b32 v2, 4, v1
    v_and_b32 v3, 15, v1
    s_and_b32 s23, s3, 1
    s_lshl_b32 s24, s23, 2
    v_or_b32 v4, s24, v2
    v_lshlrev_b32 v4, 1, v4
    v_xor_b32 v4, v4, v3
    v_lshlrev_b32 v4, 4, v4
    v_lshl_add_u32 v4, v2, 8, v4
    s_lshl_b32 s24, s3, 11
    s_add_u32 s25, s24, 32768
    s_mov_b32 m0, s24
    v_lshrrev_b32 v5, 2, v1
    v_lshrrev_b32 v6, 5, v1
    v_lshlrev_b32 v6, 1, v6
    v_and_b32 v7, 3, v1
    v_xor_b32 v6, v6, v7
    v_lshlrev_b32 v6, 4, v6
    v_lshl_add_u32 v5, v5, 8, v6
    s_waitcnt lgkmcnt(0)
    """)
    srd(a, 28, 14, 258 * 256)
    a(f"""
    buffer_load_dwordx4 v4, s[28:31], s25 offen lds
    buffer_load_dwordx4 v4, s[28:31], s25 offen offset:1024 lds
    s_cmp_ge_u32 s3, 12
    s_cbranch_scc1 K1_QW
    """)
    srd(a, 32, 4, N * 256)
    a(f"""
    s_lshr_b32 s26, s3, 1
    s_lshl_b32 s26, s26, 4
    s_add_u32 s26, s26, s22
    s_lshl_b32 s26, s26, 8
    s_lshl_b32 s27, s23, 7
    s_add_u32 s26, s26, s27
    s_add_u32 s27, s24, {HL}
    s_mov_b32 m0, s27
    s_add_u32 s36, s26, 64
    buffer_load_dwordx4 v5, s[32:35], s26 offen lds
    s_add_u32 s27, s27, 1024
    s_mov_b32 m0, s27
    s_nop 0
    buffer_load_dwordx4 v5, s[32:35], s36 offen lds
    K1_QW:
    """)
    stamp(a, cfg, 0, 0, 20)
    a(f"""
    v_lshrrev_b32 v6, 3, v3
    v_lshlrev_b32 v6, 1, v6
    v_xor_b32 v6, v6, v2
    v_lshlrev_b32 v6, 4, v6
    v_lshl_add_u32 v6, v3, 6, v6
    s_lshr_b32 s27, s3, 1
    s_lshl_b32 s27, s27, 12
    v_add_u32 v6, s27, v6
    v_bfe_u32 v8, v1, 2, 2
    v_and_b32 v9, 1, v2
    v_xor_b32 v9, s23, v9
    v_lshl_or_b32 v9, v9, 2, v8
    v_lshlrev_b32 v9, 5, v9
    v_lshl_or_b32 v9, v7, 3, v9
    v_lshl_add_u32 v8, v2, 3, v8
    v_lshl_add_u32 v8, v8, 8, v9
    v_xor_b32 v9, 32, v8
    v_xor_b32 v10, 64, v8
    v_xor_b32 v11, 0x60, v8
    v_lshlrev_b32 v12, 3, v3
    v_lshl_add_u32 v12, v2, 10, v12
    v_add_u32 v12, s26, v12
    s_waitcnt vmcnt(0)
    s_barrier
    s_cmp_ge_u32 s3, 12
    s_cbranch_scc1 K1_END
    """)
    AF, BF, AC = 16, 32, 96
    for ks in range(4):
        a(f"ds_read_b128 v[{AF + 4 * ks}:{AF + 4 * ks + 3}], v6 offset:{HL + 1024 * ks}")
        for tt in range(4):
            for i in range(2):
                d = BF + 16 * ks + 4 * tt + 2 * i
                a(f"ds_read_b64_tr_b16 v[{d}:{d + 1}], v{8 + tt} offset:{WL + 8192 * ks + 1024 * i}")
        if ks >= 1:
            k = ks - 1
            a("s_waitcnt lgkmcnt(9)")
            for tt in range(4):
                c = "0" if k == 0 else vr(AC + 4 * tt, 4)
                a(f"v_mfma_f32_16x16x32_bf16 {vr(AC + 4 * tt, 4)}, {vr(AF + 4 * k, 4)}, {vr(BF + 16 * k + 4 * tt, 4)}, {c}")
    a(f"s_mov_b32 s24, {f32(-LOG2E)}")
    for tt in range(4):
        a(f"s_waitcnt lgkmcnt({6 - 2 * tt})")
        a(f"v_mfma_f32_16x16x32_bf16 {vr(AC + 4 * tt, 4)}, {vr(AF + 12, 4)}, {vr(BF + 48 + 4 * tt, 4)}, {vr(AC + 4 * tt, 4)}")
    a("s_nop 1")
    for tt in range(4):
        for k in (0, 2):
            a(f"v_pk_mul_f32 {vr(AC + 4 * tt + k, 2)}, {vr(AC + 4 * tt + k, 2)}, s[24:25] op_sel_hi:[1,0]")
    for r in range(4):
        a(f"""
        v_cvt_pk_bf16_f32 v{16 + 2 * r}, v{AC + r}, v{AC + 4 + r}
        v_cvt_pk_bf16_f32 v{17 + 2 * r}, v{AC + 8 + r}, v{AC + 12 + r}
        global_store_dwordx2 v12, v[{16 + 2 * r}:{17 + 2 * r}], s[20:21] offset:{256 * r}
        """)
    stamp(a, dict(cfg, dv=40), 0, 1, 20)
    a("K1_END:\ns_endpgm")
    return a.text()


def gen_k2(cfg):
    a = Asm()
    NSLOT = cfg.get("nslot", 4)
    CAP = 1792
    CNT, OH, OWN, WX, WD = 0, 256, 1280, 2304, 2816
    LIST = 3328
    HT = LIST + (CAP + 48) * 16
    ACC = HT + 16384
    AST = 576
    PT = ACC + 52 * AST
    RING = PT + 64 * 288
    OT = RING
    assert RING + NSLOT * 16384 <= 163840
    sWV, sB, sNB = 3, 48, 49
    sW, sQ, sH, sP, sO = 24, 28, 32, 36, 40
    sDONE, sR, sTOT, sMORE = 50, 51, 52, 53
    sNT, sTEND, sWEND, sN0, sNW, sEW, sLAST = 54, 55, 56, 57, 58, 59, 60
    sC000, sWSTEP, s128, s192 = 61, 62, 63, 64
    s256 = 66
    sNL2E = 68
    sM0 = 70
    sQN, sT0, sNV = 74, 75, 76
    sA, sB2, sC = 77, 78, 79
    sG3 = 80
    vL = 0
    vRing, vLc, vMul, vIncl = 1, 2, 3, 4
    vVoff = 5
    vBX, vBS = 6, 7
    vIX, vIS = 8, 9
    vDa, vEa = 10, 11
    vXa, vSa, vD0, vDE, vDV = 12, 13, 14, 15, 16
    F, T, Z, M, S, A, B, AC = 24, 28, 32, 40, 56, 58, 72, 96
    cfg = dict(cfg, dv=20)

    a(f"""
    s_load_dwordx16 s[4:19], s[0:1], 0
    s_load_dwordx2 s[20:21], s[0:1], 64
    s_load_dwordx2 s[22:23], s[0:1], 80
    v_lshrrev_b32 v1, 6, v0
    s_cmp_ge_u32 s2, 256
    s_cbranch_scc1 K2_END
    v_readfirstlane_b32 s{sWV}, v1
    s_and_b32 s{sB}, s2, 7
    s_lshl_b32 s{sB}, s{sB}, 5
    s_lshr_b32 s{sA}, s2, 3
    s_add_u32 s{sB}, s{sB}, s{sA}
    s_mul_i32 s{sNB}, s{sB}, {NB}
    v_lshrrev_b32 v2, 3, v0
    v_lshlrev_b32 v3, 10, v2
    s_lshl_b32 s{sA}, s{sB}, 2
    s_add_u32 s{sA}, s{sA}, {WS_TAB}
    s_mov_b32 s{sW + 2}, {WS_END}
    s_mov_b32 s{sW + 3}, 0x20000
    v_lshlrev_b32 v22, 4, v0
    v_and_b32 v0, 63, v0
    v_lshrrev_b32 v5, 5, v0
    v_lshlrev_b32 v5, 1, v5
    v_and_b32 v6, 3, v0
    v_xor_b32 v5, v5, v6
    v_lshlrev_b32 v{vLc + 21}, 4, v5
    v_lshrrev_b32 v6, 2, v0
    v_lshl_add_u32 v6, v6, 8, v{vLc + 21}
    s_lshl_b32 s{sB2}, s{sWV}, 10
    s_add_u32 s{sB2}, s{sB2}, {HT}
    s_mov_b32 m0, s{sB2}
    s_lshl_b32 s{sC}, s{sNB}, 8
    s_waitcnt lgkmcnt(0)
    s_mov_b32 s{sW}, s22
    s_mov_b32 s{sW + 1}, s23
    buffer_load_dword v4, v3, s[{sW}:{sW + 3}], s{sA} offen
    s_add_u32 s{sH}, s4, s{sC}
    s_addc_u32 s{sH + 1}, s5, 0
    s_sub_u32 s{sH + 2}, {N * 256}, s{sC}
    s_mov_b32 s{sH + 3}, 0x20000
    s_lshr_b32 s{sA}, s{sWV}, 2
    s_lshl_b32 s{sA}, s{sA}, 12
    s_and_b32 s{sB2}, s{sWV}, 3
    s_lshl_b32 s{sB2}, s{sB2}, 6
    s_add_u32 s{sA}, s{sA}, s{sB2}
    buffer_load_dwordx4 v6, s[{sH}:{sH + 3}], s{sA} offen lds
    """)
    stamp(a, dict(cfg, dv=124), 1, 0, 22)
    srd(a, sP, 6, N * 6)
    WF_R = 32
    a(f"""
    v_lshlrev_b32 v7, 4, v0
    s_cmp_ge_u32 s{sWV}, 8
    s_cbranch_scc1 K2_SMALL
    s_lshl_b32 s{sA}, s{sWV}, 12
    s_add_u32 s{sA}, s{sA}, {WS_WF}
    """)
    for ks in range(4):
        a(f"buffer_load_dwordx4 {vr(WF_R + 4 * ks, 4)}, v7, s[{sW}:{sW + 3}], s{sA} offen offset:{1024 * ks}")
    a(f"""
    s_branch K2_INIT
    K2_SMALL:
    s_cmp_ge_u32 s{sWV}, 14
    s_cbranch_scc1 K2_SM2
    s_and_b32 s{sA}, s{sWV}, 1
    s_lshl_b32 s{sA}, s{sA}, 7
    v_and_b32 v32, 3, v0
    v_lshlrev_b32 v32, 5, v32
    v_and_b32 v33, 12, v0
    v_or_b32 v32, v32, v33
    v_and_b32 v33, 32, v0
    v_lshrrev_b32 v33, 1, v33
    v_or_b32 v32, v32, v33
    v_and_b32 v33, 16, v0
    v_lshrrev_b32 v33, 3, v33
    v_or3_b32 v32, v32, v33, s{sA}
    s_add_u32 s44, s14, 65536
    s_addc_u32 s45, s15, 0
    s_and_b32 s{sB2}, s{sWV}, 2
    s_lshl_b32 s{sB2}, s{sB2}, 7
    v_add_u32 v32, s{sB2}, v32
    s_cmp_ge_u32 s{sWV}, 12
    s_cselect_b32 s44, s16, s44
    s_cselect_b32 s45, s17, s45
    global_load_ushort v34, v32, s[44:45]
    s_branch K2_INIT
    K2_SM2:
    v_add_u32 v32, s{sNB}, v0
    v_mul_u32_u24 v32, 6, v32
    v_and_b32 v33, -4, v32
    buffer_load_dwordx2 v[34:35], v33, s[{sP}:{sP + 3}], 0 offen
    K2_INIT:
    v_mov_b32 v8, 0
    v_mov_b32 v9, 0
    v_mov_b32 v10, 0
    v_mov_b32 v11, 0
    ds_write_b128 v22, v[8:11] offset:{ACC}
    v_add_u32 v22, 16384, v22
    ds_write_b128 v22, v[8:11] offset:{ACC}
    s_cmp_lg_u32 s{sWV}, 15
    s_cbranch_scc1 K2_INIT2
    v_lshlrev_b32 v12, 2, v0
    ds_write_b32 v12, v8 offset:{CNT}
    v_cmp_eq_u32 vcc, 32, v0
    v_mov_b32 v12, 0x3f80
    v_mov_b32 v13, 0x3f800000
    v_cndmask_b32 v8, 0, v12, vcc
    v_cndmask_b32 v10, 0, v13, vcc
    v_cmp_eq_u32 vcc, 33, v0
    s_nop 1
    v_cndmask_b32 v9, 0, v12, vcc
    v_cndmask_b32 v11, 0, v13, vcc
    ds_write_b128 v7, v[8:11] offset:{OH}
    K2_INIT2:
    s_mov_b32 s{sDONE}, 0
    s_mov_b32 s{sR}, 32
    s_mov_b32 s{sC000}, 0xc000
    s_mov_b32 s{sWSTEP}, 0xc0000
    s_movk_i32 s{s128}, 128
    s_movk_i32 s{s192}, 192
    s_movk_i32 s{s256}, 256
    s_movk_i32 s{s256 + 1}, 256
    s_mov_b32 s{sNL2E}, {f32(-LOG2E)}
    s_mov_b32 s{sG3}, 0
    s_mov_b32 s{sG3 + 1}, 0xffff0000
    s_mov_b32 s{sQN}, {QBYTES}
    s_mul_i32 s{sM0}, s{sWV}, {NSLOT * 1024}
    s_add_u32 s{sM0}, s{sM0}, {RING}
    """)
    for i in range(1, NSLOT):
        a(f"s_add_u32 s{sM0 + i}, s{sM0}, {1024 * i}")
    srd(a, sQ, 22, QBYTES)

    def recload(first):
        a(f"""
        v_and_b32 v6, 7, v0
        v_lshlrev_b32 v6, 1, v6
        s_movk_i32 s{sA}, 3200
        v_mad_u32_u24 v3, v2, s{sA}, v6
        v_add_u32 v3, s{sDONE}, v3
        """)
        if first:
            a(f"""
            s_cmp_ge_u32 s{sWV}, 8
            s_cbranch_scc1 K2_W1
            s_waitcnt vmcnt(5)
            s_branch K2_W2
            K2_W1:
            s_waitcnt vmcnt(2)
            K2_W2:
            """)
        else:
            a("s_waitcnt vmcnt(0)")
        a(f"""
        v_and_b32 v12, 0xffff, v4
        v_add_lshl_u32 v3, v3, v12, 3
        s_mov_b32 s{sA}, {WS_REC}
        buffer_load_dwordx4 v[8:11], v3, s[{sW}:{sW + 3}], s{sA} offen
        v_lshrrev_b32 v5, 16, v4
        v_subrev_u32 v5, s{sDONE}, v5
        v_add_u32 v12, 16, v6
        v_cmp_lt_i32 vcc, v12, v5
        v_bfrev_b32 v12, 1
        s_nop 0
        v_cndmask_b32 v3, v12, v3, vcc
        buffer_load_dwordx4 v[12:15], v3, s[{sW}:{sW + 3}], s{sA} offen offset:128
        """)

    recload(True)
    a(f"""
    s_waitcnt vmcnt(2) lgkmcnt(0)
    s_barrier
    s_cmp_ge_u32 s{sWV}, 8
    s_cbranch_scc1 K2_SMALLW
    """)
    HF, PA = 48, 112
    a(f"""
    v_and_b32 v16, 15, v0
    v_lshrrev_b32 v17, 4, v0
    v_lshrrev_b32 v18, 3, v16
    v_lshlrev_b32 v18, 1, v18
    v_xor_b32 v18, v18, v17
    v_lshlrev_b32 v18, 4, v18
    v_lshl_add_u32 v18, v16, 6, v18
    """)
    for i in range(16):
        a(f"ds_read_b128 {vr(HF + 4 * i, 4)}, v18 offset:{HT + 1024 * i}")
        if i == 11:
            a(f"""
            s_movk_i32 s{sA}, 288
            s_lshl_b32 s{sB2}, s{sWV}, 5
            s_add_u32 s{sB2}, s{sB2}, {PT}
            v_lshl_add_u32 v17, v17, 3, s{sB2}
            v_mad_u32_u24 v17, v16, s{sA}, v17
            """)
    for rt in range(4):
        for ks in range(4):
            i = 4 * rt + ks
            a(f"s_waitcnt lgkmcnt({15 - i})")
            c = "0" if ks == 0 else vr(PA + 4 * rt, 4)
            a(f"v_mfma_f32_16x16x32_bf16 {vr(PA + 4 * rt, 4)}, {vr(WF_R + 4 * ks, 4)}, {vr(HF + 4 * i, 4)}, {c}")
    for rt in range(4):
        p = PA + 4 * rt
        a(f"""
        v_pk_mul_f32 {vr(p, 2)}, {vr(p, 2)}, s[{sNL2E}:{sNL2E + 1}] op_sel_hi:[1,0]
        v_pk_mul_f32 {vr(p + 2, 2)}, {vr(p + 2, 2)}, s[{sNL2E}:{sNL2E + 1}] op_sel_hi:[1,0]
        v_cvt_pk_bf16_f32 v{p}, v{p}, v{p + 1}
        v_cvt_pk_bf16_f32 v{p + 1}, v{p + 2}, v{p + 3}
        ds_write_b64 v17, {vr(p, 2)} offset:{rt * 16 * 288}
        """)
    a(f"""
    s_branch K2_COUNT
    K2_SMALLW:
    s_cmp_ge_u32 s{sWV}, 14
    s_cbranch_scc1 K2_SW3
    s_cmp_ge_u32 s{sWV}, 12
    s_cbranch_scc1 K2_SW2
    s_and_b32 s{sA}, s{sWV}, 3
    s_lshl_b32 s{sA}, s{sA}, 7
    v_lshl_add_u32 v32, v0, 1, s{sA}
    ds_write_b16 v32, v34 offset:{WD}
    s_branch K2_COUNT
    K2_SW2:
    s_and_b32 s{sA}, s{sWV}, 1
    s_lshl_b32 s{sA}, s{sA}, 4
    v_and_b32 v32, 15, v0
    v_lshl_add_u32 v32, v32, 5, s{sA}
    v_lshrrev_b32 v33, 4, v0
    v_lshl_add_u32 v32, v33, 2, v32
    v_lshlrev_b32 v34, 16, v34
    v_mul_f32 v34, {f32(-LN2)}, v34
    ds_write_b32 v32, v34 offset:{WX}
    s_branch K2_COUNT
    K2_SW3:
    v_and_b32 v32, 2, v32
    v_lshlrev_b32 v32, 3, v32
    v_lshrrev_b64 v[34:35], v32, v[34:35]
    v_lshlrev_b32 v36, 16, v34
    v_and_b32 v37, 0xffff0000, v34
    v_lshlrev_b32 v38, 16, v35
    v_mov_b32 v39, 0
    ds_write_b128 v7, v[36:39] offset:{OWN}
    """)
    a(f"""
    K2_COUNT:
    v_min_i32 v16, s{sR}, v5
    v_cmp_lt_i32 vcc, s{sR}, v5
    v_mov_b32 v17, {OOB}
    v_mov_b32 v18, 252
    v_mov_b32 v19, 1
    v_cndmask_b32 v18, v17, v18, vcc
    ds_write_b32 v18, v19 offset:{CNT}
    v_sub_u32 v16, v16, v6
    s_waitcnt vmcnt(0)
    """)
    lims = (0, 1, 16, 17)
    for j in range(4):
        a(f"""
        v_cmp_lt_i32 s[{82 + 2 * j}:{83 + 2 * j}], {lims[j]}, v16
        v_lshrrev_b32 v{24 + j}, 16, v{8 + 2 * j}
        """)
    for j in range(4):
        a(f"""
        v_cndmask_b32 v{24 + j}, v17, v{24 + j}, s[{82 + 2 * j}:{83 + 2 * j}]
        ds_add_rtn_u32 v{28 + j}, v{24 + j}, v19 offset:{CNT}
        """)
    a(f"""
    v_lshlrev_b32 v18, 2, v0
    s_waitcnt lgkmcnt(0)
    s_barrier
    ds_read_b32 v20, v18 offset:{CNT}
    s_waitcnt lgkmcnt(0)
    v_mov_b32 v{vIncl}, v20
    v_readlane_b32 s{sMORE}, v20, 63
    """)
    scan64(a, vIncl)
    a(f"""
    v_sub_u32 v20, v{vIncl}, v20
    v_readlane_b32 s{sTOT}, v{vIncl}, 62
    """)
    for j in range(4):
        a(f"ds_bpermute_b32 v{32 + j}, v{24 + j}, v20")
    a(f"""
    s_cmp_gt_u32 s{sTOT}, {CAP}
    s_cbranch_scc1 K2_SHRINK
    s_add_u32 s{sA}, s{sTOT}, 15
    s_lshr_b32 s{sA}, s{sA}, 4
    s_lshr_b32 s{sB2}, s{sA}, 4
    s_and_b32 s{sA}, s{sA}, 15
    s_mul_i32 s{sT0}, s{sB2}, s{sWV}
    s_min_u32 s{sC}, s{sWV}, s{sA}
    s_add_u32 s{sT0}, s{sT0}, s{sC}
    s_cmp_lt_u32 s{sWV}, s{sA}
    s_addc_u32 s{sNT}, s{sB2}, 0
    """)
    for j in range(4):
        a(f"""
        s_waitcnt lgkmcnt(3)
        v_add_lshl_u32 v{32 + j}, v{32 + j}, v{28 + j}, 4
        v_cndmask_b32 v{32 + j}, v17, v{32 + j}, s[{82 + 2 * j}:{83 + 2 * j}]
        ds_write_b64 v{32 + j}, v[{8 + 2 * j}:{9 + 2 * j}] offset:{LIST}
        """)
    a(f"""
    s_cmp_lg_u32 s{sWV}, 15
    s_cbranch_scc1 K2_NOPAD
    v_add_lshl_u32 v18, v0, s{sTOT}, 4
    v_cndmask_b32 v18, v18, v17, s[{sG3}:{sG3 + 1}]
    v_mov_b32 v20, {252 << 16}
    v_mov_b32 v21, 0
    ds_write_b64 v18, v[20:21] offset:{LIST}
    K2_NOPAD:
    """)
    a(f"""
    v_and_b32 v24, 15, v0
    v_lshrrev_b32 v25, 4, v0
    v_lshrrev_b32 v26, 2, v0
    v_and_b32 v27, 3, v0
    v_lshrrev_b32 v18, 3, v24
    v_lshlrev_b32 v18, 1, v18
    v_xor_b32 v18, v18, v25
    v_lshl_add_u32 v18, v18, 4, s{sM0}
    v_lshl_add_u32 v{vRing}, v24, 6, v18
    v_mov_b32 v{vLc}, v{vLc + 21}
    v_cndmask_b32 v{vMul}, 2, 0, s[{sG3}:{sG3 + 1}]
    v_mov_b32 v{vIS}, 256
    v_cndmask_b32 v{vIX}, 0, v{vIS}, s[{sG3}:{sG3 + 1}]
    v_lshrrev_b32 v18, 2, v24
    v_cmp_eq_u32 vcc, v18, v25
    v_mov_b32 v18, 0x3f80
    v_mov_b32 v19, 0
    v_cndmask_b32 v18, 0, v18, vcc
    v_lshlrev_b32 v20, 4, v27
    v_lshlrev_b64 v[{B + 2}:{B + 3}], v20, v[18:19]
    """)
    for gi in range(1, 4):
        a(f"v_mov_b32 v{B + 6 * gi + 2}, v{B + 2}\nv_mov_b32 v{B + 6 * gi + 3}, v{B + 3}")
    a(f"""
    s_lshl_b32 s{sTEND}, s{sT0}, 4
    s_add_u32 s{sA}, s{sT0}, s{sNT}
    s_lshl_b32 s{sA}, s{sA}, 4
    s_min_u32 s{sWEND}, s{sA}, s{sTOT}
    s_lshl_b32 s{sA}, s{sT0}, 8
    s_add_u32 s{sA}, s{sA}, {LIST}
    v_lshl_add_u32 v{vDa}, v26, 4, s{sA}
    v_lshl_add_u32 v{vEa}, v24, 4, s{sA}
    v_lshl_add_u32 v28, v0, 4, s{sA}
    s_lshl_b32 s{sB2}, s{sNT}, 4
    v_cmp_gt_u32 vcc, s{sB2}, v0
    v_add_u32 v29, 64, v0
    v_cmp_gt_u32 s[82:83], s{sB2}, v29
    v_add_u32 v29, 1024, v28
    v_cndmask_b32 v28, v17, v28, vcc
    v_cndmask_b32 v29, v17, v29, s[82:83]
    s_mov_b32 s{sLAST}, 0
    s_waitcnt lgkmcnt(0)
    s_barrier
    """)
    stamp(a, cfg, 1, 1, 22)
    a(f"""
    s_cmp_eq_u32 s{sNT}, 0
    s_cbranch_scc1 K2_ROUNDEND
    """)
    soff = ["0", "64", f"s{s128}", f"s{s192}"]

    def dma(kc, slot=None):
        slot = kc % NSLOT
        return [f"s_mov_b32 m0, s{sM0 + slot}", "s_nop 0",
                f"buffer_load_dwordx4 v{vVoff}, s[{sQ}:{sQ + 3}], {soff[kc]} offen lds ; @w:ring{slot}"]

    def rd(kc):
        slot = kc % NSLOT
        d = A + 2 + 6 * (kc & 1)
        return f"ds_read_b128 {vr(d, 4)}, v{vRing} offset:{1024 * slot} ; @r:ring{slot}"

    def first_dmas():
        a(f"v_mad_u32_u16 v{vVoff}, v{vD0}, s{s256}, v{vLc}")
        a(f"s_mov_b32 s{sQ + 2}, s{sQN}")
        for kc in range(NSLOT):
            a("\n".join(dma(kc)))

    def xfrags():
        a(f"""
        v_lshrrev_b32 v18, 2, v{vL}
        v_and_b32 v19, 3, v{vL}
        v_add_u32 v20, s{sN0}, v18
        s_movk_i32 s{sA}, 288
        v_mul_u32_u24 v20, s{sA}, v20
        v_add_u32 v20, {PT}, v20
        v_lshlrev_b32 v21, 8, v18
        v_add_u32 v21, {WD - 14 * 256}, v21
        v_cndmask_b32 v20, v20, v21, s[{sG3}:{sG3 + 1}]
        v_lshrrev_b32 v21, 3, v{vL}
        v_cmp_eq_u32 vcc, 6, v21
        v_mov_b32 v21, {OOB}
        v_lshl_add_u32 v20, v19, 3, v20
        v_cndmask_b32 v20, v20, v21, vcc
        """)
        xpos = {0: B, 3: B + 4, 4: B + 6, 7: B + 10, 2: B + 12, 1: B + 16, 6: B + 18, 5: B + 22}
        for u in range(8):
            a(f"ds_read_b64_tr_b16 {vr(xpos[u], 2)}, v20 offset:{32 * u}")
        a(f"""
        s_mov_b32 s{sNW}, s{sN0}
        s_add_u32 s{sA}, s{sN0}, 3
        v_readlane_b32 s{sEW}, v{vIncl}, s{sA}
        v_add_u32 v19, s{sN0}, v19
        s_mov_b32 s{sA}, 0x30000
        v_mul_u32_u24 v19, s{sA}, v19
        v_sub_u32 v{vBS}, v{vDa}, v19
        v_add_u32 v{vBS}, 8, v{vBS}
        s_lshl_b32 s{sA}, s{sN0}, 3
        s_sub_u32 s{sA}, {OH + 512}, s{sA}
        v_lshrrev_b32 v18, 4, v{vL}
        v_lshlrev_b32 v18, 5, v18
        v_sub_u32 v18, s{sA}, v18
        v_cndmask_b32 v{vBX}, v18, v{vEa}, s[{sG3}:{sG3 + 1}]
        s_cmp_ge_u32 s{sEW}, s{sWEND}
        s_cselect_b32 s{sEW}, 0x7fffffff, s{sEW}
        """)

    G = 32
    a(f"""
    ds_read_b64 v[{G}:{G + 1}], v28
    ds_read_b64 v[{G + 4}:{G + 5}], v29
    ds_read_b32 v{vD0}, v{vDa}
    ds_read_b32 v{vDE}, v{vEa}
    """)
    if NSLOT == 4:
        a(f"ds_read_b32 v{vDV}, v{vDa} offset:256")
    nl = 3 if NSLOT == 4 else 2
    for p in range(2):
        r = G + 4 * p
        a(f"""
        s_waitcnt lgkmcnt({nl + 1})
        v_mad_u32_u16 v{G + 8 + p}, v{r}, 6, 0
        v_and_b32 v{G + 10 + p}, -4, v{G + 8 + p}
        buffer_load_dwordx2 v[{G + 12 + 2 * p}:{G + 13 + 2 * p}], v{G + 10 + p}, s[{sP}:{sP + 3}], 0 offen
        v_mad_u32_u16 v{G + 10 + p}, v{r}, 4, 0 op_sel:[1,0,0,0]
        ds_read_b96 v[{G + 16 + 4 * p}:{G + 18 + 4 * p}], v{G + 10 + p} offset:{OWN}
        """)
    a(f"""
    s_waitcnt lgkmcnt(2)
    v_readfirstlane_b32 s{sN0}, v{vD0}
    """)
    first_dmas()
    a(f"s_lshr_b32 s{sN0}, s{sN0}, 18")
    xfrags()
    for p in range(2):
        r, ps, po, sh = G + 4 * p, G + 12 + 2 * p, G + 16 + 4 * p, G + 8 + p
        a(f"""
        v_and_b32 v{sh}, 2, v{sh}
        v_lshlrev_b32 v{sh}, 3, v{sh}
        s_waitcnt vmcnt({NSLOT + 1 - p}) lgkmcnt(8)
        v_lshrrev_b64 v[{ps}:{ps + 1}], v{sh}, v[{ps}:{ps + 1}]
        v_lshlrev_b32 v18, 16, v{ps}
        v_and_b32 v19, 0xffff0000, v{ps}
        v_lshlrev_b32 v20, 16, v{ps + 1}
        v_sub_f32 v18, v{po}, v18
        v_sub_f32 v19, v{po + 1}, v19
        v_sub_f32 v20, v{po + 2}, v20
        v_cvt_pk_bf16_f32 v{r + 2}, 1.0, v18
        v_cvt_pk_bf16_f32 v{r + 3}, v19, v20
        v_and_b32 v18, 0xffff0000, v{r + 2}
        v_lshlrev_b32 v19, 16, v{r + 3}
        v_and_b32 v20, 0xffff0000, v{r + 3}
        v_mul_f32 v18, v18, v18
        v_fmac_f32 v18, v19, v19
        v_fmac_f32 v18, v20, v20
        v_mul_f32 v18, s{sNL2E}, v18
        v_mul_f32 v19, s{sNL2E}, v{r + 1}
        v_cvt_pk_bf16_f32 v{r + 1}, v18, v19
        ds_write_b128 v{28 + p}, v[{r}:{r + 3}]
        """)
    a("K2_COMMON:")
    x0, x1, x2 = A, A + 6, A + 12
    a(f"""
    v_mad_u32_u16 v{vXa}, v{vDE}, v{vMul}, v{vBX} op_sel:[1,0,0,0]
    ds_read_b64 {vr(x0, 2)}, v{vXa}
    ds_read_b64 {vr(x1, 2)}, v{vXa}
    ds_read_b64 {vr(x2, 2)}, v{vXa}
    v_mov_b32 v{S}, 0
    v_mov_b32 v{S + 1}, 0
    v_add_u32 v{vBX}, v{vBX}, v{vIX}
    v_lshl_add_u64 v[{vDa}:{vEa}], v[{vDa}:{vEa}], 0, s[{s256}:{s256 + 1}]
    s_waitcnt vmcnt({NSLOT - 1})
    {rd(0)}
    s_waitcnt vmcnt({NSLOT - 2})
    {rd(1)}
    """)
    for u in range(8):
        a(f"v_mfma_f32_16x16x16_bf16 {vr(AC + 4 * u, 4)}, {vr(S, 2)}, {vr(S, 2)}, 0")
    if NSLOT == 4:
        a(f"""
        v_mad_u32_u16 v{vVoff}, v{vDV}, s{s256}, v{vLc}
        s_cmp_le_u32 s{sNT}, 1
        s_cselect_b32 s{sQ + 2}, 0, s{sQN}
        """)
    a("s_waitcnt lgkmcnt(0)")
    for kc in ((2, 3) if NSLOT == 2 else (0, 1)):
        a("\n".join(dma(kc)))
    ORD = [0, 1, 3, 2, 4, 5, 7, 6]
    Aop = {0: A, 1: A + 4, 3: A + 10, 2: A + 6}
    Bop = {0: B, 3: B + 2, 4: B + 6, 7: B + 8, 2: B + 12, 1: B + 14, 6: B + 18, 5: B + 20}

    def Kmf(s):
        u = ORD[s % 8]
        z = Z + 4 * (s & 1)
        return f"v_mfma_f32_16x16x32_bf16 {vr(z, 4)}, {vr(Aop[u & 3], 4)}, {vr(Bop[u], 4)}, 0"

    def Cmf(s, zero=False):
        u = ORD[s]
        c = "0" if zero else vr(AC + 4 * u, 4)
        return f"v_mfma_f32_16x16x16_bf16 {vr(AC + 4 * u, 4)}, {vr(S, 2)}, {vr(M + 2 * u, 2)}, {c}"

    a(Kmf(0))
    a("s_nop 5")
    stamp(a, cfg, 1, 2, 22)

    seq = []
    I = lambda t, tag=None: seq.append(("i", t, tag))
    NEED = lambda *tags: seq.append(("need", tags, None))
    for s in range(8):
        u = ORD[s]
        z = Z + 4 * (s & 1)
        pre, mid, post = [], [], []
        if s == 0:
            NEED("x1")
        if s == 1:
            NEED("x2")
        if s == 7:
            NEED("x0")
        I(Kmf(s + 1))
        if s == 0:
            I(f"v_mad_u32_u16 v{vSa}, v{vD0}, s{sC000}, v{vBS} op_sel:[1,0,0,0]")
            I(f"ds_read_b64_tr_b16 {vr(S, 2)}, v{vSa}", "S")
            I(f"ds_read_b32 v{vD0}, v{vDa}", "d0")
            I(f"ds_read_b32 v{vDE}, v{vEa}", "dE")
            if NSLOT == 4:
                I(f"ds_read_b32 v{vDV}, v{vDa} offset:256", "dV")
            else:
                I(f"s_cmp_eq_u32 s{sNT}, 1")
                I(f"s_cselect_b32 s{sQ + 2}, 0, s{sQN}")
        if s & 1:
            kc = ((s + 3) // 2) % 4
            I(f"s_waitcnt vmcnt({NSLOT - 1})")
            I(rd(kc), f"q{kc}")
        if s == 3:
            I(f"ds_read_b64 {vr(x0, 2)}, v{vXa}", "x0")
        if s == 5:
            I(f"ds_read_b64 {vr(x2, 2)}, v{vXa}", "x2")
        if s == 6:
            I(f"ds_read_b64 {vr(x1, 2)}, v{vXa}", "x1")
        for k in range(4):
            I(f"v_exp_f32 v{T + k}, v{z + k}")
        if s == 1 and NSLOT == 2:
            NEED("d0")
            I(f"v_mad_u32_u16 v{vVoff}, v{vD0}, s{s256}, v{vLc}")
        if s == 2:
            NEED("dE")
            I(f"v_mad_u32_u16 v{vXa}, v{vDE}, v{vMul}, v{vBX} op_sel:[1,0,0,0]")
        if s == 4:
            I(f"v_lshl_add_u64 v[{vBX}:{vBS}], v[{vBX}:{vBS}], 0, v[{vIX}:{vIS}]")
            if NSLOT == 4:
                NEED("dV")
                I(f"v_mad_u32_u16 v{vVoff}, v{vDV}, s{s256}, v{vLc}")
                I(f"s_cmp_le_u32 s{sNT}, 2")
                I(f"s_cselect_b32 s{sQ + 2}, 0, s{sQN}")
        if s == 6:
            I(f"v_lshl_add_u64 v[{vDa}:{vEa}], v[{vDa}:{vEa}], 0, s[{s256}:{s256 + 1}]")
        for k in (0, 2):
            I(f"v_pk_add_f32 {vr(T + k, 2)}, {vr(T + k, 2)}, 1.0 op_sel_hi:[1,0]")
        if s >= 1:
            if s == 1:
                NEED("S")
            I(Cmf(s - 1))
        for k in range(4):
            I(f"v_rcp_f32 v{T + k}, v{T + k}")
        if s & 1:
            kc = ((s + 3) // 2) % 4
            nk = (kc + NSLOT) % 4
            d = dma(nk)
            I(d[0])
        for k in (0, 2):
            I(f"v_pk_mul_f32 {vr(T + k, 2)}, {vr(T + k, 2)}, {vr(z + k, 2)}")
        I(f"v_cvt_pk_bf16_f32 v{M + 2 * u}, v{T}, v{T + 1}")
        I(f"v_cvt_pk_bf16_f32 v{M + 2 * u + 1}, v{T + 2}, v{T + 3}")
        if s & 1:
            NEED(f"q{kc}")
            I(d[2])
        if s == 7:
            I(f"s_add_u32 s{sTEND}, s{sTEND}, 16")
            I(Cmf(7))
    n = len(seq)
    a("K2_LOOP:")
    for i, (k, t, tag) in enumerate(seq):
        if k == "i":
            a(t)
            continue
        best = None
        for tg in t:
            cnt, j = 0, i
            while True:
                j = (j - 1) % n
                if seq[j][0] == "i" and seq[j][2] == tg:
                    break
                if seq[j][0] == "i" and seq[j][1].startswith("ds_"):
                    cnt += 1
            best = cnt if best is None else min(best, cnt)
        a(f"s_waitcnt lgkmcnt({min(best, 15)})")
    a(f"""
    s_cmp_le_u32 s{sEW}, s{sTEND}
    s_cbranch_scc1 K2_FLUSH
    K2_BACK:
    s_sub_u32 s{sNT}, s{sNT}, 1
    s_cmp_lg_u32 s{sNT}, 0
    s_cbranch_scc1 K2_LOOP
    s_mov_b32 s{sLAST}, 1
    """)
    W0, W1 = T, Z + 4
    a(f"""
    K2_FLUSH:
    v_and_b32 v18, 15, v{vL}
    v_lshlrev_b32 v19, 5, v18
    ds_read_b128 {vr(W0, 4)}, v19 offset:{WX}
    ds_read_b128 {vr(W1, 4)}, v19 offset:{WX + 16}
    v_lshrrev_b32 v19, 4, v{vL}
    v_add_u32 v19, s{sNW}, v19
    s_movk_i32 s{sA}, {AST}
    v_lshlrev_b32 v18, 2, v18
    v_mad_u32_u24 v18, v19, s{sA}, v18
    """)
    for u in ORD:
        a(f"ds_add_f32 v18, v{AC + 4 * u} offset:{ACC + 64 * u}")
    a("s_waitcnt lgkmcnt(8)")
    for u in range(8):
        w = (W0 if u < 4 else W1) + (u & 2)
        hi = u & 1
        for k in (0, 2):
            if u == 0:
                a(f"v_pk_mul_f32 {vr(F + k, 2)}, {vr(AC + k, 2)}, {vr(w, 2)} op_sel_hi:[1,0]")
            else:
                a(f"v_pk_fma_f32 {vr(F + k, 2)}, {vr(AC + 4 * u + k, 2)}, {vr(w, 2)}, {vr(F + k, 2)} op_sel:[0,{hi},0] op_sel_hi:[1,{hi},1]")
    a("s_nop 0")
    for sh in (1, 2, 4, 8):
        for k in (1, 2, 3):
            a(f"v_add_f32_dpp v{F + k}, v{F + k}, v{F + k} row_shr:{sh} row_mask:0xf bank_mask:0xf")
    a("s_mov_b32 exec_lo, 0x80008000\ns_mov_b32 exec_hi, 0x80008000")
    for k in (1, 2, 3):
        a(f"ds_add_f32 v18, v{F + k} offset:{ACC + 512 - 60 + 4 * (k - 1)}")
    a(f"""
    s_mov_b64 exec, -1
    s_cmp_lg_u32 s{sLAST}, 0
    s_cbranch_scc1 K2_ROUNDEND
    s_add_u32 s{sNW}, s{sNW}, 4
    s_sub_u32 s{sA}, s{sNW}, s{sN0}
    s_cmp_eq_u32 s{sA}, 12
    s_cbranch_scc1 K2_RESTART
    s_add_u32 s{sA}, s{sNW}, 3
    v_readlane_b32 s{sEW}, v{vIncl}, s{sA}
    v_subrev_u32 v{vSa}, s{sWSTEP}, v{vSa}
    v_subrev_u32 v{vBS}, s{sWSTEP}, v{vBS}
    ds_read_b64_tr_b16 {vr(S, 2)}, v{vSa}
    s_cmp_ge_u32 s{sEW}, s{sWEND}
    s_cselect_b32 s{sEW}, 0x7fffffff, s{sEW}
    s_waitcnt lgkmcnt(0)
    """)
    for s in range(8):
        a(Cmf(s, True))
    a(f"""
    s_cmp_le_u32 s{sEW}, s{sTEND}
    s_cbranch_scc1 K2_FLUSH
    s_branch K2_BACK
    K2_RESTART:
    s_mov_b32 s{sN0}, s{sNW}
    s_sub_u32 s{sTEND}, s{sTEND}, 16
    s_waitcnt vmcnt(0) lgkmcnt(0)
    v_subrev_u32 v{vDa}, 512, v{vDa}
    v_subrev_u32 v{vEa}, 512, v{vEa}
    ds_read_b32 v{vD0}, v{vDa}
    ds_read_b32 v{vDE}, v{vEa}
    """)
    if NSLOT == 4:
        a(f"ds_read_b32 v{vDV}, v{vDa} offset:256")
    a("s_waitcnt lgkmcnt(0)")
    first_dmas()
    xfrags()
    a("s_branch K2_COMMON")
    a(f"""
    K2_SHRINK:
    s_waitcnt lgkmcnt(0)
    s_barrier
    v_mov_b32 v19, 0
    ds_write_b32 v18, v19 offset:{CNT}
    s_mov_b32 s{sR}, 14
    s_waitcnt lgkmcnt(0)
    s_barrier
    s_branch K2_COUNT
    K2_NEXTROUND:
    s_waitcnt vmcnt(0) lgkmcnt(0)
    s_barrier
    v_lshlrev_b32 v18, 2, v0
    v_mov_b32 v19, 0
    ds_write_b32 v18, v19 offset:{CNT}
    s_add_u32 s{sDONE}, s{sDONE}, s{sR}
    s_mov_b32 s{sR}, 32
    v_mov_b32 v{vLc + 21}, v{vLc}
    v_lshrrev_b32 v2, 3, v0
    s_lshl_b32 s{sA}, s{sWV}, 3
    v_add_u32 v2, s{sA}, v2
    v_lshlrev_b32 v3, 10, v2
    s_lshl_b32 s{sA}, s{sB}, 2
    s_add_u32 s{sA}, s{sA}, {WS_TAB}
    buffer_load_dword v4, v3, s[{sW}:{sW + 3}], s{sA} offen
    """)
    recload(False)
    a(f"""
    s_waitcnt lgkmcnt(0)
    s_barrier
    s_branch K2_COUNT
    K2_ROUNDEND:
    s_cmp_lg_u32 s{sMORE}, 0
    s_cbranch_scc1 K2_NEXTROUND
    """)
    stamp(a, cfg, 1, 3, 22)
    WT, WB, HF, GA = 16, 32, 48, 112
    MST = 272
    a(f"""
    s_sub_u32 s{sNV}, {N}, s{sNB}
    s_min_u32 s{sNV}, s{sNV}, {NB}
    v_and_b32 v1, 15, v0
    v_lshrrev_b32 v2, 4, v0
    s_cmp_lt_u32 s{sWV}, 8
    s_cbranch_scc1 K2_E1
    s_waitcnt lgkmcnt(0)
    v_lshlrev_b32 v7, 4, v0
    s_lshl_b32 s{sA}, s{sWV}, 12
    s_add_u32 s{sA}, s{sA}, {WS_WF}
    s_add_u32 s{sB2}, s{sA}, 32768
    """)
    for ks in range(4):
        a(f"buffer_load_dwordx4 {vr(WT + 4 * ks, 4)}, v7, s[{sW}:{sW + 3}], s{sA} offen offset:{1024 * ks}")
    for ks in range(4):
        a(f"buffer_load_dwordx4 {vr(WB + 4 * ks, 4)}, v7, s[{sW}:{sW + 3}], s{sB2} offen offset:{1024 * ks}")
    a(f"""
    v_lshrrev_b32 v3, 3, v1
    v_lshlrev_b32 v3, 1, v3
    v_xor_b32 v4, v3, v2
    v_lshlrev_b32 v4, 4, v4
    v_lshl_add_u32 v4, v1, 6, v4
    """)
    for i in range(16):
        a(f"ds_read_b128 {vr(HF + 4 * i, 4)}, v4 offset:{HT + 1024 * i}")
    a("s_waitcnt vmcnt(4)")
    for rt in range(4):
        for ks in range(4):
            i = 4 * rt + ks
            a(f"s_waitcnt lgkmcnt({15 - i})")
            c = "0" if ks == 0 else vr(GA + 4 * rt, 4)
            a(f"v_mfma_f32_16x16x32_bf16 {vr(GA + 4 * rt, 4)}, {vr(WT + 4 * ks, 4)}, {vr(HF + 4 * i, 4)}, {c}")
    a(f"""
    K2_E1:
    s_lshl_b32 s{sA}, s{sWV}, 2
    v_add_u32 v5, s{sA}, v2
    s_movk_i32 s{sA}, {AST}
    v_lshlrev_b32 v6, 4, v1
    v_mad_u32_u24 v8, v5, s{sA}, v6
    s_movk_i32 s{sA}, {MST}
    v_mad_u32_u24 v9, v5, s{sA}, v6
    v_lshl_add_u32 v10, v5, 8, v6
    s_mov_b32 s{sA}, {f32(-LN2)}
    s_waitcnt vmcnt(0) lgkmcnt(0)
    s_barrier
    ds_read_b128 v[48:51], v8 offset:{ACC}
    ds_read_b128 v[52:55], v8 offset:{ACC + 256}
    v_add_u32 v9, {PT}, v9
    s_waitcnt lgkmcnt(0)
    """)
    assert sA % 2 == 1
    a(f"s_mov_b32 s{sB2}, s{sA}")
    for k in range(4):
        a(f"v_pk_mul_f32 {vr(48 + 2 * k, 2)}, {vr(48 + 2 * k, 2)}, s[{sB2}:{sB2 + 1}] op_sel_hi:[1,0]")
    for k in range(4):
        a(f"v_cvt_pk_bf16_f32 v{48 + k}, v{48 + 2 * k}, v{49 + 2 * k}")
    a(f"""
    ds_write_b128 v9, v[48:51]
    s_waitcnt lgkmcnt(0)
    s_barrier
    s_cmp_lt_u32 s{sWV}, 8
    s_cbranch_scc1 K2_POS
    s_movk_i32 s{sA}, {MST}
    v_lshlrev_b32 v4, 4, v2
    v_mad_u32_u24 v4, v1, s{sA}, v4
    v_add_u32 v4, {PT}, v4
    """)
    for rt in range(4):
        for ks in range(4):
            a(f"ds_read_b128 {vr(HF + 4 * (4 * rt + ks), 4)}, v4 offset:{rt * 16 * MST + 64 * ks}")
    a(f"""
    s_and_b32 s{sB2}, s{sWV}, 1
    s_lshl_b32 s{sB2}, s{sB2}, 1
    v_lshrrev_b32 v11, 1, v2
    v_or_b32 v11, s{sB2}, v11
    v_xor_b32 v11, v11, v3
    v_lshlrev_b32 v11, 4, v11
    v_lshl_add_u32 v11, v1, 6, v11
    v_and_b32 v12, 1, v2
    v_lshl_add_u32 v11, v12, 3, v11
    s_and_b32 s{sB2}, s{sWV}, 6
    s_lshl_b32 s{sB2}, s{sB2}, 9
    v_add_u32 v11, s{sB2}, v11
    s_and_b32 s{sB2}, s{sWV}, 7
    s_lshl_b32 s{sB2}, s{sB2}, 5
    s_add_u32 s{sB2}, s{sB2}, {OT}
    v_lshl_add_u32 v12, v2, 3, s{sB2}
    v_mad_u32_u24 v12, v1, s{sA}, v12
    """)
    for rt in range(4):
        for ks in range(4):
            i = 4 * rt + ks
            a(f"s_waitcnt lgkmcnt({15 - i})")
            a(f"v_mfma_f32_16x16x32_bf16 {vr(GA + 4 * rt, 4)}, {vr(WB + 4 * ks, 4)}, {vr(HF + 4 * i, 4)}, {vr(GA + 4 * rt, 4)}")
    for rt in range(4):
        a(f"ds_read_b64 {vr(16 + 2 * rt, 2)}, v11 offset:{HT + 4096 * rt}")
    for rt in range(4):
        y, t_, hh = GA + 4 * rt, 24, 28
        a(f"""
        v_pk_mul_f32 {vr(t_, 2)}, {vr(y, 2)}, s[{sNL2E}:{sNL2E + 1}] op_sel_hi:[1,0]
        v_pk_mul_f32 {vr(t_ + 2, 2)}, {vr(y + 2, 2)}, s[{sNL2E}:{sNL2E + 1}] op_sel_hi:[1,0]
        """)
        for k in range(4):
            a(f"v_exp_f32 v{t_ + k}, v{t_ + k}")
        a(f"""
        s_waitcnt lgkmcnt(3)
        v_pk_add_f32 {vr(t_, 2)}, {vr(t_, 2)}, 1.0 op_sel_hi:[1,0]
        v_pk_add_f32 {vr(t_ + 2, 2)}, {vr(t_ + 2, 2)}, 1.0 op_sel_hi:[1,0]
        """)
        for k in range(4):
            a(f"v_rcp_f32 v{t_ + k}, v{t_ + k}")
        a(f"""
        v_lshlrev_b32 v{hh}, 16, v{16 + 2 * rt}
        v_and_b32 v{hh + 1}, 0xffff0000, v{16 + 2 * rt}
        v_lshlrev_b32 v{hh + 2}, 16, v{17 + 2 * rt}
        v_and_b32 v{hh + 3}, 0xffff0000, v{17 + 2 * rt}
        v_pk_fma_f32 {vr(t_, 2)}, {vr(t_, 2)}, {vr(y, 2)}, {vr(hh, 2)}
        v_pk_fma_f32 {vr(t_ + 2, 2)}, {vr(t_ + 2, 2)}, {vr(y + 2, 2)}, {vr(hh + 2, 2)}
        v_cvt_pk_bf16_f32 v{y}, v{t_}, v{t_ + 1}
        v_cvt_pk_bf16_f32 v{y + 1}, v{t_ + 2}, v{t_ + 3}
        ds_write_b64 v12, {vr(y, 2)} offset:{rt * 16 * MST}
        """)
    a(f"""
    s_branch K2_OUT
    K2_POS:
    s_cmp_ge_u32 s{sWV}, 3
    s_cbranch_scc1 K2_OUT
    s_lshl_b32 s{sA}, s{sWV}, 6
    v_add_u32 v11, s{sA}, v0
    v_mul_u32_u24 v12, 171, v11
    v_lshrrev_b32 v12, 9, v12
    v_mul_u32_u24 v13, 3, v12
    v_sub_u32 v13, v11, v13
    v_lshlrev_b32 v13, 2, v13
    s_movk_i32 s{sA}, {AST}
    v_mad_u32_u24 v14, v12, s{sA}, v13
    v_lshl_add_u32 v15, v12, 4, v13
    ds_read_b32 v14, v14 offset:{ACC + 512}
    ds_read_b32 v15, v15 offset:{OWN}
    s_mul_i32 s{sA}, s{sNB}, 6
    s_add_u32 s{sA}, s{sA}, {N * 256}
    v_lshl_add_u32 v11, v11, 1, s{sA}
    v_cmp_gt_u32 vcc, s{sNV}, v12
    s_waitcnt lgkmcnt(0)
    v_add_f32 v14, v14, v15
    v_cvt_pk_bf16_f32 v14, v14, v14
    s_and_saveexec_b64 s[82:83], vcc
    global_store_short v11, v14, s[20:21]
    s_mov_b64 exec, s[82:83]
    K2_OUT:
    s_lshl_b32 s{sC}, s{sNB}, 8
    s_add_u32 s{sO}, s20, s{sC}
    s_addc_u32 s{sO + 1}, s21, 0
    s_lshl_b32 s{sO + 2}, s{sNV}, 8
    s_mov_b32 s{sO + 3}, 0x20000
    v_add_u32 v9, {OT - PT}, v9
    s_waitcnt lgkmcnt(0)
    s_barrier
    ds_read_b128 v[48:51], v9
    s_waitcnt lgkmcnt(0)
    buffer_store_dwordx4 v[48:51], v10, s[{sO}:{sO + 3}], 0 offen
    """)
    stamp(a, cfg, 1, 4, 22)
    a("K2_END:\ns_endpgm")
    return a.text()


KD = """.amdhsa_kernel {name}
  .amdhsa_next_free_vgpr {vgpr}
  .amdhsa_next_free_sgpr 102
  .amdhsa_accum_offset {vgpr}
  .amdhsa_group_segment_fixed_size 0
  .amdhsa_kernarg_size 88
  .amdhsa_user_sgpr_count 2
  .amdhsa_user_sgpr_kernarg_segment_ptr 1
  .amdhsa_system_sgpr_workgroup_id_x 1
.end_amdhsa_kernel
"""


def build(cfg):
    ref = open(f"cdna_kernels/{NAME}.s.ref").read().split("\n")
    head = [l for l in ref if l.startswith(";") and "@launch" not in l]
    launches = [(K1, 57344), (K2, 163840)]
    extra = cfg.get("empty", 0)
    s = "\n".join(head) + "\n"
    for k, lds in launches:
        s += f"; @launch kernel={k} grid=(256,1,1) block=(1024,1,1) lds={lds}\n"
    for _ in range(extra):
        s += "; @launch kernel=egnn_empty_kernel grid=(256,1,1) block=(64,1,1) lds=0\n"
    s += '.amdgcn_target "amdgcn-amd-amdhsa--gfx950"\n.text\n'
    bodies = [(K1, gen_k1(cfg)), (K2, gen_k2(cfg))]
    if extra:
        bodies.append(("egnn_empty_kernel", "    s_endpgm\n"))
    for k, b in bodies:
        s += f".globl {k}\n.p2align 8\n.type {k},@function\n{k}:\n{b}"
    s += '.section .rodata,"a"\n'
    for k, _ in bodies:
        s += ".p2align 6\n" + KD.format(name=k, vgpr=128)
    errs = lint(s, [K1, K2])
    return s, errs


if __name__ == "__main__":
    cfg = {}
    out = f"cdna_kernels/{NAME}.s"
    for arg in sys.argv[1:]:
        if "=" in arg:
            k, v = arg.split("=")
            cfg[k] = int(v)
        else:
            out = arg
    s, errs = build(cfg)
    for e in errs:
        print(e)
    open(out, "w").write(s)
    print("wrote", out, len(s), "bytes;", len(errs), "lint messages")
```

```python
import os
import re
import struct
import sys

sys.path.insert(0, os.path.dirname(os.path.abspath(__file__)))
from lint import lint

NAME = "standalone__cheap_equivariant_egnn__graph"
K1 = "egnn_prep_kernel"
K2 = NAME + "_kernel"

N, E = 12500, 400000
NB = 49
WS_Q, QBYTES = 0, 12576 * 256
WS_REC = 0x400000
WS_WF = 0x780000
WS_TAB = 0x800000
WS_END = WS_TAB + 125 * 1024
WS_DIAG = 0x900000
OOB = 0x30000
LOG2E = 1.4426950408889634
LN2 = 0.6931471805599453


def f32(x):
    return "0x%08x" % struct.unpack("<I", struct.pack("<f", x))[0]


def vr(a, n=1):
    return f"v{a}" if n == 1 else f"v[{a}:{a + n - 1}]"


def sr(a, n=1):
    return f"s{a}" if n == 1 else f"s[{a}:{a + n - 1}]"


class Asm:
    def __init__(self):
        self.L = []

    def __call__(self, text):
        for line in text.split("\n"):
            s = line.strip()
            if not s:
                continue
            self.L.append(s if re.fullmatch(r"[\w.$]+:", s) else "    " + s)

    def text(self):
        return "\n".join(self.L) + "\n"


def srd(a, d, base, nrec, add=None):
    if add is None:
        a(f"s_mov_b32 s{d}, s{base}\ns_mov_b32 s{d + 1}, s{base + 1}")
    else:
        a(f"s_add_u32 s{d}, s{base}, {add}\ns_addc_u32 s{d + 1}, s{base + 1}, 0")
    a(f"s_mov_b32 s{d + 2}, {nrec}\ns_mov_b32 s{d + 3}, 0x20000")


def scan64(a, v):
    for c in ("row_shr:1 row_mask:0xf", "row_shr:2 row_mask:0xf", "row_shr:4 row_mask:0xf", "row_shr:8 row_mask:0xf",
              "row_bcast:15 row_mask:0xa", "row_bcast:31 row_mask:0xc"):
        a(f"s_nop 1\nv_add_u32_dpp v{v}, v{v}, v{v} {c} bank_mask:0xf")


STAMP_REGS = {0: [90, 92, 94, 96, 98, 100, 88, 86], 1: [90, 92, 94, 96, 98, 100, 8, 10, 12, 18]}


def stamp(a, cfg, kern, idx, real=False):
    if cfg.get("diag"):
        r = STAMP_REGS[kern][idx]
        a(f"{'s_memrealtime' if real else 's_memtime'} s[{r}:{r + 1}]")


def stamp_out(a, cfg, kern, ws):
    if not cfg.get("diag"):
        return
    regs = STAMP_REGS[kern]
    a(f"""
    s_waitcnt vmcnt(0)
    s_memrealtime s[{regs[1]}:{regs[1] + 1}]
    s_lshl_b32 s0, s2, 4
    s_add_u32 s0, s0, s3
    s_lshl_b32 s0, s0, 6
    s_add_u32 s0, s0, {WS_DIAG + kern * 0x40000}
    s_waitcnt lgkmcnt(0)
    s_mov_b64 exec, 1
    v_mov_b32 v0, s0
    """)
    for i, r in enumerate(regs):
        a(f"v_mov_b32 v1, s{r}\nglobal_store_dword v0, v1, s[{ws}:{ws + 1}] offset:{4 * i}")


def gen_k1(cfg):
    a = Asm()
    cfg = dict(cfg, dv=100)
    HIST, OFF, LST = 0, 1024, 4096
    a(f"""
    s_load_dwordx16 s[4:19], s[0:1], 0
    s_load_dwordx2 s[20:21], s[0:1], 80
    v_lshrrev_b32 v1, 6, v0
    s_cmp_ge_u32 s2, 256
    s_cbranch_scc1 K1_END
    v_readfirstlane_b32 s3, v1
    v_and_b32 v1, 63, v0
    s_cmp_ge_u32 s2, 125
    s_cbranch_scc1 K1_Q
    s_cmp_ge_u32 s3, 13
    s_cbranch_scc1 K1_AUX
    """)
    a(f"""
    v_lshlrev_b32 v2, 2, v0
    v_mov_b32 v3, 0
    ds_write_b32 v2, v3
    s_mul_i32 s22, s2, 12800
    v_lshlrev_b32 v28, 4, v0
    v_add_u32 v2, s22, v28
    v_lshrrev_b32 v3, 1, v2
    v_cmp_gt_u32 s[24:25], 800, v0
    """.replace("v_cmp_gt_u32 s[24:25], 800, v0", "v_cmp_gt_u32 vcc, 800, v0\ns_mov_b64 s[24:25], vcc"))
    a(f"""
    s_mov_b64 exec, s[24:25]
    s_waitcnt lgkmcnt(0)
    global_load_dwordx4 v[4:7], v2, s[12:13]
    global_load_dwordx4 v[8:11], v2, s[10:11]
    global_load_dwordx2 v[12:13], v3, s[8:9]
    """)
    stamp(a, cfg, 0, 0, True)
    stamp(a, cfg, 0, 2)
    a(f"""
    s_movk_i32 s26, 21400
    s_movk_i32 s27, -49
    v_mov_b32 v29, 1
    s_barrier
    s_waitcnt vmcnt(2)
    """)
    stamp(a, cfg, 0, 3)
    for j in range(4):
        a(f"""
        v_mul_u32_u24 v{14 + j}, s26, v{4 + j}
        v_lshrrev_b32 v{14 + j}, 18, v{14 + j}
        v_and_b32 v{14 + j}, 0x3fc, v{14 + j}
        ds_add_rtn_u32 v{18 + j}, v{14 + j}, v29 offset:{HIST}
        """)
    for j in range(4):
        a(f"""
        v_lshlrev_b32 v{4 + j}, 2, v{4 + j}
        v_mad_i32_i24 v{4 + j}, v{14 + j}, s27, v{4 + j}
        """)
    a("s_waitcnt vmcnt(0)")
    for j in range(4):
        a(f"v_lshl_or_b32 v{32 + 2 * j}, v{4 + j}, 16, v{8 + j}")
        if j & 1:
            a(f"v_and_b32 v{33 + 2 * j}, 0xffff0000, v{12 + j // 2}")
        else:
            a(f"v_lshlrev_b32 v{33 + 2 * j}, 16, v{12 + j // 2}")
    a(f"""
    s_mov_b64 exec, -1
    v_lshlrev_b32 v2, 4, v1
    s_waitcnt lgkmcnt(0)
    s_barrier
    """)
    stamp(a, cfg, 0, 4)
    a(f"""
    ds_read_b128 v[4:7], v2 offset:{HIST}
    s_waitcnt lgkmcnt(0)
    v_add_u32 v9, v4, v5
    v_add_u32 v10, v9, v6
    v_add_u32 v11, v10, v7
    v_mov_b32 v3, v11
    """)
    scan64(a, 3)
    a(f"""
    v_sub_u32 v8, v3, v11
    v_add_u32 v11, v8, v10
    v_add_u32 v10, v8, v9
    v_add_u32 v9, v8, v4
    ds_write_b128 v2, v[8:11] offset:{OFF}
    s_cmp_lg_u32 s3, 0
    s_cbranch_scc1 K1_NOTAB
    s_lshl_b32 s22, s2, 10
    s_add_u32 s22, s22, {WS_TAB}
    v_lshl_or_b32 v24, v4, 16, v8
    v_lshl_or_b32 v25, v5, 16, v9
    v_lshl_or_b32 v26, v6, 16, v10
    v_lshl_or_b32 v27, v7, 16, v11
    v_add_u32 v3, s22, v2
    global_store_dwordx4 v3, v[24:27], s[20:21]
    K1_NOTAB:
    s_mov_b64 exec, s[24:25]
    """)
    for j in range(4):
        a(f"ds_read_b32 v{14 + j}, v{14 + j} offset:{OFF}")
    for j in range(4):
        a(f"""
        s_waitcnt lgkmcnt(3)
        v_add_lshl_u32 v{14 + j}, v{14 + j}, v{18 + j}, 3
        ds_write_b64 v{14 + j}, v[{32 + 2 * j}:{33 + 2 * j}] offset:{LST}
        """)
    a(f"""
    s_mul_i32 s22, s2, 25600
    s_add_u32 s22, s22, {WS_REC}
    v_add_u32 v2, s22, v28
    v_add_u32 v3, 12800, v2
    s_waitcnt lgkmcnt(0)
    s_barrier
    """)
    stamp(a, cfg, 0, 5)
    a(f"""
    ds_read_b128 v[4:7], v28 offset:{LST}
    ds_read_b128 v[8:11], v28 offset:{LST + 12800}
    s_waitcnt lgkmcnt(1)
    global_store_dwordx4 v2, v[4:7], s[20:21]
    s_waitcnt lgkmcnt(0)
    global_store_dwordx4 v3, v[8:11], s[20:21]
    """)
    stamp(a, cfg, 0, 6)
    stamp_out(a, cfg, 0, 20)
    a("s_endpgm")
    a(f"""
    K1_AUX:
    s_cmp_lg_u32 s3, 13
    s_cbranch_scc1 K1_END
    s_cmp_ge_u32 s2, 96
    s_cbranch_scc1 K1_END
    s_bfe_u32 s22, s2, 0x30002
    s_and_b32 s23, s2, 3
    v_and_b32 v2, 15, v1
    v_lshrrev_b32 v3, 4, v1
    s_waitcnt lgkmcnt(0)
    s_mov_b32 s28, s18
    s_mov_b32 s29, s19
    s_mov_b32 s30, 65536
    s_mov_b32 s31, 0x20000
    s_movk_i32 s25, 256
    s_cmp_ge_u32 s2, 64
    s_cbranch_scc1 K1_M2
    s_lshl_b32 s24, s23, 13
    v_lshlrev_b32 v3, 11, v3
    s_cmp_ge_u32 s2, 32
    s_cbranch_scc1 K1_M1
    s_mov_b32 s28, s14
    s_mov_b32 s29, s15
    s_lshr_b32 s26, s22, 2
    s_lshl_b32 s26, s26, 7
    s_add_u32 s24, s24, s26
    s_and_b32 s26, s22, 2
    s_lshl_b32 s26, s26, 3
    s_add_u32 s24, s24, s26
    s_and_b32 s26, s22, 1
    s_lshl_b32 s26, s26, 1
    s_add_u32 s24, s24, s26
    v_and_b32 v4, 3, v2
    v_and_b32 v2, 12, v2
    v_lshl_or_b32 v2, v4, 5, v2
    v_add_u32 v2, v2, v3
    s_branch K1_WLD
    K1_M2:
    s_lshr_b32 s24, s23, 1
    s_lshl_b32 s24, s24, 3
    s_and_b32 s26, s23, 1
    s_add_u32 s24, s24, s26
    s_add_u32 s24, s24, 128
    s_lshl_b32 s24, s24, 8
    s_movk_i32 s25, 4096
    v_lshlrev_b32 v3, 9, v3
    K1_M1:
    s_lshl_b32 s26, s22, 5
    s_add_u32 s24, s24, s26
    v_lshl_add_u32 v2, v2, 1, v3
    K1_WLD:
    """)
    for j in range(8):
        a(f"buffer_load_ushort v{8 + j}, v2, s[28:31], s24 offen")
        if j < 7:
            a("s_add_u32 s24, s24, s25")
    a(f"""
    s_lshl_b32 s22, s2, 10
    s_add_u32 s22, s22, {WS_WF}
    v_lshl_add_u32 v3, v1, 4, s22
    s_waitcnt vmcnt(0)
    v_lshl_or_b32 v4, v9, 16, v8
    v_lshl_or_b32 v5, v11, 16, v10
    v_lshl_or_b32 v6, v13, 16, v12
    v_lshl_or_b32 v7, v15, 16, v14
    global_store_dwordx4 v3, v[4:7], s[20:21]
    s_endpgm
    """)
    WL, HL = 0, 32768
    a(f"""
    K1_Q:
    s_sub_u32 s22, s2, 125
    s_mul_i32 s22, s22, 96
    v_lshrrev_b32 v2, 4, v1
    v_and_b32 v3, 15, v1
    s_and_b32 s23, s3, 1
    s_lshl_b32 s24, s23, 2
    v_or_b32 v4, s24, v2
    v_lshlrev_b32 v4, 1, v4
    v_xor_b32 v4, v4, v3
    v_lshlrev_b32 v4, 4, v4
    v_lshl_add_u32 v4, v2, 8, v4
    s_lshl_b32 s24, s3, 11
    s_add_u32 s25, s24, 32768
    s_mov_b32 m0, s24
    v_lshrrev_b32 v5, 2, v1
    v_lshrrev_b32 v6, 5, v1
    v_lshlrev_b32 v6, 1, v6
    v_and_b32 v7, 3, v1
    v_xor_b32 v6, v6, v7
    v_lshlrev_b32 v6, 4, v6
    v_lshl_add_u32 v5, v5, 8, v6
    s_waitcnt lgkmcnt(0)
    """)
    srd(a, 28, 14, 258 * 256)
    a(f"""
    buffer_load_dwordx4 v4, s[28:31], s25 offen lds
    buffer_load_dwordx4 v4, s[28:31], s25 offen offset:1024 lds
    s_cmp_ge_u32 s3, 12
    s_cbranch_scc1 K1_QW
    """)
    srd(a, 32, 4, N * 256)
    a(f"""
    s_lshr_b32 s26, s3, 1
    s_lshl_b32 s26, s26, 4
    s_add_u32 s26, s26, s22
    s_lshl_b32 s26, s26, 8
    s_lshl_b32 s27, s23, 7
    s_add_u32 s26, s26, s27
    s_add_u32 s27, s24, {HL}
    s_mov_b32 m0, s27
    s_add_u32 s36, s26, 64
    buffer_load_dwordx4 v5, s[32:35], s26 offen lds
    s_add_u32 s27, s27, 1024
    s_mov_b32 m0, s27
    s_nop 0
    buffer_load_dwordx4 v5, s[32:35], s36 offen lds
    K1_QW:
    """)
    stamp(a, cfg, 0, 0, True)
    stamp(a, cfg, 0, 2)
    a(f"""
    v_lshrrev_b32 v6, 3, v3
    v_lshlrev_b32 v6, 1, v6
    v_xor_b32 v6, v6, v2
    v_lshlrev_b32 v6, 4, v6
    v_lshl_add_u32 v6, v3, 6, v6
    s_lshr_b32 s27, s3, 1
    s_lshl_b32 s27, s27, 12
    v_add_u32 v6, s27, v6
    v_bfe_u32 v8, v1, 2, 2
    v_and_b32 v9, 1, v2
    v_xor_b32 v9, s23, v9
    v_lshl_or_b32 v9, v9, 2, v8
    v_lshlrev_b32 v9, 5, v9
    v_lshl_or_b32 v9, v7, 3, v9
    v_lshl_add_u32 v8, v2, 3, v8
    v_lshl_add_u32 v8, v8, 8, v9
    v_xor_b32 v9, 32, v8
    v_xor_b32 v10, 64, v8
    v_xor_b32 v11, 0x60, v8
    v_lshlrev_b32 v12, 3, v3
    v_lshl_add_u32 v12, v2, 10, v12
    v_add_u32 v12, s26, v12
    s_waitcnt vmcnt(0)
    s_barrier
    s_cmp_ge_u32 s3, 12
    s_cbranch_scc1 K1_END
    """)
    stamp(a, cfg, 0, 3)
    AF, BF, AC = 16, 32, 96
    for ks in range(4):
        a(f"ds_read_b128 v[{AF + 4 * ks}:{AF + 4 * ks + 3}], v6 offset:{HL + 1024 * ks}")
        for tt in range(4):
            for i in range(2):
                d = BF + 16 * ks + 4 * tt + 2 * i
                a(f"ds_read_b64_tr_b16 v[{d}:{d + 1}], v{8 + tt} offset:{WL + 8192 * ks + 1024 * i}")
        if ks >= 1:
            k = ks - 1
            a("s_waitcnt lgkmcnt(9)")
            for tt in range(4):
                c = "0" if k == 0 else vr(AC + 4 * tt, 4)
                a(f"v_mfma_f32_16x16x32_bf16 {vr(AC + 4 * tt, 4)}, {vr(AF + 4 * k, 4)}, {vr(BF + 16 * k + 4 * tt, 4)}, {c}")
    a(f"s_mov_b32 s24, {f32(-LOG2E)}")
    for tt in range(4):
        a(f"s_waitcnt lgkmcnt({6 - 2 * tt})")
        a(f"v_mfma_f32_16x16x32_bf16 {vr(AC + 4 * tt, 4)}, {vr(AF + 12, 4)}, {vr(BF + 48 + 4 * tt, 4)}, {vr(AC + 4 * tt, 4)}")
    a("s_nop 1")
    for tt in range(4):
        for k in (0, 2):
            a(f"v_pk_mul_f32 {vr(AC + 4 * tt + k, 2)}, {vr(AC + 4 * tt + k, 2)}, s[24:25] op_sel_hi:[1,0]")
    for r in range(4):
        a(f"""
        v_cvt_pk_bf16_f32 v{16 + 2 * r}, v{AC + r}, v{AC + 4 + r}
        v_cvt_pk_bf16_f32 v{17 + 2 * r}, v{AC + 8 + r}, v{AC + 12 + r}
        global_store_dwordx2 v12, v[{16 + 2 * r}:{17 + 2 * r}], s[20:21] offset:{256 * r}
        """)
    stamp(a, cfg, 0, 4)
    stamp_out(a, cfg, 0, 20)
    a("K1_END:\ns_endpgm")
    return a.text()


def gen_k2(cfg):
    a = Asm()
    NSLOT = cfg.get("nslot", 2)
    CAP = 1792
    CNT, OH, OWN, WX, WD = 0, 256, 1280, 2304, 2816
    LIST = 3392
    HT = LIST + (CAP + 48) * 16
    ACC = HT + 16384
    AST = 576
    SIDE = 52
    PT = ACC + 68 * AST
    NFT = WD + 512
    RING = PT + 64 * 288
    OT = RING
    assert RING + NSLOT * 16384 <= 163840
    sWV, sB, sNB = 3, 48, 49
    sW, sQ, sH, sP, sO = 24, 28, 32, 36, 40
    sDONE, sR, sTOT, sMORE = 50, 51, 52, 53
    sNT, sTEND, sWEND, sN0, sNW, sEW, sLAST = 54, 55, 56, 57, 58, 59, 60
    sC000, sWSTEP, s128, s192 = 61, 62, 63, 64
    s256 = 66
    sNL2E = 68
    sM0 = 70
    sQN, sT0, sNV = 74, 75, 76
    sA, sB2, sC = 77, 78, 79
    sNF, sNL, sSLOW = 44, 45, 46
    sG3 = 80
    vL = 0
    vRing, vLc, vMul, vIncl = 1, 2, 3, 4
    vVoff = 5
    vBX, vBS = 6, 7
    vIX, vIS = 8, 9
    vDa, vEa = 10, 11
    vXa, vSa, vD0, vDE, vDV = 12, 13, 14, 15, 16
    F, T, Z, M, S, A, B, AC = 24, 28, 32, 40, 56, 58, 72, 96
    cfg = dict(cfg, dv=20)

    a(f"""
    s_load_dwordx16 s[4:19], s[0:1], 0
    s_load_dwordx2 s[20:21], s[0:1], 64
    s_load_dwordx2 s[22:23], s[0:1], 80
    v_lshrrev_b32 v1, 6, v0
    s_cmp_ge_u32 s2, 256
    s_cbranch_scc1 K2_END
    v_readfirstlane_b32 s{sWV}, v1
    s_and_b32 s{sB}, s2, 7
    s_lshl_b32 s{sB}, s{sB}, 5
    s_lshr_b32 s{sA}, s2, 3
    s_add_u32 s{sB}, s{sB}, s{sA}
    s_mul_i32 s{sNB}, s{sB}, {NB}
    v_lshrrev_b32 v2, 3, v0
    v_lshlrev_b32 v3, 10, v2
    s_lshl_b32 s{sA}, s{sB}, 2
    s_add_u32 s{sA}, s{sA}, {WS_TAB}
    s_mov_b32 s{sW + 2}, {WS_END}
    s_mov_b32 s{sW + 3}, 0x20000
    v_lshlrev_b32 v22, 4, v0
    v_and_b32 v0, 63, v0
    v_lshrrev_b32 v5, 5, v0
    v_lshlrev_b32 v5, 1, v5
    v_and_b32 v6, 3, v0
    v_xor_b32 v5, v5, v6
    v_lshlrev_b32 v{vLc + 21}, 4, {'v6' if cfg.get('noswz') else 'v5'}
    v_lshrrev_b32 v6, 2, v0
    v_lshl_add_u32 v6, v6, 8, v{vLc + 21}
    s_lshl_b32 s{sB2}, s{sWV}, 10
    s_add_u32 s{sB2}, s{sB2}, {HT}
    s_mov_b32 m0, s{sB2}
    s_lshl_b32 s{sC}, s{sNB}, 8
    s_waitcnt lgkmcnt(0)
    s_mov_b32 s{sW}, s22
    s_mov_b32 s{sW + 1}, s23
    buffer_load_dword v4, v3, s[{sW}:{sW + 3}], s{sA} offen
    s_add_u32 s{sH}, s4, s{sC}
    s_addc_u32 s{sH + 1}, s5, 0
    s_sub_u32 s{sH + 2}, {N * 256}, s{sC}
    s_mov_b32 s{sH + 3}, 0x20000
    s_lshr_b32 s{sA}, s{sWV}, 2
    s_lshl_b32 s{sA}, s{sA}, 12
    s_and_b32 s{sB2}, s{sWV}, 3
    s_lshl_b32 s{sB2}, s{sB2}, 6
    s_add_u32 s{sA}, s{sA}, s{sB2}
    buffer_load_dwordx4 v6, s[{sH}:{sH + 3}], s{sA} offen lds
    """)
    stamp(a, cfg, 1, 0, True)
    stamp(a, cfg, 1, 2)
    srd(a, sP, 6, N * 6)
    WF_R = 32
    a(f"""
    v_lshlrev_b32 v7, 4, v0
    s_cmp_ge_u32 s{sWV}, 8
    s_cbranch_scc1 K2_SMALL
    s_lshl_b32 s{sA}, s{sWV}, 12
    s_add_u32 s{sA}, s{sA}, {WS_WF}
    """)
    for ks in range(4):
        a(f"buffer_load_dwordx4 {vr(WF_R + 4 * ks, 4)}, v7, s[{sW}:{sW + 3}], s{sA} offen offset:{1024 * ks}")
    a(f"""
    s_branch K2_INIT
    K2_SMALL:
    s_cmp_ge_u32 s{sWV}, 14
    s_cbranch_scc1 K2_SM2
    s_and_b32 s{sA}, s{sWV}, 1
    s_lshl_b32 s{sA}, s{sA}, 7
    v_and_b32 v32, 3, v0
    v_lshlrev_b32 v32, 5, v32
    v_and_b32 v33, 12, v0
    v_or_b32 v32, v32, v33
    v_and_b32 v33, 32, v0
    v_lshrrev_b32 v33, 1, v33
    v_or_b32 v32, v32, v33
    v_and_b32 v33, 16, v0
    v_lshrrev_b32 v33, 3, v33
    v_or3_b32 v32, v32, v33, s{sA}
    s_add_u32 s44, s14, 65536
    s_addc_u32 s45, s15, 0
    s_and_b32 s{sB2}, s{sWV}, 2
    s_lshl_b32 s{sB2}, s{sB2}, 7
    v_add_u32 v32, s{sB2}, v32
    s_cmp_ge_u32 s{sWV}, 12
    s_cselect_b32 s44, s16, s44
    s_cselect_b32 s45, s17, s45
    global_load_ushort v34, v32, s[44:45]
    s_branch K2_INIT
    K2_SM2:
    v_add_u32 v32, s{sNB}, v0
    v_mul_u32_u24 v32, 6, v32
    v_and_b32 v33, -4, v32
    buffer_load_dwordx2 v[34:35], v33, s[{sP}:{sP + 3}], 0 offen
    K2_INIT:
    v_mov_b32 v8, 0
    v_mov_b32 v9, 0
    v_mov_b32 v10, 0
    v_mov_b32 v11, 0
    ds_write_b128 v22, v[8:11] offset:{ACC}
    v_add_u32 v22, 16384, v22
    ds_write_b128 v22, v[8:11] offset:{ACC}
    s_cmp_lg_u32 s{sWV}, 15
    s_cbranch_scc1 K2_INIT2
    v_lshlrev_b32 v12, 2, v0
    ds_write_b32 v12, v8 offset:{CNT}
    v_cmp_eq_u32 vcc, 32, v0
    v_mov_b32 v12, 0x3f80
    v_mov_b32 v13, 0x3f800000
    v_cndmask_b32 v8, 0, v12, vcc
    v_cndmask_b32 v10, 0, v13, vcc
    v_cmp_eq_u32 vcc, 33, v0
    s_nop 1
    v_cndmask_b32 v9, 0, v12, vcc
    v_cndmask_b32 v11, 0, v13, vcc
    ds_write_b128 v7, v[8:11] offset:{OH}
    K2_INIT2:
    s_mov_b32 s{sDONE}, 0
    s_mov_b32 s{sR}, 32
    s_mov_b32 s{sC000}, 0xc000
    s_mov_b32 s{sWSTEP}, 0xc0000
    s_movk_i32 s{s128}, 128
    s_movk_i32 s{s192}, 192
    s_movk_i32 s{s256}, 256
    s_movk_i32 s{s256 + 1}, 256
    s_mov_b32 s{sNL2E}, {f32(-LOG2E)}
    s_mov_b32 s{sG3}, 0
    s_mov_b32 s{sG3 + 1}, 0xffff0000
    s_mov_b32 s{sQN}, {0 if cfg.get('nodma') else QBYTES}
    s_mul_i32 s{sM0}, s{sWV}, {NSLOT * 1024}
    s_add_u32 s{sM0}, s{sM0}, {RING}
    """)
    for i in range(1, NSLOT):
        a(f"s_add_u32 s{sM0 + i}, s{sM0}, {1024 * i}")
    srd(a, sQ, 22, QBYTES)

    def recload(first):
        a(f"""
        v_and_b32 v6, 7, v0
        v_lshlrev_b32 v6, 1, v6
        s_movk_i32 s{sA}, 3200
        v_mad_u32_u24 v3, v2, s{sA}, v6
        v_add_u32 v3, s{sDONE}, v3
        """)
        if first:
            a(f"""
            s_cmp_ge_u32 s{sWV}, 8
            s_cbranch_scc1 K2_W1
            s_waitcnt vmcnt(5)
            s_branch K2_W2
            K2_W1:
            s_waitcnt vmcnt(2)
            K2_W2:
            """)
        else:
            a("s_waitcnt vmcnt(0)")
        a(f"""
        v_and_b32 v12, 0xffff, v4
        v_add_lshl_u32 v3, v3, v12, 3
        s_mov_b32 s{sA}, {WS_REC}
        buffer_load_dwordx4 v[8:11], v3, s[{sW}:{sW + 3}], s{sA} offen
        v_lshrrev_b32 v5, 16, v4
        v_subrev_u32 v5, s{sDONE}, v5
        v_add_u32 v12, 16, v6
        v_cmp_lt_i32 vcc, v12, v5
        v_bfrev_b32 v12, 1
        s_nop 0
        v_cndmask_b32 v3, v12, v3, vcc
        buffer_load_dwordx4 v[12:15], v3, s[{sW}:{sW + 3}], s{sA} offen offset:128
        """)

    recload(True)
    stamp(a, cfg, 1, 3)
    a(f"""
    s_waitcnt vmcnt(2) lgkmcnt(0)
    s_barrier
    s_cmp_ge_u32 s{sWV}, 8
    s_cbranch_scc1 K2_SMALLW
    """)
    HF, PA = 48, 112
    a(f"""
    v_and_b32 v16, 15, v0
    v_lshrrev_b32 v17, 4, v0
    v_lshrrev_b32 v18, 3, v16
    v_lshlrev_b32 v18, 1, v18
    v_xor_b32 v18, v18, v17
    v_lshlrev_b32 v18, 4, v18
    v_lshl_add_u32 v18, v16, 6, v18
    """)
    for i in range(16):
        a(f"ds_read_b128 {vr(HF + 4 * i, 4)}, v18 offset:{HT + 1024 * i}")
        if i == 11:
            a(f"""
            s_movk_i32 s{sA}, 288
            s_lshl_b32 s{sB2}, s{sWV}, 5
            s_add_u32 s{sB2}, s{sB2}, {PT}
            v_lshl_add_u32 v17, v17, 3, s{sB2}
            v_mad_u32_u24 v17, v16, s{sA}, v17
            """)
    for rt in range(4):
        for ks in range(4):
            i = 4 * rt + ks
            a(f"s_waitcnt lgkmcnt({15 - i})")
            c = "0" if ks == 0 else vr(PA + 4 * rt, 4)
            a(f"v_mfma_f32_16x16x32_bf16 {vr(PA + 4 * rt, 4)}, {vr(WF_R + 4 * ks, 4)}, {vr(HF + 4 * i, 4)}, {c}")
    for rt in range(4):
        p = PA + 4 * rt
        a(f"""
        v_pk_mul_f32 {vr(p, 2)}, {vr(p, 2)}, s[{sNL2E}:{sNL2E + 1}] op_sel_hi:[1,0]
        v_pk_mul_f32 {vr(p + 2, 2)}, {vr(p + 2, 2)}, s[{sNL2E}:{sNL2E + 1}] op_sel_hi:[1,0]
        v_cvt_pk_bf16_f32 v{p}, v{p}, v{p + 1}
        v_cvt_pk_bf16_f32 v{p + 1}, v{p + 2}, v{p + 3}
        ds_write_b64 v17, {vr(p, 2)} offset:{rt * 16 * 288}
        """)
    a(f"""
    s_branch K2_COUNT
    K2_SMALLW:
    s_cmp_ge_u32 s{sWV}, 14
    s_cbranch_scc1 K2_SW3
    s_cmp_ge_u32 s{sWV}, 12
    s_cbranch_scc1 K2_SW2
    s_and_b32 s{sA}, s{sWV}, 3
    s_lshl_b32 s{sA}, s{sA}, 7
    v_lshl_add_u32 v32, v0, 1, s{sA}
    ds_write_b16 v32, v34 offset:{WD}
    s_branch K2_COUNT
    K2_SW2:
    s_and_b32 s{sA}, s{sWV}, 1
    s_lshl_b32 s{sA}, s{sA}, 4
    v_and_b32 v32, 15, v0
    v_lshl_add_u32 v32, v32, 5, s{sA}
    v_lshrrev_b32 v33, 4, v0
    v_lshl_add_u32 v32, v33, 2, v32
    v_lshlrev_b32 v34, 16, v34
    v_mul_f32 v34, {f32(-LN2)}, v34
    ds_write_b32 v32, v34 offset:{WX}
    s_branch K2_COUNT
    K2_SW3:
    v_and_b32 v32, 2, v32
    v_lshlrev_b32 v32, 3, v32
    v_lshrrev_b64 v[34:35], v32, v[34:35]
    v_lshlrev_b32 v36, 16, v34
    v_and_b32 v37, 0xffff0000, v34
    v_lshlrev_b32 v38, 16, v35
    v_mov_b32 v39, 0
    ds_write_b128 v7, v[36:39] offset:{OWN}
    """)
    a(f"""
    K2_COUNT:
    v_min_i32 v16, s{sR}, v5
    v_cmp_lt_i32 vcc, s{sR}, v5
    v_mov_b32 v17, {OOB}
    v_mov_b32 v18, 252
    v_mov_b32 v19, 1
    v_cndmask_b32 v18, v17, v18, vcc
    ds_write_b32 v18, v19 offset:{CNT}
    v_sub_u32 v16, v16, v6
    s_waitcnt vmcnt(0)
    """)
    stamp(a, cfg, 1, 4)
    lims = (0, 1, 16, 17)
    for j in range(4):
        a(f"""
        v_cmp_lt_i32 s[{82 + 2 * j}:{83 + 2 * j}], {lims[j]}, v16
        v_lshrrev_b32 v{24 + j}, 16, v{8 + 2 * j}
        """)
    for j in range(4):
        a(f"""
        v_cndmask_b32 v{24 + j}, v17, v{24 + j}, s[{82 + 2 * j}:{83 + 2 * j}]
        ds_add_rtn_u32 v{28 + j}, v{24 + j}, v19 offset:{CNT}
        """)
    a(f"""
    v_lshlrev_b32 v18, 2, v0
    s_waitcnt lgkmcnt(0)
    s_barrier
    ds_read_b32 v20, v18 offset:{CNT}
    s_waitcnt lgkmcnt(0)
    v_mov_b32 v{vIncl}, v20
    v_readlane_b32 s{sMORE}, v20, 63
    """)
    scan64(a, vIncl)
    a(f"""
    v_sub_u32 v20, v{vIncl}, v20
    v_readlane_b32 s{sTOT}, v{vIncl}, 62
    """)
    for j in range(4):
        a(f"ds_bpermute_b32 v{32 + j}, v{24 + j}, v20")
    a(f"""
    s_cmp_gt_u32 s{sTOT}, {CAP}
    s_cbranch_scc1 K2_SHRINK
    s_add_u32 s{sA}, s{sTOT}, 15
    s_lshr_b32 s{sA}, s{sA}, 4
    s_lshr_b32 s{sB2}, s{sA}, 4
    s_and_b32 s{sA}, s{sA}, 15
    s_mul_i32 s{sT0}, s{sB2}, s{sWV}
    s_min_u32 s{sC}, s{sWV}, s{sA}
    s_add_u32 s{sT0}, s{sT0}, s{sC}
    s_cmp_lt_u32 s{sWV}, s{sA}
    s_addc_u32 s{sNT}, s{sB2}, 0
    """)
    for j in range(4):
        a(f"""
        s_waitcnt lgkmcnt(3)
        v_add_lshl_u32 v{32 + j}, v{32 + j}, v{28 + j}, 4
        v_cndmask_b32 v{32 + j}, v17, v{32 + j}, s[{82 + 2 * j}:{83 + 2 * j}]
        ds_write_b64 v{32 + j}, v[{8 + 2 * j}:{9 + 2 * j}] offset:{LIST}
        """)
    a(f"""
    s_cmp_lg_u32 s{sWV}, 15
    s_cbranch_scc1 K2_NOPAD
    v_add_lshl_u32 v18, v0, s{sTOT}, 4
    v_cndmask_b32 v18, v18, v17, s[{sG3}:{sG3 + 1}]
    v_mov_b32 v20, {252 << 16}
    v_mov_b32 v21, 0
    ds_write_b64 v18, v[20:21] offset:{LIST}
    K2_NOPAD:
    """)
    a(f"""
    v_and_b32 v24, 15, v0
    v_lshrrev_b32 v25, 4, v0
    v_lshrrev_b32 v26, 2, v0
    v_and_b32 v27, 3, v0
    v_lshrrev_b32 v18, 3, v24
    v_lshlrev_b32 v18, 1, v18
    v_xor_b32 v18, v18, v25
    v_lshl_add_u32 v18, v18, 4, s{sM0}
    v_lshl_add_u32 v{vRing}, v24, 6, v18
    v_mov_b32 v{vLc}, v{vLc + 21}
    v_cndmask_b32 v{vMul}, 2, 0, s[{sG3}:{sG3 + 1}]
    v_mov_b32 v{vIS}, 256
    v_cndmask_b32 v{vIX}, 0, v{vIS}, s[{sG3}:{sG3 + 1}]
    v_lshrrev_b32 v18, 2, v24
    v_cmp_eq_u32 vcc, v18, v25
    v_mov_b32 v18, 0x3f80
    v_mov_b32 v19, 0
    v_cndmask_b32 v18, 0, v18, vcc
    v_lshlrev_b32 v20, 4, v27
    v_lshlrev_b64 v[{B + 2}:{B + 3}], v20, v[18:19]
    """)
    for gi in range(1, 4):
        a(f"v_mov_b32 v{B + 6 * gi + 2}, v{B + 2}\nv_mov_b32 v{B + 6 * gi + 3}, v{B + 3}")
    a(f"""
    s_lshl_b32 s{sTEND}, s{sT0}, 4
    s_add_u32 s{sA}, s{sT0}, s{sNT}
    s_lshl_b32 s{sA}, s{sA}, 4
    s_min_u32 s{sWEND}, s{sA}, s{sTOT}
    s_lshl_b32 s{sA}, s{sT0}, 8
    s_add_u32 s{sA}, s{sA}, {LIST}
    v_lshl_add_u32 v{vDa}, v26, 4, s{sA}
    v_lshl_add_u32 v{vEa}, v24, 4, s{sA}
    v_lshl_add_u32 v28, v0, 4, s{sA}
    s_lshl_b32 s{sB2}, s{sNT}, 4
    v_cmp_gt_u32 vcc, s{sB2}, v0
    v_add_u32 v29, 64, v0
    v_cmp_gt_u32 s[82:83], s{sB2}, v29
    v_add_u32 v29, 1024, v28
    v_cndmask_b32 v28, v17, v28, vcc
    v_cndmask_b32 v29, v17, v29, s[82:83]
    s_mov_b32 s{sLAST}, 0
    s_or_b32 s{sSLOW}, s{sMORE}, s{sDONE}
    s_movk_i32 s{sNF}, 255
    v_cmp_gt_u32 vcc, s{sWEND}, v{vIncl}
    s_bcnt1_i32_b64 s{sNL}, vcc
    s_waitcnt lgkmcnt(0)
    s_barrier
    """)
    stamp(a, cfg, 1, 5)
    a(f"""
    s_cmp_eq_u32 s{sNT}, 0
    s_cbranch_scc1 K2_ROUNDEND
    """)
    soff = ["0", "64", f"s{s128}", f"s{s192}"]

    def dma(kc, slot=None):
        slot = kc % NSLOT
        return [f"s_mov_b32 m0, s{sM0 + slot}", "s_nop 0",
                f"buffer_load_dwordx4 v{vVoff}, s[{sQ}:{sQ + 3}], {soff[kc]} offen lds ; @w:ring{slot}"]

    def rd(kc):
        slot = kc % NSLOT
        d = A + 2 + 6 * (kc & 1)
        return f"ds_read_b128 {vr(d, 4)}, v{vRing} offset:{1024 * slot} ; @r:ring{slot}"

    def first_dmas():
        a(f"v_mad_u32_u16 v{vVoff}, v{vD0}, s{s256}, v{vLc}")
        a(f"s_mov_b32 s{sQ + 2}, s{sQN}")
        for kc in range(NSLOT):
            a("\n".join(dma(kc)))

    def xfrags():
        a(f"""
        v_lshrrev_b32 v18, 2, v{vL}
        v_and_b32 v19, 3, v{vL}
        v_add_u32 v20, s{sN0}, v18
        s_movk_i32 s{sA}, 288
        v_mul_u32_u24 v20, s{sA}, v20
        v_add_u32 v20, {PT}, v20
        v_lshlrev_b32 v21, 8, v18
        v_add_u32 v21, {WD - 14 * 256}, v21
        v_cndmask_b32 v20, v20, v21, s[{sG3}:{sG3 + 1}]
        v_lshrrev_b32 v21, 3, v{vL}
        v_cmp_eq_u32 vcc, 6, v21
        v_mov_b32 v21, {OOB}
        v_lshl_add_u32 v20, v19, 3, v20
        v_cndmask_b32 v20, v20, v21, vcc
        """)
        xpos = {0: B, 3: B + 4, 4: B + 6, 7: B + 10, 2: B + 12, 1: B + 16, 6: B + 18, 5: B + 22}
        for u in range(8):
            a(f"ds_read_b64_tr_b16 {vr(xpos[u], 2)}, v20 offset:{32 * u}")
        a(f"""
        s_mov_b32 s{sNW}, s{sN0}
        s_add_u32 s{sA}, s{sN0}, 3
        v_readlane_b32 s{sEW}, v{vIncl}, s{sA}
        v_add_u32 v19, s{sN0}, v19
        s_mov_b32 s{sA}, 0x30000
        v_mul_u32_u24 v19, s{sA}, v19
        v_sub_u32 v{vBS}, v{vDa}, v19
        v_add_u32 v{vBS}, 8, v{vBS}
        s_lshl_b32 s{sA}, s{sN0}, 3
        s_sub_u32 s{sA}, {OH + 512}, s{sA}
        v_lshrrev_b32 v18, 4, v{vL}
        v_lshlrev_b32 v18, 5, v18
        v_sub_u32 v18, s{sA}, v18
        v_cndmask_b32 v{vBX}, v18, v{vEa}, s[{sG3}:{sG3 + 1}]
        s_cmp_ge_u32 s{sEW}, s{sWEND}
        s_cselect_b32 s{sEW}, 0x7fffffff, s{sEW}
        """)

    G = 32
    a(f"""
    ds_read_b64 v[{G}:{G + 1}], v28
    ds_read_b64 v[{G + 4}:{G + 5}], v29
    ds_read_b32 v{vD0}, v{vDa}
    ds_read_b32 v{vDE}, v{vEa}
    """)
    if NSLOT == 4:
        a(f"ds_read_b32 v{vDV}, v{vDa} offset:256")
    nl = 3 if NSLOT == 4 else 2
    for p in range(2):
        r = G + 4 * p
        a(f"""
        s_waitcnt lgkmcnt({nl + 1})
        v_mad_u32_u16 v{G + 8 + p}, v{r}, 6, 0
        v_and_b32 v{G + 10 + p}, -4, v{G + 8 + p}
        buffer_load_dwordx2 v[{G + 12 + 2 * p}:{G + 13 + 2 * p}], v{G + 10 + p}, s[{sP}:{sP + 3}], 0 offen
        v_mad_u32_u16 v{G + 10 + p}, v{r}, 4, 0 op_sel:[1,0,0,0]
        ds_read_b96 v[{G + 16 + 4 * p}:{G + 18 + 4 * p}], v{G + 10 + p} offset:{OWN}
        """)
    a(f"""
    s_waitcnt lgkmcnt(2)
    v_readfirstlane_b32 s{sN0}, v{vD0}
    """)
    first_dmas()
    a(f"""
    s_lshr_b32 s{sN0}, s{sN0}, 18
    s_cmp_eq_u32 s{sSLOW}, 0
    s_cselect_b32 s{sNF}, s{sN0}, s{sNF}
    """)
    xfrags()
    for p in range(2):
        r, ps, po, sh = G + 4 * p, G + 12 + 2 * p, G + 16 + 4 * p, G + 8 + p
        a(f"""
        v_and_b32 v{sh}, 2, v{sh}
        v_lshlrev_b32 v{sh}, 3, v{sh}
        s_waitcnt vmcnt({NSLOT + 1 - p}) lgkmcnt(8)
        v_lshrrev_b64 v[{ps}:{ps + 1}], v{sh}, v[{ps}:{ps + 1}]
        v_lshlrev_b32 v18, 16, v{ps}
        v_and_b32 v19, 0xffff0000, v{ps}
        v_lshlrev_b32 v20, 16, v{ps + 1}
        v_sub_f32 v18, v{po}, v18
        v_sub_f32 v19, v{po + 1}, v19
        v_sub_f32 v20, v{po + 2}, v20
        v_cvt_pk_bf16_f32 v{r + 2}, 1.0, v18
        v_cvt_pk_bf16_f32 v{r + 3}, v19, v20
        v_and_b32 v18, 0xffff0000, v{r + 2}
        v_lshlrev_b32 v19, 16, v{r + 3}
        v_and_b32 v20, 0xffff0000, v{r + 3}
        v_mul_f32 v18, v18, v18
        v_fmac_f32 v18, v19, v19
        v_fmac_f32 v18, v20, v20
        v_mul_f32 v18, s{sNL2E}, v18
        v_mul_f32 v19, s{sNL2E}, v{r + 1}
        v_cvt_pk_bf16_f32 v{r + 1}, v18, v19
        ds_write_b128 v{28 + p}, v[{r}:{r + 3}]
        """)
    a("K2_COMMON:")
    x0, x1, x2 = A, A + 6, A + 12
    a(f"""
    v_mad_u32_u16 v{vXa}, v{vDE}, v{vMul}, v{vBX} op_sel:[1,0,0,0]
    ds_read_b64 {vr(x0, 2)}, v{vXa}
    ds_read_b64 {vr(x1, 2)}, v{vXa}
    ds_read_b64 {vr(x2, 2)}, v{vXa}
    v_mov_b32 v{S}, 0
    v_mov_b32 v{S + 1}, 0
    v_add_u32 v{vBX}, v{vBX}, v{vIX}
    v_lshl_add_u64 v[{vDa}:{vEa}], v[{vDa}:{vEa}], 0, s[{s256}:{s256 + 1}]
    s_waitcnt vmcnt({NSLOT - 1})
    {rd(0)}
    s_waitcnt vmcnt({NSLOT - 2})
    {rd(1)}
    """)
    for u in range(8):
        a(f"v_mfma_f32_16x16x16_bf16 {vr(AC + 4 * u, 4)}, {vr(S, 2)}, {vr(S, 2)}, 0")
    if NSLOT == 4:
        a(f"""
        v_mad_u32_u16 v{vVoff}, v{vDV}, s{s256}, v{vLc}
        s_cmp_le_u32 s{sNT}, 1
        s_cselect_b32 s{sQ + 2}, 0, s{sQN}
        """)
    a("s_waitcnt lgkmcnt(0)")
    for kc in ((2, 3) if NSLOT == 2 else (0, 1)):
        a("\n".join(dma(kc)))
    ORD = [0, 1, 3, 2, 4, 5, 7, 6]
    Aop = {0: A, 1: A + 4, 3: A + 10, 2: A + 6}
    Bop = {0: B, 3: B + 2, 4: B + 6, 7: B + 8, 2: B + 12, 1: B + 14, 6: B + 18, 5: B + 20}

    def Kmf(s):
        u = ORD[s % 8]
        z = Z + 4 * (s & 1)
        return f"v_mfma_f32_16x16x32_bf16 {vr(z, 4)}, {vr(Aop[u & 3], 4)}, {vr(Bop[u], 4)}, 0"

    def Cmf(s, zero=False):
        u = ORD[s]
        c = "0" if zero else vr(AC + 4 * u, 4)
        return f"v_mfma_f32_16x16x16_bf16 {vr(AC + 4 * u, 4)}, {vr(S, 2)}, {vr(M + 2 * u, 2)}, {c}"

    a(Kmf(0))
    a("s_nop 5")
    stamp(a, cfg, 1, 6)

    seq = []
    I = lambda t, tag=None: seq.append(("i", t, tag))
    NEED = lambda *tags: seq.append(("need", tags, None))
    for s in range(8):
        u = ORD[s]
        z = Z + 4 * (s & 1)
        pre, mid, post = [], [], []
        if s == 0:
            NEED("x1")
        if s == 1:
            NEED("x2")
        if s == 7:
            NEED("x0")
        I(Kmf(s + 1))
        if s == 0:
            I(f"v_mad_u32_u16 v{vSa}, v{vD0}, s{sC000}, v{vBS} op_sel:[1,0,0,0]")
            I(f"ds_read_b64_tr_b16 {vr(S, 2)}, v{vDa if cfg.get('nooob') else vSa}", "S")
            I(f"ds_read_b32 v{vD0}, v{vDa}", "d0")
            I(f"ds_read_b32 v{vDE}, v{vEa}", "dE")
            if NSLOT == 4:
                I(f"ds_read_b32 v{vDV}, v{vDa} offset:256", "dV")
            else:
                I(f"s_cmp_eq_u32 s{sNT}, 1")
                I(f"s_cselect_b32 s{sQ + 2}, 0, s{sQN}")
        if s & 1:
            kc = ((s + 3) // 2) % 4
            I(f"s_waitcnt vmcnt({NSLOT - 1})")
            I(rd(kc), f"q{kc}")
        if s == 3:
            I(f"ds_read_b64 {vr(x0, 2)}, v{vXa}", "x0")
        if s == 5:
            I(f"ds_read_b64 {vr(x2, 2)}, v{vXa}", "x2")
        if s == 6:
            I(f"ds_read_b64 {vr(x1, 2)}, v{vXa}", "x1")
        for k in range(4):
            I(f"v_exp_f32 v{T + k}, v{z + k}")
        if s == 1 and NSLOT == 2:
            NEED("d0")
            I(f"v_mad_u32_u16 v{vVoff}, v{vD0}, s{s256}, v{vLc}")
        if s == 2:
            NEED("dE")
            I(f"v_mad_u32_u16 v{vXa}, v{vDE}, v{vMul}, v{vBX} op_sel:[1,0,0,0]")
        if s == 4:
            I(f"v_lshl_add_u64 v[{vBX}:{vBS}], v[{vBX}:{vBS}], 0, v[{vIX}:{vIS}]")
            if NSLOT == 4:
                NEED("dV")
                I(f"v_mad_u32_u16 v{vVoff}, v{vDV}, s{s256}, v{vLc}")
                I(f"s_cmp_le_u32 s{sNT}, 2")
                I(f"s_cselect_b32 s{sQ + 2}, 0, s{sQN}")
        if s == 6:
            I(f"v_lshl_add_u64 v[{vDa}:{vEa}], v[{vDa}:{vEa}], 0, s[{s256}:{s256 + 1}]")
        for k in (0, 2):
            I(f"v_pk_add_f32 {vr(T + k, 2)}, {vr(T + k, 2)}, 1.0 op_sel_hi:[1,0]")
        if s >= 1:
            if s == 1:
                NEED("S")
            I(Cmf(s - 1))
        for k in range(4):
            I(f"v_rcp_f32 v{T + k}, v{T + k}")
        if s & 1:
            kc = ((s + 3) // 2) % 4
            nk = (kc + NSLOT) % 4
            d = dma(nk)
            I(d[0])
        for k in (0, 2):
            I(f"v_pk_mul_f32 {vr(T + k, 2)}, {vr(T + k, 2)}, {vr(z + k, 2)}")
        I(f"v_cvt_pk_bf16_f32 v{M + 2 * u}, v{T}, v{T + 1}")
        I(f"v_cvt_pk_bf16_f32 v{M + 2 * u + 1}, v{T + 2}, v{T + 3}")
        if s & 1:
            NEED(f"q{kc}")
            I(d[2])
        if s == 7:
            I(f"s_add_u32 s{sTEND}, s{sTEND}, 16")
            I(Cmf(7))
    n = len(seq)
    a("K2_LOOP:")
    for i, (k, t, tag) in enumerate(seq):
        if k == "i":
            a(t)
            continue
        best = None
        for tg in t:
            cnt, j = 0, i
            while True:
                j = (j - 1) % n
                if seq[j][0] == "i" and seq[j][2] == tg:
                    break
                if seq[j][0] == "i" and seq[j][1].startswith("ds_"):
                    cnt += 1
            best = cnt if best is None else min(best, cnt)
        a(f"s_waitcnt lgkmcnt({min(best, 15)})")
    a(f"""
    s_cmp_le_u32 s{sEW}, s{sTEND}
    s_cbranch_scc1 K2_FLUSH
    K2_BACK:
    s_sub_u32 s{sNT}, s{sNT}, 1
    s_cmp_lg_u32 s{sNT}, 0
    s_cbranch_scc1 K2_LOOP
    s_mov_b32 s{sLAST}, 1
    """)
    W0, W1 = T, Z + 4
    a(f"""
    K2_FLUSH:
    v_and_b32 v18, 15, v{vL}
    v_lshlrev_b32 v19, 5, v18
    ds_read_b128 {vr(W0, 4)}, v19 offset:{WX}
    ds_read_b128 {vr(W1, 4)}, v19 offset:{WX + 16}
    v_lshrrev_b32 v19, 4, v{vL}
    v_add_u32 v19, s{sNW}, v19
    s_movk_i32 s{sA}, {AST}
    v_lshlrev_b32 v18, 2, v18
    v_mad_u32_u24 v20, v19, s{sA}, v18
    s_cmp_lg_u32 s{sSLOW}, 0
    s_cbranch_scc1 K2_FSLOW
    v_cmp_eq_u32 vcc, s{sNF}, v19
    v_cmp_lt_u32 s[82:83], s{sNL}, v19
    s_add_u32 s{sB2}, s{sWV}, {SIDE}
    s_mul_i32 s{sB2}, s{sB2}, {AST}
    v_add_u32 v18, s{sB2}, v18
    v_cndmask_b32 v18, v20, v18, vcc
    v_add_u32 v18, {ACC}, v18
    v_mov_b32 v19, {OOB}
    v_cndmask_b32 v18, v18, v19, s[82:83]
    """)
    for u in range(0, 8, 2):
        a(f"ds_write2_b32 v18, v{AC + 4 * u}, v{AC + 4 * u + 4} offset0:{16 * u} offset1:{16 * u + 16}")
    a("s_waitcnt lgkmcnt(4)\nK2_FJOIN:")
    for u in range(8):
        w = (W0 if u < 4 else W1) + (u & 2)
        hi = u & 1
        for k in (0, 2):
            if u == 0:
                a(f"v_pk_mul_f32 {vr(F + k, 2)}, {vr(AC + k, 2)}, {vr(w, 2)} op_sel_hi:[1,0]")
            else:
                a(f"v_pk_fma_f32 {vr(F + k, 2)}, {vr(AC + 4 * u + k, 2)}, {vr(w, 2)}, {vr(F + k, 2)} op_sel:[0,{hi},0] op_sel_hi:[1,{hi},1]")
    a("s_nop 0")
    for sh in (1, 2, 4, 8):
        for k in (1, 2, 3):
            a(f"v_add_f32_dpp v{F + k}, v{F + k}, v{F + k} row_shr:{sh} row_mask:0xf bank_mask:0xf")
    a("s_mov_b32 exec_lo, 0x80008000\ns_mov_b32 exec_hi, 0x80008000")
    for k in (1, 2, 3):
        a(f"ds_add_f32 v20, v{F + k} offset:{ACC + 512 - 60 + 4 * (k - 1)}")
    a(f"""
    s_mov_b64 exec, -1
    s_cmp_lg_u32 s{sLAST}, 0
    s_cbranch_scc1 K2_ROUNDEND
    s_add_u32 s{sNW}, s{sNW}, 4
    s_sub_u32 s{sA}, s{sNW}, s{sN0}
    s_cmp_eq_u32 s{sA}, 12
    s_cbranch_scc1 K2_RESTART
    s_add_u32 s{sA}, s{sNW}, 3
    v_readlane_b32 s{sEW}, v{vIncl}, s{sA}
    v_subrev_u32 v{vSa}, s{sWSTEP}, v{vSa}
    v_subrev_u32 v{vBS}, s{sWSTEP}, v{vBS}
    ds_read_b64_tr_b16 {vr(S, 2)}, v{vSa}
    s_cmp_ge_u32 s{sEW}, s{sWEND}
    s_cselect_b32 s{sEW}, 0x7fffffff, s{sEW}
    s_waitcnt lgkmcnt(0)
    """)
    for s in range(8):
        a(Cmf(s, True))
    a(f"""
    s_cmp_le_u32 s{sEW}, s{sTEND}
    s_cbranch_scc1 K2_FLUSH
    s_branch K2_BACK
    K2_RESTART:
    s_mov_b32 s{sN0}, s{sNW}
    s_sub_u32 s{sTEND}, s{sTEND}, 16
    s_waitcnt vmcnt(0) lgkmcnt(0)
    v_subrev_u32 v{vDa}, 512, v{vDa}
    v_subrev_u32 v{vEa}, 512, v{vEa}
    ds_read_b32 v{vD0}, v{vDa}
    ds_read_b32 v{vDE}, v{vEa}
    """)
    if NSLOT == 4:
        a(f"ds_read_b32 v{vDV}, v{vDa} offset:256")
    a("s_waitcnt lgkmcnt(0)")
    first_dmas()
    xfrags()
    a("s_branch K2_COMMON")
    a("K2_FSLOW:")
    for u in ORD:
        a(f"ds_add_f32 v20, v{AC + 4 * u} offset:{ACC + 64 * u}")
    a("s_waitcnt lgkmcnt(8)\ns_branch K2_FJOIN")
    a(f"""
    K2_SHRINK:
    s_waitcnt lgkmcnt(0)
    s_barrier
    v_mov_b32 v19, 0
    ds_write_b32 v18, v19 offset:{CNT}
    s_mov_b32 s{sR}, 14
    s_waitcnt lgkmcnt(0)
    s_barrier
    s_branch K2_COUNT
    K2_NEXTROUND:
    s_waitcnt vmcnt(0) lgkmcnt(0)
    s_barrier
    v_lshlrev_b32 v18, 2, v0
    v_mov_b32 v19, 0
    ds_write_b32 v18, v19 offset:{CNT}
    s_add_u32 s{sDONE}, s{sDONE}, s{sR}
    s_mov_b32 s{sR}, 32
    v_mov_b32 v{vLc + 21}, v{vLc}
    v_lshrrev_b32 v2, 3, v0
    s_lshl_b32 s{sA}, s{sWV}, 3
    v_add_u32 v2, s{sA}, v2
    v_lshlrev_b32 v3, 10, v2
    s_lshl_b32 s{sA}, s{sB}, 2
    s_add_u32 s{sA}, s{sA}, {WS_TAB}
    buffer_load_dword v4, v3, s[{sW}:{sW + 3}], s{sA} offen
    """)
    recload(False)
    a(f"""
    s_waitcnt lgkmcnt(0)
    s_barrier
    s_branch K2_COUNT
    K2_ROUNDEND:
    s_cmp_lg_u32 s{sMORE}, 0
    s_cbranch_scc1 K2_NEXTROUND
    """)
    stamp(a, cfg, 1, 7)
    WT, WB, HF, GA = 16, 32, 48, 112
    MST = 272
    a(f"""
    s_sub_u32 s{sNV}, {N}, s{sNB}
    s_min_u32 s{sNV}, s{sNV}, {NB}
    v_and_b32 v1, 15, v0
    v_lshrrev_b32 v2, 4, v0
    s_lshl_b32 s{sA}, s{sWV}, 2
    v_mov_b32 v3, s{sA}
    v_mov_b32 v4, s{sNF}
    ds_write_b32 v3, v4 offset:{NFT}
    s_cmp_lt_u32 s{sWV}, 8
    s_cbranch_scc1 K2_E1
    s_waitcnt lgkmcnt(0)
    v_lshlrev_b32 v7, 4, v0
    s_lshl_b32 s{sA}, s{sWV}, 12
    s_add_u32 s{sA}, s{sA}, {WS_WF}
    s_add_u32 s{sB2}, s{sA}, 32768
    """)
    for ks in range(4):
        a(f"buffer_load_dwordx4 {vr(WT + 4 * ks, 4)}, v7, s[{sW}:{sW + 3}], s{sA} offen offset:{1024 * ks}")
    for ks in range(4):
        a(f"buffer_load_dwordx4 {vr(WB + 4 * ks, 4)}, v7, s[{sW}:{sW + 3}], s{sB2} offen offset:{1024 * ks}")
    a(f"""
    v_lshrrev_b32 v3, 3, v1
    v_lshlrev_b32 v3, 1, v3
    v_xor_b32 v4, v3, v2
    v_lshlrev_b32 v4, 4, v4
    v_lshl_add_u32 v4, v1, 6, v4
    """)
    for i in range(16):
        a(f"ds_read_b128 {vr(HF + 4 * i, 4)}, v4 offset:{HT + 1024 * i}")
    a("s_waitcnt vmcnt(4)")
    for rt in range(4):
        for ks in range(4):
            i = 4 * rt + ks
            a(f"s_waitcnt lgkmcnt({15 - i})")
            c = "0" if ks == 0 else vr(GA + 4 * rt, 4)
            a(f"v_mfma_f32_16x16x32_bf16 {vr(GA + 4 * rt, 4)}, {vr(WT + 4 * ks, 4)}, {vr(HF + 4 * i, 4)}, {c}")
    a(f"""
    K2_E1:
    s_lshl_b32 s{sA}, s{sWV}, 2
    v_add_u32 v5, s{sA}, v2
    s_movk_i32 s{sA}, {AST}
    v_lshlrev_b32 v6, 4, v1
    v_mad_u32_u24 v8, v5, s{sA}, v6
    s_movk_i32 s{sA}, {MST}
    v_mad_u32_u24 v9, v5, s{sA}, v6
    v_lshl_add_u32 v10, v5, 8, v6
    v_lshlrev_b32 v13, 2, v1
    s_mov_b32 s{sA}, {f32(-LN2)}
    s_waitcnt vmcnt(0) lgkmcnt(0)
    s_barrier
    """)
    stamp(a, cfg, 1, 8)
    a(f"""
    ds_read_b32 v13, v13 offset:{NFT}
    ds_read_b128 v[48:51], v8 offset:{ACC}
    ds_read_b128 v[52:55], v8 offset:{ACC + 256}
    v_add_u32 v9, {PT}, v9
    v_mov_b32 v15, {OOB}
    s_waitcnt lgkmcnt(2)
    v_lshrrev_b32 v14, 2, v13
    v_cmp_eq_u32 vcc, s{sWV}, v14
    s_and_b32 s82, vcc_lo, 0xffff
    s_cbranch_scc0 K2_MDONE
    K2_MERGE:
    s_ff1_i32_b32 s83, s82
    s_bitset0_b32 s82, s83
    v_readlane_b32 s84, v13, s83
    s_add_u32 s83, s83, {SIDE}
    s_mul_i32 s83, s83, {AST}
    v_add_u32 v14, s83, v6
    v_cmp_eq_u32 vcc, s84, v5
    s_nop 1
    v_cndmask_b32 v14, v15, v14, vcc
    ds_read_b128 v[56:59], v14 offset:{ACC}
    ds_read_b128 v[60:63], v14 offset:{ACC + 256}
    s_waitcnt lgkmcnt(0)
    v_pk_add_f32 v[48:49], v[48:49], v[56:57]
    v_pk_add_f32 v[50:51], v[50:51], v[58:59]
    v_pk_add_f32 v[52:53], v[52:53], v[60:61]
    v_pk_add_f32 v[54:55], v[54:55], v[62:63]
    s_cmp_lg_u32 s82, 0
    s_cbranch_scc1 K2_MERGE
    K2_MDONE:
    s_waitcnt lgkmcnt(0)
    """)
    assert sA % 2 == 1
    a(f"s_mov_b32 s{sB2}, s{sA}")
    for k in range(4):
        a(f"v_pk_mul_f32 {vr(48 + 2 * k, 2)}, {vr(48 + 2 * k, 2)}, s[{sB2}:{sB2 + 1}] op_sel_hi:[1,0]")
    for k in range(4):
        a(f"v_cvt_pk_bf16_f32 v{48 + k}, v{48 + 2 * k}, v{49 + 2 * k}")
    a(f"""
    ds_write_b128 v9, v[48:51]
    s_waitcnt lgkmcnt(0)
    s_barrier
    s_cmp_lt_u32 s{sWV}, 8
    s_cbranch_scc1 K2_POS
    s_movk_i32 s{sA}, {MST}
    v_lshlrev_b32 v4, 4, v2
    v_mad_u32_u24 v4, v1, s{sA}, v4
    v_add_u32 v4, {PT}, v4
    """)
    for rt in range(4):
        for ks in range(4):
            a(f"ds_read_b128 {vr(HF + 4 * (4 * rt + ks), 4)}, v4 offset:{rt * 16 * MST + 64 * ks}")
    a(f"""
    s_and_b32 s{sB2}, s{sWV}, 1
    s_lshl_b32 s{sB2}, s{sB2}, 1
    v_lshrrev_b32 v11, 1, v2
    v_or_b32 v11, s{sB2}, v11
    v_xor_b32 v11, v11, v3
    v_lshlrev_b32 v11, 4, v11
    v_lshl_add_u32 v11, v1, 6, v11
    v_and_b32 v12, 1, v2
    v_lshl_add_u32 v11, v12, 3, v11
    s_and_b32 s{sB2}, s{sWV}, 6
    s_lshl_b32 s{sB2}, s{sB2}, 9
    v_add_u32 v11, s{sB2}, v11
    s_and_b32 s{sB2}, s{sWV}, 7
    s_lshl_b32 s{sB2}, s{sB2}, 5
    s_add_u32 s{sB2}, s{sB2}, {OT}
    v_lshl_add_u32 v12, v2, 3, s{sB2}
    v_mad_u32_u24 v12, v1, s{sA}, v12
    """)
    for rt in range(4):
        for ks in range(4):
            i = 4 * rt + ks
            a(f"s_waitcnt lgkmcnt({15 - i})")
            a(f"v_mfma_f32_16x16x32_bf16 {vr(GA + 4 * rt, 4)}, {vr(WB + 4 * ks, 4)}, {vr(HF + 4 * i, 4)}, {vr(GA + 4 * rt, 4)}")
    for rt in range(4):
        a(f"ds_read_b64 {vr(16 + 2 * rt, 2)}, v11 offset:{HT + 4096 * rt}")
    for rt in range(4):
        y, t_, hh = GA + 4 * rt, 24, 28
        a(f"""
        v_pk_mul_f32 {vr(t_, 2)}, {vr(y, 2)}, s[{sNL2E}:{sNL2E + 1}] op_sel_hi:[1,0]
        v_pk_mul_f32 {vr(t_ + 2, 2)}, {vr(y + 2, 2)}, s[{sNL2E}:{sNL2E + 1}] op_sel_hi:[1,0]
        """)
        for k in range(4):
            a(f"v_exp_f32 v{t_ + k}, v{t_ + k}")
        a(f"""
        s_waitcnt lgkmcnt(3)
        v_pk_add_f32 {vr(t_, 2)}, {vr(t_, 2)}, 1.0 op_sel_hi:[1,0]
        v_pk_add_f32 {vr(t_ + 2, 2)}, {vr(t_ + 2, 2)}, 1.0 op_sel_hi:[1,0]
        """)
        for k in range(4):
            a(f"v_rcp_f32 v{t_ + k}, v{t_ + k}")
        a(f"""
        v_lshlrev_b32 v{hh}, 16, v{16 + 2 * rt}
        v_and_b32 v{hh + 1}, 0xffff0000, v{16 + 2 * rt}
        v_lshlrev_b32 v{hh + 2}, 16, v{17 + 2 * rt}
        v_and_b32 v{hh + 3}, 0xffff0000, v{17 + 2 * rt}
        v_pk_fma_f32 {vr(t_, 2)}, {vr(t_, 2)}, {vr(y, 2)}, {vr(hh, 2)}
        v_pk_fma_f32 {vr(t_ + 2, 2)}, {vr(t_ + 2, 2)}, {vr(y + 2, 2)}, {vr(hh + 2, 2)}
        v_cvt_pk_bf16_f32 v{y}, v{t_}, v{t_ + 1}
        v_cvt_pk_bf16_f32 v{y + 1}, v{t_ + 2}, v{t_ + 3}
        ds_write_b64 v12, {vr(y, 2)} offset:{rt * 16 * MST}
        """)
    a(f"""
    s_branch K2_OUT
    K2_POS:
    s_cmp_ge_u32 s{sWV}, 3
    s_cbranch_scc1 K2_OUT
    s_lshl_b32 s{sA}, s{sWV}, 6
    v_add_u32 v11, s{sA}, v0
    v_mul_u32_u24 v12, 171, v11
    v_lshrrev_b32 v12, 9, v12
    v_mul_u32_u24 v13, 3, v12
    v_sub_u32 v13, v11, v13
    v_lshlrev_b32 v13, 2, v13
    s_movk_i32 s{sA}, {AST}
    v_mad_u32_u24 v14, v12, s{sA}, v13
    v_lshl_add_u32 v15, v12, 4, v13
    ds_read_b32 v14, v14 offset:{ACC + 512}
    ds_read_b32 v15, v15 offset:{OWN}
    s_mul_i32 s{sA}, s{sNB}, 6
    s_add_u32 s{sA}, s{sA}, {N * 256}
    v_lshl_add_u32 v11, v11, 1, s{sA}
    v_cmp_gt_u32 vcc, s{sNV}, v12
    s_waitcnt lgkmcnt(0)
    v_add_f32 v14, v14, v15
    v_cvt_pk_bf16_f32 v14, v14, v14
    s_and_saveexec_b64 s[82:83], vcc
    global_store_short v11, v14, s[20:21]
    s_mov_b64 exec, s[82:83]
    K2_OUT:
    s_lshl_b32 s{sC}, s{sNB}, 8
    s_add_u32 s{sO}, s20, s{sC}
    s_addc_u32 s{sO + 1}, s21, 0
    s_lshl_b32 s{sO + 2}, s{sNV}, 8
    s_mov_b32 s{sO + 3}, 0x20000
    v_add_u32 v9, {OT - PT}, v9
    s_waitcnt lgkmcnt(0)
    s_barrier
    ds_read_b128 v[48:51], v9
    s_waitcnt lgkmcnt(0)
    buffer_store_dwordx4 v[48:51], v10, s[{sO}:{sO + 3}], 0 offen
    """)
    stamp(a, cfg, 1, 9)
    stamp_out(a, cfg, 1, 22)
    a("K2_END:\ns_endpgm")
    return a.text()


KD = """.amdhsa_kernel {name}
  .amdhsa_next_free_vgpr {vgpr}
  .amdhsa_next_free_sgpr 102
  .amdhsa_accum_offset {vgpr}
  .amdhsa_group_segment_fixed_size 0
  .amdhsa_kernarg_size 88
  .amdhsa_user_sgpr_count 2
  .amdhsa_user_sgpr_kernarg_segment_ptr 1
  .amdhsa_system_sgpr_workgroup_id_x 1
.end_amdhsa_kernel
"""


def build(cfg):
    ref = open(f"cdna_kernels/{NAME}.s.ref").read().split("\n")
    head = [l for l in ref if l.startswith(";") and "@launch" not in l]
    launches = [(K1, 57344), (K2, 163840)]
    extra = cfg.get("empty", 0)
    s = "\n".join(head) + "\n"
    for k, lds in launches:
        s += f"; @launch kernel={k} grid=(256,1,1) block=(1024,1,1) lds={lds}\n"
    for _ in range(extra):
        s += "; @launch kernel=egnn_empty_kernel grid=(256,1,1) block=(64,1,1) lds=0\n"
    s += '.amdgcn_target "amdgcn-amd-amdhsa--gfx950"\n.text\n'
    bodies = [(K1, gen_k1(cfg)), (K2, gen_k2(cfg))]
    if extra:
        bodies.append(("egnn_empty_kernel", "    s_endpgm\n"))
    for k, b in bodies:
        s += f".globl {k}\n.p2align 8\n.type {k},@function\n{k}:\n{b}"
    s += '.section .rodata,"a"\n'
    for k, _ in bodies:
        s += ".p2align 6\n" + KD.format(name=k, vgpr=128)
    errs = lint(re.sub(r's_mem(real)?time.*', 's_nop 0', s), [K1, K2])
    return s, errs


if __name__ == "__main__":
    cfg = {}
    out = f"cdna_kernels/{NAME}.s"
    for arg in sys.argv[1:]:
        if "=" in arg:
            k, v = arg.split("=")
            cfg[k] = int(v)
        else:
            out = arg
    s, errs = build(cfg)
    for e in errs:
        print(e)
    open(out, "w").write(s)
    print("wrote", out, len(s), "bytes;", len(errs), "lint messages")
```

```python
import os
import re
import struct
import sys

sys.path.insert(0, os.path.dirname(os.path.abspath(__file__)))
from lint import lint

NAME = "standalone__cheap_equivariant_egnn__graph"
K1 = "egnn_prep_kernel"
K2 = NAME + "_kernel"

N, E = 12500, 400000
NB = 49
WS_Q, QBYTES = 0, 12576 * 256
WS_REC = 0x400000
WS_WF = 0x780000
WS_TAB = 0x800000
WS_END = WS_TAB + 125 * 1024
WS_DIAG = 0x900000
OOB = 0x30000
LOG2E = 1.4426950408889634
LN2 = 0.6931471805599453


def f32(x):
    return "0x%08x" % struct.unpack("<I", struct.pack("<f", x))[0]


def vr(a, n=1):
    return f"v{a}" if n == 1 else f"v[{a}:{a + n - 1}]"


def sr(a, n=1):
    return f"s{a}" if n == 1 else f"s[{a}:{a + n - 1}]"


class Asm:
    def __init__(self):
        self.L = []

    def __call__(self, text):
        for line in text.split("\n"):
            s = line.strip()
            if not s:
                continue
            self.L.append(s if re.fullmatch(r"[\w.$]+:", s) else "    " + s)

    def text(self):
        return "\n".join(self.L) + "\n"


def srd(a, d, base, nrec, add=None):
    if add is None:
        a(f"s_mov_b32 s{d}, s{base}\ns_mov_b32 s{d + 1}, s{base + 1}")
    else:
        a(f"s_add_u32 s{d}, s{base}, {add}\ns_addc_u32 s{d + 1}, s{base + 1}, 0")
    a(f"s_mov_b32 s{d + 2}, {nrec}\ns_mov_b32 s{d + 3}, 0x20000")


def scan64(a, v):
    for c in ("row_shr:1 row_mask:0xf", "row_shr:2 row_mask:0xf", "row_shr:4 row_mask:0xf", "row_shr:8 row_mask:0xf",
              "row_bcast:15 row_mask:0xa", "row_bcast:31 row_mask:0xc"):
        a(f"s_nop 1\nv_add_u32_dpp v{v}, v{v}, v{v} {c} bank_mask:0xf")


STAMP_REGS = {0: [90, 92, 94, 96, 98, 100, 88, 86], 1: [90, 92, 94, 96, 98, 100, 8, 10, 12, 18]}


def stamp(a, cfg, kern, idx, real=False):
    if cfg.get("diag"):
        r = STAMP_REGS[kern][idx]
        a(f"{'s_memrealtime' if real else 's_memtime'} s[{r}:{r + 1}]")


def stamp_out(a, cfg, kern, ws):
    if not cfg.get("diag"):
        return
    regs = STAMP_REGS[kern]
    a(f"""
    s_waitcnt vmcnt(0)
    s_memrealtime s[{regs[1]}:{regs[1] + 1}]
    s_lshl_b32 s0, s2, 4
    s_add_u32 s0, s0, s3
    s_lshl_b32 s0, s0, 6
    s_add_u32 s0, s0, {WS_DIAG + kern * 0x40000}
    s_waitcnt lgkmcnt(0)
    s_mov_b64 exec, 1
    v_mov_b32 v0, s0
    """)
    for i, r in enumerate(regs):
        a(f"v_mov_b32 v1, s{r}\nglobal_store_dword v0, v1, s[{ws}:{ws + 1}] offset:{4 * i}")


def gen_k1(cfg):
    a = Asm()
    cfg = dict(cfg, dv=100)
    HIST, OFF, LST = 0, 1024, 4096
    a(f"""
    s_load_dwordx16 s[4:19], s[0:1], 0
    s_load_dwordx2 s[20:21], s[0:1], 80
    v_lshrrev_b32 v1, 6, v0
    s_cmp_ge_u32 s2, 256
    s_cbranch_scc1 K1_END
    v_readfirstlane_b32 s3, v1
    v_and_b32 v1, 63, v0
    s_cmp_ge_u32 s2, 125
    s_cbranch_scc1 K1_Q
    s_cmp_ge_u32 s3, 13
    s_cbranch_scc1 K1_AUX
    """)
    a(f"""
    v_lshlrev_b32 v2, 2, v0
    v_mov_b32 v3, 0
    ds_write_b32 v2, v3
    s_mul_i32 s22, s2, 12800
    v_lshlrev_b32 v28, 4, v0
    v_add_u32 v2, s22, v28
    v_lshrrev_b32 v3, 1, v2
    v_cmp_gt_u32 s[24:25], 800, v0
    """.replace("v_cmp_gt_u32 s[24:25], 800, v0", "v_cmp_gt_u32 vcc, 800, v0\ns_mov_b64 s[24:25], vcc"))
    a(f"""
    s_mov_b64 exec, s[24:25]
    s_waitcnt lgkmcnt(0)
    global_load_dwordx4 v[4:7], v2, s[12:13]
    global_load_dwordx4 v[8:11], v2, s[10:11]
    global_load_dwordx2 v[12:13], v3, s[8:9]
    """)
    stamp(a, cfg, 0, 0, True)
    stamp(a, cfg, 0, 2)
    a(f"""
    s_movk_i32 s26, 21400
    s_movk_i32 s27, -49
    v_mov_b32 v29, 1
    s_barrier
    s_waitcnt vmcnt(2)
    """)
    stamp(a, cfg, 0, 3)
    for j in range(4):
        a(f"""
        v_mul_u32_u24 v{14 + j}, s26, v{4 + j}
        v_lshrrev_b32 v{14 + j}, 18, v{14 + j}
        v_and_b32 v{14 + j}, 0x3fc, v{14 + j}
        ds_add_rtn_u32 v{18 + j}, v{14 + j}, v29 offset:{HIST}
        """)
    for j in range(4):
        a(f"""
        v_lshlrev_b32 v{4 + j}, 2, v{4 + j}
        v_mad_i32_i24 v{4 + j}, v{14 + j}, s27, v{4 + j}
        """)
    a("s_waitcnt vmcnt(0)")
    for j in range(4):
        a(f"v_lshl_or_b32 v{32 + 2 * j}, v{4 + j}, 16, v{8 + j}")
        if j & 1:
            a(f"v_and_b32 v{33 + 2 * j}, 0xffff0000, v{12 + j // 2}")
        else:
            a(f"v_lshlrev_b32 v{33 + 2 * j}, 16, v{12 + j // 2}")
    a(f"""
    s_mov_b64 exec, -1
    v_lshlrev_b32 v2, 4, v1
    s_waitcnt lgkmcnt(0)
    s_barrier
    """)
    stamp(a, cfg, 0, 4)
    a(f"""
    ds_read_b128 v[4:7], v2 offset:{HIST}
    s_waitcnt lgkmcnt(0)
    v_add_u32 v9, v4, v5
    v_add_u32 v10, v9, v6
    v_add_u32 v11, v10, v7
    v_mov_b32 v3, v11
    """)
    scan64(a, 3)
    a(f"""
    v_sub_u32 v8, v3, v11
    v_add_u32 v11, v8, v10
    v_add_u32 v10, v8, v9
    v_add_u32 v9, v8, v4
    ds_write_b128 v2, v[8:11] offset:{OFF}
    s_cmp_lg_u32 s3, 0
    s_cbranch_scc1 K1_NOTAB
    s_lshl_b32 s22, s2, 10
    s_add_u32 s22, s22, {WS_TAB}
    v_lshl_or_b32 v24, v4, 16, v8
    v_lshl_or_b32 v25, v5, 16, v9
    v_lshl_or_b32 v26, v6, 16, v10
    v_lshl_or_b32 v27, v7, 16, v11
    v_add_u32 v3, s22, v2
    global_store_dwordx4 v3, v[24:27], s[20:21]
    K1_NOTAB:
    s_mov_b64 exec, s[24:25]
    """)
    for j in range(4):
        a(f"ds_read_b32 v{14 + j}, v{14 + j} offset:{OFF}")
    for j in range(4):
        a(f"""
        s_waitcnt lgkmcnt(3)
        v_add_lshl_u32 v{14 + j}, v{14 + j}, v{18 + j}, 3
        ds_write_b64 v{14 + j}, v[{32 + 2 * j}:{33 + 2 * j}] offset:{LST}
        """)
    a(f"""
    s_mul_i32 s22, s2, 25600
    s_add_u32 s22, s22, {WS_REC}
    v_add_u32 v2, s22, v28
    v_add_u32 v3, 12800, v2
    s_waitcnt lgkmcnt(0)
    s_barrier
    """)
    stamp(a, cfg, 0, 5)
    a(f"""
    ds_read_b128 v[4:7], v28 offset:{LST}
    ds_read_b128 v[8:11], v28 offset:{LST + 12800}
    s_waitcnt lgkmcnt(1)
    global_store_dwordx4 v2, v[4:7], s[20:21]
    s_waitcnt lgkmcnt(0)
    global_store_dwordx4 v3, v[8:11], s[20:21]
    """)
    stamp(a, cfg, 0, 6)
    stamp_out(a, cfg, 0, 20)
    a("s_endpgm")
    a(f"""
    K1_AUX:
    s_cmp_lg_u32 s3, 13
    s_cbranch_scc1 K1_END
    s_cmp_ge_u32 s2, 96
    s_cbranch_scc1 K1_END
    s_bfe_u32 s22, s2, 0x30002
    s_and_b32 s23, s2, 3
    v_and_b32 v2, 15, v1
    v_lshrrev_b32 v3, 4, v1
    s_waitcnt lgkmcnt(0)
    s_mov_b32 s28, s18
    s_mov_b32 s29, s19
    s_mov_b32 s30, 65536
    s_mov_b32 s31, 0x20000
    s_movk_i32 s25, 256
    s_cmp_ge_u32 s2, 64
    s_cbranch_scc1 K1_M2
    s_lshl_b32 s24, s23, 13
    v_lshlrev_b32 v3, 11, v3
    s_cmp_ge_u32 s2, 32
    s_cbranch_scc1 K1_M1
    s_mov_b32 s28, s14
    s_mov_b32 s29, s15
    s_lshr_b32 s26, s22, 2
    s_lshl_b32 s26, s26, 7
    s_add_u32 s24, s24, s26
    s_and_b32 s26, s22, 2
    s_lshl_b32 s26, s26, 3
    s_add_u32 s24, s24, s26
    s_and_b32 s26, s22, 1
    s_lshl_b32 s26, s26, 1
    s_add_u32 s24, s24, s26
    v_and_b32 v4, 3, v2
    v_and_b32 v2, 12, v2
    v_lshl_or_b32 v2, v4, 5, v2
    v_add_u32 v2, v2, v3
    s_branch K1_WLD
    K1_M2:
    s_lshr_b32 s24, s23, 1
    s_lshl_b32 s24, s24, 3
    s_and_b32 s26, s23, 1
    s_add_u32 s24, s24, s26
    s_add_u32 s24, s24, 128
    s_lshl_b32 s24, s24, 8
    s_movk_i32 s25, 4096
    v_lshlrev_b32 v3, 9, v3
    K1_M1:
    s_lshl_b32 s26, s22, 5
    s_add_u32 s24, s24, s26
    v_lshl_add_u32 v2, v2, 1, v3
    K1_WLD:
    """)
    for j in range(8):
        a(f"buffer_load_ushort v{8 + j}, v2, s[28:31], s24 offen")
        if j < 7:
            a("s_add_u32 s24, s24, s25")
    a(f"""
    s_lshl_b32 s22, s2, 10
    s_add_u32 s22, s22, {WS_WF}
    v_lshl_add_u32 v3, v1, 4, s22
    s_waitcnt vmcnt(0)
    v_lshl_or_b32 v4, v9, 16, v8
    v_lshl_or_b32 v5, v11, 16, v10
    v_lshl_or_b32 v6, v13, 16, v12
    v_lshl_or_b32 v7, v15, 16, v14
    global_store_dwordx4 v3, v[4:7], s[20:21]
    s_endpgm
    """)
    WL, HL = 0, 32768
    a(f"""
    K1_Q:
    s_sub_u32 s22, s2, 125
    s_mul_i32 s22, s22, 96
    v_lshrrev_b32 v2, 4, v1
    v_and_b32 v3, 15, v1
    s_and_b32 s23, s3, 1
    s_lshl_b32 s24, s23, 2
    v_or_b32 v4, s24, v2
    v_lshlrev_b32 v4, 1, v4
    v_xor_b32 v4, v4, v3
    v_lshlrev_b32 v4, 4, v4
    v_lshl_add_u32 v4, v2, 8, v4
    s_lshl_b32 s24, s3, 11
    s_add_u32 s25, s24, 32768
    s_mov_b32 m0, s24
    v_lshrrev_b32 v5, 2, v1
    v_lshrrev_b32 v6, 5, v1
    v_lshlrev_b32 v6, 1, v6
    v_and_b32 v7, 3, v1
    v_xor_b32 v6, v6, v7
    v_lshlrev_b32 v6, 4, v6
    v_lshl_add_u32 v5, v5, 8, v6
    s_waitcnt lgkmcnt(0)
    """)
    srd(a, 28, 14, 258 * 256)
    a(f"""
    buffer_load_dwordx4 v4, s[28:31], s25 offen lds
    buffer_load_dwordx4 v4, s[28:31], s25 offen offset:1024 lds
    s_cmp_ge_u32 s3, 12
    s_cbranch_scc1 K1_QW
    """)
    srd(a, 32, 4, N * 256)
    a(f"""
    s_lshr_b32 s26, s3, 1
    s_lshl_b32 s26, s26, 4
    s_add_u32 s26, s26, s22
    s_lshl_b32 s26, s26, 8
    s_lshl_b32 s27, s23, 7
    s_add_u32 s26, s26, s27
    s_add_u32 s27, s24, {HL}
    s_mov_b32 m0, s27
    s_add_u32 s36, s26, 64
    buffer_load_dwordx4 v5, s[32:35], s26 offen lds
    s_add_u32 s27, s27, 1024
    s_mov_b32 m0, s27
    s_nop 0
    buffer_load_dwordx4 v5, s[32:35], s36 offen lds
    K1_QW:
    """)
    stamp(a, cfg, 0, 0, True)
    stamp(a, cfg, 0, 2)
    a(f"""
    v_lshrrev_b32 v6, 3, v3
    v_lshlrev_b32 v6, 1, v6
    v_xor_b32 v6, v6, v2
    v_lshlrev_b32 v6, 4, v6
    v_lshl_add_u32 v6, v3, 6, v6
    s_lshr_b32 s27, s3, 1
    s_lshl_b32 s27, s27, 12
    v_add_u32 v6, s27, v6
    v_bfe_u32 v8, v1, 2, 2
    v_and_b32 v9, 1, v2
    v_xor_b32 v9, s23, v9
    v_lshl_or_b32 v9, v9, 2, v8
    v_lshlrev_b32 v9, 5, v9
    v_lshl_or_b32 v9, v7, 3, v9
    v_lshl_add_u32 v8, v2, 3, v8
    v_lshl_add_u32 v8, v8, 8, v9
    v_xor_b32 v9, 32, v8
    v_xor_b32 v10, 64, v8
    v_xor_b32 v11, 0x60, v8
    v_lshlrev_b32 v12, 3, v3
    v_lshl_add_u32 v12, v2, 10, v12
    v_add_u32 v12, s26, v12
    s_waitcnt vmcnt(0)
    s_barrier
    s_cmp_ge_u32 s3, 12
    s_cbranch_scc1 K1_END
    """)
    stamp(a, cfg, 0, 3)
    AF, BF, AC = 16, 32, 96
    for ks in range(4):
        a(f"ds_read_b128 v[{AF + 4 * ks}:{AF + 4 * ks + 3}], v6 offset:{HL + 1024 * ks}")
        for tt in range(4):
            for i in range(2):
                d = BF + 16 * ks + 4 * tt + 2 * i
                a(f"ds_read_b64_tr_b16 v[{d}:{d + 1}], v{8 + tt} offset:{WL + 8192 * ks + 1024 * i}")
        if ks >= 1:
            k = ks - 1
            a("s_waitcnt lgkmcnt(9)")
            for tt in range(4):
                c = "0" if k == 0 else vr(AC + 4 * tt, 4)
                a(f"v_mfma_f32_16x16x32_bf16 {vr(AC + 4 * tt, 4)}, {vr(AF + 4 * k, 4)}, {vr(BF + 16 * k + 4 * tt, 4)}, {c}")
    a(f"s_mov_b32 s24, {f32(-LOG2E)}")
    for tt in range(4):
        a(f"s_waitcnt lgkmcnt({6 - 2 * tt})")
        a(f"v_mfma_f32_16x16x32_bf16 {vr(AC + 4 * tt, 4)}, {vr(AF + 12, 4)}, {vr(BF + 48 + 4 * tt, 4)}, {vr(AC + 4 * tt, 4)}")
    a("s_nop 1")
    for tt in range(4):
        for k in (0, 2):
            a(f"v_pk_mul_f32 {vr(AC + 4 * tt + k, 2)}, {vr(AC + 4 * tt + k, 2)}, s[24:25] op_sel_hi:[1,0]")
    for r in range(4):
        a(f"""
        v_cvt_pk_bf16_f32 v{16 + 2 * r}, v{AC + r}, v{AC + 4 + r}
        v_cvt_pk_bf16_f32 v{17 + 2 * r}, v{AC + 8 + r}, v{AC + 12 + r}
        global_store_dwordx2 v12, v[{16 + 2 * r}:{17 + 2 * r}], s[20:21] offset:{256 * r}
        """)
    stamp(a, cfg, 0, 4)
    stamp_out(a, cfg, 0, 20)
    a("K1_END:\ns_endpgm")
    return a.text()


def gen_k2(cfg):
    a = Asm()
    NSLOT = cfg.get("nslot", 2)
    CAP = 1792
    CNT, OH, OWN, WX, WD = 0, 256, 1280, 2304, 2816
    LIST = 3392
    HT = LIST + (CAP + 48) * 16
    ACC = HT + 16384
    AST = 576
    SIDE = 52
    PT = ACC + 68 * AST
    NFT = WD + 512
    RING = PT + 64 * 288
    OT = RING
    assert RING + NSLOT * 16384 <= 163840
    sWV, sB, sNB = 3, 48, 49
    sW, sQ, sH, sP, sO = 24, 28, 32, 36, 40
    sDONE, sR, sTOT, sMORE = 50, 51, 52, 53
    sNT, sTEND, sWEND, sN0, sNW, sEW, sLAST = 54, 55, 56, 57, 58, 59, 60
    sC000, sWSTEP, s128, s192 = 61, 62, 63, 64
    s256 = 66
    sNL2E = 68
    sM0 = 70
    sQN, sT0, sNV = 74, 75, 76
    sA, sB2, sC = 77, 78, 79
    sNF, sNL, sSLOW = 44, 45, 46
    sG3 = 80
    vL = 0
    vRing, vLc, vMul, vIncl = 1, 2, 3, 4
    vVoff = 5
    vBX, vBS = 6, 7
    vIX, vIS = 8, 9
    vDa, vEa = 10, 11
    vXa, vSa, vD0, vDE, vDV = 12, 13, 14, 15, 16
    F, T, Z, M, S, A, B, AC = 24, 28, 32, 40, 56, 58, 72, 96
    cfg = dict(cfg, dv=20)

    a(f"""
    s_load_dwordx16 s[4:19], s[0:1], 0
    s_load_dwordx2 s[20:21], s[0:1], 64
    s_load_dwordx2 s[22:23], s[0:1], 80
    v_lshrrev_b32 v1, 6, v0
    s_cmp_ge_u32 s2, 256
    s_cbranch_scc1 K2_END
    v_readfirstlane_b32 s{sWV}, v1
    s_and_b32 s{sB}, s2, 7
    s_lshl_b32 s{sB}, s{sB}, 5
    s_lshr_b32 s{sA}, s2, 3
    s_add_u32 s{sB}, s{sB}, s{sA}
    s_mul_i32 s{sNB}, s{sB}, {NB}
    v_lshrrev_b32 v2, 3, v0
    v_lshlrev_b32 v3, 10, v2
    s_lshl_b32 s{sA}, s{sB}, 2
    s_add_u32 s{sA}, s{sA}, {WS_TAB}
    s_mov_b32 s{sW + 2}, {WS_END}
    s_mov_b32 s{sW + 3}, 0x20000
    v_lshlrev_b32 v22, 4, v0
    v_and_b32 v0, 63, v0
    v_lshrrev_b32 v5, 5, v0
    v_lshlrev_b32 v5, 1, v5
    v_and_b32 v6, 3, v0
    v_xor_b32 v5, v5, v6
    v_lshlrev_b32 v{vLc + 21}, 4, {'v6' if cfg.get('noswz') else 'v5'}
    v_lshrrev_b32 v6, 2, v0
    v_lshl_add_u32 v6, v6, 8, v{vLc + 21}
    s_lshl_b32 s{sB2}, s{sWV}, 10
    s_add_u32 s{sB2}, s{sB2}, {HT}
    s_mov_b32 m0, s{sB2}
    s_lshl_b32 s{sC}, s{sNB}, 8
    s_waitcnt lgkmcnt(0)
    s_mov_b32 s{sW}, s22
    s_mov_b32 s{sW + 1}, s23
    buffer_load_dword v4, v3, s[{sW}:{sW + 3}], s{sA} offen
    s_add_u32 s{sH}, s4, s{sC}
    s_addc_u32 s{sH + 1}, s5, 0
    s_sub_u32 s{sH + 2}, {N * 256}, s{sC}
    s_mov_b32 s{sH + 3}, 0x20000
    s_lshr_b32 s{sA}, s{sWV}, 2
    s_lshl_b32 s{sA}, s{sA}, 12
    s_and_b32 s{sB2}, s{sWV}, 3
    s_lshl_b32 s{sB2}, s{sB2}, 6
    s_add_u32 s{sA}, s{sA}, s{sB2}
    buffer_load_dwordx4 v6, s[{sH}:{sH + 3}], s{sA} offen lds
    """)
    stamp(a, cfg, 1, 0, True)
    stamp(a, cfg, 1, 2)
    srd(a, sP, 6, N * 6)
    WF_R = 32
    a(f"""
    v_lshlrev_b32 v7, 4, v0
    s_cmp_ge_u32 s{sWV}, 8
    s_cbranch_scc1 K2_SMALL
    s_lshl_b32 s{sA}, s{sWV}, 12
    s_add_u32 s{sA}, s{sA}, {WS_WF}
    """)
    for ks in range(4):
        a(f"buffer_load_dwordx4 {vr(WF_R + 4 * ks, 4)}, v7, s[{sW}:{sW + 3}], s{sA} offen offset:{1024 * ks}")
    a(f"""
    s_branch K2_INIT
    K2_SMALL:
    s_cmp_ge_u32 s{sWV}, 14
    s_cbranch_scc1 K2_SM2
    s_and_b32 s{sA}, s{sWV}, 1
    s_lshl_b32 s{sA}, s{sA}, 7
    v_and_b32 v32, 3, v0
    v_lshlrev_b32 v32, 5, v32
    v_and_b32 v33, 12, v0
    v_or_b32 v32, v32, v33
    v_and_b32 v33, 32, v0
    v_lshrrev_b32 v33, 1, v33
    v_or_b32 v32, v32, v33
    v_and_b32 v33, 16, v0
    v_lshrrev_b32 v33, 3, v33
    v_or3_b32 v32, v32, v33, s{sA}
    s_add_u32 s44, s14, 65536
    s_addc_u32 s45, s15, 0
    s_and_b32 s{sB2}, s{sWV}, 2
    s_lshl_b32 s{sB2}, s{sB2}, 7
    v_add_u32 v32, s{sB2}, v32
    s_cmp_ge_u32 s{sWV}, 12
    s_cselect_b32 s44, s16, s44
    s_cselect_b32 s45, s17, s45
    global_load_ushort v34, v32, s[44:45]
    s_branch K2_INIT
    K2_SM2:
    v_add_u32 v32, s{sNB}, v0
    v_mul_u32_u24 v32, 6, v32
    v_and_b32 v33, -4, v32
    buffer_load_dwordx2 v[34:35], v33, s[{sP}:{sP + 3}], 0 offen
    K2_INIT:
    v_mov_b32 v8, 0
    v_mov_b32 v9, 0
    v_mov_b32 v10, 0
    v_mov_b32 v11, 0
    ds_write_b128 v22, v[8:11] offset:{ACC}
    v_add_u32 v22, 16384, v22
    ds_write_b128 v22, v[8:11] offset:{ACC}
    s_cmp_lg_u32 s{sWV}, 15
    s_cbranch_scc1 K2_INIT2
    v_lshlrev_b32 v12, 2, v0
    ds_write_b32 v12, v8 offset:{CNT}
    v_cmp_eq_u32 vcc, 32, v0
    v_mov_b32 v12, 0x3f80
    v_mov_b32 v13, 0x3f800000
    v_cndmask_b32 v8, 0, v12, vcc
    v_cndmask_b32 v10, 0, v13, vcc
    v_cmp_eq_u32 vcc, 33, v0
    s_nop 1
    v_cndmask_b32 v9, 0, v12, vcc
    v_cndmask_b32 v11, 0, v13, vcc
    ds_write_b128 v7, v[8:11] offset:{OH}
    K2_INIT2:
    s_mov_b32 s{sDONE}, 0
    s_mov_b32 s{sR}, 32
    s_mov_b32 s{sC000}, 0xc000
    s_mov_b32 s{sWSTEP}, 0xc0000
    s_movk_i32 s{s128}, 128
    s_movk_i32 s{s192}, 192
    s_movk_i32 s{s256}, 256
    s_movk_i32 s{s256 + 1}, 256
    s_mov_b32 s{sNL2E}, {f32(-LOG2E)}
    s_mov_b32 s{sG3}, 0
    s_mov_b32 s{sG3 + 1}, 0xffff0000
    s_mov_b32 s{sQN}, {0 if cfg.get('nodma') else QBYTES}
    s_mul_i32 s{sM0}, s{sWV}, {NSLOT * 1024}
    s_add_u32 s{sM0}, s{sM0}, {RING}
    """)
    for i in range(1, NSLOT):
        a(f"s_add_u32 s{sM0 + i}, s{sM0}, {1024 * i}")
    srd(a, sQ, 22, QBYTES)

    def recload(first):
        a(f"""
        v_and_b32 v6, 7, v0
        v_lshlrev_b32 v6, 1, v6
        s_movk_i32 s{sA}, 3200
        v_mad_u32_u24 v3, v2, s{sA}, v6
        v_add_u32 v3, s{sDONE}, v3
        """)
        if first:
            a(f"""
            s_cmp_ge_u32 s{sWV}, 8
            s_cbranch_scc1 K2_W1
            s_waitcnt vmcnt(5)
            s_branch K2_W2
            K2_W1:
            s_waitcnt vmcnt(2)
            K2_W2:
            """)
        else:
            a("s_waitcnt vmcnt(0)")
        a(f"""
        v_and_b32 v12, 0xffff, v4
        v_add_lshl_u32 v3, v3, v12, 3
        s_mov_b32 s{sA}, {WS_REC}
        buffer_load_dwordx4 v[8:11], v3, s[{sW}:{sW + 3}], s{sA} offen
        v_lshrrev_b32 v5, 16, v4
        v_subrev_u32 v5, s{sDONE}, v5
        v_add_u32 v12, 16, v6
        v_cmp_lt_i32 vcc, v12, v5
        v_bfrev_b32 v12, 1
        s_nop 0
        v_cndmask_b32 v3, v12, v3, vcc
        buffer_load_dwordx4 v[12:15], v3, s[{sW}:{sW + 3}], s{sA} offen offset:128
        """)

    recload(True)
    stamp(a, cfg, 1, 3)
    a(f"""
    s_waitcnt vmcnt(2) lgkmcnt(0)
    s_barrier
    s_cmp_ge_u32 s{sWV}, 8
    s_cbranch_scc1 K2_SMALLW
    """)
    HF, PA = 48, 112
    a(f"""
    v_and_b32 v16, 15, v0
    v_lshrrev_b32 v17, 4, v0
    v_lshrrev_b32 v18, 3, v16
    v_lshlrev_b32 v18, 1, v18
    v_xor_b32 v18, v18, v17
    v_lshlrev_b32 v18, 4, v18
    v_lshl_add_u32 v18, v16, 6, v18
    """)
    for i in range(16):
        a(f"ds_read_b128 {vr(HF + 4 * i, 4)}, v18 offset:{HT + 1024 * i}")
        if i == 11:
            a(f"""
            s_movk_i32 s{sA}, 288
            s_lshl_b32 s{sB2}, s{sWV}, 5
            s_add_u32 s{sB2}, s{sB2}, {PT}
            v_lshl_add_u32 v17, v17, 3, s{sB2}
            v_mad_u32_u24 v17, v16, s{sA}, v17
            """)
    for rt in range(4):
        for ks in range(4):
            i = 4 * rt + ks
            a(f"s_waitcnt lgkmcnt({15 - i})")
            c = "0" if ks == 0 else vr(PA + 4 * rt, 4)
            a(f"v_mfma_f32_16x16x32_bf16 {vr(PA + 4 * rt, 4)}, {vr(WF_R + 4 * ks, 4)}, {vr(HF + 4 * i, 4)}, {c}")
    for rt in range(4):
        p = PA + 4 * rt
        a(f"""
        v_pk_mul_f32 {vr(p, 2)}, {vr(p, 2)}, s[{sNL2E}:{sNL2E + 1}] op_sel_hi:[1,0]
        v_pk_mul_f32 {vr(p + 2, 2)}, {vr(p + 2, 2)}, s[{sNL2E}:{sNL2E + 1}] op_sel_hi:[1,0]
        v_cvt_pk_bf16_f32 v{p}, v{p}, v{p + 1}
        v_cvt_pk_bf16_f32 v{p + 1}, v{p + 2}, v{p + 3}
        ds_write_b64 v17, {vr(p, 2)} offset:{rt * 16 * 288}
        """)
    a(f"""
    s_branch K2_COUNT
    K2_SMALLW:
    s_cmp_ge_u32 s{sWV}, 14
    s_cbranch_scc1 K2_SW3
    s_cmp_ge_u32 s{sWV}, 12
    s_cbranch_scc1 K2_SW2
    s_and_b32 s{sA}, s{sWV}, 3
    s_lshl_b32 s{sA}, s{sA}, 7
    v_lshl_add_u32 v32, v0, 1, s{sA}
    ds_write_b16 v32, v34 offset:{WD}
    s_branch K2_COUNT
    K2_SW2:
    s_and_b32 s{sA}, s{sWV}, 1
    s_lshl_b32 s{sA}, s{sA}, 4
    v_and_b32 v32, 15, v0
    v_lshl_add_u32 v32, v32, 5, s{sA}
    v_lshrrev_b32 v33, 4, v0
    v_lshl_add_u32 v32, v33, 2, v32
    v_lshlrev_b32 v34, 16, v34
    v_mul_f32 v34, {f32(-LN2)}, v34
    ds_write_b32 v32, v34 offset:{WX}
    s_branch K2_COUNT
    K2_SW3:
    v_and_b32 v32, 2, v32
    v_lshlrev_b32 v32, 3, v32
    v_lshrrev_b64 v[34:35], v32, v[34:35]
    v_lshlrev_b32 v36, 16, v34
    v_and_b32 v37, 0xffff0000, v34
    v_lshlrev_b32 v38, 16, v35
    v_mov_b32 v39, 0
    ds_write_b128 v7, v[36:39] offset:{OWN}
    """)
    a(f"""
    K2_COUNT:
    v_min_i32 v16, s{sR}, v5
    v_cmp_lt_i32 vcc, s{sR}, v5
    v_mov_b32 v17, {OOB}
    v_mov_b32 v18, 252
    v_mov_b32 v19, 1
    v_cndmask_b32 v18, v17, v18, vcc
    ds_write_b32 v18, v19 offset:{CNT}
    v_sub_u32 v16, v16, v6
    s_waitcnt vmcnt(0)
    """)
    stamp(a, cfg, 1, 4)
    lims = (0, 1, 16, 17)
    for j in range(4):
        a(f"""
        v_cmp_lt_i32 s[{82 + 2 * j}:{83 + 2 * j}], {lims[j]}, v16
        v_lshrrev_b32 v{24 + j}, 16, v{8 + 2 * j}
        """)
    for j in range(4):
        a(f"""
        v_cndmask_b32 v{24 + j}, v17, v{24 + j}, s[{82 + 2 * j}:{83 + 2 * j}]
        ds_add_rtn_u32 v{28 + j}, v{24 + j}, v19 offset:{CNT}
        """)
    a(f"""
    v_lshlrev_b32 v18, 2, v0
    s_waitcnt lgkmcnt(0)
    s_barrier
    ds_read_b32 v20, v18 offset:{CNT}
    s_waitcnt lgkmcnt(0)
    v_mov_b32 v{vIncl}, v20
    v_readlane_b32 s{sMORE}, v20, 63
    """)
    scan64(a, vIncl)
    a(f"""
    v_sub_u32 v20, v{vIncl}, v20
    v_readlane_b32 s{sTOT}, v{vIncl}, 62
    """)
    for j in range(4):
        a(f"ds_bpermute_b32 v{32 + j}, v{24 + j}, v20")
    a(f"""
    s_cmp_gt_u32 s{sTOT}, {CAP}
    s_cbranch_scc1 K2_SHRINK
    s_add_u32 s{sA}, s{sTOT}, 15
    s_lshr_b32 s{sA}, s{sA}, 4
    s_lshr_b32 s{sB2}, s{sA}, 4
    s_and_b32 s{sA}, s{sA}, 15
    s_mul_i32 s{sT0}, s{sB2}, s{sWV}
    s_min_u32 s{sC}, s{sWV}, s{sA}
    s_add_u32 s{sT0}, s{sT0}, s{sC}
    s_cmp_lt_u32 s{sWV}, s{sA}
    s_addc_u32 s{sNT}, s{sB2}, 0
    """)
    for j in range(4):
        a(f"""
        s_waitcnt lgkmcnt(3)
        v_add_lshl_u32 v{32 + j}, v{32 + j}, v{28 + j}, 4
        v_cndmask_b32 v{32 + j}, v17, v{32 + j}, s[{82 + 2 * j}:{83 + 2 * j}]
        ds_write_b64 v{32 + j}, v[{8 + 2 * j}:{9 + 2 * j}] offset:{LIST}
        """)
    a(f"""
    s_cmp_lg_u32 s{sWV}, 15
    s_cbranch_scc1 K2_NOPAD
    v_add_lshl_u32 v18, v0, s{sTOT}, 4
    v_cndmask_b32 v18, v18, v17, s[{sG3}:{sG3 + 1}]
    v_mov_b32 v20, {252 << 16}
    v_mov_b32 v21, 0
    ds_write_b64 v18, v[20:21] offset:{LIST}
    K2_NOPAD:
    """)
    a(f"""
    v_and_b32 v24, 15, v0
    v_lshrrev_b32 v25, 4, v0
    v_lshrrev_b32 v26, 2, v0
    v_and_b32 v27, 3, v0
    v_lshrrev_b32 v18, 3, v24
    v_lshlrev_b32 v18, 1, v18
    v_xor_b32 v18, v18, v25
    v_lshl_add_u32 v18, v18, 4, s{sM0}
    v_lshl_add_u32 v{vRing}, v24, 6, v18
    v_mov_b32 v{vLc}, v{vLc + 21}
    v_cndmask_b32 v{vMul}, 2, 0, s[{sG3}:{sG3 + 1}]
    v_mov_b32 v{vIS}, 256
    v_cndmask_b32 v{vIX}, 0, v{vIS}, s[{sG3}:{sG3 + 1}]
    v_lshrrev_b32 v18, 2, v24
    v_cmp_eq_u32 vcc, v18, v25
    v_mov_b32 v18, 0x3f80
    v_mov_b32 v19, 0
    v_cndmask_b32 v18, 0, v18, vcc
    v_lshlrev_b32 v20, 4, v27
    v_lshlrev_b64 v[{B + 2}:{B + 3}], v20, v[18:19]
    """)
    for gi in range(1, 4):
        a(f"v_mov_b32 v{B + 6 * gi + 2}, v{B + 2}\nv_mov_b32 v{B + 6 * gi + 3}, v{B + 3}")
    a(f"""
    s_lshl_b32 s{sTEND}, s{sT0}, 4
    s_add_u32 s{sA}, s{sT0}, s{sNT}
    s_lshl_b32 s{sA}, s{sA}, 4
    s_min_u32 s{sWEND}, s{sA}, s{sTOT}
    s_lshl_b32 s{sA}, s{sT0}, 8
    s_add_u32 s{sA}, s{sA}, {LIST}
    v_lshl_add_u32 v{vDa}, v26, 4, s{sA}
    v_lshl_add_u32 v{vEa}, v24, 4, s{sA}
    v_lshl_add_u32 v28, v0, 4, s{sA}
    s_lshl_b32 s{sB2}, s{sNT}, 4
    v_cmp_gt_u32 vcc, s{sB2}, v0
    v_add_u32 v29, 64, v0
    v_cmp_gt_u32 s[82:83], s{sB2}, v29
    v_add_u32 v29, 1024, v28
    v_cndmask_b32 v28, v17, v28, vcc
    v_cndmask_b32 v29, v17, v29, s[82:83]
    s_mov_b32 s{sLAST}, 0
    s_or_b32 s{sSLOW}, s{sMORE}, s{sDONE}
    s_movk_i32 s{sNF}, 255
    v_cmp_gt_u32 vcc, s{sWEND}, v{vIncl}
    s_bcnt1_i32_b64 s{sNL}, vcc
    s_waitcnt lgkmcnt(0)
    s_barrier
    """)
    stamp(a, cfg, 1, 5)
    a(f"""
    s_cmp_eq_u32 s{sNT}, 0
    s_cbranch_scc1 K2_ROUNDEND
    """)
    soff = ["0", "64", f"s{s128}", f"s{s192}"]

    def dma(kc, slot=None):
        slot = kc % NSLOT
        return [f"s_mov_b32 m0, s{sM0 + slot}", "s_nop 0",
                f"buffer_load_dwordx4 v{vVoff}, s[{sQ}:{sQ + 3}], {soff[kc]} offen lds ; @w:ring{slot}"]

    def rd(kc):
        slot = kc % NSLOT
        d = A + 2 + 6 * (kc & 1)
        return f"ds_read_b128 {vr(d, 4)}, v{vRing} offset:{1024 * slot} ; @r:ring{slot}"

    def first_dmas():
        a(f"v_mad_u32_u16 v{vVoff}, v{vD0}, s{s256}, v{vLc}")
        a(f"s_mov_b32 s{sQ + 2}, s{sQN}")
        for kc in range(NSLOT):
            a("\n".join(dma(kc)))

    def xfrags():
        a(f"""
        v_lshrrev_b32 v18, 2, v{vL}
        v_and_b32 v19, 3, v{vL}
        v_add_u32 v20, s{sN0}, v18
        s_movk_i32 s{sA}, 288
        v_mul_u32_u24 v20, s{sA}, v20
        v_add_u32 v20, {PT}, v20
        v_lshlrev_b32 v21, 8, v18
        v_add_u32 v21, {WD - 14 * 256}, v21
        v_cndmask_b32 v20, v20, v21, s[{sG3}:{sG3 + 1}]
        v_lshrrev_b32 v21, 3, v{vL}
        v_cmp_eq_u32 vcc, 6, v21
        v_mov_b32 v21, {OOB}
        v_lshl_add_u32 v20, v19, 3, v20
        v_cndmask_b32 v20, v20, v21, vcc
        """)
        xpos = {0: B, 3: B + 4, 4: B + 6, 7: B + 10, 2: B + 12, 1: B + 16, 6: B + 18, 5: B + 22}
        for u in range(8):
            a(f"ds_read_b64_tr_b16 {vr(xpos[u], 2)}, v20 offset:{32 * u}")
        a(f"""
        s_mov_b32 s{sNW}, s{sN0}
        s_add_u32 s{sA}, s{sN0}, 3
        v_readlane_b32 s{sEW}, v{vIncl}, s{sA}
        v_add_u32 v19, s{sN0}, v19
        s_mov_b32 s{sA}, 0x30000
        v_mul_u32_u24 v19, s{sA}, v19
        v_sub_u32 v{vBS}, v{vDa}, v19
        v_add_u32 v{vBS}, 8, v{vBS}
        s_lshl_b32 s{sA}, s{sN0}, 3
        s_sub_u32 s{sA}, {OH + 512}, s{sA}
        v_lshrrev_b32 v18, 4, v{vL}
        v_lshlrev_b32 v18, 5, v18
        v_sub_u32 v18, s{sA}, v18
        v_cndmask_b32 v{vBX}, v18, v{vEa}, s[{sG3}:{sG3 + 1}]
        s_cmp_ge_u32 s{sEW}, s{sWEND}
        s_cselect_b32 s{sEW}, 0x7fffffff, s{sEW}
        """)

    G = 32
    a(f"""
    ds_read_b64 v[{G}:{G + 1}], v28
    ds_read_b64 v[{G + 4}:{G + 5}], v29
    ds_read_b32 v{vD0}, v{vDa}
    ds_read_b32 v{vDE}, v{vEa}
    """)
    if NSLOT == 4:
        a(f"ds_read_b32 v{vDV}, v{vDa} offset:256")
    nl = 3 if NSLOT == 4 else 2
    for p in range(2):
        r = G + 4 * p
        a(f"""
        s_waitcnt lgkmcnt({nl + 1})
        v_mad_u32_u16 v{G + 8 + p}, v{r}, 6, 0
        v_and_b32 v{G + 10 + p}, -4, v{G + 8 + p}
        buffer_load_dwordx2 v[{G + 12 + 2 * p}:{G + 13 + 2 * p}], v{G + 10 + p}, s[{sP}:{sP + 3}], 0 offen
        v_mad_u32_u16 v{G + 10 + p}, v{r}, 4, 0 op_sel:[1,0,0,0]
        ds_read_b96 v[{G + 16 + 4 * p}:{G + 18 + 4 * p}], v{G + 10 + p} offset:{OWN}
        """)
    a(f"""
    s_waitcnt lgkmcnt(2)
    v_readfirstlane_b32 s{sN0}, v{vD0}
    """)
    first_dmas()
    a(f"""
    s_lshr_b32 s{sN0}, s{sN0}, 18
    s_cmp_eq_u32 s{sSLOW}, 0
    s_cselect_b32 s{sNF}, s{sN0}, s{sNF}
    """)
    xfrags()
    for p in range(2):
        r, ps, po, sh = G + 4 * p, G + 12 + 2 * p, G + 16 + 4 * p, G + 8 + p
        a(f"""
        v_and_b32 v{sh}, 2, v{sh}
        v_lshlrev_b32 v{sh}, 3, v{sh}
        s_waitcnt vmcnt({NSLOT + 1 - p}) lgkmcnt(8)
        v_lshrrev_b64 v[{ps}:{ps + 1}], v{sh}, v[{ps}:{ps + 1}]
        v_lshlrev_b32 v18, 16, v{ps}
        v_and_b32 v19, 0xffff0000, v{ps}
        v_lshlrev_b32 v20, 16, v{ps + 1}
        v_sub_f32 v18, v{po}, v18
        v_sub_f32 v19, v{po + 1}, v19
        v_sub_f32 v20, v{po + 2}, v20
        v_cvt_pk_bf16_f32 v{r + 2}, 1.0, v18
        v_cvt_pk_bf16_f32 v{r + 3}, v19, v20
        v_and_b32 v18, 0xffff0000, v{r + 2}
        v_lshlrev_b32 v19, 16, v{r + 3}
        v_and_b32 v20, 0xffff0000, v{r + 3}
        v_mul_f32 v18, v18, v18
        v_fmac_f32 v18, v19, v19
        v_fmac_f32 v18, v20, v20
        v_mul_f32 v18, s{sNL2E}, v18
        v_mul_f32 v19, s{sNL2E}, v{r + 1}
        v_cvt_pk_bf16_f32 v{r + 1}, v18, v19
        ds_write_b128 v{28 + p}, v[{r}:{r + 3}]
        """)
    a("K2_COMMON:")
    x0, x1, x2 = A, A + 6, A + 12
    a(f"""
    v_mad_u32_u16 v{vXa}, v{vDE}, v{vMul}, v{vBX} op_sel:[1,0,0,0]
    ds_read_b64 {vr(x0, 2)}, v{vXa}
    ds_read_b64 {vr(x1, 2)}, v{vXa}
    ds_read_b64 {vr(x2, 2)}, v{vXa}
    v_mov_b32 v{S}, 0
    v_mov_b32 v{S + 1}, 0
    v_add_u32 v{vBX}, v{vBX}, v{vIX}
    v_lshl_add_u64 v[{vDa}:{vEa}], v[{vDa}:{vEa}], 0, s[{s256}:{s256 + 1}]
    s_waitcnt vmcnt({NSLOT - 1})
    {rd(0)}
    s_waitcnt vmcnt({NSLOT - 2})
    {rd(1)}
    """)
    for u in range(8):
        a(f"v_mfma_f32_16x16x16_bf16 {vr(AC + 4 * u, 4)}, {vr(S, 2)}, {vr(S, 2)}, 0")
    if NSLOT == 4:
        a(f"""
        v_mad_u32_u16 v{vVoff}, v{vDV}, s{s256}, v{vLc}
        s_cmp_le_u32 s{sNT}, 1
        s_cselect_b32 s{sQ + 2}, 0, s{sQN}
        """)
    a("s_waitcnt lgkmcnt(0)")
    for kc in ((2, 3) if NSLOT == 2 else (0, 1)):
        a("\n".join(dma(kc)))
    ORD = [0, 1, 3, 2, 4, 5, 7, 6]
    Aop = {0: A, 1: A + 4, 3: A + 10, 2: A + 6}
    Bop = {0: B, 3: B + 2, 4: B + 6, 7: B + 8, 2: B + 12, 1: B + 14, 6: B + 18, 5: B + 20}

    def Kmf(s):
        u = ORD[s % 8]
        z = Z + 4 * (s & 1)
        return f"v_mfma_f32_16x16x32_bf16 {vr(z, 4)}, {vr(Aop[u & 3], 4)}, {vr(Bop[u], 4)}, 0"

    def Cmf(s, zero=False):
        u = ORD[s]
        c = "0" if zero else vr(AC + 4 * u, 4)
        return f"v_mfma_f32_16x16x16_bf16 {vr(AC + 4 * u, 4)}, {vr(S, 2)}, {vr(M + 2 * u, 2)}, {c}"

    a(Kmf(0))
    a("s_nop 5")
    stamp(a, cfg, 1, 6)

    seq = []
    I = lambda t, tag=None: seq.append(("i", t, tag))
    NEED = lambda *tags: seq.append(("need", tags, None))
    for s in range(8):
        u = ORD[s]
        z = Z + 4 * (s & 1)
        pre, mid, post = [], [], []
        if s == 0:
            NEED("x1")
        if s == 1:
            NEED("x2")
        if s == 7:
            NEED("x0")
        I(Kmf(s + 1))
        if s == 0:
            I(f"v_mad_u32_u16 v{vSa}, v{vD0}, s{sC000}, v{vBS} op_sel:[1,0,0,0]")
            I(f"ds_read_b64_tr_b16 {vr(S, 2)}, v{vDa if cfg.get('nooob') else vSa}", "S")
            I(f"ds_read_b32 v{vD0}, v{vDa}", "d0")
            I(f"ds_read_b32 v{vDE}, v{vEa}", "dE")
            if NSLOT == 4:
                I(f"ds_read_b32 v{vDV}, v{vDa} offset:256", "dV")
            else:
                I(f"s_cmp_eq_u32 s{sNT}, 1")
                I(f"s_cselect_b32 s{sQ + 2}, 0, s{sQN}")
        if s & 1:
            kc = ((s + 3) // 2) % 4
            I(f"s_waitcnt vmcnt({NSLOT - 1})")
            I(rd(kc), f"q{kc}")
        if s == 3:
            I(f"ds_read_b64 {vr(x0, 2)}, v{vXa}", "x0")
        if s == 5:
            I(f"ds_read_b64 {vr(x2, 2)}, v{vXa}", "x2")
        if s == 6:
            I(f"ds_read_b64 {vr(x1, 2)}, v{vXa}", "x1")
        for k in range(4):
            I(f"v_exp_f32 v{T + k}, v{z + k}")
        if s == 1 and NSLOT == 2:
            NEED("d0")
            I(f"v_mad_u32_u16 v{vVoff}, v{vD0}, s{s256}, v{vLc}")
        if s == 2:
            NEED("dE")
            I(f"v_mad_u32_u16 v{vXa}, v{vDE}, v{vMul}, v{vBX} op_sel:[1,0,0,0]")
        if s == 4:
            I(f"v_lshl_add_u64 v[{vBX}:{vBS}], v[{vBX}:{vBS}], 0, v[{vIX}:{vIS}]")
            if NSLOT == 4:
                NEED("dV")
                I(f"v_mad_u32_u16 v{vVoff}, v{vDV}, s{s256}, v{vLc}")
                I(f"s_cmp_le_u32 s{sNT}, 2")
                I(f"s_cselect_b32 s{sQ + 2}, 0, s{sQN}")
        if s == 6:
            I(f"v_lshl_add_u64 v[{vDa}:{vEa}], v[{vDa}:{vEa}], 0, s[{s256}:{s256 + 1}]")
        for k in (0, 2):
            I(f"v_pk_add_f32 {vr(T + k, 2)}, {vr(T + k, 2)}, 1.0 op_sel_hi:[1,0]")
        if s >= 1:
            if s == 1:
                NEED("S")
            I(Cmf(s - 1))
        for k in range(4):
            I(f"v_rcp_f32 v{T + k}, v{T + k}")
        if s & 1:
            kc = ((s + 3) // 2) % 4
            nk = (kc + NSLOT) % 4
            d = dma(nk)
            I(d[0])
        for k in (0, 2):
            I(f"v_pk_mul_f32 {vr(T + k, 2)}, {vr(T + k, 2)}, {vr(z + k, 2)}")
        I(f"v_cvt_pk_bf16_f32 v{M + 2 * u}, v{T}, v{T + 1}")
        I(f"v_cvt_pk_bf16_f32 v{M + 2 * u + 1}, v{T + 2}, v{T + 3}")
        if s & 1:
            NEED(f"q{kc}")
            I(d[2])
        if s == 7:
            I(f"s_add_u32 s{sTEND}, s{sTEND}, 16")
            I(Cmf(7))
    n = len(seq)
    a("K2_LOOP:")
    for i, (k, t, tag) in enumerate(seq):
        if k == "i":
            a(t)
            continue
        best = None
        for tg in t:
            cnt, j = 0, i
            while True:
                j = (j - 1) % n
                if seq[j][0] == "i" and seq[j][2] == tg:
                    break
                if seq[j][0] == "i" and seq[j][1].startswith("ds_"):
                    cnt += 1
            best = cnt if best is None else min(best, cnt)
        a(f"s_waitcnt lgkmcnt({min(best, 15)})")
    a(f"""
    s_cmp_le_u32 s{sEW}, s{sTEND}
    s_cbranch_scc1 K2_FLUSH
    K2_BACK:
    s_sub_u32 s{sNT}, s{sNT}, 1
    s_cmp_lg_u32 s{sNT}, 0
    s_cbranch_scc1 K2_LOOP
    s_mov_b32 s{sLAST}, 1
    """)
    W0, W1 = T, Z + 4
    a(f"""
    K2_FLUSH:
    v_and_b32 v18, 15, v{vL}
    v_lshlrev_b32 v19, 5, v18
    ds_read_b128 {vr(W0, 4)}, v19 offset:{WX}
    ds_read_b128 {vr(W1, 4)}, v19 offset:{WX + 16}
    v_lshrrev_b32 v19, 4, v{vL}
    v_add_u32 v19, s{sNW}, v19
    s_movk_i32 s{sA}, {AST}
    v_lshlrev_b32 v18, 2, v18
    v_mad_u32_u24 v20, v19, s{sA}, v18
    s_cmp_lg_u32 s{sSLOW}, 0
    s_cbranch_scc1 K2_FSLOW
    v_cmp_eq_u32 vcc, s{sNF}, v19
    v_cmp_lt_u32 s[82:83], s{sNL}, v19
    s_add_u32 s{sB2}, s{sWV}, {SIDE}
    s_mul_i32 s{sB2}, s{sB2}, {AST}
    v_add_u32 v18, s{sB2}, v18
    v_cndmask_b32 v18, v20, v18, vcc
    v_add_u32 v18, {ACC}, v18
    v_mov_b32 v19, {OOB}
    v_cndmask_b32 v18, v18, v19, s[82:83]
    """)
    for u in range(0, 8, 2):
        a(f"ds_write2_b32 v18, v{AC + 4 * u}, v{AC + 4 * u + 4} offset0:{16 * u} offset1:{16 * u + 16}")
    a("s_waitcnt lgkmcnt(4)\nK2_FJOIN:")
    for u in range(8):
        w = (W0 if u < 4 else W1) + (u & 2)
        hi = u & 1
        for k in (0, 2):
            if u == 0:
                a(f"v_pk_mul_f32 {vr(F + k, 2)}, {vr(AC + k, 2)}, {vr(w, 2)} op_sel_hi:[1,0]")
            else:
                a(f"v_pk_fma_f32 {vr(F + k, 2)}, {vr(AC + 4 * u + k, 2)}, {vr(w, 2)}, {vr(F + k, 2)} op_sel:[0,{hi},0] op_sel_hi:[1,{hi},1]")
    a("s_nop 0")
    for sh in (1, 2, 4, 8):
        for k in (1, 2, 3):
            a(f"v_add_f32_dpp v{F + k}, v{F + k}, v{F + k} row_shr:{sh} row_mask:0xf bank_mask:0xf")
    a("s_mov_b32 exec_lo, 0x80008000\ns_mov_b32 exec_hi, 0x80008000")
    for k in (1, 2, 3):
        a(f"ds_add_f32 v20, v{F + k} offset:{ACC + 512 - 60 + 4 * (k - 1)}")
    a(f"""
    s_mov_b64 exec, -1
    s_cmp_lg_u32 s{sLAST}, 0
    s_cbranch_scc1 K2_ROUNDEND
    s_add_u32 s{sNW}, s{sNW}, 4
    s_sub_u32 s{sA}, s{sNW}, s{sN0}
    s_cmp_eq_u32 s{sA}, 12
    s_cbranch_scc1 K2_RESTART
    s_add_u32 s{sA}, s{sNW}, 3
    v_readlane_b32 s{sEW}, v{vIncl}, s{sA}
    v_subrev_u32 v{vSa}, s{sWSTEP}, v{vSa}
    v_subrev_u32 v{vBS}, s{sWSTEP}, v{vBS}
    ds_read_b64_tr_b16 {vr(S, 2)}, v{vSa}
    s_cmp_ge_u32 s{sEW}, s{sWEND}
    s_cselect_b32 s{sEW}, 0x7fffffff, s{sEW}
    s_waitcnt lgkmcnt(0)
    """)
    for s in range(8):
        a(Cmf(s, True))
    a(f"""
    s_cmp_le_u32 s{sEW}, s{sTEND}
    s_cbranch_scc1 K2_FLUSH
    s_branch K2_BACK
    K2_RESTART:
    s_mov_b32 s{sN0}, s{sNW}
    s_sub_u32 s{sTEND}, s{sTEND}, 16
    s_waitcnt vmcnt(0) lgkmcnt(0)
    v_subrev_u32 v{vDa}, 512, v{vDa}
    v_subrev_u32 v{vEa}, 512, v{vEa}
    ds_read_b32 v{vD0}, v{vDa}
    ds_read_b32 v{vDE}, v{vEa}
    """)
    if NSLOT == 4:
        a(f"ds_read_b32 v{vDV}, v{vDa} offset:256")
    a("s_waitcnt lgkmcnt(0)")
    first_dmas()
    xfrags()
    a("s_branch K2_COMMON")
    a("K2_FSLOW:")
    for u in ORD:
        a(f"ds_add_f32 v20, v{AC + 4 * u} offset:{ACC + 64 * u}")
    a("s_waitcnt lgkmcnt(8)\ns_branch K2_FJOIN")
    a(f"""
    K2_SHRINK:
    s_waitcnt lgkmcnt(0)
    s_barrier
    v_mov_b32 v19, 0
    ds_write_b32 v18, v19 offset:{CNT}
    s_mov_b32 s{sR}, 14
    s_waitcnt lgkmcnt(0)
    s_barrier
    s_branch K2_COUNT
    K2_NEXTROUND:
    s_waitcnt vmcnt(0) lgkmcnt(0)
    s_barrier
    v_lshlrev_b32 v18, 2, v0
    v_mov_b32 v19, 0
    ds_write_b32 v18, v19 offset:{CNT}
    s_add_u32 s{sDONE}, s{sDONE}, s{sR}
    s_mov_b32 s{sR}, 32
    v_mov_b32 v{vLc + 21}, v{vLc}
    v_lshrrev_b32 v2, 3, v0
    s_lshl_b32 s{sA}, s{sWV}, 3
    v_add_u32 v2, s{sA}, v2
    v_lshlrev_b32 v3, 10, v2
    s_lshl_b32 s{sA}, s{sB}, 2
    s_add_u32 s{sA}, s{sA}, {WS_TAB}
    buffer_load_dword v4, v3, s[{sW}:{sW + 3}], s{sA} offen
    """)
    recload(False)
    a(f"""
    s_waitcnt lgkmcnt(0)
    s_barrier
    s_branch K2_COUNT
    K2_ROUNDEND:
    s_cmp_lg_u32 s{sMORE}, 0
    s_cbranch_scc1 K2_NEXTROUND
    """)
    stamp(a, cfg, 1, 7)
    WT, WB, HF, GA = 16, 32, 48, 112
    MST = 272
    a(f"""
    s_sub_u32 s{sNV}, {N}, s{sNB}
    s_min_u32 s{sNV}, s{sNV}, {NB}
    v_and_b32 v1, 15, v0
    v_lshrrev_b32 v2, 4, v0
    s_lshl_b32 s{sA}, s{sWV}, 2
    v_mov_b32 v3, s{sA}
    v_mov_b32 v4, s{sNF}
    ds_write_b32 v3, v4 offset:{NFT}
    s_cmp_lt_u32 s{sWV}, 8
    s_cbranch_scc1 K2_E1
    s_waitcnt lgkmcnt(0)
    v_lshlrev_b32 v7, 4, v0
    s_lshl_b32 s{sA}, s{sWV}, 12
    s_add_u32 s{sA}, s{sA}, {WS_WF}
    s_add_u32 s{sB2}, s{sA}, 32768
    """)
    for ks in range(4):
        a(f"buffer_load_dwordx4 {vr(WT + 4 * ks, 4)}, v7, s[{sW}:{sW + 3}], s{sA} offen offset:{1024 * ks}")
    for ks in range(4):
        a(f"buffer_load_dwordx4 {vr(WB + 4 * ks, 4)}, v7, s[{sW}:{sW + 3}], s{sB2} offen offset:{1024 * ks}")
    a(f"""
    v_lshrrev_b32 v3, 3, v1
    v_lshlrev_b32 v3, 1, v3
    v_xor_b32 v4, v3, v2
    v_lshlrev_b32 v4, 4, v4
    v_lshl_add_u32 v4, v1, 6, v4
    """)
    for i in range(16):
        a(f"ds_read_b128 {vr(HF + 4 * i, 4)}, v4 offset:{HT + 1024 * i}")
    a("s_waitcnt vmcnt(4)")
    for rt in range(4):
        for ks in range(4):
            i = 4 * rt + ks
            a(f"s_waitcnt lgkmcnt({15 - i})")
            c = "0" if ks == 0 else vr(GA + 4 * rt, 4)
            a(f"v_mfma_f32_16x16x32_bf16 {vr(GA + 4 * rt, 4)}, {vr(WT + 4 * ks, 4)}, {vr(HF + 4 * i, 4)}, {c}")
    a(f"""
    K2_E1:
    s_lshl_b32 s{sA}, s{sWV}, 2
    v_add_u32 v5, s{sA}, v2
    s_movk_i32 s{sA}, {AST}
    v_lshlrev_b32 v6, 4, v1
    v_mad_u32_u24 v8, v5, s{sA}, v6
    s_movk_i32 s{sA}, {MST}
    v_mad_u32_u24 v9, v5, s{sA}, v6
    v_lshl_add_u32 v10, v5, 8, v6
    v_lshlrev_b32 v13, 2, v1
    s_mov_b32 s{sA}, {f32(-LN2)}
    s_waitcnt vmcnt(0) lgkmcnt(0)
    s_barrier
    """)
    stamp(a, cfg, 1, 8)
    a(f"""
    ds_read_b32 v13, v13 offset:{NFT}
    ds_read_b128 v[48:51], v8 offset:{ACC}
    ds_read_b128 v[52:55], v8 offset:{ACC + 256}
    v_add_u32 v9, {PT}, v9
    v_mov_b32 v15, {OOB}
    s_waitcnt lgkmcnt(2)
    v_lshrrev_b32 v14, 2, v13
    v_cmp_eq_u32 vcc, s{sWV}, v14
    s_and_b32 s82, vcc_lo, 0xffff
    s_cbranch_scc0 K2_MDONE
    K2_MERGE:
    s_ff1_i32_b32 s83, s82
    s_bitset0_b32 s82, s83
    v_readlane_b32 s84, v13, s83
    s_add_u32 s83, s83, {SIDE}
    s_mul_i32 s83, s83, {AST}
    v_add_u32 v14, s83, v6
    v_cmp_eq_u32 vcc, s84, v5
    s_nop 1
    v_cndmask_b32 v14, v15, v14, vcc
    ds_read_b128 v[56:59], v14 offset:{ACC}
    ds_read_b128 v[60:63], v14 offset:{ACC + 256}
    s_waitcnt lgkmcnt(0)
    v_pk_add_f32 v[48:49], v[48:49], v[56:57]
    v_pk_add_f32 v[50:51], v[50:51], v[58:59]
    v_pk_add_f32 v[52:53], v[52:53], v[60:61]
    v_pk_add_f32 v[54:55], v[54:55], v[62:63]
    s_cmp_lg_u32 s82, 0
    s_cbranch_scc1 K2_MERGE
    K2_MDONE:
    s_waitcnt lgkmcnt(0)
    """)
    assert sA % 2 == 1
    a(f"s_mov_b32 s{sB2}, s{sA}")
    for k in range(4):
        a(f"v_pk_mul_f32 {vr(48 + 2 * k, 2)}, {vr(48 + 2 * k, 2)}, s[{sB2}:{sB2 + 1}] op_sel_hi:[1,0]")
    for k in range(4):
        a(f"v_cvt_pk_bf16_f32 v{48 + k}, v{48 + 2 * k}, v{49 + 2 * k}")
    a(f"""
    ds_write_b128 v9, v[48:51]
    s_waitcnt lgkmcnt(0)
    s_barrier
    s_cmp_lt_u32 s{sWV}, 8
    s_cbranch_scc1 K2_POS
    s_movk_i32 s{sA}, {MST}
    v_lshlrev_b32 v4, 4, v2
    v_mad_u32_u24 v4, v1, s{sA}, v4
    v_add_u32 v4, {PT}, v4
    """)
    for rt in range(4):
        for ks in range(4):
            a(f"ds_read_b128 {vr(HF + 4 * (4 * rt + ks), 4)}, v4 offset:{rt * 16 * MST + 64 * ks}")
    a(f"""
    s_and_b32 s{sB2}, s{sWV}, 1
    s_lshl_b32 s{sB2}, s{sB2}, 1
    v_lshrrev_b32 v11, 1, v2
    v_or_b32 v11, s{sB2}, v11
    v_xor_b32 v11, v11, v3
    v_lshlrev_b32 v11, 4, v11
    v_lshl_add_u32 v11, v1, 6, v11
    v_and_b32 v12, 1, v2
    v_lshl_add_u32 v11, v12, 3, v11
    s_and_b32 s{sB2}, s{sWV}, 6
    s_lshl_b32 s{sB2}, s{sB2}, 9
    v_add_u32 v11, s{sB2}, v11
    s_and_b32 s{sB2}, s{sWV}, 7
    s_lshl_b32 s{sB2}, s{sB2}, 5
    s_add_u32 s{sB2}, s{sB2}, {OT}
    v_lshl_add_u32 v12, v2, 3, s{sB2}
    v_mad_u32_u24 v12, v1, s{sA}, v12
    """)
    for rt in range(4):
        for ks in range(4):
            i = 4 * rt + ks
            a(f"s_waitcnt lgkmcnt({15 - i})")
            a(f"v_mfma_f32_16x16x32_bf16 {vr(GA + 4 * rt, 4)}, {vr(WB + 4 * ks, 4)}, {vr(HF + 4 * i, 4)}, {vr(GA + 4 * rt, 4)}")
    for rt in range(4):
        a(f"ds_read_b64 {vr(16 + 2 * rt, 2)}, v11 offset:{HT + 4096 * rt}")
    for rt in range(4):
        y, t_, hh = GA + 4 * rt, 24, 28
        a(f"""
        v_pk_mul_f32 {vr(t_, 2)}, {vr(y, 2)}, s[{sNL2E}:{sNL2E + 1}] op_sel_hi:[1,0]
        v_pk_mul_f32 {vr(t_ + 2, 2)}, {vr(y + 2, 2)}, s[{sNL2E}:{sNL2E + 1}] op_sel_hi:[1,0]
        """)
        for k in range(4):
            a(f"v_exp_f32 v{t_ + k}, v{t_ + k}")
        a(f"""
        s_waitcnt lgkmcnt(3)
        v_pk_add_f32 {vr(t_, 2)}, {vr(t_, 2)}, 1.0 op_sel_hi:[1,0]
        v_pk_add_f32 {vr(t_ + 2, 2)}, {vr(t_ + 2, 2)}, 1.0 op_sel_hi:[1,0]
        """)
        for k in range(4):
            a(f"v_rcp_f32 v{t_ + k}, v{t_ + k}")
        a(f"""
        v_lshlrev_b32 v{hh}, 16, v{16 + 2 * rt}
        v_and_b32 v{hh + 1}, 0xffff0000, v{16 + 2 * rt}
        v_lshlrev_b32 v{hh + 2}, 16, v{17 + 2 * rt}
        v_and_b32 v{hh + 3}, 0xffff0000, v{17 + 2 * rt}
        v_pk_fma_f32 {vr(t_, 2)}, {vr(t_, 2)}, {vr(y, 2)}, {vr(hh, 2)}
        v_pk_fma_f32 {vr(t_ + 2, 2)}, {vr(t_ + 2, 2)}, {vr(y + 2, 2)}, {vr(hh + 2, 2)}
        v_cvt_pk_bf16_f32 v{y}, v{t_}, v{t_ + 1}
        v_cvt_pk_bf16_f32 v{y + 1}, v{t_ + 2}, v{t_ + 3}
        ds_write_b64 v12, {vr(y, 2)} offset:{rt * 16 * MST}
        """)
    a(f"""
    s_branch K2_OUT
    K2_POS:
    s_cmp_ge_u32 s{sWV}, 3
    s_cbranch_scc1 K2_OUT
    s_lshl_b32 s{sA}, s{sWV}, 6
    v_add_u32 v11, s{sA}, v0
    v_mul_u32_u24 v12, 171, v11
    v_lshrrev_b32 v12, 9, v12
    v_mul_u32_u24 v13, 3, v12
    v_sub_u32 v13, v11, v13
    v_lshlrev_b32 v13, 2, v13
    s_movk_i32 s{sA}, {AST}
    v_mad_u32_u24 v14, v12, s{sA}, v13
    v_lshl_add_u32 v15, v12, 4, v13
    ds_read_b32 v14, v14 offset:{ACC + 512}
    ds_read_b32 v15, v15 offset:{OWN}
    s_mul_i32 s{sA}, s{sNB}, 6
    s_add_u32 s{sA}, s{sA}, {N * 256}
    v_lshl_add_u32 v11, v11, 1, s{sA}
    v_cmp_gt_u32 vcc, s{sNV}, v12
    s_waitcnt lgkmcnt(0)
    v_add_f32 v14, v14, v15
    v_cvt_pk_bf16_f32 v14, v14, v14
    s_and_saveexec_b64 s[82:83], vcc
    global_store_short v11, v14, s[20:21]
    s_mov_b64 exec, s[82:83]
    K2_OUT:
    s_lshl_b32 s{sC}, s{sNB}, 8
    s_add_u32 s{sO}, s20, s{sC}
    s_addc_u32 s{sO + 1}, s21, 0
    s_lshl_b32 s{sO + 2}, s{sNV}, 8
    s_mov_b32 s{sO + 3}, 0x20000
    v_add_u32 v9, {OT - PT}, v9
    s_waitcnt lgkmcnt(0)
    s_barrier
    ds_read_b128 v[48:51], v9
    s_waitcnt lgkmcnt(0)
    buffer_store_dwordx4 v[48:51], v10, s[{sO}:{sO + 3}], 0 offen
    """)
    stamp(a, cfg, 1, 9)
    stamp_out(a, cfg, 1, 22)
    a("K2_END:\ns_endpgm")
    return a.text()


KD = """.amdhsa_kernel {name}
  .amdhsa_next_free_vgpr {vgpr}
  .amdhsa_next_free_sgpr 102
  .amdhsa_accum_offset {vgpr}
  .amdhsa_group_segment_fixed_size 0
  .amdhsa_kernarg_size 88
  .amdhsa_user_sgpr_count 2
  .amdhsa_user_sgpr_kernarg_segment_ptr 1
  .amdhsa_system_sgpr_workgroup_id_x 1
.end_amdhsa_kernel
"""


def echo_kernel(mode):
    spec = {6: ((0, "max"), (0x40004, "min")), 7: ((0x40004, "min"), None), 8: ((0x40000, "max"), (0x40000, "min")),
            9: ((4, "min"), (0x40000, "max")), 10: ((0, "max"), (4, "min")), 11: ((0x40004, "max"), (0x40004, "min")),
            5: (None, None)}[mode]
    a = Asm()
    a(f"""
    s_cmp_lg_u32 s2, 0
    s_cbranch_scc1 KE_END
    s_load_dwordx2 s[4:5], s[0:1], 80
    s_memrealtime s[8:9]
    v_lshlrev_b32 v1, 10, v0
    s_waitcnt lgkmcnt(0)
    """)
    for i, sp in enumerate(spec):
        off, op = sp if sp else (0, "min")
        for j in range(4):
            a(f"v_add_u32 v2, {WS_DIAG + off + 65536 * j}, v1\nglobal_load_dword v{4 + j}, v2, s[4:5]")
        a("s_waitcnt vmcnt(0)")
        for j in range(4):
            a(f"v_sub_u32 v{4 + j}, s8, v{4 + j}")
        a(f"v_{op}_u32 v4, v4, v5\nv_{op}_u32 v6, v6, v7\nv_{op}_u32 v4, v4, v6\ns_nop 1\nv_readlane_b32 s{6 + i}, v4, 0")
        for l in range(1, 64):
            a(f"v_readlane_b32 s12, v4, {l}\ns_{op}_u32 s{6 + i}, s{6 + i}, s12")
        if sp is None:
            a(f"s_mov_b32 s{6 + i}, 0")
    a("""
    s_sub_u32 s6, s6, s7
    s_min_u32 s6, s6, 20000
    s_memrealtime s[8:9]
    s_waitcnt lgkmcnt(0)
    KE_L:
    s_memrealtime s[10:11]
    s_waitcnt lgkmcnt(0)
    s_sub_u32 s10, s10, s8
    s_cmp_lt_u32 s10, s6
    s_cbranch_scc1 KE_L
    KE_END:
    s_endpgm
    """)
    return a.text()


def build(cfg):
    ref = open(f"cdna_kernels/{NAME}.s.ref").read().split("\n")
    head = [l for l in ref if l.startswith(";") and "@launch" not in l]
    launches = [(K1, 57344), (K2, 163840)]
    extra = cfg.get("empty", 0)
    s = "\n".join(head) + "\n"
    launches = [launches[0]] * cfg.get("rep1", 1) + [launches[1]] * cfg.get("rep2", 1)
    for k, lds in launches * cfg.get("rep", 1):
        s += f"; @launch kernel={k} grid=(256,1,1) block=(1024,1,1) lds={lds}\n"
    for _ in range(extra):
        s += "; @launch kernel=egnn_empty_kernel grid=(256,1,1) block=(64,1,1) lds=0\n"
    s += '.amdgcn_target "amdgcn-amd-amdhsa--gfx950"\n.text\n'
    bodies = [(K1, gen_k1(cfg)), (K2, gen_k2(cfg))]
    if extra and cfg.get("echo"):
        bodies.append(("egnn_empty_kernel", echo_kernel(cfg["echo"])))
    elif extra:
        bodies.append(("egnn_empty_kernel", "    s_endpgm\n"))
    for k, b in bodies:
        s += f".globl {k}\n.p2align 8\n.type {k},@function\n{k}:\n{b}"
    s += '.section .rodata,"a"\n'
    for k, _ in bodies:
        s += ".p2align 6\n" + KD.format(name=k, vgpr=128)
    errs = lint(re.sub(r's_mem(real)?time.*', 's_nop 0', s), [K1, K2])
    return s, errs


if __name__ == "__main__":
    cfg = {}
    out = f"cdna_kernels/{NAME}.s"
    for arg in sys.argv[1:]:
        if "=" in arg:
            k, v = arg.split("=")
            cfg[k] = int(v)
        else:
            out = arg
    s, errs = build(cfg)
    for e in errs:
        print(e)
    open(out, "w").write(s)
    print("wrote", out, len(s), "bytes;", len(errs), "lint messages")
```

```python
import re
import struct

NAME = "standalone__cheap_equivariant_egnn__graph"
K1 = "egnn_prep_kernel"
K2 = NAME + "_kernel"

N, E = 12500, 400000
NB = 49
QROWS = 12576
WS_W1 = (QROWS + 128) * 256
WS_WB = WS_W1 + 32768
WS_POS = WS_WB + 32768
WS_SMALL = WS_POS + 74 * 1024
WS_THR = WS_SMALL + 2560
WS_FLG = WS_SMALL + 3072
WS_END = WS_FLG + 131 * 12
WS_REC = 0x400000
WS_DIAG = 0x900000
OOB = 0x30000
LOG2E = 1.4426950408889634
LN2 = 0.6931471805599453
DELTA = 0.7213475 / 256
TINY = 2.0 ** -101


def f32(x):
    return "0x%08x" % struct.unpack("<I", struct.pack("<f", x))[0]


def vr(a, n=1):
    return f"v{a}" if n == 1 else f"v[{a}:{a + n - 1}]"


def sr(a, n=1):
    return f"s{a}" if n == 1 else f"s[{a}:{a + n - 1}]"


class Asm:
    def __init__(self):
        self.L = []

    def __call__(self, text):
        for line in text.split("\n"):
            s = line.strip()
            if not s:
                continue
            self.L.append(s if re.fullmatch(r"[\w.$]+:", s) else "    " + s)

    def text(self):
        return "\n".join(self.L) + "\n"


def lines(text):
    return [x.strip() for x in text.split("\n") if x.strip()]


def srd(a, d, base, nrec):
    a(f"s_mov_b32 s{d}, s{base}\ns_mov_b32 s{d + 1}, s{base + 1}")
    a(f"s_mov_b32 s{d + 2}, {nrec}\ns_mov_b32 s{d + 3}, 0x20000")


def scan64(a, v, op="v_add_u32", fill=()):
    fill = list(fill)
    for c in ("row_shr:1 row_mask:0xf", "row_shr:2 row_mask:0xf", "row_shr:4 row_mask:0xf", "row_shr:8 row_mask:0xf",
              "row_bcast:15 row_mask:0xa", "row_bcast:31 row_mask:0xc"):
        if len(fill) >= 2:
            a(fill.pop(0))
            a(fill.pop(0))
        else:
            a("s_nop 1")
        a(f"{op}_dpp v{v}, v{v}, v{v} {c} bank_mask:0xf")
    for x in fill:
        a(x)


SD = "dst_sel:DWORD dst_unused:UNUSED_PAD src0_sel:DWORD"
STAMP_REGS = {0: [90, 92, 94, 96, 98, 100, 88, 86], 1: [90, 92, 94, 96, 98, 100, 6, 14, 16, 18, 8, 10, 12]}


def stamp(a, cfg, kern, idx, real=False):
    if cfg.get("diag"):
        r = STAMP_REGS[kern][idx]
        a(f"{'s_memrealtime' if real or cfg['diag'] == 2 else 's_memtime'} s[{r}:{r + 1}]")


def stamp_out(a, cfg, kern, ws):
    if not cfg.get("diag"):
        return
    regs = STAMP_REGS[kern]
    a(f"""
    s_waitcnt vmcnt(0)
    s_memrealtime s[{regs[1]}:{regs[1] + 1}]
    s_lshl_b32 s0, s2, 4
    s_add_u32 s0, s0, s3
    s_lshl_b32 s0, s0, 6
    s_add_u32 s0, s0, {WS_DIAG + kern * 0x40000}
    s_waitcnt lgkmcnt(0)
    s_mov_b64 exec, 1
    v_mov_b32 v0, s0
    """)
    for i, r in enumerate(regs):
        a(f"v_mov_b32 v1, s{r}\nglobal_store_dword v0, v1, s[{ws}:{ws + 1}] offset:{4 * i}")
```

```python
from common import *


def gen_k1(cfg):
    a = Asm()
    CNT = 40960
    a(f"""
    s_load_dwordx16 s[4:19], s[0:1], 0
    s_load_dwordx2 s[20:21], s[0:1], 80
    v_lshrrev_b32 v1, 6, v0
    s_cmp_ge_u32 s2, 256
    s_cbranch_scc1 K1_END
    v_readfirstlane_b32 s3, v1
    s_cmp_ge_u32 s2, 125
    s_cbranch_scc1 K1_Q
    """)
    a(f"""
    s_mul_i32 s22, s2, 12800
    v_lshlrev_b32 v28, 4, v0
    v_add_u32 v2, s22, v28
    v_lshrrev_b32 v3, 1, v2
    v_cmp_gt_u32 vcc, 800, v0
    s_cmp_lt_u32 s3, 8
    s_cselect_b32 s23, 0xbfbfbfbf, 0
    s_cselect_b32 s26, 64, 0
    s_cselect_b32 s27, 0, {CNT - 8192}
    v_and_b32 v14, 0x3fe, v0
    v_mul_u32_u24 v14, s26, v14
    v_add3_u32 v14, v14, v28, s27
    v_mov_b32 v16, s23
    v_mov_b32 v17, s23
    v_mov_b32 v18, s23
    v_mov_b32 v19, s23
    s_mov_b64 s[24:25], vcc
    s_mov_b64 exec, vcc
    s_waitcnt lgkmcnt(0)
    s_cbranch_execz K1_PL
    global_load_dwordx4 v[4:7], v2, s[12:13]
    global_load_dwordx4 v[8:11], v2, s[10:11]
    global_load_dwordx2 v[12:13], v3, s[8:9]
    K1_PL:
    s_mov_b64 exec, -1
    ds_write_b128 v14, v[16:19]
    """)
    stamp(a, cfg, 0, 0, True)
    stamp(a, cfg, 0, 2)
    GA, TH, CA = 40, 44, 48
    a(f"""
    s_mul_i32 s22, s2, 160
    s_add_u32 s22, s22, {WS_REC}
    s_add_u32 s20, s20, s22
    s_addc_u32 s21, s21, 0
    s_movk_i32 s26, 19840
    s_movk_i32 s27, -40
    """)
    for i in range(3):
        q = "v0" if i == 0 else "v20"
        if i:
            a(f"v_add_u32 v20, {1024 * i}, v0")
        a(f"""
        v_mul_u32_u24 v21, 6554, {q}
        v_lshrrev_b32 v21, 16, v21
        v_lshlrev_b32 v22, 4, {q}
        v_mad_u32_u24 v{GA + i}, v21, s26, v22
        v_lshl_add_u32 v22, {q}, 2, -8
        v_mad_i32_i24 v{TH + i}, v21, s27, v22
        v_lshlrev_b32 v{CA + i}, 2, v21
        """)
    a(f"""
    s_mov_b32 s26, 342393
    s_movk_i32 s27, 12544
    s_mov_b32 s28, 0xffff0000
    v_mov_b32 v29, 1
    s_waitcnt lgkmcnt(0)
    s_barrier
    s_cmp_ge_u32 s3, 13
    s_cbranch_scc1 K1_PB
    s_mov_b64 exec, s[24:25]
    s_waitcnt vmcnt(2)
    """)
    stamp(a, cfg, 0, 3)
    for j in range(4):
        a(f"""
        v_mul_u32_u24 v{4 + j}, s26, v{4 + j}
        v_lshlrev_b32_sdwa v{14 + j}, 2, v{4 + j} {SD} src1_sel:BYTE_3
        ds_add_rtn_u32 v{18 + j}, v{14 + j}, v29 offset:{CNT}
        """)
    for j in range(4):
        a(f"""
        v_mul_hi_u32_u24 v{4 + j}, s27, v{4 + j}
        v_mul_u32_u24 v{14 + j}, 40, v{14 + j}
        """)
    a("s_waitcnt vmcnt(0)")
    for j in range(4):
        if j & 1:
            a(f"v_and_or_b32 v{8 + j}, v{12 + j // 2}, s28, v{8 + j}")
        else:
            a(f"v_lshl_or_b32 v{8 + j}, v{12 + j // 2}, 16, v{8 + j}")
    for j in range(4):
        a(f"""
        s_waitcnt lgkmcnt({3 + j})
        v_min_u32 v{18 + j}, 31, v{18 + j}
        v_add_u32 v22, v{14 + j}, v{18 + j}
        v_lshl_add_u32 v23, v{18 + j}, 2, v{14 + j}
        ds_write_b8 v22, v{4 + j}
        ds_write_b32 v23, v{8 + j} offset:32
        """)
    a(f"""
    s_mov_b64 exec, -1
    K1_PB:
    s_waitcnt vmcnt(0) lgkmcnt(0)
    s_barrier
    """)
    stamp(a, cfg, 0, 4)
    for i in range(3):
        a(f"ds_read_b32 v{CA + i}, v{CA + i} offset:{CNT}")
    for i in range(3):
        a(f"ds_read_b128 {vr(4 + 4 * i, 4)}, v28 offset:{16384 * i}")
    a(f"""
    s_waitcnt lgkmcnt(3)
    v_max3_u32 v20, v{CA}, v{CA + 1}, v{CA + 2}
    v_cmp_lt_u32 vcc, 32, v20
    """)
    for i in range(3):
        a(f"v_cmp_lt_i32 s[{30 + 2 * i}:{31 + 2 * i}], v{TH + i}, v{CA + i}")
    a("s_cbranch_vccnz K1_OVF\nK1_ST:")
    for i in range(3):
        if i == 2:
            a("s_cmp_ge_u32 s3, 8\ns_cbranch_scc1 K1_PE")
        a(f"""
        s_mov_b64 exec, s[{30 + 2 * i}:{31 + 2 * i}]
        s_waitcnt lgkmcnt({2 - i})
        global_store_dwordx4 v{GA + i}, {vr(4 + 4 * i, 4)}, s[20:21] sc1
        """)
    a("K1_PE:")
    if cfg.get("diag"):
        a("s_sub_u32 s20, s20, s22\ns_subb_u32 s21, s21, 0")
    stamp(a, cfg, 0, 5)
    stamp_out(a, cfg, 0, 20)
    a("s_endpgm\nK1_OVF:\ns_waitcnt lgkmcnt(0)")
    for i in range(3):
        a(f"""
        v_cmp_lt_u32 vcc, 32, v{CA + i}
        v_cmp_gt_i32 s[36:37], 0, v{TH + i}
        s_and_b64 exec, vcc, s[36:37]
        """)
        for k in range(4):
            a(f"v_mov_b32 v{4 + 4 * i + k}, -1")
        a("s_mov_b64 exec, -1")
    a("s_branch K1_ST")

    WL, HL = 0, 32768
    a(f"""
    K1_Q:
    s_setreg_imm32_b32 hwreg(HW_REG_MODE, 4, 2), 3
    v_and_b32 v1, 63, v0
    s_sub_u32 s37, s2, 125
    s_mul_i32 s22, s37, 96
    v_lshrrev_b32 v2, 4, v1
    v_and_b32 v3, 15, v1
    s_and_b32 s23, s3, 1
    s_lshl_b32 s24, s23, 2
    v_or_b32 v4, s24, v2
    v_lshlrev_b32 v4, 1, v4
    v_xor_b32 v4, v4, v3
    v_lshlrev_b32 v4, 4, v4
    v_lshl_add_u32 v4, v2, 8, v4
    s_lshl_b32 s24, s3, 11
    s_add_u32 s25, s24, 32768
    s_mov_b32 m0, s24
    v_lshrrev_b32 v5, 2, v1
    v_lshrrev_b32 v6, 5, v1
    v_lshlrev_b32 v6, 1, v6
    v_and_b32 v7, 3, v1
    v_xor_b32 v6, v6, v7
    v_lshlrev_b32 v6, 4, v6
    v_lshl_add_u32 v5, v5, 8, v6
    s_waitcnt lgkmcnt(0)
    """)
    srd(a, 28, 14, 258 * 256)
    a(f"""
    buffer_load_dwordx4 v4, s[28:31], s25 offen lds
    buffer_load_dwordx4 v4, s[28:31], s25 offen offset:1024 lds
    s_cmp_ge_u32 s3, 12
    s_cbranch_scc1 K1_AUX
    """)
    srd(a, 32, 4, N * 256)
    a(f"""
    s_lshr_b32 s26, s3, 1
    s_lshl_b32 s26, s26, 4
    s_add_u32 s26, s26, s22
    s_lshl_b32 s26, s26, 8
    s_lshl_b32 s27, s23, 7
    s_add_u32 s26, s26, s27
    s_add_u32 s27, s24, {HL}
    s_mov_b32 m0, s27
    s_add_u32 s36, s26, 64
    buffer_load_dwordx4 v5, s[32:35], s26 offen lds
    s_add_u32 s27, s27, 1024
    s_mov_b32 m0, s27
    s_nop 0
    buffer_load_dwordx4 v5, s[32:35], s36 offen lds
    """)
    stamp(a, cfg, 0, 0, True)
    stamp(a, cfg, 0, 2)
    a(f"""
    v_lshrrev_b32 v6, 3, v3
    v_lshlrev_b32 v6, 1, v6
    v_xor_b32 v6, v6, v2
    v_lshlrev_b32 v6, 4, v6
    v_lshl_add_u32 v6, v3, 6, v6
    s_lshr_b32 s27, s3, 1
    s_lshl_b32 s27, s27, 12
    v_add_u32 v6, s27, v6
    v_bfe_u32 v8, v1, 2, 2
    v_and_b32 v9, 1, v2
    v_xor_b32 v9, s23, v9
    v_lshl_or_b32 v9, v9, 2, v8
    v_lshlrev_b32 v9, 5, v9
    v_lshl_or_b32 v9, v7, 3, v9
    v_lshl_add_u32 v8, v2, 3, v8
    v_lshl_add_u32 v8, v8, 8, v9
    v_xor_b32 v9, 32, v8
    v_xor_b32 v10, 64, v8
    v_xor_b32 v11, 0x60, v8
    v_lshlrev_b32 v12, 3, v3
    v_lshl_add_u32 v12, v2, 10, v12
    v_add_u32 v12, s26, v12
    v_and_b32 v14, 1, v1
    v_mul_u32_u24 v14, 101, v14
    v_lshlrev_b32 v14, 23, v14
    v_sub_u32 v14, {f32(-LOG2E)}, v14
    s_mul_i32 s24, s37, 12
    s_add_u32 s24, s24, s3
    s_add_u32 s24, s24, {WS_FLG}
    v_mov_b32 v13, s24
    s_waitcnt vmcnt(0)
    s_barrier
    """)
    stamp(a, cfg, 0, 3)
    AF, BF, AC = 16, 32, 96
    for ks in range(4):
        a(f"ds_read_b128 v[{AF + 4 * ks}:{AF + 4 * ks + 3}], v6 offset:{HL + 1024 * ks}")
        for tt in range(4):
            for i in range(2):
                d = BF + 16 * ks + 4 * tt + 2 * i
                a(f"ds_read_b64_tr_b16 v[{d}:{d + 1}], v{8 + tt} offset:{WL + 8192 * ks + 1024 * i}")
        if ks >= 1:
            k = ks - 1
            a("s_waitcnt lgkmcnt(9)")
            for tt in range(4):
                c = "0" if k == 0 else vr(AC + 4 * tt, 4)
                a(f"v_mfma_f32_16x16x32_bf16 {vr(AC + 4 * tt, 4)}, {vr(AF + 4 * k, 4)}, {vr(BF + 16 * k + 4 * tt, 4)}, {c}")
    for tt in range(4):
        a(f"s_waitcnt lgkmcnt({6 - 2 * tt})")
        a(f"v_mfma_f32_16x16x32_bf16 {vr(AC + 4 * tt, 4)}, {vr(AF + 12, 4)}, {vr(BF + 48 + 4 * tt, 4)}, {vr(AC + 4 * tt, 4)}")
    a("s_nop 1")
    for tt in range(4):
        for k in (0, 2):
            a(f"v_pk_mul_f32 {vr(BF + 4 * tt + k, 2)}, {vr(AC + 4 * tt + k, 2)}, v[14:15] op_sel_hi:[1,0]")
    for r in range(4):
        a(f"""
        v_cvt_pk_bf16_f32 v{16 + 2 * r}, v{BF + r}, v{BF + 4 + r}
        v_cvt_pk_bf16_f32 v{17 + 2 * r}, v{BF + 8 + r}, v{BF + 12 + r}
        global_store_dwordx2 v12, v[{16 + 2 * r}:{17 + 2 * r}], s[20:21] offset:{256 * r} sc1
        """)
    a(f"v_pk_mul_f32 v[4:5], {vr(AC, 2)}, {vr(AC, 2)}")
    for k in range(1, 8):
        a(f"v_pk_fma_f32 v[4:5], {vr(AC + 2 * k, 2)}, {vr(AC + 2 * k, 2)}, v[4:5]")
    a(f"""
    v_add_f32 v4, v4, v5
    v_cmp_ngt_f32 vcc, {f32(64 * LN2 * LN2)}, v4
    s_bcnt1_i32_b64 s24, vcc
    v_mov_b32 v4, s24
    s_mov_b64 exec, 1
    global_store_byte v13, v4, s[20:21] sc1
    """)
    stamp(a, cfg, 0, 4)
    stamp_out(a, cfg, 0, 20)
    a("s_endpgm")

    a(f"""
    K1_AUX:
    s_cmp_eq_u32 s3, 12
    s_cbranch_scc1 K1_WF
    s_cmp_eq_u32 s3, 15
    s_cbranch_scc1 K1_IDLE
    s_mul_i32 s24, s3, 48
    s_add_u32 s24, s24, s22
    s_sub_u32 s24, s24, {13 * 48}
    s_sub_u32 s25, {N}, s24
    s_min_i32 s25, s25, 48
    v_add_u32 v4, s24, v1
    v_cmp_gt_i32 vcc, s25, v1
    v_mul_u32_u24 v5, 6, v4
    v_and_b32 v6, -4, v5
    v_lshlrev_b32 v5, 3, v5
    v_and_b32 v5, 16, v5
    v_lshlrev_b32 v7, 1, v4
    v_add_u32 v7, {WS_POS + 50000}, v7
    v_lshlrev_b32 v4, 2, v4
    v_add_u32 v4, {WS_POS}, v4
    s_cbranch_vccz K1_IDLE
    s_mov_b64 exec, vcc
    global_load_dwordx2 v[8:9], v6, s[6:7]
    s_waitcnt vmcnt(1)
    s_barrier
    s_waitcnt vmcnt(0)
    v_lshrrev_b64 v[8:9], v5, v[8:9]
    global_store_dword v4, v8, s[20:21] sc1
    global_store_short v7, v9, s[20:21] sc1
    s_endpgm
    K1_IDLE:
    s_waitcnt vmcnt(0)
    s_barrier
    s_endpgm
    K1_WF:
    v_and_b32 v6, 12, v3
    v_lshl_or_b32 v6, v7, 5, v6
    s_cmp_ge_u32 s37, 96
    s_cbranch_scc1 K1_SM
    s_bfe_u32 s22, s37, 0x30002
    s_and_b32 s23, s37, 3
    s_and_b32 s24, s37, 31
    s_lshl_b32 s24, s24, 10
    v_lshl_add_u32 v16, v1, 4, s24
    s_movk_i32 s25, 512
    s_movk_i32 s26, 1024
    s_lshl_b32 s24, s23, 13
    s_cmp_ge_u32 s37, 32
    s_cbranch_scc1 K1_M1
    s_lshr_b32 s27, s22, 2
    s_lshl_b32 s27, s27, 7
    s_add_u32 s24, s24, s27
    s_and_b32 s27, s22, 2
    s_lshl_b32 s27, s27, 3
    s_add_u32 s24, s24, s27
    s_and_b32 s27, s22, 1
    s_lshl_b32 s27, s27, 1
    s_add_u32 s24, s24, s27
    v_lshl_add_u32 v6, v2, 11, v6
    v_add_u32 v16, {WS_W1}, v16
    s_branch K1_WLD
    K1_M1:
    s_mov_b32 s28, s18
    s_mov_b32 s29, s19
    s_mov_b32 s30, 65536
    v_lshlrev_b32 v6, 1, v3
    s_cmp_ge_u32 s37, 64
    s_cbranch_scc1 K1_M2
    v_lshl_add_u32 v6, v2, 11, v6
    s_lshl_b32 s27, s22, 12
    s_lshl_b32 s36, s23, 6
    s_add_u32 s27, s27, s36
    s_add_u32 s27, s27, {QROWS * 256}
    v_lshl_add_u32 v16, v3, 8, s27
    v_lshl_add_u32 v16, v2, 4, v16
    s_branch K1_M3
    K1_M2:
    s_lshl_b32 s24, s23, 9
    s_add_u32 s24, s24, 32768
    s_movk_i32 s25, 2048
    s_movk_i32 s26, 16384
    v_lshl_add_u32 v6, v2, 12, v6
    v_add_u32 v16, {WS_WB}, v16
    K1_M3:
    s_lshl_b32 s27, s22, 5
    s_add_u32 s24, s24, s27
    K1_WLD:
    s_add_u32 s27, s25, s26
    s_add_u32 s25, s25, s24
    s_add_u32 s26, s26, s24
    s_add_u32 s27, s27, s24
    """)
    for j in range(8):
        a(f"buffer_load_ushort v{8 + j}, v6, s[28:31], s{24 + j // 2} offen offset:{256 * (j & 1)}")
    a(f"""
    s_waitcnt vmcnt(8)
    s_barrier
    s_waitcnt vmcnt(0)
    v_lshl_or_b32 v4, v9, 16, v8
    v_lshl_or_b32 v5, v11, 16, v10
    v_lshl_or_b32 v6, v13, 16, v12
    v_lshl_or_b32 v7, v15, 16, v14
    global_store_dwordx4 v16, v[4:7], s[20:21] sc1
    s_endpgm
    K1_SM:
    s_cmp_ge_u32 s37, 99
    s_cbranch_scc1 K1_CONST
    v_and_b32 v8, 2, v2
    v_lshl_or_b32 v6, v8, 3, v6
    v_and_b32 v8, 1, v2
    v_lshl_or_b32 v6, v8, 1, v6
    s_lshl_b32 s24, s37, 8
    s_add_u32 s25, s24, {65536 - 96 * 256}
    s_add_u32 s26, s14, s25
    s_addc_u32 s27, s15, 0
    s_cmp_eq_u32 s37, 98
    s_cselect_b32 s26, s16, s26
    s_cselect_b32 s27, s17, s27
    global_load_ushort v10, v6, s[26:27]
    global_load_ushort v11, v6, s[26:27] offset:128
    s_waitcnt vmcnt(2)
    s_barrier
    s_waitcnt vmcnt(0)
    v_lshlrev_b32 v10, 16, v10
    v_lshlrev_b32 v11, 16, v11
    s_cbranch_scc1 K1_WX
    s_cmp_eq_u32 s37, 96
    s_cselect_b32 s25, 1.0, {f32(-LOG2E)}
    s_cselect_b32 s26, {f32(32.0)}, {f32(15.0)}
    v_mul_f32 v10, s25, v10
    v_mul_f32 v11, s25, v11
    v_and_b32 v12, 0x7fffffff, v10
    v_and_b32 v13, 0x7fffffff, v11
    v_max_u32 v12, v12, v13
    v_mul_i32_i24 v8, -101, v8
    v_ldexp_f32 v10, v10, v8
    v_ldexp_f32 v11, v11, v8
    v_cvt_pk_bf16_f32 v10, v10, v11
    s_add_u32 s24, s24, {WS_SMALL + 1024 - 96 * 256}
    v_lshl_add_u32 v4, v1, 1, s24
    global_store_short v4, v10, s[20:21] sc1
    global_store_short_d16_hi v4, v10, s[20:21] offset:128 sc1
    """.replace(f"s_cselect_b32 s26, {f32(32.0)}, {f32(15.0)}", f"s_mov_b32 s26, {f32(15.0)}\ns_cmov_b32 s26, {f32(32.0)}"))
    scan64(a, 12, "v_max_u32")
    a(f"""
    s_lshl_b32 s24, s37, 2
    s_add_u32 s24, s24, {WS_THR - 96 * 4}
    v_rcp_f32 v12, v12
    v_mov_b32 v4, s24
    v_mul_f32 v12, s26, v12
    s_mov_b32 exec_lo, 0
    s_brev_b32 exec_hi, 1
    global_store_dword v4, v12, s[20:21] sc1
    s_endpgm
    K1_WX:
    v_mul_f32 v10, {f32(-LN2 * (1 + DELTA))}, v10
    v_mul_f32 v11, {f32(-LN2 * (1 + DELTA))}, v11
    v_lshlrev_b32 v4, 5, v3
    v_lshl_add_u32 v4, v2, 2, v4
    v_add_u32 v4, {WS_SMALL + 1536}, v4
    global_store_dword v4, v10, s[20:21] sc1
    global_store_dword v4, v11, s[20:21] offset:16 sc1
    s_endpgm
    K1_CONST:
    s_cmp_lg_u32 s37, 99
    s_cbranch_scc1 K1_IDLE
    v_cmp_eq_u32 vcc, 32, v1
    v_cmp_eq_u32 s[24:25], 33, v1
    v_mov_b32 v12, 0x3f80
    v_lshlrev_b32 v4, 4, v1
    v_add_u32 v4, {WS_SMALL}, v4
    v_cndmask_b32 v8, 0, v12, vcc
    v_cndmask_b32 v9, 0, v12, s[24:25]
    v_lshlrev_b32 v10, 16, v8
    v_lshlrev_b32 v11, 16, v9
    s_waitcnt vmcnt(0)
    s_barrier
    global_store_dwordx4 v4, v[8:11], s[20:21] sc1
    v_lshlrev_b32 v4, 3, v1
    v_add_u32 v4, {WS_SMALL + 2048}, v4
    v_lshlrev_b32 v12, 1, v1
    v_add_u32 v12, {QROWS}, v12
    v_add_u32 v13, 1, v12
    global_store_dwordx2 v4, v[12:13], s[20:21] sc1
    K1_END:
    s_endpgm
    """)
    return a.text()
```

```python
from common import *

CAP = 1792
CNT, LUT = 0, 256
MR, MST = 8448, 288
SEL = MR + 64 * MST
PAC = SEL + 49 * 32
OH = PAC + 52 * 16
WD, WX, FAKE = OH + 1024, OH + 1536, OH + 2048
OWN = OH + 2560
H48 = OWN + 53 * 16
LIST = H48 + 256
HT = 62720
POSL = RING = OT = 83200
PT = 163840 - 49 * 288
OST = 272
PADN = 52
assert LIST + (CAP + 48) * 16 <= HT and RING + 65536 <= PT and POSL + 74 * 1024 <= 163840
PBASE = 0x12000


def hp(i):
    return i * 1024 + (8192 if i >= 3 else 0)


sWV = 3
sW, sH, sO, sR, sTH, sMK = 24, 28, 32, 36, 38, 40
sB, sNB, sNV, sRARE, sFIRST, sSRC, sLO, sWID = 44, 45, 46, 47, 48, 49, 50, 51
sTOT, sTS, sWT, sWEND, sN0, sNW, sEW, sEV = 52, 53, 54, 55, 56, 57, 58, 59
sNF, sNL, sMODE, sNWN, sC000, s128, s256, s192, sLAST = 60, 61, 62, 63, 64, 65, 66, 68, 69
sM0, sG3 = 70, 74
sA, sB2, sC, sD = 76, 77, 78, 79
sP0, sP1, sP2, sP3, sP4 = 80, 82, 84, 86, 88
vRing, vLc, vMul, vIncl, vVoff = 1, 2, 3, 4, 5
vBX, vBS, vIX, vIS, vDa, vEa = 6, 7, 8, 9, 10, 11
vXa, vSa, vD, vDE, vIdx = 12, 13, 14, 15, 16
ZE, ZL, T, L, R, S, A, B, AC, Y = 20, 28, 32, 36, 40, 42, 44, 60, 84, 120
vFa, vG0, vG1 = 116, 117, 118
vDL, vT, W = 17, 18, 20
g3 = sr(sG3, 2)

PAT = "M1 h E Y1 E M2 E Y2 E 0 X X X X m P P P R s R l P P P v D V"
DORD = "SqxdL"


def dma(kc):
    soff = ["0", "64", f"s{s128}", f"s{s192}"][kc]
    return [f"s_mov_b32 m0, s{sM0 + kc}",
            f"buffer_load_dwordx4 v{vVoff}, s[{sW}:{sW + 3}], {soff} offen lds ; @w:ring{kc}"]


def rdq(kc, d=None):
    d = A + 2 + 6 * (kc & 1) if d is None else d
    return f"ds_read_b128 {vr(d, 4)}, v{vRing} offset:{1024 * kc} ; @r:ring{kc}"


def Kmf(u, z):
    a0 = A + 6 * ((u // 2) % 2) + (4 if u & 1 else 0)
    b0 = B + 6 * (u // 2) + (2 if u & 1 else 0)
    return f"v_mfma_f32_16x16x32_bf16 {vr(z, 4)}, {vr(a0, 4)}, {vr(b0, 4)}, 0"


def Ymf(u, b):
    return f"v_smfmac_f32_16x16x32_bf16 {vr(AC + 4 * u, 4)}, {vr(S, 2)}, {vr(b, 4)}, v{vIdx}"


def zero4(d):
    return f"v_mfma_f32_16x16x16_bf16 {vr(d, 4)}, {vr(S, 2)}, {vr(S, 2)}, 0"


def mf32(d, x, y, first=False):
    return f"v_mfma_f32_16x16x32_bf16 {vr(d, 4)}, {vr(x, 4)}, {vr(y, 4)}, {'0' if first else vr(d, 4)}"


def loop_body(pat, dord, lut):
    seq = []
    I = lambda t, tag=None: seq.append(("i", t, tag))
    NEED = lambda tag: seq.append(("n", tag, None))
    pk1 = lambda r: f"v_pk_add_f32 {vr(r, 2)}, {vr(r, 2)}, 1.0 op_sel_hi:[1,0]"
    for j in range(4):
        z, zn = ZE + 4 * (j & 1), ZE + 4 * ((j + 1) & 1)
        e = [f"v_exp_f32 v{T + (k ^ 2)}, v{z + k}" for k in range(4)]
        p = [pk1(T + 2),
             f"v_pk_fma_f32 {vr(R, 2)}, {vr(T + 2, 2)}, {vr(T, 2)}, {vr(T + 2, 2)}",
             f"v_pk_fma_f32 {vr(T, 2)}, {vr(z, 2)}, {vr(T, 2)}, {vr(z, 2)}",
             f"v_pk_mul_f32 {vr(T + 2, 2)}, {vr(z + 2, 2)}, {vr(T + 2, 2)}",
             f"v_pk_mul_f32 {vr(z, 2)}, {vr(T, 2)}, {vr(R, 2)}",
             f"v_pk_mul_f32 {vr(z + 2, 2)}, {vr(T + 2, 2)}, {vr(R, 2)}"]
        r = [f"v_rcp_f32 v{R}, v{R}", f"v_rcp_f32 v{R + 1}, v{R + 1}"]
        ix = [f"v_lshlrev_b32_sdwa v{ZL + k}, 1, v{ZL + k} {SD} src1_sel:WORD_1" for k in range(4)]
        d = dma((j + 1) % 4)
        for tok in pat.split():
            if tok == "M1":
                if j < 2:
                    NEED(f"x{j + 1}")
                I(Kmf(2 * j + 1, ZL))
            elif tok == "M2":
                NEED(f"q{(j + 1) % 4}")
                if j == 3:
                    NEED("x0")
                I(Kmf((2 * j + 2) % 8, zn))
            elif tok == "Y1":
                if j == 1:
                    NEED("S")
                I(Ymf((2 * j - 2) % 8, zn))
            elif tok == "Y2":
                if lut:
                    NEED("L")
                I(Ymf((2 * j - 1) % 8, L))
            elif tok == "E":
                I(e.pop(0))
            elif tok == "P":
                I(p.pop(0))
            elif tok == "R":
                I(r.pop(0))
            elif tok == "X":
                I(ix.pop(0))
            elif tok in ("Fa", "Fb"):
                src, dst = (z, z) if tok == "Fa" else (ZL, L)
                if tok == "Fb":
                    for k in range(4):
                        I(f"v_mul_f32 v{ZL + k}, {f32(2.0 ** 101)}, v{ZL + k}")
                for k in range(4):
                    I(f"v_exp_f32 v{T + k}, v{src + k}")
                I(pk1(T))
                I(pk1(T + 2))
                for k in range(4):
                    I(f"v_rcp_f32 v{T + k}, v{T + k}")
                for k in (0, 2):
                    I(f"v_pk_mul_f32 {vr(dst + k, 2)}, {vr(T + k, 2)}, {vr(src + k, 2)}")
            elif tok == "m":
                if j == 0:
                    NEED("dE")
                    I(f"v_mad_u32_u16 v{vXa}, v{vDE}, v{vMul}, v{vBX} op_sel:[1,0,0,0]")
                elif j == 1:
                    I(f"v_mad_u32_u16 v{vSa}, v{vD}, s{sC000}, v{vBS} op_sel:[1,0,0,0]")
                elif j == 2:
                    I(f"v_lshl_add_u64 v[{vDa}:{vEa}], v[{vDa}:{vEa}], 0, s[{s256}:{s256 + 1}]")
                    I(f"v_lshl_add_u64 v[{vBX}:{vBS}], v[{vBX}:{vBS}], 0, v[{vIX}:{vIS}]")
                else:
                    NEED("dD")
                    I(f"v_mad_u32_u16 v{vVoff}, v{vD}, s{s256}, v{vLc}")
            elif tok == "s":
                if j == 2:
                    I(f"s_add_u32 s{sTS}, s{sTS}, 16")
                if j == 3:
                    I(f"s_cmp_lt_i32 s{sTS}, s{sEV}")
            elif tok == "l":
                I("s_setprio 0")
            elif tok == "h":
                I("s_setprio 1")
            elif tok == "0":
                I(d[0])
            elif tok == "v":
                I("s_waitcnt vmcnt(2)")
            elif tok == "V":
                I(d[1])
            elif tok == "D":
                for c in dord:
                    if c == "S" and j == 0:
                        I(f"ds_read_b64_tr_b16 {vr(S, 2)}, v{vSa}", "S")
                    if c == "q":
                        I(rdq((j + 2) % 4), f"q{(j + 2) % 4}")
                    if c == "x" and j:
                        I(f"ds_read_b64 {vr(A + 6 * (j - 1), 2)}, v{vXa}", f"x{j - 1}")
                    if c == "d" and j == 1:
                        I(f"ds_read_b32 v{vD}, v{vDa}", "dD")
                    if c == "d" and j == 3:
                        I(f"ds_read_b32 v{vDE}, v{vEa}", "dE")
                    if c == "L" and lut:
                        for k in range(4):
                            I(f"ds_read_u16_d16_hi v{L + k}, v{ZL + k} offset:{LUT}", "L")
            else:
                raise ValueError(tok)
    q, out = [], []
    for rep in range(2):
        out = []
        for k, t, tag in seq:
            if k == "i":
                out.append(t)
                if t.startswith("ds_"):
                    q.append(tag)
            elif t in q:
                n = q[::-1].index(t)
                out.append(f"s_waitcnt lgkmcnt({n})")
                q = q[len(q) - n:]
    return "\n".join(out)


def ptrs(a):
    a(f"""
    s_lshl_b32 s{sA}, s{sTS}, 4
    s_add_u32 s{sA}, s{sA}, {LIST}
    v_and_b32 v18, -4, v0
    v_and_b32 v19, 15, v0
    v_lshl_add_u32 v{vDa}, v18, 2, s{sA}
    v_lshl_add_u32 v{vEa}, v19, 4, s{sA}
    s_cmp_lt_u32 s{sTS}, s{sWT}
    s_cselect_b64 s[{sP0}:{sP0 + 1}], -1, 0
    s_add_u32 s{sB2}, s{sTS}, 16
    s_cmp_lt_u32 s{sB2}, s{sWT}
    s_cselect_b64 s[{sP1}:{sP1 + 1}], -1, 0
    v_add_u32 v19, 256, v{vDa}
    v_cndmask_b32 v18, v{vFa}, v{vDa}, s[{sP0}:{sP0 + 1}]
    v_cndmask_b32 v19, v{vFa}, v19, s[{sP1}:{sP1 + 1}]
    """)


def first_dmas(a):
    a(f"""
    ds_read_b32 v{vSa}, v18
    ds_read_b32 v{vD}, v19
    ds_read_b32 v{vXa}, v{vEa}
    ds_read_b32 v{vDE}, v{vEa} offset:256
    {dma(0)[0]}
    s_waitcnt lgkmcnt(3)
    v_mad_u32_u16 v{vVoff}, v{vSa}, s{s256}, v{vLc}
    {dma(0)[1]}
    """)
    for kc in range(1, 4):
        a(f"{dma(kc)[0]}\ns_nop 0\n{dma(kc)[1]}")


def window(a):
    a(f"""
    s_add_u32 s{sA}, s{sNW}, 3
    v_readlane_b32 s{sEW}, v{vIncl}, s{sA}
    s_sub_u32 s{sB2}, s{sWT}, 32
    s_cmp_ge_u32 s{sEW}, s{sWEND}
    s_cselect_b32 s{sEW}, 0x7fffffff, s{sEW}
    s_sub_u32 s{sA}, s{sEW}, 15
    s_min_i32 s{sEV}, s{sA}, s{sB2}
    """)


def zero_init(a, n2):
    a(f"""
    v_lshlrev_b32 v19, 4, v{vT}
    v_mov_b32 v24, 0
    v_mov_b32 v25, 0
    v_mov_b32 v26, 0
    v_mov_b32 v27, 0
    v_cmp_gt_u32 vcc, {n2}, v{vT}
    ds_write_b128 v19, v[24:27] offset:{MR}
    v_lshlrev_b32 v28, 2, v0
    ds_write_b32 v28, v24 offset:{CNT}
    s_mov_b64 exec, vcc
    ds_write_b128 v19, v[24:27] offset:{MR + 16384}
    s_mov_b64 exec, -1
    """)


def rec_addr(a):
    a(f"""
    v_lshrrev_b32 v28, 3, v{vT}
    v_lshlrev_b32 v29, 2, v{vT}
    v_lshl_add_u32 v29, v28, 7, v29
    v_lshl_add_u32 v28, v28, 5, v19
    v_cmp_gt_u32 vcc, 1000, v{vT}
    v_mov_b32 v{vDL}, 0xbfbfbfbf
    """)


def rec_load(a):
    a(f"""
    s_mov_b64 exec, vcc
    global_load_dword v{vDL}, v29, s[{sR}:{sR + 1}]
    global_load_dwordx4 {vr(W, 4)}, v28, s[{sR}:{sR + 1}] offset:32
    s_mov_b64 exec, -1
    """)


def silu4(a, y, h, t):
    a(f"""
    v_pk_mul_f32 {vr(y, 2)}, {vr(y, 2)}, s[{sP0}:{sP0 + 1}] op_sel_hi:[1,0]
    v_pk_mul_f32 {vr(y + 2, 2)}, {vr(y + 2, 2)}, s[{sP0}:{sP0 + 1}] op_sel_hi:[1,0]
    """)
    for k in range(4):
        a(f"v_exp_f32 v{t + k}, v{y + k}")
    for k in (0, 2):
        a(f"v_pk_add_f32 {vr(t + k, 2)}, {vr(t + k, 2)}, 1.0 op_sel_hi:[1,0]")
    for k in range(4):
        a(f"v_rcp_f32 v{t + k}, v{t + k}")
    for k in (0, 2):
        a(f"v_pk_mul_f32 {vr(y + k, 2)}, {vr(y + k, 2)}, s[{sP0}:{sP0 + 1}] op_sel:[0,1] op_sel_hi:[1,1]")
    for k in (0, 2):
        a(f"v_pk_fma_f32 {vr(y + k, 2)}, {vr(y + k, 2)}, {vr(t + k, 2)}, {vr(h + k, 2)}")
    a(f"v_cvt_pk_bf16_f32 v{y}, v{y}, v{y + 1}\nv_cvt_pk_bf16_f32 v{y + 1}, v{y + 2}, v{y + 3}")


def gen_k2(cfg):
    a = Asm()
    st = lambda i, real=False: stamp(a, cfg, 1, i, real)
    st(0, True)
    a(f"""
    s_load_dwordx2 s[22:23], s[0:1], 80
    s_load_dwordx2 s[4:5], s[0:1], 0
    s_load_dwordx2 s[20:21], s[0:1], 64
    v_lshrrev_b32 v1, 6, v0
    s_cmp_ge_u32 s2, 256
    s_cbranch_scc1 K2_END
    v_readfirstlane_b32 s{sWV}, v1
    v_mov_b32 v{vT}, v0
    v_and_b32 v0, 63, v0
    s_setreg_imm32_b32 hwreg(HW_REG_MODE, 4, 2), 3
    s_and_b32 s{sB}, s2, 7
    s_lshl_b32 s{sB}, s{sB}, 5
    s_lshr_b32 s{sA}, s2, 3
    s_add_u32 s{sB}, s{sB}, s{sA}
    s_mul_i32 s{sA}, s{sB}, 20000
    s_add_u32 s{sA}, s{sA}, {WS_REC}
    """)
    zero_init(a, (PAC + 52 * 16 - MR - 16384) // 16)
    rec_addr(a)
    a(f"""
    s_waitcnt lgkmcnt(0)
    {wsoff(cfg, 22)}
    s_add_u32 s{sR}, s22, s{sA}
    s_addc_u32 s{sR + 1}, s23, 0
    """)
    rec_load(a)
    st(2)
    srd(a, sW, 22, WS_END)
    a(f"""
    s_mul_i32 s{sNB}, s{sB}, {NB}
    s_lshl_b32 s{sC}, s{sNB}, 8
    s_add_u32 s{sH}, s4, s{sC}
    s_addc_u32 s{sH + 1}, s5, 0
    s_sub_u32 s{sH + 2}, {N * 256}, s{sC}
    s_mov_b32 s{sH + 3}, 0x20000
    s_mov_b32 s{sA}, {WS_THR}
    s_load_dwordx2 s[{sTH}:{sTH + 1}], s[22:23], s{sA}
    s_mov_b64 s[{sMK}:{sMK + 1}], 0
    s_mov_b64 s[{sMK + 2}:{sMK + 3}], 0
    s_mov_b32 s{sRARE}, 0
    s_mov_b32 s{sFIRST}, 1
    s_mov_b32 s{sSRC}, -1
    s_movk_i32 s{sWID}, 1024
    K2_B0:
    s_lshl_b32 s{sA}, s{sWV}, 12
    s_add_u32 s{sM0}, s{sA}, {POSL}
    s_mov_b32 m0, s{sM0}
    s_add_u32 s{sA}, s{sA}, {WS_POS}
    v_lshlrev_b32 v58, 4, v0
    s_barrier
    """)
    for i in range(4):
        a(f"buffer_load_dwordx4 v58, s[{sW}:{sW + 3}], s{sA} offen offset:{1024 * i} lds")
    a(f"""
    s_lshl_b32 s{sD}, s{sWV}, 10
    s_cmp_ge_u32 s{sWV}, 13
    s_cbranch_scc1 K2_FLD
    s_cmp_lt_u32 s{sWV}, 10
    s_cselect_b32 s{sB2}, {POSL + 65536 - (OH - 10240)}, 0
    s_add_u32 s{sB2}, s{sB2}, s{sD}
    s_add_u32 m0, s{sB2}, {OH - 10240}
    s_add_u32 s{sA}, s{sD}, {WS_POS + 65536}
    buffer_load_dwordx4 v58, s[{sW}:{sW + 3}], s{sA} offen lds
    K2_LUT:
    """)
    a(f"""
    v_lshlrev_b32 v24, 18, v{vT}
    v_or_b32 v25, 0x18000, v24
    v_or_b32 v26, 0x28000, v24
    v_or_b32 v27, 0x38000, v24
    v_or_b32 v24, 0x8000, v24
    s_mov_b32 s{sP0}, {f32(2.0 ** 101)}
    s_mov_b32 s{sP0 + 1}, {f32(1 / (1 + DELTA))}
    v_pk_mul_f32 v[26:27], v[26:27], s[{sP0}:{sP0 + 1}] op_sel_hi:[1,0]
    v_pk_mul_f32 v[24:25], v[24:25], s[{sP0}:{sP0 + 1}] op_sel_hi:[1,0]
    """)
    for k in range(4):
        a(f"v_exp_f32 v{28 + k}, v{24 + k}")
    for k in (0, 2):
        a(f"v_pk_mul_f32 {vr(24 + k, 2)}, {vr(24 + k, 2)}, s[{sP0}:{sP0 + 1}] op_sel:[0,1] op_sel_hi:[1,1]")
    for k in (0, 2):
        a(f"v_pk_add_f32 {vr(28 + k, 2)}, {vr(28 + k, 2)}, 1.0 op_sel_hi:[1,0]")
    for k in range(4):
        a(f"v_rcp_f32 v{28 + k}, v{28 + k}")
    a(f"v_lshlrev_b32 v32, 3, v{vT}\nv_add_u32 v33, 0x10000, v32")
    for k in (0, 2):
        a(f"v_pk_mul_f32 {vr(28 + k, 2)}, {vr(28 + k, 2)}, {vr(24 + k, 2)}")
    for k in (0, 2):
        a(f"v_pk_add_f32 {vr(24 + k, 2)}, {vr(28 + k, 2)}, {vr(24 + k, 2)} neg_lo:[0,1] neg_hi:[0,1]")
    a(f"""
    v_cvt_pk_bf16_f32 v28, v28, v29
    v_cvt_pk_bf16_f32 v29, v30, v31
    v_cvt_pk_bf16_f32 v24, v24, v25
    v_cvt_pk_bf16_f32 v25, v26, v27
    ds_write_b64 v32, v[28:29] offset:{LUT}
    ds_write_b64 v33, v[24:25] offset:{LUT}
    """)
    a(f"""
    s_mov_b32 s{sC000}, 0xc000
    s_movk_i32 s{s128}, 128
    s_movk_i32 s{s192}, 192
    s_movk_i32 s{s256}, 256
    s_movk_i32 s{s256 + 1}, 256
    s_mov_b32 s{sG3}, 0
    s_mov_b32 s{sG3 + 1}, 0xffff0000
    s_add_u32 s{sM0 + 1}, s{sM0}, 1024
    s_add_u32 s{sM0 + 2}, s{sM0}, 2048
    s_add_u32 s{sM0 + 3}, s{sM0}, 3072
    s_sub_u32 s{sNV}, {N}, s{sNB}
    s_min_u32 s{sNV}, s{sNV}, {NB}
    v_and_b32 v34, 15, v0
    v_lshrrev_b32 v35, 4, v0
    v_lshrrev_b32 v36, 3, v34
    v_lshlrev_b32 v36, 1, v36
    v_xor_b32 v36, v36, v35
    v_lshl_add_u32 v36, v36, 4, s{sM0}
    v_lshl_add_u32 v{vRing}, v34, 6, v36
    v_and_b32 v36, 2, v35
    v_and_b32 v37, 3, v0
    v_xor_b32 v36, v36, v37
    v_lshlrev_b32 v{vLc}, 4, v36
    v_cndmask_b32 v{vMul}, 2, 0, {g3}
    v_mov_b32 v{vIS}, 256
    v_cndmask_b32 v{vIX}, 0, v{vIS}, {g3}
    v_mov_b32 v{vIdx}, 0xdd
    s_and_b32 s{sA}, s{sWV}, 7
    s_lshl_b32 s{sA}, s{sA}, 6
    s_add_u32 s{sA}, s{sA}, {FAKE}
    v_and_b32 v36, -4, v0
    v_add_u32 v{vFa}, s{sA}, v36
    v_lshl_add_u32 v59, v36, 6, v{vLc}
    s_cmp_ge_u32 s{sWV}, 3
    s_cselect_b32 s{sA}, 8192, 0
    s_add_u32 s{sA}, s{sA}, s{sD}
    s_add_u32 m0, s{sA}, {HT}
    s_lshr_b32 s{sA}, s{sWV}, 2
    s_lshl_b32 s{sA}, s{sA}, 12
    s_and_b32 s{sB2}, s{sWV}, 3
    s_lshl_b32 s{sB2}, s{sB2}, 6
    s_add_u32 s{sA}, s{sA}, s{sB2}
    s_lshl_b32 s{sB2}, s{sWV}, 12
    s_add_u32 s{sB2}, s{sB2}, {WS_W1}
    v_mov_b32 v19, 1
    v_mov_b32 v48, {PBASE}
    s_mov_b32 s{sC}, 0x40000
    s_mov_b32 s{sD}, 0x0c040100
    s_cmp_ge_u32 s{sWV}, 12
    s_waitcnt vmcnt(5)
    """)
    st(3)
    AJ, RK, QD = 24, 28, 32
    for j in range(4):
        a(f"""
        v_lshlrev_b32_sdwa v{AJ + j}, 2, sext(v{vDL}) {SD} src1_sel:BYTE_{j}
        ds_add_rtn_u32 v{RK + j}, v{AJ + j}, v19 offset:{CNT}
        """)
    a(f"""
    s_cbranch_scc1 K2_H48
    buffer_load_dwordx4 v59, s[{sH}:{sH + 3}], s{sA} offen lds
    s_cmp_ge_u32 s{sWV}, 8
    s_cbranch_scc1 K2_NOW1
    """)
    for ks in range(4):
        a(f"buffer_load_dwordx4 {vr(B + 4 * ks, 4)}, v58, s[{sW}:{sW + 3}], s{sB2} offen offset:{1024 * ks}")
    a(f"""
    K2_NOW1:
    v_cmp_eq_u32 vcc, -1, v{vDL}
    """)
    for j in range(4):
        q = QD + 4 * j
        a(f"""
        v_and_or_b32 v{q + 3}, v{AJ + j}, s{sC}, v48
        v_perm_b32 v{q}, v{AJ + j}, v{W + j}, s{sD}
        v_mad_u32_u16 v{q + 2}, v{W + j}, 4, v{q + 3}
        v_mad_u32_u16 v{q + 3}, v{W + j}, 2, v{q + 3}
        v_and_b32 v{q + 1}, 0xffff0000, v{W + j}
        """)
    a(f"""
    s_cbranch_vccnz K2_OVF
    K2_OVFB:
    v_lshlrev_b32 v49, 2, v0
    s_cmp_lt_u32 s{sWV}, 8
    s_waitcnt vmcnt(5) lgkmcnt(0)
    s_cbranch_scc1 K2_B1
    s_waitcnt vmcnt(1)
    K2_B1:
    s_cmp_eq_u32 s{sWV}, 14
    s_barrier
    """)
    st(4)
    a(f"""
    ds_read_b32 v49, v49 offset:{CNT}
    s_cbranch_scc1 K2_OWN1
    K2_OWN1B:
    """)
    for j in range(4):
        q = QD + 4 * j
        a(f"""
        ds_read_b32 v{q + 2}, v{q + 2} offset:{POSL - PBASE}
        ds_read_u16_d16_hi v{q + 3}, v{q + 3} offset:{POSL + 50000 - PBASE}
        """)
    a(f"""
    s_waitcnt lgkmcnt(8)
    v_cmp_ne_u32 vcc, 0, v49
    s_mov_b32 s{sA}, {OOB}
    s_and_b32 s{sB2}, vcc_hi, 0xf00000
    s_cbranch_scc1 K2_MASK
    K2_MASKB:
    v_mov_b32 v{vIncl}, v49
    """)
    scan64(a, vIncl)
    a(f"""
    v_sub_u32 v49, v{vIncl}, v49
    v_readlane_b32 s{sTOT}, v{vIncl}, 63
    v_lshlrev_b32 v49, 4, v49
    v_writelane_b32 v49, s{sA}, 63
    """)
    for j in range(4):
        a(f"ds_bpermute_b32 v{AJ + j}, v{AJ + j}, v49")
    a(f"""
    s_cmp_gt_u32 s{sTOT}, {CAP}
    s_cbranch_scc1 K2_SHRINK
    s_add_u32 s{sA}, s{sTOT}, 15
    s_lshr_b32 s{sA}, s{sA}, 4
    s_lshr_b32 s{sB2}, s{sA}, 4
    s_and_b32 s{sA}, s{sA}, 15
    s_mul_i32 s{sTS}, s{sB2}, s{sWV}
    s_min_u32 s{sC}, s{sWV}, s{sA}
    s_add_u32 s{sTS}, s{sTS}, s{sC}
    s_cmp_lt_u32 s{sWV}, s{sA}
    s_addc_u32 s{sD}, s{sB2}, 0
    s_lshl_b32 s{sTS}, s{sTS}, 4
    s_lshl_b32 s{sD}, s{sD}, 4
    s_add_u32 s{sWT}, s{sTS}, s{sD}
    s_min_u32 s{sWEND}, s{sWT}, s{sTOT}
    """)
    for j in range(4):
        a(f"""
        s_waitcnt lgkmcnt(3)
        v_lshl_add_u32 v{AJ + j}, v{RK + j}, 4, v{AJ + j}
        ds_write_b128 v{AJ + j}, {vr(QD + 4 * j, 4)} offset:{LIST}
        """)
    a(f"""
    v_cmp_ge_u32 vcc, s{sTS}, v{vIncl}
    v_cmp_gt_u32 s[{sP2}:{sP2 + 1}], s{sWEND}, v{vIncl}
    v_add_u32 v24, 64, v0
    v_cmp_gt_u32 s[{sP3}:{sP3 + 1}], s{sD}, v0
    v_cmp_gt_u32 s[{sP4}:{sP4 + 1}], s{sD}, v24
    s_bcnt1_i32_b64 s{sN0}, vcc
    s_bcnt1_i32_b64 s{sNL}, s[{sP2}:{sP2 + 1}]
    s_mov_b32 s{sNW}, s{sN0}
    """)
    ptrs(a)
    a(f"""
    v_mov_b32 v24, {OOB}
    v_lshl_add_u32 v{vG0}, v0, 4, s{sA}
    v_add_u32 v{vG1}, 1024, v{vG0}
    v_cndmask_b32 v{vG0}, v24, v{vG0}, s[{sP3}:{sP3 + 1}]
    v_cndmask_b32 v{vG1}, v24, v{vG1}, s[{sP4}:{sP4 + 1}]
    s_cmp_eq_u32 s{sD}, 0
    s_cselect_b32 s{sNF}, {OOB >> 5}, s{sN0}
    s_cmp_eq_u32 s{sWV}, 0
    s_cselect_b32 s{sA}, 48, s{sNF}
    s_cselect_b32 s{sNF}, 64, s{sNF}
    s_lshl_b32 s{sA}, s{sA}, 4
    s_add_u32 s{sA}, s{sA}, s{sWV}
    s_lshl_b32 s{sA}, s{sA}, 1
    v_mov_b32 v25, s{sA}
    v_mov_b32 v26, 0x3f80
    s_mov_b64 exec, 1
    ds_write_b16 v25, v26 offset:{SEL}
    s_mov_b64 exec, -1
    s_cmp_ge_u32 s{sWV}, 14
    s_cbranch_scc1 K2_PAD
    K2_PADB:
    s_waitcnt vmcnt(0) lgkmcnt(0)
    s_barrier
    """)
    st(5)
    first_dmas(a)
    a(f"""
    s_cmp_ge_u32 s{sWV}, 8
    s_cbranch_scc1 K2_QF
    """)
    HF = [AC + 4 * i for i in range(8)] + [20 + 4 * i for i in range(8)]
    PA = [76, 80, 52, 56]
    a(f"""
    s_sub_u32 s{sA}, {HT}, s{sM0}
    v_add_u32 v17, s{sA}, v{vRing}
    v_and_b32 v18, 48, v0
    """)
    for i in range(12):
        a(f"ds_read_b128 {vr(HF[i], 4)}, v17 offset:{hp(i)}")
    a(f"""
    s_lshl_b32 s{sB2}, s{sWV}, 5
    s_add_u32 s{sB2}, s{sB2}, {PT}
    v_lshrrev_b32 v17, 1, v18
    v_and_b32 v19, 15, v0
    v_mul_u32_u24 v19, 288, v19
    v_add3_u32 v17, v17, v19, s{sB2}
    s_bitcmp1_b32 s{sWV}, 0
    s_mov_b32 s{sP0}, {f32(-LOG2E)}
    s_cmov_b32 s{sP0}, {f32(-LOG2E * TINY)}
    """)
    for i in range(16):
        rt, ks = divmod(i, 4)
        a(f"s_waitcnt lgkmcnt({11 if i < 4 else 15 - i})")
        a(mf32(PA[rt], B + 4 * ks, HF[i], ks == 0))
        if i < 4:
            a(f"ds_read_b128 {vr(HF[12 + i], 4)}, v18 offset:{H48 + 64 * i}")
    for rt in range(4):
        p, o = PA[rt], AC + 4 * rt
        a(f"""
        v_pk_mul_f32 {vr(o, 2)}, {vr(p, 2)}, s[{sP0}:{sP0 + 1}] op_sel_hi:[1,0]
        v_pk_mul_f32 {vr(o + 2, 2)}, {vr(p + 2, 2)}, s[{sP0}:{sP0 + 1}] op_sel_hi:[1,0]
        v_cvt_pk_bf16_f32 v{o}, v{o}, v{o + 1}
        v_cvt_pk_bf16_f32 v{o + 1}, v{o + 2}, v{o + 3}
        ds_write_b64 v17, {vr(o, 2)} offset:{rt * 16 * 288}
        """)
    for k in range(8):
        p = vr(PA[k // 2] + 2 * (k & 1), 2)
        a(f"v_pk_mul_f32 v[20:21], {p}, {p}" if k == 0 else f"v_pk_fma_f32 v[20:21], {p}, {p}, v[20:21]")
    a(f"""
    v_add_f32 v20, v20, v21
    v_cmp_ngt_f32 vcc, {f32(64 * LN2 * LN2)}, v20
    s_cbranch_vccnz K2_FLAG
    K2_FLAGB:
    s_waitcnt lgkmcnt(0)
    s_barrier
    K2_GEO:
    """)
    G, O = 20, 28
    a(f"""
    ds_read_b128 {vr(G, 4)}, v{vG0}
    ds_read_b128 {vr(G + 4, 4)}, v{vG1}
    v_mov_b32 v{S}, 0
    v_mov_b32 v{S + 1}, 0
    v_bfe_u32 v17, v0, 2, 2
    v_lshrrev_b32 v18, 4, v0
    v_cmp_eq_u32 vcc, v17, v18
    v_mov_b32 v18, 0x3f80
    v_mov_b32 v19, 0
    v_cndmask_b32 v18, 0, v18, vcc
    v_lshlrev_b32 v17, 4, v0
    v_lshlrev_b64 v[{B + 2}:{B + 3}], v17, v[18:19]
    """)
    for p in range(2):
        a(f"""
        s_waitcnt lgkmcnt(1)
        v_lshlrev_b32_sdwa v{O + 4 * p}, 2, v{G + 4 * p} {SD} src1_sel:WORD_1
        ds_read_b128 {vr(O + 4 * p, 4)}, v{O + 4 * p} offset:{OWN}
        """)
    for u in range(8):
        a(zero4(AC + 4 * u))
        if u < 3:
            a(f"v_mov_b64 {vr(B + 6 * u + 8, 2)}, {vr(B + 2, 2)}")
    for p in range(2):
        g, o = G + 4 * p, O + 4 * p
        a(f"""
        v_lshlrev_b32 v36, 16, v{g + 2}
        v_and_b32 v37, 0xffff0000, v{g + 2}
        s_waitcnt lgkmcnt(1)
        v_pk_add_f32 {vr(o, 2)}, {vr(o, 2)}, v[36:37] neg_lo:[0,1] neg_hi:[0,1]
        v_sub_f32 v{o + 2}, v{o + 2}, v{g + 3}
        v_mul_f32 v{o + 3}, v{o}, v{o}
        v_fmac_f32 v{o + 3}, v{o + 1}, v{o + 1}
        v_fmac_f32 v{o + 3}, v{o + 2}, v{o + 2}
        v_cvt_pk_bf16_f32 v{g + 2}, 1.0, v{o}
        v_mul_f32 v{o + 3}, {f32(-LOG2E)}, v{o + 3}
        v_cvt_pk_bf16_f32 v{g + 3}, v{o + 1}, v{o + 2}
        v_cmp_nlt_f32 vcc, abs(v{g + 1}), s{sTH + 1}
        v_cmp_nlt_f32 s[{sP0}:{sP0 + 1}], abs(v{o + 3}), s{sTH}
        v_cvt_pk_bf16_f32 v{g + 1}, v{o + 3}, v{g + 1}
        ds_write_b128 v{vG0 + p}, {vr(g, 4)} ; nobar
        s_or_b64 vcc, vcc, s[{sP0}:{sP0 + 1}]
        s_and_b64 s[{sP3 + 2 * p}:{sP3 + 2 * p + 1}], s[{sP3 + 2 * p}:{sP3 + 2 * p + 1}], vcc
        """)
    a(f"""
    s_or_b64 s[{sP3}:{sP3 + 1}], s[{sP3}:{sP3 + 1}], s[{sP4}:{sP4 + 1}]
    s_cselect_b32 s{sMODE}, 1, 0
    s_cmp_lt_u32 s{sWV}, 8
    s_cbranch_scc1 K2_G2
    s_barrier
    K2_G2:
    s_cmp_ge_u32 s{sTS}, s{sWT}
    s_cbranch_scc1 K2_NT0
    """)
    st(6)
    a(f"""
    K2_XFR:
    v_lshrrev_b32 v17, 2, v0
    v_and_b32 v18, 3, v0
    v_add_u32 v19, s{sN0}, v17
    v_mul_u32_u24 v19, 288, v19
    v_add_u32 v19, {PT}, v19
    v_lshlrev_b32 v17, 8, v17
    v_add_u32 v17, {WD - 14 * 256}, v17
    v_cndmask_b32 v19, v19, v17, {g3}
    s_mov_b32 vcc_lo, 0
    s_mov_b32 vcc_hi, 0x00ff0000
    v_mov_b32 v17, {OOB}
    v_lshl_add_u32 v19, v18, 3, v19
    v_cndmask_b32 v19, v19, v17, vcc
    ds_read_b32 v17, v{S} offset:{CNT + 224}
    """)
    for u in range(8):
        a(f"ds_read_b64_tr_b16 {vr(B + 6 * (u // 2) + 4 * (u & 1), 2)}, v19 offset:{32 * u}")
    a(f"""
    s_lshl_b32 s{sA}, s{sN0}, 3
    s_sub_u32 s{sA}, {OH + 512}, s{sA}
    v_and_b32 v19, 48, v0
    v_lshlrev_b32 v19, 1, v19
    v_sub_u32 v19, s{sA}, v19
    v_cndmask_b32 v{vBX}, v19, v{vEa}, {g3}
    v_mad_u32_u16 v{vXa}, v{vXa}, v{vMul}, v{vBX} op_sel:[1,0,0,0]
    ds_read_b64 {vr(A, 2)}, v{vXa}
    ds_read_b64 {vr(A + 6, 2)}, v{vXa}
    ds_read_b64 {vr(A + 12, 2)}, v{vXa}
    v_subrev_u32 v18, s{sNW}, v18
    v_and_b32 v18, 3, v18
    v_add_u32 v18, s{sNW}, v18
    v_mul_u32_u24 v18, {OOB}, v18
    v_sub_u32 v18, v{vDa}, v18
    v_add_u32 v{vBS}, 8, v18
    v_mad_u32_u16 v{vSa}, v{vSa}, s{sC000}, v{vBS} op_sel:[1,0,0,0]
    s_waitcnt vmcnt(3)
    {rdq(0)}
    {zero4(ZE + 4)}
    {zero4(L)}
    v_lshl_add_u64 v[{vBX}:{vBS}], v[{vBX}:{vBS}], 0, v[{vIX}:{vIS}]
    v_add_u32 v{vDa}, 512, v{vDa}
    v_add_u32 v{vEa}, 256, v{vEa}
    v_mad_u32_u16 v{vVoff}, v{vD}, s{s256}, v{vLc}
    s_waitcnt vmcnt(2)
    {rdq(1)}
    """)
    window(a)
    a(f"""
    {dma(0)[0]}
    s_waitcnt lgkmcnt(1)
    {Kmf(0, ZE)}
    {dma(0)[1]}
    v_readfirstlane_b32 s{sA}, v17
    s_or_b32 s{sMODE}, s{sMODE}, s{sA} ; @set:mode=x
    """)
    st(7)
    a(f"""
    s_waitcnt lgkmcnt(0)
    K2_EV2:
    s_add_u32 s{sA}, s{sTS}, 32
    s_cmp_lt_u32 s{sA}, s{sWT}
    s_cbranch_scc1 K2_GO
    v_mov_b32 v{vDa}, v{vFa}
    K2_GO:
    s_cmp_lg_u32 s{sMODE}, 0
    s_cbranch_scc1 K2_LOOPF ; @if:mode=1
    K2_LOOP:
    {loop_body(cfg.get('pat', PAT), cfg.get('dord', DORD), True)}
    s_cbranch_scc1 K2_LOOP
    K2_EV:
    s_add_u32 s{sA}, s{sTS}, 16
    s_cmp_lt_u32 s{sEW}, s{sA}
    s_cbranch_scc1 K2_WIN
    s_cmp_lt_u32 s{sTS}, s{sWT}
    s_cbranch_scc1 K2_EV2
    """)
    st(8)
    WT = [A + 2, A + 8, B + 16, B + 20]

    def exit_loads():
        a(f"""
        s_and_b32 s{sA}, s{sWV}, 7
        s_lshl_b32 s{sA}, s{sA}, 12
        s_add_u32 s{sA}, s{sA}, {WS_WB}
        v_lshlrev_b32 v17, 4, v0
        """)
        for ks in range(4):
            a(f"buffer_load_dwordx4 {vr(B + 4 * ks, 4)}, v17, s[{sW}:{sW + 3}], s{sA} offen offset:{1024 * ks}")

    exit_loads()
    F = L
    a(f"""
    s_mov_b32 s{sLAST}, 1 ; @set:last=1
    s_movk_i32 s{sNWN}, 64
    K2_FLUSH:
    v_and_b32 v17, 15, v0
    v_lshlrev_b32 v18, 5, v17
    ds_read_b128 {vr(T, 4)}, v18 offset:{WX}
    s_waitcnt lgkmcnt(1)
    {Ymf(6, ZE + 4)}
    {Ymf(7, L)}
    ds_read_b128 {vr(ZL, 4)}, v18 offset:{WX + 16}
    v_lshrrev_b32 v18, 4, v0
    v_subrev_u32 v18, s{sNW}, v18
    v_and_b32 v18, 3, v18
    v_add_u32 v18, s{sNW}, v18
    s_add_u32 s{sA}, s{sNL}, 1
    s_min_u32 s{sA}, s{sA}, s{sNWN}
    s_add_u32 s{sB2}, s{sWV}, 48
    v_cmp_eq_u32 vcc, s{sNF}, v18
    v_cmp_gt_u32 s[{sP0}:{sP0 + 1}], s{sA}, v18
    v_cmp_gt_u32 s[{sP1}:{sP1 + 1}], s{sNWN}, v18
    v_mov_b32 v19, s{sB2}
    v_cndmask_b32 v19, v18, v19, vcc
    v_mul_u32_u24 v19, {MST}, v19
    v_lshl_add_u32 v19, v17, 4, v19
    v_lshl_add_u32 v18, v18, 4, v17
    """)
    for k in range(4):
        a(f"v_cvt_pk_bf16_f32 v{ZE + 4 + k}, v{AC + 8 * k}, v{AC + 8 * k + 4}")
    a(f"""
    s_mov_b64 exec, s[{sP0}:{sP0 + 1}]
    ds_write_b128 v19, {vr(ZE + 4, 4)} offset:{MR}
    s_mov_b64 exec, -1
    s_waitcnt lgkmcnt(1)
    """)
    for u in range(8):
        w = (T if u < 4 else ZL) + (u & 3)
        wp, hi = w & ~1, w & 1
        if u == 0:
            a(f"v_pk_mul_f32 {vr(F + 2, 2)}, {vr(AC + 2, 2)}, {vr(wp, 2)} op_sel_hi:[1,0]")
            a(f"v_mul_f32 v{F + 1}, v{AC + 1}, v{w}")
        else:
            a(f"v_pk_fma_f32 {vr(F + 2, 2)}, {vr(AC + 4 * u + 2, 2)}, {vr(wp, 2)}, {vr(F + 2, 2)} op_sel:[0,{hi},0] op_sel_hi:[1,{hi},1]")
            a(f"v_fmac_f32 v{F + 1}, v{AC + 4 * u + 1}, v{w}")
    a(f"""
    s_and_b32 s{sP0}, s{sP0}, 0x01110111
    v_add_f32_dpp v{F + 2}, v{F + 2}, v{F + 2} row_ror:8 row_mask:0xf bank_mask:0xf
    v_add_f32_dpp v{F + 1}, v{F + 1}, v{F + 1} row_ror:8 row_mask:0xf bank_mask:0x3
    s_and_b32 s{sP0 + 1}, s{sP0 + 1}, 0x01110111
    v_add_f32_dpp v{F + 2}, v{F + 2}, v{F + 2} row_shr:4 row_mask:0xf bank_mask:0x2
    v_add_f32_dpp v{F + 1}, v{F + 3}, v{F + 3} row_ror:8 row_mask:0xf bank_mask:0xc
    s_nop 1
    v_add_f32_dpp v{F + 2}, v{F + 1}, v{F + 1} row_shl:4 row_mask:0xf bank_mask:0x5
    s_nop 1
    v_add_f32_dpp v{F + 2}, v{F + 2}, v{F + 2} quad_perm:[1,0,3,2] row_mask:0xf bank_mask:0xf
    s_nop 1
    v_add_f32_dpp v{F + 2}, v{F + 2}, v{F + 2} quad_perm:[2,3,0,1] row_mask:0xf bank_mask:0xf
    s_mov_b64 exec, s[{sP0}:{sP0 + 1}]
    ds_add_f32 v18, v{F + 2} offset:{PAC}
    s_mov_b64 exec, -1
    s_cmp_eq_u32 s{sLAST}, 0
    s_cbranch_scc1 K2_SLIDE ; @if:last=0
    s_waitcnt vmcnt(5)
    K2_POST:
    {rdq(2, WT[2])}
    {rdq(3, WT[3])}
    """)
    st(9)
    YA, YB = Y, Y + 4
    HA, HB = 44, 48
    vMa, vM3, vSe, vOa = 1, 2, 3, 4
    a(f"""
    s_lshr_b32 s{sD}, s{sWV}, 3
    s_lshl_b32 s{sA}, s{sD}, 12
    s_sub_u32 s{sB2}, {HT}, s{sM0}
    v_add_u32 v18, s{sB2}, v{vRing}
    v_add_u32 v17, s{sA}, v18
    v_and_b32 v5, 15, v0
    v_and_b32 v6, 48, v0
    s_cmp_eq_u32 s{sFIRST}, 0
    s_cbranch_scc1 K2_NOGH
    """)
    for ks in range(4):
        a(f"ds_read_b128 {vr(AC + 4 * ks, 4)}, v17 offset:{hp(4 + ks)}")
    a(f"""
    s_mov_b32 s{sP0}, {f32(-LOG2E / (1 + DELTA))}
    s_cmp_lg_u32 s{sD}, 0
    s_cbranch_scc1 K2_GH1
    """)
    for ks in range(4):
        a(f"ds_read_b128 {vr(AC + 16 + 4 * ks, 4)}, v18 offset:{hp(ks)}")
    for ks in range(4):
        a(f"s_waitcnt lgkmcnt({7 - ks})\n" + mf32(YA, WT[ks], AC + 4 * ks, ks == 0))
    for ks in range(4):
        a(f"s_waitcnt lgkmcnt({3 - ks})\n" + mf32(YB, WT[ks], AC + 16 + 4 * ks, ks == 0))
    a(f"""
    K2_GH2:
    s_nop 3
    v_pk_mul_f32 {vr(YA, 2)}, {vr(YA, 2)}, s[{sP0}:{sP0 + 1}] op_sel_hi:[1,0]
    v_pk_mul_f32 {vr(YA + 2, 2)}, {vr(YA + 2, 2)}, s[{sP0}:{sP0 + 1}] op_sel_hi:[1,0]
    s_nop 1
    v_pk_mul_f32 {vr(YB, 2)}, {vr(YB, 2)}, s[{sP0}:{sP0 + 1}] op_sel_hi:[1,0]
    v_pk_mul_f32 {vr(YB + 2, 2)}, {vr(YB + 2, 2)}, s[{sP0}:{sP0 + 1}] op_sel_hi:[1,0]
    K2_NOGH:
    s_and_b32 s{sC}, s{sWV}, 1
    s_lshl_b32 s{sC}, s{sC}, 1
    v_lshrrev_b32 v7, 5, v0
    v_lshrrev_b32 v8, 2, v0
    v_and_b32 v8, 2, v8
    v_xor_b32 v8, s{sC}, v8
    v_or_b32 v7, v7, v8
    v_lshlrev_b32 v7, 4, v7
    v_lshl_add_u32 v7, v5, 6, v7
    v_lshrrev_b32 v8, 1, v6
    v_and_or_b32 v7, v8, 8, v7
    s_bfe_u32 s{sC}, s{sWV}, 0x20001
    s_lshl_b32 s{sB2}, s{sC}, 10
    s_add_u32 s{sA}, s{sA}, s{sB2}
    s_add_u32 s{sA}, s{sA}, {hp(4)}
    s_cmp_eq_u32 s{sC}, 3
    s_cselect_b32 s{sB2}, {hp(3)}, s{sB2}
    v_add_u32 v9, s{sA}, v7
    v_add_u32 v7, s{sB2}, v7
    s_and_b32 s{sC}, s{sWV}, 7
    s_lshl_b32 s{sC}, s{sC}, 5
    v_lshl_add_u32 v10, v5, 1, s{sC}
    ds_read_b64 v[52:53], v9 offset:{HT}
    ds_read_b64 v[54:55], v7 offset:{HT}
    ds_read_u16_d16_hi v56, v10 offset:{H48}
    s_mul_i32 s{sA}, s{sD}, {16 * MST}
    v_mul_u32_u24 v{vM3}, {MST}, v5
    v_add_u32 v{vM3}, v{vM3}, v6
    v_add_u32 v{vMa}, s{sA}, v{vM3}
    s_lshl_b32 s{sA}, s{sD}, 9
    v_lshl_add_u32 v11, v5, 5, v8
    v_add_u32 v{vSe}, s{sA}, v11
    s_mul_i32 s{sA}, s{sD}, 1536
    v_add_u32 v11, s{sA}, v11
    s_mul_i32 s{sA}, s{sD}, {16 * OST}
    s_add_u32 s{sA}, s{sA}, s{sC}
    s_add_u32 s{sA}, s{sA}, {OT}
    v_mul_u32_u24 v{vOa}, {OST}, v5
    v_add3_u32 v{vOa}, v{vOa}, v8, s{sA}
    v_add_u32 v10, {OT + 48 * OST}, v10
    s_mov_b32 s{sP0}, {f32(1 + DELTA)}
    s_mov_b32 s{sP0 + 1}, {f32(-LN2)}
    s_waitcnt lgkmcnt(0)
    """)
    for k in range(4):
        a(f"v_lshlrev_b32 v{HA + 2 * k}, 16, v{52 + k}\nv_and_b32 v{HA + 2 * k + 1}, 0xffff0000, v{52 + k}")
    Z, ZB, SA, SB, MB = 36, 40, 52, 54, 20
    a(f"""
    s_cmp_lg_u32 s{sD}, 0
    s_waitcnt vmcnt(0)
    s_barrier
    """)
    st(10)
    for ks in range(4):
        a(f"ds_read_b128 {vr(AC + 4 * ks, 4)}, v{vM3} offset:{MR + 48 * MST + 64 * ks}")
    for ks in range(4):
        a(f"ds_read_b128 {vr(AC + 16 + 4 * ks, 4)}, v{vMa} offset:{MR + 16 * MST + 64 * ks}")
    a(f"""
    ds_read_b64 {vr(SA, 2)}, v{vSe} offset:{SEL + 512}
    ds_read_b64 {vr(SB, 2)}, v11 offset:{SEL}
    s_cbranch_scc1 K2_E1
    """)
    mf16 = lambda d, x, y: f"v_mfma_f32_16x16x16_bf16 {vr(d, 4)}, {vr(x, 2)}, {vr(y, 2)}, {vr(d, 4)}"

    def gemm_a(extra):
        for ks in range(4):
            a(f"s_waitcnt lgkmcnt({9 + extra - ks})\n" + mf32(Z, AC + 4 * ks, B + 4 * ks, ks == 0))
        for ks in range(4):
            a(f"s_waitcnt lgkmcnt({5 + extra - ks})\n" + mf32(YA, B + 4 * ks, AC + 16 + 4 * ks))
        a(f"v_cvt_pk_bf16_f32 v{ZB}, v{Z}, v{Z + 1}\nv_cvt_pk_bf16_f32 v{ZB + 1}, v{Z + 2}, v{Z + 3}")

    for ks in range(4):
        a(f"ds_read_b128 {vr(MB + 4 * ks, 4)}, v{vM3} offset:{MR + 64 * ks}")
    gemm_a(4)
    for ks in range(4):
        a(f"s_waitcnt lgkmcnt({3 - ks})\n" + mf32(YB, B + 4 * ks, MB + 4 * ks))
        if ks == 2:
            a(mf16(YA, ZB, SA))
    a(f"""
    s_cmp_lg_u32 s{sRARE}, 0
    s_nop 6
    {mf16(YB, ZB, SB)}
    s_cbranch_scc1 K2_NEXT
    K2_S0:
    """)
    silu4(a, YA, HA, 20)
    a(f"ds_write_b64 v{vOa}, {vr(YA, 2)} offset:{16 * OST}")
    silu4(a, YB, HB, 20)
    a(f"""
    ds_write_b64 v{vOa}, {vr(YB, 2)}
    K2_OUT:
    s_lshl_b32 s{sC}, s{sNB}, 8
    s_add_u32 s{sO}, s20, s{sC}
    s_addc_u32 s{sO + 1}, s21, 0
    s_lshl_b32 s{sO + 2}, s{sNV}, 8
    s_mov_b32 s{sO + 3}, 0x20000
    s_lshl_b32 s{sA}, s{sWV}, 10
    v_lshl_add_u32 v7, v0, 4, s{sA}
    s_lshl_b32 s{sA}, s{sWV}, 6
    s_add_u32 s{sA}, s{sA}, {OT}
    v_add3_u32 v8, v7, v6, s{sA}
    s_cmp_ge_u32 s{sWV}, 13
    s_waitcnt lgkmcnt(0)
    s_barrier
    s_cbranch_scc1 K2_FIN
    """)
    st(11)
    a(f"""
    ds_read_b128 v[20:23], v8
    s_waitcnt lgkmcnt(0)
    buffer_store_dwordx4 v[20:23], v7, s[{sO}:{sO + 3}], 0 offen sc1
    K2_FIN:
    """)
    st(12)
    stamp_out(a, cfg, 1, 22)
    a("K2_END:\ns_endpgm")

    a("K2_GH1:")
    for ks in range(4):
        a(f"ds_read_b128 {vr(AC + 16 + 4 * ks, 4)}, v6 offset:{H48 + 64 * ks}")
    for ks in range(4):
        a(f"s_waitcnt lgkmcnt({7 - ks})\n" + mf32(YA, WT[ks], AC + 4 * ks, ks == 0))
    for ks in range(4):
        a(f"s_waitcnt lgkmcnt({3 - ks})\n" + mf32(YB, AC + 16 + 4 * ks, WT[ks], ks == 0))
    a("s_branch K2_GH2\nK2_E1:")
    gemm_a(0)
    a(f"""
    s_waitcnt lgkmcnt(0)
    s_cmp_lg_u32 s{sRARE}, 0
    {mf16(YB, SB, ZB)}
    s_nop 2
    {mf16(YA, ZB, SA)}
    s_cbranch_scc1 K2_NEXT
    K2_S1:
    s_sub_u32 s{sA}, s{sWV}, 13
    s_lshl_b32 s{sA}, s{sA}, 6
    v_add_u32 v11, s{sA}, v0
    v_mul_u32_u24 v12, 171, v11
    v_lshrrev_b32 v12, 9, v12
    v_add_lshl_u32 v13, v11, v12, 2
    ds_read_b32 v14, v13 offset:{PAC}
    ds_read_b32 v15, v13 offset:{OWN}
    """)
    silu4(a, YA, HA, 20)
    a(f"""
    ds_write_b64 v{vOa}, {vr(YA, 2)} offset:{16 * OST}
    v_mul_f32 v{YB}, s{sP0}, v{YB}
    v_exp_f32 v20, v{YB}
    v_mul_f32 v{YB}, s{sP0 + 1}, v{YB}
    v_add_f32 v20, 1.0, v20
    v_rcp_f32 v20, v20
    v_cmp_gt_u32 vcc, s{sNV}, v12
    v_fmac_f32 v56, v20, v{YB}
    v_cvt_pk_bf16_f32 v56, v56, v56
    s_mov_b64 exec, 0xffff
    ds_write_b16 v10, v56
    s_mov_b64 exec, -1
    s_cmp_lt_u32 s{sWV}, 13
    s_cbranch_scc1 K2_OUT
    s_mul_i32 s{sA}, s{sNB}, 6
    s_add_u32 s{sA}, s{sA}, {N * 256}
    v_lshl_add_u32 v11, v11, 1, s{sA}
    s_waitcnt lgkmcnt(2)
    v_add_f32 v14, v14, v15
    v_cvt_pk_bf16_f32 v14, v14, v14
    s_mov_b64 exec, vcc
    global_store_short v11, v14, s[20:21] sc1
    s_mov_b64 exec, -1
    s_branch K2_OUT
    """)
    a(f"""
    K2_FLD:
    v_mul_u32_u24 v59, 12, v{vT}
    s_mov_b32 s{sA}, {WS_FLG - 13 * 64 * 12}
    v_add_u32 v59, s{sA}, v59
    buffer_load_dwordx3 {vr(B, 3)}, v59, s[{sW}:{sW + 3}], 0 offen
    s_branch K2_LUT
    K2_H48:
    s_cmp_lg_u32 s{sWV}, 12
    s_cbranch_scc1 K2_NOW1
    s_mov_b32 m0, {H48}
    s_mov_b64 exec, 0xffff
    buffer_load_dwordx4 v58, s[{sH}:{sH + 3}], s{sA} offen lds
    s_mov_b64 exec, -1
    s_branch K2_NOW1
    K2_OWN1:
    v_add_u32 v50, s{sNB}, v0
    v_lshl_add_u32 v54, v50, 1, v48
    v_lshl_add_u32 v50, v50, 2, v48
    ds_read_b32 v50, v50 offset:{POSL - PBASE}
    ds_read_u16_d16_hi v54, v54 offset:{POSL + 50000 - PBASE}
    s_branch K2_OWN1B
    K2_PAD:
    s_cmp_eq_u32 s{sWV}, 14
    s_cbranch_scc1 K2_OWN2
    v_add_lshl_u32 v25, v0, s{sTOT}, 4
    v_mov_b32 v52, {N | (4 * PADN) << 16}
    v_mov_b32 v53, 0
    v_mov_b32 v54, 0
    v_mov_b32 v55, 0
    v_cndmask_b32 v25, v25, v24, {g3}
    ds_write_b128 v25, v[52:55] offset:{LIST}
    s_branch K2_PADB
    K2_OWN2:
    v_cmp_gt_u32 vcc, s{sNV}, v0
    v_mov_b32 v55, 0
    s_mov_b32 exec_hi, 0x1fffff
    v_cndmask_b32 v50, 0, v50, vcc
    v_cndmask_b32 v54, 0, v54, vcc
    v_lshlrev_b32 v52, 16, v50
    v_and_b32 v53, 0xffff0000, v50
    v_and_b32 v54, 0xffff0000, v54
    ds_write_b128 v58, v[52:55] offset:{OWN}
    s_mov_b64 exec, -1
    s_branch K2_PADB
    K2_QF:
    s_cmp_lt_u32 s{sWV}, 13
    s_cbranch_scc1 K2_GEO
    v_or3_b32 v17, v{B}, v{B + 1}, v{B + 2}
    v_cmp_ne_u32 vcc, 0, v17
    s_cbranch_vccz K2_GEO
    K2_FLAG:
    v_mov_b32 v17, {CNT + 224}
    ds_write_b32 v17, v17
    s_waitcnt lgkmcnt(0)
    s_cmp_lt_u32 s{sWV}, 8
    s_cbranch_scc1 K2_FLAGB
    s_branch K2_GEO
    K2_NT0:
    s_waitcnt vmcnt(0)
    {rdq(0)}
    {rdq(1)}
    """)
    exit_loads()
    a("s_branch K2_POST")
    a(f"""
    K2_WIN:
    s_min_u32 s{sA}, s{sEW}, s{sTS}
    v_cmp_ge_u32 vcc, s{sA}, v{vIncl}
    s_mov_b32 s{sLAST}, 0 ; @set:last=0
    s_bcnt1_i32_b64 s{sNWN}, vcc
    s_branch K2_FLUSH
    K2_SLIDE:
    v_mov_b32 v{S}, 0
    v_mov_b32 v{S + 1}, 0
    v_and_b32 v17, 3, v0
    v_subrev_u32 v18, s{sNW}, v17
    v_subrev_u32 v17, s{sNWN}, v17
    v_and_b32 v18, 3, v18
    v_and_b32 v17, 3, v17
    s_sub_u32 s{sA}, s{sNWN}, s{sNW}
    v_sub_u32 v17, v17, v18
    v_add_u32 v17, s{sA}, v17
    v_mul_u32_u24 v17, {OOB}, v17
    s_mov_b32 s{sNW}, s{sNWN}
    s_mov_b64 exec, s[{sP1}:{sP1 + 1}]
    """)
    for k in range(16):
        a(f"v_mov_b64 {vr(AC + 2 * k, 2)}, 0")
    a(f"""
    s_mov_b64 exec, -1
    s_cmp_lt_u32 s{sEW}, s{sTS}
    s_cbranch_scc1 K2_REDO
    s_sub_u32 s{sA}, s{sNW}, s{sN0}
    s_cmp_gt_u32 s{sA}, 8
    s_cbranch_scc1 K2_RESTART
    {zero4(ZE + 4)}
    {zero4(L)}
    v_sub_u32 v{vSa}, v{vSa}, v17
    v_sub_u32 v{vBS}, v{vBS}, v17
    """)
    window(a)
    a(f"""
    s_branch K2_EV2
    K2_REDO:
    s_sub_u32 s{sTS}, s{sTS}, 16
    K2_RESTART:
    s_mov_b32 s{sN0}, s{sNW}
    """)
    ptrs(a)
    a("s_waitcnt vmcnt(0) lgkmcnt(0)")
    first_dmas(a)
    a(f"""
    s_waitcnt lgkmcnt(0)
    s_branch K2_XFR
    K2_LOOPF:
    {loop_body('M1 Y1 M2 Y2 Fa Fb m s 0 v D V', DORD, False)}
    s_cbranch_scc1 K2_LOOPF
    s_branch K2_EV
    """)
    a(f"""
    K2_OVF:
    v_lshrrev_b32 v49, 3, v{vT}
    v_lshlrev_b32 v50, v49, v19
    v_lshrrev_b32 v49, 5, v49
    v_lshlrev_b32 v49, 2, v49
    s_mov_b64 exec, vcc
    ds_or_b32 v49, v50 offset:{CNT + 208}
    s_mov_b64 exec, -1
    s_branch K2_OVFB
    K2_MASK:
    """)
    for k in range(4):
        a(f"v_readlane_b32 s{sMK + k}, v49, {52 + k}")
    a(f"""
    v_cmp_gt_u32 vcc, 52, v0
    s_mov_b32 s{sRARE}, 1
    s_nop 0
    v_cndmask_b32 v49, 0, v49, vcc
    s_branch K2_MASKB
    K2_SHRINK:
    s_movk_i32 s{sWID}, {CAP // 4}
    s_mov_b32 s{sLO}, 0
    s_mov_b32 s{sRARE}, 1
    s_branch K2_ROUND
    K2_NEXT:
    s_mov_b32 s{sFIRST}, 0
    s_add_u32 s{sLO}, s{sLO}, s{sWID}
    s_cmp_lt_u32 s{sWID}, 1024
    s_cselect_b32 s{sA}, s{sLO}, 1024
    s_cmp_lt_u32 s{sA}, 1000
    s_cbranch_scc1 K2_ROUND
    s_mov_b32 s{sLO}, 0
    s_movk_i32 s{sWID}, 1024
    s_ff1_i32_b64 s{sSRC}, s[{sMK}:{sMK + 1}]
    s_cmp_lt_i32 s{sSRC}, 0
    s_cbranch_scc1 K2_NEXT2
    s_bitset0_b64 s[{sMK}:{sMK + 1}], s{sSRC}
    s_branch K2_ROUND
    K2_NEXT2:
    s_ff1_i32_b64 s{sSRC}, s[{sMK + 2}:{sMK + 3}]
    s_cmp_lt_i32 s{sSRC}, 0
    s_cbranch_scc0 K2_NEXT3
    s_cmp_lg_u32 s{sD}, 0
    s_cbranch_scc1 K2_S1
    s_branch K2_S0
    K2_NEXT3:
    s_bitset0_b64 s[{sMK + 2}:{sMK + 3}], s{sSRC}
    s_add_u32 s{sSRC}, s{sSRC}, 64
    K2_ROUND:
    s_load_dwordx4 s[8:11], s[0:1], 16
    s_load_dwordx2 s[12:13], s[0:1], 32
    s_lshl_b32 s{sA}, s{sWV}, 6
    v_add_u32 v{vT}, s{sA}, v0
    s_waitcnt vmcnt(0) lgkmcnt(0)
    s_barrier
    """)
    zero_init(a, (PAC - MR - 16384) // 16)
    rec_addr(a)
    a(f"""
    s_cmp_ge_i32 s{sSRC}, 0
    s_cbranch_scc1 K2_RAW
    """)
    rec_load(a)
    a(f"""
    s_waitcnt vmcnt(0)
    v_and_b32 v{vDL}, 0xbfbfbfbf, v{vDL}
    s_branch K2_RANGE
    K2_RAW:
    s_cmp_ge_u32 s{sWV}, 13
    s_cbranch_scc1 K2_RANGE
    s_mul_i32 s{sA}, s{sSRC}, 12800
    v_cmp_gt_u32 vcc, 800, v{vT}
    v_add_u32 v28, s{sA}, v19
    v_lshrrev_b32 v29, 1, v28
    s_mov_b64 exec, vcc
    global_load_dwordx4 v[32:35], v28, s[12:13]
    global_load_dwordx4 {vr(W, 4)}, v28, s[10:11]
    global_load_dwordx2 v[36:37], v29, s[8:9]
    s_mov_b32 s{sA}, 342393
    s_mov_b32 s{sB2}, 0xffff0000
    v_mov_b32 v38, 0xbf
    s_waitcnt vmcnt(0)
    """)
    for j in range(4):
        a(f"""
        v_mul_u32_u24 v{32 + j}, s{sA}, v{32 + j}
        v_lshrrev_b32 v39, 24, v{32 + j}
        v_cmp_eq_u32 vcc, s{sB}, v39
        v_mul_hi_u32_u24 v{32 + j}, 12544, v{32 + j}
        """)
        if j & 1:
            a(f"v_and_or_b32 v{W + j}, v{36 + j // 2}, s{sB2}, v{W + j}")
        else:
            a(f"v_lshl_or_b32 v{W + j}, v{36 + j // 2}, 16, v{W + j}")
        a(f"v_cndmask_b32 v{32 + j}, v38, v{32 + j}, vcc")
    a(f"""
    v_lshl_or_b32 v32, v33, 8, v32
    v_lshl_or_b32 v34, v35, 8, v34
    v_lshl_or_b32 v{vDL}, v34, 16, v32
    s_mov_b64 exec, -1
    K2_RANGE:
    v_subrev_u32 v28, s{sLO}, v{vT}
    v_cmp_gt_u32 vcc, s{sWID}, v28
    v_mov_b32 v28, 0xbfbfbfbf
    s_waitcnt lgkmcnt(0)
    v_cndmask_b32 v{vDL}, v28, v{vDL}, vcc
    s_branch K2_B0
    """)
    return a.text()
```

```python
import re
import sys

TRANS = ("v_exp_", "v_log_", "v_rcp_", "v_rsq_", "v_sqrt_", "v_sin_", "v_cos_")


def regs_of(tok):
    tok = tok.strip()
    neg = tok.startswith("-")
    if neg:
        tok = tok[1:]
    m = re.fullmatch(r"(?:abs|sext)\((.*)\)", tok)
    if m:
        tok = m.group(1)
    m = re.fullmatch(r"\|(.*)\|", tok)
    if m:
        tok = m.group(1)
    m = re.fullmatch(r"([vsa])\[(\d+):(\d+)\]", tok)
    if m:
        return [f"{m.group(1)}{i}" for i in range(int(m.group(2)), int(m.group(3)) + 1)]
    m = re.fullmatch(r"([vsa])(\d+)", tok)
    if m:
        return [tok]
    if tok == "vcc":
        return ["vcc"]
    if tok in ("vcc_lo", "vcc_hi"):
        return ["vcc"]
    if tok in ("exec", "exec_lo", "exec_hi"):
        return ["exec"]
    if tok == "m0":
        return ["m0"]
    return []


class Ins:
    def __init__(self, text, lineno):
        self.lineno = lineno
        self.text = text
        code, _, com = text.partition(";")
        self.tags_w = re.findall(r"@w:(\w+)", com)
        self.tags_r = re.findall(r"@r:(\w+)", com)
        self.sets = re.findall(r"@set:(\w+)=(\w+)", com)
        self.cond = re.findall(r"@if:(\w+)=(\d)", com)
        code = code.strip()
        parts = code.split(None, 1)
        self.op = parts[0]
        rest = parts[1] if len(parts) > 1 else ""
        ops = []
        depth = 0
        cur = ""
        for ch in rest:
            if ch == "[":
                depth += 1
            if ch == "]":
                depth -= 1
            if ch == "," and depth == 0:
                ops.append(cur.strip())
                cur = ""
            else:
                cur += ch
        if cur.strip():
            ops.append(cur.strip())
        self.mods = ""
        if ops:
            last = ops[-1].split(None, 1)
            ops[-1] = last[0]
            self.mods = last[1] if len(last) > 1 else ""
        self.ops = ops
        self.classify()

    def classify(self):
        op, ops = self.op, self.ops
        R = [regs_of(o) for o in ops]
        self.kind = "other"
        self.dst, self.src = [], []
        self.srcC = []
        self.lanesel = []
        self.ws = 1
        self.target = None
        flat = lambda L: [x for l in L for x in l]
        if op == "s_nop":
            self.ws = int(ops[0], 0) + 1
            self.kind = "nop"
        elif op.startswith("v_mfma"):
            self.kind = "mfma"
            self.dst = R[0]
            self.src = R[1] + R[2] + R[3]
            self.srcAB = R[1] + R[2]
            self.srcC = R[3]
            self.passes = 8 if "32x32" in op else 4
        elif op.startswith("v_smfmac"):
            self.kind = "mfma"
            self.dst = R[0]
            self.src = R[0] + R[1] + R[2] + R[3]
            self.srcAB = R[1] + R[2] + R[3]
            self.srcC = R[0]
            self.passes = 4
        elif op.startswith("v_cmp"):
            self.kind = "valu"
            self.dst = R[0] + (["exec"] if op.startswith("v_cmpx") else [])
            self.src = flat(R[1:])
        elif op in ("v_readlane_b32", "v_readfirstlane_b32"):
            self.kind = "valu"
            self.dst = R[0]
            self.src = flat(R[1:])
            if op == "v_readlane_b32":
                self.lanesel = R[2]
        elif op == "v_writelane_b32":
            self.kind = "valu"
            self.dst = R[0]
            self.src = flat(R)
            self.lanesel = R[2]
        elif op.startswith("v_"):
            self.kind = "valu"
            self.dst = R[0]
            self.src = flat(R[1:])
            if "_co_" in op or op.startswith("v_mad_u64"):
                self.dst = R[0] + R[1]
                self.src = flat(R[2:])
            if op.startswith(("v_fmac", "v_pk_fmac", "v_dot2c")) or "_dpp" in op or "row_" in self.mods or "quad_perm" in self.mods:
                self.src = self.src + R[0]
            if "UNUSED_PRESERVE" in self.mods:
                self.src = self.src + R[0]
            if op.startswith("v_permlane") or op.startswith("v_swap"):
                self.dst = R[0] + R[1]
                self.src = R[0] + R[1]
        elif op.startswith("ds_"):
            self.kind = "ds"
            if op.startswith(("ds_read", "ds_bpermute", "ds_permute", "ds_swizzle")) or "_rtn" in op:
                self.dst = R[0]
                self.src = flat(R[1:])
                if "d16" in op:
                    self.partial = True
            else:
                self.src = flat(R)
        elif op.startswith(("buffer_", "global_")):
            self.kind = "vm"
            if " lds" in " " + self.mods:
                self.src = flat(R) + ["m0"]
                self.isdma = True
            elif "_load" in op:
                self.dst = R[0]
                self.src = flat(R[1:])
            else:
                self.src = flat(R)
                self.stdata = R[0] if op.startswith("buffer_") else R[1]
                if "atomic" in op and "sc0" in self.mods:
                    self.dst = R[0]
        elif op.startswith(("s_load", "s_memtime", "s_memrealtime", "s_buffer_load")):
            self.kind = "smem"
            self.dst = R[0]
            self.src = flat(R[1:])
        elif op == "s_waitcnt":
            self.kind = "wait"
            t = " ".join(ops) + " " + self.mods
            m = re.search(r"vmcnt\((\d+)\)", t)
            self.vm = int(m.group(1)) if m else None
            m = re.search(r"lgkmcnt\((\d+)\)", t)
            self.lg = int(m.group(1)) if m else None
        elif op.startswith("s_cbranch") or op == "s_branch":
            self.kind = "branch"
            self.target = ops[0]
            if "vcc" in op:
                self.src = ["vcc"]
            if "exec" in op:
                self.src = ["exec"]
        elif op == "s_endpgm":
            self.kind = "end"
        elif op.startswith("s_cmp") or op.startswith("s_bitcmp"):
            self.kind = "salu"
            self.src = flat(R)
        elif op in ("s_barrier", "s_setprio", "s_sleep", "s_setreg_imm32_b32"):
            self.kind = "other"
        elif op.startswith("s_"):
            self.kind = "salu"
            self.dst = R[0] + (["exec"] if "saveexec" in op else [])
            self.src = flat(R[1:])
            if op in ("s_addk_i32", "s_mulk_i32", "s_bitset0_b32", "s_bitset1_b32", "s_bitset0_b64", "s_cmov_b32", "s_cmovk_i32"):
                self.src = self.src + R[0]
        else:
            raise ValueError(f"unknown op {op} line {self.lineno}")
        self.trans = op.startswith(TRANS)
        self.dpp = self.kind == "valu" and ("_dpp" in op or "row_" in self.mods or "quad_perm" in self.mods)
        self.dot = op.startswith("v_dot")
        m = re.search(r"dst_sel:(\w+)", self.mods)
        self.movesbits = bool(m and m.group(1) != "DWORD")
        m = re.search(r"op_sel:\[([\d,]+)\]", self.mods)
        if m and not op.startswith("v_pk_") and not self.dot and self.kind == "valu":
            bits = m.group(1).split(",")
            if len(bits) == len(self.ops) and bits[-1] == "1":
                self.movesbits = True


def parse(text):
    ins, labels = [], {}
    for n, line in enumerate(text.split("\n"), 1):
        s = line.strip()
        if not s or s.startswith((";", ".", "//")):
            continue
        m = re.fullmatch(r"([\w.$]+):\s*(;.*)?", s)
        if m:
            labels[m.group(1)] = len(ins)
            continue
        ins.append(Ins(s, n))
    return ins, labels


def succs(ins, labels, i):
    x = ins[i]
    if x.kind == "end":
        return []
    if x.kind == "branch":
        t = labels[x.target]
        return [t] if x.op == "s_branch" else [t, i + 1]
    return [i + 1] if i + 1 < len(ins) else []


def need(p, c):
    n = 0
    pd = set(p.dst)
    ov = lambda a, b: bool(set(a) & set(b))
    if p.kind == "valu":
        vd = {r for r in pd if r[0] in "va" and r != "vcc"}
        sd = {r for r in pd if r[0] == "s" or r == "vcc"}
        if c.kind == "mfma" and ov(vd, c.src):
            n = max(n, 3 if p.dot else 2)
        if c.kind == "mfma" and "exec" in pd:
            n = max(n, 4)
        if c.kind == "valu":
            if p.trans and not c.trans and ov(vd, c.src):
                n = max(n, 1)
            if p.movesbits and ov(vd, c.src + c.dst):
                n = max(n, 1)
            if c.op in ("v_readlane_b32", "v_readfirstlane_b32") and ov(vd, c.src):
                n = max(n, 1)
            if (c.dpp or c.op.startswith("v_permlane")) and ov(vd, c.src):
                n = max(n, 2)
            if ov(sd, c.src):
                n = max(n, 2)
            if ov(sd, c.lanesel):
                n = max(n, 4)
            if "exec" in pd and c.dpp:
                n = max(n, 5)
            if "exec" in pd and c.op.startswith(("v_readlane", "v_readfirstlane", "v_writelane", "v_permlane")):
                n = max(n, 4)
            if p.dot and ov(vd, c.src + c.dst):
                same = c.op == p.op and not ov(vd, regs_of(c.ops[1]) + regs_of(c.ops[2]))
                n = max(n, 0 if same else 3)
        if p.dot and c.kind in ("ds", "vm") and ov(vd, c.src + c.dst):
            n = max(n, 3)
        if c.kind == "vm" and ov(sd, c.src):
            n = max(n, 5)
        if c.kind in ("vm", "ds") and "exec" in pd:
            n = max(n, 5)
        if c.kind in ("salu", "branch", "smem") and ov(sd, c.src):
            n = max(n, 0)
    if p.kind in ("ds", "vm") and c.dpp and ov(pd, c.src):
        n = max(n, 0)
    if p.kind == "mfma":
        big = {4: 8, 8: 12}[p.passes]
        if c.kind == "mfma":
            if ov(pd, c.srcAB):
                n = max(n, big)
            if ov(pd, c.srcC):
                if not (c.srcC == p.dst and c.op == p.op):
                    n = max(n, {4: 8, 8: 12}[p.passes])
            elif ov(pd, c.dst):
                n = max(n, {4: 6, 8: 10}[p.passes])
        elif c.kind in ("valu", "ds", "vm"):
            if ov(pd, c.src + c.dst):
                n = max(n, big)
            if c.kind == "valu" and ov(p.srcC, c.dst):
                n = max(n, {4: 3, 8: 7}[p.passes])
    if p.kind == "salu" and "m0" in pd and c.kind == "vm" and getattr(c, "isdma", False):
        n = max(n, 1)
    if p.kind == "vm" and hasattr(p, "stdata") and len(p.stdata) >= 3 and ov(p.stdata, c.dst):
        n = max(n, 2 if c.kind in ("valu", "mfma") else 1)
    return n


def check_hazards(ins, labels):
    errs = []
    for i, p in enumerate(ins):
        if p.kind not in ("valu", "mfma", "salu", "vm"):
            continue
        stack = [(j, 0) for j in succs(ins, labels, i)]
        seen = {}
        while stack:
            j, d = stack.pop()
            if d >= 13 or seen.get(j, 99) <= d:
                continue
            seen[j] = d
            c = ins[j]
            k = need(p, c)
            if k > d:
                errs.append(f"hazard: line {p.lineno} `{p.text}` -> line {c.lineno} `{c.text}` need {k} have {d}")
            for q in succs(ins, labels, j):
                stack.append((q, d + c.ws))
    return errs


def check_waits(ins, labels, entry):
    errs = set()
    seen = set()
    stack = [(entry, (), (), (), ())]
    steps = 0
    while stack:
        i, vm, lg, sm, fl = stack.pop()
        key = (i, vm, lg, sm, fl)
        if key in seen:
            continue
        seen.add(key)
        steps += 1
        if steps > 3000000:
            errs.add("wait check: state limit reached")
            break
        x = ins[i]
        reads = set(x.src) | {"@" + t for t in x.tags_r}
        writes = set(x.dst) | {"@" + t for t in x.tags_w}
        for q, name in ((vm, "vm"), (lg, "lgkm"), (sm, "smem")):
            for j in q:
                o = ins[j]
                od = set(o.dst) | {"@" + t for t in o.tags_w}
                ord_ = {"@" + t for t in o.tags_r}
                samecls = (name == "vm" and x.kind == "vm") or (name == "lgkm" and x.kind == "ds")
                bad = od & reads
                if samecls and name == "lgkm":
                    bad = {r for r in bad if not r.startswith("@")}
                if not samecls:
                    bad = bad | (od & writes) | (ord_ & writes)
                if bad:
                    errs.add(f"wait: line {x.lineno} `{x.text}` uses {sorted(bad)} pending from line {o.lineno} `{o.text}` ({name})")
        if x.kind == "vm":
            vm = (vm + (i,))[-64:]
        elif x.kind == "ds":
            lg = (lg + (i,))[-40:]
        elif x.kind == "smem":
            sm = sm + (i,)
        elif x.kind == "wait":
            if x.vm is not None:
                vm = vm[len(vm) - x.vm:] if x.vm < len(vm) else vm
                if x.vm == 0:
                    vm = ()
            if x.lg is not None:
                if x.lg == 0:
                    lg, sm = (), ()
                elif not sm:
                    lg = lg[len(lg) - x.lg:] if x.lg < len(lg) else lg
                if x.lg > 15:
                    errs.add(f"lgkmcnt > 15 at line {x.lineno}")
        elif x.op == "s_barrier":
            for j in lg:
                o = ins[j]
                if not o.dst or "_rtn" in o.op:
                    if "nobar" not in o.text:
                        errs.add(f"barrier line {x.lineno}: LDS write pending from line {o.lineno} `{o.text}`")
        d = dict(fl)
        for k, v in x.sets:
            d.pop(k, None)
            if v != "x":
                d[k] = int(v)
        for n, q in enumerate(succs(ins, labels, i)):
            e = dict(d)
            ok = True
            for k, v in x.cond:
                want = int(v) if n == 0 else 1 - int(v)
                ok &= e.setdefault(k, want) == want
            if ok:
                stack.append((q, vm, lg, sm, tuple(sorted(e.items()))))
    return sorted(errs)


def lint(text, entries):
    ins, labels = parse(text)
    errs = check_hazards(ins, labels)
    for e in entries:
        errs += check_waits(ins, labels, labels[e])
    return errs


if __name__ == "__main__":
    t = open(sys.argv[1]).read()
    for e in lint(t, sys.argv[2:]):
        print(e)
```

```python
import os
import re
import sys

sys.path.insert(0, os.path.dirname(os.path.abspath(__file__)))
from common import *
from k1 import gen_k1
from k2 import gen_k2
from lint import lint

KD = """.amdhsa_kernel {name}
  .amdhsa_next_free_vgpr {vgpr}
  .amdhsa_next_free_sgpr 102
  .amdhsa_accum_offset {vgpr}
  .amdhsa_group_segment_fixed_size 0
  .amdhsa_kernarg_size 88
  .amdhsa_user_sgpr_count 2
  .amdhsa_user_sgpr_kernarg_segment_ptr 1
  .amdhsa_system_sgpr_workgroup_id_x 1
.end_amdhsa_kernel
"""


def build(cfg):
    ref = open(f"cdna_kernels/{NAME}.s.ref").read().split("\n")
    head = [l for l in ref if l.startswith(";") and "@launch" not in l]
    launches = [(K1, 57344), (K2, 163840)]
    if cfg.get("k1only"):
        launches = launches[:1]
    s = "\n".join(head) + "\n"
    for k, lds in launches:
        s += f"; @launch kernel={k} grid=(256,1,1) block=(1024,1,1) lds={lds}\n"
    s += '.amdgcn_target "amdgcn-amd-amdhsa--gfx950"\n.text\n'
    bodies = [(K1, gen_k1(cfg)), (K2, gen_k2(cfg))]
    for k, b in bodies:
        s += f".globl {k}\n.p2align 8\n.type {k},@function\n{k}:\n{b}"
    s += '.section .rodata,"a"\n'
    for k, _ in bodies:
        s += ".p2align 6\n" + KD.format(name=k, vgpr=128)
    errs = lint(re.sub(r's_mem(real)?time.*', 's_nop 0', s), [K1, K2])
    return s, errs


if __name__ == "__main__":
    cfg = {}
    out = "new.s"
    for arg in sys.argv[1:]:
        if "=" in arg:
            k, v = arg.split("=", 1)
            cfg[k] = int(v) if re.fullmatch(r"-?\d+", v) else v
        else:
            out = arg
    s, errs = build(cfg)
    for e in errs:
        print(e)
    open(out, "w").write(s)
    print("wrote", out, len(s), "bytes;", len(errs), "lint messages")
```

```python
from common import *


def echo_kernel(spec):
    k, i, lo, hi, nw, opw, opg = spec.split(",")
    k, i, lo, hi, nw = map(int, (k, i, lo, hi, nw))
    a = Asm()
    a(f"""
    s_cmp_lg_u32 s2, 0
    s_cbranch_scc1 KE_END
    s_load_dwordx2 s[4:5], s[0:1], 80
    s_memrealtime s[8:9]
    v_lshlrev_b32 v1, 10, v0
    s_waitcnt lgkmcnt(0)
    """)
    inv = {"last": "min", "first": "max"}
    for dst, (kk, ii, l, h, n, ow, og) in ((6, (0, 0, 0, 256, 12, "first", "first")), (7, (k, i, lo, hi, nw, opw, opg))):
        for j in range(4):
            a(f"v_add_u32 v2, {WS_DIAG + kk * 0x40000 + 65536 * j + 4 * ii}, v1")
            for w in range(n):
                a(f"global_load_dword v{16 + 16 * j + w}, v2, s[4:5] offset:{64 * w}")
        a("s_waitcnt vmcnt(0)")
        for j in range(4):
            for w in range(n):
                a(f"v_sub_u32 v{16 + 16 * j + w}, s8, v{16 + 16 * j + w}")
                if w:
                    a(f"v_{inv[ow]}_u32 v{16 + 16 * j}, v{16 + 16 * j}, v{16 + 16 * j + w}")
        a("s_nop 1")
        op = "s_add_u32" if og == "mean" else f"s_{inv[og]}_u32"
        for n_, wg in enumerate(range(l, h)):
            if n_ == 0:
                a(f"v_readlane_b32 s{dst}, v{16 + 16 * (wg // 64)}, {wg % 64}")
            else:
                a(f"v_readlane_b32 s12, v{16 + 16 * (wg // 64)}, {wg % 64}\n{op} s{dst}, s{dst}, s12")
        for n_ in range(256 - (h - l)):
            a("v_readlane_b32 s12, v16, 0\ns_add_u32 s13, s13, s12")
        if og == "mean":
            a(f"s_mul_hi_u32 s{dst}, s{dst}, {(1 << 32) // (h - l)}")
    a("""
    s_sub_u32 s6, s6, s7
    s_min_u32 s6, s6, 5000
    s_memrealtime s[8:9]
    s_waitcnt lgkmcnt(0)
    KE_L:
    s_memrealtime s[10:11]
    s_waitcnt lgkmcnt(0)
    s_sub_u32 s10, s10, s8
    s_cmp_lt_u32 s10, s6
    s_cbranch_scc1 KE_L
    KE_END:
    s_endpgm
    """)
    return a.text()
```

```python
import os
import re
import sys

sys.path.insert(0, os.path.dirname(os.path.abspath(__file__)))
from common import *
from k1 import gen_k1
from k2 import gen_k2
from lint import lint

KD = """.amdhsa_kernel {name}
  .amdhsa_next_free_vgpr {vgpr}
  .amdhsa_next_free_sgpr 102
  .amdhsa_accum_offset {vgpr}
  .amdhsa_group_segment_fixed_size 0
  .amdhsa_kernarg_size 88
  .amdhsa_user_sgpr_count 2
  .amdhsa_user_sgpr_kernarg_segment_ptr 1
  .amdhsa_system_sgpr_workgroup_id_x 1
.end_amdhsa_kernel
"""


def build(cfg):
    ref = open(f"cdna_kernels/{NAME}.s.ref").read().split("\n")
    head = [l for l in ref if l.startswith(";") and "@launch" not in l]
    launches = [(K1, 57344), (K2, 163840)]
    if cfg.get("k1only"):
        launches = launches[:1]
    s = "\n".join(head) + "\n"
    for k, lds in launches:
        s += f"; @launch kernel={k} grid=(256,1,1) block=(1024,1,1) lds={lds}\n"
    if cfg.get("echo"):
        s += "; @launch kernel=egnn_echo_kernel grid=(1,1,1) block=(64,1,1) lds=0\n"
    s += '.amdgcn_target "amdgcn-amd-amdhsa--gfx950"\n.text\n'
    bodies = [(K1, gen_k1(cfg)), (K2, gen_k2(cfg))]
    if cfg.get("echo"):
        from echo import echo_kernel
        bodies.append(("egnn_echo_kernel", echo_kernel(cfg["echo"], cfg)))
    for k, b in bodies:
        s += f".globl {k}\n.p2align 8\n.type {k},@function\n{k}:\n{b}"
    s += '.section .rodata,"a"\n'
    for k, _ in bodies:
        s += ".p2align 6\n" + KD.format(name=k, vgpr=128)
    errs = lint(re.sub(r's_mem(real)?time.*', 's_nop 0', s), [K1, K2])
    return s, errs


if __name__ == "__main__":
    cfg = {}
    out = "new.s"
    for arg in sys.argv[1:]:
        if "=" in arg:
            k, v = arg.split("=", 1)
            cfg[k] = int(v) if re.fullmatch(r"-?\d+", v) else v
        else:
            out = arg
    s, errs = build(cfg)
    for e in errs:
        print(e)
    open(out, "w").write(s)
    print("wrote", out, len(s), "bytes;", len(errs), "lint messages")
```

```python
from common import *


def gen_k1(cfg):
    a = Asm()
    CNT = 40960
    a(f"""
    s_load_dwordx16 s[4:19], s[0:1], 0
    s_load_dwordx2 s[20:21], s[0:1], 80
    v_lshrrev_b32 v1, 6, v0
    s_cmp_ge_u32 s2, 256
    s_cbranch_scc1 K1_END
    v_readfirstlane_b32 s3, v1
    s_cmp_ge_u32 s2, 125
    s_cbranch_scc1 K1_Q
    """)
    a(f"""
    s_mul_i32 s22, s2, 12800
    v_lshlrev_b32 v28, 4, v0
    v_add_u32 v2, s22, v28
    v_lshrrev_b32 v3, 1, v2
    v_cmp_gt_u32 vcc, 800, v0
    s_cmp_lt_u32 s3, 8
    s_cselect_b32 s23, 0xbfbfbfbf, 0
    s_cselect_b32 s26, 64, 0
    s_cselect_b32 s27, 0, {CNT - 8192}
    v_and_b32 v14, 0x3fe, v0
    v_mul_u32_u24 v14, s26, v14
    v_add3_u32 v14, v14, v28, s27
    v_mov_b32 v16, s23
    v_mov_b32 v17, s23
    v_mov_b32 v18, s23
    v_mov_b32 v19, s23
    s_mov_b64 s[24:25], vcc
    s_mov_b64 exec, vcc
    s_waitcnt lgkmcnt(0)
    s_cbranch_execz K1_PL
    global_load_dwordx4 v[4:7], v2, s[12:13]
    global_load_dwordx4 v[8:11], v2, s[10:11]
    global_load_dwordx2 v[12:13], v3, s[8:9]
    K1_PL:
    s_mov_b64 exec, -1
    ds_write_b128 v14, v[16:19]
    """)
    stamp(a, cfg, 0, 0, True)
    stamp(a, cfg, 0, 2)
    GA, TH, CA = 40, 44, 48
    a(f"""
    s_mul_i32 s22, s2, 160
    s_add_u32 s22, s22, {WS_REC}
    s_add_u32 s20, s20, s22
    s_addc_u32 s21, s21, 0
    s_movk_i32 s26, 19840
    s_movk_i32 s27, -40
    """)
    for i in range(3):
        q = "v0" if i == 0 else "v20"
        if i:
            a(f"v_add_u32 v20, {1024 * i}, v0")
        a(f"""
        v_mul_u32_u24 v21, 6554, {q}
        v_lshrrev_b32 v21, 16, v21
        v_lshlrev_b32 v22, 4, {q}
        v_mad_u32_u24 v{GA + i}, v21, s26, v22
        v_lshl_add_u32 v22, {q}, 2, -8
        v_mad_i32_i24 v{TH + i}, v21, s27, v22
        v_lshlrev_b32 v{CA + i}, 2, v21
        """)
    a(f"""
    s_mov_b32 s26, 342393
    s_movk_i32 s27, 12544
    s_mov_b32 s28, 0xffff0000
    v_mov_b32 v29, 1
    s_waitcnt lgkmcnt(0)
    s_barrier
    s_cmp_ge_u32 s3, 13
    s_cbranch_scc1 K1_PB
    s_mov_b64 exec, s[24:25]
    s_waitcnt vmcnt(2)
    """)
    stamp(a, cfg, 0, 3)
    for j in range(4):
        a(f"""
        v_mul_u32_u24 v{4 + j}, s26, v{4 + j}
        v_lshlrev_b32_sdwa v{14 + j}, 2, v{4 + j} {SD} src1_sel:BYTE_3
        ds_add_rtn_u32 v{18 + j}, v{14 + j}, v29 offset:{CNT}
        """)
    for j in range(4):
        a(f"""
        v_mul_hi_u32_u24 v{4 + j}, s27, v{4 + j}
        v_mul_u32_u24 v{14 + j}, 40, v{14 + j}
        """)
    a("s_waitcnt vmcnt(0)")
    for j in range(4):
        if j & 1:
            a(f"v_and_or_b32 v{8 + j}, v{12 + j // 2}, s28, v{8 + j}")
        else:
            a(f"v_lshl_or_b32 v{8 + j}, v{12 + j // 2}, 16, v{8 + j}")
    for j in range(4):
        a(f"""
        s_waitcnt lgkmcnt({3 + j})
        v_min_u32 v{18 + j}, 31, v{18 + j}
        v_add_u32 v22, v{14 + j}, v{18 + j}
        v_lshl_add_u32 v23, v{18 + j}, 2, v{14 + j}
        ds_write_b8 v22, v{4 + j}
        ds_write_b32 v23, v{8 + j} offset:32
        """)
    a(f"""
    s_mov_b64 exec, -1
    K1_PB:
    s_waitcnt vmcnt(0) lgkmcnt(0)
    s_barrier
    """)
    stamp(a, cfg, 0, 4)
    for i in range(3):
        a(f"ds_read_b32 v{CA + i}, v{CA + i} offset:{CNT}")
    for i in range(3):
        a(f"ds_read_b128 {vr(4 + 4 * i, 4)}, v28 offset:{16384 * i}")
    a(f"""
    s_waitcnt lgkmcnt(3)
    v_max3_u32 v20, v{CA}, v{CA + 1}, v{CA + 2}
    v_cmp_lt_u32 vcc, 32, v20
    """)
    for i in range(3):
        a(f"v_cmp_lt_i32 s[{30 + 2 * i}:{31 + 2 * i}], v{TH + i}, v{CA + i}")
    a("s_cbranch_vccnz K1_OVF\nK1_ST:")
    for i in range(3):
        if i == 2:
            a("s_cmp_ge_u32 s3, 8\ns_cbranch_scc1 K1_PE")
        a(f"""
        s_mov_b64 exec, s[{30 + 2 * i}:{31 + 2 * i}]
        s_waitcnt lgkmcnt({2 - i})
        global_store_dwordx4 v{GA + i}, {vr(4 + 4 * i, 4)}, s[20:21] sc1
        """)
    a("K1_PE:")
    if cfg.get("diag"):
        a("s_sub_u32 s20, s20, s22\ns_subb_u32 s21, s21, 0")
    stamp(a, cfg, 0, 5)
    stamp_out(a, cfg, 0, 20)
    a("s_endpgm\nK1_OVF:\ns_waitcnt lgkmcnt(0)")
    for i in range(3):
        a(f"""
        v_cmp_lt_u32 vcc, 32, v{CA + i}
        v_cmp_gt_i32 s[36:37], 0, v{TH + i}
        s_and_b64 exec, vcc, s[36:37]
        """)
        for k in range(4):
            a(f"v_mov_b32 v{4 + 4 * i + k}, -1")
        a("s_mov_b64 exec, -1")
    a("s_branch K1_ST")

    WL, HL = 0, 32768
    a(f"""
    K1_Q:
    s_setreg_imm32_b32 hwreg(HW_REG_MODE, 4, 2), 3
    v_and_b32 v1, 63, v0
    s_sub_u32 s37, s2, 125
    s_mul_i32 s22, s37, 96
    v_lshrrev_b32 v2, 4, v1
    v_and_b32 v3, 15, v1
    s_and_b32 s23, s3, 1
    s_lshl_b32 s24, s23, 2
    v_or_b32 v4, s24, v2
    v_lshlrev_b32 v4, 1, v4
    v_xor_b32 v4, v4, v3
    v_lshlrev_b32 v4, 4, v4
    v_lshl_add_u32 v4, v2, 8, v4
    s_lshl_b32 s24, s3, 11
    s_add_u32 s25, s24, 32768
    s_mov_b32 m0, s24
    v_lshrrev_b32 v5, 2, v1
    v_lshrrev_b32 v6, 5, v1
    v_lshlrev_b32 v6, 1, v6
    v_and_b32 v7, 3, v1
    v_xor_b32 v6, v6, v7
    v_lshlrev_b32 v6, 4, v6
    v_lshl_add_u32 v5, v5, 8, v6
    s_waitcnt lgkmcnt(0)
    """)
    srd(a, 28, 14, 258 * 256)
    a(f"""
    buffer_load_dwordx4 v4, s[28:31], s25 offen lds
    buffer_load_dwordx4 v4, s[28:31], s25 offen offset:1024 lds
    s_cmp_ge_u32 s3, 12
    s_cbranch_scc1 K1_AUX
    """)
    srd(a, 32, 4, N * 256)
    a(f"""
    s_lshr_b32 s26, s3, 1
    s_lshl_b32 s26, s26, 4
    s_add_u32 s26, s26, s22
    s_lshl_b32 s26, s26, 8
    s_lshl_b32 s27, s23, 7
    s_add_u32 s26, s26, s27
    s_add_u32 s27, s24, {HL}
    s_mov_b32 m0, s27
    s_add_u32 s36, s26, 64
    buffer_load_dwordx4 v5, s[32:35], s26 offen lds
    s_add_u32 s27, s27, 1024
    s_mov_b32 m0, s27
    s_nop 0
    buffer_load_dwordx4 v5, s[32:35], s36 offen lds
    """)
    stamp(a, cfg, 0, 0, True)
    stamp(a, cfg, 0, 2)
    a(f"""
    v_lshrrev_b32 v6, 3, v3
    v_lshlrev_b32 v6, 1, v6
    v_xor_b32 v6, v6, v2
    v_lshlrev_b32 v6, 4, v6
    v_lshl_add_u32 v6, v3, 6, v6
    s_lshr_b32 s27, s3, 1
    s_lshl_b32 s27, s27, 12
    v_add_u32 v6, s27, v6
    v_bfe_u32 v8, v1, 2, 2
    v_and_b32 v9, 1, v2
    v_xor_b32 v9, s23, v9
    v_lshl_or_b32 v9, v9, 2, v8
    v_lshlrev_b32 v9, 5, v9
    v_lshl_or_b32 v9, v7, 3, v9
    v_lshl_add_u32 v8, v2, 3, v8
    v_lshl_add_u32 v8, v8, 8, v9
    v_xor_b32 v9, 32, v8
    v_xor_b32 v10, 64, v8
    v_xor_b32 v11, 0x60, v8
    v_lshlrev_b32 v12, 3, v3
    v_lshl_add_u32 v12, v2, 10, v12
    v_add_u32 v12, s26, v12
    v_and_b32 v14, 1, v1
    v_mul_u32_u24 v14, 101, v14
    v_lshlrev_b32 v14, 23, v14
    v_sub_u32 v14, {f32(-LOG2E)}, v14
    s_mul_i32 s24, s37, 12
    s_add_u32 s24, s24, s3
    s_add_u32 s24, s24, {WS_FLG}
    v_mov_b32 v13, s24
    s_waitcnt vmcnt(0)
    s_barrier
    """)
    stamp(a, cfg, 0, 3)
    AF, BF, AC = 16, 32, 96
    for ks in range(4):
        a(f"ds_read_b128 v[{AF + 4 * ks}:{AF + 4 * ks + 3}], v6 offset:{HL + 1024 * ks}")
        for tt in range(4):
            for i in range(2):
                d = BF + 16 * ks + 4 * tt + 2 * i
                a(f"ds_read_b64_tr_b16 v[{d}:{d + 1}], v{8 + tt} offset:{WL + 8192 * ks + 1024 * i}")
        if ks >= 1:
            k = ks - 1
            a("s_waitcnt lgkmcnt(9)")
            for tt in range(4):
                c = "0" if k == 0 else vr(AC + 4 * tt, 4)
                a(f"v_mfma_f32_16x16x32_bf16 {vr(AC + 4 * tt, 4)}, {vr(AF + 4 * k, 4)}, {vr(BF + 16 * k + 4 * tt, 4)}, {c}")
    for tt in range(4):
        a(f"s_waitcnt lgkmcnt({6 - 2 * tt})")
        a(f"v_mfma_f32_16x16x32_bf16 {vr(AC + 4 * tt, 4)}, {vr(AF + 12, 4)}, {vr(BF + 48 + 4 * tt, 4)}, {vr(AC + 4 * tt, 4)}")
    a("s_nop 1")
    for tt in range(4):
        for k in (0, 2):
            a(f"v_pk_mul_f32 {vr(BF + 4 * tt + k, 2)}, {vr(AC + 4 * tt + k, 2)}, v[14:15] op_sel_hi:[1,0]")
    for r in range(4):
        a(f"""
        v_cvt_pk_bf16_f32 v{16 + 2 * r}, v{BF + r}, v{BF + 4 + r}
        v_cvt_pk_bf16_f32 v{17 + 2 * r}, v{BF + 8 + r}, v{BF + 12 + r}
        global_store_dwordx2 v12, v[{16 + 2 * r}:{17 + 2 * r}], s[20:21] offset:{256 * r} sc1
        """)
    a(f"v_pk_mul_f32 v[4:5], {vr(AC, 2)}, {vr(AC, 2)}")
    for k in range(1, 8):
        a(f"v_pk_fma_f32 v[4:5], {vr(AC + 2 * k, 2)}, {vr(AC + 2 * k, 2)}, v[4:5]")
    a(f"""
    v_add_f32 v4, v4, v5
    v_cmp_ngt_f32 vcc, {f32(64 * LN2 * LN2)}, v4
    s_bcnt1_i32_b64 s24, vcc
    v_mov_b32 v4, s24
    s_mov_b64 exec, 1
    global_store_byte v13, v4, s[20:21] sc1
    """)
    stamp(a, cfg, 0, 4)
    stamp_out(a, cfg, 0, 20)
    a("s_endpgm")

    a(f"""
    K1_AUX:
    s_cmp_eq_u32 s3, 12
    s_cbranch_scc1 K1_WF
    s_cmp_eq_u32 s3, 15
    s_cbranch_scc1 K1_IDLE
    s_mul_i32 s24, s3, 48
    s_add_u32 s24, s24, s22
    s_sub_u32 s24, s24, {13 * 48}
    s_sub_u32 s25, {N}, s24
    s_min_i32 s25, s25, 48
    v_add_u32 v4, s24, v1
    v_cmp_gt_i32 vcc, s25, v1
    v_mul_u32_u24 v5, 6, v4
    v_and_b32 v6, -4, v5
    v_lshlrev_b32 v5, 3, v5
    v_and_b32 v5, 16, v5
    v_lshlrev_b32 v7, 1, v4
    v_add_u32 v7, {WS_POS + 50000}, v7
    v_lshlrev_b32 v4, 2, v4
    v_add_u32 v4, {WS_POS}, v4
    s_cbranch_vccz K1_IDLE
    s_mov_b64 exec, vcc
    global_load_dwordx2 v[8:9], v6, s[6:7]
    s_waitcnt vmcnt(1)
    s_barrier
    s_waitcnt vmcnt(0)
    v_lshrrev_b64 v[8:9], v5, v[8:9]
    global_store_dword v4, v8, s[20:21] sc1
    global_store_short v7, v9, s[20:21] sc1
    s_branch K1_AEND
    K1_IDLE:
    s_waitcnt vmcnt(0)
    s_barrier
    s_branch K1_AEND
    K1_WF:
    v_and_b32 v6, 12, v3
    v_lshl_or_b32 v6, v7, 5, v6
    s_cmp_ge_u32 s37, 96
    s_cbranch_scc1 K1_SM
    s_bfe_u32 s22, s37, 0x30002
    s_and_b32 s23, s37, 3
    s_and_b32 s24, s37, 31
    s_lshl_b32 s24, s24, 10
    v_lshl_add_u32 v16, v1, 4, s24
    s_movk_i32 s25, 512
    s_movk_i32 s26, 1024
    s_lshl_b32 s24, s23, 13
    s_cmp_ge_u32 s37, 32
    s_cbranch_scc1 K1_M1
    s_lshr_b32 s27, s22, 2
    s_lshl_b32 s27, s27, 7
    s_add_u32 s24, s24, s27
    s_and_b32 s27, s22, 2
    s_lshl_b32 s27, s27, 3
    s_add_u32 s24, s24, s27
    s_and_b32 s27, s22, 1
    s_lshl_b32 s27, s27, 1
    s_add_u32 s24, s24, s27
    v_lshl_add_u32 v6, v2, 11, v6
    v_add_u32 v16, {WS_W1}, v16
    s_branch K1_WLD
    K1_M1:
    s_mov_b32 s28, s18
    s_mov_b32 s29, s19
    s_mov_b32 s30, 65536
    v_lshlrev_b32 v6, 1, v3
    s_cmp_ge_u32 s37, 64
    s_cbranch_scc1 K1_M2
    v_lshl_add_u32 v6, v2, 11, v6
    s_lshl_b32 s27, s22, 12
    s_lshl_b32 s36, s23, 6
    s_add_u32 s27, s27, s36
    s_add_u32 s27, s27, {QROWS * 256}
    v_lshl_add_u32 v16, v3, 8, s27
    v_lshl_add_u32 v16, v2, 4, v16
    s_branch K1_M3
    K1_M2:
    s_lshl_b32 s24, s23, 9
    s_add_u32 s24, s24, 32768
    s_movk_i32 s25, 2048
    s_movk_i32 s26, 16384
    v_lshl_add_u32 v6, v2, 12, v6
    v_add_u32 v16, {WS_WB}, v16
    K1_M3:
    s_lshl_b32 s27, s22, 5
    s_add_u32 s24, s24, s27
    K1_WLD:
    s_add_u32 s27, s25, s26
    s_add_u32 s25, s25, s24
    s_add_u32 s26, s26, s24
    s_add_u32 s27, s27, s24
    """)
    for j in range(8):
        a(f"buffer_load_ushort v{8 + j}, v6, s[28:31], s{24 + j // 2} offen offset:{256 * (j & 1)}")
    a(f"""
    s_waitcnt vmcnt(8)
    s_barrier
    s_waitcnt vmcnt(0)
    v_lshl_or_b32 v4, v9, 16, v8
    v_lshl_or_b32 v5, v11, 16, v10
    v_lshl_or_b32 v6, v13, 16, v12
    v_lshl_or_b32 v7, v15, 16, v14
    global_store_dwordx4 v16, v[4:7], s[20:21] sc1
    s_branch K1_AEND
    K1_SM:
    s_cmp_ge_u32 s37, 99
    s_cbranch_scc1 K1_CONST
    v_and_b32 v8, 2, v2
    v_lshl_or_b32 v6, v8, 3, v6
    v_and_b32 v8, 1, v2
    v_lshl_or_b32 v6, v8, 1, v6
    s_lshl_b32 s24, s37, 8
    s_add_u32 s25, s24, {65536 - 96 * 256}
    s_add_u32 s26, s14, s25
    s_addc_u32 s27, s15, 0
    s_cmp_eq_u32 s37, 98
    s_cselect_b32 s26, s16, s26
    s_cselect_b32 s27, s17, s27
    global_load_ushort v10, v6, s[26:27]
    global_load_ushort v11, v6, s[26:27] offset:128
    s_waitcnt vmcnt(2)
    s_barrier
    s_waitcnt vmcnt(0)
    v_lshlrev_b32 v10, 16, v10
    v_lshlrev_b32 v11, 16, v11
    s_cbranch_scc1 K1_WX
    s_cmp_eq_u32 s37, 96
    s_cselect_b32 s25, 1.0, {f32(-LOG2E)}
    s_cselect_b32 s26, {f32(32.0)}, {f32(15.0)}
    v_mul_f32 v10, s25, v10
    v_mul_f32 v11, s25, v11
    v_and_b32 v12, 0x7fffffff, v10
    v_and_b32 v13, 0x7fffffff, v11
    v_max_u32 v12, v12, v13
    v_mul_i32_i24 v8, -101, v8
    v_ldexp_f32 v10, v10, v8
    v_ldexp_f32 v11, v11, v8
    v_cvt_pk_bf16_f32 v10, v10, v11
    s_add_u32 s24, s24, {WS_SMALL + 1024 - 96 * 256}
    v_lshl_add_u32 v4, v1, 1, s24
    global_store_short v4, v10, s[20:21] sc1
    global_store_short_d16_hi v4, v10, s[20:21] offset:128 sc1
    """.replace(f"s_cselect_b32 s26, {f32(32.0)}, {f32(15.0)}", f"s_mov_b32 s26, {f32(15.0)}\ns_cmov_b32 s26, {f32(32.0)}"))
    scan64(a, 12, "v_max_u32")
    a(f"""
    s_lshl_b32 s24, s37, 2
    s_add_u32 s24, s24, {WS_THR - 96 * 4}
    v_rcp_f32 v12, v12
    v_mov_b32 v4, s24
    v_mul_f32 v12, s26, v12
    s_mov_b32 exec_lo, 0
    s_brev_b32 exec_hi, 1
    global_store_dword v4, v12, s[20:21] sc1
    s_branch K1_AEND
    K1_WX:
    v_mul_f32 v10, {f32(-LN2 * (1 + DELTA))}, v10
    v_mul_f32 v11, {f32(-LN2 * (1 + DELTA))}, v11
    v_lshlrev_b32 v4, 5, v3
    v_lshl_add_u32 v4, v2, 2, v4
    v_add_u32 v4, {WS_SMALL + 1536}, v4
    global_store_dword v4, v10, s[20:21] sc1
    global_store_dword v4, v11, s[20:21] offset:16 sc1
    s_branch K1_AEND
    K1_CONST:
    s_cmp_lg_u32 s37, 99
    s_cbranch_scc1 K1_IDLE
    v_cmp_eq_u32 vcc, 32, v1
    v_cmp_eq_u32 s[24:25], 33, v1
    v_mov_b32 v12, 0x3f80
    v_lshlrev_b32 v4, 4, v1
    v_add_u32 v4, {WS_SMALL}, v4
    v_cndmask_b32 v8, 0, v12, vcc
    v_cndmask_b32 v9, 0, v12, s[24:25]
    v_lshlrev_b32 v10, 16, v8
    v_lshlrev_b32 v11, 16, v9
    s_waitcnt vmcnt(0)
    s_barrier
    global_store_dwordx4 v4, v[8:11], s[20:21] sc1
    v_lshlrev_b32 v4, 3, v1
    v_add_u32 v4, {WS_SMALL + 2048}, v4
    v_lshlrev_b32 v12, 1, v1
    v_add_u32 v12, {QROWS}, v12
    v_add_u32 v13, 1, v12
    global_store_dwordx2 v4, v[12:13], s[20:21] sc1
    K1_AEND:
    """)
    stamp_out(a, cfg, 0, 20)
    a("K1_END:\ns_endpgm")
    t = a.text()
    return t if cfg.get("diag") else t.replace("s_branch K1_AEND", "s_endpgm")
```

```python
from common import *


def echo_kernel(spec):
    k, i, lo, hi, nw, opw, opg = spec.split(",")
    k, i, lo, hi, nw = map(int, (k, i, lo, hi, nw))
    a = Asm()
    a(f"""
    s_cmp_lg_u32 s2, 0
    s_cbranch_scc1 KE_END
    s_load_dwordx2 s[4:5], s[0:1], 80
    s_memrealtime s[8:9]
    v_lshlrev_b32 v1, 10, v0
    s_waitcnt lgkmcnt(0)
    """)
    inv = {"last": "min", "first": "max"}
    for dst, (kk, ii, l, h, n, ow, og) in ((6, (0, 0, 0, 256, 12, "first", "first")), (7, (k, i, lo, hi, nw, opw, opg))):
        for j in range(4):
            a(f"v_add_u32 v2, {WS_DIAG + kk * 0x40000 + 65536 * j + 4 * ii}, v1")
            for w in range(n):
                a(f"global_load_dword v{16 + 16 * j + w}, v2, s[4:5] offset:{64 * w}")
        a("s_waitcnt vmcnt(0)")
        for j in range(4):
            for w in range(n):
                a(f"v_sub_u32 v{16 + 16 * j + w}, s8, v{16 + 16 * j + w}")
                if w:
                    a(f"v_{inv[ow]}_u32 v{16 + 16 * j}, v{16 + 16 * j}, v{16 + 16 * j + w}")
        a("s_nop 1")
        op = "s_add_u32" if og == "mean" else f"s_{inv[og]}_u32"
        sel = list(range(l, h)) if h > 0 else list(range(l, 256, -h))
        for n_, wg in enumerate(sel):
            if n_ == 0:
                a(f"v_readlane_b32 s{dst}, v{16 + 16 * (wg // 64)}, {wg % 64}")
            else:
                a(f"v_readlane_b32 s12, v{16 + 16 * (wg // 64)}, {wg % 64}\n{op} s{dst}, s{dst}, s12")
        for n_ in range(256 - len(sel)):
            a("v_readlane_b32 s12, v16, 0\ns_add_u32 s13, s13, s12")
        if og == "mean":
            a(f"s_mul_hi_u32 s{dst}, s{dst}, {(1 << 32) // len(sel)}")
    a("""
    s_sub_u32 s6, s6, s7
    s_min_u32 s6, s6, 5000
    s_memrealtime s[8:9]
    s_waitcnt lgkmcnt(0)
    KE_L:
    s_memrealtime s[10:11]
    s_waitcnt lgkmcnt(0)
    s_sub_u32 s10, s10, s8
    s_cmp_lt_u32 s10, s6
    s_cbranch_scc1 KE_L
    KE_END:
    s_endpgm
    """)
    return a.text()
```

```python
from common import *


def echo_kernel(spec, cfg):
    k, i, lo, hi, nw, opw, opg, *mul = spec.split(",")
    mul = int(mul[0]) if mul else 1
    k, i, lo, hi, nw = map(int, (k, i, lo, hi, nw))
    a = Asm()
    a(f"""
    s_cmp_lg_u32 s2, 0
    s_cbranch_scc1 KE_END
    s_load_dwordx2 s[4:5], s[0:1], 80
    s_memrealtime s[8:9]
    v_lshlrev_b32 v1, 10, v0
    s_waitcnt lgkmcnt(0)
    """)
    inv = {"last": "min", "first": "max"}
    for dst, (kk, ii, l, h, n, ow, og) in ((6, (0, 0, 0, 256, 12, "first", "first")), (7, (k, i, lo, hi, nw, opw, opg))):
        for j in range(4):
            a(f"v_add_u32 v2, {WS_DIAG + kk * 0x40000 + 65536 * j + 4 * ii}, v1")
            for w in range(n):
                a(f"global_load_dword v{16 + 16 * j + w}, v2, s[4:5] offset:{64 * w}")
        a("s_waitcnt vmcnt(0)")
        for j in range(4):
            for w in range(n):
                a(f"v_sub_u32 v{16 + 16 * j + w}, s8, v{16 + 16 * j + w}")
                if w:
                    a(f"v_{inv[ow]}_u32 v{16 + 16 * j}, v{16 + 16 * j}, v{16 + 16 * j + w}")
        a("s_nop 1")
        op = "s_add_u32" if og == "mean" else f"s_{inv[og]}_u32"
        sel = list(range(l, h)) if h > 0 else list(range(l, 256, -h))
        for n_, wg in enumerate(sel):
            if n_ == 0:
                a(f"v_readlane_b32 s{dst}, v{16 + 16 * (wg // 64)}, {wg % 64}")
            else:
                a(f"v_readlane_b32 s12, v{16 + 16 * (wg // 64)}, {wg % 64}\n{op} s{dst}, s{dst}, s12")
        for n_ in range(256 - len(sel)):
            a("v_readlane_b32 s12, v16, 0\ns_add_u32 s13, s13, s12")
        if og == "mean":
            a(f"s_mul_hi_u32 s{dst}, s{dst}, {(1 << 32) // len(sel)}")
    a(f"""
    s_sub_u32 s6, s6, s7
    s_mul_i32 s6, s6, {mul}
    s_min_u32 s6, s6, 30000
    s_memrealtime s[8:9]
    s_waitcnt lgkmcnt(0)
    KE_L:
    s_memrealtime s[10:11]
    s_waitcnt lgkmcnt(0)
    s_sub_u32 s10, s10, s8
    s_cmp_lt_u32 s10, s6
    s_cbranch_scc1 KE_L
    KE_END:
    s_endpgm
    """)
    return a.text()
```

```python
import re
import struct

NAME = "standalone__cheap_equivariant_egnn__graph"
K1 = "egnn_prep_kernel"
K2 = NAME + "_kernel"

N, E = 12500, 400000
NB = 49
QROWS = 12576
WS_W1 = (QROWS + 128) * 256
WS_WB = WS_W1 + 32768
WS_POS = WS_WB + 32768
WS_SMALL = WS_POS + 74 * 1024
WS_THR = WS_SMALL + 2560
WS_FLG = WS_SMALL + 3072
WS_END = WS_FLG + 131 * 12
WS_REC = 0x400000
WS_DIAG = 0x900000
OOB = 0x30000
LOG2E = 1.4426950408889634
LN2 = 0.6931471805599453
DELTA = 0.7213475 / 256
TINY = 2.0 ** -101


def f32(x):
    return "0x%08x" % struct.unpack("<I", struct.pack("<f", x))[0]


def vr(a, n=1):
    return f"v{a}" if n == 1 else f"v[{a}:{a + n - 1}]"


def sr(a, n=1):
    return f"s{a}" if n == 1 else f"s[{a}:{a + n - 1}]"


class Asm:
    def __init__(self):
        self.L = []

    def __call__(self, text):
        for line in text.split("\n"):
            s = line.strip()
            if not s:
                continue
            self.L.append(s if re.fullmatch(r"[\w.$]+:", s) else "    " + s)

    def text(self):
        return "\n".join(self.L) + "\n"


def lines(text):
    return [x.strip() for x in text.split("\n") if x.strip()]


def srd(a, d, base, nrec):
    a(f"s_mov_b32 s{d}, s{base}\ns_mov_b32 s{d + 1}, s{base + 1}")
    a(f"s_mov_b32 s{d + 2}, {nrec}\ns_mov_b32 s{d + 3}, 0x20000")


def scan64(a, v, op="v_add_u32", fill=()):
    fill = list(fill)
    for c in ("row_shr:1 row_mask:0xf", "row_shr:2 row_mask:0xf", "row_shr:4 row_mask:0xf", "row_shr:8 row_mask:0xf",
              "row_bcast:15 row_mask:0xa", "row_bcast:31 row_mask:0xc"):
        if len(fill) >= 2:
            a(fill.pop(0))
            a(fill.pop(0))
        else:
            a("s_nop 1")
        a(f"{op}_dpp v{v}, v{v}, v{v} {c} bank_mask:0xf")
    for x in fill:
        a(x)


SD = "dst_sel:DWORD dst_unused:UNUSED_PAD src0_sel:DWORD"
STAMP_REGS = {0: [90, 92, 94, 96, 98, 100, 88, 86], 1: [90, 92, 94, 96, 98, 100, 6, 14, 16, 18, 8, 10, 12]}


def stamp(a, cfg, kern, idx, real=False):
    if cfg.get("diag"):
        r = STAMP_REGS[kern][idx]
        a(f"{'s_memrealtime' if real or cfg['diag'] == 2 else 's_memtime'} s[{r}:{r + 1}]")


def stamp_out(a, cfg, kern, ws):
    if not cfg.get("diag"):
        return
    regs = STAMP_REGS[kern]
    a(f"""
    s_waitcnt vmcnt(0)
    s_memrealtime s[{regs[1]}:{regs[1] + 1}]
    s_lshl_b32 s0, s2, 4
    s_add_u32 s0, s0, s3
    s_lshl_b32 s0, s0, 6
    s_add_u32 s0, s0, {WS_DIAG + kern * 0x40000}
    s_waitcnt lgkmcnt(0)
    s_mov_b64 exec, 1
    v_mov_b32 v0, s0
    """)
    for i, r in enumerate(regs):
        a(f"v_mov_b32 v1, s{r}\nglobal_store_dword v0, v1, s[{ws}:{ws + 1}] offset:{4 * i}")


def wsoff(cfg, r):
    o = cfg.get("wsoff", 0) << 20
    return f"s_add_u32 s{r}, s{r}, {o}\ns_addc_u32 s{r + 1}, s{r + 1}, 0" if o else ""
```

```python
from common import *


def warm(cfg, k):
    if not cfg.get("warm"):
        return ""
    return f"""s_cmp_lg_u32 s3, 15
    s_cbranch_scc1 K1_NW{k}
    v_and_b32 v60, 63, v0
    v_lshlrev_b32 v60, {cfg['warm']}, v60
    v_add_u32 v60, 0x3ff80, v60
    s_mov_b64 exec, {(1 << (0x900000 >> cfg['warm'])) - 1 if cfg['warm'] > 18 else -1}
    global_load_dword v60, v60, s[20:21]
    s_mov_b64 exec, -1
    K1_NW{k}:"""


def gen_k1(cfg):
    a = Asm()
    CNT = 40960
    a(f"""
    s_load_dwordx16 s[4:19], s[0:1], 0
    s_load_dwordx2 s[20:21], s[0:1], 80
    v_lshrrev_b32 v1, 6, v0
    s_cmp_ge_u32 s2, 256
    s_cbranch_scc1 K1_END
    v_readfirstlane_b32 s3, v1
    s_cmp_ge_u32 s2, 125
    s_cbranch_scc1 K1_Q
    """)
    a(f"""
    s_mul_i32 s22, s2, 12800
    v_lshlrev_b32 v28, 4, v0
    v_add_u32 v2, s22, v28
    v_lshrrev_b32 v3, 1, v2
    v_cmp_gt_u32 vcc, 800, v0
    s_cmp_lt_u32 s3, 8
    s_cselect_b32 s23, 0xbfbfbfbf, 0
    s_cselect_b32 s26, 64, 0
    s_cselect_b32 s27, 0, {CNT - 8192}
    v_and_b32 v14, 0x3fe, v0
    v_mul_u32_u24 v14, s26, v14
    v_add3_u32 v14, v14, v28, s27
    v_mov_b32 v16, s23
    v_mov_b32 v17, s23
    v_mov_b32 v18, s23
    v_mov_b32 v19, s23
    s_mov_b64 s[24:25], vcc
    s_mov_b64 exec, vcc
    s_waitcnt lgkmcnt(0)
    {wsoff(cfg, 20)}
    s_cbranch_execz K1_PL
    global_load_dwordx4 v[4:7], v2, s[12:13]
    global_load_dwordx4 v[8:11], v2, s[10:11]
    global_load_dwordx2 v[12:13], v3, s[8:9]
    K1_PL:
    s_mov_b64 exec, -1
    {warm(cfg, 0)}
    ds_write_b128 v14, v[16:19]
    """)
    stamp(a, cfg, 0, 0, True)
    stamp(a, cfg, 0, 2)
    GA, TH, CA = 40, 44, 48
    a(f"""
    s_mul_i32 s22, s2, 160
    s_add_u32 s22, s22, {WS_REC}
    s_add_u32 s20, s20, s22
    s_addc_u32 s21, s21, 0
    s_movk_i32 s26, 19840
    s_movk_i32 s27, -40
    """)
    for i in range(3):
        q = "v0" if i == 0 else "v20"
        if i:
            a(f"v_add_u32 v20, {1024 * i}, v0")
        a(f"""
        v_mul_u32_u24 v21, 6554, {q}
        v_lshrrev_b32 v21, 16, v21
        v_lshlrev_b32 v22, 4, {q}
        v_mad_u32_u24 v{GA + i}, v21, s26, v22
        v_lshl_add_u32 v22, {q}, 2, -8
        v_mad_i32_i24 v{TH + i}, v21, s27, v22
        v_lshlrev_b32 v{CA + i}, 2, v21
        """)
    a(f"""
    s_mov_b32 s26, 342393
    s_movk_i32 s27, 12544
    s_mov_b32 s28, 0xffff0000
    v_mov_b32 v29, 1
    s_waitcnt lgkmcnt(0)
    s_barrier
    s_cmp_ge_u32 s3, 13
    s_cbranch_scc1 K1_PB
    s_mov_b64 exec, s[24:25]
    s_waitcnt vmcnt(2)
    """)
    stamp(a, cfg, 0, 3)
    for j in range(4):
        a(f"""
        v_mul_u32_u24 v{4 + j}, s26, v{4 + j}
        v_lshlrev_b32_sdwa v{14 + j}, 2, v{4 + j} {SD} src1_sel:BYTE_3
        ds_add_rtn_u32 v{18 + j}, v{14 + j}, v29 offset:{CNT}
        """)
    for j in range(4):
        a(f"""
        v_mul_hi_u32_u24 v{4 + j}, s27, v{4 + j}
        v_mul_u32_u24 v{14 + j}, 40, v{14 + j}
        """)
    a("s_waitcnt vmcnt(0)")
    for j in range(4):
        if j & 1:
            a(f"v_and_or_b32 v{8 + j}, v{12 + j // 2}, s28, v{8 + j}")
        else:
            a(f"v_lshl_or_b32 v{8 + j}, v{12 + j // 2}, 16, v{8 + j}")
    for j in range(4):
        a(f"""
        s_waitcnt lgkmcnt({3 + j})
        v_min_u32 v{18 + j}, 31, v{18 + j}
        v_add_u32 v22, v{14 + j}, v{18 + j}
        v_lshl_add_u32 v23, v{18 + j}, 2, v{14 + j}
        ds_write_b8 v22, v{4 + j}
        ds_write_b32 v23, v{8 + j} offset:32
        """)
    a(f"""
    s_mov_b64 exec, -1
    K1_PB:
    s_waitcnt vmcnt(0) lgkmcnt(0)
    s_barrier
    """)
    stamp(a, cfg, 0, 4)
    for i in range(3):
        a(f"ds_read_b32 v{CA + i}, v{CA + i} offset:{CNT}")
    for i in range(3):
        a(f"ds_read_b128 {vr(4 + 4 * i, 4)}, v28 offset:{16384 * i}")
    a(f"""
    s_waitcnt lgkmcnt(3)
    v_max3_u32 v20, v{CA}, v{CA + 1}, v{CA + 2}
    v_cmp_lt_u32 vcc, 32, v20
    """)
    for i in range(3):
        a(f"v_cmp_lt_i32 s[{30 + 2 * i}:{31 + 2 * i}], v{TH + i}, v{CA + i}")
    a("s_cbranch_vccnz K1_OVF\nK1_ST:")
    for i in range(3):
        if i == 2:
            a("s_cmp_ge_u32 s3, 8\ns_cbranch_scc1 K1_PE")
        a(f"""
        s_mov_b64 exec, s[{30 + 2 * i}:{31 + 2 * i}]
        s_waitcnt lgkmcnt({2 - i})
        global_store_dwordx4 v{GA + i}, {vr(4 + 4 * i, 4)}, s[20:21] sc1
        """)
    a("K1_PE:")
    if cfg.get("diag"):
        a("s_sub_u32 s20, s20, s22\ns_subb_u32 s21, s21, 0")
    stamp(a, cfg, 0, 5)
    stamp_out(a, cfg, 0, 20)
    a("s_endpgm\nK1_OVF:\ns_waitcnt lgkmcnt(0)")
    for i in range(3):
        a(f"""
        v_cmp_lt_u32 vcc, 32, v{CA + i}
        v_cmp_gt_i32 s[36:37], 0, v{TH + i}
        s_and_b64 exec, vcc, s[36:37]
        """)
        for k in range(4):
            a(f"v_mov_b32 v{4 + 4 * i + k}, -1")
        a("s_mov_b64 exec, -1")
    a("s_branch K1_ST")

    WL, HL = 0, 32768
    a(f"""
    K1_Q:
    s_setreg_imm32_b32 hwreg(HW_REG_MODE, 4, 2), 3
    v_and_b32 v1, 63, v0
    s_sub_u32 s37, s2, 125
    s_mul_i32 s22, s37, 96
    v_lshrrev_b32 v2, 4, v1
    v_and_b32 v3, 15, v1
    s_and_b32 s23, s3, 1
    s_lshl_b32 s24, s23, 2
    v_or_b32 v4, s24, v2
    v_lshlrev_b32 v4, 1, v4
    v_xor_b32 v4, v4, v3
    v_lshlrev_b32 v4, 4, v4
    v_lshl_add_u32 v4, v2, 8, v4
    s_lshl_b32 s24, s3, 11
    s_add_u32 s25, s24, 32768
    s_mov_b32 m0, s24
    v_lshrrev_b32 v5, 2, v1
    v_lshrrev_b32 v6, 5, v1
    v_lshlrev_b32 v6, 1, v6
    v_and_b32 v7, 3, v1
    v_xor_b32 v6, v6, v7
    v_lshlrev_b32 v6, 4, v6
    v_lshl_add_u32 v5, v5, 8, v6
    s_waitcnt lgkmcnt(0)
    {wsoff(cfg, 20)}
    """)
    srd(a, 28, 14, 258 * 256)
    a(f"""
    buffer_load_dwordx4 v4, s[28:31], s25 offen lds
    buffer_load_dwordx4 v4, s[28:31], s25 offen offset:1024 lds
    s_cmp_ge_u32 s3, 12
    s_cbranch_scc1 K1_AUX
    """)
    srd(a, 32, 4, N * 256)
    a(f"""
    s_lshr_b32 s26, s3, 1
    s_lshl_b32 s26, s26, 4
    s_add_u32 s26, s26, s22
    s_lshl_b32 s26, s26, 8
    s_lshl_b32 s27, s23, 7
    s_add_u32 s26, s26, s27
    s_add_u32 s27, s24, {HL}
    s_mov_b32 m0, s27
    s_add_u32 s36, s26, 64
    buffer_load_dwordx4 v5, s[32:35], s26 offen lds
    s_add_u32 s27, s27, 1024
    s_mov_b32 m0, s27
    s_nop 0
    buffer_load_dwordx4 v5, s[32:35], s36 offen lds
    """)
    stamp(a, cfg, 0, 0, True)
    stamp(a, cfg, 0, 2)
    a(f"""
    v_lshrrev_b32 v6, 3, v3
    v_lshlrev_b32 v6, 1, v6
    v_xor_b32 v6, v6, v2
    v_lshlrev_b32 v6, 4, v6
    v_lshl_add_u32 v6, v3, 6, v6
    s_lshr_b32 s27, s3, 1
    s_lshl_b32 s27, s27, 12
    v_add_u32 v6, s27, v6
    v_bfe_u32 v8, v1, 2, 2
    v_and_b32 v9, 1, v2
    v_xor_b32 v9, s23, v9
    v_lshl_or_b32 v9, v9, 2, v8
    v_lshlrev_b32 v9, 5, v9
    v_lshl_or_b32 v9, v7, 3, v9
    v_lshl_add_u32 v8, v2, 3, v8
    v_lshl_add_u32 v8, v8, 8, v9
    v_xor_b32 v9, 32, v8
    v_xor_b32 v10, 64, v8
    v_xor_b32 v11, 0x60, v8
    v_lshlrev_b32 v12, 3, v3
    v_lshl_add_u32 v12, v2, 10, v12
    v_add_u32 v12, s26, v12
    v_and_b32 v14, 1, v1
    v_mul_u32_u24 v14, 101, v14
    v_lshlrev_b32 v14, 23, v14
    v_sub_u32 v14, {f32(-LOG2E)}, v14
    s_mul_i32 s24, s37, 12
    s_add_u32 s24, s24, s3
    s_add_u32 s24, s24, {WS_FLG}
    v_mov_b32 v13, s24
    s_waitcnt vmcnt(0)
    s_barrier
    """)
    stamp(a, cfg, 0, 3)
    AF, BF, AC = 16, 32, 96
    for ks in range(4):
        a(f"ds_read_b128 v[{AF + 4 * ks}:{AF + 4 * ks + 3}], v6 offset:{HL + 1024 * ks}")
        for tt in range(4):
            for i in range(2):
                d = BF + 16 * ks + 4 * tt + 2 * i
                a(f"ds_read_b64_tr_b16 v[{d}:{d + 1}], v{8 + tt} offset:{WL + 8192 * ks + 1024 * i}")
        if ks >= 1:
            k = ks - 1
            a("s_waitcnt lgkmcnt(9)")
            for tt in range(4):
                c = "0" if k == 0 else vr(AC + 4 * tt, 4)
                a(f"v_mfma_f32_16x16x32_bf16 {vr(AC + 4 * tt, 4)}, {vr(AF + 4 * k, 4)}, {vr(BF + 16 * k + 4 * tt, 4)}, {c}")
    for tt in range(4):
        a(f"s_waitcnt lgkmcnt({6 - 2 * tt})")
        a(f"v_mfma_f32_16x16x32_bf16 {vr(AC + 4 * tt, 4)}, {vr(AF + 12, 4)}, {vr(BF + 48 + 4 * tt, 4)}, {vr(AC + 4 * tt, 4)}")
    a("s_nop 1")
    for tt in range(4):
        for k in (0, 2):
            a(f"v_pk_mul_f32 {vr(BF + 4 * tt + k, 2)}, {vr(AC + 4 * tt + k, 2)}, v[14:15] op_sel_hi:[1,0]")
    for r in range(4):
        a(f"""
        v_cvt_pk_bf16_f32 v{16 + 2 * r}, v{BF + r}, v{BF + 4 + r}
        v_cvt_pk_bf16_f32 v{17 + 2 * r}, v{BF + 8 + r}, v{BF + 12 + r}
        global_store_dwordx2 v12, v[{16 + 2 * r}:{17 + 2 * r}], s[20:21] offset:{256 * r} sc1
        """)
    a(f"v_pk_mul_f32 v[4:5], {vr(AC, 2)}, {vr(AC, 2)}")
    for k in range(1, 8):
        a(f"v_pk_fma_f32 v[4:5], {vr(AC + 2 * k, 2)}, {vr(AC + 2 * k, 2)}, v[4:5]")
    a(f"""
    v_add_f32 v4, v4, v5
    v_cmp_ngt_f32 vcc, {f32(64 * LN2 * LN2)}, v4
    s_bcnt1_i32_b64 s24, vcc
    v_mov_b32 v4, s24
    s_mov_b64 exec, 1
    global_store_byte v13, v4, s[20:21] sc1
    """)
    stamp(a, cfg, 0, 4)
    stamp_out(a, cfg, 0, 20)
    a("s_endpgm")

    a(f"""
    K1_AUX:
    {warm(cfg, 1)}
    s_cmp_eq_u32 s3, 12
    s_cbranch_scc1 K1_WF
    s_cmp_eq_u32 s3, 15
    s_cbranch_scc1 K1_IDLE
    s_mul_i32 s24, s3, 48
    s_add_u32 s24, s24, s22
    s_sub_u32 s24, s24, {13 * 48}
    s_sub_u32 s25, {N}, s24
    s_min_i32 s25, s25, 48
    v_add_u32 v4, s24, v1
    v_cmp_gt_i32 vcc, s25, v1
    v_mul_u32_u24 v5, 6, v4
    v_and_b32 v6, -4, v5
    v_lshlrev_b32 v5, 3, v5
    v_and_b32 v5, 16, v5
    v_lshlrev_b32 v7, 1, v4
    v_add_u32 v7, {WS_POS + 50000}, v7
    v_lshlrev_b32 v4, 2, v4
    v_add_u32 v4, {WS_POS}, v4
    s_cbranch_vccz K1_IDLE
    s_mov_b64 exec, vcc
    global_load_dwordx2 v[8:9], v6, s[6:7]
    s_waitcnt vmcnt(1)
    s_barrier
    s_waitcnt vmcnt(0)
    v_lshrrev_b64 v[8:9], v5, v[8:9]
    global_store_dword v4, v8, s[20:21] sc1
    global_store_short v7, v9, s[20:21] sc1
    s_branch K1_AEND
    K1_IDLE:
    s_waitcnt vmcnt(0)
    s_barrier
    s_branch K1_AEND
    K1_WF:
    v_and_b32 v6, 12, v3
    v_lshl_or_b32 v6, v7, 5, v6
    s_cmp_ge_u32 s37, 96
    s_cbranch_scc1 K1_SM
    s_bfe_u32 s22, s37, 0x30002
    s_and_b32 s23, s37, 3
    s_and_b32 s24, s37, 31
    s_lshl_b32 s24, s24, 10
    v_lshl_add_u32 v16, v1, 4, s24
    s_movk_i32 s25, 512
    s_movk_i32 s26, 1024
    s_lshl_b32 s24, s23, 13
    s_cmp_ge_u32 s37, 32
    s_cbranch_scc1 K1_M1
    s_lshr_b32 s27, s22, 2
    s_lshl_b32 s27, s27, 7
    s_add_u32 s24, s24, s27
    s_and_b32 s27, s22, 2
    s_lshl_b32 s27, s27, 3
    s_add_u32 s24, s24, s27
    s_and_b32 s27, s22, 1
    s_lshl_b32 s27, s27, 1
    s_add_u32 s24, s24, s27
    v_lshl_add_u32 v6, v2, 11, v6
    v_add_u32 v16, {WS_W1}, v16
    s_branch K1_WLD
    K1_M1:
    s_mov_b32 s28, s18
    s_mov_b32 s29, s19
    s_mov_b32 s30, 65536
    v_lshlrev_b32 v6, 1, v3
    s_cmp_ge_u32 s37, 64
    s_cbranch_scc1 K1_M2
    v_lshl_add_u32 v6, v2, 11, v6
    s_lshl_b32 s27, s22, 12
    s_lshl_b32 s36, s23, 6
    s_add_u32 s27, s27, s36
    s_add_u32 s27, s27, {QROWS * 256}
    v_lshl_add_u32 v16, v3, 8, s27
    v_lshl_add_u32 v16, v2, 4, v16
    s_branch K1_M3
    K1_M2:
    s_lshl_b32 s24, s23, 9
    s_add_u32 s24, s24, 32768
    s_movk_i32 s25, 2048
    s_movk_i32 s26, 16384
    v_lshl_add_u32 v6, v2, 12, v6
    v_add_u32 v16, {WS_WB}, v16
    K1_M3:
    s_lshl_b32 s27, s22, 5
    s_add_u32 s24, s24, s27
    K1_WLD:
    s_add_u32 s27, s25, s26
    s_add_u32 s25, s25, s24
    s_add_u32 s26, s26, s24
    s_add_u32 s27, s27, s24
    """)
    for j in range(8):
        a(f"buffer_load_ushort v{8 + j}, v6, s[28:31], s{24 + j // 2} offen offset:{256 * (j & 1)}")
    a(f"""
    s_waitcnt vmcnt(8)
    s_barrier
    s_waitcnt vmcnt(0)
    v_lshl_or_b32 v4, v9, 16, v8
    v_lshl_or_b32 v5, v11, 16, v10
    v_lshl_or_b32 v6, v13, 16, v12
    v_lshl_or_b32 v7, v15, 16, v14
    global_store_dwordx4 v16, v[4:7], s[20:21] sc1
    s_branch K1_AEND
    K1_SM:
    s_cmp_ge_u32 s37, 99
    s_cbranch_scc1 K1_CONST
    v_and_b32 v8, 2, v2
    v_lshl_or_b32 v6, v8, 3, v6
    v_and_b32 v8, 1, v2
    v_lshl_or_b32 v6, v8, 1, v6
    s_lshl_b32 s24, s37, 8
    s_add_u32 s25, s24, {65536 - 96 * 256}
    s_add_u32 s26, s14, s25
    s_addc_u32 s27, s15, 0
    s_cmp_eq_u32 s37, 98
    s_cselect_b32 s26, s16, s26
    s_cselect_b32 s27, s17, s27
    global_load_ushort v10, v6, s[26:27]
    global_load_ushort v11, v6, s[26:27] offset:128
    s_waitcnt vmcnt(2)
    s_barrier
    s_waitcnt vmcnt(0)
    v_lshlrev_b32 v10, 16, v10
    v_lshlrev_b32 v11, 16, v11
    s_cbranch_scc1 K1_WX
    s_cmp_eq_u32 s37, 96
    s_cselect_b32 s25, 1.0, {f32(-LOG2E)}
    s_cselect_b32 s26, {f32(32.0)}, {f32(15.0)}
    v_mul_f32 v10, s25, v10
    v_mul_f32 v11, s25, v11
    v_and_b32 v12, 0x7fffffff, v10
    v_and_b32 v13, 0x7fffffff, v11
    v_max_u32 v12, v12, v13
    v_mul_i32_i24 v8, -101, v8
    v_ldexp_f32 v10, v10, v8
    v_ldexp_f32 v11, v11, v8
    v_cvt_pk_bf16_f32 v10, v10, v11
    s_add_u32 s24, s24, {WS_SMALL + 1024 - 96 * 256}
    v_lshl_add_u32 v4, v1, 1, s24
    global_store_short v4, v10, s[20:21] sc1
    global_store_short_d16_hi v4, v10, s[20:21] offset:128 sc1
    """.replace(f"s_cselect_b32 s26, {f32(32.0)}, {f32(15.0)}", f"s_mov_b32 s26, {f32(15.0)}\ns_cmov_b32 s26, {f32(32.0)}"))
    scan64(a, 12, "v_max_u32")
    a(f"""
    s_lshl_b32 s24, s37, 2
    s_add_u32 s24, s24, {WS_THR - 96 * 4}
    v_rcp_f32 v12, v12
    v_mov_b32 v4, s24
    v_mul_f32 v12, s26, v12
    s_mov_b32 exec_lo, 0
    s_brev_b32 exec_hi, 1
    global_store_dword v4, v12, s[20:21] sc1
    s_branch K1_AEND
    K1_WX:
    v_mul_f32 v10, {f32(-LN2 * (1 + DELTA))}, v10
    v_mul_f32 v11, {f32(-LN2 * (1 + DELTA))}, v11
    v_lshlrev_b32 v4, 5, v3
    v_lshl_add_u32 v4, v2, 2, v4
    v_add_u32 v4, {WS_SMALL + 1536}, v4
    global_store_dword v4, v10, s[20:21] sc1
    global_store_dword v4, v11, s[20:21] offset:16 sc1
    s_branch K1_AEND
    K1_CONST:
    s_cmp_lg_u32 s37, 99
    s_cbranch_scc1 K1_IDLE
    v_cmp_eq_u32 vcc, 32, v1
    v_cmp_eq_u32 s[24:25], 33, v1
    v_mov_b32 v12, 0x3f80
    v_lshlrev_b32 v4, 4, v1
    v_add_u32 v4, {WS_SMALL}, v4
    v_cndmask_b32 v8, 0, v12, vcc
    v_cndmask_b32 v9, 0, v12, s[24:25]
    v_lshlrev_b32 v10, 16, v8
    v_lshlrev_b32 v11, 16, v9
    s_waitcnt vmcnt(0)
    s_barrier
    global_store_dwordx4 v4, v[8:11], s[20:21] sc1
    v_lshlrev_b32 v4, 3, v1
    v_add_u32 v4, {WS_SMALL + 2048}, v4
    v_lshlrev_b32 v12, 1, v1
    v_add_u32 v12, {QROWS}, v12
    v_add_u32 v13, 1, v12
    global_store_dwordx2 v4, v[12:13], s[20:21] sc1
    K1_AEND:
    """)
    stamp_out(a, cfg, 0, 20)
    a("K1_END:\ns_endpgm")
    t = a.text()
    return t if cfg.get("diag") else t.replace("s_branch K1_AEND", "s_endpgm")
```

```python
import os
import re
import struct

NAME = "standalone__cheap_equivariant_egnn__graph"
K1 = "egnn_prep_kernel"
K2 = NAME + "_kernel"

N, E = 12500, 400000
NB = 49
QROWS = 12576
WS_W1 = (QROWS + 128) * 256
WS_WB = WS_W1 + 32768
WS_POS = WS_WB + 32768
WS_SMALL = WS_POS + 74 * 1024
WS_THR = WS_SMALL + 2560
WS_FLG = WS_SMALL + 3072
WS_END = WS_FLG + 131 * 128
WS_REC = int(os.environ.get('WSREC', '0x400000'), 0)
RST = 20096
WS_DIAG = 0x900000
OOB = 0x30000
LOG2E = 1.4426950408889634
LN2 = 0.6931471805599453
DELTA = 0.7213475 / 256
TINY = 2.0 ** -101


def f32(x):
    return "0x%08x" % struct.unpack("<I", struct.pack("<f", x))[0]


def vr(a, n=1):
    return f"v{a}" if n == 1 else f"v[{a}:{a + n - 1}]"


def sr(a, n=1):
    return f"s{a}" if n == 1 else f"s[{a}:{a + n - 1}]"


class Asm:
    def __init__(self):
        self.L = []

    def __call__(self, text):
        for line in text.split("\n"):
            s = line.strip()
            if not s:
                continue
            self.L.append(s if re.fullmatch(r"[\w.$]+:", s) else "    " + s)

    def text(self):
        return "\n".join(self.L) + "\n"


def lines(text):
    return [x.strip() for x in text.split("\n") if x.strip()]


def srd(a, d, base, nrec):
    a(f"s_mov_b32 s{d}, s{base}\ns_mov_b32 s{d + 1}, s{base + 1}")
    a(f"s_mov_b32 s{d + 2}, {nrec}\ns_mov_b32 s{d + 3}, 0x20000")


def scan64(a, v, op="v_add_u32", fill=()):
    fill = list(fill)
    for c in ("row_shr:1 row_mask:0xf", "row_shr:2 row_mask:0xf", "row_shr:4 row_mask:0xf", "row_shr:8 row_mask:0xf",
              "row_bcast:15 row_mask:0xa", "row_bcast:31 row_mask:0xc"):
        if len(fill) >= 2:
            a(fill.pop(0))
            a(fill.pop(0))
        else:
            a("s_nop 1")
        a(f"{op}_dpp v{v}, v{v}, v{v} {c} bank_mask:0xf")
    for x in fill:
        a(x)


SD = "dst_sel:DWORD dst_unused:UNUSED_PAD src0_sel:DWORD"
STAMP_REGS = {0: [90, 92, 94, 96, 98, 100, 88, 86], 1: [90, 92, 94, 96, 98, 100, 6, 14, 16, 18, 8, 10, 12]}


def stamp(a, cfg, kern, idx, real=False):
    if cfg.get("diag"):
        r = STAMP_REGS[kern][idx]
        a(f"{'s_memrealtime' if real or cfg['diag'] == 2 else 's_memtime'} s[{r}:{r + 1}]")


def stamp_out(a, cfg, kern, ws):
    if not cfg.get("diag"):
        return
    regs = STAMP_REGS[kern]
    a(f"""
    s_waitcnt vmcnt(0)
    s_memrealtime s[{regs[1]}:{regs[1] + 1}]
    s_lshl_b32 s0, s2, 4
    s_add_u32 s0, s0, s3
    s_lshl_b32 s0, s0, 6
    s_add_u32 s0, s0, {WS_DIAG + kern * 0x40000}
    s_waitcnt lgkmcnt(0)
    s_mov_b64 exec, 1
    v_mov_b32 v0, s0
    """)
    for i, r in enumerate(regs):
        a(f"v_mov_b32 v1, s{r}\nglobal_store_dword v0, v1, s[{ws}:{ws + 1}] offset:{4 * i}")
```

```python
from common import *


def gen_k1(cfg):
    a = Asm()
    CNT = 40960
    a(f"""
    s_load_dwordx16 s[4:19], s[0:1], 0
    s_load_dwordx2 s[20:21], s[0:1], 80
    v_lshrrev_b32 v1, 6, v0
    s_cmp_ge_u32 s2, 256
    s_cbranch_scc1 K1_END
    v_readfirstlane_b32 s3, v1
    s_cmp_ge_u32 s2, 125
    s_cbranch_scc1 K1_Q
    """)
    a(f"""
    s_mul_i32 s22, s2, 12800
    v_lshlrev_b32 v28, 4, v0
    v_add_u32 v2, s22, v28
    v_lshrrev_b32 v3, 1, v2
    v_cmp_gt_u32 vcc, 800, v0
    s_cmp_lt_u32 s3, 8
    s_cselect_b32 s23, 0xbfbfbfbf, 0
    s_cselect_b32 s26, 64, 0
    s_cselect_b32 s27, 0, {CNT - 8192}
    v_and_b32 v14, 0x3fe, v0
    v_mul_u32_u24 v14, s26, v14
    v_add3_u32 v14, v14, v28, s27
    v_mov_b32 v16, s23
    v_mov_b32 v17, s23
    v_mov_b32 v18, s23
    v_mov_b32 v19, s23
    s_mov_b64 s[24:25], vcc
    s_mov_b64 exec, vcc
    s_waitcnt lgkmcnt(0)
    s_cbranch_execz K1_PL
    global_load_dwordx4 v[4:7], v2, s[12:13]
    global_load_dwordx4 v[8:11], v2, s[10:11]
    global_load_dwordx2 v[12:13], v3, s[8:9]
    K1_PL:
    s_mov_b64 exec, -1
    ds_write_b128 v14, v[16:19]
    """)
    stamp(a, cfg, 0, 0, True)
    stamp(a, cfg, 0, 2)
    GA, TH, CA = 40, 44, 48
    a(f"""
    s_mul_i32 s22, s2, 160
    s_add_u32 s22, s22, {WS_REC}
    s_add_u32 s20, s20, s22
    s_addc_u32 s21, s21, 0
    s_movk_i32 s26, 19840
    s_movk_i32 s27, -40
    """)
    for i in range(3):
        q = "v0" if i == 0 else "v20"
        if i:
            a(f"v_add_u32 v20, {1024 * i}, v0")
        a(f"""
        v_mul_u32_u24 v21, 6554, {q}
        v_lshrrev_b32 v21, 16, v21
        v_lshlrev_b32 v22, 4, {q}
        v_mad_u32_u24 v{GA + i}, v21, s26, v22
        v_lshl_add_u32 v22, {q}, 2, -8
        v_mad_i32_i24 v{TH + i}, v21, s27, v22
        v_lshlrev_b32 v{CA + i}, 2, v21
        """)
    a(f"""
    s_mov_b32 s26, 342393
    s_movk_i32 s27, 12544
    s_mov_b32 s28, 0xffff0000
    v_mov_b32 v29, 1
    s_waitcnt lgkmcnt(0)
    s_barrier
    s_cmp_ge_u32 s3, 13
    s_cbranch_scc1 K1_PB
    s_mov_b64 exec, s[24:25]
    s_waitcnt vmcnt(2)
    """)
    stamp(a, cfg, 0, 3)
    for j in range(4):
        a(f"""
        v_mul_u32_u24 v{4 + j}, s26, v{4 + j}
        v_lshlrev_b32_sdwa v{14 + j}, 2, v{4 + j} {SD} src1_sel:BYTE_3
        ds_add_rtn_u32 v{18 + j}, v{14 + j}, v29 offset:{CNT}
        """)
    for j in range(4):
        a(f"""
        v_mul_hi_u32_u24 v{4 + j}, s27, v{4 + j}
        v_mul_u32_u24 v{14 + j}, 40, v{14 + j}
        """)
    a("s_waitcnt vmcnt(0)")
    for j in range(4):
        if j & 1:
            a(f"v_and_or_b32 v{8 + j}, v{12 + j // 2}, s28, v{8 + j}")
        else:
            a(f"v_lshl_or_b32 v{8 + j}, v{12 + j // 2}, 16, v{8 + j}")
    for j in range(4):
        a(f"""
        s_waitcnt lgkmcnt({3 + j})
        v_min_u32 v{18 + j}, 31, v{18 + j}
        v_add_u32 v22, v{14 + j}, v{18 + j}
        v_lshl_add_u32 v23, v{18 + j}, 2, v{14 + j}
        ds_write_b8 v22, v{4 + j}
        ds_write_b32 v23, v{8 + j} offset:32
        """)
    a(f"""
    s_mov_b64 exec, -1
    K1_PB:
    s_waitcnt vmcnt(0) lgkmcnt(0)
    s_barrier
    """)
    stamp(a, cfg, 0, 4)
    for i in range(3):
        a(f"ds_read_b32 v{CA + i}, v{CA + i} offset:{CNT}")
    for i in range(3):
        a(f"ds_read_b128 {vr(4 + 4 * i, 4)}, v28 offset:{16384 * i}")
    a(f"""
    s_waitcnt lgkmcnt(3)
    v_max3_u32 v20, v{CA}, v{CA + 1}, v{CA + 2}
    v_cmp_lt_u32 vcc, 32, v20
    """)
    for i in range(3):
        a(f"v_cmp_lt_i32 s[{30 + 2 * i}:{31 + 2 * i}], v{TH + i}, v{CA + i}")
    a("s_cbranch_vccnz K1_OVF\nK1_ST:")
    for i in range(3):
        if i == 2:
            a("s_cmp_ge_u32 s3, 8\ns_cbranch_scc1 K1_PE")
        a(f"""
        s_mov_b64 exec, s[{30 + 2 * i}:{31 + 2 * i}]
        s_waitcnt lgkmcnt({2 - i})
        global_store_dwordx4 v{GA + i}, {vr(4 + 4 * i, 4)}, s[20:21] sc1
        """)
    a("K1_PE:")
    if cfg.get("diag"):
        a("s_sub_u32 s20, s20, s22\ns_subb_u32 s21, s21, 0")
    stamp(a, cfg, 0, 5)
    stamp_out(a, cfg, 0, 20)
    a("s_endpgm\nK1_OVF:\ns_waitcnt lgkmcnt(0)")
    for i in range(3):
        a(f"""
        v_cmp_lt_u32 vcc, 32, v{CA + i}
        v_cmp_gt_i32 s[36:37], 0, v{TH + i}
        s_and_b64 exec, vcc, s[36:37]
        """)
        for k in range(4):
            a(f"v_mov_b32 v{4 + 4 * i + k}, -1")
        a("s_mov_b64 exec, -1")
    a("s_branch K1_ST")

    WL, HL = 0, 32768
    a(f"""
    K1_Q:
    s_setreg_imm32_b32 hwreg(HW_REG_MODE, 4, 2), 3
    v_and_b32 v1, 63, v0
    s_sub_u32 s37, s2, 125
    s_mul_i32 s22, s37, 96
    v_lshrrev_b32 v2, 4, v1
    v_and_b32 v3, 15, v1
    s_and_b32 s23, s3, 1
    s_lshl_b32 s24, s23, 2
    v_or_b32 v4, s24, v2
    v_lshlrev_b32 v4, 1, v4
    v_xor_b32 v4, v4, v3
    v_lshlrev_b32 v4, 4, v4
    v_lshl_add_u32 v4, v2, 8, v4
    s_lshl_b32 s24, s3, 11
    s_add_u32 s25, s24, 32768
    s_mov_b32 m0, s24
    v_lshrrev_b32 v5, 2, v1
    v_lshrrev_b32 v6, 5, v1
    v_lshlrev_b32 v6, 1, v6
    v_and_b32 v7, 3, v1
    v_xor_b32 v6, v6, v7
    v_lshlrev_b32 v6, 4, v6
    v_lshl_add_u32 v5, v5, 8, v6
    s_waitcnt lgkmcnt(0)
    """)
    srd(a, 28, 14, 258 * 256)
    a(f"""
    buffer_load_dwordx4 v4, s[28:31], s25 offen lds
    buffer_load_dwordx4 v4, s[28:31], s25 offen offset:1024 lds
    s_cmp_ge_u32 s3, 12
    s_cbranch_scc1 K1_AUX
    """)
    srd(a, 32, 4, N * 256)
    a(f"""
    s_lshr_b32 s26, s3, 1
    s_lshl_b32 s26, s26, 4
    s_add_u32 s26, s26, s22
    s_lshl_b32 s26, s26, 8
    s_lshl_b32 s27, s23, 7
    s_add_u32 s26, s26, s27
    s_add_u32 s27, s24, {HL}
    s_mov_b32 m0, s27
    s_add_u32 s36, s26, 64
    buffer_load_dwordx4 v5, s[32:35], s26 offen lds
    s_add_u32 s27, s27, 1024
    s_mov_b32 m0, s27
    s_nop 0
    buffer_load_dwordx4 v5, s[32:35], s36 offen lds
    """)
    stamp(a, cfg, 0, 0, True)
    stamp(a, cfg, 0, 2)
    a(f"""
    v_lshrrev_b32 v6, 3, v3
    v_lshlrev_b32 v6, 1, v6
    v_xor_b32 v6, v6, v2
    v_lshlrev_b32 v6, 4, v6
    v_lshl_add_u32 v6, v3, 6, v6
    s_lshr_b32 s27, s3, 1
    s_lshl_b32 s27, s27, 12
    v_add_u32 v6, s27, v6
    v_bfe_u32 v8, v1, 2, 2
    v_and_b32 v9, 1, v2
    v_xor_b32 v9, s23, v9
    v_lshl_or_b32 v9, v9, 2, v8
    v_lshlrev_b32 v9, 5, v9
    v_lshl_or_b32 v9, v7, 3, v9
    v_lshl_add_u32 v8, v2, 3, v8
    v_lshl_add_u32 v8, v8, 8, v9
    v_xor_b32 v9, 32, v8
    v_xor_b32 v10, 64, v8
    v_xor_b32 v11, 0x60, v8
    v_lshlrev_b32 v12, 3, v3
    v_lshl_add_u32 v12, v2, 10, v12
    v_add_u32 v12, s26, v12
    v_and_b32 v14, 1, v1
    v_mul_u32_u24 v14, 101, v14
    v_lshlrev_b32 v14, 23, v14
    v_sub_u32 v14, {f32(-LOG2E)}, v14
    s_lshl_b32 s24, s37, 7
    s_add_u32 s24, s24, s3
    s_add_u32 s24, s24, {WS_FLG}
    v_mov_b32 v13, s24
    s_waitcnt vmcnt(0)
    s_barrier
    """)
    stamp(a, cfg, 0, 3)
    AF, BF, AC = 16, 32, 96
    for ks in range(4):
        a(f"ds_read_b128 v[{AF + 4 * ks}:{AF + 4 * ks + 3}], v6 offset:{HL + 1024 * ks}")
        for tt in range(4):
            for i in range(2):
                d = BF + 16 * ks + 4 * tt + 2 * i
                a(f"ds_read_b64_tr_b16 v[{d}:{d + 1}], v{8 + tt} offset:{WL + 8192 * ks + 1024 * i}")
        if ks >= 1:
            k = ks - 1
            a("s_waitcnt lgkmcnt(9)")
            for tt in range(4):
                c = "0" if k == 0 else vr(AC + 4 * tt, 4)
                a(f"v_mfma_f32_16x16x32_bf16 {vr(AC + 4 * tt, 4)}, {vr(AF + 4 * k, 4)}, {vr(BF + 16 * k + 4 * tt, 4)}, {c}")
    for tt in range(4):
        a(f"s_waitcnt lgkmcnt({6 - 2 * tt})")
        a(f"v_mfma_f32_16x16x32_bf16 {vr(AC + 4 * tt, 4)}, {vr(AF + 12, 4)}, {vr(BF + 48 + 4 * tt, 4)}, {vr(AC + 4 * tt, 4)}")
    a("s_nop 1")
    for tt in range(4):
        for k in (0, 2):
            a(f"v_pk_mul_f32 {vr(BF + 4 * tt + k, 2)}, {vr(AC + 4 * tt + k, 2)}, v[14:15] op_sel_hi:[1,0]")
    for r in range(4):
        a(f"""
        v_cvt_pk_bf16_f32 v{16 + 2 * r}, v{BF + r}, v{BF + 4 + r}
        v_cvt_pk_bf16_f32 v{17 + 2 * r}, v{BF + 8 + r}, v{BF + 12 + r}
        global_store_dwordx2 v12, v[{16 + 2 * r}:{17 + 2 * r}], s[20:21] offset:{256 * r} sc1
        """)
    a(f"v_pk_mul_f32 v[4:5], {vr(AC, 2)}, {vr(AC, 2)}")
    for k in range(1, 8):
        a(f"v_pk_fma_f32 v[4:5], {vr(AC + 2 * k, 2)}, {vr(AC + 2 * k, 2)}, v[4:5]")
    a(f"""
    v_add_f32 v4, v4, v5
    v_cmp_ngt_f32 vcc, {f32(64 * LN2 * LN2)}, v4
    s_bcnt1_i32_b64 s24, vcc
    v_mov_b32 v4, s24
    s_mov_b64 exec, 1
    {'' if cfg.get('noflag') else 'global_store_byte v13, v4, s[20:21] sc1'}
    """)
    stamp(a, cfg, 0, 4)
    stamp_out(a, cfg, 0, 20)
    a("s_endpgm")

    a(f"""
    K1_AUX:
    s_cmp_eq_u32 s3, 12
    s_cbranch_scc1 K1_WF
    s_cmp_eq_u32 s3, 15
    s_cbranch_scc1 K1_IDLE
    s_mul_i32 s24, s3, 48
    s_add_u32 s24, s24, s22
    s_sub_u32 s24, s24, {13 * 48}
    s_sub_u32 s25, {N}, s24
    s_min_i32 s25, s25, 48
    v_add_u32 v4, s24, v1
    v_cmp_gt_i32 vcc, s25, v1
    v_mul_u32_u24 v5, 6, v4
    v_and_b32 v6, -4, v5
    v_lshlrev_b32 v5, 3, v5
    v_and_b32 v5, 16, v5
    v_lshlrev_b32 v7, 1, v4
    v_add_u32 v7, {WS_POS + 50000}, v7
    v_lshlrev_b32 v4, 2, v4
    v_add_u32 v4, {WS_POS}, v4
    s_cbranch_vccz K1_IDLE
    s_mov_b64 exec, vcc
    global_load_dwordx2 v[8:9], v6, s[6:7]
    s_waitcnt vmcnt(1)
    s_barrier
    s_waitcnt vmcnt(0)
    v_lshrrev_b64 v[8:9], v5, v[8:9]
    {'' if cfg.get('nopos') else 'global_store_dword v4, v8, s[20:21] sc1'}
    {'' if cfg.get('nopos') else 'global_store_short v7, v9, s[20:21] sc1'}
    s_branch K1_AEND
    K1_IDLE:
    s_waitcnt vmcnt(0)
    s_barrier
    s_branch K1_AEND
    K1_WF:
    v_and_b32 v6, 12, v3
    v_lshl_or_b32 v6, v7, 5, v6
    s_cmp_ge_u32 s37, 96
    s_cbranch_scc1 K1_SM
    s_bfe_u32 s22, s37, 0x30002
    s_and_b32 s23, s37, 3
    s_and_b32 s24, s37, 31
    s_lshl_b32 s24, s24, 10
    v_lshl_add_u32 v16, v1, 4, s24
    s_movk_i32 s25, 512
    s_movk_i32 s26, 1024
    s_lshl_b32 s24, s23, 13
    s_cmp_ge_u32 s37, 32
    s_cbranch_scc1 K1_M1
    s_lshr_b32 s27, s22, 2
    s_lshl_b32 s27, s27, 7
    s_add_u32 s24, s24, s27
    s_and_b32 s27, s22, 2
    s_lshl_b32 s27, s27, 3
    s_add_u32 s24, s24, s27
    s_and_b32 s27, s22, 1
    s_lshl_b32 s27, s27, 1
    s_add_u32 s24, s24, s27
    v_lshl_add_u32 v6, v2, 11, v6
    v_add_u32 v16, {WS_W1}, v16
    s_branch K1_WLD
    K1_M1:
    s_mov_b32 s28, s18
    s_mov_b32 s29, s19
    s_mov_b32 s30, 65536
    v_lshlrev_b32 v6, 1, v3
    s_cmp_ge_u32 s37, 64
    s_cbranch_scc1 K1_M2
    v_lshl_add_u32 v6, v2, 11, v6
    s_lshl_b32 s27, s22, 12
    s_lshl_b32 s36, s23, 6
    s_add_u32 s27, s27, s36
    s_add_u32 s27, s27, {QROWS * 256}
    v_lshl_add_u32 v16, v3, 8, s27
    v_lshl_add_u32 v16, v2, 4, v16
    s_branch K1_M3
    K1_M2:
    s_lshl_b32 s24, s23, 9
    s_add_u32 s24, s24, 32768
    s_movk_i32 s25, 2048
    s_movk_i32 s26, 16384
    v_lshl_add_u32 v6, v2, 12, v6
    v_add_u32 v16, {WS_WB}, v16
    K1_M3:
    s_lshl_b32 s27, s22, 5
    s_add_u32 s24, s24, s27
    K1_WLD:
    s_add_u32 s27, s25, s26
    s_add_u32 s25, s25, s24
    s_add_u32 s26, s26, s24
    s_add_u32 s27, s27, s24
    """)
    for j in range(8):
        a(f"buffer_load_ushort v{8 + j}, v6, s[28:31], s{24 + j // 2} offen offset:{256 * (j & 1)}")
    a(f"""
    s_waitcnt vmcnt(8)
    s_barrier
    s_waitcnt vmcnt(0)
    v_lshl_or_b32 v4, v9, 16, v8
    v_lshl_or_b32 v5, v11, 16, v10
    v_lshl_or_b32 v6, v13, 16, v12
    v_lshl_or_b32 v7, v15, 16, v14
    global_store_dwordx4 v16, v[4:7], s[20:21] sc1
    s_branch K1_AEND
    K1_SM:
    s_cmp_ge_u32 s37, 99
    s_cbranch_scc1 K1_CONST
    v_and_b32 v8, 2, v2
    v_lshl_or_b32 v6, v8, 3, v6
    v_and_b32 v8, 1, v2
    v_lshl_or_b32 v6, v8, 1, v6
    s_lshl_b32 s24, s37, 8
    s_add_u32 s25, s24, {65536 - 96 * 256}
    s_add_u32 s26, s14, s25
    s_addc_u32 s27, s15, 0
    s_cmp_eq_u32 s37, 98
    s_cselect_b32 s26, s16, s26
    s_cselect_b32 s27, s17, s27
    global_load_ushort v10, v6, s[26:27]
    global_load_ushort v11, v6, s[26:27] offset:128
    s_waitcnt vmcnt(2)
    s_barrier
    s_waitcnt vmcnt(0)
    v_lshlrev_b32 v10, 16, v10
    v_lshlrev_b32 v11, 16, v11
    s_cbranch_scc1 K1_WX
    s_cmp_eq_u32 s37, 96
    s_cselect_b32 s25, 1.0, {f32(-LOG2E)}
    s_cselect_b32 s26, {f32(32.0)}, {f32(15.0)}
    v_mul_f32 v10, s25, v10
    v_mul_f32 v11, s25, v11
    v_and_b32 v12, 0x7fffffff, v10
    v_and_b32 v13, 0x7fffffff, v11
    v_max_u32 v12, v12, v13
    v_mul_i32_i24 v8, -101, v8
    v_ldexp_f32 v10, v10, v8
    v_ldexp_f32 v11, v11, v8
    v_cvt_pk_bf16_f32 v10, v10, v11
    s_add_u32 s24, s24, {WS_SMALL + 1024 - 96 * 256}
    v_lshl_add_u32 v4, v1, 1, s24
    global_store_short v4, v10, s[20:21] sc1
    global_store_short_d16_hi v4, v10, s[20:21] offset:128 sc1
    """.replace(f"s_cselect_b32 s26, {f32(32.0)}, {f32(15.0)}", f"s_mov_b32 s26, {f32(15.0)}\ns_cmov_b32 s26, {f32(32.0)}"))
    scan64(a, 12, "v_max_u32")
    a(f"""
    s_lshl_b32 s24, s37, 2
    s_add_u32 s24, s24, {WS_THR - 96 * 4}
    v_rcp_f32 v12, v12
    v_mov_b32 v4, s24
    v_mul_f32 v12, s26, v12
    s_mov_b32 exec_lo, 0
    s_brev_b32 exec_hi, 1
    global_store_dword v4, v12, s[20:21] sc1
    s_branch K1_AEND
    K1_WX:
    v_mul_f32 v10, {f32(-LN2 * (1 + DELTA))}, v10
    v_mul_f32 v11, {f32(-LN2 * (1 + DELTA))}, v11
    v_lshlrev_b32 v4, 5, v3
    v_lshl_add_u32 v4, v2, 2, v4
    v_add_u32 v4, {WS_SMALL + 1536}, v4
    global_store_dword v4, v10, s[20:21] sc1
    global_store_dword v4, v11, s[20:21] offset:16 sc1
    s_branch K1_AEND
    K1_CONST:
    s_cmp_lg_u32 s37, 99
    s_cbranch_scc1 K1_IDLE
    v_cmp_eq_u32 vcc, 32, v1
    v_cmp_eq_u32 s[24:25], 33, v1
    v_mov_b32 v12, 0x3f80
    v_lshlrev_b32 v4, 4, v1
    v_add_u32 v4, {WS_SMALL}, v4
    v_cndmask_b32 v8, 0, v12, vcc
    v_cndmask_b32 v9, 0, v12, s[24:25]
    v_lshlrev_b32 v10, 16, v8
    v_lshlrev_b32 v11, 16, v9
    s_waitcnt vmcnt(0)
    s_barrier
    global_store_dwordx4 v4, v[8:11], s[20:21] sc1
    v_lshlrev_b32 v4, 3, v1
    v_add_u32 v4, {WS_SMALL + 2048}, v4
    v_lshlrev_b32 v12, 1, v1
    v_add_u32 v12, {QROWS}, v12
    v_add_u32 v13, 1, v12
    global_store_dwordx2 v4, v[12:13], s[20:21] sc1
    K1_AEND:
    """)
    stamp_out(a, cfg, 0, 20)
    a("K1_END:\ns_endpgm")
    t = a.text()
    return t if cfg.get("diag") else t.replace("s_branch K1_AEND", "s_endpgm")
```

```python
from common import *

CAP = 1792
CNT, LUT = 0, 256
MR, MST = 8448, 288
SEL = MR + 64 * MST
PAC = SEL + 49 * 32
OH = PAC + 52 * 16
WD, WX, FAKE = OH + 1024, OH + 1536, OH + 2048
OWN = OH + 2560
H48 = OWN + 53 * 16
LIST = H48 + 256
HT = 62720
POSL = RING = OT = 83200
PT = 163840 - 49 * 288
OST = 272
PADN = 52
assert LIST + (CAP + 48) * 16 <= HT and RING + 65536 <= PT and POSL + 74 * 1024 <= 163840
PBASE = 0x12000


def hp(i):
    return i * 1024 + (8192 if i >= 3 else 0)


sWV = 3
sW, sH, sO, sR, sTH, sMK = 24, 28, 32, 36, 38, 40
sB, sNB, sNV, sRARE, sFIRST, sSRC, sLO, sWID = 44, 45, 46, 47, 48, 49, 50, 51
sTOT, sTS, sWT, sWEND, sN0, sNW, sEW, sEV = 52, 53, 54, 55, 56, 57, 58, 59
sNF, sNL, sMODE, sNWN, sC000, s128, s256, s192, sLAST = 60, 61, 62, 63, 64, 65, 66, 68, 69
sM0, sG3 = 70, 74
sA, sB2, sC, sD = 76, 77, 78, 79
sP0, sP1, sP2, sP3, sP4 = 80, 82, 84, 86, 88
vRing, vLc, vMul, vIncl, vVoff = 1, 2, 3, 4, 5
vBX, vBS, vIX, vIS, vDa, vEa = 6, 7, 8, 9, 10, 11
vXa, vSa, vD, vDE, vIdx = 12, 13, 14, 15, 16
ZE, ZL, T, L, R, S, A, B, AC, Y = 20, 28, 32, 36, 40, 42, 44, 60, 84, 120
vFa, vG0, vG1 = 116, 117, 118
vDL, vT, W = 17, 18, 20
g3 = sr(sG3, 2)

PAT = "M1 h E Y1 E M2 E Y2 E 0 X X X X m P P P R s R l P P P v D V"
DORD = "SqxdL"


def dma(kc):
    soff = ["0", "64", f"s{s128}", f"s{s192}"][kc]
    return [f"s_mov_b32 m0, s{sM0 + kc}",
            f"buffer_load_dwordx4 v{vVoff}, s[{sW}:{sW + 3}], {soff} offen lds ; @w:ring{kc}"]


def rdq(kc, d=None):
    d = A + 2 + 6 * (kc & 1) if d is None else d
    return f"ds_read_b128 {vr(d, 4)}, v{vRing} offset:{1024 * kc} ; @r:ring{kc}"


def Kmf(u, z):
    a0 = A + 6 * ((u // 2) % 2) + (4 if u & 1 else 0)
    b0 = B + 6 * (u // 2) + (2 if u & 1 else 0)
    return f"v_mfma_f32_16x16x32_bf16 {vr(z, 4)}, {vr(a0, 4)}, {vr(b0, 4)}, 0"


def Ymf(u, b):
    return f"v_smfmac_f32_16x16x32_bf16 {vr(AC + 4 * u, 4)}, {vr(S, 2)}, {vr(b, 4)}, v{vIdx}"


def zero4(d):
    return f"v_mfma_f32_16x16x16_bf16 {vr(d, 4)}, {vr(S, 2)}, {vr(S, 2)}, 0"


def mf32(d, x, y, first=False):
    return f"v_mfma_f32_16x16x32_bf16 {vr(d, 4)}, {vr(x, 4)}, {vr(y, 4)}, {'0' if first else vr(d, 4)}"


def loop_body(pat, dord, lut):
    seq = []
    I = lambda t, tag=None: seq.append(("i", t, tag))
    NEED = lambda tag: seq.append(("n", tag, None))
    pk1 = lambda r: f"v_pk_add_f32 {vr(r, 2)}, {vr(r, 2)}, 1.0 op_sel_hi:[1,0]"
    for j in range(4):
        z, zn = ZE + 4 * (j & 1), ZE + 4 * ((j + 1) & 1)
        e = [f"v_exp_f32 v{T + (k ^ 2)}, v{z + k}" for k in range(4)]
        p = [pk1(T + 2),
             f"v_pk_fma_f32 {vr(R, 2)}, {vr(T + 2, 2)}, {vr(T, 2)}, {vr(T + 2, 2)}",
             f"v_pk_fma_f32 {vr(T, 2)}, {vr(z, 2)}, {vr(T, 2)}, {vr(z, 2)}",
             f"v_pk_mul_f32 {vr(T + 2, 2)}, {vr(z + 2, 2)}, {vr(T + 2, 2)}",
             f"v_pk_mul_f32 {vr(z, 2)}, {vr(T, 2)}, {vr(R, 2)}",
             f"v_pk_mul_f32 {vr(z + 2, 2)}, {vr(T + 2, 2)}, {vr(R, 2)}"]
        r = [f"v_rcp_f32 v{R}, v{R}", f"v_rcp_f32 v{R + 1}, v{R + 1}"]
        ix = [f"v_lshlrev_b32_sdwa v{ZL + k}, 1, v{ZL + k} {SD} src1_sel:WORD_1" for k in range(4)]
        d = dma((j + 1) % 4)
        for tok in pat.split():
            if tok == "M1":
                if j < 2:
                    NEED(f"x{j + 1}")
                I(Kmf(2 * j + 1, ZL))
            elif tok == "M2":
                NEED(f"q{(j + 1) % 4}")
                if j == 3:
                    NEED("x0")
                I(Kmf((2 * j + 2) % 8, zn))
            elif tok == "Y1":
                if j == 1:
                    NEED("S")
                I(Ymf((2 * j - 2) % 8, zn))
            elif tok == "Y2":
                if lut:
                    NEED("L")
                I(Ymf((2 * j - 1) % 8, L))
            elif tok == "E":
                I(e.pop(0))
            elif tok == "P":
                I(p.pop(0))
            elif tok == "R":
                I(r.pop(0))
            elif tok == "X":
                I(ix.pop(0))
            elif tok in ("Fa", "Fb"):
                src, dst = (z, z) if tok == "Fa" else (ZL, L)
                if tok == "Fb":
                    for k in range(4):
                        I(f"v_mul_f32 v{ZL + k}, {f32(2.0 ** 101)}, v{ZL + k}")
                for k in range(4):
                    I(f"v_exp_f32 v{T + k}, v{src + k}")
                I(pk1(T))
                I(pk1(T + 2))
                for k in range(4):
                    I(f"v_rcp_f32 v{T + k}, v{T + k}")
                for k in (0, 2):
                    I(f"v_pk_mul_f32 {vr(dst + k, 2)}, {vr(T + k, 2)}, {vr(src + k, 2)}")
            elif tok == "m":
                if j == 0:
                    NEED("dE")
                    I(f"v_mad_u32_u16 v{vXa}, v{vDE}, v{vMul}, v{vBX} op_sel:[1,0,0,0]")
                elif j == 1:
                    I(f"v_mad_u32_u16 v{vSa}, v{vD}, s{sC000}, v{vBS} op_sel:[1,0,0,0]")
                elif j == 2:
                    I(f"v_lshl_add_u64 v[{vDa}:{vEa}], v[{vDa}:{vEa}], 0, s[{s256}:{s256 + 1}]")
                    I(f"v_lshl_add_u64 v[{vBX}:{vBS}], v[{vBX}:{vBS}], 0, v[{vIX}:{vIS}]")
                else:
                    NEED("dD")
                    I(f"v_mad_u32_u16 v{vVoff}, v{vD}, s{s256}, v{vLc}")
            elif tok == "s":
                if j == 2:
                    I(f"s_add_u32 s{sTS}, s{sTS}, 16")
                if j == 3:
                    I(f"s_cmp_lt_i32 s{sTS}, s{sEV}")
            elif tok == "l":
                I("s_setprio 0")
            elif tok == "h":
                I("s_setprio 1")
            elif tok == "0":
                I(d[0])
            elif tok == "v":
                I("s_waitcnt vmcnt(2)")
            elif tok == "V":
                I(d[1])
            elif tok == "D":
                for c in dord:
                    if c == "S" and j == 0:
                        I(f"ds_read_b64_tr_b16 {vr(S, 2)}, v{vSa}", "S")
                    if c == "q":
                        I(rdq((j + 2) % 4), f"q{(j + 2) % 4}")
                    if c == "x" and j:
                        I(f"ds_read_b64 {vr(A + 6 * (j - 1), 2)}, v{vXa}", f"x{j - 1}")
                    if c == "d" and j == 1:
                        I(f"ds_read_b32 v{vD}, v{vDa}", "dD")
                    if c == "d" and j == 3:
                        I(f"ds_read_b32 v{vDE}, v{vEa}", "dE")
                    if c == "L" and lut:
                        for k in range(4):
                            I(f"ds_read_u16_d16_hi v{L + k}, v{ZL + k} offset:{LUT}", "L")
            else:
                raise ValueError(tok)
    q, out = [], []
    for rep in range(2):
        out = []
        for k, t, tag in seq:
            if k == "i":
                out.append(t)
                if t.startswith("ds_"):
                    q.append(tag)
            elif t in q:
                n = q[::-1].index(t)
                out.append(f"s_waitcnt lgkmcnt({n})")
                q = q[len(q) - n:]
    return "\n".join(out)


def ptrs(a):
    a(f"""
    s_lshl_b32 s{sA}, s{sTS}, 4
    s_add_u32 s{sA}, s{sA}, {LIST}
    v_and_b32 v18, -4, v0
    v_and_b32 v19, 15, v0
    v_lshl_add_u32 v{vDa}, v18, 2, s{sA}
    v_lshl_add_u32 v{vEa}, v19, 4, s{sA}
    s_cmp_lt_u32 s{sTS}, s{sWT}
    s_cselect_b64 s[{sP0}:{sP0 + 1}], -1, 0
    s_add_u32 s{sB2}, s{sTS}, 16
    s_cmp_lt_u32 s{sB2}, s{sWT}
    s_cselect_b64 s[{sP1}:{sP1 + 1}], -1, 0
    v_add_u32 v19, 256, v{vDa}
    v_cndmask_b32 v18, v{vFa}, v{vDa}, s[{sP0}:{sP0 + 1}]
    v_cndmask_b32 v19, v{vFa}, v19, s[{sP1}:{sP1 + 1}]
    """)


def first_dmas(a):
    a(f"""
    ds_read_b32 v{vSa}, v18
    ds_read_b32 v{vD}, v19
    ds_read_b32 v{vXa}, v{vEa}
    ds_read_b32 v{vDE}, v{vEa} offset:256
    {dma(0)[0]}
    s_waitcnt lgkmcnt(3)
    v_mad_u32_u16 v{vVoff}, v{vSa}, s{s256}, v{vLc}
    {dma(0)[1]}
    """)
    for kc in range(1, 4):
        a(f"{dma(kc)[0]}\ns_nop 0\n{dma(kc)[1]}")


def window(a):
    a(f"""
    s_add_u32 s{sA}, s{sNW}, 3
    v_readlane_b32 s{sEW}, v{vIncl}, s{sA}
    s_sub_u32 s{sB2}, s{sWT}, 32
    s_cmp_ge_u32 s{sEW}, s{sWEND}
    s_cselect_b32 s{sEW}, 0x7fffffff, s{sEW}
    s_sub_u32 s{sA}, s{sEW}, 15
    s_min_i32 s{sEV}, s{sA}, s{sB2}
    """)


def zero_init(a, n2):
    a(f"""
    v_lshlrev_b32 v19, 4, v{vT}
    v_mov_b32 v24, 0
    v_mov_b32 v25, 0
    v_mov_b32 v26, 0
    v_mov_b32 v27, 0
    v_cmp_gt_u32 vcc, {n2}, v{vT}
    ds_write_b128 v19, v[24:27] offset:{MR}
    v_lshlrev_b32 v28, 2, v0
    ds_write_b32 v28, v24 offset:{CNT}
    s_mov_b64 exec, vcc
    ds_write_b128 v19, v[24:27] offset:{MR + 16384}
    s_mov_b64 exec, -1
    """)


def rec_addr(a):
    a(f"""
    v_lshrrev_b32 v28, 3, v{vT}
    v_lshlrev_b32 v29, 2, v{vT}
    v_lshl_add_u32 v29, v28, 7, v29
    v_lshl_add_u32 v28, v28, 5, v19
    v_cmp_gt_u32 vcc, 1000, v{vT}
    v_mov_b32 v{vDL}, 0xbfbfbfbf
    """)


def rec_load(a):
    a(f"""
    s_mov_b64 exec, vcc
    global_load_dword v{vDL}, v29, s[{sR}:{sR + 1}]
    global_load_dwordx4 {vr(W, 4)}, v28, s[{sR}:{sR + 1}] offset:32
    s_mov_b64 exec, -1
    """)


def silu4(a, y, h, t):
    a(f"""
    v_pk_mul_f32 {vr(y, 2)}, {vr(y, 2)}, s[{sP0}:{sP0 + 1}] op_sel_hi:[1,0]
    v_pk_mul_f32 {vr(y + 2, 2)}, {vr(y + 2, 2)}, s[{sP0}:{sP0 + 1}] op_sel_hi:[1,0]
    """)
    for k in range(4):
        a(f"v_exp_f32 v{t + k}, v{y + k}")
    for k in (0, 2):
        a(f"v_pk_add_f32 {vr(t + k, 2)}, {vr(t + k, 2)}, 1.0 op_sel_hi:[1,0]")
    for k in range(4):
        a(f"v_rcp_f32 v{t + k}, v{t + k}")
    for k in (0, 2):
        a(f"v_pk_mul_f32 {vr(y + k, 2)}, {vr(y + k, 2)}, s[{sP0}:{sP0 + 1}] op_sel:[0,1] op_sel_hi:[1,1]")
    for k in (0, 2):
        a(f"v_pk_fma_f32 {vr(y + k, 2)}, {vr(y + k, 2)}, {vr(t + k, 2)}, {vr(h + k, 2)}")
    a(f"v_cvt_pk_bf16_f32 v{y}, v{y}, v{y + 1}\nv_cvt_pk_bf16_f32 v{y + 1}, v{y + 2}, v{y + 3}")


def gen_k2(cfg):
    a = Asm()
    st = lambda i, real=False: stamp(a, cfg, 1, i, real)
    st(0, True)
    a(f"""
    s_load_dwordx2 s[22:23], s[0:1], 80
    s_load_dwordx2 s[4:5], s[0:1], 0
    s_load_dwordx2 s[20:21], s[0:1], 64
    v_lshrrev_b32 v1, 6, v0
    s_cmp_ge_u32 s2, 256
    s_cbranch_scc1 K2_END
    v_readfirstlane_b32 s{sWV}, v1
    v_mov_b32 v{vT}, v0
    v_and_b32 v0, 63, v0
    s_setreg_imm32_b32 hwreg(HW_REG_MODE, 4, 2), 3
    s_and_b32 s{sB}, s2, 7
    s_lshl_b32 s{sB}, s{sB}, 5
    s_lshr_b32 s{sA}, s2, 3
    s_add_u32 s{sB}, s{sB}, s{sA}
    s_mul_i32 s{sA}, s{sB}, 20000
    s_add_u32 s{sA}, s{sA}, {WS_REC}
    """)
    zero_init(a, (PAC + 52 * 16 - MR - 16384) // 16)
    rec_addr(a)
    a(f"""
    s_waitcnt lgkmcnt(0)
    s_add_u32 s{sR}, s22, s{sA}
    s_addc_u32 s{sR + 1}, s23, 0
    """)
    rec_load(a)
    st(2)
    srd(a, sW, 22, WS_END)
    a(f"""
    s_mul_i32 s{sNB}, s{sB}, {NB}
    s_lshl_b32 s{sC}, s{sNB}, 8
    s_add_u32 s{sH}, s4, s{sC}
    s_addc_u32 s{sH + 1}, s5, 0
    s_sub_u32 s{sH + 2}, {N * 256}, s{sC}
    s_mov_b32 s{sH + 3}, 0x20000
    s_mov_b32 s{sA}, {WS_THR}
    s_load_dwordx2 s[{sTH}:{sTH + 1}], s[22:23], s{sA}
    s_mov_b64 s[{sMK}:{sMK + 1}], 0
    s_mov_b64 s[{sMK + 2}:{sMK + 3}], 0
    s_mov_b32 s{sRARE}, 0
    s_mov_b32 s{sFIRST}, 1
    s_mov_b32 s{sSRC}, -1
    s_movk_i32 s{sWID}, 1024
    K2_B0:
    s_lshl_b32 s{sA}, s{sWV}, 12
    s_add_u32 s{sM0}, s{sA}, {POSL}
    s_mov_b32 m0, s{sM0}
    s_add_u32 s{sA}, s{sA}, {WS_POS}
    v_lshlrev_b32 v58, 4, v0
    s_barrier
    """)
    for i in range(4):
        a(f"buffer_load_dwordx4 v58, s[{sW}:{sW + 3}], s{sA} offen offset:{1024 * i} lds")
    a(f"""
    s_lshl_b32 s{sD}, s{sWV}, 10
    s_cmp_ge_u32 s{sWV}, 13
    s_cbranch_scc1 K2_FLD
    s_cmp_lt_u32 s{sWV}, 10
    s_cselect_b32 s{sB2}, {POSL + 65536 - (OH - 10240)}, 0
    s_add_u32 s{sB2}, s{sB2}, s{sD}
    s_add_u32 m0, s{sB2}, {OH - 10240}
    s_add_u32 s{sA}, s{sD}, {WS_POS + 65536}
    buffer_load_dwordx4 v58, s[{sW}:{sW + 3}], s{sA} offen lds
    K2_LUT:
    """)
    a(f"""
    v_lshlrev_b32 v24, 18, v{vT}
    v_or_b32 v25, 0x18000, v24
    v_or_b32 v26, 0x28000, v24
    v_or_b32 v27, 0x38000, v24
    v_or_b32 v24, 0x8000, v24
    s_mov_b32 s{sP0}, {f32(2.0 ** 101)}
    s_mov_b32 s{sP0 + 1}, {f32(1 / (1 + DELTA))}
    v_pk_mul_f32 v[26:27], v[26:27], s[{sP0}:{sP0 + 1}] op_sel_hi:[1,0]
    v_pk_mul_f32 v[24:25], v[24:25], s[{sP0}:{sP0 + 1}] op_sel_hi:[1,0]
    """)
    for k in range(4):
        a(f"v_exp_f32 v{28 + k}, v{24 + k}")
    for k in (0, 2):
        a(f"v_pk_mul_f32 {vr(24 + k, 2)}, {vr(24 + k, 2)}, s[{sP0}:{sP0 + 1}] op_sel:[0,1] op_sel_hi:[1,1]")
    for k in (0, 2):
        a(f"v_pk_add_f32 {vr(28 + k, 2)}, {vr(28 + k, 2)}, 1.0 op_sel_hi:[1,0]")
    for k in range(4):
        a(f"v_rcp_f32 v{28 + k}, v{28 + k}")
    a(f"v_lshlrev_b32 v32, 3, v{vT}\nv_add_u32 v33, 0x10000, v32")
    for k in (0, 2):
        a(f"v_pk_mul_f32 {vr(28 + k, 2)}, {vr(28 + k, 2)}, {vr(24 + k, 2)}")
    for k in (0, 2):
        a(f"v_pk_add_f32 {vr(24 + k, 2)}, {vr(28 + k, 2)}, {vr(24 + k, 2)} neg_lo:[0,1] neg_hi:[0,1]")
    a(f"""
    v_cvt_pk_bf16_f32 v28, v28, v29
    v_cvt_pk_bf16_f32 v29, v30, v31
    v_cvt_pk_bf16_f32 v24, v24, v25
    v_cvt_pk_bf16_f32 v25, v26, v27
    ds_write_b64 v32, v[28:29] offset:{LUT}
    ds_write_b64 v33, v[24:25] offset:{LUT}
    """)
    a(f"""
    s_mov_b32 s{sC000}, 0xc000
    s_movk_i32 s{s128}, 128
    s_movk_i32 s{s192}, 192
    s_movk_i32 s{s256}, 256
    s_movk_i32 s{s256 + 1}, 256
    s_mov_b32 s{sG3}, 0
    s_mov_b32 s{sG3 + 1}, 0xffff0000
    s_add_u32 s{sM0 + 1}, s{sM0}, 1024
    s_add_u32 s{sM0 + 2}, s{sM0}, 2048
    s_add_u32 s{sM0 + 3}, s{sM0}, 3072
    s_sub_u32 s{sNV}, {N}, s{sNB}
    s_min_u32 s{sNV}, s{sNV}, {NB}
    v_and_b32 v34, 15, v0
    v_lshrrev_b32 v35, 4, v0
    v_lshrrev_b32 v36, 3, v34
    v_lshlrev_b32 v36, 1, v36
    v_xor_b32 v36, v36, v35
    v_lshl_add_u32 v36, v36, 4, s{sM0}
    v_lshl_add_u32 v{vRing}, v34, 6, v36
    v_and_b32 v36, 2, v35
    v_and_b32 v37, 3, v0
    v_xor_b32 v36, v36, v37
    v_lshlrev_b32 v{vLc}, 4, v36
    v_cndmask_b32 v{vMul}, 2, 0, {g3}
    v_mov_b32 v{vIS}, 256
    v_cndmask_b32 v{vIX}, 0, v{vIS}, {g3}
    v_mov_b32 v{vIdx}, 0xdd
    s_and_b32 s{sA}, s{sWV}, 7
    s_lshl_b32 s{sA}, s{sA}, 6
    s_add_u32 s{sA}, s{sA}, {FAKE}
    v_and_b32 v36, -4, v0
    v_add_u32 v{vFa}, s{sA}, v36
    v_lshl_add_u32 v59, v36, 6, v{vLc}
    s_cmp_ge_u32 s{sWV}, 3
    s_cselect_b32 s{sA}, 8192, 0
    s_add_u32 s{sA}, s{sA}, s{sD}
    s_add_u32 m0, s{sA}, {HT}
    s_lshr_b32 s{sA}, s{sWV}, 2
    s_lshl_b32 s{sA}, s{sA}, 12
    s_and_b32 s{sB2}, s{sWV}, 3
    s_lshl_b32 s{sB2}, s{sB2}, 6
    s_add_u32 s{sA}, s{sA}, s{sB2}
    s_lshl_b32 s{sB2}, s{sWV}, 12
    s_add_u32 s{sB2}, s{sB2}, {WS_W1}
    v_mov_b32 v19, 1
    v_mov_b32 v48, {PBASE}
    s_mov_b32 s{sC}, 0x40000
    s_mov_b32 s{sD}, 0x0c040100
    s_cmp_ge_u32 s{sWV}, 12
    s_waitcnt vmcnt(5)
    """)
    st(3)
    AJ, RK, QD = 24, 28, 32
    for j in range(4):
        a(f"""
        v_lshlrev_b32_sdwa v{AJ + j}, 2, sext(v{vDL}) {SD} src1_sel:BYTE_{j}
        ds_add_rtn_u32 v{RK + j}, v{AJ + j}, v19 offset:{CNT}
        """)
    a(f"""
    s_cbranch_scc1 K2_H48
    buffer_load_dwordx4 v59, s[{sH}:{sH + 3}], s{sA} offen lds
    s_cmp_ge_u32 s{sWV}, 8
    s_cbranch_scc1 K2_NOW1
    """)
    for ks in range(4):
        a(f"buffer_load_dwordx4 {vr(B + 4 * ks, 4)}, v58, s[{sW}:{sW + 3}], s{sB2} offen offset:{1024 * ks}")
    a(f"""
    K2_NOW1:
    v_cmp_eq_u32 vcc, -1, v{vDL}
    """)
    for j in range(4):
        q = QD + 4 * j
        a(f"""
        v_and_or_b32 v{q + 3}, v{AJ + j}, s{sC}, v48
        v_perm_b32 v{q}, v{AJ + j}, v{W + j}, s{sD}
        v_mad_u32_u16 v{q + 2}, v{W + j}, 4, v{q + 3}
        v_mad_u32_u16 v{q + 3}, v{W + j}, 2, v{q + 3}
        v_and_b32 v{q + 1}, 0xffff0000, v{W + j}
        """)
    a(f"""
    s_cbranch_vccnz K2_OVF
    K2_OVFB:
    v_lshlrev_b32 v49, 2, v0
    s_cmp_lt_u32 s{sWV}, 8
    s_waitcnt vmcnt(5) lgkmcnt(0)
    s_cbranch_scc1 K2_B1
    s_waitcnt vmcnt(1)
    K2_B1:
    s_cmp_eq_u32 s{sWV}, 14
    s_barrier
    """)
    st(4)
    a(f"""
    ds_read_b32 v49, v49 offset:{CNT}
    s_cbranch_scc1 K2_OWN1
    K2_OWN1B:
    """)
    for j in range(4):
        q = QD + 4 * j
        a(f"""
        ds_read_b32 v{q + 2}, v{q + 2} offset:{POSL - PBASE}
        ds_read_u16_d16_hi v{q + 3}, v{q + 3} offset:{POSL + 50000 - PBASE}
        """)
    a(f"""
    s_waitcnt lgkmcnt(8)
    v_cmp_ne_u32 vcc, 0, v49
    s_mov_b32 s{sA}, {OOB}
    s_and_b32 s{sB2}, vcc_hi, 0xf00000
    s_cbranch_scc1 K2_MASK
    K2_MASKB:
    v_mov_b32 v{vIncl}, v49
    """)
    scan64(a, vIncl)
    a(f"""
    v_sub_u32 v49, v{vIncl}, v49
    v_readlane_b32 s{sTOT}, v{vIncl}, 63
    v_lshlrev_b32 v49, 4, v49
    v_writelane_b32 v49, s{sA}, 63
    """)
    for j in range(4):
        a(f"ds_bpermute_b32 v{AJ + j}, v{AJ + j}, v49")
    a(f"""
    s_cmp_gt_u32 s{sTOT}, {CAP}
    s_cbranch_scc1 K2_SHRINK
    s_add_u32 s{sA}, s{sTOT}, 15
    s_lshr_b32 s{sA}, s{sA}, 4
    s_lshr_b32 s{sB2}, s{sA}, 4
    s_and_b32 s{sA}, s{sA}, 15
    s_mul_i32 s{sTS}, s{sB2}, s{sWV}
    s_min_u32 s{sC}, s{sWV}, s{sA}
    s_add_u32 s{sTS}, s{sTS}, s{sC}
    s_cmp_lt_u32 s{sWV}, s{sA}
    s_addc_u32 s{sD}, s{sB2}, 0
    s_lshl_b32 s{sTS}, s{sTS}, 4
    s_lshl_b32 s{sD}, s{sD}, 4
    s_add_u32 s{sWT}, s{sTS}, s{sD}
    s_min_u32 s{sWEND}, s{sWT}, s{sTOT}
    """)
    for j in range(4):
        a(f"""
        s_waitcnt lgkmcnt(3)
        v_lshl_add_u32 v{AJ + j}, v{RK + j}, 4, v{AJ + j}
        ds_write_b128 v{AJ + j}, {vr(QD + 4 * j, 4)} offset:{LIST}
        """)
    a(f"""
    v_cmp_ge_u32 vcc, s{sTS}, v{vIncl}
    v_cmp_gt_u32 s[{sP2}:{sP2 + 1}], s{sWEND}, v{vIncl}
    v_add_u32 v24, 64, v0
    v_cmp_gt_u32 s[{sP3}:{sP3 + 1}], s{sD}, v0
    v_cmp_gt_u32 s[{sP4}:{sP4 + 1}], s{sD}, v24
    s_bcnt1_i32_b64 s{sN0}, vcc
    s_bcnt1_i32_b64 s{sNL}, s[{sP2}:{sP2 + 1}]
    s_mov_b32 s{sNW}, s{sN0}
    """)
    ptrs(a)
    a(f"""
    v_mov_b32 v24, {OOB}
    v_lshl_add_u32 v{vG0}, v0, 4, s{sA}
    v_add_u32 v{vG1}, 1024, v{vG0}
    v_cndmask_b32 v{vG0}, v24, v{vG0}, s[{sP3}:{sP3 + 1}]
    v_cndmask_b32 v{vG1}, v24, v{vG1}, s[{sP4}:{sP4 + 1}]
    s_cmp_eq_u32 s{sD}, 0
    s_cselect_b32 s{sNF}, {OOB >> 5}, s{sN0}
    s_cmp_eq_u32 s{sWV}, 0
    s_cselect_b32 s{sA}, 48, s{sNF}
    s_cselect_b32 s{sNF}, 64, s{sNF}
    s_lshl_b32 s{sA}, s{sA}, 4
    s_add_u32 s{sA}, s{sA}, s{sWV}
    s_lshl_b32 s{sA}, s{sA}, 1
    v_mov_b32 v25, s{sA}
    v_mov_b32 v26, 0x3f80
    s_mov_b64 exec, 1
    ds_write_b16 v25, v26 offset:{SEL}
    s_mov_b64 exec, -1
    s_cmp_ge_u32 s{sWV}, 14
    s_cbranch_scc1 K2_PAD
    K2_PADB:
    s_waitcnt vmcnt(0) lgkmcnt(0)
    s_barrier
    """)
    st(5)
    first_dmas(a)
    a(f"""
    s_cmp_ge_u32 s{sWV}, 8
    s_cbranch_scc1 K2_QF
    """)
    HF = [AC + 4 * i for i in range(8)] + [20 + 4 * i for i in range(8)]
    PA = [76, 80, 52, 56]
    a(f"""
    s_sub_u32 s{sA}, {HT}, s{sM0}
    v_add_u32 v17, s{sA}, v{vRing}
    v_and_b32 v18, 48, v0
    """)
    for i in range(12):
        a(f"ds_read_b128 {vr(HF[i], 4)}, v17 offset:{hp(i)}")
    a(f"""
    s_lshl_b32 s{sB2}, s{sWV}, 5
    s_add_u32 s{sB2}, s{sB2}, {PT}
    v_lshrrev_b32 v17, 1, v18
    v_and_b32 v19, 15, v0
    v_mul_u32_u24 v19, 288, v19
    v_add3_u32 v17, v17, v19, s{sB2}
    s_bitcmp1_b32 s{sWV}, 0
    s_mov_b32 s{sP0}, {f32(-LOG2E)}
    s_cmov_b32 s{sP0}, {f32(-LOG2E * TINY)}
    """)
    for i in range(16):
        rt, ks = divmod(i, 4)
        a(f"s_waitcnt lgkmcnt({11 if i < 4 else 15 - i})")
        a(mf32(PA[rt], B + 4 * ks, HF[i], ks == 0))
        if i < 4:
            a(f"ds_read_b128 {vr(HF[12 + i], 4)}, v18 offset:{H48 + 64 * i}")
    for rt in range(4):
        p, o = PA[rt], AC + 4 * rt
        a(f"""
        v_pk_mul_f32 {vr(o, 2)}, {vr(p, 2)}, s[{sP0}:{sP0 + 1}] op_sel_hi:[1,0]
        v_pk_mul_f32 {vr(o + 2, 2)}, {vr(p + 2, 2)}, s[{sP0}:{sP0 + 1}] op_sel_hi:[1,0]
        v_cvt_pk_bf16_f32 v{o}, v{o}, v{o + 1}
        v_cvt_pk_bf16_f32 v{o + 1}, v{o + 2}, v{o + 3}
        ds_write_b64 v17, {vr(o, 2)} offset:{rt * 16 * 288}
        """)
    for k in range(8):
        p = vr(PA[k // 2] + 2 * (k & 1), 2)
        a(f"v_pk_mul_f32 v[20:21], {p}, {p}" if k == 0 else f"v_pk_fma_f32 v[20:21], {p}, {p}, v[20:21]")
    a(f"""
    v_add_f32 v20, v20, v21
    v_cmp_ngt_f32 vcc, {f32(64 * LN2 * LN2)}, v20
    s_cbranch_vccnz K2_FLAG
    K2_FLAGB:
    s_waitcnt lgkmcnt(0)
    s_barrier
    K2_GEO:
    """)
    G, O = 20, 28
    a(f"""
    ds_read_b128 {vr(G, 4)}, v{vG0}
    ds_read_b128 {vr(G + 4, 4)}, v{vG1}
    v_mov_b32 v{S}, 0
    v_mov_b32 v{S + 1}, 0
    v_bfe_u32 v17, v0, 2, 2
    v_lshrrev_b32 v18, 4, v0
    v_cmp_eq_u32 vcc, v17, v18
    v_mov_b32 v18, 0x3f80
    v_mov_b32 v19, 0
    v_cndmask_b32 v18, 0, v18, vcc
    v_lshlrev_b32 v17, 4, v0
    v_lshlrev_b64 v[{B + 2}:{B + 3}], v17, v[18:19]
    """)
    for p in range(2):
        a(f"""
        s_waitcnt lgkmcnt(1)
        v_lshlrev_b32_sdwa v{O + 4 * p}, 2, v{G + 4 * p} {SD} src1_sel:WORD_1
        ds_read_b128 {vr(O + 4 * p, 4)}, v{O + 4 * p} offset:{OWN}
        """)
    for u in range(8):
        a(zero4(AC + 4 * u))
        if u < 3:
            a(f"v_mov_b64 {vr(B + 6 * u + 8, 2)}, {vr(B + 2, 2)}")
    for p in range(2):
        g, o = G + 4 * p, O + 4 * p
        a(f"""
        v_lshlrev_b32 v36, 16, v{g + 2}
        v_and_b32 v37, 0xffff0000, v{g + 2}
        s_waitcnt lgkmcnt(1)
        v_pk_add_f32 {vr(o, 2)}, {vr(o, 2)}, v[36:37] neg_lo:[0,1] neg_hi:[0,1]
        v_sub_f32 v{o + 2}, v{o + 2}, v{g + 3}
        v_mul_f32 v{o + 3}, v{o}, v{o}
        v_fmac_f32 v{o + 3}, v{o + 1}, v{o + 1}
        v_fmac_f32 v{o + 3}, v{o + 2}, v{o + 2}
        v_cvt_pk_bf16_f32 v{g + 2}, 1.0, v{o}
        v_mul_f32 v{o + 3}, {f32(-LOG2E)}, v{o + 3}
        v_cvt_pk_bf16_f32 v{g + 3}, v{o + 1}, v{o + 2}
        v_cmp_nlt_f32 vcc, abs(v{g + 1}), s{sTH + 1}
        v_cmp_nlt_f32 s[{sP0}:{sP0 + 1}], abs(v{o + 3}), s{sTH}
        v_cvt_pk_bf16_f32 v{g + 1}, v{o + 3}, v{g + 1}
        ds_write_b128 v{vG0 + p}, {vr(g, 4)} ; nobar
        s_or_b64 vcc, vcc, s[{sP0}:{sP0 + 1}]
        s_and_b64 s[{sP3 + 2 * p}:{sP3 + 2 * p + 1}], s[{sP3 + 2 * p}:{sP3 + 2 * p + 1}], vcc
        """)
    a(f"""
    s_or_b64 s[{sP3}:{sP3 + 1}], s[{sP3}:{sP3 + 1}], s[{sP4}:{sP4 + 1}]
    s_cselect_b32 s{sMODE}, 1, 0
    s_cmp_lt_u32 s{sWV}, 8
    s_cbranch_scc1 K2_G2
    s_barrier
    K2_G2:
    s_cmp_ge_u32 s{sTS}, s{sWT}
    s_cbranch_scc1 K2_NT0
    """)
    st(6)
    a(f"""
    K2_XFR:
    v_lshrrev_b32 v17, 2, v0
    v_and_b32 v18, 3, v0
    v_add_u32 v19, s{sN0}, v17
    v_mul_u32_u24 v19, 288, v19
    v_add_u32 v19, {PT}, v19
    v_lshlrev_b32 v17, 8, v17
    v_add_u32 v17, {WD - 14 * 256}, v17
    v_cndmask_b32 v19, v19, v17, {g3}
    s_mov_b32 vcc_lo, 0
    s_mov_b32 vcc_hi, 0x00ff0000
    v_mov_b32 v17, {OOB}
    v_lshl_add_u32 v19, v18, 3, v19
    v_cndmask_b32 v19, v19, v17, vcc
    ds_read_b32 v17, v{S} offset:{CNT + 224}
    """)
    for u in range(8):
        a(f"ds_read_b64_tr_b16 {vr(B + 6 * (u // 2) + 4 * (u & 1), 2)}, v19 offset:{32 * u}")
    a(f"""
    s_lshl_b32 s{sA}, s{sN0}, 3
    s_sub_u32 s{sA}, {OH + 512}, s{sA}
    v_and_b32 v19, 48, v0
    v_lshlrev_b32 v19, 1, v19
    v_sub_u32 v19, s{sA}, v19
    v_cndmask_b32 v{vBX}, v19, v{vEa}, {g3}
    v_mad_u32_u16 v{vXa}, v{vXa}, v{vMul}, v{vBX} op_sel:[1,0,0,0]
    ds_read_b64 {vr(A, 2)}, v{vXa}
    ds_read_b64 {vr(A + 6, 2)}, v{vXa}
    ds_read_b64 {vr(A + 12, 2)}, v{vXa}
    v_subrev_u32 v18, s{sNW}, v18
    v_and_b32 v18, 3, v18
    v_add_u32 v18, s{sNW}, v18
    v_mul_u32_u24 v18, {OOB}, v18
    v_sub_u32 v18, v{vDa}, v18
    v_add_u32 v{vBS}, 8, v18
    v_mad_u32_u16 v{vSa}, v{vSa}, s{sC000}, v{vBS} op_sel:[1,0,0,0]
    s_waitcnt vmcnt(3)
    {rdq(0)}
    {zero4(ZE + 4)}
    {zero4(L)}
    v_lshl_add_u64 v[{vBX}:{vBS}], v[{vBX}:{vBS}], 0, v[{vIX}:{vIS}]
    v_add_u32 v{vDa}, 512, v{vDa}
    v_add_u32 v{vEa}, 256, v{vEa}
    v_mad_u32_u16 v{vVoff}, v{vD}, s{s256}, v{vLc}
    s_waitcnt vmcnt(2)
    {rdq(1)}
    """)
    window(a)
    a(f"""
    {dma(0)[0]}
    s_waitcnt lgkmcnt(1)
    {Kmf(0, ZE)}
    {dma(0)[1]}
    v_readfirstlane_b32 s{sA}, v17
    s_or_b32 s{sMODE}, s{sMODE}, s{sA} ; @set:mode=x
    """)
    st(7)
    a(f"""
    s_waitcnt lgkmcnt(0)
    K2_EV2:
    s_add_u32 s{sA}, s{sTS}, 32
    s_cmp_lt_u32 s{sA}, s{sWT}
    s_cbranch_scc1 K2_GO
    v_mov_b32 v{vDa}, v{vFa}
    K2_GO:
    s_cmp_lg_u32 s{sMODE}, 0
    s_cbranch_scc1 K2_LOOPF ; @if:mode=1
    K2_LOOP:
    {loop_body(cfg.get('pat', PAT), cfg.get('dord', DORD), True)}
    s_cbranch_scc1 K2_LOOP
    K2_EV:
    s_add_u32 s{sA}, s{sTS}, 16
    s_cmp_lt_u32 s{sEW}, s{sA}
    s_cbranch_scc1 K2_WIN
    s_cmp_lt_u32 s{sTS}, s{sWT}
    s_cbranch_scc1 K2_EV2
    """)
    st(8)
    WT = [A + 2, A + 8, B + 16, B + 20]

    def exit_loads():
        a(f"""
        s_and_b32 s{sA}, s{sWV}, 7
        s_lshl_b32 s{sA}, s{sA}, 12
        s_add_u32 s{sA}, s{sA}, {WS_WB}
        v_lshlrev_b32 v17, 4, v0
        """)
        for ks in range(4):
            a(f"buffer_load_dwordx4 {vr(B + 4 * ks, 4)}, v17, s[{sW}:{sW + 3}], s{sA} offen offset:{1024 * ks}")

    exit_loads()
    F = L
    a(f"""
    s_mov_b32 s{sLAST}, 1 ; @set:last=1
    s_movk_i32 s{sNWN}, 64
    K2_FLUSH:
    v_and_b32 v17, 15, v0
    v_lshlrev_b32 v18, 5, v17
    ds_read_b128 {vr(T, 4)}, v18 offset:{WX}
    s_waitcnt lgkmcnt(1)
    {Ymf(6, ZE + 4)}
    {Ymf(7, L)}
    ds_read_b128 {vr(ZL, 4)}, v18 offset:{WX + 16}
    v_lshrrev_b32 v18, 4, v0
    v_subrev_u32 v18, s{sNW}, v18
    v_and_b32 v18, 3, v18
    v_add_u32 v18, s{sNW}, v18
    s_add_u32 s{sA}, s{sNL}, 1
    s_min_u32 s{sA}, s{sA}, s{sNWN}
    s_add_u32 s{sB2}, s{sWV}, 48
    v_cmp_eq_u32 vcc, s{sNF}, v18
    v_cmp_gt_u32 s[{sP0}:{sP0 + 1}], s{sA}, v18
    v_cmp_gt_u32 s[{sP1}:{sP1 + 1}], s{sNWN}, v18
    v_mov_b32 v19, s{sB2}
    v_cndmask_b32 v19, v18, v19, vcc
    v_mul_u32_u24 v19, {MST}, v19
    v_lshl_add_u32 v19, v17, 4, v19
    v_lshl_add_u32 v18, v18, 4, v17
    """)
    for k in range(4):
        a(f"v_cvt_pk_bf16_f32 v{ZE + 4 + k}, v{AC + 8 * k}, v{AC + 8 * k + 4}")
    a(f"""
    s_mov_b64 exec, s[{sP0}:{sP0 + 1}]
    ds_write_b128 v19, {vr(ZE + 4, 4)} offset:{MR}
    s_mov_b64 exec, -1
    s_waitcnt lgkmcnt(1)
    """)
    for u in range(8):
        w = (T if u < 4 else ZL) + (u & 3)
        wp, hi = w & ~1, w & 1
        if u == 0:
            a(f"v_pk_mul_f32 {vr(F + 2, 2)}, {vr(AC + 2, 2)}, {vr(wp, 2)} op_sel_hi:[1,0]")
            a(f"v_mul_f32 v{F + 1}, v{AC + 1}, v{w}")
        else:
            a(f"v_pk_fma_f32 {vr(F + 2, 2)}, {vr(AC + 4 * u + 2, 2)}, {vr(wp, 2)}, {vr(F + 2, 2)} op_sel:[0,{hi},0] op_sel_hi:[1,{hi},1]")
            a(f"v_fmac_f32 v{F + 1}, v{AC + 4 * u + 1}, v{w}")
    a(f"""
    s_and_b32 s{sP0}, s{sP0}, 0x01110111
    v_add_f32_dpp v{F + 2}, v{F + 2}, v{F + 2} row_ror:8 row_mask:0xf bank_mask:0xf
    v_add_f32_dpp v{F + 1}, v{F + 1}, v{F + 1} row_ror:8 row_mask:0xf bank_mask:0x3
    s_and_b32 s{sP0 + 1}, s{sP0 + 1}, 0x01110111
    v_add_f32_dpp v{F + 2}, v{F + 2}, v{F + 2} row_shr:4 row_mask:0xf bank_mask:0x2
    v_add_f32_dpp v{F + 1}, v{F + 3}, v{F + 3} row_ror:8 row_mask:0xf bank_mask:0xc
    s_nop 1
    v_add_f32_dpp v{F + 2}, v{F + 1}, v{F + 1} row_shl:4 row_mask:0xf bank_mask:0x5
    s_nop 1
    v_add_f32_dpp v{F + 2}, v{F + 2}, v{F + 2} quad_perm:[1,0,3,2] row_mask:0xf bank_mask:0xf
    s_nop 1
    v_add_f32_dpp v{F + 2}, v{F + 2}, v{F + 2} quad_perm:[2,3,0,1] row_mask:0xf bank_mask:0xf
    s_mov_b64 exec, s[{sP0}:{sP0 + 1}]
    ds_add_f32 v18, v{F + 2} offset:{PAC}
    s_mov_b64 exec, -1
    s_cmp_eq_u32 s{sLAST}, 0
    s_cbranch_scc1 K2_SLIDE ; @if:last=0
    s_waitcnt vmcnt(5)
    K2_POST:
    {rdq(2, WT[2])}
    {rdq(3, WT[3])}
    """)
    st(9)
    YA, YB = Y, Y + 4
    HA, HB = 44, 48
    vMa, vM3, vSe, vOa = 1, 2, 3, 4
    a(f"""
    s_lshr_b32 s{sD}, s{sWV}, 3
    s_lshl_b32 s{sA}, s{sD}, 12
    s_sub_u32 s{sB2}, {HT}, s{sM0}
    v_add_u32 v18, s{sB2}, v{vRing}
    v_add_u32 v17, s{sA}, v18
    v_and_b32 v5, 15, v0
    v_and_b32 v6, 48, v0
    s_cmp_eq_u32 s{sFIRST}, 0
    s_cbranch_scc1 K2_NOGH
    """)
    for ks in range(4):
        a(f"ds_read_b128 {vr(AC + 4 * ks, 4)}, v17 offset:{hp(4 + ks)}")
    a(f"""
    s_mov_b32 s{sP0}, {f32(-LOG2E / (1 + DELTA))}
    s_cmp_lg_u32 s{sD}, 0
    s_cbranch_scc1 K2_GH1
    """)
    for ks in range(4):
        a(f"ds_read_b128 {vr(AC + 16 + 4 * ks, 4)}, v18 offset:{hp(ks)}")
    for ks in range(4):
        a(f"s_waitcnt lgkmcnt({7 - ks})\n" + mf32(YA, WT[ks], AC + 4 * ks, ks == 0))
    for ks in range(4):
        a(f"s_waitcnt lgkmcnt({3 - ks})\n" + mf32(YB, WT[ks], AC + 16 + 4 * ks, ks == 0))
    a(f"""
    K2_GH2:
    s_nop 3
    v_pk_mul_f32 {vr(YA, 2)}, {vr(YA, 2)}, s[{sP0}:{sP0 + 1}] op_sel_hi:[1,0]
    v_pk_mul_f32 {vr(YA + 2, 2)}, {vr(YA + 2, 2)}, s[{sP0}:{sP0 + 1}] op_sel_hi:[1,0]
    s_nop 1
    v_pk_mul_f32 {vr(YB, 2)}, {vr(YB, 2)}, s[{sP0}:{sP0 + 1}] op_sel_hi:[1,0]
    v_pk_mul_f32 {vr(YB + 2, 2)}, {vr(YB + 2, 2)}, s[{sP0}:{sP0 + 1}] op_sel_hi:[1,0]
    K2_NOGH:
    s_and_b32 s{sC}, s{sWV}, 1
    s_lshl_b32 s{sC}, s{sC}, 1
    v_lshrrev_b32 v7, 5, v0
    v_lshrrev_b32 v8, 2, v0
    v_and_b32 v8, 2, v8
    v_xor_b32 v8, s{sC}, v8
    v_or_b32 v7, v7, v8
    v_lshlrev_b32 v7, 4, v7
    v_lshl_add_u32 v7, v5, 6, v7
    v_lshrrev_b32 v8, 1, v6
    v_and_or_b32 v7, v8, 8, v7
    s_bfe_u32 s{sC}, s{sWV}, 0x20001
    s_lshl_b32 s{sB2}, s{sC}, 10
    s_add_u32 s{sA}, s{sA}, s{sB2}
    s_add_u32 s{sA}, s{sA}, {hp(4)}
    s_cmp_eq_u32 s{sC}, 3
    s_cselect_b32 s{sB2}, {hp(3)}, s{sB2}
    v_add_u32 v9, s{sA}, v7
    v_add_u32 v7, s{sB2}, v7
    s_and_b32 s{sC}, s{sWV}, 7
    s_lshl_b32 s{sC}, s{sC}, 5
    v_lshl_add_u32 v10, v5, 1, s{sC}
    ds_read_b64 v[52:53], v9 offset:{HT}
    ds_read_b64 v[54:55], v7 offset:{HT}
    ds_read_u16_d16_hi v56, v10 offset:{H48}
    s_mul_i32 s{sA}, s{sD}, {16 * MST}
    v_mul_u32_u24 v{vM3}, {MST}, v5
    v_add_u32 v{vM3}, v{vM3}, v6
    v_add_u32 v{vMa}, s{sA}, v{vM3}
    s_lshl_b32 s{sA}, s{sD}, 9
    v_lshl_add_u32 v11, v5, 5, v8
    v_add_u32 v{vSe}, s{sA}, v11
    s_mul_i32 s{sA}, s{sD}, 1536
    v_add_u32 v11, s{sA}, v11
    s_mul_i32 s{sA}, s{sD}, {16 * OST}
    s_add_u32 s{sA}, s{sA}, s{sC}
    s_add_u32 s{sA}, s{sA}, {OT}
    v_mul_u32_u24 v{vOa}, {OST}, v5
    v_add3_u32 v{vOa}, v{vOa}, v8, s{sA}
    v_add_u32 v10, {OT + 48 * OST}, v10
    s_mov_b32 s{sP0}, {f32(1 + DELTA)}
    s_mov_b32 s{sP0 + 1}, {f32(-LN2)}
    s_waitcnt lgkmcnt(0)
    """)
    for k in range(4):
        a(f"v_lshlrev_b32 v{HA + 2 * k}, 16, v{52 + k}\nv_and_b32 v{HA + 2 * k + 1}, 0xffff0000, v{52 + k}")
    Z, ZB, SA, SB, MB = 36, 40, 52, 54, 20
    a(f"""
    s_cmp_lg_u32 s{sD}, 0
    s_waitcnt vmcnt(0)
    s_barrier
    """)
    st(10)
    for ks in range(4):
        a(f"ds_read_b128 {vr(AC + 4 * ks, 4)}, v{vM3} offset:{MR + 48 * MST + 64 * ks}")
    for ks in range(4):
        a(f"ds_read_b128 {vr(AC + 16 + 4 * ks, 4)}, v{vMa} offset:{MR + 16 * MST + 64 * ks}")
    a(f"""
    ds_read_b64 {vr(SA, 2)}, v{vSe} offset:{SEL + 512}
    ds_read_b64 {vr(SB, 2)}, v11 offset:{SEL}
    s_cbranch_scc1 K2_E1
    """)
    mf16 = lambda d, x, y: f"v_mfma_f32_16x16x16_bf16 {vr(d, 4)}, {vr(x, 2)}, {vr(y, 2)}, {vr(d, 4)}"

    def gemm_a(extra):
        for ks in range(4):
            a(f"s_waitcnt lgkmcnt({9 + extra - ks})\n" + mf32(Z, AC + 4 * ks, B + 4 * ks, ks == 0))
        for ks in range(4):
            a(f"s_waitcnt lgkmcnt({5 + extra - ks})\n" + mf32(YA, B + 4 * ks, AC + 16 + 4 * ks))
        a(f"v_cvt_pk_bf16_f32 v{ZB}, v{Z}, v{Z + 1}\nv_cvt_pk_bf16_f32 v{ZB + 1}, v{Z + 2}, v{Z + 3}")

    for ks in range(4):
        a(f"ds_read_b128 {vr(MB + 4 * ks, 4)}, v{vM3} offset:{MR + 64 * ks}")
    gemm_a(4)
    for ks in range(4):
        a(f"s_waitcnt lgkmcnt({3 - ks})\n" + mf32(YB, B + 4 * ks, MB + 4 * ks))
        if ks == 2:
            a(mf16(YA, ZB, SA))
    a(f"""
    s_cmp_lg_u32 s{sRARE}, 0
    s_nop 6
    {mf16(YB, ZB, SB)}
    s_cbranch_scc1 K2_NEXT
    K2_S0:
    """)
    silu4(a, YA, HA, 20)
    a(f"ds_write_b64 v{vOa}, {vr(YA, 2)} offset:{16 * OST}")
    silu4(a, YB, HB, 20)
    a(f"""
    ds_write_b64 v{vOa}, {vr(YB, 2)}
    K2_OUT:
    s_lshl_b32 s{sC}, s{sNB}, 8
    s_add_u32 s{sO}, s20, s{sC}
    s_addc_u32 s{sO + 1}, s21, 0
    s_lshl_b32 s{sO + 2}, s{sNV}, 8
    s_mov_b32 s{sO + 3}, 0x20000
    s_lshl_b32 s{sA}, s{sWV}, 10
    v_lshl_add_u32 v7, v0, 4, s{sA}
    s_lshl_b32 s{sA}, s{sWV}, 6
    s_add_u32 s{sA}, s{sA}, {OT}
    v_add3_u32 v8, v7, v6, s{sA}
    s_cmp_ge_u32 s{sWV}, 13
    s_waitcnt lgkmcnt(0)
    s_barrier
    s_cbranch_scc1 K2_FIN
    """)
    st(11)
    a(f"""
    ds_read_b128 v[20:23], v8
    s_waitcnt lgkmcnt(0)
    buffer_store_dwordx4 v[20:23], v7, s[{sO}:{sO + 3}], 0 offen sc1
    K2_FIN:
    """)
    st(12)
    stamp_out(a, cfg, 1, 22)
    a("K2_END:\ns_endpgm")

    a("K2_GH1:")
    for ks in range(4):
        a(f"ds_read_b128 {vr(AC + 16 + 4 * ks, 4)}, v6 offset:{H48 + 64 * ks}")
    for ks in range(4):
        a(f"s_waitcnt lgkmcnt({7 - ks})\n" + mf32(YA, WT[ks], AC + 4 * ks, ks == 0))
    for ks in range(4):
        a(f"s_waitcnt lgkmcnt({3 - ks})\n" + mf32(YB, AC + 16 + 4 * ks, WT[ks], ks == 0))
    a("s_branch K2_GH2\nK2_E1:")
    gemm_a(0)
    a(f"""
    s_waitcnt lgkmcnt(0)
    s_cmp_lg_u32 s{sRARE}, 0
    {mf16(YB, SB, ZB)}
    s_nop 2
    {mf16(YA, ZB, SA)}
    s_cbranch_scc1 K2_NEXT
    K2_S1:
    s_sub_u32 s{sA}, s{sWV}, 13
    s_lshl_b32 s{sA}, s{sA}, 6
    v_add_u32 v11, s{sA}, v0
    v_mul_u32_u24 v12, 171, v11
    v_lshrrev_b32 v12, 9, v12
    v_add_lshl_u32 v13, v11, v12, 2
    ds_read_b32 v14, v13 offset:{PAC}
    ds_read_b32 v15, v13 offset:{OWN}
    """)
    silu4(a, YA, HA, 20)
    a(f"""
    ds_write_b64 v{vOa}, {vr(YA, 2)} offset:{16 * OST}
    v_mul_f32 v{YB}, s{sP0}, v{YB}
    v_exp_f32 v20, v{YB}
    v_mul_f32 v{YB}, s{sP0 + 1}, v{YB}
    v_add_f32 v20, 1.0, v20
    v_rcp_f32 v20, v20
    v_cmp_gt_u32 vcc, s{sNV}, v12
    v_fmac_f32 v56, v20, v{YB}
    v_cvt_pk_bf16_f32 v56, v56, v56
    s_mov_b64 exec, 0xffff
    ds_write_b16 v10, v56
    s_mov_b64 exec, -1
    s_cmp_lt_u32 s{sWV}, 13
    s_cbranch_scc1 K2_OUT
    s_mul_i32 s{sA}, s{sNB}, 6
    s_add_u32 s{sA}, s{sA}, {N * 256}
    v_lshl_add_u32 v11, v11, 1, s{sA}
    s_waitcnt lgkmcnt(2)
    v_add_f32 v14, v14, v15
    v_cvt_pk_bf16_f32 v14, v14, v14
    s_mov_b64 exec, vcc
    global_store_short v11, v14, s[20:21] sc1
    s_mov_b64 exec, -1
    s_branch K2_OUT
    """)
    a(f"""
    K2_FLD:
    s_mov_b32 s{sA}, {WS_FLG - 13 * 64 * 128}
    v_lshl_add_u32 v59, v{vT}, 7, s{sA}
    buffer_load_dwordx3 {vr(B, 3)}, v59, s[{sW}:{sW + 3}], 0 offen
    s_branch K2_LUT
    K2_H48:
    s_cmp_lg_u32 s{sWV}, 12
    s_cbranch_scc1 K2_NOW1
    s_mov_b32 m0, {H48}
    s_mov_b64 exec, 0xffff
    buffer_load_dwordx4 v58, s[{sH}:{sH + 3}], s{sA} offen lds
    s_mov_b64 exec, -1
    s_branch K2_NOW1
    K2_OWN1:
    v_add_u32 v50, s{sNB}, v0
    v_lshl_add_u32 v54, v50, 1, v48
    v_lshl_add_u32 v50, v50, 2, v48
    ds_read_b32 v50, v50 offset:{POSL - PBASE}
    ds_read_u16_d16_hi v54, v54 offset:{POSL + 50000 - PBASE}
    s_branch K2_OWN1B
    K2_PAD:
    s_cmp_eq_u32 s{sWV}, 14
    s_cbranch_scc1 K2_OWN2
    v_add_lshl_u32 v25, v0, s{sTOT}, 4
    v_mov_b32 v52, {N | (4 * PADN) << 16}
    v_mov_b32 v53, 0
    v_mov_b32 v54, 0
    v_mov_b32 v55, 0
    v_cndmask_b32 v25, v25, v24, {g3}
    ds_write_b128 v25, v[52:55] offset:{LIST}
    s_branch K2_PADB
    K2_OWN2:
    v_cmp_gt_u32 vcc, s{sNV}, v0
    v_mov_b32 v55, 0
    s_mov_b32 exec_hi, 0x1fffff
    v_cndmask_b32 v50, 0, v50, vcc
    v_cndmask_b32 v54, 0, v54, vcc
    v_lshlrev_b32 v52, 16, v50
    v_and_b32 v53, 0xffff0000, v50
    v_and_b32 v54, 0xffff0000, v54
    ds_write_b128 v58, v[52:55] offset:{OWN}
    s_mov_b64 exec, -1
    s_branch K2_PADB
    K2_QF:
    s_cmp_lt_u32 s{sWV}, 13
    s_cbranch_scc1 K2_GEO
    v_or3_b32 v17, v{B}, v{B + 1}, v{B + 2}
    v_cmp_ne_u32 vcc, 0, v17
    s_cbranch_vccz K2_GEO
    K2_FLAG:
    v_mov_b32 v17, {CNT + 224}
    ds_write_b32 v17, v17
    s_waitcnt lgkmcnt(0)
    s_cmp_lt_u32 s{sWV}, 8
    s_cbranch_scc1 K2_FLAGB
    s_branch K2_GEO
    K2_NT0:
    s_waitcnt vmcnt(0)
    {rdq(0)}
    {rdq(1)}
    """)
    exit_loads()
    a("s_branch K2_POST")
    a(f"""
    K2_WIN:
    s_min_u32 s{sA}, s{sEW}, s{sTS}
    v_cmp_ge_u32 vcc, s{sA}, v{vIncl}
    s_mov_b32 s{sLAST}, 0 ; @set:last=0
    s_bcnt1_i32_b64 s{sNWN}, vcc
    s_branch K2_FLUSH
    K2_SLIDE:
    v_mov_b32 v{S}, 0
    v_mov_b32 v{S + 1}, 0
    v_and_b32 v17, 3, v0
    v_subrev_u32 v18, s{sNW}, v17
    v_subrev_u32 v17, s{sNWN}, v17
    v_and_b32 v18, 3, v18
    v_and_b32 v17, 3, v17
    s_sub_u32 s{sA}, s{sNWN}, s{sNW}
    v_sub_u32 v17, v17, v18
    v_add_u32 v17, s{sA}, v17
    v_mul_u32_u24 v17, {OOB}, v17
    s_mov_b32 s{sNW}, s{sNWN}
    s_mov_b64 exec, s[{sP1}:{sP1 + 1}]
    """)
    for k in range(16):
        a(f"v_mov_b64 {vr(AC + 2 * k, 2)}, 0")
    a(f"""
    s_mov_b64 exec, -1
    s_cmp_lt_u32 s{sEW}, s{sTS}
    s_cbranch_scc1 K2_REDO
    s_sub_u32 s{sA}, s{sNW}, s{sN0}
    s_cmp_gt_u32 s{sA}, 8
    s_cbranch_scc1 K2_RESTART
    {zero4(ZE + 4)}
    {zero4(L)}
    v_sub_u32 v{vSa}, v{vSa}, v17
    v_sub_u32 v{vBS}, v{vBS}, v17
    """)
    window(a)
    a(f"""
    s_branch K2_EV2
    K2_REDO:
    s_sub_u32 s{sTS}, s{sTS}, 16
    K2_RESTART:
    s_mov_b32 s{sN0}, s{sNW}
    """)
    ptrs(a)
    a("s_waitcnt vmcnt(0) lgkmcnt(0)")
    first_dmas(a)
    a(f"""
    s_waitcnt lgkmcnt(0)
    s_branch K2_XFR
    K2_LOOPF:
    {loop_body('M1 Y1 M2 Y2 Fa Fb m s 0 v D V', DORD, False)}
    s_cbranch_scc1 K2_LOOPF
    s_branch K2_EV
    """)
    a(f"""
    K2_OVF:
    v_lshrrev_b32 v49, 3, v{vT}
    v_lshlrev_b32 v50, v49, v19
    v_lshrrev_b32 v49, 5, v49
    v_lshlrev_b32 v49, 2, v49
    s_mov_b64 exec, vcc
    ds_or_b32 v49, v50 offset:{CNT + 208}
    s_mov_b64 exec, -1
    s_branch K2_OVFB
    K2_MASK:
    """)
    for k in range(4):
        a(f"v_readlane_b32 s{sMK + k}, v49, {52 + k}")
    a(f"""
    v_cmp_gt_u32 vcc, 52, v0
    s_mov_b32 s{sRARE}, 1
    s_nop 0
    v_cndmask_b32 v49, 0, v49, vcc
    s_branch K2_MASKB
    K2_SHRINK:
    s_movk_i32 s{sWID}, {CAP // 4}
    s_mov_b32 s{sLO}, 0
    s_mov_b32 s{sRARE}, 1
    s_branch K2_ROUND
    K2_NEXT:
    s_mov_b32 s{sFIRST}, 0
    s_add_u32 s{sLO}, s{sLO}, s{sWID}
    s_cmp_lt_u32 s{sWID}, 1024
    s_cselect_b32 s{sA}, s{sLO}, 1024
    s_cmp_lt_u32 s{sA}, 1000
    s_cbranch_scc1 K2_ROUND
    s_mov_b32 s{sLO}, 0
    s_movk_i32 s{sWID}, 1024
    s_ff1_i32_b64 s{sSRC}, s[{sMK}:{sMK + 1}]
    s_cmp_lt_i32 s{sSRC}, 0
    s_cbranch_scc1 K2_NEXT2
    s_bitset0_b64 s[{sMK}:{sMK + 1}], s{sSRC}
    s_branch K2_ROUND
    K2_NEXT2:
    s_ff1_i32_b64 s{sSRC}, s[{sMK + 2}:{sMK + 3}]
    s_cmp_lt_i32 s{sSRC}, 0
    s_cbranch_scc0 K2_NEXT3
    s_cmp_lg_u32 s{sD}, 0
    s_cbranch_scc1 K2_S1
    s_branch K2_S0
    K2_NEXT3:
    s_bitset0_b64 s[{sMK + 2}:{sMK + 3}], s{sSRC}
    s_add_u32 s{sSRC}, s{sSRC}, 64
    K2_ROUND:
    s_load_dwordx4 s[8:11], s[0:1], 16
    s_load_dwordx2 s[12:13], s[0:1], 32
    s_lshl_b32 s{sA}, s{sWV}, 6
    v_add_u32 v{vT}, s{sA}, v0
    s_waitcnt vmcnt(0) lgkmcnt(0)
    s_barrier
    """)
    zero_init(a, (PAC - MR - 16384) // 16)
    rec_addr(a)
    a(f"""
    s_cmp_ge_i32 s{sSRC}, 0
    s_cbranch_scc1 K2_RAW
    """)
    rec_load(a)
    a(f"""
    s_waitcnt vmcnt(0)
    v_and_b32 v{vDL}, 0xbfbfbfbf, v{vDL}
    s_branch K2_RANGE
    K2_RAW:
    s_cmp_ge_u32 s{sWV}, 13
    s_cbranch_scc1 K2_RANGE
    s_mul_i32 s{sA}, s{sSRC}, 12800
    v_cmp_gt_u32 vcc, 800, v{vT}
    v_add_u32 v28, s{sA}, v19
    v_lshrrev_b32 v29, 1, v28
    s_mov_b64 exec, vcc
    global_load_dwordx4 v[32:35], v28, s[12:13]
    global_load_dwordx4 {vr(W, 4)}, v28, s[10:11]
    global_load_dwordx2 v[36:37], v29, s[8:9]
    s_mov_b32 s{sA}, 342393
    s_mov_b32 s{sB2}, 0xffff0000
    v_mov_b32 v38, 0xbf
    s_waitcnt vmcnt(0)
    """)
    for j in range(4):
        a(f"""
        v_mul_u32_u24 v{32 + j}, s{sA}, v{32 + j}
        v_lshrrev_b32 v39, 24, v{32 + j}
        v_cmp_eq_u32 vcc, s{sB}, v39
        v_mul_hi_u32_u24 v{32 + j}, 12544, v{32 + j}
        """)
        if j & 1:
            a(f"v_and_or_b32 v{W + j}, v{36 + j // 2}, s{sB2}, v{W + j}")
        else:
            a(f"v_lshl_or_b32 v{W + j}, v{36 + j // 2}, 16, v{W + j}")
        a(f"v_cndmask_b32 v{32 + j}, v38, v{32 + j}, vcc")
    a(f"""
    v_lshl_or_b32 v32, v33, 8, v32
    v_lshl_or_b32 v34, v35, 8, v34
    v_lshl_or_b32 v{vDL}, v34, 16, v32
    s_mov_b64 exec, -1
    K2_RANGE:
    v_subrev_u32 v28, s{sLO}, v{vT}
    v_cmp_gt_u32 vcc, s{sWID}, v28
    v_mov_b32 v28, 0xbfbfbfbf
    s_waitcnt lgkmcnt(0)
    v_cndmask_b32 v{vDL}, v28, v{vDL}, vcc
    s_branch K2_B0
    """)
    return a.text()
```

```python
from common import *


def warm(cfg, k):
    w = cfg.get("warm")
    if not w:
        return ""
    body = f"""v_and_b32 v60, 63, v0
    v_mul_u32_u24 v60, {w * 1024}, v60
    v_add_u32 v60, {WS_REC if k == 0 else 0}, v60
    s_mov_b64 exec, {(1 << ((0x500000 if k == 0 else 0x340000) // 1024 // w + 1)) - 1 if w >= 256 else -1}
    global_load_dword v60, v60, s[20:21]
    s_mov_b64 exec, -1"""
    if k:
        return f"K1_WARM:\n{body}\ns_waitcnt vmcnt(1)\ns_barrier\ns_branch K1_AEND"
    return f"s_cmp_lg_u32 s3, 15\ns_cbranch_scc1 K1_NW\n{body}\nK1_NW:"


def gen_k1(cfg):
    a = Asm()
    CNT = 40960
    a(f"""
    s_load_dwordx16 s[4:19], s[0:1], 0
    s_load_dwordx2 s[20:21], s[0:1], 80
    v_lshrrev_b32 v1, 6, v0
    s_cmp_ge_u32 s2, 256
    s_cbranch_scc1 K1_END
    v_readfirstlane_b32 s3, v1
    s_cmp_ge_u32 s2, 125
    s_cbranch_scc1 K1_Q
    """)
    a(f"""
    s_mul_i32 s22, s2, 12800
    v_lshlrev_b32 v28, 4, v0
    v_add_u32 v2, s22, v28
    v_lshrrev_b32 v3, 1, v2
    v_cmp_gt_u32 vcc, 800, v0
    s_cmp_lt_u32 s3, 8
    s_cselect_b32 s23, 0xbfbfbfbf, 0
    s_cselect_b32 s26, 64, 0
    s_cselect_b32 s27, 0, {CNT - 8192}
    v_and_b32 v14, 0x3fe, v0
    v_mul_u32_u24 v14, s26, v14
    v_add3_u32 v14, v14, v28, s27
    v_mov_b32 v16, s23
    v_mov_b32 v17, s23
    v_mov_b32 v18, s23
    v_mov_b32 v19, s23
    s_mov_b64 s[24:25], vcc
    s_mov_b64 exec, vcc
    s_waitcnt lgkmcnt(0)
    s_cbranch_execz K1_PL
    global_load_dwordx4 v[4:7], v2, s[12:13]
    global_load_dwordx4 v[8:11], v2, s[10:11]
    global_load_dwordx2 v[12:13], v3, s[8:9]
    K1_PL:
    s_mov_b64 exec, -1
    {warm(cfg, 0)}
    ds_write_b128 v14, v[16:19]
    """)
    stamp(a, cfg, 0, 0, True)
    stamp(a, cfg, 0, 2)
    GA, LA, CA = 40, 44, 48
    a(f"""
    s_lshl_b32 s22, s2, 7
    s_add_u32 s22, s22, {WS_REC}
    s_add_u32 s20, s20, s22
    s_addc_u32 s21, s21, 0
    s_movk_i32 s26, {RST - 128}
    v_lshrrev_b32 v21, 3, v0
    v_mad_u32_u24 v{GA}, v21, s26, v28
    v_add_u32 v{GA + 1}, {128 * RST}, v{GA}
    v_lshl_add_u32 v{LA}, v21, 5, v28
    v_lshlrev_b32 v{CA}, 2, v21
    """)
    a(f"""
    s_mov_b32 s26, 342393
    s_movk_i32 s27, 12544
    s_mov_b32 s28, 0xffff0000
    v_mov_b32 v29, 1
    s_waitcnt lgkmcnt(0)
    s_barrier
    s_cmp_ge_u32 s3, 13
    s_cbranch_scc1 K1_PB
    s_mov_b64 exec, s[24:25]
    s_waitcnt vmcnt(2)
    """)
    stamp(a, cfg, 0, 3)
    for j in range(4):
        a(f"""
        v_mul_u32_u24 v{4 + j}, s26, v{4 + j}
        v_lshlrev_b32_sdwa v{14 + j}, 2, v{4 + j} {SD} src1_sel:BYTE_3
        ds_add_rtn_u32 v{18 + j}, v{14 + j}, v29 offset:{CNT}
        """)
    for j in range(4):
        a(f"""
        v_mul_hi_u32_u24 v{4 + j}, s27, v{4 + j}
        v_mul_u32_u24 v{14 + j}, 40, v{14 + j}
        """)
    a("s_waitcnt vmcnt(0)")
    for j in range(4):
        if j & 1:
            a(f"v_and_or_b32 v{8 + j}, v{12 + j // 2}, s28, v{8 + j}")
        else:
            a(f"v_lshl_or_b32 v{8 + j}, v{12 + j // 2}, 16, v{8 + j}")
    for j in range(4):
        a(f"""
        s_waitcnt lgkmcnt({3 + j})
        v_min_u32 v{18 + j}, 31, v{18 + j}
        v_add_u32 v22, v{14 + j}, v{18 + j}
        v_lshl_add_u32 v23, v{18 + j}, 2, v{14 + j}
        ds_write_b8 v22, v{4 + j}
        ds_write_b32 v23, v{8 + j} offset:32
        """)
    a(f"""
    s_mov_b64 exec, -1
    K1_PB:
    s_waitcnt lgkmcnt(0)
    s_barrier
    """)
    stamp(a, cfg, 0, 4)
    a(f"""
    ds_read_b32 v{CA + 1}, v{CA} offset:{CNT + 512}
    ds_read_b32 v{CA}, v{CA} offset:{CNT}
    ds_read_b128 v[4:7], v{LA}
    ds_read_b128 v[8:11], v{LA} offset:{128 * 160}
    s_waitcnt lgkmcnt(2)
    v_max_u32 v20, v{CA}, v{CA + 1}
    v_cmp_lt_u32 vcc, 24, v20
    s_cbranch_vccnz K1_OVF
    K1_ST:
    s_waitcnt lgkmcnt(1)
    global_store_dwordx4 v{GA}, v[4:7], s[20:21] sc1
    s_waitcnt lgkmcnt(0)
    global_store_dwordx4 v{GA + 1}, v[8:11], s[20:21] sc1
    """)
    if cfg.get("diag"):
        a("s_sub_u32 s20, s20, s22\ns_subb_u32 s21, s21, 0")
    stamp(a, cfg, 0, 5)
    stamp_out(a, cfg, 0, 20)
    a(f"""
    s_endpgm
    K1_OVF:
    ds_read_b128 v[12:15], v{LA} offset:128
    ds_read_b128 v[16:19], v{LA} offset:{128 * 160 + 128}
    s_mul_i32 s26, s2, -96
    s_add_u32 s26, s26, 16000
    s_mov_b32 s30, 0x03030303
    s_mov_b32 s31, 0x03030303
    v_add_u32 v20, s26, v{GA}
    v_add_u32 v21, s26, v{GA + 1}
    s_waitcnt lgkmcnt(0)
    """)
    for i in range(2):
        a(f"""
        v_cmp_lt_u32 vcc, 24, v{CA + i}
        s_and_b64 exec, vcc, s[30:31]
        s_cbranch_execz K1_OV{i}
        global_store_dwordx4 v{20 + i}, {vr(12 + 4 * i, 4)}, s[20:21] sc1
        v_cmpx_lt_u32 vcc, 32, v{CA + i}
        """)
        for k in range(4):
            a(f"v_mov_b32 v{4 + 4 * i + k}, -1")
        a(f"K1_OV{i}:\ns_mov_b64 exec, -1")
    a("s_branch K1_ST")

    WL, HL = 0, 32768
    a(f"""
    K1_Q:
    s_setreg_imm32_b32 hwreg(HW_REG_MODE, 4, 2), 3
    v_and_b32 v1, 63, v0
    s_sub_u32 s37, s2, 125
    s_mul_i32 s22, s37, 96
    v_lshrrev_b32 v2, 4, v1
    v_and_b32 v3, 15, v1
    s_and_b32 s23, s3, 1
    s_lshl_b32 s24, s23, 2
    v_or_b32 v4, s24, v2
    v_lshlrev_b32 v4, 1, v4
    v_xor_b32 v4, v4, v3
    v_lshlrev_b32 v4, 4, v4
    v_lshl_add_u32 v4, v2, 8, v4
    s_lshl_b32 s24, s3, 11
    s_add_u32 s25, s24, 32768
    s_mov_b32 m0, s24
    v_lshrrev_b32 v5, 2, v1
    v_lshrrev_b32 v6, 5, v1
    v_lshlrev_b32 v6, 1, v6
    v_and_b32 v7, 3, v1
    v_xor_b32 v6, v6, v7
    v_lshlrev_b32 v6, 4, v6
    v_lshl_add_u32 v5, v5, 8, v6
    s_waitcnt lgkmcnt(0)
    """)
    srd(a, 28, 14, 258 * 256)
    a(f"""
    buffer_load_dwordx4 v4, s[28:31], s25 offen lds
    buffer_load_dwordx4 v4, s[28:31], s25 offen offset:1024 lds
    s_cmp_ge_u32 s3, 12
    s_cbranch_scc1 K1_AUX
    """)
    srd(a, 32, 4, N * 256)
    a(f"""
    s_lshr_b32 s26, s3, 1
    s_lshl_b32 s26, s26, 4
    s_add_u32 s26, s26, s22
    s_lshl_b32 s26, s26, 8
    s_lshl_b32 s27, s23, 7
    s_add_u32 s26, s26, s27
    s_add_u32 s27, s24, {HL}
    s_mov_b32 m0, s27
    s_add_u32 s36, s26, 64
    buffer_load_dwordx4 v5, s[32:35], s26 offen lds
    s_add_u32 s27, s27, 1024
    s_mov_b32 m0, s27
    s_nop 0
    buffer_load_dwordx4 v5, s[32:35], s36 offen lds
    """)
    stamp(a, cfg, 0, 0, True)
    stamp(a, cfg, 0, 2)
    a(f"""
    v_lshrrev_b32 v6, 3, v3
    v_lshlrev_b32 v6, 1, v6
    v_xor_b32 v6, v6, v2
    v_lshlrev_b32 v6, 4, v6
    v_lshl_add_u32 v6, v3, 6, v6
    s_lshr_b32 s27, s3, 1
    s_lshl_b32 s27, s27, 12
    v_add_u32 v6, s27, v6
    v_bfe_u32 v8, v1, 2, 2
    v_and_b32 v9, 1, v2
    v_xor_b32 v9, s23, v9
    v_lshl_or_b32 v9, v9, 2, v8
    v_lshlrev_b32 v9, 5, v9
    v_lshl_or_b32 v9, v7, 3, v9
    v_lshl_add_u32 v8, v2, 3, v8
    v_lshl_add_u32 v8, v8, 8, v9
    v_xor_b32 v9, 32, v8
    v_xor_b32 v10, 64, v8
    v_xor_b32 v11, 0x60, v8
    v_lshlrev_b32 v12, 3, v3
    v_lshl_add_u32 v12, v2, 10, v12
    v_add_u32 v12, s26, v12
    v_and_b32 v14, 1, v1
    v_mul_u32_u24 v14, 101, v14
    v_lshlrev_b32 v14, 23, v14
    v_sub_u32 v14, {f32(-LOG2E)}, v14
    s_lshl_b32 s24, s37, 7
    s_add_u32 s24, s24, s3
    s_add_u32 s24, s24, {WS_FLG}
    v_mov_b32 v13, s24
    s_waitcnt vmcnt(0)
    s_barrier
    """)
    stamp(a, cfg, 0, 3)
    AF, BF, AC = 16, 32, 96
    for ks in range(4):
        a(f"ds_read_b128 v[{AF + 4 * ks}:{AF + 4 * ks + 3}], v6 offset:{HL + 1024 * ks}")
        for tt in range(4):
            for i in range(2):
                d = BF + 16 * ks + 4 * tt + 2 * i
                a(f"ds_read_b64_tr_b16 v[{d}:{d + 1}], v{8 + tt} offset:{WL + 8192 * ks + 1024 * i}")
        if ks >= 1:
            k = ks - 1
            a("s_waitcnt lgkmcnt(9)")
            for tt in range(4):
                c = "0" if k == 0 else vr(AC + 4 * tt, 4)
                a(f"v_mfma_f32_16x16x32_bf16 {vr(AC + 4 * tt, 4)}, {vr(AF + 4 * k, 4)}, {vr(BF + 16 * k + 4 * tt, 4)}, {c}")
    for tt in range(4):
        a(f"s_waitcnt lgkmcnt({6 - 2 * tt})")
        a(f"v_mfma_f32_16x16x32_bf16 {vr(AC + 4 * tt, 4)}, {vr(AF + 12, 4)}, {vr(BF + 48 + 4 * tt, 4)}, {vr(AC + 4 * tt, 4)}")
    a("s_nop 1")
    for tt in range(4):
        for k in (0, 2):
            a(f"v_pk_mul_f32 {vr(BF + 4 * tt + k, 2)}, {vr(AC + 4 * tt + k, 2)}, v[14:15] op_sel_hi:[1,0]")
    for r in range(4):
        a(f"""
        v_cvt_pk_bf16_f32 v{16 + 2 * r}, v{BF + r}, v{BF + 4 + r}
        v_cvt_pk_bf16_f32 v{17 + 2 * r}, v{BF + 8 + r}, v{BF + 12 + r}
        global_store_dwordx2 v12, v[{16 + 2 * r}:{17 + 2 * r}], s[20:21] offset:{256 * r} sc1
        """)
    a(f"v_pk_mul_f32 v[4:5], {vr(AC, 2)}, {vr(AC, 2)}")
    for k in range(1, 8):
        a(f"v_pk_fma_f32 v[4:5], {vr(AC + 2 * k, 2)}, {vr(AC + 2 * k, 2)}, v[4:5]")
    a(f"""
    v_add_f32 v4, v4, v5
    v_cmp_ngt_f32 vcc, {f32(64 * LN2 * LN2)}, v4
    s_bcnt1_i32_b64 s24, vcc
    v_mov_b32 v4, s24
    s_mov_b64 exec, 1
    {'' if cfg.get('noflag') else 'global_store_byte v13, v4, s[20:21] sc1'}
    """)
    stamp(a, cfg, 0, 4)
    stamp_out(a, cfg, 0, 20)
    a("s_endpgm")

    a(f"""
    K1_AUX:
    s_cmp_eq_u32 s3, 12
    s_cbranch_scc1 K1_WF
    s_cmp_eq_u32 s3, 15
    s_cbranch_scc1 {'K1_WARM' if cfg.get('warm') else 'K1_IDLE'}
    s_mul_i32 s24, s3, 48
    s_add_u32 s24, s24, s22
    s_sub_u32 s24, s24, {13 * 48}
    s_sub_u32 s25, {N}, s24
    s_min_i32 s25, s25, 48
    v_add_u32 v4, s24, v1
    v_cmp_gt_i32 vcc, s25, v1
    v_mul_u32_u24 v5, 6, v4
    v_and_b32 v6, -4, v5
    v_lshlrev_b32 v5, 3, v5
    v_and_b32 v5, 16, v5
    v_lshlrev_b32 v7, 1, v4
    v_add_u32 v7, {WS_POS + 50000}, v7
    v_lshlrev_b32 v4, 2, v4
    v_add_u32 v4, {WS_POS}, v4
    s_cbranch_vccz K1_IDLE
    s_mov_b64 exec, vcc
    global_load_dwordx2 v[8:9], v6, s[6:7]
    s_waitcnt vmcnt(1)
    s_barrier
    s_waitcnt vmcnt(0)
    v_lshrrev_b64 v[8:9], v5, v[8:9]
    {'' if cfg.get('nopos') else 'global_store_dword v4, v8, s[20:21] sc1'}
    {'' if cfg.get('nopos') else 'global_store_short v7, v9, s[20:21] sc1'}
    s_branch K1_AEND
    {warm(cfg, 1)}
    K1_IDLE:
    s_waitcnt vmcnt(0)
    s_barrier
    s_branch K1_AEND
    K1_WF:
    v_and_b32 v6, 12, v3
    v_lshl_or_b32 v6, v7, 5, v6
    s_cmp_ge_u32 s37, 96
    s_cbranch_scc1 K1_SM
    s_bfe_u32 s22, s37, 0x30002
    s_and_b32 s23, s37, 3
    s_and_b32 s24, s37, 31
    s_lshl_b32 s24, s24, 10
    v_lshl_add_u32 v16, v1, 4, s24
    s_movk_i32 s25, 512
    s_movk_i32 s26, 1024
    s_lshl_b32 s24, s23, 13
    s_cmp_ge_u32 s37, 32
    s_cbranch_scc1 K1_M1
    s_lshr_b32 s27, s22, 2
    s_lshl_b32 s27, s27, 7
    s_add_u32 s24, s24, s27
    s_and_b32 s27, s22, 2
    s_lshl_b32 s27, s27, 3
    s_add_u32 s24, s24, s27
    s_and_b32 s27, s22, 1
    s_lshl_b32 s27, s27, 1
    s_add_u32 s24, s24, s27
    v_lshl_add_u32 v6, v2, 11, v6
    v_add_u32 v16, {WS_W1}, v16
    s_branch K1_WLD
    K1_M1:
    s_mov_b32 s28, s18
    s_mov_b32 s29, s19
    s_mov_b32 s30, 65536
    v_lshlrev_b32 v6, 1, v3
    s_cmp_ge_u32 s37, 64
    s_cbranch_scc1 K1_M2
    v_lshl_add_u32 v6, v2, 11, v6
    s_lshl_b32 s27, s22, 12
    s_lshl_b32 s36, s23, 6
    s_add_u32 s27, s27, s36
    s_add_u32 s27, s27, {QROWS * 256}
    v_lshl_add_u32 v16, v3, 8, s27
    v_lshl_add_u32 v16, v2, 4, v16
    s_branch K1_M3
    K1_M2:
    s_lshl_b32 s24, s23, 9
    s_add_u32 s24, s24, 32768
    s_movk_i32 s25, 2048
    s_movk_i32 s26, 16384
    v_lshl_add_u32 v6, v2, 12, v6
    v_add_u32 v16, {WS_WB}, v16
    K1_M3:
    s_lshl_b32 s27, s22, 5
    s_add_u32 s24, s24, s27
    K1_WLD:
    s_add_u32 s27, s25, s26
    s_add_u32 s25, s25, s24
    s_add_u32 s26, s26, s24
    s_add_u32 s27, s27, s24
    """)
    for j in range(8):
        a(f"buffer_load_ushort v{8 + j}, v6, s[28:31], s{24 + j // 2} offen offset:{256 * (j & 1)}")
    a(f"""
    s_waitcnt vmcnt(8)
    s_barrier
    s_waitcnt vmcnt(0)
    v_lshl_or_b32 v4, v9, 16, v8
    v_lshl_or_b32 v5, v11, 16, v10
    v_lshl_or_b32 v6, v13, 16, v12
    v_lshl_or_b32 v7, v15, 16, v14
    global_store_dwordx4 v16, v[4:7], s[20:21] sc1
    s_branch K1_AEND
    K1_SM:
    s_cmp_ge_u32 s37, 99
    s_cbranch_scc1 K1_CONST
    v_and_b32 v8, 2, v2
    v_lshl_or_b32 v6, v8, 3, v6
    v_and_b32 v8, 1, v2
    v_lshl_or_b32 v6, v8, 1, v6
    s_lshl_b32 s24, s37, 8
    s_add_u32 s25, s24, {65536 - 96 * 256}
    s_add_u32 s26, s14, s25
    s_addc_u32 s27, s15, 0
    s_cmp_eq_u32 s37, 98
    s_cselect_b32 s26, s16, s26
    s_cselect_b32 s27, s17, s27
    global_load_ushort v10, v6, s[26:27]
    global_load_ushort v11, v6, s[26:27] offset:128
    s_waitcnt vmcnt(2)
    s_barrier
    s_waitcnt vmcnt(0)
    v_lshlrev_b32 v10, 16, v10
    v_lshlrev_b32 v11, 16, v11
    s_cbranch_scc1 K1_WX
    s_cmp_eq_u32 s37, 96
    s_cselect_b32 s25, 1.0, {f32(-LOG2E)}
    s_cselect_b32 s26, {f32(32.0)}, {f32(15.0)}
    v_mul_f32 v10, s25, v10
    v_mul_f32 v11, s25, v11
    v_and_b32 v12, 0x7fffffff, v10
    v_and_b32 v13, 0x7fffffff, v11
    v_max_u32 v12, v12, v13
    v_mul_i32_i24 v8, -101, v8
    v_ldexp_f32 v10, v10, v8
    v_ldexp_f32 v11, v11, v8
    v_cvt_pk_bf16_f32 v10, v10, v11
    s_add_u32 s24, s24, {WS_SMALL + 1024 - 96 * 256}
    v_lshl_add_u32 v4, v1, 1, s24
    global_store_short v4, v10, s[20:21] sc1
    global_store_short_d16_hi v4, v10, s[20:21] offset:128 sc1
    """.replace(f"s_cselect_b32 s26, {f32(32.0)}, {f32(15.0)}", f"s_mov_b32 s26, {f32(15.0)}\ns_cmov_b32 s26, {f32(32.0)}"))
    scan64(a, 12, "v_max_u32")
    a(f"""
    s_lshl_b32 s24, s37, 2
    s_add_u32 s24, s24, {WS_THR - 96 * 4}
    v_rcp_f32 v12, v12
    v_mov_b32 v4, s24
    v_mul_f32 v12, s26, v12
    s_mov_b32 exec_lo, 0
    s_brev_b32 exec_hi, 1
    global_store_dword v4, v12, s[20:21] sc1
    s_branch K1_AEND
    K1_WX:
    v_mul_f32 v10, {f32(-LN2 * (1 + DELTA))}, v10
    v_mul_f32 v11, {f32(-LN2 * (1 + DELTA))}, v11
    v_lshlrev_b32 v4, 5, v3
    v_lshl_add_u32 v4, v2, 2, v4
    v_add_u32 v4, {WS_SMALL + 1536}, v4
    global_store_dword v4, v10, s[20:21] sc1
    global_store_dword v4, v11, s[20:21] offset:16 sc1
    s_branch K1_AEND
    K1_CONST:
    s_cmp_lg_u32 s37, 99
    s_cbranch_scc1 K1_IDLE
    v_cmp_eq_u32 vcc, 32, v1
    v_cmp_eq_u32 s[24:25], 33, v1
    v_mov_b32 v12, 0x3f80
    v_lshlrev_b32 v4, 4, v1
    v_add_u32 v4, {WS_SMALL}, v4
    v_cndmask_b32 v8, 0, v12, vcc
    v_cndmask_b32 v9, 0, v12, s[24:25]
    v_lshlrev_b32 v10, 16, v8
    v_lshlrev_b32 v11, 16, v9
    s_waitcnt vmcnt(0)
    s_barrier
    global_store_dwordx4 v4, v[8:11], s[20:21] sc1
    v_lshlrev_b32 v4, 3, v1
    v_add_u32 v4, {WS_SMALL + 2048}, v4
    v_lshlrev_b32 v12, 1, v1
    v_add_u32 v12, {QROWS}, v12
    v_add_u32 v13, 1, v12
    global_store_dwordx2 v4, v[12:13], s[20:21] sc1
    K1_AEND:
    """)
    stamp_out(a, cfg, 0, 20)
    a("K1_END:\ns_endpgm")
    t = a.text()
    return t if cfg.get("diag") else t.replace("s_branch K1_AEND", "s_endpgm")
```

```python
from common import *

CAP = 1792
CNT, LUT = 0, 256
MR, MST = 8448, 288
SEL = MR + 64 * MST
PAC = SEL + 49 * 32
OH = PAC + 52 * 16
WD, WX, FAKE = OH + 1024, OH + 1536, OH + 2048
OWN = OH + 2560
H48 = OWN + 53 * 16
LIST = H48 + 256
HT = 62720
POSL = RING = OT = 83200
PT = 163840 - 49 * 288
OST = 272
PADN = 52
assert LIST + (CAP + 48) * 16 <= HT and RING + 65536 <= PT and POSL + 74 * 1024 <= 163840
PBASE = 0x12000


def hp(i):
    return i * 1024 + (8192 if i >= 3 else 0)


sWV = 3
sW, sH, sO, sR, sTH, sMK = 24, 28, 32, 36, 38, 40
sB, sNB, sNV, sRARE, sFIRST, sSRC, sLO, sWID = 44, 45, 46, 47, 48, 49, 50, 51
sTOT, sTS, sWT, sWEND, sN0, sNW, sEW, sEV = 52, 53, 54, 55, 56, 57, 58, 59
sNF, sNL, sMODE, sNWN, sC000, s128, s256, s192, sLAST = 60, 61, 62, 63, 64, 65, 66, 68, 69
sM0, sG3 = 70, 74
sA, sB2, sC, sD = 76, 77, 78, 79
sP0, sP1, sP2, sP3, sP4 = 80, 82, 84, 86, 88
vRing, vLc, vMul, vIncl, vVoff = 1, 2, 3, 4, 5
vBX, vBS, vIX, vIS, vDa, vEa = 6, 7, 8, 9, 10, 11
vXa, vSa, vD, vDE, vIdx = 12, 13, 14, 15, 16
ZE, ZL, T, L, R, S, A, B, AC, Y = 20, 28, 32, 36, 40, 42, 44, 60, 84, 120
vFa, vG0, vG1 = 116, 117, 118
vDL, vT, W = 17, 18, 20
g3 = sr(sG3, 2)

PAT = "M1 h E Y1 E M2 E Y2 E 0 X X X X m P P P R s R l P P P v D V"
DORD = "SqxdL"


def dma(kc):
    soff = ["0", "64", f"s{s128}", f"s{s192}"][kc]
    return [f"s_mov_b32 m0, s{sM0 + kc}",
            f"buffer_load_dwordx4 v{vVoff}, s[{sW}:{sW + 3}], {soff} offen lds ; @w:ring{kc}"]


def rdq(kc, d=None):
    d = A + 2 + 6 * (kc & 1) if d is None else d
    return f"ds_read_b128 {vr(d, 4)}, v{vRing} offset:{1024 * kc} ; @r:ring{kc}"


def Kmf(u, z):
    a0 = A + 6 * ((u // 2) % 2) + (4 if u & 1 else 0)
    b0 = B + 6 * (u // 2) + (2 if u & 1 else 0)
    return f"v_mfma_f32_16x16x32_bf16 {vr(z, 4)}, {vr(a0, 4)}, {vr(b0, 4)}, 0"


def Ymf(u, b):
    return f"v_smfmac_f32_16x16x32_bf16 {vr(AC + 4 * u, 4)}, {vr(S, 2)}, {vr(b, 4)}, v{vIdx}"


def zero4(d):
    return f"v_mfma_f32_16x16x16_bf16 {vr(d, 4)}, {vr(S, 2)}, {vr(S, 2)}, 0"


def mf32(d, x, y, first=False):
    return f"v_mfma_f32_16x16x32_bf16 {vr(d, 4)}, {vr(x, 4)}, {vr(y, 4)}, {'0' if first else vr(d, 4)}"


def loop_body(pat, dord, lut):
    seq = []
    I = lambda t, tag=None: seq.append(("i", t, tag))
    NEED = lambda tag: seq.append(("n", tag, None))
    pk1 = lambda r: f"v_pk_add_f32 {vr(r, 2)}, {vr(r, 2)}, 1.0 op_sel_hi:[1,0]"
    for j in range(4):
        z, zn = ZE + 4 * (j & 1), ZE + 4 * ((j + 1) & 1)
        e = [f"v_exp_f32 v{T + (k ^ 2)}, v{z + k}" for k in range(4)]
        p = [pk1(T + 2),
             f"v_pk_fma_f32 {vr(R, 2)}, {vr(T + 2, 2)}, {vr(T, 2)}, {vr(T + 2, 2)}",
             f"v_pk_fma_f32 {vr(T, 2)}, {vr(z, 2)}, {vr(T, 2)}, {vr(z, 2)}",
             f"v_pk_mul_f32 {vr(T + 2, 2)}, {vr(z + 2, 2)}, {vr(T + 2, 2)}",
             f"v_pk_mul_f32 {vr(z, 2)}, {vr(T, 2)}, {vr(R, 2)}",
             f"v_pk_mul_f32 {vr(z + 2, 2)}, {vr(T + 2, 2)}, {vr(R, 2)}"]
        r = [f"v_rcp_f32 v{R}, v{R}", f"v_rcp_f32 v{R + 1}, v{R + 1}"]
        ix = [f"v_lshlrev_b32_sdwa v{ZL + k}, 1, v{ZL + k} {SD} src1_sel:WORD_1" for k in range(4)]
        d = dma((j + 1) % 4)
        for tok in pat.split():
            if tok == "M1":
                if j < 2:
                    NEED(f"x{j + 1}")
                I(Kmf(2 * j + 1, ZL))
            elif tok == "M2":
                NEED(f"q{(j + 1) % 4}")
                if j == 3:
                    NEED("x0")
                I(Kmf((2 * j + 2) % 8, zn))
            elif tok == "Y1":
                if j == 1:
                    NEED("S")
                I(Ymf((2 * j - 2) % 8, zn))
            elif tok == "Y2":
                if lut:
                    NEED("L")
                I(Ymf((2 * j - 1) % 8, L))
            elif tok == "E":
                I(e.pop(0))
            elif tok == "P":
                I(p.pop(0))
            elif tok == "R":
                I(r.pop(0))
            elif tok == "X":
                I(ix.pop(0))
            elif tok in ("Fa", "Fb"):
                src, dst = (z, z) if tok == "Fa" else (ZL, L)
                if tok == "Fb":
                    for k in range(4):
                        I(f"v_mul_f32 v{ZL + k}, {f32(2.0 ** 101)}, v{ZL + k}")
                for k in range(4):
                    I(f"v_exp_f32 v{T + k}, v{src + k}")
                I(pk1(T))
                I(pk1(T + 2))
                for k in range(4):
                    I(f"v_rcp_f32 v{T + k}, v{T + k}")
                for k in (0, 2):
                    I(f"v_pk_mul_f32 {vr(dst + k, 2)}, {vr(T + k, 2)}, {vr(src + k, 2)}")
            elif tok == "m":
                if j == 0:
                    NEED("dE")
                    I(f"v_mad_u32_u16 v{vXa}, v{vDE}, v{vMul}, v{vBX} op_sel:[1,0,0,0]")
                elif j == 1:
                    I(f"v_mad_u32_u16 v{vSa}, v{vD}, s{sC000}, v{vBS} op_sel:[1,0,0,0]")
                elif j == 2:
                    I(f"v_lshl_add_u64 v[{vDa}:{vEa}], v[{vDa}:{vEa}], 0, s[{s256}:{s256 + 1}]")
                    I(f"v_lshl_add_u64 v[{vBX}:{vBS}], v[{vBX}:{vBS}], 0, v[{vIX}:{vIS}]")
                else:
                    NEED("dD")
                    I(f"v_mad_u32_u16 v{vVoff}, v{vD}, s{s256}, v{vLc}")
            elif tok == "s":
                if j == 2:
                    I(f"s_add_u32 s{sTS}, s{sTS}, 16")
                if j == 3:
                    I(f"s_cmp_lt_i32 s{sTS}, s{sEV}")
            elif tok == "l":
                I("s_setprio 0")
            elif tok == "h":
                I("s_setprio 1")
            elif tok == "0":
                I(d[0])
            elif tok == "v":
                I("s_waitcnt vmcnt(2)")
            elif tok == "V":
                I(d[1])
            elif tok == "D":
                for c in dord:
                    if c == "S" and j == 0:
                        I(f"ds_read_b64_tr_b16 {vr(S, 2)}, v{vSa}", "S")
                    if c == "q":
                        I(rdq((j + 2) % 4), f"q{(j + 2) % 4}")
                    if c == "x" and j:
                        I(f"ds_read_b64 {vr(A + 6 * (j - 1), 2)}, v{vXa}", f"x{j - 1}")
                    if c == "d" and j == 1:
                        I(f"ds_read_b32 v{vD}, v{vDa}", "dD")
                    if c == "d" and j == 3:
                        I(f"ds_read_b32 v{vDE}, v{vEa}", "dE")
                    if c == "L" and lut:
                        for k in range(4):
                            I(f"ds_read_u16_d16_hi v{L + k}, v{ZL + k} offset:{LUT}", "L")
            else:
                raise ValueError(tok)
    q, out = [], []
    for rep in range(2):
        out = []
        for k, t, tag in seq:
            if k == "i":
                out.append(t)
                if t.startswith("ds_"):
                    q.append(tag)
            elif t in q:
                n = q[::-1].index(t)
                out.append(f"s_waitcnt lgkmcnt({n})")
                q = q[len(q) - n:]
    return "\n".join(out)


def ptrs(a):
    a(f"""
    s_lshl_b32 s{sA}, s{sTS}, 4
    s_add_u32 s{sA}, s{sA}, {LIST}
    v_and_b32 v18, -4, v0
    v_and_b32 v19, 15, v0
    v_lshl_add_u32 v{vDa}, v18, 2, s{sA}
    v_lshl_add_u32 v{vEa}, v19, 4, s{sA}
    s_cmp_lt_u32 s{sTS}, s{sWT}
    s_cselect_b64 s[{sP0}:{sP0 + 1}], -1, 0
    s_add_u32 s{sB2}, s{sTS}, 16
    s_cmp_lt_u32 s{sB2}, s{sWT}
    s_cselect_b64 s[{sP1}:{sP1 + 1}], -1, 0
    v_add_u32 v19, 256, v{vDa}
    v_cndmask_b32 v18, v{vFa}, v{vDa}, s[{sP0}:{sP0 + 1}]
    v_cndmask_b32 v19, v{vFa}, v19, s[{sP1}:{sP1 + 1}]
    """)


def first_dmas(a):
    a(f"""
    ds_read_b32 v{vSa}, v18
    ds_read_b32 v{vD}, v19
    ds_read_b32 v{vXa}, v{vEa}
    ds_read_b32 v{vDE}, v{vEa} offset:256
    {dma(0)[0]}
    s_waitcnt lgkmcnt(3)
    v_mad_u32_u16 v{vVoff}, v{vSa}, s{s256}, v{vLc}
    {dma(0)[1]}
    """)
    for kc in range(1, 4):
        a(f"{dma(kc)[0]}\ns_nop 0\n{dma(kc)[1]}")


def window(a):
    a(f"""
    s_add_u32 s{sA}, s{sNW}, 3
    v_readlane_b32 s{sEW}, v{vIncl}, s{sA}
    s_sub_u32 s{sB2}, s{sWT}, 32
    s_cmp_ge_u32 s{sEW}, s{sWEND}
    s_cselect_b32 s{sEW}, 0x7fffffff, s{sEW}
    s_sub_u32 s{sA}, s{sEW}, 15
    s_min_i32 s{sEV}, s{sA}, s{sB2}
    """)


def zero_init(a, n2):
    a(f"""
    v_lshlrev_b32 v19, 4, v{vT}
    v_mov_b32 v24, 0
    v_mov_b32 v25, 0
    v_mov_b32 v26, 0
    v_mov_b32 v27, 0
    v_cmp_gt_u32 vcc, {n2}, v{vT}
    ds_write_b128 v19, v[24:27] offset:{MR}
    v_lshlrev_b32 v28, 2, v0
    ds_write_b32 v28, v24 offset:{CNT}
    s_mov_b64 exec, vcc
    ds_write_b128 v19, v[24:27] offset:{MR + 16384}
    s_mov_b64 exec, -1
    """)


def rec_addr(a):
    a(f"""
    s_movk_i32 s{sB2}, 96
    s_mov_b32 vcc_lo, 0xc0c0c0c0
    s_mov_b32 vcc_hi, 0xc0c0c0c0
    v_lshrrev_b32 v28, 3, v{vT}
    v_lshlrev_b32 v29, 2, v{vT}
    v_mad_u32_u24 v29, v28, s{sB2}, v29
    v_mul_i32_i24 v28, -96, v28
    v_add_u32 v28, {16000 - 128}, v28
    v_cndmask_b32 v28, 0, v28, vcc
    v_add_u32 v28, v28, v19
    v_cmp_gt_u32 vcc, 1000, v{vT}
    v_mov_b32 v{vDL}, 0xbfbfbfbf
    """)


def rec_load(a):
    a(f"""
    s_mov_b64 exec, vcc
    global_load_dword v{vDL}, v29, s[{sR}:{sR + 1}]
    global_load_dwordx4 {vr(W, 4)}, v28, s[{sR}:{sR + 1}] offset:32
    s_mov_b64 exec, -1
    """)


def silu4(a, y, h, t):
    a(f"""
    v_pk_mul_f32 {vr(y, 2)}, {vr(y, 2)}, s[{sP0}:{sP0 + 1}] op_sel_hi:[1,0]
    v_pk_mul_f32 {vr(y + 2, 2)}, {vr(y + 2, 2)}, s[{sP0}:{sP0 + 1}] op_sel_hi:[1,0]
    """)
    for k in range(4):
        a(f"v_exp_f32 v{t + k}, v{y + k}")
    for k in (0, 2):
        a(f"v_pk_add_f32 {vr(t + k, 2)}, {vr(t + k, 2)}, 1.0 op_sel_hi:[1,0]")
    for k in range(4):
        a(f"v_rcp_f32 v{t + k}, v{t + k}")
    for k in (0, 2):
        a(f"v_pk_mul_f32 {vr(y + k, 2)}, {vr(y + k, 2)}, s[{sP0}:{sP0 + 1}] op_sel:[0,1] op_sel_hi:[1,1]")
    for k in (0, 2):
        a(f"v_pk_fma_f32 {vr(y + k, 2)}, {vr(y + k, 2)}, {vr(t + k, 2)}, {vr(h + k, 2)}")
    a(f"v_cvt_pk_bf16_f32 v{y}, v{y}, v{y + 1}\nv_cvt_pk_bf16_f32 v{y + 1}, v{y + 2}, v{y + 3}")


def gen_k2(cfg):
    a = Asm()
    st = lambda i, real=False: stamp(a, cfg, 1, i, real)
    st(0, True)
    a(f"""
    s_load_dwordx2 s[22:23], s[0:1], 80
    s_load_dwordx2 s[4:5], s[0:1], 0
    s_load_dwordx2 s[20:21], s[0:1], 64
    v_lshrrev_b32 v1, 6, v0
    s_cmp_ge_u32 s2, 256
    s_cbranch_scc1 K2_END
    v_readfirstlane_b32 s{sWV}, v1
    v_mov_b32 v{vT}, v0
    v_and_b32 v0, 63, v0
    s_setreg_imm32_b32 hwreg(HW_REG_MODE, 4, 2), 3
    s_and_b32 s{sB}, s2, 7
    s_lshl_b32 s{sB}, s{sB}, 5
    s_lshr_b32 s{sA}, s2, 3
    s_add_u32 s{sB}, s{sB}, s{sA}
    s_mul_i32 s{sA}, s{sB}, {RST}
    s_add_u32 s{sA}, s{sA}, {WS_REC}
    """)
    zero_init(a, (PAC + 52 * 16 - MR - 16384) // 16)
    rec_addr(a)
    a(f"""
    s_waitcnt lgkmcnt(0)
    s_add_u32 s{sR}, s22, s{sA}
    s_addc_u32 s{sR + 1}, s23, 0
    """)
    rec_load(a)
    st(2)
    srd(a, sW, 22, WS_END)
    a(f"""
    s_mul_i32 s{sNB}, s{sB}, {NB}
    s_lshl_b32 s{sC}, s{sNB}, 8
    s_add_u32 s{sH}, s4, s{sC}
    s_addc_u32 s{sH + 1}, s5, 0
    s_sub_u32 s{sH + 2}, {N * 256}, s{sC}
    s_mov_b32 s{sH + 3}, 0x20000
    s_mov_b32 s{sA}, {WS_THR}
    s_load_dwordx2 s[{sTH}:{sTH + 1}], s[22:23], s{sA}
    s_mov_b64 s[{sMK}:{sMK + 1}], 0
    s_mov_b64 s[{sMK + 2}:{sMK + 3}], 0
    s_mov_b32 s{sRARE}, 0
    s_mov_b32 s{sFIRST}, 1
    s_mov_b32 s{sSRC}, -1
    s_movk_i32 s{sWID}, 1024
    K2_B0:
    s_lshl_b32 s{sA}, s{sWV}, 12
    s_add_u32 s{sM0}, s{sA}, {POSL}
    s_mov_b32 m0, s{sM0}
    s_add_u32 s{sA}, s{sA}, {WS_POS}
    v_lshlrev_b32 v58, 4, v0
    s_barrier
    """)
    for i in range(4):
        a(f"buffer_load_dwordx4 v58, s[{sW}:{sW + 3}], s{sA} offen offset:{1024 * i} lds")
    a(f"""
    s_lshl_b32 s{sD}, s{sWV}, 10
    s_cmp_ge_u32 s{sWV}, 13
    s_cbranch_scc1 K2_FLD
    s_cmp_lt_u32 s{sWV}, 10
    s_cselect_b32 s{sB2}, {POSL + 65536 - (OH - 10240)}, 0
    s_add_u32 s{sB2}, s{sB2}, s{sD}
    s_add_u32 m0, s{sB2}, {OH - 10240}
    s_add_u32 s{sA}, s{sD}, {WS_POS + 65536}
    buffer_load_dwordx4 v58, s[{sW}:{sW + 3}], s{sA} offen lds
    K2_LUT:
    """)
    a(f"""
    v_lshlrev_b32 v24, 18, v{vT}
    v_or_b32 v25, 0x18000, v24
    v_or_b32 v26, 0x28000, v24
    v_or_b32 v27, 0x38000, v24
    v_or_b32 v24, 0x8000, v24
    s_mov_b32 s{sP0}, {f32(2.0 ** 101)}
    s_mov_b32 s{sP0 + 1}, {f32(1 / (1 + DELTA))}
    v_pk_mul_f32 v[26:27], v[26:27], s[{sP0}:{sP0 + 1}] op_sel_hi:[1,0]
    v_pk_mul_f32 v[24:25], v[24:25], s[{sP0}:{sP0 + 1}] op_sel_hi:[1,0]
    """)
    for k in range(4):
        a(f"v_exp_f32 v{28 + k}, v{24 + k}")
    for k in (0, 2):
        a(f"v_pk_mul_f32 {vr(24 + k, 2)}, {vr(24 + k, 2)}, s[{sP0}:{sP0 + 1}] op_sel:[0,1] op_sel_hi:[1,1]")
    for k in (0, 2):
        a(f"v_pk_add_f32 {vr(28 + k, 2)}, {vr(28 + k, 2)}, 1.0 op_sel_hi:[1,0]")
    for k in range(4):
        a(f"v_rcp_f32 v{28 + k}, v{28 + k}")
    a(f"v_lshlrev_b32 v32, 3, v{vT}\nv_add_u32 v33, 0x10000, v32")
    for k in (0, 2):
        a(f"v_pk_mul_f32 {vr(28 + k, 2)}, {vr(28 + k, 2)}, {vr(24 + k, 2)}")
    for k in (0, 2):
        a(f"v_pk_add_f32 {vr(24 + k, 2)}, {vr(28 + k, 2)}, {vr(24 + k, 2)} neg_lo:[0,1] neg_hi:[0,1]")
    a(f"""
    v_cvt_pk_bf16_f32 v28, v28, v29
    v_cvt_pk_bf16_f32 v29, v30, v31
    v_cvt_pk_bf16_f32 v24, v24, v25
    v_cvt_pk_bf16_f32 v25, v26, v27
    ds_write_b64 v32, v[28:29] offset:{LUT}
    ds_write_b64 v33, v[24:25] offset:{LUT}
    """)
    a(f"""
    s_mov_b32 s{sC000}, 0xc000
    s_movk_i32 s{s128}, 128
    s_movk_i32 s{s192}, 192
    s_movk_i32 s{s256}, 256
    s_movk_i32 s{s256 + 1}, 256
    s_mov_b32 s{sG3}, 0
    s_mov_b32 s{sG3 + 1}, 0xffff0000
    s_add_u32 s{sM0 + 1}, s{sM0}, 1024
    s_add_u32 s{sM0 + 2}, s{sM0}, 2048
    s_add_u32 s{sM0 + 3}, s{sM0}, 3072
    s_sub_u32 s{sNV}, {N}, s{sNB}
    s_min_u32 s{sNV}, s{sNV}, {NB}
    v_and_b32 v34, 15, v0
    v_lshrrev_b32 v35, 4, v0
    v_lshrrev_b32 v36, 3, v34
    v_lshlrev_b32 v36, 1, v36
    v_xor_b32 v36, v36, v35
    v_lshl_add_u32 v36, v36, 4, s{sM0}
    v_lshl_add_u32 v{vRing}, v34, 6, v36
    v_and_b32 v36, 2, v35
    v_and_b32 v37, 3, v0
    v_xor_b32 v36, v36, v37
    v_lshlrev_b32 v{vLc}, 4, v36
    v_cndmask_b32 v{vMul}, 2, 0, {g3}
    v_mov_b32 v{vIS}, 256
    v_cndmask_b32 v{vIX}, 0, v{vIS}, {g3}
    v_mov_b32 v{vIdx}, 0xdd
    s_and_b32 s{sA}, s{sWV}, 7
    s_lshl_b32 s{sA}, s{sA}, 6
    s_add_u32 s{sA}, s{sA}, {FAKE}
    v_and_b32 v36, -4, v0
    v_add_u32 v{vFa}, s{sA}, v36
    v_lshl_add_u32 v59, v36, 6, v{vLc}
    s_cmp_ge_u32 s{sWV}, 3
    s_cselect_b32 s{sA}, 8192, 0
    s_add_u32 s{sA}, s{sA}, s{sD}
    s_add_u32 m0, s{sA}, {HT}
    s_lshr_b32 s{sA}, s{sWV}, 2
    s_lshl_b32 s{sA}, s{sA}, 12
    s_and_b32 s{sB2}, s{sWV}, 3
    s_lshl_b32 s{sB2}, s{sB2}, 6
    s_add_u32 s{sA}, s{sA}, s{sB2}
    s_lshl_b32 s{sB2}, s{sWV}, 12
    s_add_u32 s{sB2}, s{sB2}, {WS_W1}
    v_mov_b32 v19, 1
    v_mov_b32 v48, {PBASE}
    s_mov_b32 s{sC}, 0x40000
    s_mov_b32 s{sD}, 0x0c040100
    s_cmp_ge_u32 s{sWV}, 12
    s_waitcnt vmcnt(5)
    """)
    st(3)
    AJ, RK, QD = 24, 28, 32
    for j in range(4):
        a(f"""
        v_lshlrev_b32_sdwa v{AJ + j}, 2, sext(v{vDL}) {SD} src1_sel:BYTE_{j}
        ds_add_rtn_u32 v{RK + j}, v{AJ + j}, v19 offset:{CNT}
        """)
    a(f"""
    s_cbranch_scc1 K2_H48
    buffer_load_dwordx4 v59, s[{sH}:{sH + 3}], s{sA} offen lds
    s_cmp_ge_u32 s{sWV}, 8
    s_cbranch_scc1 K2_NOW1
    """)
    for ks in range(4):
        a(f"buffer_load_dwordx4 {vr(B + 4 * ks, 4)}, v58, s[{sW}:{sW + 3}], s{sB2} offen offset:{1024 * ks}")
    a(f"""
    K2_NOW1:
    v_cmp_eq_u32 vcc, -1, v{vDL}
    """)
    for j in range(4):
        q = QD + 4 * j
        a(f"""
        v_and_or_b32 v{q + 3}, v{AJ + j}, s{sC}, v48
        v_perm_b32 v{q}, v{AJ + j}, v{W + j}, s{sD}
        v_mad_u32_u16 v{q + 2}, v{W + j}, 4, v{q + 3}
        v_mad_u32_u16 v{q + 3}, v{W + j}, 2, v{q + 3}
        v_and_b32 v{q + 1}, 0xffff0000, v{W + j}
        """)
    a(f"""
    s_cbranch_vccnz K2_OVF
    K2_OVFB:
    v_lshlrev_b32 v49, 2, v0
    s_cmp_lt_u32 s{sWV}, 8
    s_waitcnt vmcnt(5) lgkmcnt(0)
    s_cbranch_scc1 K2_B1
    s_waitcnt vmcnt(1)
    K2_B1:
    s_cmp_eq_u32 s{sWV}, 14
    s_barrier
    """)
    st(4)
    a(f"""
    ds_read_b32 v49, v49 offset:{CNT}
    s_cbranch_scc1 K2_OWN1
    K2_OWN1B:
    """)
    for j in range(4):
        q = QD + 4 * j
        a(f"""
        ds_read_b32 v{q + 2}, v{q + 2} offset:{POSL - PBASE}
        ds_read_u16_d16_hi v{q + 3}, v{q + 3} offset:{POSL + 50000 - PBASE}
        """)
    a(f"""
    s_waitcnt lgkmcnt(8)
    v_cmp_ne_u32 vcc, 0, v49
    s_mov_b32 s{sA}, {OOB}
    s_and_b32 s{sB2}, vcc_hi, 0xf00000
    s_cbranch_scc1 K2_MASK
    K2_MASKB:
    v_mov_b32 v{vIncl}, v49
    """)
    scan64(a, vIncl)
    a(f"""
    v_sub_u32 v49, v{vIncl}, v49
    v_readlane_b32 s{sTOT}, v{vIncl}, 63
    v_lshlrev_b32 v49, 4, v49
    v_writelane_b32 v49, s{sA}, 63
    """)
    for j in range(4):
        a(f"ds_bpermute_b32 v{AJ + j}, v{AJ + j}, v49")
    a(f"""
    s_cmp_gt_u32 s{sTOT}, {CAP}
    s_cbranch_scc1 K2_SHRINK
    s_add_u32 s{sA}, s{sTOT}, 15
    s_lshr_b32 s{sA}, s{sA}, 4
    s_lshr_b32 s{sB2}, s{sA}, 4
    s_and_b32 s{sA}, s{sA}, 15
    s_mul_i32 s{sTS}, s{sB2}, s{sWV}
    s_min_u32 s{sC}, s{sWV}, s{sA}
    s_add_u32 s{sTS}, s{sTS}, s{sC}
    s_cmp_lt_u32 s{sWV}, s{sA}
    s_addc_u32 s{sD}, s{sB2}, 0
    s_lshl_b32 s{sTS}, s{sTS}, 4
    s_lshl_b32 s{sD}, s{sD}, 4
    s_add_u32 s{sWT}, s{sTS}, s{sD}
    s_min_u32 s{sWEND}, s{sWT}, s{sTOT}
    """)
    for j in range(4):
        a(f"""
        s_waitcnt lgkmcnt(3)
        v_lshl_add_u32 v{AJ + j}, v{RK + j}, 4, v{AJ + j}
        ds_write_b128 v{AJ + j}, {vr(QD + 4 * j, 4)} offset:{LIST}
        """)
    a(f"""
    v_cmp_ge_u32 vcc, s{sTS}, v{vIncl}
    v_cmp_gt_u32 s[{sP2}:{sP2 + 1}], s{sWEND}, v{vIncl}
    v_add_u32 v24, 64, v0
    v_cmp_gt_u32 s[{sP3}:{sP3 + 1}], s{sD}, v0
    v_cmp_gt_u32 s[{sP4}:{sP4 + 1}], s{sD}, v24
    s_bcnt1_i32_b64 s{sN0}, vcc
    s_bcnt1_i32_b64 s{sNL}, s[{sP2}:{sP2 + 1}]
    s_mov_b32 s{sNW}, s{sN0}
    """)
    ptrs(a)
    a(f"""
    v_mov_b32 v24, {OOB}
    v_lshl_add_u32 v{vG0}, v0, 4, s{sA}
    v_add_u32 v{vG1}, 1024, v{vG0}
    v_cndmask_b32 v{vG0}, v24, v{vG0}, s[{sP3}:{sP3 + 1}]
    v_cndmask_b32 v{vG1}, v24, v{vG1}, s[{sP4}:{sP4 + 1}]
    s_cmp_eq_u32 s{sD}, 0
    s_cselect_b32 s{sNF}, {OOB >> 5}, s{sN0}
    s_cmp_eq_u32 s{sWV}, 0
    s_cselect_b32 s{sA}, 48, s{sNF}
    s_cselect_b32 s{sNF}, 64, s{sNF}
    s_lshl_b32 s{sA}, s{sA}, 4
    s_add_u32 s{sA}, s{sA}, s{sWV}
    s_lshl_b32 s{sA}, s{sA}, 1
    v_mov_b32 v25, s{sA}
    v_mov_b32 v26, 0x3f80
    s_mov_b64 exec, 1
    ds_write_b16 v25, v26 offset:{SEL}
    s_mov_b64 exec, -1
    s_cmp_ge_u32 s{sWV}, 14
    s_cbranch_scc1 K2_PAD
    K2_PADB:
    s_waitcnt vmcnt(0) lgkmcnt(0)
    s_barrier
    """)
    st(5)
    first_dmas(a)
    a(f"""
    s_cmp_ge_u32 s{sWV}, 8
    s_cbranch_scc1 K2_QF
    """)
    HF = [AC + 4 * i for i in range(8)] + [20 + 4 * i for i in range(8)]
    PA = [76, 80, 52, 56]
    a(f"""
    s_sub_u32 s{sA}, {HT}, s{sM0}
    v_add_u32 v17, s{sA}, v{vRing}
    v_and_b32 v18, 48, v0
    """)
    for i in range(12):
        a(f"ds_read_b128 {vr(HF[i], 4)}, v17 offset:{hp(i)}")
    a(f"""
    s_lshl_b32 s{sB2}, s{sWV}, 5
    s_add_u32 s{sB2}, s{sB2}, {PT}
    v_lshrrev_b32 v17, 1, v18
    v_and_b32 v19, 15, v0
    v_mul_u32_u24 v19, 288, v19
    v_add3_u32 v17, v17, v19, s{sB2}
    s_bitcmp1_b32 s{sWV}, 0
    s_mov_b32 s{sP0}, {f32(-LOG2E)}
    s_cmov_b32 s{sP0}, {f32(-LOG2E * TINY)}
    """)
    for i in range(16):
        rt, ks = divmod(i, 4)
        a(f"s_waitcnt lgkmcnt({11 if i < 4 else 15 - i})")
        a(mf32(PA[rt], B + 4 * ks, HF[i], ks == 0))
        if i < 4:
            a(f"ds_read_b128 {vr(HF[12 + i], 4)}, v18 offset:{H48 + 64 * i}")
    for rt in range(4):
        p, o = PA[rt], AC + 4 * rt
        a(f"""
        v_pk_mul_f32 {vr(o, 2)}, {vr(p, 2)}, s[{sP0}:{sP0 + 1}] op_sel_hi:[1,0]
        v_pk_mul_f32 {vr(o + 2, 2)}, {vr(p + 2, 2)}, s[{sP0}:{sP0 + 1}] op_sel_hi:[1,0]
        v_cvt_pk_bf16_f32 v{o}, v{o}, v{o + 1}
        v_cvt_pk_bf16_f32 v{o + 1}, v{o + 2}, v{o + 3}
        ds_write_b64 v17, {vr(o, 2)} offset:{rt * 16 * 288}
        """)
    for k in range(8):
        p = vr(PA[k // 2] + 2 * (k & 1), 2)
        a(f"v_pk_mul_f32 v[20:21], {p}, {p}" if k == 0 else f"v_pk_fma_f32 v[20:21], {p}, {p}, v[20:21]")
    a(f"""
    v_add_f32 v20, v20, v21
    v_cmp_ngt_f32 vcc, {f32(64 * LN2 * LN2)}, v20
    s_cbranch_vccnz K2_FLAG
    K2_FLAGB:
    s_waitcnt lgkmcnt(0)
    s_barrier
    K2_GEO:
    """)
    G, O = 20, 28
    a(f"""
    ds_read_b128 {vr(G, 4)}, v{vG0}
    ds_read_b128 {vr(G + 4, 4)}, v{vG1}
    v_mov_b32 v{S}, 0
    v_mov_b32 v{S + 1}, 0
    v_bfe_u32 v17, v0, 2, 2
    v_lshrrev_b32 v18, 4, v0
    v_cmp_eq_u32 vcc, v17, v18
    v_mov_b32 v18, 0x3f80
    v_mov_b32 v19, 0
    v_cndmask_b32 v18, 0, v18, vcc
    v_lshlrev_b32 v17, 4, v0
    v_lshlrev_b64 v[{B + 2}:{B + 3}], v17, v[18:19]
    """)
    for p in range(2):
        a(f"""
        s_waitcnt lgkmcnt(1)
        v_lshlrev_b32_sdwa v{O + 4 * p}, 2, v{G + 4 * p} {SD} src1_sel:WORD_1
        ds_read_b128 {vr(O + 4 * p, 4)}, v{O + 4 * p} offset:{OWN}
        """)
    for u in range(8):
        a(zero4(AC + 4 * u))
        if u < 3:
            a(f"v_mov_b64 {vr(B + 6 * u + 8, 2)}, {vr(B + 2, 2)}")
    for p in range(2):
        g, o = G + 4 * p, O + 4 * p
        a(f"""
        v_lshlrev_b32 v36, 16, v{g + 2}
        v_and_b32 v37, 0xffff0000, v{g + 2}
        s_waitcnt lgkmcnt(1)
        v_pk_add_f32 {vr(o, 2)}, {vr(o, 2)}, v[36:37] neg_lo:[0,1] neg_hi:[0,1]
        v_sub_f32 v{o + 2}, v{o + 2}, v{g + 3}
        v_mul_f32 v{o + 3}, v{o}, v{o}
        v_fmac_f32 v{o + 3}, v{o + 1}, v{o + 1}
        v_fmac_f32 v{o + 3}, v{o + 2}, v{o + 2}
        v_cvt_pk_bf16_f32 v{g + 2}, 1.0, v{o}
        v_mul_f32 v{o + 3}, {f32(-LOG2E)}, v{o + 3}
        v_cvt_pk_bf16_f32 v{g + 3}, v{o + 1}, v{o + 2}
        v_cmp_nlt_f32 vcc, abs(v{g + 1}), s{sTH + 1}
        v_cmp_nlt_f32 s[{sP0}:{sP0 + 1}], abs(v{o + 3}), s{sTH}
        v_cvt_pk_bf16_f32 v{g + 1}, v{o + 3}, v{g + 1}
        ds_write_b128 v{vG0 + p}, {vr(g, 4)} ; nobar
        s_or_b64 vcc, vcc, s[{sP0}:{sP0 + 1}]
        s_and_b64 s[{sP3 + 2 * p}:{sP3 + 2 * p + 1}], s[{sP3 + 2 * p}:{sP3 + 2 * p + 1}], vcc
        """)
    a(f"""
    s_or_b64 s[{sP3}:{sP3 + 1}], s[{sP3}:{sP3 + 1}], s[{sP4}:{sP4 + 1}]
    s_cselect_b32 s{sMODE}, 1, 0
    s_cmp_lt_u32 s{sWV}, 8
    s_cbranch_scc1 K2_G2
    s_barrier
    K2_G2:
    s_cmp_ge_u32 s{sTS}, s{sWT}
    s_cbranch_scc1 K2_NT0
    """)
    st(6)
    a(f"""
    K2_XFR:
    v_lshrrev_b32 v17, 2, v0
    v_and_b32 v18, 3, v0
    v_add_u32 v19, s{sN0}, v17
    v_mul_u32_u24 v19, 288, v19
    v_add_u32 v19, {PT}, v19
    v_lshlrev_b32 v17, 8, v17
    v_add_u32 v17, {WD - 14 * 256}, v17
    v_cndmask_b32 v19, v19, v17, {g3}
    s_mov_b32 vcc_lo, 0
    s_mov_b32 vcc_hi, 0x00ff0000
    v_mov_b32 v17, {OOB}
    v_lshl_add_u32 v19, v18, 3, v19
    v_cndmask_b32 v19, v19, v17, vcc
    ds_read_b32 v17, v{S} offset:{CNT + 224}
    """)
    for u in range(8):
        a(f"ds_read_b64_tr_b16 {vr(B + 6 * (u // 2) + 4 * (u & 1), 2)}, v19 offset:{32 * u}")
    a(f"""
    s_lshl_b32 s{sA}, s{sN0}, 3
    s_sub_u32 s{sA}, {OH + 512}, s{sA}
    v_and_b32 v19, 48, v0
    v_lshlrev_b32 v19, 1, v19
    v_sub_u32 v19, s{sA}, v19
    v_cndmask_b32 v{vBX}, v19, v{vEa}, {g3}
    v_mad_u32_u16 v{vXa}, v{vXa}, v{vMul}, v{vBX} op_sel:[1,0,0,0]
    ds_read_b64 {vr(A, 2)}, v{vXa}
    ds_read_b64 {vr(A + 6, 2)}, v{vXa}
    ds_read_b64 {vr(A + 12, 2)}, v{vXa}
    v_subrev_u32 v18, s{sNW}, v18
    v_and_b32 v18, 3, v18
    v_add_u32 v18, s{sNW}, v18
    v_mul_u32_u24 v18, {OOB}, v18
    v_sub_u32 v18, v{vDa}, v18
    v_add_u32 v{vBS}, 8, v18
    v_mad_u32_u16 v{vSa}, v{vSa}, s{sC000}, v{vBS} op_sel:[1,0,0,0]
    s_waitcnt vmcnt(3)
    {rdq(0)}
    {zero4(ZE + 4)}
    {zero4(L)}
    v_lshl_add_u64 v[{vBX}:{vBS}], v[{vBX}:{vBS}], 0, v[{vIX}:{vIS}]
    v_add_u32 v{vDa}, 512, v{vDa}
    v_add_u32 v{vEa}, 256, v{vEa}
    v_mad_u32_u16 v{vVoff}, v{vD}, s{s256}, v{vLc}
    s_waitcnt vmcnt(2)
    {rdq(1)}
    """)
    window(a)
    a(f"""
    {dma(0)[0]}
    s_waitcnt lgkmcnt(1)
    {Kmf(0, ZE)}
    {dma(0)[1]}
    v_readfirstlane_b32 s{sA}, v17
    s_or_b32 s{sMODE}, s{sMODE}, s{sA} ; @set:mode=x
    """)
    st(7)
    a(f"""
    s_waitcnt lgkmcnt(0)
    K2_EV2:
    s_add_u32 s{sA}, s{sTS}, 32
    s_cmp_lt_u32 s{sA}, s{sWT}
    s_cbranch_scc1 K2_GO
    v_mov_b32 v{vDa}, v{vFa}
    K2_GO:
    s_cmp_lg_u32 s{sMODE}, 0
    s_cbranch_scc1 K2_LOOPF ; @if:mode=1
    K2_LOOP:
    {loop_body(cfg.get('pat', PAT), cfg.get('dord', DORD), True)}
    s_cbranch_scc1 K2_LOOP
    K2_EV:
    s_add_u32 s{sA}, s{sTS}, 16
    s_cmp_lt_u32 s{sEW}, s{sA}
    s_cbranch_scc1 K2_WIN
    s_cmp_lt_u32 s{sTS}, s{sWT}
    s_cbranch_scc1 K2_EV2
    """)
    st(8)
    WT = [A + 2, A + 8, B + 16, B + 20]

    def exit_loads():
        a(f"""
        s_and_b32 s{sA}, s{sWV}, 7
        s_lshl_b32 s{sA}, s{sA}, 12
        s_add_u32 s{sA}, s{sA}, {WS_WB}
        v_lshlrev_b32 v17, 4, v0
        """)
        for ks in range(4):
            a(f"buffer_load_dwordx4 {vr(B + 4 * ks, 4)}, v17, s[{sW}:{sW + 3}], s{sA} offen offset:{1024 * ks}")

    exit_loads()
    F = L
    a(f"""
    s_mov_b32 s{sLAST}, 1 ; @set:last=1
    s_movk_i32 s{sNWN}, 64
    K2_FLUSH:
    v_and_b32 v17, 15, v0
    v_lshlrev_b32 v18, 5, v17
    ds_read_b128 {vr(T, 4)}, v18 offset:{WX}
    s_waitcnt lgkmcnt(1)
    {Ymf(6, ZE + 4)}
    {Ymf(7, L)}
    ds_read_b128 {vr(ZL, 4)}, v18 offset:{WX + 16}
    v_lshrrev_b32 v18, 4, v0
    v_subrev_u32 v18, s{sNW}, v18
    v_and_b32 v18, 3, v18
    v_add_u32 v18, s{sNW}, v18
    s_add_u32 s{sA}, s{sNL}, 1
    s_min_u32 s{sA}, s{sA}, s{sNWN}
    s_add_u32 s{sB2}, s{sWV}, 48
    v_cmp_eq_u32 vcc, s{sNF}, v18
    v_cmp_gt_u32 s[{sP0}:{sP0 + 1}], s{sA}, v18
    v_cmp_gt_u32 s[{sP1}:{sP1 + 1}], s{sNWN}, v18
    v_mov_b32 v19, s{sB2}
    v_cndmask_b32 v19, v18, v19, vcc
    v_mul_u32_u24 v19, {MST}, v19
    v_lshl_add_u32 v19, v17, 4, v19
    v_lshl_add_u32 v18, v18, 4, v17
    """)
    for k in range(4):
        a(f"v_cvt_pk_bf16_f32 v{ZE + 4 + k}, v{AC + 8 * k}, v{AC + 8 * k + 4}")
    a(f"""
    s_mov_b64 exec, s[{sP0}:{sP0 + 1}]
    ds_write_b128 v19, {vr(ZE + 4, 4)} offset:{MR}
    s_mov_b64 exec, -1
    s_waitcnt lgkmcnt(1)
    """)
    for u in range(8):
        w = (T if u < 4 else ZL) + (u & 3)
        wp, hi = w & ~1, w & 1
        if u == 0:
            a(f"v_pk_mul_f32 {vr(F + 2, 2)}, {vr(AC + 2, 2)}, {vr(wp, 2)} op_sel_hi:[1,0]")
            a(f"v_mul_f32 v{F + 1}, v{AC + 1}, v{w}")
        else:
            a(f"v_pk_fma_f32 {vr(F + 2, 2)}, {vr(AC + 4 * u + 2, 2)}, {vr(wp, 2)}, {vr(F + 2, 2)} op_sel:[0,{hi},0] op_sel_hi:[1,{hi},1]")
            a(f"v_fmac_f32 v{F + 1}, v{AC + 4 * u + 1}, v{w}")
    a(f"""
    s_and_b32 s{sP0}, s{sP0}, 0x01110111
    v_add_f32_dpp v{F + 2}, v{F + 2}, v{F + 2} row_ror:8 row_mask:0xf bank_mask:0xf
    v_add_f32_dpp v{F + 1}, v{F + 1}, v{F + 1} row_ror:8 row_mask:0xf bank_mask:0x3
    s_and_b32 s{sP0 + 1}, s{sP0 + 1}, 0x01110111
    v_add_f32_dpp v{F + 2}, v{F + 2}, v{F + 2} row_shr:4 row_mask:0xf bank_mask:0x2
    v_add_f32_dpp v{F + 1}, v{F + 3}, v{F + 3} row_ror:8 row_mask:0xf bank_mask:0xc
    s_nop 1
    v_add_f32_dpp v{F + 2}, v{F + 1}, v{F + 1} row_shl:4 row_mask:0xf bank_mask:0x5
    s_nop 1
    v_add_f32_dpp v{F + 2}, v{F + 2}, v{F + 2} quad_perm:[1,0,3,2] row_mask:0xf bank_mask:0xf
    s_nop 1
    v_add_f32_dpp v{F + 2}, v{F + 2}, v{F + 2} quad_perm:[2,3,0,1] row_mask:0xf bank_mask:0xf
    s_mov_b64 exec, s[{sP0}:{sP0 + 1}]
    ds_add_f32 v18, v{F + 2} offset:{PAC}
    s_mov_b64 exec, -1
    s_cmp_eq_u32 s{sLAST}, 0
    s_cbranch_scc1 K2_SLIDE ; @if:last=0
    s_waitcnt vmcnt(5)
    K2_POST:
    {rdq(2, WT[2])}
    {rdq(3, WT[3])}
    """)
    st(9)
    YA, YB = Y, Y + 4
    HA, HB = 44, 48
    vMa, vM3, vSe, vOa = 1, 2, 3, 4
    a(f"""
    s_lshr_b32 s{sD}, s{sWV}, 3
    s_lshl_b32 s{sA}, s{sD}, 12
    s_sub_u32 s{sB2}, {HT}, s{sM0}
    v_add_u32 v18, s{sB2}, v{vRing}
    v_add_u32 v17, s{sA}, v18
    v_and_b32 v5, 15, v0
    v_and_b32 v6, 48, v0
    s_cmp_eq_u32 s{sFIRST}, 0
    s_cbranch_scc1 K2_NOGH
    """)
    for ks in range(4):
        a(f"ds_read_b128 {vr(AC + 4 * ks, 4)}, v17 offset:{hp(4 + ks)}")
    a(f"""
    s_mov_b32 s{sP0}, {f32(-LOG2E / (1 + DELTA))}
    s_cmp_lg_u32 s{sD}, 0
    s_cbranch_scc1 K2_GH1
    """)
    for ks in range(4):
        a(f"ds_read_b128 {vr(AC + 16 + 4 * ks, 4)}, v18 offset:{hp(ks)}")
    for ks in range(4):
        a(f"s_waitcnt lgkmcnt({7 - ks})\n" + mf32(YA, WT[ks], AC + 4 * ks, ks == 0))
    for ks in range(4):
        a(f"s_waitcnt lgkmcnt({3 - ks})\n" + mf32(YB, WT[ks], AC + 16 + 4 * ks, ks == 0))
    a(f"""
    K2_GH2:
    s_nop 3
    v_pk_mul_f32 {vr(YA, 2)}, {vr(YA, 2)}, s[{sP0}:{sP0 + 1}] op_sel_hi:[1,0]
    v_pk_mul_f32 {vr(YA + 2, 2)}, {vr(YA + 2, 2)}, s[{sP0}:{sP0 + 1}] op_sel_hi:[1,0]
    s_nop 1
    v_pk_mul_f32 {vr(YB, 2)}, {vr(YB, 2)}, s[{sP0}:{sP0 + 1}] op_sel_hi:[1,0]
    v_pk_mul_f32 {vr(YB + 2, 2)}, {vr(YB + 2, 2)}, s[{sP0}:{sP0 + 1}] op_sel_hi:[1,0]
    K2_NOGH:
    s_and_b32 s{sC}, s{sWV}, 1
    s_lshl_b32 s{sC}, s{sC}, 1
    v_lshrrev_b32 v7, 5, v0
    v_lshrrev_b32 v8, 2, v0
    v_and_b32 v8, 2, v8
    v_xor_b32 v8, s{sC}, v8
    v_or_b32 v7, v7, v8
    v_lshlrev_b32 v7, 4, v7
    v_lshl_add_u32 v7, v5, 6, v7
    v_lshrrev_b32 v8, 1, v6
    v_and_or_b32 v7, v8, 8, v7
    s_bfe_u32 s{sC}, s{sWV}, 0x20001
    s_lshl_b32 s{sB2}, s{sC}, 10
    s_add_u32 s{sA}, s{sA}, s{sB2}
    s_add_u32 s{sA}, s{sA}, {hp(4)}
    s_cmp_eq_u32 s{sC}, 3
    s_cselect_b32 s{sB2}, {hp(3)}, s{sB2}
    v_add_u32 v9, s{sA}, v7
    v_add_u32 v7, s{sB2}, v7
    s_and_b32 s{sC}, s{sWV}, 7
    s_lshl_b32 s{sC}, s{sC}, 5
    v_lshl_add_u32 v10, v5, 1, s{sC}
    ds_read_b64 v[52:53], v9 offset:{HT}
    ds_read_b64 v[54:55], v7 offset:{HT}
    ds_read_u16_d16_hi v56, v10 offset:{H48}
    s_mul_i32 s{sA}, s{sD}, {16 * MST}
    v_mul_u32_u24 v{vM3}, {MST}, v5
    v_add_u32 v{vM3}, v{vM3}, v6
    v_add_u32 v{vMa}, s{sA}, v{vM3}
    s_lshl_b32 s{sA}, s{sD}, 9
    v_lshl_add_u32 v11, v5, 5, v8
    v_add_u32 v{vSe}, s{sA}, v11
    s_mul_i32 s{sA}, s{sD}, 1536
    v_add_u32 v11, s{sA}, v11
    s_mul_i32 s{sA}, s{sD}, {16 * OST}
    s_add_u32 s{sA}, s{sA}, s{sC}
    s_add_u32 s{sA}, s{sA}, {OT}
    v_mul_u32_u24 v{vOa}, {OST}, v5
    v_add3_u32 v{vOa}, v{vOa}, v8, s{sA}
    v_add_u32 v10, {OT + 48 * OST}, v10
    s_mov_b32 s{sP0}, {f32(1 + DELTA)}
    s_mov_b32 s{sP0 + 1}, {f32(-LN2)}
    s_waitcnt lgkmcnt(0)
    """)
    for k in range(4):
        a(f"v_lshlrev_b32 v{HA + 2 * k}, 16, v{52 + k}\nv_and_b32 v{HA + 2 * k + 1}, 0xffff0000, v{52 + k}")
    Z, ZB, SA, SB, MB = 36, 40, 52, 54, 20
    a(f"""
    s_cmp_lg_u32 s{sD}, 0
    s_waitcnt vmcnt(0)
    s_barrier
    """)
    st(10)
    for ks in range(4):
        a(f"ds_read_b128 {vr(AC + 4 * ks, 4)}, v{vM3} offset:{MR + 48 * MST + 64 * ks}")
    for ks in range(4):
        a(f"ds_read_b128 {vr(AC + 16 + 4 * ks, 4)}, v{vMa} offset:{MR + 16 * MST + 64 * ks}")
    a(f"""
    ds_read_b64 {vr(SA, 2)}, v{vSe} offset:{SEL + 512}
    ds_read_b64 {vr(SB, 2)}, v11 offset:{SEL}
    s_cbranch_scc1 K2_E1
    """)
    mf16 = lambda d, x, y: f"v_mfma_f32_16x16x16_bf16 {vr(d, 4)}, {vr(x, 2)}, {vr(y, 2)}, {vr(d, 4)}"

    def gemm_a(extra):
        for ks in range(4):
            a(f"s_waitcnt lgkmcnt({9 + extra - ks})\n" + mf32(Z, AC + 4 * ks, B + 4 * ks, ks == 0))
        for ks in range(4):
            a(f"s_waitcnt lgkmcnt({5 + extra - ks})\n" + mf32(YA, B + 4 * ks, AC + 16 + 4 * ks))
        a(f"v_cvt_pk_bf16_f32 v{ZB}, v{Z}, v{Z + 1}\nv_cvt_pk_bf16_f32 v{ZB + 1}, v{Z + 2}, v{Z + 3}")

    for ks in range(4):
        a(f"ds_read_b128 {vr(MB + 4 * ks, 4)}, v{vM3} offset:{MR + 64 * ks}")
    gemm_a(4)
    for ks in range(4):
        a(f"s_waitcnt lgkmcnt({3 - ks})\n" + mf32(YB, B + 4 * ks, MB + 4 * ks))
        if ks == 2:
            a(mf16(YA, ZB, SA))
    a(f"""
    s_cmp_lg_u32 s{sRARE}, 0
    s_nop 6
    {mf16(YB, ZB, SB)}
    s_cbranch_scc1 K2_NEXT
    K2_S0:
    """)
    silu4(a, YA, HA, 20)
    a(f"ds_write_b64 v{vOa}, {vr(YA, 2)} offset:{16 * OST}")
    silu4(a, YB, HB, 20)
    a(f"""
    ds_write_b64 v{vOa}, {vr(YB, 2)}
    K2_OUT:
    s_lshl_b32 s{sC}, s{sNB}, 8
    s_add_u32 s{sO}, s20, s{sC}
    s_addc_u32 s{sO + 1}, s21, 0
    s_lshl_b32 s{sO + 2}, s{sNV}, 8
    s_mov_b32 s{sO + 3}, 0x20000
    s_lshl_b32 s{sA}, s{sWV}, 10
    v_lshl_add_u32 v7, v0, 4, s{sA}
    s_lshl_b32 s{sA}, s{sWV}, 6
    s_add_u32 s{sA}, s{sA}, {OT}
    v_add3_u32 v8, v7, v6, s{sA}
    s_cmp_ge_u32 s{sWV}, 13
    s_waitcnt lgkmcnt(0)
    s_barrier
    s_cbranch_scc1 K2_FIN
    """)
    st(11)
    a(f"""
    ds_read_b128 v[20:23], v8
    s_waitcnt lgkmcnt(0)
    buffer_store_dwordx4 v[20:23], v7, s[{sO}:{sO + 3}], 0 offen sc1
    K2_FIN:
    """)
    st(12)
    stamp_out(a, cfg, 1, 22)
    a("K2_END:\ns_endpgm")

    a("K2_GH1:")
    for ks in range(4):
        a(f"ds_read_b128 {vr(AC + 16 + 4 * ks, 4)}, v6 offset:{H48 + 64 * ks}")
    for ks in range(4):
        a(f"s_waitcnt lgkmcnt({7 - ks})\n" + mf32(YA, WT[ks], AC + 4 * ks, ks == 0))
    for ks in range(4):
        a(f"s_waitcnt lgkmcnt({3 - ks})\n" + mf32(YB, AC + 16 + 4 * ks, WT[ks], ks == 0))
    a("s_branch K2_GH2\nK2_E1:")
    gemm_a(0)
    a(f"""
    s_waitcnt lgkmcnt(0)
    s_cmp_lg_u32 s{sRARE}, 0
    {mf16(YB, SB, ZB)}
    s_nop 2
    {mf16(YA, ZB, SA)}
    s_cbranch_scc1 K2_NEXT
    K2_S1:
    s_sub_u32 s{sA}, s{sWV}, 13
    s_lshl_b32 s{sA}, s{sA}, 6
    v_add_u32 v11, s{sA}, v0
    v_mul_u32_u24 v12, 171, v11
    v_lshrrev_b32 v12, 9, v12
    v_add_lshl_u32 v13, v11, v12, 2
    ds_read_b32 v14, v13 offset:{PAC}
    ds_read_b32 v15, v13 offset:{OWN}
    """)
    silu4(a, YA, HA, 20)
    a(f"""
    ds_write_b64 v{vOa}, {vr(YA, 2)} offset:{16 * OST}
    v_mul_f32 v{YB}, s{sP0}, v{YB}
    v_exp_f32 v20, v{YB}
    v_mul_f32 v{YB}, s{sP0 + 1}, v{YB}
    v_add_f32 v20, 1.0, v20
    v_rcp_f32 v20, v20
    v_cmp_gt_u32 vcc, s{sNV}, v12
    v_fmac_f32 v56, v20, v{YB}
    v_cvt_pk_bf16_f32 v56, v56, v56
    s_mov_b64 exec, 0xffff
    ds_write_b16 v10, v56
    s_mov_b64 exec, -1
    s_cmp_lt_u32 s{sWV}, 13
    s_cbranch_scc1 K2_OUT
    s_mul_i32 s{sA}, s{sNB}, 6
    s_add_u32 s{sA}, s{sA}, {N * 256}
    v_lshl_add_u32 v11, v11, 1, s{sA}
    s_waitcnt lgkmcnt(2)
    v_add_f32 v14, v14, v15
    v_cvt_pk_bf16_f32 v14, v14, v14
    s_mov_b64 exec, vcc
    global_store_short v11, v14, s[20:21] sc1
    s_mov_b64 exec, -1
    s_branch K2_OUT
    """)
    a(f"""
    K2_FLD:
    s_mov_b32 s{sA}, {WS_FLG - 13 * 64 * 128}
    v_lshl_add_u32 v59, v{vT}, 7, s{sA}
    buffer_load_dwordx3 {vr(B, 3)}, v59, s[{sW}:{sW + 3}], 0 offen
    s_branch K2_LUT
    K2_H48:
    s_cmp_lg_u32 s{sWV}, 12
    s_cbranch_scc1 K2_NOW1
    s_mov_b32 m0, {H48}
    s_mov_b64 exec, 0xffff
    buffer_load_dwordx4 v58, s[{sH}:{sH + 3}], s{sA} offen lds
    s_mov_b64 exec, -1
    s_branch K2_NOW1
    K2_OWN1:
    v_add_u32 v50, s{sNB}, v0
    v_lshl_add_u32 v54, v50, 1, v48
    v_lshl_add_u32 v50, v50, 2, v48
    ds_read_b32 v50, v50 offset:{POSL - PBASE}
    ds_read_u16_d16_hi v54, v54 offset:{POSL + 50000 - PBASE}
    s_branch K2_OWN1B
    K2_PAD:
    s_cmp_eq_u32 s{sWV}, 14
    s_cbranch_scc1 K2_OWN2
    v_add_lshl_u32 v25, v0, s{sTOT}, 4
    v_mov_b32 v52, {N | (4 * PADN) << 16}
    v_mov_b32 v53, 0
    v_mov_b32 v54, 0
    v_mov_b32 v55, 0
    v_cndmask_b32 v25, v25, v24, {g3}
    ds_write_b128 v25, v[52:55] offset:{LIST}
    s_branch K2_PADB
    K2_OWN2:
    v_cmp_gt_u32 vcc, s{sNV}, v0
    v_mov_b32 v55, 0
    s_mov_b32 exec_hi, 0x1fffff
    v_cndmask_b32 v50, 0, v50, vcc
    v_cndmask_b32 v54, 0, v54, vcc
    v_lshlrev_b32 v52, 16, v50
    v_and_b32 v53, 0xffff0000, v50
    v_and_b32 v54, 0xffff0000, v54
    ds_write_b128 v58, v[52:55] offset:{OWN}
    s_mov_b64 exec, -1
    s_branch K2_PADB
    K2_QF:
    s_cmp_lt_u32 s{sWV}, 13
    s_cbranch_scc1 K2_GEO
    v_or3_b32 v17, v{B}, v{B + 1}, v{B + 2}
    v_cmp_ne_u32 vcc, 0, v17
    s_cbranch_vccz K2_GEO
    K2_FLAG:
    v_mov_b32 v17, {CNT + 224}
    ds_write_b32 v17, v17
    s_waitcnt lgkmcnt(0)
    s_cmp_lt_u32 s{sWV}, 8
    s_cbranch_scc1 K2_FLAGB
    s_branch K2_GEO
    K2_NT0:
    s_waitcnt vmcnt(0)
    {rdq(0)}
    {rdq(1)}
    """)
    exit_loads()
    a("s_branch K2_POST")
    a(f"""
    K2_WIN:
    s_min_u32 s{sA}, s{sEW}, s{sTS}
    v_cmp_ge_u32 vcc, s{sA}, v{vIncl}
    s_mov_b32 s{sLAST}, 0 ; @set:last=0
    s_bcnt1_i32_b64 s{sNWN}, vcc
    s_branch K2_FLUSH
    K2_SLIDE:
    v_mov_b32 v{S}, 0
    v_mov_b32 v{S + 1}, 0
    v_and_b32 v17, 3, v0
    v_subrev_u32 v18, s{sNW}, v17
    v_subrev_u32 v17, s{sNWN}, v17
    v_and_b32 v18, 3, v18
    v_and_b32 v17, 3, v17
    s_sub_u32 s{sA}, s{sNWN}, s{sNW}
    v_sub_u32 v17, v17, v18
    v_add_u32 v17, s{sA}, v17
    v_mul_u32_u24 v17, {OOB}, v17
    s_mov_b32 s{sNW}, s{sNWN}
    s_mov_b64 exec, s[{sP1}:{sP1 + 1}]
    """)
    for k in range(16):
        a(f"v_mov_b64 {vr(AC + 2 * k, 2)}, 0")
    a(f"""
    s_mov_b64 exec, -1
    s_cmp_lt_u32 s{sEW}, s{sTS}
    s_cbranch_scc1 K2_REDO
    s_sub_u32 s{sA}, s{sNW}, s{sN0}
    s_cmp_gt_u32 s{sA}, 8
    s_cbranch_scc1 K2_RESTART
    {zero4(ZE + 4)}
    {zero4(L)}
    v_sub_u32 v{vSa}, v{vSa}, v17
    v_sub_u32 v{vBS}, v{vBS}, v17
    """)
    window(a)
    a(f"""
    s_branch K2_EV2
    K2_REDO:
    s_sub_u32 s{sTS}, s{sTS}, 16
    K2_RESTART:
    s_mov_b32 s{sN0}, s{sNW}
    """)
    ptrs(a)
    a("s_waitcnt vmcnt(0) lgkmcnt(0)")
    first_dmas(a)
    a(f"""
    s_waitcnt lgkmcnt(0)
    s_branch K2_XFR
    K2_LOOPF:
    {loop_body('M1 Y1 M2 Y2 Fa Fb m s 0 v D V', DORD, False)}
    s_cbranch_scc1 K2_LOOPF
    s_branch K2_EV
    """)
    a(f"""
    K2_OVF:
    v_lshrrev_b32 v49, 3, v{vT}
    v_lshlrev_b32 v50, v49, v19
    v_lshrrev_b32 v49, 5, v49
    v_lshlrev_b32 v49, 2, v49
    s_mov_b64 exec, vcc
    ds_or_b32 v49, v50 offset:{CNT + 208}
    s_mov_b64 exec, -1
    s_branch K2_OVFB
    K2_MASK:
    """)
    for k in range(4):
        a(f"v_readlane_b32 s{sMK + k}, v49, {52 + k}")
    a(f"""
    v_cmp_gt_u32 vcc, 52, v0
    s_mov_b32 s{sRARE}, 1
    s_nop 0
    v_cndmask_b32 v49, 0, v49, vcc
    s_branch K2_MASKB
    K2_SHRINK:
    s_movk_i32 s{sWID}, {CAP // 4}
    s_mov_b32 s{sLO}, 0
    s_mov_b32 s{sRARE}, 1
    s_branch K2_ROUND
    K2_NEXT:
    s_mov_b32 s{sFIRST}, 0
    s_add_u32 s{sLO}, s{sLO}, s{sWID}
    s_cmp_lt_u32 s{sWID}, 1024
    s_cselect_b32 s{sA}, s{sLO}, 1024
    s_cmp_lt_u32 s{sA}, 1000
    s_cbranch_scc1 K2_ROUND
    s_mov_b32 s{sLO}, 0
    s_movk_i32 s{sWID}, 1024
    s_ff1_i32_b64 s{sSRC}, s[{sMK}:{sMK + 1}]
    s_cmp_lt_i32 s{sSRC}, 0
    s_cbranch_scc1 K2_NEXT2
    s_bitset0_b64 s[{sMK}:{sMK + 1}], s{sSRC}
    s_branch K2_ROUND
    K2_NEXT2:
    s_ff1_i32_b64 s{sSRC}, s[{sMK + 2}:{sMK + 3}]
    s_cmp_lt_i32 s{sSRC}, 0
    s_cbranch_scc0 K2_NEXT3
    s_cmp_lg_u32 s{sD}, 0
    s_cbranch_scc1 K2_S1
    s_branch K2_S0
    K2_NEXT3:
    s_bitset0_b64 s[{sMK + 2}:{sMK + 3}], s{sSRC}
    s_add_u32 s{sSRC}, s{sSRC}, 64
    K2_ROUND:
    s_load_dwordx4 s[8:11], s[0:1], 16
    s_load_dwordx2 s[12:13], s[0:1], 32
    s_lshl_b32 s{sA}, s{sWV}, 6
    v_add_u32 v{vT}, s{sA}, v0
    s_waitcnt vmcnt(0) lgkmcnt(0)
    s_barrier
    """)
    zero_init(a, (PAC - MR - 16384) // 16)
    rec_addr(a)
    a(f"""
    s_cmp_ge_i32 s{sSRC}, 0
    s_cbranch_scc1 K2_RAW
    """)
    rec_load(a)
    a(f"""
    s_waitcnt vmcnt(0)
    v_and_b32 v{vDL}, 0xbfbfbfbf, v{vDL}
    s_branch K2_RANGE
    K2_RAW:
    s_cmp_ge_u32 s{sWV}, 13
    s_cbranch_scc1 K2_RANGE
    s_mul_i32 s{sA}, s{sSRC}, 12800
    v_cmp_gt_u32 vcc, 800, v{vT}
    v_add_u32 v28, s{sA}, v19
    v_lshrrev_b32 v29, 1, v28
    s_mov_b64 exec, vcc
    global_load_dwordx4 v[32:35], v28, s[12:13]
    global_load_dwordx4 {vr(W, 4)}, v28, s[10:11]
    global_load_dwordx2 v[36:37], v29, s[8:9]
    s_mov_b32 s{sA}, 342393
    s_mov_b32 s{sB2}, 0xffff0000
    v_mov_b32 v38, 0xbf
    s_waitcnt vmcnt(0)
    """)
    for j in range(4):
        a(f"""
        v_mul_u32_u24 v{32 + j}, s{sA}, v{32 + j}
        v_lshrrev_b32 v39, 24, v{32 + j}
        v_cmp_eq_u32 vcc, s{sB}, v39
        v_mul_hi_u32_u24 v{32 + j}, 12544, v{32 + j}
        """)
        if j & 1:
            a(f"v_and_or_b32 v{W + j}, v{36 + j // 2}, s{sB2}, v{W + j}")
        else:
            a(f"v_lshl_or_b32 v{W + j}, v{36 + j // 2}, 16, v{W + j}")
        a(f"v_cndmask_b32 v{32 + j}, v38, v{32 + j}, vcc")
    a(f"""
    v_lshl_or_b32 v32, v33, 8, v32
    v_lshl_or_b32 v34, v35, 8, v34
    v_lshl_or_b32 v{vDL}, v34, 16, v32
    s_mov_b64 exec, -1
    K2_RANGE:
    v_subrev_u32 v28, s{sLO}, v{vT}
    v_cmp_gt_u32 vcc, s{sWID}, v28
    v_mov_b32 v28, 0xbfbfbfbf
    s_waitcnt lgkmcnt(0)
    v_cndmask_b32 v{vDL}, v28, v{vDL}, vcc
    s_branch K2_B0
    """)
    return a.text()
```

```python
from common import *


def warm(cfg, k):
    w = cfg.get("warm")
    if not w:
        return ""
    body = f"""v_and_b32 v60, 63, v0
    v_mul_u32_u24 v60, {w * 1024}, v60
    v_add_u32 v60, {WS_REC if k == 0 else 0}, v60
    s_mov_b64 exec, {(1 << ((0x500000 if k == 0 else 0x340000) // 1024 // w + 1)) - 1 if w >= 256 else -1}
    global_load_dword v60, v60, s[20:21]
    s_mov_b64 exec, -1"""
    if k:
        return f"K1_WARM:\n{body}\ns_waitcnt vmcnt(1)\ns_barrier\ns_branch K1_AEND"
    return f"s_cmp_lg_u32 s3, 15\ns_cbranch_scc1 K1_NW\n{body}\nK1_NW:"


def gen_k1(cfg):
    a = Asm()
    CNT = 40960
    a(f"""
    s_load_dwordx16 s[4:19], s[0:1], 0
    s_load_dwordx2 s[20:21], s[0:1], 80
    v_lshrrev_b32 v1, 6, v0
    s_cmp_ge_u32 s2, 256
    s_cbranch_scc1 K1_END
    v_readfirstlane_b32 s3, v1
    s_cmp_ge_u32 s2, 125
    s_cbranch_scc1 K1_Q
    """)
    a(f"""
    s_mul_i32 s22, s2, 12800
    v_lshlrev_b32 v28, 4, v0
    v_add_u32 v2, s22, v28
    v_lshrrev_b32 v3, 1, v2
    v_cmp_gt_u32 vcc, 800, v0
    s_cmp_lt_u32 s3, 8
    s_cselect_b32 s23, 0xbfbfbfbf, 0
    s_cselect_b32 s26, 64, 0
    s_cselect_b32 s27, 0, {CNT - 8192}
    v_and_b32 v14, 0x3fe, v0
    v_mul_u32_u24 v14, s26, v14
    v_add3_u32 v14, v14, v28, s27
    v_mov_b32 v16, s23
    v_mov_b32 v17, s23
    v_mov_b32 v18, s23
    v_mov_b32 v19, s23
    s_mov_b64 s[24:25], vcc ; @set:idle=x
    s_mov_b64 exec, vcc
    s_waitcnt lgkmcnt(0)
    s_cbranch_execz K1_PL ; @if:idle=1
    global_load_dwordx4 v[4:7], v2, s[12:13]
    global_load_dwordx4 v[8:11], v2, s[10:11]
    global_load_dwordx2 v[12:13], v3, s[8:9]
    K1_PL:
    s_mov_b64 exec, -1
    {warm(cfg, 0)}
    ds_write_b128 v14, v[16:19]
    """)
    stamp(a, cfg, 0, 0, True)
    stamp(a, cfg, 0, 2)
    GA, LA, CA = 40, 44, 48
    a(f"""
    s_lshl_b32 s22, s2, 7
    s_add_u32 s22, s22, {WS_REC}
    s_add_u32 s20, s20, s22
    s_addc_u32 s21, s21, 0
    s_movk_i32 s26, {RST - 128}
    v_lshrrev_b32 v21, 3, v0
    v_mad_u32_u24 v{GA}, v21, s26, v28
    v_add_u32 v{GA + 1}, {128 * RST}, v{GA}
    v_lshl_add_u32 v{LA}, v21, 5, v28
    v_lshlrev_b32 v{CA}, 2, v21
    """)
    pre = cfg.get("pre", 0)
    np_, nq = (2 if pre & 3 else 0), (4 if pre & 12 else 0)
    if pre & 2:
        a("s_mov_b32 exec_lo, 0x01010101\ns_mov_b32 exec_hi, 0x01010101")
    for i in range(np_):
        a(f"global_store_dwordx4 v{GA + i}, v[16:19], s[20:21] sc1")
    a("s_mov_b64 exec, -1")
    a(f"""
    s_mov_b32 s26, 342393
    s_movk_i32 s27, 12544
    s_mov_b32 s28, 0xffff0000
    v_mov_b32 v29, 1
    s_waitcnt lgkmcnt(0)
    s_barrier
    s_cmp_ge_u32 s3, 13
    s_cbranch_scc1 K1_PB ; @if:idle=1
    s_mov_b64 exec, s[24:25]
    s_waitcnt vmcnt({2 + np_})
    """)
    stamp(a, cfg, 0, 3)
    for j in range(4):
        a(f"""
        v_mul_u32_u24 v{4 + j}, s26, v{4 + j}
        v_lshlrev_b32_sdwa v{14 + j}, 2, v{4 + j} {SD} src1_sel:BYTE_3
        ds_add_rtn_u32 v{18 + j}, v{14 + j}, v29 offset:{CNT}
        """)
    for j in range(4):
        a(f"""
        v_mul_hi_u32_u24 v{4 + j}, s27, v{4 + j}
        v_mul_u32_u24 v{14 + j}, 40, v{14 + j}
        """)
    a(f"s_waitcnt vmcnt({np_})")
    for j in range(4):
        if j & 1:
            a(f"v_and_or_b32 v{8 + j}, v{12 + j // 2}, s28, v{8 + j}")
        else:
            a(f"v_lshl_or_b32 v{8 + j}, v{12 + j // 2}, 16, v{8 + j}")
    for j in range(4):
        a(f"""
        s_waitcnt lgkmcnt({3 + j})
        v_min_u32 v{18 + j}, 31, v{18 + j}
        v_add_u32 v22, v{14 + j}, v{18 + j}
        v_lshl_add_u32 v23, v{18 + j}, 2, v{14 + j}
        ds_write_b8 v22, v{4 + j}
        ds_write_b32 v23, v{8 + j} offset:32
        """)
    a(f"""
    s_mov_b64 exec, -1
    K1_PB:
    s_waitcnt lgkmcnt(0)
    s_barrier
    """)
    stamp(a, cfg, 0, 4)
    a(f"""
    ds_read_b32 v{CA + 1}, v{CA} offset:{CNT + 512}
    ds_read_b32 v{CA}, v{CA} offset:{CNT}
    ds_read_b128 v[4:7], v{LA}
    ds_read_b128 v[8:11], v{LA} offset:{128 * 160}
    s_waitcnt lgkmcnt(2)
    v_max_u32 v20, v{CA}, v{CA + 1}
    v_cmp_lt_u32 vcc, 24, v20
    s_cbranch_vccnz K1_OVF
    K1_ST:
    s_waitcnt lgkmcnt(1)
    global_store_dwordx4 v{GA}, v[4:7], s[20:21] sc1
    s_waitcnt lgkmcnt(0)
    global_store_dwordx4 v{GA + 1}, v[8:11], s[20:21] sc1
    """)
    if cfg.get("diag"):
        a("s_sub_u32 s20, s20, s22\ns_subb_u32 s21, s21, 0")
    stamp(a, cfg, 0, 5)
    stamp_out(a, cfg, 0, 20)
    a(f"""
    s_endpgm
    K1_OVF:
    ds_read_b128 v[12:15], v{LA} offset:128
    ds_read_b128 v[16:19], v{LA} offset:{128 * 160 + 128}
    s_mul_i32 s26, s2, -96
    s_add_u32 s26, s26, 16000
    s_mov_b32 s30, 0x03030303
    s_mov_b32 s31, 0x03030303
    v_add_u32 v20, s26, v{GA}
    v_add_u32 v21, s26, v{GA + 1}
    s_waitcnt lgkmcnt(0)
    """)
    for i in range(2):
        a(f"""
        v_cmp_lt_u32 vcc, 24, v{CA + i}
        s_and_b64 exec, vcc, s[30:31]
        s_cbranch_execz K1_OV{i}
        global_store_dwordx4 v{20 + i}, {vr(12 + 4 * i, 4)}, s[20:21] sc1
        v_cmpx_lt_u32 vcc, 32, v{CA + i}
        """)
        for k in range(4):
            a(f"v_mov_b32 v{4 + 4 * i + k}, -1")
        a(f"K1_OV{i}:\ns_mov_b64 exec, -1")
    a("s_branch K1_ST")

    WL, HL = 0, 32768
    a(f"""
    K1_Q:
    s_setreg_imm32_b32 hwreg(HW_REG_MODE, 4, 2), 3
    v_and_b32 v1, 63, v0
    s_sub_u32 s37, s2, 125
    s_mul_i32 s22, s37, 96
    v_lshrrev_b32 v2, 4, v1
    v_and_b32 v3, 15, v1
    s_and_b32 s23, s3, 1
    s_lshl_b32 s24, s23, 2
    v_or_b32 v4, s24, v2
    v_lshlrev_b32 v4, 1, v4
    v_xor_b32 v4, v4, v3
    v_lshlrev_b32 v4, 4, v4
    v_lshl_add_u32 v4, v2, 8, v4
    s_lshl_b32 s24, s3, 11
    s_add_u32 s25, s24, 32768
    s_mov_b32 m0, s24
    v_lshrrev_b32 v5, 2, v1
    v_lshrrev_b32 v6, 5, v1
    v_lshlrev_b32 v6, 1, v6
    v_and_b32 v7, 3, v1
    v_xor_b32 v6, v6, v7
    v_lshlrev_b32 v6, 4, v6
    v_lshl_add_u32 v5, v5, 8, v6
    s_waitcnt lgkmcnt(0)
    """)
    srd(a, 28, 14, 258 * 256)
    a(f"""
    buffer_load_dwordx4 v4, s[28:31], s25 offen lds
    buffer_load_dwordx4 v4, s[28:31], s25 offen offset:1024 lds
    s_cmp_ge_u32 s3, 12
    s_cbranch_scc1 K1_AUX
    """)
    srd(a, 32, 4, N * 256)
    a(f"""
    s_lshr_b32 s26, s3, 1
    s_lshl_b32 s26, s26, 4
    s_add_u32 s26, s26, s22
    s_lshl_b32 s26, s26, 8
    s_lshl_b32 s27, s23, 7
    s_add_u32 s26, s26, s27
    s_add_u32 s27, s24, {HL}
    s_mov_b32 m0, s27
    s_add_u32 s36, s26, 64
    buffer_load_dwordx4 v5, s[32:35], s26 offen lds
    s_add_u32 s27, s27, 1024
    s_mov_b32 m0, s27
    s_nop 0
    buffer_load_dwordx4 v5, s[32:35], s36 offen lds
    """)
    stamp(a, cfg, 0, 0, True)
    stamp(a, cfg, 0, 2)
    a(f"""
    v_lshrrev_b32 v6, 3, v3
    v_lshlrev_b32 v6, 1, v6
    v_xor_b32 v6, v6, v2
    v_lshlrev_b32 v6, 4, v6
    v_lshl_add_u32 v6, v3, 6, v6
    s_lshr_b32 s27, s3, 1
    s_lshl_b32 s27, s27, 12
    v_add_u32 v6, s27, v6
    v_bfe_u32 v8, v1, 2, 2
    v_and_b32 v9, 1, v2
    v_xor_b32 v9, s23, v9
    v_lshl_or_b32 v9, v9, 2, v8
    v_lshlrev_b32 v9, 5, v9
    v_lshl_or_b32 v9, v7, 3, v9
    v_lshl_add_u32 v8, v2, 3, v8
    v_lshl_add_u32 v8, v8, 8, v9
    v_xor_b32 v9, 32, v8
    v_xor_b32 v10, 64, v8
    v_xor_b32 v11, 0x60, v8
    v_lshlrev_b32 v12, 3, v3
    v_lshl_add_u32 v12, v2, 10, v12
    v_add_u32 v12, s26, v12
    """)
    if pre & 8:
        a("s_mov_b32 exec_lo, 0x00010001\ns_mov_b32 exec_hi, 0x00010001")
    for r in range(nq):
        a(f"global_store_dwordx2 v12, v[8:9], s[20:21] offset:{256 * r} sc1")
    a(f"""
    s_mov_b64 exec, -1
    v_and_b32 v14, 1, v1
    v_mul_u32_u24 v14, 101, v14
    v_lshlrev_b32 v14, 23, v14
    v_sub_u32 v14, {f32(-LOG2E)}, v14
    s_lshl_b32 s24, s37, 7
    s_add_u32 s24, s24, s3
    s_add_u32 s24, s24, {WS_FLG}
    v_mov_b32 v13, s24
    s_waitcnt vmcnt({nq})
    s_barrier
    """)
    stamp(a, cfg, 0, 3)
    AF, BF, AC = 16, 32, 96
    for ks in range(4):
        a(f"ds_read_b128 v[{AF + 4 * ks}:{AF + 4 * ks + 3}], v6 offset:{HL + 1024 * ks}")
        for tt in range(4):
            for i in range(2):
                d = BF + 16 * ks + 4 * tt + 2 * i
                a(f"ds_read_b64_tr_b16 v[{d}:{d + 1}], v{8 + tt} offset:{WL + 8192 * ks + 1024 * i}")
        if ks >= 1:
            k = ks - 1
            a("s_waitcnt lgkmcnt(9)")
            for tt in range(4):
                c = "0" if k == 0 else vr(AC + 4 * tt, 4)
                a(f"v_mfma_f32_16x16x32_bf16 {vr(AC + 4 * tt, 4)}, {vr(AF + 4 * k, 4)}, {vr(BF + 16 * k + 4 * tt, 4)}, {c}")
    for tt in range(4):
        a(f"s_waitcnt lgkmcnt({6 - 2 * tt})")
        a(f"v_mfma_f32_16x16x32_bf16 {vr(AC + 4 * tt, 4)}, {vr(AF + 12, 4)}, {vr(BF + 48 + 4 * tt, 4)}, {vr(AC + 4 * tt, 4)}")
    a("s_nop 1")
    for tt in range(4):
        for k in (0, 2):
            a(f"v_pk_mul_f32 {vr(BF + 4 * tt + k, 2)}, {vr(AC + 4 * tt + k, 2)}, v[14:15] op_sel_hi:[1,0]")
    for r in range(4):
        a(f"""
        v_cvt_pk_bf16_f32 v{16 + 2 * r}, v{BF + r}, v{BF + 4 + r}
        v_cvt_pk_bf16_f32 v{17 + 2 * r}, v{BF + 8 + r}, v{BF + 12 + r}
        global_store_dwordx2 v12, v[{16 + 2 * r}:{17 + 2 * r}], s[20:21] offset:{256 * r} sc1
        """)
    a(f"v_pk_mul_f32 v[4:5], {vr(AC, 2)}, {vr(AC, 2)}")
    for k in range(1, 8):
        a(f"v_pk_fma_f32 v[4:5], {vr(AC + 2 * k, 2)}, {vr(AC + 2 * k, 2)}, v[4:5]")
    a(f"""
    v_add_f32 v4, v4, v5
    v_cmp_ngt_f32 vcc, {f32(64 * LN2 * LN2)}, v4
    s_bcnt1_i32_b64 s24, vcc
    v_mov_b32 v4, s24
    s_mov_b64 exec, 1
    {'' if cfg.get('noflag') else 'global_store_byte v13, v4, s[20:21] sc1'}
    """)
    stamp(a, cfg, 0, 4)
    stamp_out(a, cfg, 0, 20)
    a("s_endpgm")

    a(f"""
    K1_AUX:
    s_cmp_eq_u32 s3, 12
    s_cbranch_scc1 K1_WF
    s_cmp_eq_u32 s3, 15
    s_cbranch_scc1 {'K1_WARM' if cfg.get('warm') else 'K1_IDLE'}
    s_mul_i32 s24, s3, 48
    s_add_u32 s24, s24, s22
    s_sub_u32 s24, s24, {13 * 48}
    s_sub_u32 s25, {N}, s24
    s_min_i32 s25, s25, 48
    v_add_u32 v4, s24, v1
    v_cmp_gt_i32 vcc, s25, v1
    v_mul_u32_u24 v5, 6, v4
    v_and_b32 v6, -4, v5
    v_lshlrev_b32 v5, 3, v5
    v_and_b32 v5, 16, v5
    v_lshlrev_b32 v7, 1, v4
    v_add_u32 v7, {WS_POS + 50000}, v7
    v_lshlrev_b32 v4, 2, v4
    v_add_u32 v4, {WS_POS}, v4
    s_cbranch_vccz K1_IDLE
    s_mov_b64 exec, vcc
    global_load_dwordx2 v[8:9], v6, s[6:7]
    s_waitcnt vmcnt(1)
    s_barrier
    s_waitcnt vmcnt(0)
    v_lshrrev_b64 v[8:9], v5, v[8:9]
    {'' if cfg.get('nopos') else 'global_store_dword v4, v8, s[20:21] sc1'}
    {'' if cfg.get('nopos') else 'global_store_short v7, v9, s[20:21] sc1'}
    s_branch K1_AEND
    {warm(cfg, 1)}
    K1_IDLE:
    s_waitcnt vmcnt(0)
    s_barrier
    s_branch K1_AEND
    K1_WF:
    v_and_b32 v6, 12, v3
    v_lshl_or_b32 v6, v7, 5, v6
    s_cmp_ge_u32 s37, 96
    s_cbranch_scc1 K1_SM
    s_bfe_u32 s22, s37, 0x30002
    s_and_b32 s23, s37, 3
    s_and_b32 s24, s37, 31
    s_lshl_b32 s24, s24, 10
    v_lshl_add_u32 v16, v1, 4, s24
    s_movk_i32 s25, 512
    s_movk_i32 s26, 1024
    s_lshl_b32 s24, s23, 13
    s_cmp_ge_u32 s37, 32
    s_cbranch_scc1 K1_M1
    s_lshr_b32 s27, s22, 2
    s_lshl_b32 s27, s27, 7
    s_add_u32 s24, s24, s27
    s_and_b32 s27, s22, 2
    s_lshl_b32 s27, s27, 3
    s_add_u32 s24, s24, s27
    s_and_b32 s27, s22, 1
    s_lshl_b32 s27, s27, 1
    s_add_u32 s24, s24, s27
    v_lshl_add_u32 v6, v2, 11, v6
    v_add_u32 v16, {WS_W1}, v16
    s_branch K1_WLD
    K1_M1:
    s_mov_b32 s28, s18
    s_mov_b32 s29, s19
    s_mov_b32 s30, 65536
    v_lshlrev_b32 v6, 1, v3
    s_cmp_ge_u32 s37, 64
    s_cbranch_scc1 K1_M2
    v_lshl_add_u32 v6, v2, 11, v6
    s_lshl_b32 s27, s22, 12
    s_lshl_b32 s36, s23, 6
    s_add_u32 s27, s27, s36
    s_add_u32 s27, s27, {QROWS * 256}
    v_lshl_add_u32 v16, v3, 8, s27
    v_lshl_add_u32 v16, v2, 4, v16
    s_branch K1_M3
    K1_M2:
    s_lshl_b32 s24, s23, 9
    s_add_u32 s24, s24, 32768
    s_movk_i32 s25, 2048
    s_movk_i32 s26, 16384
    v_lshl_add_u32 v6, v2, 12, v6
    v_add_u32 v16, {WS_WB}, v16
    K1_M3:
    s_lshl_b32 s27, s22, 5
    s_add_u32 s24, s24, s27
    K1_WLD:
    s_add_u32 s27, s25, s26
    s_add_u32 s25, s25, s24
    s_add_u32 s26, s26, s24
    s_add_u32 s27, s27, s24
    """)
    for j in range(8):
        a(f"buffer_load_ushort v{8 + j}, v6, s[28:31], s{24 + j // 2} offen offset:{256 * (j & 1)}")
    a(f"""
    s_waitcnt vmcnt(8)
    s_barrier
    s_waitcnt vmcnt(0)
    v_lshl_or_b32 v4, v9, 16, v8
    v_lshl_or_b32 v5, v11, 16, v10
    v_lshl_or_b32 v6, v13, 16, v12
    v_lshl_or_b32 v7, v15, 16, v14
    global_store_dwordx4 v16, v[4:7], s[20:21] sc1
    s_branch K1_AEND
    K1_SM:
    s_cmp_ge_u32 s37, 99
    s_cbranch_scc1 K1_CONST
    v_and_b32 v8, 2, v2
    v_lshl_or_b32 v6, v8, 3, v6
    v_and_b32 v8, 1, v2
    v_lshl_or_b32 v6, v8, 1, v6
    s_lshl_b32 s24, s37, 8
    s_add_u32 s25, s24, {65536 - 96 * 256}
    s_add_u32 s26, s14, s25
    s_addc_u32 s27, s15, 0
    s_cmp_eq_u32 s37, 98
    s_cselect_b32 s26, s16, s26
    s_cselect_b32 s27, s17, s27
    global_load_ushort v10, v6, s[26:27]
    global_load_ushort v11, v6, s[26:27] offset:128
    s_waitcnt vmcnt(2)
    s_barrier
    s_waitcnt vmcnt(0)
    v_lshlrev_b32 v10, 16, v10
    v_lshlrev_b32 v11, 16, v11
    s_cbranch_scc1 K1_WX
    s_cmp_eq_u32 s37, 96
    s_cselect_b32 s25, 1.0, {f32(-LOG2E)}
    s_cselect_b32 s26, {f32(32.0)}, {f32(15.0)}
    v_mul_f32 v10, s25, v10
    v_mul_f32 v11, s25, v11
    v_and_b32 v12, 0x7fffffff, v10
    v_and_b32 v13, 0x7fffffff, v11
    v_max_u32 v12, v12, v13
    v_mul_i32_i24 v8, -101, v8
    v_ldexp_f32 v10, v10, v8
    v_ldexp_f32 v11, v11, v8
    v_cvt_pk_bf16_f32 v10, v10, v11
    s_add_u32 s24, s24, {WS_SMALL + 1024 - 96 * 256}
    v_lshl_add_u32 v4, v1, 1, s24
    global_store_short v4, v10, s[20:21] sc1
    global_store_short_d16_hi v4, v10, s[20:21] offset:128 sc1
    """.replace(f"s_cselect_b32 s26, {f32(32.0)}, {f32(15.0)}", f"s_mov_b32 s26, {f32(15.0)}\ns_cmov_b32 s26, {f32(32.0)}"))
    scan64(a, 12, "v_max_u32")
    a(f"""
    s_lshl_b32 s24, s37, 2
    s_add_u32 s24, s24, {WS_THR - 96 * 4}
    v_rcp_f32 v12, v12
    v_mov_b32 v4, s24
    v_mul_f32 v12, s26, v12
    s_mov_b32 exec_lo, 0
    s_brev_b32 exec_hi, 1
    global_store_dword v4, v12, s[20:21] sc1
    s_branch K1_AEND
    K1_WX:
    v_mul_f32 v10, {f32(-LN2 * (1 + DELTA))}, v10
    v_mul_f32 v11, {f32(-LN2 * (1 + DELTA))}, v11
    v_lshlrev_b32 v4, 5, v3
    v_lshl_add_u32 v4, v2, 2, v4
    v_add_u32 v4, {WS_SMALL + 1536}, v4
    global_store_dword v4, v10, s[20:21] sc1
    global_store_dword v4, v11, s[20:21] offset:16 sc1
    s_branch K1_AEND
    K1_CONST:
    s_cmp_lg_u32 s37, 99
    s_cbranch_scc1 K1_IDLE
    v_cmp_eq_u32 vcc, 32, v1
    v_cmp_eq_u32 s[24:25], 33, v1
    v_mov_b32 v12, 0x3f80
    v_lshlrev_b32 v4, 4, v1
    v_add_u32 v4, {WS_SMALL}, v4
    v_cndmask_b32 v8, 0, v12, vcc
    v_cndmask_b32 v9, 0, v12, s[24:25]
    v_lshlrev_b32 v10, 16, v8
    v_lshlrev_b32 v11, 16, v9
    s_waitcnt vmcnt(0)
    s_barrier
    global_store_dwordx4 v4, v[8:11], s[20:21] sc1
    v_lshlrev_b32 v4, 3, v1
    v_add_u32 v4, {WS_SMALL + 2048}, v4
    v_lshlrev_b32 v12, 1, v1
    v_add_u32 v12, {QROWS}, v12
    v_add_u32 v13, 1, v12
    global_store_dwordx2 v4, v[12:13], s[20:21] sc1
    K1_AEND:
    """)
    stamp_out(a, cfg, 0, 20)
    a("K1_END:\ns_endpgm")
    t = a.text()
    return t if cfg.get("diag") else t.replace("s_branch K1_AEND", "s_endpgm")
```

```python
import os
import re
import sys

sys.path.insert(0, os.path.dirname(os.path.abspath(__file__)))
from common import *
from k1 import gen_k1
from k2 import gen_k2
from lint import lint

KD = """.amdhsa_kernel {name}
  .amdhsa_next_free_vgpr {vgpr}
  .amdhsa_next_free_sgpr 102
  .amdhsa_accum_offset {vgpr}
  .amdhsa_group_segment_fixed_size 0
  .amdhsa_kernarg_size 88
  .amdhsa_user_sgpr_count 2
  .amdhsa_user_sgpr_kernarg_segment_ptr 1
  .amdhsa_system_sgpr_workgroup_id_x 1
.end_amdhsa_kernel
"""


def build(cfg):
    ref = open(f"cdna_kernels/{NAME}.s.ref").read().split("\n")
    head = [l for l in ref if l.startswith(";") and "@launch" not in l]
    launches = [(K1, 57344), (K2, 163840)]
    if cfg.get("k1only"):
        launches = launches[:1]
    if cfg.get("dup"):
        launches.insert(0, ("egnn_dup_kernel", 57344))
    s = "\n".join(head) + "\n"
    for k, lds in launches:
        s += f"; @launch kernel={k} grid=(256,1,1) block=(1024,1,1) lds={lds}\n"
    if cfg.get("echo"):
        s += "; @launch kernel=egnn_echo_kernel grid=(1,1,1) block=(64,1,1) lds=0\n"
    s += '.amdgcn_target "amdgcn-amd-amdhsa--gfx950"\n.text\n'
    bodies = [(K1, gen_k1(cfg)), (K2, gen_k2(cfg))]
    if cfg.get("dup"):
        off = cfg["dup"] << 20
        d = gen_k1(cfg).replace("K1_", "KX_").replace(f"s_add_u32 s0, s0, {WS_DIAG}", f"s_add_u32 s0, s0, {WS_DIAG}\n    s_sub_u32 s20, s20, {off}\n    s_subb_u32 s21, s21, 0")
        d = d.replace("    s_cmp_ge_u32 s2, 256\n", f"    s_waitcnt lgkmcnt(0)\n    s_add_u32 s20, s20, {off}\n    s_addc_u32 s21, s21, 0\n    s_cmp_ge_u32 s2, 256\n", 1)
        bodies = [("egnn_dup_kernel", d), (K1, gen_k1({})), (K2, gen_k2(cfg))]
    if cfg.get("echo"):
        from echo import echo_kernel
        bodies.append(("egnn_echo_kernel", echo_kernel(cfg["echo"], cfg)))
    for k, b in bodies:
        s += f".globl {k}\n.p2align 8\n.type {k},@function\n{k}:\n{b}"
    s += '.section .rodata,"a"\n'
    for k, _ in bodies:
        s += ".p2align 6\n" + KD.format(name=k, vgpr=128)
    errs = lint(re.sub(r's_mem(real)?time.*', 's_nop 0', s), [K1, K2])
    return s, errs


if __name__ == "__main__":
    cfg = {}
    out = "new.s"
    for arg in sys.argv[1:]:
        if "=" in arg:
            k, v = arg.split("=", 1)
            cfg[k] = int(v) if re.fullmatch(r"-?\d+", v) else v
        else:
            out = arg
    s, errs = build(cfg)
    for e in errs:
        print(e)
    open(out, "w").write(s)
    print("wrote", out, len(s), "bytes;", len(errs), "lint messages")
```

```python
from common import *


def warm(cfg, k):
    w = cfg.get("warm")
    if not w:
        return ""
    body = f"""v_and_b32 v60, 63, v0
    v_mul_u32_u24 v60, {w * 1024}, v60
    v_add_u32 v60, {WS_REC if k == 0 else 0}, v60
    s_mov_b64 exec, {(1 << ((0x500000 if k == 0 else 0x340000) // 1024 // w + 1)) - 1 if w >= 256 else -1}
    global_load_dword v60, v60, s[20:21]
    s_mov_b64 exec, -1"""
    if k and cfg.get("pace"):
        n, lanes = divmod(cfg["pace"], 100)
        t = f"K1_WARM:\ns_lshl_b32 s24, s22, 8\nv_lshl_add_u32 v60, v1, 6, s24\ns_mov_b64 exec, {(1 << lanes) - 1 if lanes < 64 else -1}\n"
        for i in range(n):
            t += f"global_store_dword v60, v1, s[20:21] sc1\nv_add_u32 v60, {64 * lanes}, v60\ns_waitcnt vmcnt(0)\n"
        return t + "s_barrier\ns_branch K1_AEND"
    if k:
        return f"K1_WARM:\n{body}\ns_waitcnt vmcnt(1)\ns_barrier\ns_branch K1_AEND"
    return f"s_cmp_lg_u32 s3, 15\ns_cbranch_scc1 K1_NW\n{body}\nK1_NW:"


def gen_k1(cfg):
    a = Asm()
    CNT = 40960
    a(f"""
    s_load_dwordx16 s[4:19], s[0:1], 0
    s_load_dwordx2 s[20:21], s[0:1], 80
    v_lshrrev_b32 v1, 6, v0
    s_cmp_ge_u32 s2, 256
    s_cbranch_scc1 K1_END
    v_readfirstlane_b32 s3, v1
    s_cmp_ge_u32 s2, 125
    s_cbranch_scc1 K1_Q
    """)
    a(f"""
    s_mul_i32 s22, s2, 12800
    v_lshlrev_b32 v28, 4, v0
    v_add_u32 v2, s22, v28
    v_lshrrev_b32 v3, 1, v2
    v_cmp_gt_u32 vcc, 800, v0
    s_cmp_lt_u32 s3, 8
    s_cselect_b32 s23, 0xbfbfbfbf, 0
    s_cselect_b32 s26, 64, 0
    s_cselect_b32 s27, 0, {CNT - 8192}
    v_and_b32 v14, 0x3fe, v0
    v_mul_u32_u24 v14, s26, v14
    v_add3_u32 v14, v14, v28, s27
    v_mov_b32 v16, s23
    v_mov_b32 v17, s23
    v_mov_b32 v18, s23
    v_mov_b32 v19, s23
    s_mov_b64 s[24:25], vcc ; @set:idle=x
    s_mov_b64 exec, vcc
    s_waitcnt lgkmcnt(0)
    s_cbranch_execz K1_PL ; @if:idle=1
    global_load_dwordx4 v[4:7], v2, s[12:13]
    global_load_dwordx4 v[8:11], v2, s[10:11]
    global_load_dwordx2 v[12:13], v3, s[8:9]
    K1_PL:
    s_mov_b64 exec, -1
    {warm(cfg, 0)}
    ds_write_b128 v14, v[16:19]
    """)
    stamp(a, cfg, 0, 0, True)
    stamp(a, cfg, 0, 2)
    GA, LA, CA = 40, 44, 48
    a(f"""
    s_lshl_b32 s22, s2, 7
    s_add_u32 s22, s22, {WS_REC}
    s_add_u32 s20, s20, s22
    s_addc_u32 s21, s21, 0
    s_movk_i32 s26, {RST - 128}
    v_lshrrev_b32 v21, 3, v0
    v_mad_u32_u24 v{GA}, v21, s26, v28
    v_add_u32 v{GA + 1}, {128 * RST}, v{GA}
    v_lshl_add_u32 v{LA}, v21, 5, v28
    v_lshlrev_b32 v{CA}, 2, v21
    """)
    pre = cfg.get("pre", 0)
    np_, nq = (2 if pre & 3 else 0), (4 if pre & 12 else 0)
    if pre & 2:
        a("s_mov_b32 exec_lo, 0x01010101\ns_mov_b32 exec_hi, 0x01010101")
    for i in range(np_):
        a(f"global_store_dwordx4 v{GA + i}, v[16:19], s[20:21] sc1")
    a("s_mov_b64 exec, -1")
    a(f"""
    s_mov_b32 s26, 342393
    s_movk_i32 s27, 12544
    s_mov_b32 s28, 0xffff0000
    v_mov_b32 v29, 1
    s_waitcnt lgkmcnt(0)
    s_barrier
    s_cmp_ge_u32 s3, 13
    s_cbranch_scc1 K1_PB ; @if:idle=1
    s_mov_b64 exec, s[24:25]
    s_waitcnt vmcnt({2 + np_})
    """)
    stamp(a, cfg, 0, 3)
    for j in range(4):
        a(f"""
        v_mul_u32_u24 v{4 + j}, s26, v{4 + j}
        v_lshlrev_b32_sdwa v{14 + j}, 2, v{4 + j} {SD} src1_sel:BYTE_3
        ds_add_rtn_u32 v{18 + j}, v{14 + j}, v29 offset:{CNT}
        """)
    for j in range(4):
        a(f"""
        v_mul_hi_u32_u24 v{4 + j}, s27, v{4 + j}
        v_mul_u32_u24 v{14 + j}, 40, v{14 + j}
        """)
    a(f"s_waitcnt vmcnt({np_})")
    for j in range(4):
        if j & 1:
            a(f"v_and_or_b32 v{8 + j}, v{12 + j // 2}, s28, v{8 + j}")
        else:
            a(f"v_lshl_or_b32 v{8 + j}, v{12 + j // 2}, 16, v{8 + j}")
    for j in range(4):
        a(f"""
        s_waitcnt lgkmcnt({3 + j})
        v_min_u32 v{18 + j}, 31, v{18 + j}
        v_add_u32 v22, v{14 + j}, v{18 + j}
        v_lshl_add_u32 v23, v{18 + j}, 2, v{14 + j}
        ds_write_b8 v22, v{4 + j}
        ds_write_b32 v23, v{8 + j} offset:32
        """)
    a(f"""
    s_mov_b64 exec, -1
    K1_PB:
    s_waitcnt lgkmcnt(0)
    s_barrier
    """)
    stamp(a, cfg, 0, 4)
    a(f"""
    ds_read_b32 v{CA + 1}, v{CA} offset:{CNT + 512}
    ds_read_b32 v{CA}, v{CA} offset:{CNT}
    ds_read_b128 v[4:7], v{LA}
    ds_read_b128 v[8:11], v{LA} offset:{128 * 160}
    s_waitcnt lgkmcnt(2)
    v_max_u32 v20, v{CA}, v{CA + 1}
    v_cmp_lt_u32 vcc, 24, v20
    s_cbranch_vccnz K1_OVF
    K1_ST:
    s_waitcnt lgkmcnt(1)
    global_store_dwordx4 v{GA}, v[4:7], s[20:21] {cfg.get('pf', 'sc1')}
    s_waitcnt lgkmcnt(0)
    global_store_dwordx4 v{GA + 1}, v[8:11], s[20:21] {cfg.get('pf', 'sc1')}
    """)
    if cfg.get("diag"):
        a("s_sub_u32 s20, s20, s22\ns_subb_u32 s21, s21, 0")
    stamp(a, cfg, 0, 5)
    stamp_out(a, cfg, 0, 20)
    a(f"""
    s_endpgm
    K1_OVF:
    ds_read_b128 v[12:15], v{LA} offset:128
    ds_read_b128 v[16:19], v{LA} offset:{128 * 160 + 128}
    s_mul_i32 s26, s2, -96
    s_add_u32 s26, s26, 16000
    s_mov_b32 s30, 0x03030303
    s_mov_b32 s31, 0x03030303
    v_add_u32 v20, s26, v{GA}
    v_add_u32 v21, s26, v{GA + 1}
    s_waitcnt lgkmcnt(0)
    """)
    for i in range(2):
        a(f"""
        v_cmp_lt_u32 vcc, 24, v{CA + i}
        s_and_b64 exec, vcc, s[30:31]
        s_cbranch_execz K1_OV{i}
        global_store_dwordx4 v{20 + i}, {vr(12 + 4 * i, 4)}, s[20:21] sc1
        v_cmpx_lt_u32 vcc, 32, v{CA + i}
        """)
        for k in range(4):
            a(f"v_mov_b32 v{4 + 4 * i + k}, -1")
        a(f"K1_OV{i}:\ns_mov_b64 exec, -1")
    a("s_branch K1_ST")

    WL, HL = 0, 32768
    a(f"""
    K1_Q:
    s_setreg_imm32_b32 hwreg(HW_REG_MODE, 4, 2), 3
    v_and_b32 v1, 63, v0
    s_sub_u32 s37, s2, 125
    s_mul_i32 s22, s37, 96
    v_lshrrev_b32 v2, 4, v1
    v_and_b32 v3, 15, v1
    s_and_b32 s23, s3, 1
    s_lshl_b32 s24, s23, 2
    v_or_b32 v4, s24, v2
    v_lshlrev_b32 v4, 1, v4
    v_xor_b32 v4, v4, v3
    v_lshlrev_b32 v4, 4, v4
    v_lshl_add_u32 v4, v2, 8, v4
    s_lshl_b32 s24, s3, 11
    s_add_u32 s25, s24, 32768
    s_mov_b32 m0, s24
    v_lshrrev_b32 v5, 2, v1
    v_lshrrev_b32 v6, 5, v1
    v_lshlrev_b32 v6, 1, v6
    v_and_b32 v7, 3, v1
    v_xor_b32 v6, v6, v7
    v_lshlrev_b32 v6, 4, v6
    v_lshl_add_u32 v5, v5, 8, v6
    s_waitcnt lgkmcnt(0)
    """)
    srd(a, 28, 14, 258 * 256)
    w2 = """
    buffer_load_dwordx4 v4, s[28:31], s25 offen lds
    buffer_load_dwordx4 v4, s[28:31], s25 offen offset:1024 lds
    """
    hf = cfg.get("hfirst")
    if not hf:
        a(w2)
    a(f"""
    s_cmp_ge_u32 s3, 12
    s_cbranch_scc1 K1_AUX
    """)
    srd(a, 32, 4, N * 256)
    a(f"""
    s_lshr_b32 s26, s3, 1
    s_lshl_b32 s26, s26, 4
    s_add_u32 s26, s26, s22
    s_lshl_b32 s26, s26, 8
    s_lshl_b32 s27, s23, 7
    s_add_u32 s26, s26, s27
    s_add_u32 s27, s24, {HL}
    s_mov_b32 m0, s27
    s_add_u32 s36, s26, 64
    buffer_load_dwordx4 v5, s[32:35], s26 offen lds
    s_add_u32 s27, s27, 1024
    s_mov_b32 m0, s27
    s_nop 0
    buffer_load_dwordx4 v5, s[32:35], s36 offen lds
    """)
    if hf:
        a("s_mov_b32 m0, s24\ns_nop 0" + w2)
    stamp(a, cfg, 0, 0, True)
    stamp(a, cfg, 0, 2)
    a(f"""
    v_lshrrev_b32 v6, 3, v3
    v_lshlrev_b32 v6, 1, v6
    v_xor_b32 v6, v6, v2
    v_lshlrev_b32 v6, 4, v6
    v_lshl_add_u32 v6, v3, 6, v6
    s_lshr_b32 s27, s3, 1
    s_lshl_b32 s27, s27, 12
    v_add_u32 v6, s27, v6
    v_bfe_u32 v8, v1, 2, 2
    v_and_b32 v9, 1, v2
    v_xor_b32 v9, s23, v9
    v_lshl_or_b32 v9, v9, 2, v8
    v_lshlrev_b32 v9, 5, v9
    v_lshl_or_b32 v9, v7, 3, v9
    v_lshl_add_u32 v8, v2, 3, v8
    v_lshl_add_u32 v8, v8, 8, v9
    v_xor_b32 v9, 32, v8
    v_xor_b32 v10, 64, v8
    v_xor_b32 v11, 0x60, v8
    v_lshlrev_b32 v12, 3, v3
    v_lshl_add_u32 v12, v2, 10, v12
    v_add_u32 v12, s26, v12
    """)
    if pre & 8:
        a("s_mov_b32 exec_lo, 0x00010001\ns_mov_b32 exec_hi, 0x00010001")
    for r in range(nq):
        a(f"global_store_dwordx2 v12, v[8:9], s[20:21] offset:{256 * r} sc1")
    a(f"""
    s_mov_b64 exec, -1
    v_and_b32 v14, 1, v1
    v_mul_u32_u24 v14, 101, v14
    v_lshlrev_b32 v14, 23, v14
    v_sub_u32 v14, {f32(-LOG2E)}, v14
    s_lshl_b32 s24, s37, 7
    s_add_u32 s24, s24, s3
    s_add_u32 s24, s24, {WS_FLG}
    v_mov_b32 v13, s24
    s_waitcnt vmcnt({nq})
    s_barrier
    """)
    stamp(a, cfg, 0, 3)
    AF, BF, AC = 16, 32, 96
    if cfg.get("qprio"):
        a("s_cmp_ge_u32 s3, 4\ns_cbranch_scc1 K1_QP\ns_setprio 2\nK1_QP:")
    for ks in range(4):
        a(f"ds_read_b128 v[{AF + 4 * ks}:{AF + 4 * ks + 3}], v6 offset:{HL + 1024 * ks}")
        for tt in range(4):
            for i in range(2):
                d = BF + 16 * ks + 4 * tt + 2 * i
                a(f"ds_read_b64_tr_b16 v[{d}:{d + 1}], v{8 + tt} offset:{WL + 8192 * ks + 1024 * i}")
        if ks >= 1:
            k = ks - 1
            a("s_waitcnt lgkmcnt(9)")
            for tt in range(4):
                c = "0" if k == 0 else vr(AC + 4 * tt, 4)
                a(f"v_mfma_f32_16x16x32_bf16 {vr(AC + 4 * tt, 4)}, {vr(AF + 4 * k, 4)}, {vr(BF + 16 * k + 4 * tt, 4)}, {c}")
    for tt in range(4):
        a(f"s_waitcnt lgkmcnt({6 - 2 * tt})")
        a(f"v_mfma_f32_16x16x32_bf16 {vr(AC + 4 * tt, 4)}, {vr(AF + 12, 4)}, {vr(BF + 48 + 4 * tt, 4)}, {vr(AC + 4 * tt, 4)}")
    a("s_nop 1")
    for tt in range(4):
        for k in (0, 2):
            a(f"v_pk_mul_f32 {vr(BF + 4 * tt + k, 2)}, {vr(AC + 4 * tt + k, 2)}, v[14:15] op_sel_hi:[1,0]")
    for r in range(4):
        a(f"""
        v_cvt_pk_bf16_f32 v{16 + 2 * r}, v{BF + r}, v{BF + 4 + r}
        v_cvt_pk_bf16_f32 v{17 + 2 * r}, v{BF + 8 + r}, v{BF + 12 + r}
        global_store_dwordx2 v12, v[{16 + 2 * r}:{17 + 2 * r}], s[20:21] offset:{256 * r} {cfg.get('qf', 'sc1')}
        """)
    a(f"v_pk_mul_f32 v[4:5], {vr(AC, 2)}, {vr(AC, 2)}")
    for k in range(1, 8):
        a(f"v_pk_fma_f32 v[4:5], {vr(AC + 2 * k, 2)}, {vr(AC + 2 * k, 2)}, v[4:5]")
    a(f"""
    v_add_f32 v4, v4, v5
    v_cmp_ngt_f32 vcc, {f32(64 * LN2 * LN2)}, v4
    s_bcnt1_i32_b64 s24, vcc
    v_mov_b32 v4, s24
    s_mov_b64 exec, 1
    {'' if cfg.get('noflag') else 'global_store_byte v13, v4, s[20:21] sc1'}
    """)
    stamp(a, cfg, 0, 4)
    stamp_out(a, cfg, 0, 20)
    a("s_endpgm")

    a(f"""
    K1_AUX:
    {w2 if hf else ''}
    s_cmp_eq_u32 s3, 12
    s_cbranch_scc1 K1_WF
    s_cmp_eq_u32 s3, 15
    s_cbranch_scc1 {'K1_WARM' if cfg.get('warm') else 'K1_IDLE'}
    s_mul_i32 s24, s3, 48
    s_add_u32 s24, s24, s22
    s_sub_u32 s24, s24, {13 * 48}
    s_sub_u32 s25, {N}, s24
    s_min_i32 s25, s25, 48
    v_add_u32 v4, s24, v1
    v_cmp_gt_i32 vcc, s25, v1
    v_mul_u32_u24 v5, 6, v4
    v_and_b32 v6, -4, v5
    v_lshlrev_b32 v5, 3, v5
    v_and_b32 v5, 16, v5
    v_lshlrev_b32 v7, 1, v4
    v_add_u32 v7, {WS_POS + 50000}, v7
    v_lshlrev_b32 v4, 2, v4
    v_add_u32 v4, {WS_POS}, v4
    s_cbranch_vccz K1_IDLE
    s_mov_b64 exec, vcc
    global_load_dwordx2 v[8:9], v6, s[6:7]
    s_waitcnt vmcnt(1)
    s_barrier
    s_waitcnt vmcnt(0)
    v_lshrrev_b64 v[8:9], v5, v[8:9]
    {'' if cfg.get('nopos') else 'global_store_dword v4, v8, s[20:21] sc1'}
    {'' if cfg.get('nopos') else 'global_store_short v7, v9, s[20:21] sc1'}
    s_branch K1_AEND
    {warm(cfg, 1)}
    K1_IDLE:
    s_waitcnt vmcnt(0)
    s_barrier
    s_branch K1_AEND
    K1_WF:
    v_and_b32 v6, 12, v3
    v_lshl_or_b32 v6, v7, 5, v6
    s_cmp_ge_u32 s37, 96
    s_cbranch_scc1 K1_SM
    s_bfe_u32 s22, s37, 0x30002
    s_and_b32 s23, s37, 3
    s_and_b32 s24, s37, 31
    s_lshl_b32 s24, s24, 10
    v_lshl_add_u32 v16, v1, 4, s24
    s_movk_i32 s25, 512
    s_movk_i32 s26, 1024
    s_lshl_b32 s24, s23, 13
    s_cmp_ge_u32 s37, 32
    s_cbranch_scc1 K1_M1
    s_lshr_b32 s27, s22, 2
    s_lshl_b32 s27, s27, 7
    s_add_u32 s24, s24, s27
    s_and_b32 s27, s22, 2
    s_lshl_b32 s27, s27, 3
    s_add_u32 s24, s24, s27
    s_and_b32 s27, s22, 1
    s_lshl_b32 s27, s27, 1
    s_add_u32 s24, s24, s27
    v_lshl_add_u32 v6, v2, 11, v6
    v_add_u32 v16, {WS_W1}, v16
    s_branch K1_WLD
    K1_M1:
    s_mov_b32 s28, s18
    s_mov_b32 s29, s19
    s_mov_b32 s30, 65536
    v_lshlrev_b32 v6, 1, v3
    s_cmp_ge_u32 s37, 64
    s_cbranch_scc1 K1_M2
    v_lshl_add_u32 v6, v2, 11, v6
    s_lshl_b32 s27, s22, 12
    s_lshl_b32 s36, s23, 6
    s_add_u32 s27, s27, s36
    s_add_u32 s27, s27, {QROWS * 256}
    v_lshl_add_u32 v16, v3, 8, s27
    v_lshl_add_u32 v16, v2, 4, v16
    s_branch K1_M3
    K1_M2:
    s_lshl_b32 s24, s23, 9
    s_add_u32 s24, s24, 32768
    s_movk_i32 s25, 2048
    s_movk_i32 s26, 16384
    v_lshl_add_u32 v6, v2, 12, v6
    v_add_u32 v16, {WS_WB}, v16
    K1_M3:
    s_lshl_b32 s27, s22, 5
    s_add_u32 s24, s24, s27
    K1_WLD:
    s_add_u32 s27, s25, s26
    s_add_u32 s25, s25, s24
    s_add_u32 s26, s26, s24
    s_add_u32 s27, s27, s24
    """)
    for j in range(8):
        a(f"buffer_load_ushort v{8 + j}, v6, s[28:31], s{24 + j // 2} offen offset:{256 * (j & 1)}")
    a(f"""
    s_waitcnt vmcnt(8)
    s_barrier
    s_waitcnt vmcnt(0)
    v_lshl_or_b32 v4, v9, 16, v8
    v_lshl_or_b32 v5, v11, 16, v10
    v_lshl_or_b32 v6, v13, 16, v12
    v_lshl_or_b32 v7, v15, 16, v14
    global_store_dwordx4 v16, v[4:7], s[20:21] sc1
    s_branch K1_AEND
    K1_SM:
    s_cmp_ge_u32 s37, 99
    s_cbranch_scc1 K1_CONST
    v_and_b32 v8, 2, v2
    v_lshl_or_b32 v6, v8, 3, v6
    v_and_b32 v8, 1, v2
    v_lshl_or_b32 v6, v8, 1, v6
    s_lshl_b32 s24, s37, 8
    s_add_u32 s25, s24, {65536 - 96 * 256}
    s_add_u32 s26, s14, s25
    s_addc_u32 s27, s15, 0
    s_cmp_eq_u32 s37, 98
    s_cselect_b32 s26, s16, s26
    s_cselect_b32 s27, s17, s27
    global_load_ushort v10, v6, s[26:27]
    global_load_ushort v11, v6, s[26:27] offset:128
    s_waitcnt vmcnt(2)
    s_barrier
    s_waitcnt vmcnt(0)
    v_lshlrev_b32 v10, 16, v10
    v_lshlrev_b32 v11, 16, v11
    s_cbranch_scc1 K1_WX
    s_cmp_eq_u32 s37, 96
    s_cselect_b32 s25, 1.0, {f32(-LOG2E)}
    s_cselect_b32 s26, {f32(32.0)}, {f32(15.0)}
    v_mul_f32 v10, s25, v10
    v_mul_f32 v11, s25, v11
    v_and_b32 v12, 0x7fffffff, v10
    v_and_b32 v13, 0x7fffffff, v11
    v_max_u32 v12, v12, v13
    v_mul_i32_i24 v8, -101, v8
    v_ldexp_f32 v10, v10, v8
    v_ldexp_f32 v11, v11, v8
    v_cvt_pk_bf16_f32 v10, v10, v11
    s_add_u32 s24, s24, {WS_SMALL + 1024 - 96 * 256}
    v_lshl_add_u32 v4, v1, 1, s24
    global_store_short v4, v10, s[20:21] sc1
    global_store_short_d16_hi v4, v10, s[20:21] offset:128 sc1
    """.replace(f"s_cselect_b32 s26, {f32(32.0)}, {f32(15.0)}", f"s_mov_b32 s26, {f32(15.0)}\ns_cmov_b32 s26, {f32(32.0)}"))
    scan64(a, 12, "v_max_u32")
    a(f"""
    s_lshl_b32 s24, s37, 2
    s_add_u32 s24, s24, {WS_THR - 96 * 4}
    v_rcp_f32 v12, v12
    v_mov_b32 v4, s24
    v_mul_f32 v12, s26, v12
    s_mov_b32 exec_lo, 0
    s_brev_b32 exec_hi, 1
    global_store_dword v4, v12, s[20:21] sc1
    s_branch K1_AEND
    K1_WX:
    v_mul_f32 v10, {f32(-LN2 * (1 + DELTA))}, v10
    v_mul_f32 v11, {f32(-LN2 * (1 + DELTA))}, v11
    v_lshlrev_b32 v4, 5, v3
    v_lshl_add_u32 v4, v2, 2, v4
    v_add_u32 v4, {WS_SMALL + 1536}, v4
    global_store_dword v4, v10, s[20:21] sc1
    global_store_dword v4, v11, s[20:21] offset:16 sc1
    s_branch K1_AEND
    K1_CONST:
    s_cmp_lg_u32 s37, 99
    s_cbranch_scc1 K1_IDLE
    v_cmp_eq_u32 vcc, 32, v1
    v_cmp_eq_u32 s[24:25], 33, v1
    v_mov_b32 v12, 0x3f80
    v_lshlrev_b32 v4, 4, v1
    v_add_u32 v4, {WS_SMALL}, v4
    v_cndmask_b32 v8, 0, v12, vcc
    v_cndmask_b32 v9, 0, v12, s[24:25]
    v_lshlrev_b32 v10, 16, v8
    v_lshlrev_b32 v11, 16, v9
    s_waitcnt vmcnt(0)
    s_barrier
    global_store_dwordx4 v4, v[8:11], s[20:21] sc1
    v_lshlrev_b32 v4, 3, v1
    v_add_u32 v4, {WS_SMALL + 2048}, v4
    v_lshlrev_b32 v12, 1, v1
    v_add_u32 v12, {QROWS}, v12
    v_add_u32 v13, 1, v12
    global_store_dwordx2 v4, v[12:13], s[20:21] sc1
    K1_AEND:
    """)
    stamp_out(a, cfg, 0, 20)
    a("K1_END:\ns_endpgm")
    t = a.text()
    return t if cfg.get("diag") else t.replace("s_branch K1_AEND", "s_endpgm")
```

```python
from common import *


def warm(cfg, k):
    w = cfg.get("warm")
    if not w:
        return ""
    body = f"""v_and_b32 v60, 63, v0
    v_mul_u32_u24 v60, {w * 1024}, v60
    v_add_u32 v60, {WS_REC if k == 0 else 0}, v60
    s_mov_b64 exec, {(1 << ((0x500000 if k == 0 else 0x340000) // 1024 // w + 1)) - 1 if w >= 256 else -1}
    global_load_dword v60, v60, s[20:21]
    s_mov_b64 exec, -1"""
    if k and cfg.get("pace"):
        n, lanes = divmod(cfg["pace"], 100)
        t = f"K1_WARM:\ns_lshl_b32 s24, s22, 8\nv_lshl_add_u32 v60, v1, 6, s24\ns_mov_b64 exec, {(1 << lanes) - 1 if lanes < 64 else -1}\n"
        for i in range(n):
            t += f"global_store_dword v60, v1, s[20:21] sc1\nv_add_u32 v60, {64 * lanes}, v60\ns_waitcnt vmcnt(0)\n"
        return t + "s_barrier\ns_branch K1_AEND"
    if k:
        return f"K1_WARM:\n{body}\ns_waitcnt vmcnt(1)\ns_barrier\ns_branch K1_AEND"
    return f"s_cmp_lg_u32 s3, 15\ns_cbranch_scc1 K1_NW\n{body}\nK1_NW:"


def gen_k1(cfg):
    a = Asm()
    CNT = 40960
    a(f"""
    s_load_dwordx16 s[4:19], s[0:1], 0
    s_load_dwordx2 s[20:21], s[0:1], 80
    v_lshrrev_b32 v1, 6, v0
    s_cmp_ge_u32 s2, 256
    s_cbranch_scc1 K1_END
    v_readfirstlane_b32 s3, v1
    s_cmp_ge_u32 s2, 125
    s_cbranch_scc1 K1_Q
    """)
    a(f"""
    s_mul_i32 s22, s2, 12800
    v_lshlrev_b32 v28, 4, v0
    v_add_u32 v2, s22, v28
    v_lshrrev_b32 v3, 1, v2
    v_cmp_gt_u32 vcc, 800, v0
    s_cmp_lt_u32 s3, 8
    s_cselect_b32 s23, 0xbfbfbfbf, 0
    s_cselect_b32 s26, 64, 0
    s_cselect_b32 s27, 0, {CNT - 8192}
    v_and_b32 v14, 0x3fe, v0
    v_mul_u32_u24 v14, s26, v14
    v_add3_u32 v14, v14, v28, s27
    v_mov_b32 v16, s23
    v_mov_b32 v17, s23
    v_mov_b32 v18, s23
    v_mov_b32 v19, s23
    s_mov_b64 s[24:25], vcc ; @set:idle=x
    s_mov_b64 exec, vcc
    s_waitcnt lgkmcnt(0)
    s_cbranch_execz K1_PL ; @if:idle=1
    global_load_dwordx4 v[4:7], v2, s[12:13]
    global_load_dwordx4 v[8:11], v2, s[10:11]
    global_load_dwordx2 v[12:13], v3, s[8:9]
    K1_PL:
    s_mov_b64 exec, -1
    {warm(cfg, 0)}
    ds_write_b128 v14, v[16:19]
    """)
    stamp(a, cfg, 0, 0, True)
    stamp(a, cfg, 0, 2)
    GA, LA, CA = 40, 44, 48
    a(f"""
    s_lshl_b32 s22, s2, 7
    s_add_u32 s22, s22, {WS_REC}
    s_add_u32 s20, s20, s22
    s_addc_u32 s21, s21, 0
    s_movk_i32 s26, {RST - 128}
    v_lshrrev_b32 v21, 3, v0
    v_mad_u32_u24 v{GA}, v21, s26, v28
    v_add_u32 v{GA + 1}, {128 * RST}, v{GA}
    v_lshl_add_u32 v{LA}, v21, 5, v28
    v_lshlrev_b32 v{CA}, 2, v21
    """)
    pre = cfg.get("pre", 0)
    np_, nq = (2 if pre & 3 else 0), (4 if pre & 12 else 0)
    if pre & 2:
        a("s_mov_b32 exec_lo, 0x01010101\ns_mov_b32 exec_hi, 0x01010101")
    for i in range(np_):
        a(f"global_store_dwordx4 v{GA + i}, v[16:19], s[20:21] sc1")
    a("s_mov_b64 exec, -1")
    a(f"""
    s_mov_b32 s26, 342393
    s_movk_i32 s27, 12544
    s_mov_b32 s28, 0xffff0000
    v_mov_b32 v29, 1
    s_waitcnt lgkmcnt(0)
    s_barrier
    s_cmp_ge_u32 s3, 13
    s_cbranch_scc1 K1_PB ; @if:idle=1
    s_mov_b64 exec, s[24:25]
    s_waitcnt vmcnt({2 + np_})
    """)
    stamp(a, cfg, 0, 3)
    for j in range(4):
        a(f"""
        v_mul_u32_u24 v{4 + j}, s26, v{4 + j}
        v_lshlrev_b32_sdwa v{14 + j}, 2, v{4 + j} {SD} src1_sel:BYTE_3
        ds_add_rtn_u32 v{18 + j}, v{14 + j}, v29 offset:{CNT}
        """)
    for j in range(4):
        a(f"""
        v_mul_hi_u32_u24 v{4 + j}, s27, v{4 + j}
        v_mul_u32_u24 v{14 + j}, 40, v{14 + j}
        """)
    a(f"s_waitcnt vmcnt({np_})")
    for j in range(4):
        if j & 1:
            a(f"v_and_or_b32 v{8 + j}, v{12 + j // 2}, s28, v{8 + j}")
        else:
            a(f"v_lshl_or_b32 v{8 + j}, v{12 + j // 2}, 16, v{8 + j}")
    for j in range(4):
        a(f"""
        s_waitcnt lgkmcnt({3 + j})
        v_min_u32 v{18 + j}, 31, v{18 + j}
        v_add_u32 v22, v{14 + j}, v{18 + j}
        v_lshl_add_u32 v23, v{18 + j}, 2, v{14 + j}
        ds_write_b8 v22, v{4 + j}
        ds_write_b32 v23, v{8 + j} offset:32
        """)
    a(f"""
    s_mov_b64 exec, -1
    K1_PB:
    s_waitcnt lgkmcnt(0)
    s_barrier
    """)
    stamp(a, cfg, 0, 4)
    a(f"""
    ds_read_b32 v{CA + 1}, v{CA} offset:{CNT + 512}
    ds_read_b32 v{CA}, v{CA} offset:{CNT}
    ds_read_b128 v[4:7], v{LA}
    ds_read_b128 v[8:11], v{LA} offset:{128 * 160}
    s_waitcnt lgkmcnt(2)
    v_max_u32 v20, v{CA}, v{CA + 1}
    v_cmp_lt_u32 vcc, 24, v20
    s_cbranch_vccnz K1_OVF
    K1_ST:
    s_waitcnt lgkmcnt(1)
    global_store_dwordx4 v{GA}, v[4:7], s[20:21] {cfg.get('pf', 'sc1')}
    s_waitcnt lgkmcnt(0)
    global_store_dwordx4 v{GA + 1}, v[8:11], s[20:21] {cfg.get('pf', 'sc1')}
    """)
    if cfg.get("diag"):
        a("s_sub_u32 s20, s20, s22\ns_subb_u32 s21, s21, 0")
    stamp(a, cfg, 0, 5)
    stamp_out(a, cfg, 0, 20)
    a(f"""
    s_endpgm
    K1_OVF:
    ds_read_b128 v[12:15], v{LA} offset:128
    ds_read_b128 v[16:19], v{LA} offset:{128 * 160 + 128}
    s_mul_i32 s26, s2, -96
    s_add_u32 s26, s26, 16000
    s_mov_b32 s30, 0x03030303
    s_mov_b32 s31, 0x03030303
    v_add_u32 v20, s26, v{GA}
    v_add_u32 v21, s26, v{GA + 1}
    s_waitcnt lgkmcnt(0)
    """)
    for i in range(2):
        a(f"""
        v_cmp_lt_u32 vcc, 24, v{CA + i}
        s_and_b64 exec, vcc, s[30:31]
        s_cbranch_execz K1_OV{i}
        global_store_dwordx4 v{20 + i}, {vr(12 + 4 * i, 4)}, s[20:21] sc1
        v_cmpx_lt_u32 vcc, 32, v{CA + i}
        """)
        for k in range(4):
            a(f"v_mov_b32 v{4 + 4 * i + k}, -1")
        a(f"K1_OV{i}:\ns_mov_b64 exec, -1")
    a("s_branch K1_ST")

    WL, HL = 0, 32768
    a(f"""
    K1_Q:
    s_setreg_imm32_b32 hwreg(HW_REG_MODE, 4, 2), 3
    v_and_b32 v1, 63, v0
    s_sub_u32 s37, s2, 125
    s_mul_i32 s22, s37, 96
    v_lshrrev_b32 v2, 4, v1
    v_and_b32 v3, 15, v1
    s_and_b32 s23, s3, 1
    s_lshl_b32 s24, s23, 2
    v_or_b32 v4, s24, v2
    v_lshlrev_b32 v4, 1, v4
    v_xor_b32 v4, v4, v3
    v_lshlrev_b32 v4, 4, v4
    v_lshl_add_u32 v4, v2, 8, v4
    s_lshl_b32 s24, s3, 11
    s_add_u32 s25, s24, 32768
    s_mov_b32 m0, s24
    v_lshrrev_b32 v5, 2, v1
    v_lshrrev_b32 v6, 5, v1
    v_lshlrev_b32 v6, 1, v6
    v_and_b32 v7, 3, v1
    v_xor_b32 v6, v6, v7
    v_lshlrev_b32 v6, 4, v6
    v_lshl_add_u32 v5, v5, 8, v6
    s_waitcnt lgkmcnt(0)
    """)
    srd(a, 28, 14, 258 * 256)
    w2 = """
    buffer_load_dwordx4 v4, s[28:31], s25 offen lds
    buffer_load_dwordx4 v4, s[28:31], s25 offen offset:1024 lds
    """
    hf = cfg.get("hfirst")
    if not hf:
        a(w2)
    a(f"""
    s_cmp_ge_u32 s3, 12
    s_cbranch_scc1 K1_AUX
    """)
    srd(a, 32, 4, N * 256)
    a(f"""
    s_lshr_b32 s26, s3, 1
    s_lshl_b32 s26, s26, 4
    s_add_u32 s26, s26, s22
    s_lshl_b32 s26, s26, 8
    s_lshl_b32 s27, s23, 7
    s_add_u32 s26, s26, s27
    s_add_u32 s27, s24, {HL}
    s_mov_b32 m0, s27
    s_add_u32 s36, s26, 64
    buffer_load_dwordx4 v5, s[32:35], s26 offen lds
    s_add_u32 s27, s27, 1024
    s_mov_b32 m0, s27
    s_nop 0
    buffer_load_dwordx4 v5, s[32:35], s36 offen lds
    """)
    if hf:
        a("s_mov_b32 m0, s24\ns_nop 0" + w2)
    stamp(a, cfg, 0, 0, True)
    stamp(a, cfg, 0, 2)
    a(f"""
    v_lshrrev_b32 v6, 3, v3
    v_lshlrev_b32 v6, 1, v6
    v_xor_b32 v6, v6, v2
    v_lshlrev_b32 v6, 4, v6
    v_lshl_add_u32 v6, v3, 6, v6
    s_lshr_b32 s27, s3, 1
    s_lshl_b32 s27, s27, 12
    v_add_u32 v6, s27, v6
    v_bfe_u32 v8, v1, 2, 2
    v_and_b32 v9, 1, v2
    v_xor_b32 v9, s23, v9
    v_lshl_or_b32 v9, v9, 2, v8
    v_lshlrev_b32 v9, 5, v9
    v_lshl_or_b32 v9, v7, 3, v9
    v_lshl_add_u32 v8, v2, 3, v8
    v_lshl_add_u32 v8, v8, 8, v9
    v_xor_b32 v9, 32, v8
    v_xor_b32 v10, 64, v8
    v_xor_b32 v11, 0x60, v8
    v_lshlrev_b32 v12, 3, v3
    v_lshl_add_u32 v12, v2, 10, v12
    v_add_u32 v12, s26, v12
    """)
    ka, kb = divmod(cfg.get("pq", 0), 100)
    nq = 1 if ka else 0
    if kb:
        a(f"""
        v_lshrrev_b32 v15, 1, v1
        v_and_b32 v14, 1, v1
        v_lshlrev_b32 v14, 6, v14
        v_lshl_add_u32 v15, v15, 8, v14
        v_add_u32 v15, s26, v15
        """)
    if ka:
        a(f"s_mov_b32 exec_hi, 0\ns_mov_b32 exec_lo, {(1 << ka) - 1}\nglobal_store_dword v15, v1, s[20:21] {cfg.get('qf', 'sc1')}")
    a(f"""
    s_mov_b64 exec, -1
    v_and_b32 v14, 1, v1
    v_mul_u32_u24 v14, 101, v14
    v_lshlrev_b32 v14, 23, v14
    v_sub_u32 v14, {f32(-LOG2E)}, v14
    s_lshl_b32 s24, s37, 7
    s_add_u32 s24, s24, s3
    s_add_u32 s24, s24, {WS_FLG}
    v_mov_b32 v13, s24
    s_waitcnt vmcnt({nq})
    s_barrier
    """)
    stamp(a, cfg, 0, 3)
    AF, BF, AC = 16, 32, 96
    if kb > ka:
        a(f"s_mov_b32 exec_hi, 0\ns_mov_b32 exec_lo, {(1 << kb) - (1 << ka)}\nglobal_store_dword v15, v1, s[20:21] {cfg.get('qf', 'sc1')}\ns_mov_b64 exec, -1")
    if cfg.get("qprio"):
        a("s_cmp_ge_u32 s3, 4\ns_cbranch_scc1 K1_QP\ns_setprio 2\nK1_QP:")
    for ks in range(4):
        a(f"ds_read_b128 v[{AF + 4 * ks}:{AF + 4 * ks + 3}], v6 offset:{HL + 1024 * ks}")
        for tt in range(4):
            for i in range(2):
                d = BF + 16 * ks + 4 * tt + 2 * i
                a(f"ds_read_b64_tr_b16 v[{d}:{d + 1}], v{8 + tt} offset:{WL + 8192 * ks + 1024 * i}")
        if ks >= 1:
            k = ks - 1
            a("s_waitcnt lgkmcnt(9)")
            for tt in range(4):
                c = "0" if k == 0 else vr(AC + 4 * tt, 4)
                a(f"v_mfma_f32_16x16x32_bf16 {vr(AC + 4 * tt, 4)}, {vr(AF + 4 * k, 4)}, {vr(BF + 16 * k + 4 * tt, 4)}, {c}")
    for tt in range(4):
        a(f"s_waitcnt lgkmcnt({6 - 2 * tt})")
        a(f"v_mfma_f32_16x16x32_bf16 {vr(AC + 4 * tt, 4)}, {vr(AF + 12, 4)}, {vr(BF + 48 + 4 * tt, 4)}, {vr(AC + 4 * tt, 4)}")
    a("s_nop 1")
    for tt in range(4):
        for k in (0, 2):
            a(f"v_pk_mul_f32 {vr(BF + 4 * tt + k, 2)}, {vr(AC + 4 * tt + k, 2)}, v[14:15] op_sel_hi:[1,0]")
    for r in range(4):
        a(f"""
        v_cvt_pk_bf16_f32 v{16 + 2 * r}, v{BF + r}, v{BF + 4 + r}
        v_cvt_pk_bf16_f32 v{17 + 2 * r}, v{BF + 8 + r}, v{BF + 12 + r}
        global_store_dwordx2 v12, v[{16 + 2 * r}:{17 + 2 * r}], s[20:21] offset:{256 * r} {cfg.get('qf', 'sc1')}
        """)
    a(f"v_pk_mul_f32 v[4:5], {vr(AC, 2)}, {vr(AC, 2)}")
    for k in range(1, 8):
        a(f"v_pk_fma_f32 v[4:5], {vr(AC + 2 * k, 2)}, {vr(AC + 2 * k, 2)}, v[4:5]")
    a(f"""
    v_add_f32 v4, v4, v5
    v_cmp_ngt_f32 vcc, {f32(64 * LN2 * LN2)}, v4
    s_bcnt1_i32_b64 s24, vcc
    v_mov_b32 v4, s24
    s_mov_b64 exec, 1
    {'' if cfg.get('noflag') else 'global_store_byte v13, v4, s[20:21] sc1'}
    """)
    stamp(a, cfg, 0, 4)
    stamp_out(a, cfg, 0, 20)
    a("s_endpgm")

    a(f"""
    K1_AUX:
    {w2 if hf else ''}
    s_cmp_eq_u32 s3, 12
    s_cbranch_scc1 K1_WF
    s_cmp_eq_u32 s3, 15
    s_cbranch_scc1 {'K1_WARM' if cfg.get('warm') else 'K1_IDLE'}
    s_mul_i32 s24, s3, 48
    s_add_u32 s24, s24, s22
    s_sub_u32 s24, s24, {13 * 48}
    s_sub_u32 s25, {N}, s24
    s_min_i32 s25, s25, 48
    v_add_u32 v4, s24, v1
    v_cmp_gt_i32 vcc, s25, v1
    v_mul_u32_u24 v5, 6, v4
    v_and_b32 v6, -4, v5
    v_lshlrev_b32 v5, 3, v5
    v_and_b32 v5, 16, v5
    v_lshlrev_b32 v7, 1, v4
    v_add_u32 v7, {WS_POS + 50000}, v7
    v_lshlrev_b32 v4, 2, v4
    v_add_u32 v4, {WS_POS}, v4
    s_cbranch_vccz K1_IDLE
    s_mov_b64 exec, vcc
    global_load_dwordx2 v[8:9], v6, s[6:7]
    s_waitcnt vmcnt(1)
    s_barrier
    s_waitcnt vmcnt(0)
    v_lshrrev_b64 v[8:9], v5, v[8:9]
    {'' if cfg.get('nopos') else 'global_store_dword v4, v8, s[20:21] sc1'}
    {'' if cfg.get('nopos') else 'global_store_short v7, v9, s[20:21] sc1'}
    s_branch K1_AEND
    {warm(cfg, 1)}
    K1_IDLE:
    s_waitcnt vmcnt(0)
    s_barrier
    s_branch K1_AEND
    K1_WF:
    v_and_b32 v6, 12, v3
    v_lshl_or_b32 v6, v7, 5, v6
    s_cmp_ge_u32 s37, 96
    s_cbranch_scc1 K1_SM
    s_bfe_u32 s22, s37, 0x30002
    s_and_b32 s23, s37, 3
    s_and_b32 s24, s37, 31
    s_lshl_b32 s24, s24, 10
    v_lshl_add_u32 v16, v1, 4, s24
    s_movk_i32 s25, 512
    s_movk_i32 s26, 1024
    s_lshl_b32 s24, s23, 13
    s_cmp_ge_u32 s37, 32
    s_cbranch_scc1 K1_M1
    s_lshr_b32 s27, s22, 2
    s_lshl_b32 s27, s27, 7
    s_add_u32 s24, s24, s27
    s_and_b32 s27, s22, 2
    s_lshl_b32 s27, s27, 3
    s_add_u32 s24, s24, s27
    s_and_b32 s27, s22, 1
    s_lshl_b32 s27, s27, 1
    s_add_u32 s24, s24, s27
    v_lshl_add_u32 v6, v2, 11, v6
    v_add_u32 v16, {WS_W1}, v16
    s_branch K1_WLD
    K1_M1:
    s_mov_b32 s28, s18
    s_mov_b32 s29, s19
    s_mov_b32 s30, 65536
    v_lshlrev_b32 v6, 1, v3
    s_cmp_ge_u32 s37, 64
    s_cbranch_scc1 K1_M2
    v_lshl_add_u32 v6, v2, 11, v6
    s_lshl_b32 s27, s22, 12
    s_lshl_b32 s36, s23, 6
    s_add_u32 s27, s27, s36
    s_add_u32 s27, s27, {QROWS * 256}
    v_lshl_add_u32 v16, v3, 8, s27
    v_lshl_add_u32 v16, v2, 4, v16
    s_branch K1_M3
    K1_M2:
    s_lshl_b32 s24, s23, 9
    s_add_u32 s24, s24, 32768
    s_movk_i32 s25, 2048
    s_movk_i32 s26, 16384
    v_lshl_add_u32 v6, v2, 12, v6
    v_add_u32 v16, {WS_WB}, v16
    K1_M3:
    s_lshl_b32 s27, s22, 5
    s_add_u32 s24, s24, s27
    K1_WLD:
    s_add_u32 s27, s25, s26
    s_add_u32 s25, s25, s24
    s_add_u32 s26, s26, s24
    s_add_u32 s27, s27, s24
    """)
    for j in range(8):
        a(f"buffer_load_ushort v{8 + j}, v6, s[28:31], s{24 + j // 2} offen offset:{256 * (j & 1)}")
    a(f"""
    s_waitcnt vmcnt(8)
    s_barrier
    s_waitcnt vmcnt(0)
    v_lshl_or_b32 v4, v9, 16, v8
    v_lshl_or_b32 v5, v11, 16, v10
    v_lshl_or_b32 v6, v13, 16, v12
    v_lshl_or_b32 v7, v15, 16, v14
    global_store_dwordx4 v16, v[4:7], s[20:21] sc1
    s_branch K1_AEND
    K1_SM:
    s_cmp_ge_u32 s37, 99
    s_cbranch_scc1 K1_CONST
    v_and_b32 v8, 2, v2
    v_lshl_or_b32 v6, v8, 3, v6
    v_and_b32 v8, 1, v2
    v_lshl_or_b32 v6, v8, 1, v6
    s_lshl_b32 s24, s37, 8
    s_add_u32 s25, s24, {65536 - 96 * 256}
    s_add_u32 s26, s14, s25
    s_addc_u32 s27, s15, 0
    s_cmp_eq_u32 s37, 98
    s_cselect_b32 s26, s16, s26
    s_cselect_b32 s27, s17, s27
    global_load_ushort v10, v6, s[26:27]
    global_load_ushort v11, v6, s[26:27] offset:128
    s_waitcnt vmcnt(2)
    s_barrier
    s_waitcnt vmcnt(0)
    v_lshlrev_b32 v10, 16, v10
    v_lshlrev_b32 v11, 16, v11
    s_cbranch_scc1 K1_WX
    s_cmp_eq_u32 s37, 96
    s_cselect_b32 s25, 1.0, {f32(-LOG2E)}
    s_cselect_b32 s26, {f32(32.0)}, {f32(15.0)}
    v_mul_f32 v10, s25, v10
    v_mul_f32 v11, s25, v11
    v_and_b32 v12, 0x7fffffff, v10
    v_and_b32 v13, 0x7fffffff, v11
    v_max_u32 v12, v12, v13
    v_mul_i32_i24 v8, -101, v8
    v_ldexp_f32 v10, v10, v8
    v_ldexp_f32 v11, v11, v8
    v_cvt_pk_bf16_f32 v10, v10, v11
    s_add_u32 s24, s24, {WS_SMALL + 1024 - 96 * 256}
    v_lshl_add_u32 v4, v1, 1, s24
    global_store_short v4, v10, s[20:21] sc1
    global_store_short_d16_hi v4, v10, s[20:21] offset:128 sc1
    """.replace(f"s_cselect_b32 s26, {f32(32.0)}, {f32(15.0)}", f"s_mov_b32 s26, {f32(15.0)}\ns_cmov_b32 s26, {f32(32.0)}"))
    scan64(a, 12, "v_max_u32")
    a(f"""
    s_lshl_b32 s24, s37, 2
    s_add_u32 s24, s24, {WS_THR - 96 * 4}
    v_rcp_f32 v12, v12
    v_mov_b32 v4, s24
    v_mul_f32 v12, s26, v12
    s_mov_b32 exec_lo, 0
    s_brev_b32 exec_hi, 1
    global_store_dword v4, v12, s[20:21] sc1
    s_branch K1_AEND
    K1_WX:
    v_mul_f32 v10, {f32(-LN2 * (1 + DELTA))}, v10
    v_mul_f32 v11, {f32(-LN2 * (1 + DELTA))}, v11
    v_lshlrev_b32 v4, 5, v3
    v_lshl_add_u32 v4, v2, 2, v4
    v_add_u32 v4, {WS_SMALL + 1536}, v4
    global_store_dword v4, v10, s[20:21] sc1
    global_store_dword v4, v11, s[20:21] offset:16 sc1
    s_branch K1_AEND
    K1_CONST:
    s_cmp_lg_u32 s37, 99
    s_cbranch_scc1 K1_IDLE
    v_cmp_eq_u32 vcc, 32, v1
    v_cmp_eq_u32 s[24:25], 33, v1
    v_mov_b32 v12, 0x3f80
    v_lshlrev_b32 v4, 4, v1
    v_add_u32 v4, {WS_SMALL}, v4
    v_cndmask_b32 v8, 0, v12, vcc
    v_cndmask_b32 v9, 0, v12, s[24:25]
    v_lshlrev_b32 v10, 16, v8
    v_lshlrev_b32 v11, 16, v9
    s_waitcnt vmcnt(0)
    s_barrier
    global_store_dwordx4 v4, v[8:11], s[20:21] sc1
    v_lshlrev_b32 v4, 3, v1
    v_add_u32 v4, {WS_SMALL + 2048}, v4
    v_lshlrev_b32 v12, 1, v1
    v_add_u32 v12, {QROWS}, v12
    v_add_u32 v13, 1, v12
    global_store_dwordx2 v4, v[12:13], s[20:21] sc1
    K1_AEND:
    """)
    stamp_out(a, cfg, 0, 20)
    a("K1_END:\ns_endpgm")
    t = a.text()
    return t if cfg.get("diag") else t.replace("s_branch K1_AEND", "s_endpgm")
```

```python
from common import *


def warm(cfg, k):
    w = cfg.get("warm")
    if not w:
        return ""
    body = f"""v_and_b32 v60, 63, v0
    v_mul_u32_u24 v60, {w * 1024}, v60
    v_add_u32 v60, {WS_REC if k == 0 else 0}, v60
    s_mov_b64 exec, {(1 << ((0x500000 if k == 0 else 0x340000) // 1024 // w + 1)) - 1 if w >= 256 else -1}
    global_load_dword v60, v60, s[20:21]
    s_mov_b64 exec, -1"""
    if k and cfg.get("pace"):
        n, lanes = divmod(cfg["pace"], 100)
        t = f"K1_WARM:\ns_lshl_b32 s24, s22, 8\nv_lshl_add_u32 v60, v1, 6, s24\ns_mov_b64 exec, {(1 << lanes) - 1 if lanes < 64 else -1}\n"
        for i in range(n):
            t += f"global_store_dword v60, v1, s[20:21] sc1\nv_add_u32 v60, {64 * lanes}, v60\ns_waitcnt vmcnt(0)\n"
        return t + "s_barrier\ns_branch K1_AEND"
    if k:
        return f"K1_WARM:\n{body}\ns_waitcnt vmcnt(1)\ns_barrier\ns_branch K1_AEND"
    return f"s_cmp_lg_u32 s3, 15\ns_cbranch_scc1 K1_NW\n{body}\nK1_NW:"


def gen_k1(cfg):
    a = Asm()
    CNT = 40960
    a(f"""
    s_load_dwordx16 s[4:19], s[0:1], 0
    s_load_dwordx2 s[20:21], s[0:1], 80
    v_lshrrev_b32 v1, 6, v0
    s_cmp_ge_u32 s2, 256
    s_cbranch_scc1 K1_END
    v_readfirstlane_b32 s3, v1
    s_cmp_ge_u32 s2, 125
    s_cbranch_scc1 K1_Q
    """)
    a(f"""
    s_mul_i32 s22, s2, 12800
    v_lshlrev_b32 v28, 4, v0
    v_add_u32 v2, s22, v28
    v_lshrrev_b32 v3, 1, v2
    v_cmp_gt_u32 vcc, 800, v0
    s_cmp_lt_u32 s3, 8
    s_cselect_b32 s23, 0xbfbfbfbf, 0
    s_cselect_b32 s26, 64, 0
    s_cselect_b32 s27, 0, {CNT - 8192}
    v_and_b32 v14, 0x3fe, v0
    v_mul_u32_u24 v14, s26, v14
    v_add3_u32 v14, v14, v28, s27
    v_mov_b32 v16, s23
    v_mov_b32 v17, s23
    v_mov_b32 v18, s23
    v_mov_b32 v19, s23
    s_mov_b64 s[24:25], vcc ; @set:idle=x
    s_mov_b64 exec, vcc
    s_waitcnt lgkmcnt(0)
    s_cbranch_execz K1_PL ; @if:idle=1
    global_load_dwordx4 v[4:7], v2, s[12:13]
    global_load_dwordx4 v[8:11], v2, s[10:11]
    global_load_dwordx2 v[12:13], v3, s[8:9]
    K1_PL:
    s_mov_b64 exec, -1
    {warm(cfg, 0)}
    ds_write_b128 v14, v[16:19]
    """)
    stamp(a, cfg, 0, 0, True)
    stamp(a, cfg, 0, 2)
    GA, LA, CA = 40, 44, 48
    a(f"""
    s_lshl_b32 s22, s2, 7
    s_add_u32 s22, s22, {WS_REC}
    s_add_u32 s20, s20, s22
    s_addc_u32 s21, s21, 0
    s_movk_i32 s26, {RST - 128}
    v_lshrrev_b32 v21, 3, v0
    v_mad_u32_u24 v{GA}, v21, s26, v28
    v_add_u32 v{GA + 1}, {128 * RST}, v{GA}
    v_lshl_add_u32 v{LA}, v21, 5, v28
    v_lshlrev_b32 v{CA}, 2, v21
    """)
    pre = cfg.get("pre", 0)
    np_, nq = (2 if pre & 3 else 0), (4 if pre & 12 else 0)
    if pre & 2:
        a("s_mov_b32 exec_lo, 0x01010101\ns_mov_b32 exec_hi, 0x01010101")
    for i in range(np_):
        a(f"global_store_dwordx4 v{GA + i}, v[16:19], s[20:21] sc1")
    a("s_mov_b64 exec, -1")
    a(f"""
    s_mov_b32 s26, 342393
    s_movk_i32 s27, 12544
    s_mov_b32 s28, 0xffff0000
    v_mov_b32 v29, 1
    s_waitcnt lgkmcnt(0)
    s_barrier
    s_cmp_ge_u32 s3, 13
    s_cbranch_scc1 K1_PB ; @if:idle=1
    s_mov_b64 exec, s[24:25]
    s_waitcnt vmcnt({2 + np_})
    """)
    stamp(a, cfg, 0, 3)
    for j in range(4):
        a(f"""
        v_mul_u32_u24 v{4 + j}, s26, v{4 + j}
        v_lshlrev_b32_sdwa v{14 + j}, 2, v{4 + j} {SD} src1_sel:BYTE_3
        ds_add_rtn_u32 v{18 + j}, v{14 + j}, v29 offset:{CNT}
        """)
    for j in range(4):
        a(f"""
        v_mul_hi_u32_u24 v{4 + j}, s27, v{4 + j}
        v_mul_u32_u24 v{14 + j}, 40, v{14 + j}
        """)
    a(f"s_waitcnt vmcnt({np_})")
    for j in range(4):
        if j & 1:
            a(f"v_and_or_b32 v{8 + j}, v{12 + j // 2}, s28, v{8 + j}")
        else:
            a(f"v_lshl_or_b32 v{8 + j}, v{12 + j // 2}, 16, v{8 + j}")
    for j in range(4):
        a(f"""
        s_waitcnt lgkmcnt({3 + j})
        v_min_u32 v{18 + j}, 31, v{18 + j}
        v_add_u32 v22, v{14 + j}, v{18 + j}
        v_lshl_add_u32 v23, v{18 + j}, 2, v{14 + j}
        ds_write_b8 v22, v{4 + j}
        ds_write_b32 v23, v{8 + j} offset:32
        """)
    a(f"""
    s_mov_b64 exec, -1
    K1_PB:
    s_waitcnt lgkmcnt(0)
    s_barrier
    """)
    stamp(a, cfg, 0, 4)
    a(f"""
    ds_read_b32 v{CA + 1}, v{CA} offset:{CNT + 512}
    ds_read_b32 v{CA}, v{CA} offset:{CNT}
    ds_read_b128 v[4:7], v{LA}
    ds_read_b128 v[8:11], v{LA} offset:{128 * 160}
    s_waitcnt lgkmcnt(2)
    v_max_u32 v20, v{CA}, v{CA + 1}
    v_cmp_lt_u32 vcc, 24, v20
    s_cbranch_vccnz K1_OVF
    K1_ST:
    s_waitcnt lgkmcnt(1)
    global_store_dwordx4 v{GA}, v[4:7], s[20:21] {cfg.get('pf', 'sc1')}
    s_waitcnt lgkmcnt(0)
    global_store_dwordx4 v{GA + 1}, v[8:11], s[20:21] {cfg.get('pf', 'sc1')}
    """)
    if cfg.get("diag"):
        a("s_sub_u32 s20, s20, s22\ns_subb_u32 s21, s21, 0")
    stamp(a, cfg, 0, 5)
    stamp_out(a, cfg, 0, 20)
    a(f"""
    s_endpgm
    K1_OVF:
    ds_read_b128 v[12:15], v{LA} offset:128
    ds_read_b128 v[16:19], v{LA} offset:{128 * 160 + 128}
    s_mul_i32 s26, s2, -96
    s_add_u32 s26, s26, 16000
    s_mov_b32 s30, 0x03030303
    s_mov_b32 s31, 0x03030303
    v_add_u32 v20, s26, v{GA}
    v_add_u32 v21, s26, v{GA + 1}
    s_waitcnt lgkmcnt(0)
    """)
    for i in range(2):
        a(f"""
        v_cmp_lt_u32 vcc, 24, v{CA + i}
        s_and_b64 exec, vcc, s[30:31]
        s_cbranch_execz K1_OV{i}
        global_store_dwordx4 v{20 + i}, {vr(12 + 4 * i, 4)}, s[20:21] sc1
        v_cmpx_lt_u32 vcc, 32, v{CA + i}
        """)
        for k in range(4):
            a(f"v_mov_b32 v{4 + 4 * i + k}, -1")
        a(f"K1_OV{i}:\ns_mov_b64 exec, -1")
    a("s_branch K1_ST")

    WL, HL = 0, 32768
    a(f"""
    K1_Q:
    s_setreg_imm32_b32 hwreg(HW_REG_MODE, 4, 2), 3
    v_and_b32 v1, 63, v0
    s_sub_u32 s37, s2, 125
    s_mul_i32 s22, s37, 96
    v_lshrrev_b32 v2, 4, v1
    v_and_b32 v3, 15, v1
    s_and_b32 s23, s3, 1
    s_lshl_b32 s24, s23, 2
    v_or_b32 v4, s24, v2
    v_lshlrev_b32 v4, 1, v4
    v_xor_b32 v4, v4, v3
    v_lshlrev_b32 v4, 4, v4
    v_lshl_add_u32 v4, v2, 8, v4
    s_lshl_b32 s24, s3, 11
    s_add_u32 s25, s24, 32768
    s_mov_b32 m0, s24
    v_lshrrev_b32 v5, 2, v1
    v_lshrrev_b32 v6, 5, v1
    v_lshlrev_b32 v6, 1, v6
    v_and_b32 v7, 3, v1
    v_xor_b32 v6, v6, v7
    v_lshlrev_b32 v6, 4, v6
    v_lshl_add_u32 v5, v5, 8, v6
    s_waitcnt lgkmcnt(0)
    """)
    srd(a, 28, 14, 258 * 256)
    w2 = """
    buffer_load_dwordx4 v4, s[28:31], s25 offen lds
    buffer_load_dwordx4 v4, s[28:31], s25 offen offset:1024 lds
    """
    hf = cfg.get("hfirst")
    if not hf:
        a(w2)
    a(f"""
    s_cmp_ge_u32 s3, 12
    s_cbranch_scc1 K1_AUX
    """)
    srd(a, 32, 4, N * 256)
    a(f"""
    s_lshr_b32 s26, s3, 1
    s_lshl_b32 s26, s26, 4
    s_add_u32 s26, s26, s22
    s_lshl_b32 s26, s26, 8
    s_lshl_b32 s27, s23, 7
    s_add_u32 s26, s26, s27
    s_add_u32 s27, s24, {HL}
    s_mov_b32 m0, s27
    s_add_u32 s36, s26, 64
    buffer_load_dwordx4 v5, s[32:35], s26 offen lds
    s_add_u32 s27, s27, 1024
    s_mov_b32 m0, s27
    s_nop 0
    buffer_load_dwordx4 v5, s[32:35], s36 offen lds
    """)
    if hf:
        a("s_mov_b32 m0, s24\ns_nop 0" + w2)
    stamp(a, cfg, 0, 0, True)
    stamp(a, cfg, 0, 2)
    a(f"""
    v_lshrrev_b32 v6, 3, v3
    v_lshlrev_b32 v6, 1, v6
    v_xor_b32 v6, v6, v2
    v_lshlrev_b32 v6, 4, v6
    v_lshl_add_u32 v6, v3, 6, v6
    s_lshr_b32 s27, s3, 1
    s_lshl_b32 s27, s27, 12
    v_add_u32 v6, s27, v6
    v_bfe_u32 v8, v1, 2, 2
    v_and_b32 v9, 1, v2
    v_xor_b32 v9, s23, v9
    v_lshl_or_b32 v9, v9, 2, v8
    v_lshlrev_b32 v9, 5, v9
    v_lshl_or_b32 v9, v7, 3, v9
    v_lshl_add_u32 v8, v2, 3, v8
    v_lshl_add_u32 v8, v8, 8, v9
    v_xor_b32 v9, 32, v8
    v_xor_b32 v10, 64, v8
    v_xor_b32 v11, 0x60, v8
    v_lshlrev_b32 v12, 3, v3
    v_lshl_add_u32 v12, v2, 10, v12
    v_add_u32 v12, s26, v12
    """)
    ka, kb = divmod(cfg.get("pq", 0), 100)
    nq = 1 if ka else 0
    if kb:
        a(f"""
        v_lshrrev_b32 v15, 1, v1
        v_and_b32 v14, 1, v1
        v_lshlrev_b32 v14, 6, v14
        v_lshl_add_u32 v15, v15, 8, v14
        v_add_u32 v15, s26, v15
        """)
    if ka:
        a(f"s_mov_b32 exec_hi, 0\ns_mov_b32 exec_lo, {(1 << ka) - 1}\nglobal_store_dword v15, v1, s[20:21] {cfg.get('qf', 'sc1')}")
    a(f"""
    s_mov_b64 exec, -1
    v_and_b32 v14, 1, v1
    v_mul_u32_u24 v14, 101, v14
    v_lshlrev_b32 v14, 23, v14
    v_sub_u32 v14, {f32(-LOG2E)}, v14
    s_lshl_b32 s24, s37, 7
    s_add_u32 s24, s24, s3
    s_add_u32 s24, s24, {WS_FLG}
    v_mov_b32 v13, s24
    """)
    if cfg.get("diag"):
        a(f"s_waitcnt vmcnt({nq + 2})")
        stamp(a, cfg, 0, 5)
    a(f"s_waitcnt vmcnt({nq})")
    stamp(a, cfg, 0, 6)
    a("s_barrier")
    stamp(a, cfg, 0, 3)
    AF, BF, AC = 16, 32, 96
    if kb > ka:
        a(f"s_mov_b32 exec_hi, 0\ns_mov_b32 exec_lo, {(1 << kb) - (1 << ka)}\nglobal_store_dword v15, v1, s[20:21] {cfg.get('qf', 'sc1')}\ns_mov_b64 exec, -1")
    if cfg.get("qprio"):
        a("s_cmp_ge_u32 s3, 4\ns_cbranch_scc1 K1_QP\ns_setprio 2\nK1_QP:")
    for ks in range(4):
        a(f"ds_read_b128 v[{AF + 4 * ks}:{AF + 4 * ks + 3}], v6 offset:{HL + 1024 * ks}")
        for tt in range(4):
            for i in range(2):
                d = BF + 16 * ks + 4 * tt + 2 * i
                a(f"ds_read_b64_tr_b16 v[{d}:{d + 1}], v{8 + tt} offset:{WL + 8192 * ks + 1024 * i}")
        if ks >= 1:
            k = ks - 1
            a("s_waitcnt lgkmcnt(9)")
            for tt in range(4):
                c = "0" if k == 0 else vr(AC + 4 * tt, 4)
                a(f"v_mfma_f32_16x16x32_bf16 {vr(AC + 4 * tt, 4)}, {vr(AF + 4 * k, 4)}, {vr(BF + 16 * k + 4 * tt, 4)}, {c}")
    for tt in range(4):
        a(f"s_waitcnt lgkmcnt({6 - 2 * tt})")
        a(f"v_mfma_f32_16x16x32_bf16 {vr(AC + 4 * tt, 4)}, {vr(AF + 12, 4)}, {vr(BF + 48 + 4 * tt, 4)}, {vr(AC + 4 * tt, 4)}")
    a("s_nop 1")
    for tt in range(4):
        for k in (0, 2):
            a(f"v_pk_mul_f32 {vr(BF + 4 * tt + k, 2)}, {vr(AC + 4 * tt + k, 2)}, v[14:15] op_sel_hi:[1,0]")
    for r in range(4):
        a(f"""
        v_cvt_pk_bf16_f32 v{16 + 2 * r}, v{BF + r}, v{BF + 4 + r}
        v_cvt_pk_bf16_f32 v{17 + 2 * r}, v{BF + 8 + r}, v{BF + 12 + r}
        global_store_dwordx2 v12, v[{16 + 2 * r}:{17 + 2 * r}], s[20:21] offset:{256 * r} {cfg.get('qf', 'sc1')}
        """)
    a(f"v_pk_mul_f32 v[4:5], {vr(AC, 2)}, {vr(AC, 2)}")
    for k in range(1, 8):
        a(f"v_pk_fma_f32 v[4:5], {vr(AC + 2 * k, 2)}, {vr(AC + 2 * k, 2)}, v[4:5]")
    a(f"""
    v_add_f32 v4, v4, v5
    v_cmp_ngt_f32 vcc, {f32(64 * LN2 * LN2)}, v4
    s_bcnt1_i32_b64 s24, vcc
    v_mov_b32 v4, s24
    s_mov_b64 exec, 1
    {'' if cfg.get('noflag') else 'global_store_byte v13, v4, s[20:21] sc1'}
    """)
    stamp(a, cfg, 0, 4)
    stamp_out(a, cfg, 0, 20)
    a("s_endpgm")

    a(f"""
    K1_AUX:
    {w2 if hf else ''}
    s_cmp_eq_u32 s3, 12
    s_cbranch_scc1 K1_WF
    s_cmp_eq_u32 s3, 15
    s_cbranch_scc1 {'K1_WARM' if cfg.get('warm') else 'K1_IDLE'}
    s_mul_i32 s24, s3, 48
    s_add_u32 s24, s24, s22
    s_sub_u32 s24, s24, {13 * 48}
    s_sub_u32 s25, {N}, s24
    s_min_i32 s25, s25, 48
    v_add_u32 v4, s24, v1
    v_cmp_gt_i32 vcc, s25, v1
    v_mul_u32_u24 v5, 6, v4
    v_and_b32 v6, -4, v5
    v_lshlrev_b32 v5, 3, v5
    v_and_b32 v5, 16, v5
    v_lshlrev_b32 v7, 1, v4
    v_add_u32 v7, {WS_POS + 50000}, v7
    v_lshlrev_b32 v4, 2, v4
    v_add_u32 v4, {WS_POS}, v4
    s_cbranch_vccz K1_IDLE
    s_mov_b64 exec, vcc
    global_load_dwordx2 v[8:9], v6, s[6:7]
    s_waitcnt vmcnt(1)
    s_barrier
    s_waitcnt vmcnt(0)
    v_lshrrev_b64 v[8:9], v5, v[8:9]
    {'' if cfg.get('nopos') else 'global_store_dword v4, v8, s[20:21] sc1'}
    {'' if cfg.get('nopos') else 'global_store_short v7, v9, s[20:21] sc1'}
    s_branch K1_AEND
    {warm(cfg, 1)}
    K1_IDLE:
    s_waitcnt vmcnt(0)
    s_barrier
    s_branch K1_AEND
    K1_WF:
    v_and_b32 v6, 12, v3
    v_lshl_or_b32 v6, v7, 5, v6
    s_cmp_ge_u32 s37, 96
    s_cbranch_scc1 K1_SM
    s_bfe_u32 s22, s37, 0x30002
    s_and_b32 s23, s37, 3
    s_and_b32 s24, s37, 31
    s_lshl_b32 s24, s24, 10
    v_lshl_add_u32 v16, v1, 4, s24
    s_movk_i32 s25, 512
    s_movk_i32 s26, 1024
    s_lshl_b32 s24, s23, 13
    s_cmp_ge_u32 s37, 32
    s_cbranch_scc1 K1_M1
    s_lshr_b32 s27, s22, 2
    s_lshl_b32 s27, s27, 7
    s_add_u32 s24, s24, s27
    s_and_b32 s27, s22, 2
    s_lshl_b32 s27, s27, 3
    s_add_u32 s24, s24, s27
    s_and_b32 s27, s22, 1
    s_lshl_b32 s27, s27, 1
    s_add_u32 s24, s24, s27
    v_lshl_add_u32 v6, v2, 11, v6
    v_add_u32 v16, {WS_W1}, v16
    s_branch K1_WLD
    K1_M1:
    s_mov_b32 s28, s18
    s_mov_b32 s29, s19
    s_mov_b32 s30, 65536
    v_lshlrev_b32 v6, 1, v3
    s_cmp_ge_u32 s37, 64
    s_cbranch_scc1 K1_M2
    v_lshl_add_u32 v6, v2, 11, v6
    s_lshl_b32 s27, s22, 12
    s_lshl_b32 s36, s23, 6
    s_add_u32 s27, s27, s36
    s_add_u32 s27, s27, {QROWS * 256}
    v_lshl_add_u32 v16, v3, 8, s27
    v_lshl_add_u32 v16, v2, 4, v16
    s_branch K1_M3
    K1_M2:
    s_lshl_b32 s24, s23, 9
    s_add_u32 s24, s24, 32768
    s_movk_i32 s25, 2048
    s_movk_i32 s26, 16384
    v_lshl_add_u32 v6, v2, 12, v6
    v_add_u32 v16, {WS_WB}, v16
    K1_M3:
    s_lshl_b32 s27, s22, 5
    s_add_u32 s24, s24, s27
    K1_WLD:
    s_add_u32 s27, s25, s26
    s_add_u32 s25, s25, s24
    s_add_u32 s26, s26, s24
    s_add_u32 s27, s27, s24
    """)
    for j in range(8):
        a(f"buffer_load_ushort v{8 + j}, v6, s[28:31], s{24 + j // 2} offen offset:{256 * (j & 1)}")
    a(f"""
    s_waitcnt vmcnt(8)
    s_barrier
    s_waitcnt vmcnt(0)
    v_lshl_or_b32 v4, v9, 16, v8
    v_lshl_or_b32 v5, v11, 16, v10
    v_lshl_or_b32 v6, v13, 16, v12
    v_lshl_or_b32 v7, v15, 16, v14
    global_store_dwordx4 v16, v[4:7], s[20:21] sc1
    s_branch K1_AEND
    K1_SM:
    s_cmp_ge_u32 s37, 99
    s_cbranch_scc1 K1_CONST
    v_and_b32 v8, 2, v2
    v_lshl_or_b32 v6, v8, 3, v6
    v_and_b32 v8, 1, v2
    v_lshl_or_b32 v6, v8, 1, v6
    s_lshl_b32 s24, s37, 8
    s_add_u32 s25, s24, {65536 - 96 * 256}
    s_add_u32 s26, s14, s25
    s_addc_u32 s27, s15, 0
    s_cmp_eq_u32 s37, 98
    s_cselect_b32 s26, s16, s26
    s_cselect_b32 s27, s17, s27
    global_load_ushort v10, v6, s[26:27]
    global_load_ushort v11, v6, s[26:27] offset:128
    s_waitcnt vmcnt(2)
    s_barrier
    s_waitcnt vmcnt(0)
    v_lshlrev_b32 v10, 16, v10
    v_lshlrev_b32 v11, 16, v11
    s_cbranch_scc1 K1_WX
    s_cmp_eq_u32 s37, 96
    s_cselect_b32 s25, 1.0, {f32(-LOG2E)}
    s_cselect_b32 s26, {f32(32.0)}, {f32(15.0)}
    v_mul_f32 v10, s25, v10
    v_mul_f32 v11, s25, v11
    v_and_b32 v12, 0x7fffffff, v10
    v_and_b32 v13, 0x7fffffff, v11
    v_max_u32 v12, v12, v13
    v_mul_i32_i24 v8, -101, v8
    v_ldexp_f32 v10, v10, v8
    v_ldexp_f32 v11, v11, v8
    v_cvt_pk_bf16_f32 v10, v10, v11
    s_add_u32 s24, s24, {WS_SMALL + 1024 - 96 * 256}
    v_lshl_add_u32 v4, v1, 1, s24
    global_store_short v4, v10, s[20:21] sc1
    global_store_short_d16_hi v4, v10, s[20:21] offset:128 sc1
    """.replace(f"s_cselect_b32 s26, {f32(32.0)}, {f32(15.0)}", f"s_mov_b32 s26, {f32(15.0)}\ns_cmov_b32 s26, {f32(32.0)}"))
    scan64(a, 12, "v_max_u32")
    a(f"""
    s_lshl_b32 s24, s37, 2
    s_add_u32 s24, s24, {WS_THR - 96 * 4}
    v_rcp_f32 v12, v12
    v_mov_b32 v4, s24
    v_mul_f32 v12, s26, v12
    s_mov_b32 exec_lo, 0
    s_brev_b32 exec_hi, 1
    global_store_dword v4, v12, s[20:21] sc1
    s_branch K1_AEND
    K1_WX:
    v_mul_f32 v10, {f32(-LN2 * (1 + DELTA))}, v10
    v_mul_f32 v11, {f32(-LN2 * (1 + DELTA))}, v11
    v_lshlrev_b32 v4, 5, v3
    v_lshl_add_u32 v4, v2, 2, v4
    v_add_u32 v4, {WS_SMALL + 1536}, v4
    global_store_dword v4, v10, s[20:21] sc1
    global_store_dword v4, v11, s[20:21] offset:16 sc1
    s_branch K1_AEND
    K1_CONST:
    s_cmp_lg_u32 s37, 99
    s_cbranch_scc1 K1_IDLE
    v_cmp_eq_u32 vcc, 32, v1
    v_cmp_eq_u32 s[24:25], 33, v1
    v_mov_b32 v12, 0x3f80
    v_lshlrev_b32 v4, 4, v1
    v_add_u32 v4, {WS_SMALL}, v4
    v_cndmask_b32 v8, 0, v12, vcc
    v_cndmask_b32 v9, 0, v12, s[24:25]
    v_lshlrev_b32 v10, 16, v8
    v_lshlrev_b32 v11, 16, v9
    s_waitcnt vmcnt(0)
    s_barrier
    global_store_dwordx4 v4, v[8:11], s[20:21] sc1
    v_lshlrev_b32 v4, 3, v1
    v_add_u32 v4, {WS_SMALL + 2048}, v4
    v_lshlrev_b32 v12, 1, v1
    v_add_u32 v12, {QROWS}, v12
    v_add_u32 v13, 1, v12
    global_store_dwordx2 v4, v[12:13], s[20:21] sc1
    K1_AEND:
    """)
    stamp_out(a, cfg, 0, 20)
    a("K1_END:\ns_endpgm")
    t = a.text()
    return t if cfg.get("diag") else t.replace("s_branch K1_AEND", "s_endpgm")
```

```python
import os
import re
import struct

NAME = "standalone__cheap_equivariant_egnn__graph"
KN = NAME + "_kernel"

N, E = 12500, 400000
NB = 49
QROWS = 12576
WS_WT = (QROWS + 128) * 256
WS_END = WS_WT + 32768
WS_SYNC = WS_END
WS_REC = 0x400000
RST = 20096
WS_DIAG = 0x900000
OOB = 0x30000
LOG2E = 1.4426950408889634
LN2 = 0.6931471805599453
DELTA = 0.7213475 / 256
TINY = 2.0 ** -101


def f32(x):
    return "0x%08x" % struct.unpack("<I", struct.pack("<f", x))[0]


def vr(a, n=1):
    return f"v{a}" if n == 1 else f"v[{a}:{a + n - 1}]"


def sr(a, n=1):
    return f"s{a}" if n == 1 else f"s[{a}:{a + n - 1}]"


class Asm:
    def __init__(self):
        self.L = []

    def __call__(self, text):
        for line in text.split("\n"):
            s = line.strip()
            if not s:
                continue
            self.L.append(s if re.fullmatch(r"[\w.$]+:", s) else "    " + s)

    def text(self):
        return "\n".join(self.L) + "\n"


def lines(text):
    return [x.strip() for x in text.split("\n") if x.strip()]


def srd(a, d, base, nrec):
    a(f"s_mov_b32 s{d}, s{base}\ns_mov_b32 s{d + 1}, s{base + 1}")
    a(f"s_mov_b32 s{d + 2}, {nrec}\ns_mov_b32 s{d + 3}, 0x20000")


def scan64(a, v, op="v_add_u32", fill=()):
    fill = list(fill)
    for c in ("row_shr:1 row_mask:0xf", "row_shr:2 row_mask:0xf", "row_shr:4 row_mask:0xf", "row_shr:8 row_mask:0xf",
              "row_bcast:15 row_mask:0xa", "row_bcast:31 row_mask:0xc"):
        if len(fill) >= 2:
            a(fill.pop(0))
            a(fill.pop(0))
        else:
            a("s_nop 1")
        a(f"{op}_dpp v{v}, v{v}, v{v} {c} bank_mask:0xf")
    for x in fill:
        a(x)


SD = "dst_sel:DWORD dst_unused:UNUSED_PAD src0_sel:DWORD"
STAMP_REGS = [90, 92, 8, 10, 12, 4, 14, 16, 18, 6, 94, 96, 98, 100, 22, 38]


def stamp(a, cfg, idx):
    if cfg.get("diag"):
        r = STAMP_REGS[idx]
        a(f"s_memrealtime s[{r}:{r + 1}]")


def stamp_out(a, cfg, ws):
    if not cfg.get("diag"):
        return
    regs = STAMP_REGS
    a(f"""
    s_waitcnt vmcnt(0)
    s_memrealtime s[{regs[1]}:{regs[1] + 1}]
    s_lshl_b32 s2, s2, 4
    s_add_u32 s2, s2, s3
    s_lshl_b32 s2, s2, 6
    s_add_u32 s2, s2, {WS_DIAG}
    s_waitcnt lgkmcnt(0)
    s_mov_b64 exec, 1
    v_mov_b32 v0, s2
    """)
    for i, r in enumerate(regs):
        a(f"v_mov_b32 v1, s{r}\nglobal_store_dword v0, v1, s[{ws}:{ws + 1}] offset:{4 * i}")
```

```python
from common import *


def echo_kernel(spec):
    i, lo, hi, nw, opw, opg = spec.split(",")
    k, mul = 0, 10
    i, lo, hi, nw = map(int, (i, lo, hi, nw))
    a = Asm()
    a(f"""
    s_cmp_lg_u32 s2, 0
    s_cbranch_scc1 KE_END
    s_load_dwordx2 s[4:5], s[0:1], 80
    s_memrealtime s[8:9]
    v_lshlrev_b32 v1, 10, v0
    s_waitcnt lgkmcnt(0)
    """)
    inv = {"last": "min", "first": "max"}
    for dst, (kk, ii, l, h, n, ow, og) in ((6, (0, 0, 0, 256, 12, "first", "first")), (7, (k, i, lo, hi, nw, opw, opg))):
        for j in range(4):
            a(f"v_add_u32 v2, {WS_DIAG + kk * 0x40000 + 65536 * j + 4 * ii}, v1")
            for w in range(n):
                a(f"global_load_dword v{16 + 16 * j + w}, v2, s[4:5] offset:{64 * w}")
        a("s_waitcnt vmcnt(0)")
        for j in range(4):
            for w in range(n):
                a(f"v_sub_u32 v{16 + 16 * j + w}, s8, v{16 + 16 * j + w}")
                if w:
                    a(f"v_{inv[ow]}_u32 v{16 + 16 * j}, v{16 + 16 * j}, v{16 + 16 * j + w}")
        a("s_nop 1")
        op = "s_add_u32" if og == "mean" else f"s_{inv[og]}_u32"
        sel = list(range(l, h)) if h > 0 else list(range(l, 256, -h))
        for n_, wg in enumerate(sel):
            if n_ == 0:
                a(f"v_readlane_b32 s{dst}, v{16 + 16 * (wg // 64)}, {wg % 64}")
            else:
                a(f"v_readlane_b32 s12, v{16 + 16 * (wg // 64)}, {wg % 64}\n{op} s{dst}, s{dst}, s12")
        for n_ in range(256 - len(sel)):
            a("v_readlane_b32 s12, v16, 0\ns_add_u32 s13, s13, s12")
        if og == "mean":
            a(f"s_mul_hi_u32 s{dst}, s{dst}, {(1 << 32) // len(sel)}")
    a(f"""
    s_sub_u32 s6, s6, s7
    s_mul_i32 s6, s6, {mul}
    s_min_u32 s6, s6, 30000
    s_memrealtime s[8:9]
    s_waitcnt lgkmcnt(0)
    KE_L:
    s_memrealtime s[10:11]
    s_waitcnt lgkmcnt(0)
    s_sub_u32 s10, s10, s8
    s_cmp_lt_u32 s10, s6
    s_cbranch_scc1 KE_L
    KE_END:
    s_endpgm
    """)
    return a.text()
```

```python
from common import *

CAP = 2016
CNT, LUT = 0, 256
MR, MST = 8448, 288
SEL = MR + 64 * MST
PAC = SEL + 49 * 32
MISC = PAC + 52 * 16
OH = MISC + 16
WD, WX, FAKE = OH + 1024, OH + 1536, OH + 2048
OWN = OH + 2560
LIST = QT = OWN + 53 * 16
CNTP = LIST + 16384
POSL = RING = OT = WS1 = 73984
PB = WS2 = WS1 + 32768
HT = 148736
PT = 163840 - 49 * 288
OST = QST = 272
PADN = 52
NSH = 8
SPIN = 1 << 18
assert LIST + (CAP + 48) * 16 <= LUT + 65536 and POSL + 75008 <= PT and PB + 40960 <= HT and HT + 13312 <= 163840

sWV = 3
sW, sH, sO, sR, sMK = 24, 28, 32, 36, 40
sB, sNB, sNV, sRARE, sQW, sSRC, sLO, sWID = 44, 45, 46, 47, 48, 49, 50, 51
sTOT, sTS, sWT, sWEND, sN0, sNW, sEW, sEV = 52, 53, 54, 55, 56, 57, 58, 59
sNF, sNL, sMODE, sNWN, sC000, s128, s256, s192, sLAST = 60, 61, 62, 63, 64, 65, 66, 68, 69
sM0, sG3 = 70, 74
sT, sQA = sO, sLAST
sA, sB2, sC, sD = 76, 77, 78, 79
sP0, sP1, sP2, sP3, sP4 = 80, 82, 84, 86, 88
vRing, vLc, vMul, vIncl, vVoff = 1, 2, 3, 4, 5
vBX, vBS, vIX, vIS, vDa, vEa = 6, 7, 8, 9, 10, 11
vXa, vSa, vD, vDE, vIdx = 12, 13, 14, 15, 16
ZE, ZL, T, L, R, S, A, B, AC, Y = 20, 28, 32, 36, 40, 42, 44, 60, 84, 120
vFa, vG0, vG1 = 116, 117, 118
vDL, vT, W = 17, 18, 20
g3 = sr(sG3, 2)

PAT = "M1 h E Y1 E M2 E Y2 E 0 X X X X m P P P R s R l P P P v D V"
DORD = "SqxdL"
QF = os.environ.get("QF", "")


def dma(kc):
    soff = ["0", "64", f"s{s128}", f"s{s192}"][kc]
    return [f"s_mov_b32 m0, s{sM0 + kc}",
            f"buffer_load_dwordx4 v{vVoff}, s[{sW}:{sW + 3}], {soff} offen {QF}lds ; @w:ring{kc}"]


def rdq(kc, d=None):
    d = A + 2 + 6 * (kc & 1) if d is None else d
    return f"ds_read_b128 {vr(d, 4)}, v{vRing} offset:{1024 * kc} ; @r:ring{kc}"


def Kmf(u, z):
    a0 = A + 6 * ((u // 2) % 2) + (4 if u & 1 else 0)
    b0 = B + 6 * (u // 2) + (2 if u & 1 else 0)
    return f"v_mfma_f32_16x16x32_bf16 {vr(z, 4)}, {vr(a0, 4)}, {vr(b0, 4)}, 0"


def Ymf(u, b):
    return f"v_smfmac_f32_16x16x32_bf16 {vr(AC + 4 * u, 4)}, {vr(S, 2)}, {vr(b, 4)}, v{vIdx}"


def zero4(d):
    return f"v_mfma_f32_16x16x16_bf16 {vr(d, 4)}, {vr(S, 2)}, {vr(S, 2)}, 0"


def mf32(d, x, y, first=False):
    return f"v_mfma_f32_16x16x32_bf16 {vr(d, 4)}, {vr(x, 4)}, {vr(y, 4)}, {'0' if first else vr(d, 4)}"


def loop_body(pat, dord, lut):
    seq = []
    I = lambda t, tag=None: seq.append(("i", t, tag))
    NEED = lambda tag: seq.append(("n", tag, None))
    pk1 = lambda r: f"v_pk_add_f32 {vr(r, 2)}, {vr(r, 2)}, 1.0 op_sel_hi:[1,0]"
    for j in range(4):
        z, zn = ZE + 4 * (j & 1), ZE + 4 * ((j + 1) & 1)
        e = [f"v_exp_f32 v{T + (k ^ 2)}, v{z + k}" for k in range(4)]
        p = [pk1(T + 2),
             f"v_pk_fma_f32 {vr(R, 2)}, {vr(T + 2, 2)}, {vr(T, 2)}, {vr(T + 2, 2)}",
             f"v_pk_fma_f32 {vr(T, 2)}, {vr(z, 2)}, {vr(T, 2)}, {vr(z, 2)}",
             f"v_pk_mul_f32 {vr(T + 2, 2)}, {vr(z + 2, 2)}, {vr(T + 2, 2)}",
             f"v_pk_mul_f32 {vr(z, 2)}, {vr(T, 2)}, {vr(R, 2)}",
             f"v_pk_mul_f32 {vr(z + 2, 2)}, {vr(T + 2, 2)}, {vr(R, 2)}"]
        r = [f"v_rcp_f32 v{R}, v{R}", f"v_rcp_f32 v{R + 1}, v{R + 1}"]
        ix = [f"v_lshlrev_b32_sdwa v{ZL + k}, 1, v{ZL + k} {SD} src1_sel:WORD_1" for k in range(4)]
        d = dma((j + 1) % 4)
        for tok in pat.split():
            if tok == "M1":
                if j < 2:
                    NEED(f"x{j + 1}")
                I(Kmf(2 * j + 1, ZL))
            elif tok == "M2":
                NEED(f"q{(j + 1) % 4}")
                if j == 3:
                    NEED("x0")
                I(Kmf((2 * j + 2) % 8, zn))
            elif tok == "Y1":
                if j == 1:
                    NEED("S")
                I(Ymf((2 * j - 2) % 8, zn))
            elif tok == "Y2":
                if lut:
                    NEED("L")
                I(Ymf((2 * j - 1) % 8, L))
            elif tok == "E":
                I(e.pop(0))
            elif tok == "P":
                I(p.pop(0))
            elif tok == "R":
                I(r.pop(0))
            elif tok == "X":
                I(ix.pop(0))
            elif tok in ("Fa", "Fb"):
                src, dst = (z, z) if tok == "Fa" else (ZL, L)
                if tok == "Fb":
                    for k in range(4):
                        I(f"v_mul_f32 v{ZL + k}, {f32(2.0 ** 101)}, v{ZL + k}")
                for k in range(4):
                    I(f"v_exp_f32 v{T + k}, v{src + k}")
                I(pk1(T))
                I(pk1(T + 2))
                for k in range(4):
                    I(f"v_rcp_f32 v{T + k}, v{T + k}")
                for k in (0, 2):
                    I(f"v_pk_mul_f32 {vr(dst + k, 2)}, {vr(T + k, 2)}, {vr(src + k, 2)}")
            elif tok == "m":
                if j == 0:
                    NEED("dE")
                    I(f"v_mad_u32_u16 v{vXa}, v{vDE}, v{vMul}, v{vBX} op_sel:[1,0,0,0]")
                elif j == 1:
                    I(f"v_mad_u32_u16 v{vSa}, v{vD}, s{sC000}, v{vBS} op_sel:[1,0,0,0]")
                elif j == 2:
                    I(f"v_lshl_add_u64 v[{vDa}:{vEa}], v[{vDa}:{vEa}], 0, s[{s256}:{s256 + 1}]")
                    I(f"v_lshl_add_u64 v[{vBX}:{vBS}], v[{vBX}:{vBS}], 0, v[{vIX}:{vIS}]")
                else:
                    NEED("dD")
                    I(f"v_mad_u32_u16 v{vVoff}, v{vD}, s{s256}, v{vLc}")
            elif tok == "s":
                if j == 2:
                    I(f"s_add_u32 s{sTS}, s{sTS}, 16")
                if j == 3:
                    I(f"s_cmp_lt_i32 s{sTS}, s{sEV}")
            elif tok == "l":
                I("s_setprio 0")
            elif tok == "h":
                I("s_setprio 1")
            elif tok == "0":
                I(d[0])
            elif tok == "v":
                I("s_waitcnt vmcnt(2)")
            elif tok == "V":
                I(d[1])
            elif tok == "D":
                for c in dord:
                    if c == "S" and j == 0:
                        I(f"ds_read_b64_tr_b16 {vr(S, 2)}, v{vSa}", "S")
                    if c == "q":
                        I(rdq((j + 2) % 4), f"q{(j + 2) % 4}")
                    if c == "x" and j:
                        I(f"ds_read_b64 {vr(A + 6 * (j - 1), 2)}, v{vXa}", f"x{j - 1}")
                    if c == "d" and j == 1:
                        I(f"ds_read_b32 v{vD}, v{vDa}", "dD")
                    if c == "d" and j == 3:
                        I(f"ds_read_b32 v{vDE}, v{vEa}", "dE")
                    if c == "L" and lut:
                        for k in range(4):
                            I(f"ds_read_u16_d16_hi v{L + k}, v{ZL + k} offset:{LUT}", "L")
            else:
                raise ValueError(tok)
    q, out = [], []
    for rep in range(2):
        out = []
        for k, t, tag in seq:
            if k == "i":
                out.append(t)
                if t.startswith("ds_"):
                    q.append(tag)
            elif t in q:
                n = q[::-1].index(t)
                out.append(f"s_waitcnt lgkmcnt({n})")
                q = q[len(q) - n:]
    return "\n".join(out)


def ptrs(a):
    a(f"""
    s_lshl_b32 s{sA}, s{sTS}, 4
    s_add_u32 s{sA}, s{sA}, {LIST}
    v_and_b32 v18, -4, v0
    v_and_b32 v19, 15, v0
    v_lshl_add_u32 v{vDa}, v18, 2, s{sA}
    v_lshl_add_u32 v{vEa}, v19, 4, s{sA}
    s_cmp_lt_u32 s{sTS}, s{sWT}
    s_cselect_b64 s[{sP0}:{sP0 + 1}], -1, 0
    s_add_u32 s{sB2}, s{sTS}, 16
    s_cmp_lt_u32 s{sB2}, s{sWT}
    s_cselect_b64 s[{sP1}:{sP1 + 1}], -1, 0
    v_add_u32 v19, 256, v{vDa}
    v_cndmask_b32 v18, v{vFa}, v{vDa}, s[{sP0}:{sP0 + 1}]
    v_cndmask_b32 v19, v{vFa}, v19, s[{sP1}:{sP1 + 1}]
    """)


def list_reads(a):
    a(f"""
    ds_read_b32 v{vSa}, v18
    ds_read_b32 v{vD}, v19
    ds_read_b32 v{vXa}, v{vEa}
    ds_read_b32 v{vDE}, v{vEa} offset:256
    """)


def window(a):
    a(f"""
    s_add_u32 s{sA}, s{sNW}, 3
    v_readlane_b32 s{sEW}, v{vIncl}, s{sA}
    s_sub_u32 s{sB2}, s{sWT}, 32
    s_cmp_ge_u32 s{sEW}, s{sWEND}
    s_cselect_b32 s{sEW}, 0x7fffffff, s{sEW}
    s_sub_u32 s{sA}, s{sEW}, 15
    s_min_i32 s{sEV}, s{sA}, s{sB2}
    """)


def zero_init(a, n2):
    a(f"""
    v_mov_b32 v24, 0
    v_mov_b32 v25, 0
    v_mov_b32 v26, 0
    v_mov_b32 v27, 0
    v_cmp_gt_u32 vcc, {n2}, v{vT}
    ds_write_b128 v19, v[24:27] offset:{MR}
    v_lshlrev_b32 v28, 2, v0
    ds_write_b32 v28, v24 offset:{CNT}
    s_mov_b64 exec, vcc
    ds_write_b128 v19, v[24:27] offset:{MR + 16384}
    s_mov_b64 exec, -1
    """)


def rec_addr(a):
    a(f"""
    s_movk_i32 s{sB2}, 96
    s_mov_b32 vcc_lo, 0xc0c0c0c0
    s_mov_b32 vcc_hi, 0xc0c0c0c0
    v_lshrrev_b32 v28, 3, v{vT}
    v_lshlrev_b32 v29, 2, v{vT}
    v_mad_u32_u24 v29, v28, s{sB2}, v29
    v_mul_i32_i24 v28, -96, v28
    v_add_u32 v28, {16000 - 128}, v28
    v_cndmask_b32 v28, 0, v28, vcc
    v_add_u32 v28, v28, v19
    v_cmp_gt_u32 vcc, 1000, v{vT}
    v_mov_b32 v{vDL}, 0xbfbfbfbf
    """)


def rec_load(a):
    a(f"""
    s_mov_b64 exec, vcc
    global_load_dword v{vDL}, v29, s[{sR}:{sR + 1}] sc1
    global_load_dwordx4 {vr(W, 4)}, v28, s[{sR}:{sR + 1}] offset:32 sc1
    s_mov_b64 exec, -1
    """)


def pos_dma(a, tag):
    srd(a, sT, 6, 75000)
    a(f"""
    s_cmp_ge_u32 s{sWV}, 10
    v_lshlrev_b32 v58, 4, v0
    s_cbranch_scc1 {tag}_E
    s_lshl_b32 s{sA}, s{sWV}, 13
    s_add_u32 m0, s{sA}, {POSL}
    s_cmp_eq_u32 s{sWV}, 9
    buffer_load_dwordx4 v58, s[{sT}:{sT + 3}], s{sA} offen lds
    s_cselect_b64 exec, 0xffff, -1
    buffer_load_dwordx4 v58, s[{sT}:{sT + 3}], s{sA} offen offset:1024 lds
    s_mov_b64 exec, -1
    s_cbranch_scc1 {tag}_E
    buffer_load_dwordx4 v58, s[{sT}:{sT + 3}], s{sA} offen offset:2048 lds
    buffer_load_dwordx4 v58, s[{sT}:{sT + 3}], s{sA} offen offset:3072 lds
    s_add_u32 m0, m0, 4096
    s_add_u32 s{sA}, s{sA}, 4096
    """)
    for i in range(4):
        a(f"buffer_load_dwordx4 v58, s[{sT}:{sT + 3}], s{sA} offen offset:{1024 * i} lds")
    a(f"{tag}_E:")


def poll(a, tag, va, base, first):
    ld = f"global_load_dword v{va + 1}, v{va}, s[{base}:{base + 1}] sc1"
    a(f"""
    s_mov_b32 s{sA}, {SPIN}
    {ld if first else ''}
    {tag}:
    s_waitcnt vmcnt(0)
    v_cmp_eq_u32 vcc, 0, v{va + 1}
    s_sub_u32 s{sA}, s{sA}, 1
    s_cbranch_vccz {tag}_E
    {ld}
    s_cbranch_scc0 {tag}
    s_waitcnt vmcnt(0)
    {tag}_E:
    """)


def big_test(a, acc, lab):
    for k in range(4):
        p = vr(acc + 2 * k, 2)
        a(f"v_pk_mul_f32 v[36:37], {p}, {p}" if k == 0 else f"v_pk_fma_f32 v[36:37], {p}, {p}, v[36:37]")
    a(f"""
    v_add_f32 v36, v36, v37
    v_cmp_ngt_f32 vcc, {f32(64 * LN2 * LN2)}, v36
    s_cbranch_vccnz {lab}
    {lab}B:
    """)


def scale_store(a, acc, tmp, va):
    for t in range(2):
        for k in (0, 2):
            a(f"v_pk_mul_f32 {vr(tmp + 4 * t + k, 2)}, {vr(acc + 4 * t + k, 2)}, s[{sP0}:{sP0 + 1}] op_sel_hi:[1,0]")
        a(f"""
        v_cvt_pk_bf16_f32 v{tmp + 4 * t}, v{tmp + 4 * t}, v{tmp + 4 * t + 1}
        v_cvt_pk_bf16_f32 v{tmp + 4 * t + 1}, v{tmp + 4 * t + 2}, v{tmp + 4 * t + 3}
        ds_write_b64 v{va + t}, {vr(tmp + 4 * t, 2)}
        """)


def silu4(a, y, h, t):
    a(f"""
    v_pk_mul_f32 {vr(y, 2)}, {vr(y, 2)}, s[{sP0}:{sP0 + 1}] op_sel_hi:[1,0]
    v_pk_mul_f32 {vr(y + 2, 2)}, {vr(y + 2, 2)}, s[{sP0}:{sP0 + 1}] op_sel_hi:[1,0]
    """)
    for k in range(4):
        a(f"v_exp_f32 v{t + k}, v{y + k}")
    for k in (0, 2):
        a(f"v_pk_add_f32 {vr(t + k, 2)}, {vr(t + k, 2)}, 1.0 op_sel_hi:[1,0]")
    for k in range(4):
        a(f"v_rcp_f32 v{t + k}, v{t + k}")
    for k in (0, 2):
        a(f"v_pk_mul_f32 {vr(y + k, 2)}, {vr(y + k, 2)}, s[{sP0}:{sP0 + 1}] op_sel:[0,1] op_sel_hi:[1,1]")
    for k in (0, 2):
        a(f"v_pk_fma_f32 {vr(y + k, 2)}, {vr(y + k, 2)}, {vr(t + k, 2)}, {vr(h + k, 2)}")
    a(f"v_cvt_pk_bf16_f32 v{y}, v{y}, v{y + 1}\nv_cvt_pk_bf16_f32 v{y + 1}, v{y + 2}, v{y + 3}")


def gen_kernel(cfg):
    a = Asm()
    st = lambda i: stamp(a, cfg, i)
    pr = lambda nm: f"s_memrealtime s[{STAMP_REGS[15]}:{STAMP_REGS[15] + 1}]" if cfg.get("diag") and cfg.get("probe", "scat") == nm else ""
    YA, YB = Y, Y + 4
    HA_, HB_, WF, TF, GC = AC, AC + 16, B, 20, 76
    vWa, vQa, vPa = 16, 116, 118
    GA, LA, CA, BK, RK1, WBR = 46, 48, 50, 34, 38, 52
    cpf = ""
    if cfg.get("cpf"):
        cpf = f"""
        s_cmp_lg_u32 s{sWV}, 15
        s_cbranch_scc1 K_CP
        s_getpc_b64 s[{sP0}:{sP0 + 1}]
        v_lshlrev_b32 v2, 7, v0
        v_add_u32 v3, 0x1000, v2
        global_load_dword v126, v2, s[{sP0}:{sP0 + 1}]
        s_mov_b32 exec_lo, 0
        global_load_dword v127, v3, s[{sP0}:{sP0 + 1}]
        s_mov_b32 exec_lo, -1
        K_CP:
        """
    a(f"""
    s_load_dwordx16 s[4:19], s[0:1], 0
    s_load_dwordx4 s[20:23], s[0:1], 64
    s_load_dwordx2 s[{sW}:{sW + 1}], s[0:1], 80
    v_lshrrev_b32 v1, 6, v0
    s_cmp_ge_u32 s2, 256
    s_cbranch_scc1 K_END
    v_readfirstlane_b32 s{sWV}, v1
    v_mov_b32 v{vT}, v0
    v_lshlrev_b32 v19, 4, v0
    v_and_b32 v0, 63, v0
    s_and_b32 s{sB}, s2, 7
    s_lshl_b32 s{sB}, s{sB}, 5
    s_lshr_b32 s{sD}, s2, 3
    s_add_u32 s{sB}, s{sB}, s{sD}
    s_mul_i32 s{sNB}, s{sB}, {NB}
    {cpf}
    s_cmp_ge_u32 s2, 125
    s_cbranch_scc1 K_LD ; @if:q=1
    s_mul_i32 s{sA}, s2, 12800
    v_add_u32 v2, s{sA}, v19
    v_lshrrev_b32 v3, 1, v2
    v_cmp_gt_u32 vcc, 800, v{vT}
    s_cmp_eq_u32 s{sWV}, 8
    s_mov_b32 s{sC}, {OOB}
    s_cmov_b32 s{sC}, {CNTP - 8192}
    s_cmp_lt_u32 s{sWV}, 8
    s_cselect_b32 s{sA}, 0xbfbfbfbf, 0
    s_cselect_b32 s{sB2}, 64, 0
    s_cmov_b32 s{sC}, {PB}
    v_and_b32 v14, 0x3fe, v{vT}
    v_mul_u32_u24 v14, s{sB2}, v14
    v_add3_u32 v14, v14, v19, s{sC}
    v_mov_b32 v20, s{sA}
    v_mov_b32 v21, s{sA}
    v_mov_b32 v22, s{sA}
    v_mov_b32 v23, s{sA}
    s_mov_b64 s[{sP4}:{sP4 + 1}], vcc
    s_mov_b64 exec, vcc
    s_waitcnt lgkmcnt(0)
    s_cbranch_execz K_PL ; @if:lo=0
    global_load_dwordx4 v[4:7], v2, s[12:13]
    global_load_dwordx4 v[8:11], v2, s[10:11]
    global_load_dwordx2 v[12:13], v3, s[8:9]
    K_PL:
    s_mov_b64 exec, -1
    ds_write_b128 v14, v[20:23]
    s_waitcnt lgkmcnt(0)
    s_barrier
    K_LD:
    s_sub_u32 s{sNV}, {N}, s{sNB}
    s_min_u32 s{sNV}, s{sNV}, {NB}
    s_lshl_b32 s{sC}, s{sNB}, 8
    s_lshl_b32 s{sH + 2}, s{sNV}, 8
    s_mov_b32 s{sH + 3}, 0x20000
    v_lshrrev_b32 v14, 4, v0
    v_and_b32 v15, 15, v0
    v_mov_b32 v45, 0
    s_waitcnt lgkmcnt(0)
    s_add_u32 s{sH}, s4, s{sC}
    s_addc_u32 s{sH + 1}, s5, 0
    s_cmp_lt_u32 s{sWV}, 13
    s_cbranch_scc1 K_CH ; @if:lo=1
    s_lshl_b32 s{sA}, s{sWV}, 14
    s_sub_u32 s{sB2}, s{sA}, {14 * 16384 - WS1}
    s_sub_u32 s{sA}, s{sA}, {12 * 16384}
    s_and_b32 s{sD}, s{sD}, 3
    s_lshl_b32 s{sD}, s{sD}, 12
    s_cmp_eq_u32 s{sWV}, 13
    s_cselect_b32 s{sT}, s{sH}, s14
    s_cselect_b32 s{sT + 1}, s{sH + 1}, s15
    s_cselect_b32 s{sT + 2}, s{sH + 2}, 0x10000
    s_mov_b32 s{sT + 3}, 0x20000
    s_cselect_b32 s{sP0}, 0, 1
    s_cselect_b32 s{sP0 + 1}, 64, 0
    s_cmov_b32 s{sA}, 0
    s_cmov_b32 s{sB2}, {HT}
    s_cmov_b32 s{sD}, 0
    v_lshlrev_b32 v20, s{sP0}, v14
    v_xor_b32 v20, v20, v15
    v_lshlrev_b32 v20, 4, v20
    v_lshl_add_u32 v20, v14, 8, v20
    v_xor_b32 v21, s{sP0 + 1}, v20
    v_xor_b32 v22, 0x80, v20
    v_xor_b32 v23, 0x80, v21
    """)
    for k in range(4):
        a(f"s_add_u32 m0, s{sB2}, s{sD}\ns_add_u32 s{sC}, s{sA}, s{sD}")
        if k == 3:
            a(f"s_cmp_eq_u32 s{sWV}, 13")
        for i in range(4):
            a(f"buffer_load_dwordx4 v{20 + i}, s[{sT}:{sT + 3}], s{sC} offen offset:{1024 * i} lds")
            if k == 3 and i == 0:
                a("s_cbranch_scc1 K_L13 ; @if:w13=1")
            if k < 3 and i == 0:
                a(f"s_add_u32 s{sD}, s{sD}, 4096\ns_and_b32 s{sD}, s{sD}, 0x3fff")
    a("K_CH:\ns_setreg_imm32_b32 hwreg(HW_REG_MODE, 4, 2), 3")
    st(0)
    zero_init(a, (MISC + 16 - MR - 16384) // 16)
    a(f"""
    v_lshlrev_b32 v24, 18, v{vT}
    v_or_b32 v25, 0x18000, v24
    v_or_b32 v26, 0x28000, v24
    v_or_b32 v27, 0x38000, v24
    v_or_b32 v24, 0x8000, v24
    s_mov_b32 s{sP0}, {f32(2.0 ** 101)}
    s_mov_b32 s{sP0 + 1}, {f32(1 / (1 + DELTA))}
    v_pk_mul_f32 v[26:27], v[26:27], s[{sP0}:{sP0 + 1}] op_sel_hi:[1,0]
    v_pk_mul_f32 v[24:25], v[24:25], s[{sP0}:{sP0 + 1}] op_sel_hi:[1,0]
    """)
    for k in range(4):
        a(f"v_exp_f32 v{28 + k}, v{24 + k}")
    for k in (0, 2):
        a(f"v_pk_mul_f32 {vr(24 + k, 2)}, {vr(24 + k, 2)}, s[{sP0}:{sP0 + 1}] op_sel:[0,1] op_sel_hi:[1,1]")
    for k in (0, 2):
        a(f"v_pk_add_f32 {vr(28 + k, 2)}, {vr(28 + k, 2)}, 1.0 op_sel_hi:[1,0]")
    for k in range(4):
        a(f"v_rcp_f32 v{28 + k}, v{28 + k}")
    a(f"v_lshlrev_b32 v32, 3, v{vT}\nv_add_u32 v33, 0x10000, v32")
    for k in (0, 2):
        a(f"v_pk_mul_f32 {vr(28 + k, 2)}, {vr(28 + k, 2)}, {vr(24 + k, 2)}")
    for k in (0, 2):
        a(f"v_pk_add_f32 {vr(24 + k, 2)}, {vr(28 + k, 2)}, {vr(24 + k, 2)} neg_lo:[0,1] neg_hi:[0,1]")
    a(f"""
    v_cvt_pk_bf16_f32 v28, v28, v29
    v_cvt_pk_bf16_f32 v29, v30, v31
    v_cvt_pk_bf16_f32 v24, v24, v25
    v_cvt_pk_bf16_f32 v25, v26, v27
    ds_write_b64 v32, v[28:29] offset:{LUT}
    ds_write_b64 v33, v[24:25] offset:{LUT}
    """)
    a(f"""
    s_mov_b32 s{sW + 2}, {WS_END}
    s_mov_b32 s{sW + 3}, 0x20000
    s_lshr_b32 s{sD}, s{sWV}, 3
    s_and_b32 s{sC}, s{sWV}, 7
    s_sub_u32 s{sA}, s{sD}, 1
    v_and_b32 v17, s{sA}, v15
    s_lshl_b32 s{sA}, s{sD}, 4
    s_add_u32 s{sA}, s{sA}, 16
    v_add_u32 v24, s{sA}, v15
    s_mul_i32 s{sA}, s{sD}, 48
    v_add_u32 v25, s{sA}, v17
    s_mov_b32 s{sA}, {HT}
    v_xor_b32 v26, v14, v15
    v_xor_b32 v27, v14, v17
    v_lshl_add_u32 v26, v26, 4, s{sA}
    v_lshl_add_u32 v27, v27, 4, s{sA}
    v_lshl_add_u32 v{HA_}, v24, 8, v26
    v_lshl_add_u32 v{HB_}, v25, 8, v27
    """)
    for ks in range(1, 4):
        a(f"v_xor_b32 v{HA_ + 4 * ks}, {64 * ks}, v{HA_}\nv_xor_b32 v{HB_ + 4 * ks}, {64 * ks}, v{HB_}")
    a(f"""
    s_lshr_b32 s{sA}, s{sC}, 1
    s_mul_i32 s{sA}, s{sA}, 48
    s_lshl_b32 s{sB2}, s{sC}, 3
    s_add_u32 s{sA}, s{sA}, s{sB2}
    s_add_u32 s{sA}, s{sA}, {QT}
    v_lshl_add_u32 v26, v14, 4, s{sA}
    s_movk_i32 s{sA}, {QST}
    v_mad_u32_u24 v{vQa}, v24, s{sA}, v26
    v_mad_u32_u24 v{vQa + 1}, v25, s{sA}, v26
    s_lshl_b32 s{sA}, s{sC}, 5
    s_add_u32 s{sA}, s{sA}, {PT}
    v_lshl_add_u32 v26, v14, 3, s{sA}
    s_movk_i32 s{sA}, 288
    v_mad_u32_u24 v{vPa}, v24, s{sA}, v26
    v_mad_u32_u24 v{vPa + 1}, v25, s{sA}, v26
    v_bfe_u32 v24, v0, 2, 2
    v_and_b32 v25, 1, v14
    v_lshl_or_b32 v25, v25, 2, v24
    v_xor_b32 v25, s{sC}, v25
    v_and_b32 v26, 3, v0
    v_lshlrev_b32 v26, 3, v26
    v_lshl_or_b32 v25, v25, 5, v26
    v_lshl_add_u32 v24, v14, 3, v24
    v_lshl_add_u32 v24, v24, 8, v25
    v_add_u32 v{vWa}, {WS1}, v24
    v_lshlrev_b32 v1, 1, v14
    v_xor_b32 v1, v1, v15
    v_lshlrev_b32 v1, 4, v1
    v_lshl_add_u32 v1, v14, 8, v1
    v_xor_b32 v2, 0x80, v1
    s_bitcmp1_b32 s{sWV}, 0
    s_mov_b32 s{sP0}, {f32(-LOG2E)}
    s_cmov_b32 s{sP0}, {f32(-LOG2E * TINY)}
    s_mul_i32 s{sA}, s{sB}, {RST}
    s_add_u32 s{sA}, s{sA}, {WS_REC}
    s_add_u32 s{sR}, s{sW}, s{sA}
    s_addc_u32 s{sR + 1}, s{sW + 1}, 0
    s_cmp_ge_u32 s2, 125
    s_cbranch_scc1 K_X0 ; @if:q=1
    """)
    a(f"""
    s_lshl_b32 s{sA}, s2, 7
    s_add_u32 s{sA}, s{sA}, {WS_REC}
    s_add_u32 s{sP3}, s{sW}, s{sA}
    s_addc_u32 s{sP3 + 1}, s{sW + 1}, 0
    s_movk_i32 s{sA}, {RST - 128}
    s_mov_b32 s{sP1}, {PB}
    v_lshrrev_b32 v24, 3, v{vT}
    v_mad_u32_u24 v{GA}, v24, s{sA}, v19
    v_add_u32 v{GA + 1}, {128 * RST}, v{GA}
    v_lshl_add_u32 v{LA}, v24, 5, v19
    v_add_u32 v{LA}, s{sP1}, v{LA}
    v_lshlrev_b32 v{CA}, 2, v24
    s_cmp_ge_u32 s{sWV}, 13
    s_cbranch_scc1 K_PB ; @if:lo=0
    s_mov_b32 s{sA}, 342393
    s_movk_i32 s{sB2}, 12544
    s_mov_b32 s{sP1 + 1}, 0xffff0000
    v_mov_b32 v44, 1
    s_mov_b64 exec, s[{sP4}:{sP4 + 1}]
    s_waitcnt vmcnt(2)
    """)
    for j in range(4):
        a(f"""
        v_mul_u32_u24 v{4 + j}, s{sA}, v{4 + j}
        v_lshlrev_b32_sdwa v{BK + j}, 2, v{4 + j} {SD} src1_sel:BYTE_3
        ds_add_rtn_u32 v{RK1 + j}, v{BK + j}, v44 offset:{CNTP}
        """)
    for j in range(4):
        a(f"v_mul_hi_u32_u24 v{4 + j}, s{sB2}, v{4 + j}\nv_mad_u32_u24 v{BK + j}, v{BK + j}, 40, s{sP1}")
    a("s_waitcnt vmcnt(0)")
    for j in range(4):
        if j & 1:
            a(f"v_and_or_b32 v{8 + j}, v{12 + j // 2}, s{sP1 + 1}, v{8 + j}")
        else:
            a(f"v_lshl_or_b32 v{8 + j}, v{12 + j // 2}, 16, v{8 + j}")
    for j in range(4):
        a(f"""
        s_waitcnt lgkmcnt({3 + j})
        v_min_u32 v{RK1 + j}, 31, v{RK1 + j}
        v_add_u32 v42, v{BK + j}, v{RK1 + j}
        v_lshl_add_u32 v43, v{RK1 + j}, 2, v{BK + j}
        ds_write_b8 v42, v{4 + j}
        ds_write_b32 v43, v{8 + j} offset:32
        """)
    a(f"""
    s_mov_b64 exec, -1
    K_PB:
    s_waitcnt lgkmcnt(0)
    s_barrier
    """)
    a(pr("scat"))
    a(f"""
    ds_read_b32 v{CA + 1}, v{CA} offset:{CNTP + 512}
    ds_read_b32 v{CA}, v{CA} offset:{CNTP}
    ds_read_b128 v[4:7], v{LA}
    ds_read_b128 v[8:11], v{LA} offset:{128 * 160}
    s_xor_b32 s{sA}, s{sWV}, 13
    s_lshl_b32 s{sA}, s{sA}, 8
    s_or_b32 s{sA}, s{sA}, s2
    s_waitcnt lgkmcnt(2)
    v_max_u32 v24, v{CA}, v{CA + 1}
    v_cmp_lt_u32 vcc, 24, v24
    s_cbranch_vccnz K_POV
    K_PST:
    s_cmp_lt_u32 s{sA}, 32
    s_waitcnt lgkmcnt(1)
    global_store_dwordx4 v{GA}, v[4:7], s[{sP3}:{sP3 + 1}] sc1
    s_waitcnt lgkmcnt(0)
    global_store_dwordx4 v{GA + 1}, v[8:11], s[{sP3}:{sP3 + 1}] sc1
    s_waitcnt vmcnt(2)
    s_cbranch_scc1 K_WB2
    s_branch K_X
    K_X0:
    s_waitcnt vmcnt(0) lgkmcnt(0)
    K_X:
    {pr("X")}
    s_barrier
    """)
    st(2)
    trd = lambda d, ks, off: "\n".join(f"ds_read_b64_tr_b16 {vr(d + 4 * ks + 2 * i, 2)}, v{vWa} offset:{off + 8192 * ks + 1024 * i}" for i in range(2))
    for ks in range(4):
        a(f"""
        {trd(WF, ks, 0)}
        ds_read_b128 {vr(HA_ + 4 * ks, 4)}, v{HA_ + 4 * ks}
        ds_read_b128 {vr(HB_ + 4 * ks, 4)}, v{HB_ + 4 * ks}
        """)
        if ks == 2:
            a(f"s_waitcnt lgkmcnt(9)\n{mf32(GC, WF, HA_, True)}\ns_waitcnt lgkmcnt(8)\n{mf32(GC + 4, WF, HB_, True)}")
    for ks in range(1, 4):
        a(f"""
        s_waitcnt lgkmcnt({13 - 4 * ks})
        {mf32(GC, WF + 4 * ks, HA_ + 4 * ks)}
        s_waitcnt lgkmcnt({12 - 4 * ks})
        {mf32(GC + 4, WF + 4 * ks, HB_ + 4 * ks)}
        """)
    a("s_nop 5")
    scale_store(a, GC, 24, vQa)
    big_test(a, GC, "K_FQ")
    a(f"""
    s_cmp_lg_u32 s{sWV}, 15
    {pr("X2a")}
    s_waitcnt vmcnt(0) lgkmcnt(0)
    {pr("X2")}
    s_barrier
    """)
    st(3)
    a(f"""
    s_cbranch_scc1 K_NQ ; @if:w15=0
    s_setprio 3
    v_lshlrev_b32 v17, 4, v0
    v_lshl_add_u32 v15, v14, 4, v17
    """)
    for i in range(13):
        a(f"ds_read_b128 {vr(20 + 4 * i, 4)}, v15 offset:{QT + 4 * QST * i}")
    a(f"s_lshl_b32 s{sA}, s{sNB}, 8")
    for i in range(13):
        if i and i % 4 == 0:
            a(f"s_add_u32 s{sA}, s{sA}, 4096")
        if i == 12:
            a("s_mov_b64 exec, 0xffff")
        a(f"s_waitcnt lgkmcnt({12 - i})\nbuffer_store_dwordx4 {vr(20 + 4 * i, 4)}, v17, s[{sW}:{sW + 3}], s{sA} offen offset:{1024 * (i & 3)} sc1")
    a(f"""
    s_mov_b64 exec, -1
    s_setprio 0
    s_branch K_X3
    K_NQ:
    s_cmp_lt_u32 s{sWV}, 8
    s_cbranch_scc1 K_WL
    s_cmp_lt_u32 s{sWV}, 13
    s_cbranch_scc1 K_JOB
    s_xor_b32 s{sA}, s{sWV}, 14
    s_lshl_b32 s{sA}, s{sA}, 8
    s_or_b32 s{sA}, s{sA}, s2
    s_cmp_ge_u32 s{sA}, 125
    s_cbranch_scc1 K_X3
    s_and_b32 s{sA}, s2, 1
    s_lshl_b32 s{sB2}, s{sA}, 6
    s_sub_u32 s{sA}, 62, s{sA}
    v_mov_b32 v24, s{sB2}
    v_mov_b32 v25, 1
    s_mov_b64 exec, 1
    global_atomic_add v26, v24, v25, s[22:23] sc0 sc1
    s_waitcnt vmcnt(0)
    v_cmp_eq_u32 vcc, s{sA}, v26
    s_cbranch_vccz K_PS
    global_store_dword v24, v25, s[22:23] offset:128 sc1
    K_PS:
    s_mov_b64 exec, -1
    s_branch K_X3
    K_WL:
    s_cmp_lt_u32 s{sWV}, 4
    s_cselect_b32 s{sT}, s14, s18
    s_cselect_b32 s{sT + 1}, s15, s19
    s_mov_b32 s{sT + 2}, 0x8000
    s_mov_b32 s{sT + 3}, 0x20000
    s_lshl_b32 s{sA}, s{sWV}, 13
    s_add_u32 m0, s{sA}, {WS1}
    s_and_b32 s{sA}, s{sA}, 0x7fff
    """)
    for i in range(8):
        if i == 4:
            a(f"s_add_u32 m0, m0, 4096\ns_add_u32 s{sA}, s{sA}, 4096")
        a(f"buffer_load_dwordx4 v{1 + (i >> 1 & 1)}, s[{sT}:{sT + 3}], s{sA} offen offset:{1024 * (i & 3)} lds")
    a(f"""
    s_waitcnt vmcnt(0)
    K_X3:
    {pr("X3")}
    s_barrier
    """)
    st(4)
    for ks in range(4):
        a(trd(WF, ks, 0))
    for ks in range(4):
        if ks == 3:
            a("s_waitcnt lgkmcnt(8)")
        a(trd(TF, ks, WS2 - WS1))
    a("s_waitcnt lgkmcnt(0)\ns_barrier")
    st(5)
    pos_dma(a, "K_PD")
    a(pr("PD"))
    for ks in range(4):
        a(mf32(GC, WF + 4 * ks, HA_ + 4 * ks, ks == 0))
        a(mf32(GC + 4, WF + 4 * ks, HB_ + 4 * ks, ks == 0))
    a(f"s_cmp_lg_u32 s{sD}, 0\ns_cbranch_scc1 K_GH1")
    for ks in range(4):
        a(mf32(YA, TF + 4 * ks, HA_ + 4 * ks, ks == 0))
        a(mf32(YB, TF + 4 * ks, HB_ + 4 * ks, ks == 0))
    a("s_branch K_GH2\nK_GH1:")
    for ks in range(4):
        a(mf32(YA, TF + 4 * ks, HA_ + 4 * ks, ks == 0))
        a(mf32(YB, HB_ + 4 * ks, TF + 4 * ks, ks == 0))
    a("K_GH2:\n" + pr("GH"))
    scale_store(a, GC, 40, vPa)
    a(f"s_mov_b32 s{sP0}, {f32(-LOG2E / (1 + DELTA))}")
    for k in range(4):
        a(f"v_pk_mul_f32 {vr(Y + 2 * k, 2)}, {vr(Y + 2 * k, 2)}, s[{sP0}:{sP0 + 1}] op_sel_hi:[1,0]")
    big_test(a, GC, "K_FP")
    a(f"""
    s_mov_b64 s[{sMK}:{sMK + 1}], 0
    s_mov_b64 s[{sMK + 2}:{sMK + 3}], 0
    s_mov_b32 s{sRARE}, 0
    s_mov_b32 s{sQW}, 1 ; @set:qw=1
    s_mov_b32 s{sSRC}, -1
    s_movk_i32 s{sWID}, 1024
    s_cmp_eq_u32 s{sWV}, 15
    s_cselect_b32 s{sQA}, 1, 0
    s_cmp_ge_u32 s{sWV}, 10
    s_cbranch_scc1 K_JB2
    K_G:
    """)
    rec_addr(a)
    a(f"""
    v_mov_b32 v30, 0
    ds_read_b32 v30, v30 offset:{MISC}
    s_and_b32 s{sA}, s2, {NSH - 1}
    s_lshl_b32 s{sA}, s{sA}, 7
    s_add_u32 s{sA}, s{sA}, {WS_SYNC}
    v_mov_b32 v50, s{sA}
    s_cmp_eq_u32 s{sQA}, 0
    s_waitcnt lgkmcnt(0)
    v_or_b32 v51, 1, v30
    {pr("G")}
    s_barrier
    """)
    st(6)
    rec_load(a)
    a(f"""
    s_cbranch_scc1 K_B0 ; @if:w15=0
    s_mov_b64 exec, 1
    s_waitcnt vmcnt(2)
    global_atomic_add v52, v50, v51, s[{sW}:{sW + 1}] sc0 sc1
    s_mov_b64 exec, -1
    K_B0:
    """)
    a(f"""
    s_lshl_b32 s{sA}, s{sWV}, 12
    s_add_u32 s{sM0}, s{sA}, {RING}
    s_mov_b32 s{sC000}, 0xc000
    s_movk_i32 s{s128}, 128
    s_movk_i32 s{s192}, 192
    s_movk_i32 s{s256}, 256
    s_movk_i32 s{s256 + 1}, 256
    s_mov_b32 s{sG3}, 0
    s_mov_b32 s{sG3 + 1}, 0xffff0000
    s_add_u32 s{sM0 + 1}, s{sM0}, 1024
    s_add_u32 s{sM0 + 2}, s{sM0}, 2048
    s_add_u32 s{sM0 + 3}, s{sM0}, 3072
    v_and_b32 v34, 15, v0
    v_lshrrev_b32 v35, 4, v0
    v_lshrrev_b32 v36, 3, v34
    v_lshlrev_b32 v36, 1, v36
    v_xor_b32 v36, v36, v35
    v_lshl_add_u32 v36, v36, 4, s{sM0}
    v_lshl_add_u32 v{vRing}, v34, 6, v36
    v_and_b32 v36, 2, v35
    v_and_b32 v37, 3, v0
    v_xor_b32 v36, v36, v37
    v_lshlrev_b32 v{vLc}, 4, v36
    v_cndmask_b32 v{vMul}, 2, 0, {g3}
    v_mov_b32 v{vIS}, 256
    v_cndmask_b32 v{vIX}, 0, v{vIS}, {g3}
    v_mov_b32 v{vIdx}, 0xdd
    s_and_b32 s{sA}, s{sWV}, 7
    s_lshl_b32 s{sA}, s{sA}, 6
    s_add_u32 s{sA}, s{sA}, {FAKE}
    v_and_b32 v36, -4, v0
    v_add_u32 v{vFa}, s{sA}, v36
    v_mov_b32 v19, 1
    v_mov_b32 v48, {POSL}
    s_mov_b32 s{sC}, 0x40000
    s_mov_b32 s{sD}, 0x0c040100
    s_cmp_lg_u32 s{sQA}, 0
    s_waitcnt vmcnt(1)
    s_cbranch_scc1 K_C0 ; @if:w15=1
    s_waitcnt vmcnt(0)
    K_C0:
    """)
    st(7)
    AJ, RK, QD = 24, 28, 32
    for j in range(4):
        a(f"""
        v_lshlrev_b32_sdwa v{AJ + j}, 2, sext(v{vDL}) {SD} src1_sel:BYTE_{j}
        ds_add_rtn_u32 v{RK + j}, v{AJ + j}, v19 offset:{CNT}
        """)
    a(f"v_cmp_eq_u32 vcc, -1, v{vDL}")
    for j in range(4):
        q = QD + 4 * j
        a(f"""
        v_and_or_b32 v{q + 2}, v{AJ + j}, s{sC}, v48
        v_perm_b32 v{q}, v{AJ + j}, v{W + j}, s{sD}
        v_mad_u32_u16 v{q + 2}, v{W + j}, 6, v{q + 2}
        v_and_b32 v{q + 1}, 0xffff0000, v{W + j}
        v_and_b32 v{q + 2}, -4, v{q + 2}
        """)
    a(f"""
    s_cbranch_vccnz K_OVF
    K_OVFB:
    v_lshlrev_b32 v49, 2, v0
    s_cmp_eq_u32 s{sWV}, 13
    s_waitcnt lgkmcnt(0)
    s_barrier
    """)
    st(8)
    a(f"s_cbranch_scc1 K_OWN1 ; @if:w13=1\nK_OWN1B:\nds_read_b32 v49, v49 offset:{CNT}")
    for j in range(4):
        q = QD + 4 * j
        a(f"ds_read2_b32 {vr(q + 2, 2)}, v{q + 2} offset1:1")
    a(f"""
    s_waitcnt lgkmcnt(4)
    v_cmp_ne_u32 vcc, 0, v49
    s_mov_b32 s{sA}, {OOB}
    s_and_b32 s{sB2}, vcc_hi, 0xf00000
    s_cbranch_scc1 K_MASK
    K_MASKB:
    v_mov_b32 v{vIncl}, v49
    """)
    scan64(a, vIncl)
    a(f"""
    v_sub_u32 v49, v{vIncl}, v49
    v_readlane_b32 s{sTOT}, v{vIncl}, 63
    v_lshlrev_b32 v49, 4, v49
    v_writelane_b32 v49, s{sA}, 63
    """)
    for j in range(4):
        a(f"ds_bpermute_b32 v{AJ + j}, v{AJ + j}, v49")
    a(f"""
    s_cmp_lg_u32 s{sQA}, 0
    s_cbranch_scc1 K_QA ; @if:w15=1
    K_QAB:
    s_cmp_gt_u32 s{sTOT}, {CAP}
    s_cbranch_scc1 K_SHRINK
    s_add_u32 s{sA}, s{sTOT}, 15
    s_lshr_b32 s{sA}, s{sA}, 4
    s_lshr_b32 s{sB2}, s{sA}, 4
    s_and_b32 s{sA}, s{sA}, 15
    s_mul_i32 s{sTS}, s{sB2}, s{sWV}
    s_min_u32 s{sC}, s{sWV}, s{sA}
    s_add_u32 s{sTS}, s{sTS}, s{sC}
    s_cmp_lt_u32 s{sWV}, s{sA}
    s_addc_u32 s{sD}, s{sB2}, 0
    s_lshl_b32 s{sTS}, s{sTS}, 4
    s_lshl_b32 s{sD}, s{sD}, 4
    s_add_u32 s{sWT}, s{sTS}, s{sD}
    s_min_u32 s{sWEND}, s{sWT}, s{sTOT}
    """)
    for j in range(4):
        a(f"""
        s_waitcnt lgkmcnt(3)
        v_lshl_add_u32 v{AJ + j}, v{RK + j}, 4, v{AJ + j}
        ds_write_b128 v{AJ + j}, {vr(QD + 4 * j, 4)} offset:{LIST}
        """)
    a(f"""
    v_cmp_ge_u32 vcc, s{sTS}, v{vIncl}
    v_cmp_gt_u32 s[{sP2}:{sP2 + 1}], s{sWEND}, v{vIncl}
    v_add_u32 v24, 64, v0
    v_cmp_gt_u32 s[{sP3}:{sP3 + 1}], s{sD}, v0
    v_cmp_gt_u32 s[{sP4}:{sP4 + 1}], s{sD}, v24
    s_bcnt1_i32_b64 s{sN0}, vcc
    s_bcnt1_i32_b64 s{sNL}, s[{sP2}:{sP2 + 1}]
    s_mov_b32 s{sNW}, s{sN0}
    """)
    ptrs(a)
    a(f"""
    v_mov_b32 v24, {OOB}
    v_lshl_add_u32 v{vG0}, v0, 4, s{sA}
    v_add_u32 v{vG1}, 1024, v{vG0}
    v_cndmask_b32 v{vG0}, v24, v{vG0}, s[{sP3}:{sP3 + 1}]
    v_cndmask_b32 v{vG1}, v24, v{vG1}, s[{sP4}:{sP4 + 1}]
    s_cmp_eq_u32 s{sD}, 0
    s_cselect_b32 s{sNF}, {OOB >> 5}, s{sN0}
    s_cmp_eq_u32 s{sWV}, 0
    s_cselect_b32 s{sA}, 48, s{sNF}
    s_cselect_b32 s{sNF}, 64, s{sNF}
    s_lshl_b32 s{sA}, s{sA}, 4
    s_add_u32 s{sA}, s{sA}, s{sWV}
    s_lshl_b32 s{sA}, s{sA}, 1
    v_mov_b32 v25, s{sA}
    v_mov_b32 v26, 0x3f80
    s_mov_b64 exec, 1
    ds_write_b16 v25, v26 offset:{SEL}
    s_mov_b64 exec, -1
    s_cmp_ge_u32 s{sWV}, 13
    s_cbranch_scc1 K_PAD ; @if:lo=0
    K_PADB:
    s_waitcnt lgkmcnt(0)
    s_barrier
    """)
    st(9)
    list_reads(a)
    G, O, TH = 20, 28, 40
    a(f"""
    v_mov_b32 v{S}, 0
    ds_read_b64 {vr(TH, 2)}, v{S} offset:{MISC + 8}
    ds_read_b128 {vr(G, 4)}, v{vG0}
    ds_read_b128 {vr(G + 4, 4)}, v{vG1}
    v_mov_b32 v{S + 1}, 0
    v_bfe_u32 v17, v0, 2, 2
    v_lshrrev_b32 v18, 4, v0
    v_cmp_eq_u32 vcc, v17, v18
    v_mov_b32 v18, 0x3f80
    v_mov_b32 v19, 0
    v_cndmask_b32 v18, 0, v18, vcc
    v_lshlrev_b32 v17, 4, v0
    v_lshlrev_b64 v[{B + 2}:{B + 3}], v17, v[18:19]
    """)
    for p in range(2):
        a(f"""
        s_waitcnt lgkmcnt(1)
        v_lshlrev_b32_sdwa v{O + 4 * p}, 2, v{G + 4 * p} {SD} src1_sel:WORD_1
        ds_read_b128 {vr(O + 4 * p, 4)}, v{O + 4 * p} offset:{OWN}
        """)
    for u in range(8):
        a(zero4(AC + 4 * u))
        if u < 3:
            a(f"v_mov_b64 {vr(B + 6 * u + 8, 2)}, {vr(B + 2, 2)}")
    for p in range(2):
        g, o = G + 4 * p, O + 4 * p
        a(f"""
        v_lshlrev_b32 v38, 4, v{g}
        v_alignbit_b32 v37, v{g + 3}, v{g + 2}, v38
        v_lshrrev_b32_sdwa v{g + 3}, v38, v{g + 3} dst_sel:WORD_1 dst_unused:UNUSED_PAD src0_sel:DWORD src1_sel:DWORD
        v_lshlrev_b32 v36, 16, v37
        v_and_b32 v37, 0xffff0000, v37
        s_waitcnt lgkmcnt(1)
        v_pk_add_f32 {vr(o, 2)}, {vr(o, 2)}, v[36:37] neg_lo:[0,1] neg_hi:[0,1]
        v_sub_f32 v{o + 2}, v{o + 2}, v{g + 3}
        v_mul_f32 v{o + 3}, v{o}, v{o}
        v_fmac_f32 v{o + 3}, v{o + 1}, v{o + 1}
        v_fmac_f32 v{o + 3}, v{o + 2}, v{o + 2}
        v_cvt_pk_bf16_f32 v{g + 2}, 1.0, v{o}
        v_mul_f32 v{o + 3}, {f32(-LOG2E)}, v{o + 3}
        v_cvt_pk_bf16_f32 v{g + 3}, v{o + 1}, v{o + 2}
        v_cmp_nlt_f32 vcc, abs(v{g + 1}), v{TH + 1}
        v_cmp_nlt_f32 s[{sP0}:{sP0 + 1}], abs(v{o + 3}), v{TH}
        v_cvt_pk_bf16_f32 v{g + 1}, v{o + 3}, v{g + 1}
        ds_write_b128 v{vG0 + p}, {vr(g, 4)} ; nobar
        s_or_b64 vcc, vcc, s[{sP0}:{sP0 + 1}]
        s_and_b64 s[{sP3 + 2 * p}:{sP3 + 2 * p + 1}], s[{sP3 + 2 * p}:{sP3 + 2 * p + 1}], vcc
        """)
    a(f"""
    s_or_b64 s[{sP3}:{sP3 + 1}], s[{sP3}:{sP3 + 1}], s[{sP4}:{sP4 + 1}]
    s_cselect_b32 s{sMODE}, 1, 0
    """)
    a(f"""
    K_XFR:
    s_cmp_ge_u32 s{sTS}, s{sWT}
    v_mad_u32_u16 v{vVoff}, v{vSa}, s{s256}, v{vLc}
    s_cbranch_scc1 K_QW ; @if:nt=1
    v_lshrrev_b32 v17, 2, v0
    v_and_b32 v18, 3, v0
    v_add_u32 v19, s{sN0}, v17
    v_mul_u32_u24 v19, 288, v19
    v_add_u32 v19, {PT}, v19
    v_lshlrev_b32 v17, 8, v17
    v_add_u32 v17, {WD - 14 * 256}, v17
    v_cndmask_b32 v19, v19, v17, {g3}
    s_mov_b32 vcc_lo, 0
    s_mov_b32 vcc_hi, 0x00ff0000
    v_mov_b32 v17, {OOB}
    v_lshl_add_u32 v19, v18, 3, v19
    v_cndmask_b32 v19, v19, v17, vcc
    """)
    for u in range(8):
        a(f"ds_read_b64_tr_b16 {vr(B + 6 * (u // 2) + 4 * (u & 1), 2)}, v19 offset:{32 * u}")
    a(f"""
    s_lshl_b32 s{sA}, s{sN0}, 3
    s_sub_u32 s{sA}, {OH + 512}, s{sA}
    v_and_b32 v19, 48, v0
    v_lshlrev_b32 v19, 1, v19
    v_sub_u32 v19, s{sA}, v19
    v_cndmask_b32 v{vBX}, v19, v{vEa}, {g3}
    v_mad_u32_u16 v{vXa}, v{vXa}, v{vMul}, v{vBX} op_sel:[1,0,0,0]
    ds_read_b64 {vr(A, 2)}, v{vXa}
    ds_read_b64 {vr(A + 6, 2)}, v{vXa}
    ds_read_b64 {vr(A + 12, 2)}, v{vXa}
    v_subrev_u32 v18, s{sNW}, v18
    v_and_b32 v18, 3, v18
    v_add_u32 v18, s{sNW}, v18
    v_mul_u32_u24 v18, {OOB}, v18
    v_sub_u32 v18, v{vDa}, v18
    v_add_u32 v{vBS}, 8, v18
    v_mad_u32_u16 v{vSa}, v{vSa}, s{sC000}, v{vBS} op_sel:[1,0,0,0]
    {zero4(ZE + 4)}
    {zero4(L)}
    v_lshl_add_u64 v[{vBX}:{vBS}], v[{vBX}:{vBS}], 0, v[{vIX}:{vIS}]
    v_add_u32 v{vDa}, 512, v{vDa}
    v_add_u32 v{vEa}, 256, v{vEa}
    """)
    window(a)
    a(f"""
    K_QW:
    {dma(0)[0]}
    s_cmp_eq_u32 s{sQW}, 0
    s_cbranch_scc1 K_DMA ; @if:qw=0
    """)
    st(10)
    a(f"""
    s_cmp_eq_u32 s{sWV}, 14
    s_cbranch_scc1 K_QP ; @if:w14=1
    K_QB:
    s_mov_b32 s{sQW}, 0 ; @set:qw=0
    s_barrier
    """)
    st(11)
    a(f"K_DMA:\n{dma(0)[1]}")
    for kc in range(1, 4):
        a(f"{dma(kc)[0]}\ns_nop 0\n{dma(kc)[1]}")
    a(f"""
    s_cmp_ge_u32 s{sTS}, s{sWT}
    s_cbranch_scc1 K_NT0 ; @if:nt=1
    ds_read_b32 v17, v{S} offset:{MISC + 4}
    v_mad_u32_u16 v{vVoff}, v{vD}, s{s256}, v{vLc}
    {dma(0)[0]}
    s_waitcnt vmcnt(3)
    {rdq(0)}
    s_waitcnt vmcnt(2)
    {rdq(1)}
    s_waitcnt lgkmcnt(1)
    {Kmf(0, ZE)}
    {dma(0)[1]}
    v_readfirstlane_b32 s{sA}, v17
    s_or_b32 s{sMODE}, s{sMODE}, s{sA} ; @set:mode=x
    """)
    st(12)
    a(f"""
    s_waitcnt lgkmcnt(0)
    K_EV2:
    s_add_u32 s{sA}, s{sTS}, 32
    s_cmp_lt_u32 s{sA}, s{sWT}
    s_cbranch_scc1 K_GO
    v_mov_b32 v{vDa}, v{vFa}
    K_GO:
    s_cmp_lg_u32 s{sMODE}, 0
    s_cbranch_scc1 K_LOOPF ; @if:mode=1
    K_LOOP:
    {loop_body(cfg.get('pat', PAT), cfg.get('dord', DORD), True)}
    s_cbranch_scc1 K_LOOP
    K_EV:
    s_add_u32 s{sA}, s{sTS}, 16
    s_cmp_lt_u32 s{sEW}, s{sA}
    s_cbranch_scc1 K_WIN
    s_cmp_lt_u32 s{sTS}, s{sWT}
    s_cbranch_scc1 K_EV2
    """)
    st(13)
    WB = [A + 2, A + 8, B + 16, B + 20]
    HA, HB, HR = 60, 64, 68

    def exit_loads(tag):
        a(f"""
        s_lshr_b32 s{sD}, s{sWV}, 3
        s_and_b32 s{sC}, s{sWV}, 7
        s_lshl_b32 s{sC}, s{sC}, 5
        s_lshl_b32 s{sA}, s{sD}, 12
        s_add_u32 s{sA}, s{sA}, s{sC}
        v_and_b32 v5, 15, v0
        v_and_b32 v6, 48, v0
        v_lshrrev_b32 v8, 1, v6
        v_lshl_add_u32 v17, v5, 8, v8
        v_lshl_add_u32 v10, v5, 1, s{sC}
        s_add_u32 s{sA}, s{sA}, 4096
        s_movk_i32 s{sB2}, {48 * 256}
        s_cmp_lg_u32 s{sD}, 0
        buffer_load_dwordx2 {vr(HR, 2)}, v17, s[{sH}:{sH + 3}], s{sA} offen
        s_cbranch_scc1 {tag}1
        buffer_load_dwordx2 {vr(HR + 2, 2)}, v17, s[{sH}:{sH + 3}], s{sC} offen
        s_branch {tag}2
        {tag}1:
        buffer_load_ushort v{HR + 2}, v10, s[{sH}:{sH + 3}], s{sB2} offen
        {tag}2:
        """)

    exit_loads("K_XA")
    F = L
    a(f"""
    s_mov_b32 s{sLAST}, 1 ; @set:last=1
    s_movk_i32 s{sNWN}, 64
    K_FLUSH:
    v_and_b32 v17, 15, v0
    v_lshlrev_b32 v18, 5, v17
    ds_read_b128 {vr(T, 4)}, v18 offset:{WX}
    s_waitcnt lgkmcnt(1)
    {Ymf(6, ZE + 4)}
    {Ymf(7, L)}
    ds_read_b128 {vr(ZL, 4)}, v18 offset:{WX + 16}
    v_lshrrev_b32 v18, 4, v0
    v_subrev_u32 v18, s{sNW}, v18
    v_and_b32 v18, 3, v18
    v_add_u32 v18, s{sNW}, v18
    s_add_u32 s{sA}, s{sNL}, 1
    s_min_u32 s{sA}, s{sA}, s{sNWN}
    s_add_u32 s{sB2}, s{sWV}, 48
    v_cmp_eq_u32 vcc, s{sNF}, v18
    v_cmp_gt_u32 s[{sP0}:{sP0 + 1}], s{sA}, v18
    v_cmp_gt_u32 s[{sP1}:{sP1 + 1}], s{sNWN}, v18
    v_mov_b32 v19, s{sB2}
    v_cndmask_b32 v19, v18, v19, vcc
    v_mul_u32_u24 v19, {MST}, v19
    v_lshl_add_u32 v19, v17, 4, v19
    v_lshl_add_u32 v18, v18, 4, v17
    """)
    for k in range(4):
        a(f"v_cvt_pk_bf16_f32 v{ZE + 4 + k}, v{AC + 8 * k}, v{AC + 8 * k + 4}")
    a(f"""
    s_mov_b64 exec, s[{sP0}:{sP0 + 1}]
    ds_write_b128 v19, {vr(ZE + 4, 4)} offset:{MR}
    s_mov_b64 exec, -1
    s_waitcnt lgkmcnt(1)
    """)
    for u in range(8):
        w = (T if u < 4 else ZL) + (u & 3)
        wp, hi = w & ~1, w & 1
        if u == 0:
            a(f"v_pk_mul_f32 {vr(F + 2, 2)}, {vr(AC + 2, 2)}, {vr(wp, 2)} op_sel_hi:[1,0]")
            a(f"v_mul_f32 v{F + 1}, v{AC + 1}, v{w}")
        else:
            a(f"v_pk_fma_f32 {vr(F + 2, 2)}, {vr(AC + 4 * u + 2, 2)}, {vr(wp, 2)}, {vr(F + 2, 2)} op_sel:[0,{hi},0] op_sel_hi:[1,{hi},1]")
            a(f"v_fmac_f32 v{F + 1}, v{AC + 4 * u + 1}, v{w}")
    a(f"""
    s_and_b32 s{sP0}, s{sP0}, 0x01110111
    v_add_f32_dpp v{F + 2}, v{F + 2}, v{F + 2} row_ror:8 row_mask:0xf bank_mask:0xf
    v_add_f32_dpp v{F + 1}, v{F + 1}, v{F + 1} row_ror:8 row_mask:0xf bank_mask:0x3
    s_and_b32 s{sP0 + 1}, s{sP0 + 1}, 0x01110111
    v_add_f32_dpp v{F + 2}, v{F + 2}, v{F + 2} row_shr:4 row_mask:0xf bank_mask:0x2
    v_add_f32_dpp v{F + 1}, v{F + 3}, v{F + 3} row_ror:8 row_mask:0xf bank_mask:0xc
    s_nop 1
    v_add_f32_dpp v{F + 2}, v{F + 1}, v{F + 1} row_shl:4 row_mask:0xf bank_mask:0x5
    s_nop 1
    v_add_f32_dpp v{F + 2}, v{F + 2}, v{F + 2} quad_perm:[1,0,3,2] row_mask:0xf bank_mask:0xf
    s_nop 1
    v_add_f32_dpp v{F + 2}, v{F + 2}, v{F + 2} quad_perm:[2,3,0,1] row_mask:0xf bank_mask:0xf
    s_mov_b64 exec, s[{sP0}:{sP0 + 1}]
    ds_add_f32 v18, v{F + 2} offset:{PAC}
    s_mov_b64 exec, -1
    s_cmp_eq_u32 s{sLAST}, 0
    s_cbranch_scc1 K_SLIDE ; @if:last=0
    s_waitcnt vmcnt(3)
    K_POST:
    {rdq(2, WB[2])}
    {rdq(3, WB[3])}
    """)
    vMa, vM3, vSe, vOa = 1, 2, 3, 4
    Z, ZB, SA, SB, MB = 36, 40, 74, 56, 20
    a(f"""
    s_mul_i32 s{sA}, s{sD}, {16 * MST}
    v_mul_u32_u24 v{vM3}, {MST}, v5
    v_add_u32 v{vM3}, v{vM3}, v6
    v_add_u32 v{vMa}, s{sA}, v{vM3}
    s_lshl_b32 s{sA}, s{sD}, 9
    v_lshl_add_u32 v11, v5, 5, v8
    v_add_u32 v{vSe}, s{sA}, v11
    s_mul_i32 s{sA}, s{sD}, 1536
    v_add_u32 v11, s{sA}, v11
    s_mul_i32 s{sA}, s{sD}, {16 * OST}
    s_add_u32 s{sA}, s{sA}, s{sC}
    s_add_u32 s{sA}, s{sA}, {OT}
    v_mul_u32_u24 v{vOa}, {OST}, v5
    v_add3_u32 v{vOa}, v{vOa}, v8, s{sA}
    v_add_u32 v10, {OT + 48 * OST}, v10
    s_mov_b32 s{sP0}, {f32(1 + DELTA)}
    s_mov_b32 s{sP0 + 1}, {f32(-LN2)}
    s_cmp_lg_u32 s{sD}, 0
    s_waitcnt vmcnt(2) lgkmcnt(0)
    s_barrier
    """)
    st(14)
    for ks in range(4):
        a(f"ds_read_b128 {vr(AC + 4 * ks, 4)}, v{vM3} offset:{MR + 48 * MST + 64 * ks}")
    for ks in range(4):
        a(f"ds_read_b128 {vr(AC + 16 + 4 * ks, 4)}, v{vMa} offset:{MR + 16 * MST + 64 * ks}")
    a(f"""
    ds_read_b64 {vr(SA, 2)}, v{vSe} offset:{SEL + 512}
    ds_read_b64 {vr(SB, 2)}, v11 offset:{SEL}
    s_cbranch_scc1 K_E1
    """)
    mf16 = lambda d, x, y: f"v_mfma_f32_16x16x16_bf16 {vr(d, 4)}, {vr(x, 2)}, {vr(y, 2)}, {vr(d, 4)}"

    unpack = lambda n: "\n".join(f"v_lshlrev_b32 v{HA + 2 * k}, 16, v{HR + k}\nv_and_b32 v{HA + 2 * k + 1}, 0xffff0000, v{HR + k}" for k in range(n))

    def gemm_a(extra):
        for ks in range(4):
            a(f"s_waitcnt lgkmcnt({9 + extra - ks})\n" + mf32(Z, AC + 4 * ks, WB[ks], ks == 0))
        for ks in range(4):
            a(f"s_waitcnt lgkmcnt({5 + extra - ks})\n" + mf32(YA, WB[ks], AC + 16 + 4 * ks))
        a(f"v_cvt_pk_bf16_f32 v{ZB}, v{Z}, v{Z + 1}\nv_cvt_pk_bf16_f32 v{ZB + 1}, v{Z + 2}, v{Z + 3}")

    for ks in range(4):
        a(f"ds_read_b128 {vr(MB + 4 * ks, 4)}, v{vM3} offset:{MR + 64 * ks}")
    gemm_a(4)
    for ks in range(4):
        a(f"s_waitcnt lgkmcnt({3 - ks})\n" + mf32(YB, WB[ks], MB + 4 * ks))
        if ks == 2:
            a(mf16(YA, ZB, SA))
    a(f"""
    s_cmp_lg_u32 s{sRARE}, 0
    s_waitcnt vmcnt(0)
    {unpack(4)}
    {mf16(YB, ZB, SB)}
    s_cbranch_scc1 K_NEXT
    K_S0:
    """)
    silu4(a, YA, HA, 20)
    a(f"ds_write_b64 v{vOa}, {vr(YA, 2)} offset:{16 * OST}")
    silu4(a, YB, HB, 20)
    a(f"""
    ds_write_b64 v{vOa}, {vr(YB, 2)}
    K_OUT:
    s_lshl_b32 s{sC}, s{sNB}, 8
    s_add_u32 s{sO}, s20, s{sC}
    s_addc_u32 s{sO + 1}, s21, 0
    s_lshl_b32 s{sO + 2}, s{sNV}, 8
    s_mov_b32 s{sO + 3}, 0x20000
    s_lshl_b32 s{sA}, s{sWV}, 10
    v_lshl_add_u32 v7, v0, 4, s{sA}
    s_lshl_b32 s{sA}, s{sWV}, 6
    s_add_u32 s{sA}, s{sA}, {OT}
    v_add3_u32 v8, v7, v6, s{sA}
    s_cmp_ge_u32 s{sWV}, 13
    s_waitcnt lgkmcnt(0)
    s_barrier
    s_cbranch_scc1 K_FIN
    """)
    a(f"""
    ds_read_b128 v[20:23], v8
    s_waitcnt lgkmcnt(0)
    buffer_store_dwordx4 v[20:23], v7, s[{sO}:{sO + 3}], 0 offen sc1
    K_FIN:
    """)
    stamp_out(a, cfg, sW)
    a("K_END:\ns_endpgm")

    a("K_E1:")
    gemm_a(0)
    a(f"""
    s_waitcnt lgkmcnt(0)
    s_cmp_lg_u32 s{sRARE}, 0
    {mf16(YB, SB, ZB)}
    s_waitcnt vmcnt(0)
    {unpack(2)}
    {mf16(YA, ZB, SA)}
    v_lshlrev_b32 v{HB}, 16, v{HR + 2}
    s_cbranch_scc1 K_NEXT
    K_S1:
    s_sub_u32 s{sA}, s{sWV}, 13
    s_lshl_b32 s{sA}, s{sA}, 6
    v_add_u32 v11, s{sA}, v0
    v_mul_u32_u24 v12, 171, v11
    v_lshrrev_b32 v12, 9, v12
    v_add_lshl_u32 v13, v11, v12, 2
    ds_read_b32 v14, v13 offset:{PAC}
    ds_read_b32 v15, v13 offset:{OWN}
    """)
    silu4(a, YA, HA, 20)
    a(f"""
    ds_write_b64 v{vOa}, {vr(YA, 2)} offset:{16 * OST}
    v_mul_f32 v{YB}, s{sP0}, v{YB}
    v_exp_f32 v20, v{YB}
    v_mul_f32 v{YB}, s{sP0 + 1}, v{YB}
    v_add_f32 v20, 1.0, v20
    v_rcp_f32 v20, v20
    v_cmp_gt_u32 vcc, s{sNV}, v12
    v_fmac_f32 v{HB}, v20, v{YB}
    v_cvt_pk_bf16_f32 v{HB}, v{HB}, v{HB}
    s_mov_b64 exec, 0xffff
    ds_write_b16 v10, v{HB}
    s_mov_b64 exec, -1
    s_cmp_lt_u32 s{sWV}, 13
    s_cbranch_scc1 K_OUT
    s_mul_i32 s{sA}, s{sNB}, 6
    s_add_u32 s{sA}, s{sA}, {N * 256}
    v_lshl_add_u32 v11, v11, 1, s{sA}
    s_waitcnt lgkmcnt(2)
    v_add_f32 v14, v14, v15
    v_cvt_pk_bf16_f32 v14, v14, v14
    s_mov_b64 exec, vcc
    global_store_short v11, v14, s[20:21] sc1
    s_mov_b64 exec, -1
    s_branch K_OUT
    """)
    a(f"""
    K_L13:
    s_cmp_ge_u32 s2, 32 ; @set:w15=0
    s_cbranch_scc1 K_CH ; @if:wb=0
    s_and_b32 s{sA}, s2, 3
    s_lshr_b32 s{sB2}, s2, 2
    s_lshl_b32 s{sC}, s{sA}, 10
    s_lshl_b32 s{sD}, s{sB2}, 5
    s_add_u32 s{sC}, s{sC}, s{sD}
    s_add_u32 s{sC}, s{sC}, {32768 + 4096}
    v_lshlrev_b32 v24, 1, v15
    v_lshl_add_u32 v24, v14, 8, v24
    v_add_u32 v24, s{sC}, v24
    """)
    for j in range(8):
        a(f"global_load_ushort v{WBR + j}, v24, s[18:19] offset:{0 if j & 1 else -4096}")
        if j & 1 and j < 7:
            a("v_add_u32 v24, 0x2000, v24")
    a(f"""
    s_lshl_b32 s{sA}, s{sA}, 6
    s_lshl_b32 s{sB2}, s{sB2}, 12
    s_add_u32 s{sA}, s{sA}, s{sB2}
    s_add_u32 s{sA}, s{sA}, {QROWS * 256}
    v_lshl_add_u32 v45, v15, 8, s{sA}
    v_lshl_add_u32 v45, v14, 4, v45
    s_branch K_CH
    K_WB2:
    """)
    for k in range(4):
        a(f"v_lshl_or_b32 v{WBR + k}, v{WBR + 2 * k + 1}, 16, v{WBR + 2 * k}")
    a(f"""
    s_lshl_b32 s{sA}, s2, 7
    s_add_u32 s{sA}, s{sA}, {WS_SYNC}
    v_mov_b32 v24, s{sA}
    v_mov_b32 v25, 0
    global_store_dwordx4 v45, {vr(WBR, 4)}, s[{sW}:{sW + 1}] sc1
    s_mov_b64 exec, 1
    global_store_dword v24, v25, s[{sW}:{sW + 1}] sc1
    s_mov_b64 exec, -1
    s_branch K_X
    K_POV:
    ds_read_b128 v[20:23], v{LA} offset:128
    ds_read_b128 v[24:27], v{LA} offset:{128 * 160 + 128}
    s_mul_i32 s{sB2}, s2, -96
    s_add_u32 s{sB2}, s{sB2}, 16000
    s_mov_b32 s{sP1}, 0x03030303
    s_mov_b32 s{sP1 + 1}, 0x03030303
    v_add_u32 v28, s{sB2}, v{GA}
    v_add_u32 v29, s{sB2}, v{GA + 1}
    s_waitcnt lgkmcnt(0)
    """)
    for i in range(2):
        a(f"""
        v_cmp_lt_u32 vcc, 24, v{CA + i}
        s_and_b64 exec, vcc, s[{sP1}:{sP1 + 1}]
        s_cbranch_execz K_OV{i}
        global_store_dwordx4 v{28 + i}, {vr(20 + 4 * i, 4)}, s[{sP3}:{sP3 + 1}] sc1
        v_cmpx_lt_u32 vcc, 32, v{CA + i}
        """)
        for k in range(4):
            a(f"v_mov_b32 v{4 + 4 * i + k}, -1")
        a(f"K_OV{i}:\ns_mov_b64 exec, -1")
    a(f"""
    s_branch K_PST
    K_FQ:
    v_mov_b32 v36, {MISC}
    v_mov_b32 v37, 0x10000
    ds_write_b32 v36, v37
    s_branch K_FQB
    K_FP:
    v_mov_b32 v36, {MISC + 4}
    ds_write_b32 v36, v36
    s_branch K_FPB
    K_JOB:
    s_cmp_ge_u32 s{sWV}, 10
    s_cbranch_scc1 K_JB1
    v_cmp_eq_u32 vcc, 32, v0
    v_cmp_eq_u32 s[{sP1}:{sP1 + 1}], 33, v0
    v_mov_b32 v12, 0x3f80
    v_lshlrev_b32 v4, 4, v0
    v_cndmask_b32 v8, 0, v12, vcc
    v_cndmask_b32 v9, 0, v12, s[{sP1}:{sP1 + 1}]
    v_lshlrev_b32 v10, 16, v8
    v_lshlrev_b32 v11, 16, v9
    ds_write_b128 v4, v[8:11] offset:{OH}
    v_lshlrev_b32 v4, 3, v0
    v_lshlrev_b32 v12, 1, v0
    v_add_u32 v12, {QROWS}, v12
    v_add_u32 v13, 1, v12
    ds_write_b64 v4, v[12:13] offset:{FAKE}
    s_waitcnt lgkmcnt(0)
    s_branch K_X3
    K_JB1:
    s_lshl_b32 s{sA}, s{sWV}, 8
    s_add_u32 s{sA}, s{sA}, {65536 - 2560}
    s_add_u32 s{sP1}, s14, s{sA}
    s_addc_u32 s{sP1 + 1}, s15, 0
    s_cmp_eq_u32 s{sWV}, 12
    s_cselect_b64 s[{sP1}:{sP1 + 1}], s[16:17], s[{sP1}:{sP1 + 1}]
    v_lshlrev_b32 v4, 2, v0
    global_load_dword v10, v4, s[{sP1}:{sP1 + 1}]
    s_branch K_X3
    K_JB2:
    s_cmp_ge_u32 s{sWV}, 13
    s_cbranch_scc1 K_JB4 ; @if:lo=0
    s_cmp_eq_u32 s{sWV}, 12
    v_lshrrev_b32 v8, 3, v0
    s_waitcnt vmcnt(0)
    v_and_b32 v11, 0xffff0000, v10
    v_lshlrev_b32 v10, 16, v10
    s_cbranch_scc1 K_JB3
    s_cmp_eq_u32 s{sWV}, 10
    s_cselect_b32 s{sA}, 1.0, {f32(-LOG2E)}
    s_mov_b32 s{sB2}, {f32(15.0)}
    s_cmov_b32 s{sB2}, {f32(32.0)}
    v_mul_f32 v10, s{sA}, v10
    v_mul_f32 v11, s{sA}, v11
    v_and_b32 v12, 0x7fffffff, v10
    v_and_b32 v13, 0x7fffffff, v11
    v_max_u32 v12, v12, v13
    v_and_b32 v8, 1, v8
    v_mul_i32_i24 v8, -101, v8
    v_ldexp_f32 v10, v10, v8
    v_ldexp_f32 v11, v11, v8
    v_cvt_pk_bf16_f32 v10, v10, v11
    s_lshl_b32 s{sA}, s{sWV}, 8
    v_add_u32 v4, s{sA}, v4
    ds_write_b32 v4, v10 offset:{WD - 2560}
    """)
    scan64(a, 12, "v_max_u32")
    a(f"""
    s_lshl_b32 s{sA}, s{sWV}, 2
    v_rcp_f32 v12, v12
    v_mov_b32 v4, s{sA}
    v_mul_f32 v12, s{sB2}, v12
    s_mov_b32 exec_lo, 0
    s_brev_b32 exec_hi, 1
    ds_write_b32 v4, v12 offset:{MISC + 8 - 40}
    s_mov_b64 exec, -1
    s_branch K_G
    K_JB3:
    v_mul_f32 v10, {f32(-LN2 * (1 + DELTA))}, v10
    v_mul_f32 v11, {f32(-LN2 * (1 + DELTA))}, v11
    v_and_b32 v4, 7, v0
    v_lshlrev_b32 v4, 6, v4
    v_lshl_add_u32 v4, v8, 2, v4
    ds_write_b32 v4, v10 offset:{WX}
    ds_write_b32 v4, v11 offset:{WX + 32}
    s_branch K_G
    K_JB4:
    s_cmp_eq_u32 s{sWV}, 14
    s_cbranch_scc0 K_G ; @if:w14=0
    v_lshlrev_b32 v24, 6, v0
    v_add_u32 v24, 128, v24
    s_mov_b64 exec, 3
    """)
    poll(a, "K_PP", 24, 22, True)
    a(f"""
    s_mov_b64 exec, -1
    s_branch K_G
    K_QA:
    s_waitcnt vmcnt(0)
    v_readfirstlane_b32 s{sA}, v52
    s_mov_b32 s{sQA}, 0 ; @set:w15=0
    s_and_b32 s{sA}, s{sA}, 0xffff
    s_cmp_eq_u32 s{sA}, {256 // NSH - 1}
    s_cbranch_scc0 K_QAB
    s_mov_b64 exec, 1
    v_add_u32 v52, v52, v51
    global_store_dword v50, v52, s[{sW}:{sW + 1}] offset:{128 * NSH} sc1
    s_mov_b64 exec, -1
    s_branch K_QAB
    K_OWN1:
    v_add_u32 v50, s{sNB}, v0
    v_mad_u32_u24 v50, v50, 6, v48
    v_cmp_gt_u32 vcc, s{sNV}, v0
    v_mov_b32 v51, {OOB}
    v_mov_b32 v52, 0
    v_mov_b32 v53, 0
    v_mov_b32 v54, 0
    v_mov_b32 v55, 0
    v_cndmask_b32 v50, v51, v50, vcc
    ds_read_u16_d16_hi v52, v50
    ds_read_u16_d16_hi v53, v50 offset:2
    ds_read_u16_d16_hi v54, v50 offset:4
    s_branch K_OWN1B
    K_PAD:
    s_cmp_eq_u32 s{sWV}, 14
    s_cbranch_scc1 K_QP0 ; @if:w14=1
    s_cmp_eq_u32 s{sWV}, 13
    s_cbranch_scc1 K_OWN2 ; @if:w13=1
    v_add_lshl_u32 v25, v0, s{sTOT}, 4
    v_mov_b32 v52, {N | (4 * PADN) << 16}
    v_mov_b32 v53, 0
    v_mov_b32 v54, 0
    v_mov_b32 v55, 0
    v_cndmask_b32 v25, v25, v24, {g3}
    ds_write_b128 v25, v[52:55] offset:{LIST}
    s_branch K_PADB
    K_OWN2:
    v_lshlrev_b32 v25, 4, v0
    s_mov_b32 exec_hi, 0x1fffff
    ds_write_b128 v25, v[52:55] offset:{OWN}
    s_mov_b64 exec, -1
    s_branch K_PADB
    K_QP0:
    s_mov_b32 s{sA}, {WS_SYNC + 128 * NSH}
    v_lshl_add_u32 v58, v0, 7, s{sA}
    s_mov_b64 exec, {(1 << NSH) - 1}
    global_load_dword v59, v58, s[{sW}:{sW + 1}] sc1
    s_mov_b64 exec, -1
    s_branch K_PADB
    K_QP:
    s_mov_b64 exec, {(1 << NSH) - 1}
    """)
    poll(a, "K_QPP", 58, sW, False)
    a(f"""
    v_lshrrev_b32 v59, 16, v59
    ds_or_b32 v{S}, v59 offset:{MISC + 4}
    s_mov_b64 exec, -1
    s_waitcnt lgkmcnt(0)
    s_branch K_QB
    K_NT0:
    s_waitcnt vmcnt(0)
    {rdq(0)}
    {rdq(1)}
    """)
    exit_loads("K_XB")
    a("s_branch K_POST")
    a(f"""
    K_WIN:
    s_min_u32 s{sA}, s{sEW}, s{sTS}
    v_cmp_ge_u32 vcc, s{sA}, v{vIncl}
    s_mov_b32 s{sLAST}, 0 ; @set:last=0
    s_bcnt1_i32_b64 s{sNWN}, vcc
    s_branch K_FLUSH
    K_SLIDE:
    v_mov_b32 v{S}, 0
    v_mov_b32 v{S + 1}, 0
    v_and_b32 v17, 3, v0
    v_subrev_u32 v18, s{sNW}, v17
    v_subrev_u32 v17, s{sNWN}, v17
    v_and_b32 v18, 3, v18
    v_and_b32 v17, 3, v17
    s_sub_u32 s{sA}, s{sNWN}, s{sNW}
    v_sub_u32 v17, v17, v18
    v_add_u32 v17, s{sA}, v17
    v_mul_u32_u24 v17, {OOB}, v17
    s_mov_b32 s{sNW}, s{sNWN}
    s_mov_b64 exec, s[{sP1}:{sP1 + 1}]
    """)
    for k in range(16):
        a(f"v_mov_b64 {vr(AC + 2 * k, 2)}, 0")
    a(f"""
    s_mov_b64 exec, -1
    s_cmp_lt_u32 s{sEW}, s{sTS}
    s_cbranch_scc1 K_REDO
    s_sub_u32 s{sA}, s{sNW}, s{sN0}
    s_cmp_gt_u32 s{sA}, 8
    s_cbranch_scc1 K_RESTART
    {zero4(ZE + 4)}
    {zero4(L)}
    v_sub_u32 v{vSa}, v{vSa}, v17
    v_sub_u32 v{vBS}, v{vBS}, v17
    """)
    window(a)
    a(f"""
    s_branch K_EV2
    K_REDO:
    s_sub_u32 s{sTS}, s{sTS}, 16
    K_RESTART:
    s_mov_b32 s{sN0}, s{sNW}
    """)
    ptrs(a)
    a("s_waitcnt vmcnt(0) lgkmcnt(0)")
    list_reads(a)
    a(f"""
    s_waitcnt lgkmcnt(0)
    s_branch K_XFR
    K_LOOPF:
    {loop_body('M1 Y1 M2 Y2 Fa Fb m s 0 v D V', DORD, False)}
    s_cbranch_scc1 K_LOOPF
    s_branch K_EV
    """)
    a(f"""
    K_OVF:
    v_lshrrev_b32 v49, 3, v{vT}
    v_lshlrev_b32 v50, v49, v19
    v_lshrrev_b32 v49, 5, v49
    v_lshlrev_b32 v49, 2, v49
    s_mov_b64 exec, vcc
    ds_or_b32 v49, v50 offset:{CNT + 208}
    s_mov_b64 exec, -1
    s_branch K_OVFB
    K_MASK:
    """)
    for k in range(4):
        a(f"v_readlane_b32 s{sMK + k}, v49, {52 + k}")
    a(f"""
    v_cmp_gt_u32 vcc, 52, v0
    s_mov_b32 s{sRARE}, 1
    s_nop 0
    v_cndmask_b32 v49, 0, v49, vcc
    s_branch K_MASKB
    K_SHRINK:
    s_movk_i32 s{sWID}, {CAP // 4}
    s_mov_b32 s{sLO}, 0
    s_mov_b32 s{sRARE}, 1
    s_branch K_ROUND
    K_NEXT:
    s_add_u32 s{sLO}, s{sLO}, s{sWID}
    s_cmp_lt_u32 s{sWID}, 1024
    s_cselect_b32 s{sA}, s{sLO}, 1024
    s_cmp_lt_u32 s{sA}, 1000
    s_cbranch_scc1 K_ROUND
    s_mov_b32 s{sLO}, 0
    s_movk_i32 s{sWID}, 1024
    s_ff1_i32_b64 s{sSRC}, s[{sMK}:{sMK + 1}]
    s_cmp_lt_i32 s{sSRC}, 0
    s_cbranch_scc1 K_NEXT2
    s_bitset0_b64 s[{sMK}:{sMK + 1}], s{sSRC}
    s_branch K_ROUND
    K_NEXT2:
    s_ff1_i32_b64 s{sSRC}, s[{sMK + 2}:{sMK + 3}]
    s_cmp_lt_i32 s{sSRC}, 0
    s_cbranch_scc0 K_NEXT3
    s_cmp_lg_u32 s{sD}, 0
    s_cbranch_scc1 K_S1
    s_branch K_S0
    K_NEXT3:
    s_bitset0_b64 s[{sMK + 2}:{sMK + 3}], s{sSRC}
    s_add_u32 s{sSRC}, s{sSRC}, 64
    K_ROUND:
    s_load_dwordx2 s[6:7], s[0:1], 8
    s_load_dwordx4 s[8:11], s[0:1], 16
    s_load_dwordx2 s[12:13], s[0:1], 32
    s_lshl_b32 s{sA}, s{sWV}, 6
    v_add_u32 v{vT}, s{sA}, v0
    v_lshlrev_b32 v19, 4, v{vT}
    s_mov_b32 s{sQA}, 0 ; @set:nt=x
    s_waitcnt vmcnt(0) lgkmcnt(0)
    s_barrier
    """)
    zero_init(a, (PAC - MR - 16384) // 16)
    pos_dma(a, "K_PR")
    rec_addr(a)
    a(f"""
    s_cmp_ge_i32 s{sSRC}, 0
    s_cbranch_scc1 K_RAW
    """)
    rec_load(a)
    a(f"""
    s_waitcnt vmcnt(0)
    v_and_b32 v{vDL}, 0xbfbfbfbf, v{vDL}
    s_branch K_RANGE
    K_RAW:
    s_cmp_ge_u32 s{sWV}, 13
    s_cbranch_scc1 K_RANGE
    s_mul_i32 s{sA}, s{sSRC}, 12800
    v_cmp_gt_u32 vcc, 800, v{vT}
    v_add_u32 v28, s{sA}, v19
    v_lshrrev_b32 v29, 1, v28
    s_mov_b64 exec, vcc
    global_load_dwordx4 v[32:35], v28, s[12:13]
    global_load_dwordx4 {vr(W, 4)}, v28, s[10:11]
    global_load_dwordx2 v[36:37], v29, s[8:9]
    s_mov_b32 s{sA}, 342393
    s_mov_b32 s{sB2}, 0xffff0000
    v_mov_b32 v38, 0xbf
    s_waitcnt vmcnt(0)
    """)
    for j in range(4):
        a(f"""
        v_mul_u32_u24 v{32 + j}, s{sA}, v{32 + j}
        v_lshrrev_b32 v39, 24, v{32 + j}
        v_cmp_eq_u32 vcc, s{sB}, v39
        v_mul_hi_u32_u24 v{32 + j}, 12544, v{32 + j}
        """)
        if j & 1:
            a(f"v_and_or_b32 v{W + j}, v{36 + j // 2}, s{sB2}, v{W + j}")
        else:
            a(f"v_lshl_or_b32 v{W + j}, v{36 + j // 2}, 16, v{W + j}")
        a(f"v_cndmask_b32 v{32 + j}, v38, v{32 + j}, vcc")
    a(f"""
    v_lshl_or_b32 v32, v33, 8, v32
    v_lshl_or_b32 v34, v35, 8, v34
    v_lshl_or_b32 v{vDL}, v34, 16, v32
    s_mov_b64 exec, -1
    K_RANGE:
    v_subrev_u32 v28, s{sLO}, v{vT}
    v_cmp_gt_u32 vcc, s{sWID}, v28
    v_mov_b32 v28, 0xbfbfbfbf
    s_waitcnt lgkmcnt(0)
    v_cndmask_b32 v{vDL}, v28, v{vDL}, vcc
    s_barrier
    s_branch K_B0
    """)
    return a.text()
```

```python
import re
import sys

TRANS = ("v_exp_", "v_log_", "v_rcp_", "v_rsq_", "v_sqrt_", "v_sin_", "v_cos_")


def regs_of(tok):
    tok = tok.strip()
    neg = tok.startswith("-")
    if neg:
        tok = tok[1:]
    m = re.fullmatch(r"(?:abs|sext)\((.*)\)", tok)
    if m:
        tok = m.group(1)
    m = re.fullmatch(r"\|(.*)\|", tok)
    if m:
        tok = m.group(1)
    m = re.fullmatch(r"([vsa])\[(\d+):(\d+)\]", tok)
    if m:
        return [f"{m.group(1)}{i}" for i in range(int(m.group(2)), int(m.group(3)) + 1)]
    m = re.fullmatch(r"([vsa])(\d+)", tok)
    if m:
        return [tok]
    if tok == "vcc":
        return ["vcc"]
    if tok in ("vcc_lo", "vcc_hi"):
        return ["vcc"]
    if tok in ("exec", "exec_lo", "exec_hi"):
        return ["exec"]
    if tok == "m0":
        return ["m0"]
    return []


class Ins:
    def __init__(self, text, lineno):
        self.lineno = lineno
        self.text = text
        code, _, com = text.partition(";")
        self.tags_w = re.findall(r"@w:(\w+)", com)
        self.tags_r = re.findall(r"@r:(\w+)", com)
        self.sets = re.findall(r"@set:(\w+)=(\w+)", com)
        self.cond = re.findall(r"@if:(\w+)=(\d)", com)
        code = code.strip()
        parts = code.split(None, 1)
        self.op = parts[0]
        rest = parts[1] if len(parts) > 1 else ""
        ops = []
        depth = 0
        cur = ""
        for ch in rest:
            if ch == "[":
                depth += 1
            if ch == "]":
                depth -= 1
            if ch == "," and depth == 0:
                ops.append(cur.strip())
                cur = ""
            else:
                cur += ch
        if cur.strip():
            ops.append(cur.strip())
        self.mods = ""
        if ops:
            last = ops[-1].split(None, 1)
            ops[-1] = last[0]
            self.mods = last[1] if len(last) > 1 else ""
        self.ops = ops
        self.classify()

    def classify(self):
        op, ops = self.op, self.ops
        R = [regs_of(o) for o in ops]
        self.kind = "other"
        self.dst, self.src = [], []
        self.srcC = []
        self.lanesel = []
        self.ws = 1
        self.target = None
        flat = lambda L: [x for l in L for x in l]
        if op == "s_nop":
            self.ws = int(ops[0], 0) + 1
            self.kind = "nop"
        elif op.startswith("v_mfma"):
            self.kind = "mfma"
            self.dst = R[0]
            self.src = R[1] + R[2] + R[3]
            self.srcAB = R[1] + R[2]
            self.srcC = R[3]
            self.passes = 8 if "32x32" in op else 4
        elif op.startswith("v_smfmac"):
            self.kind = "mfma"
            self.dst = R[0]
            self.src = R[0] + R[1] + R[2] + R[3]
            self.srcAB = R[1] + R[2] + R[3]
            self.srcC = R[0]
            self.passes = 4
        elif op.startswith("v_cmp"):
            self.kind = "valu"
            self.dst = R[0] + (["exec"] if op.startswith("v_cmpx") else [])
            self.src = flat(R[1:])
        elif op in ("v_readlane_b32", "v_readfirstlane_b32"):
            self.kind = "valu"
            self.dst = R[0]
            self.src = flat(R[1:])
            if op == "v_readlane_b32":
                self.lanesel = R[2]
        elif op == "v_writelane_b32":
            self.kind = "valu"
            self.dst = R[0]
            self.src = flat(R)
            self.lanesel = R[2]
        elif op.startswith("v_"):
            self.kind = "valu"
            self.dst = R[0]
            self.src = flat(R[1:])
            if "_co_" in op or op.startswith("v_mad_u64"):
                self.dst = R[0] + R[1]
                self.src = flat(R[2:])
            if op.startswith(("v_fmac", "v_pk_fmac", "v_dot2c")) or "_dpp" in op or "row_" in self.mods or "quad_perm" in self.mods:
                self.src = self.src + R[0]
            if "UNUSED_PRESERVE" in self.mods:
                self.src = self.src + R[0]
            if op.startswith("v_permlane") or op.startswith("v_swap"):
                self.dst = R[0] + R[1]
                self.src = R[0] + R[1]
        elif op.startswith("ds_"):
            self.kind = "ds"
            if op.startswith(("ds_read", "ds_bpermute", "ds_permute", "ds_swizzle")) or "_rtn" in op:
                self.dst = R[0]
                self.src = flat(R[1:])
                if "d16" in op:
                    self.partial = True
            else:
                self.src = flat(R)
        elif op.startswith(("buffer_", "global_")):
            self.kind = "vm"
            if " lds" in " " + self.mods:
                self.src = flat(R) + ["m0"]
                self.isdma = True
            elif "_load" in op:
                self.dst = R[0]
                self.src = flat(R[1:])
            else:
                self.src = flat(R)
                self.stdata = R[0] if op.startswith("buffer_") else R[1]
                if "atomic" in op and "sc0" in self.mods:
                    self.dst = R[0]
                    self.src = flat(R[1:])
        elif op.startswith(("s_load", "s_memtime", "s_memrealtime", "s_buffer_load")):
            self.kind = "smem"
            self.dst = R[0]
            self.src = flat(R[1:])
        elif op == "s_waitcnt":
            self.kind = "wait"
            t = " ".join(ops) + " " + self.mods
            m = re.search(r"vmcnt\((\d+)\)", t)
            self.vm = int(m.group(1)) if m else None
            m = re.search(r"lgkmcnt\((\d+)\)", t)
            self.lg = int(m.group(1)) if m else None
        elif op.startswith("s_cbranch") or op == "s_branch":
            self.kind = "branch"
            self.target = ops[0]
            if "vcc" in op:
                self.src = ["vcc"]
            if "exec" in op:
                self.src = ["exec"]
        elif op == "s_endpgm":
            self.kind = "end"
        elif op.startswith("s_cmp") or op.startswith("s_bitcmp"):
            self.kind = "salu"
            self.src = flat(R)
        elif op in ("s_barrier", "s_setprio", "s_sleep", "s_setreg_imm32_b32"):
            self.kind = "other"
        elif op.startswith("s_"):
            self.kind = "salu"
            self.dst = R[0] + (["exec"] if "saveexec" in op else [])
            self.src = flat(R[1:])
            if op in ("s_addk_i32", "s_mulk_i32", "s_bitset0_b32", "s_bitset1_b32", "s_bitset0_b64", "s_cmov_b32", "s_cmovk_i32"):
                self.src = self.src + R[0]
        else:
            raise ValueError(f"unknown op {op} line {self.lineno}")
        self.trans = op.startswith(TRANS)
        self.dpp = self.kind == "valu" and ("_dpp" in op or "row_" in self.mods or "quad_perm" in self.mods)
        self.dot = op.startswith("v_dot")
        m = re.search(r"dst_sel:(\w+)", self.mods)
        self.movesbits = bool(m and m.group(1) != "DWORD")
        m = re.search(r"op_sel:\[([\d,]+)\]", self.mods)
        if m and not op.startswith("v_pk_") and not self.dot and self.kind == "valu":
            bits = m.group(1).split(",")
            if len(bits) == len(self.ops) and bits[-1] == "1":
                self.movesbits = True


def parse(text):
    ins, labels = [], {}
    for n, line in enumerate(text.split("\n"), 1):
        s = line.strip()
        if not s or s.startswith((";", ".", "//")):
            continue
        m = re.fullmatch(r"([\w.$]+):\s*(;.*)?", s)
        if m:
            labels[m.group(1)] = len(ins)
            continue
        ins.append(Ins(s, n))
    return ins, labels


def succs(ins, labels, i):
    x = ins[i]
    if x.kind == "end":
        return []
    if x.kind == "branch":
        t = labels[x.target]
        return [t] if x.op == "s_branch" else [t, i + 1]
    return [i + 1] if i + 1 < len(ins) else []


def need(p, c):
    n = 0
    pd = set(p.dst)
    ov = lambda a, b: bool(set(a) & set(b))
    if p.kind == "valu":
        vd = {r for r in pd if r[0] in "va" and r != "vcc"}
        sd = {r for r in pd if r[0] == "s" or r == "vcc"}
        if c.kind == "mfma" and ov(vd, c.src):
            n = max(n, 3 if p.dot else 2)
        if c.kind == "mfma" and "exec" in pd:
            n = max(n, 4)
        if c.kind == "valu":
            if p.trans and not c.trans and ov(vd, c.src):
                n = max(n, 1)
            if p.movesbits and ov(vd, c.src + c.dst):
                n = max(n, 1)
            if c.op in ("v_readlane_b32", "v_readfirstlane_b32") and ov(vd, c.src):
                n = max(n, 1)
            if (c.dpp or c.op.startswith("v_permlane")) and ov(vd, c.src):
                n = max(n, 2)
            if ov(sd, c.src):
                n = max(n, 2)
            if ov(sd, c.lanesel):
                n = max(n, 4)
            if "exec" in pd and c.dpp:
                n = max(n, 5)
            if "exec" in pd and c.op.startswith(("v_readlane", "v_readfirstlane", "v_writelane", "v_permlane")):
                n = max(n, 4)
            if p.dot and ov(vd, c.src + c.dst):
                same = c.op == p.op and not ov(vd, regs_of(c.ops[1]) + regs_of(c.ops[2]))
                n = max(n, 0 if same else 3)
        if p.dot and c.kind in ("ds", "vm") and ov(vd, c.src + c.dst):
            n = max(n, 3)
        if c.kind == "vm" and ov(sd, c.src):
            n = max(n, 5)
        if c.kind in ("vm", "ds") and "exec" in pd:
            n = max(n, 5)
        if c.kind in ("salu", "branch", "smem") and ov(sd, c.src):
            n = max(n, 0)
    if p.kind in ("ds", "vm") and c.dpp and ov(pd, c.src):
        n = max(n, 0)
    if p.kind == "mfma":
        big = {4: 8, 8: 12}[p.passes]
        if c.kind == "mfma":
            if ov(pd, c.srcAB):
                n = max(n, big)
            if ov(pd, c.srcC):
                if not (c.srcC == p.dst and c.op == p.op):
                    n = max(n, {4: 8, 8: 12}[p.passes])
            elif ov(pd, c.dst):
                n = max(n, {4: 6, 8: 10}[p.passes])
        elif c.kind in ("valu", "ds", "vm"):
            if ov(pd, c.src + c.dst):
                n = max(n, big)
            if c.kind == "valu" and ov(p.srcC, c.dst):
                n = max(n, {4: 3, 8: 7}[p.passes])
    if p.kind == "salu" and "m0" in pd and c.kind == "vm" and getattr(c, "isdma", False):
        n = max(n, 1)
    if p.kind == "vm" and hasattr(p, "stdata") and len(p.stdata) >= 3 and ov(p.stdata, c.dst):
        n = max(n, 2 if c.kind in ("valu", "mfma") else 1)
    return n


def check_hazards(ins, labels):
    errs = []
    for i, p in enumerate(ins):
        if p.kind not in ("valu", "mfma", "salu", "vm"):
            continue
        stack = [(j, 0) for j in succs(ins, labels, i)]
        seen = {}
        while stack:
            j, d = stack.pop()
            if d >= 13 or seen.get(j, 99) <= d:
                continue
            seen[j] = d
            c = ins[j]
            k = need(p, c)
            if k > d:
                errs.append(f"hazard: line {p.lineno} `{p.text}` -> line {c.lineno} `{c.text}` need {k} have {d}")
            for q in succs(ins, labels, j):
                stack.append((q, d + c.ws))
    return errs


def check_waits(ins, labels, entry):
    errs = set()
    seen = set()
    stack = [(entry, (), (), (), ())]
    steps = 0
    while stack:
        i, vm, lg, sm, fl = stack.pop()
        key = (i, vm, lg, sm, fl)
        if key in seen:
            continue
        seen.add(key)
        steps += 1
        if steps > 3000000:
            errs.add("wait check: state limit reached")
            break
        x = ins[i]
        reads = set(x.src) | {"@" + t for t in x.tags_r}
        writes = set(x.dst) | {"@" + t for t in x.tags_w}
        for q, name in ((vm, "vm"), (lg, "lgkm"), (sm, "smem")):
            for j in q:
                o = ins[j]
                od = set(o.dst) | {"@" + t for t in o.tags_w}
                ord_ = {"@" + t for t in o.tags_r}
                samecls = (name == "vm" and x.kind == "vm") or (name == "lgkm" and x.kind == "ds")
                bad = od & reads
                if samecls and name == "lgkm":
                    bad = {r for r in bad if not r.startswith("@")}
                if not samecls:
                    bad = bad | (od & writes) | (ord_ & writes)
                if bad:
                    errs.add(f"wait: line {x.lineno} `{x.text}` uses {sorted(bad)} pending from line {o.lineno} `{o.text}` ({name})")
        if x.kind == "vm":
            vm = (vm + (i,))[-64:]
        elif x.kind == "ds":
            lg = (lg + (i,))[-40:]
        elif x.kind == "smem":
            sm = sm + (i,)
        elif x.kind == "wait":
            if x.vm is not None:
                vm = vm[len(vm) - x.vm:] if x.vm < len(vm) else vm
                if x.vm == 0:
                    vm = ()
            if x.lg is not None:
                if x.lg == 0:
                    lg, sm = (), ()
                elif not sm:
                    lg = lg[len(lg) - x.lg:] if x.lg < len(lg) else lg
                if x.lg > 15:
                    errs.add(f"lgkmcnt > 15 at line {x.lineno}")
        elif x.op == "s_barrier":
            for j in lg:
                o = ins[j]
                if not o.dst or "_rtn" in o.op:
                    if "nobar" not in o.text:
                        errs.add(f"barrier line {x.lineno}: LDS write pending from line {o.lineno} `{o.text}`")
        d = dict(fl)
        for k, v in x.sets:
            d.pop(k, None)
            if v != "x":
                d[k] = int(v)
        for n, q in enumerate(succs(ins, labels, i)):
            e = dict(d)
            ok = True
            for k, v in x.cond:
                want = int(v) if n == 0 else 1 - int(v)
                ok &= e.setdefault(k, want) == want
            ok &= sum(e.get(k, 0) for k in ("lo", "w13", "w14", "w15")) <= 1
            if ok:
                stack.append((q, vm, lg, sm, tuple(sorted(e.items()))))
    return sorted(errs)


def lint(text, entries):
    ins, labels = parse(text)
    errs = check_hazards(ins, labels)
    for e in entries:
        errs += check_waits(ins, labels, labels[e])
    return errs


if __name__ == "__main__":
    t = open(sys.argv[1]).read()
    for e in lint(t, sys.argv[2:]):
        print(e)
```

```python
import os
import re
import sys

sys.path.insert(0, os.path.dirname(os.path.abspath(__file__)))
from common import *
from fk import gen_kernel
from lint import lint

KD = """.amdhsa_kernel {name}
  .amdhsa_next_free_vgpr {vgpr}
  .amdhsa_next_free_sgpr 102
  .amdhsa_accum_offset {vgpr}
  .amdhsa_group_segment_fixed_size 0
  .amdhsa_kernarg_size 88
  .amdhsa_user_sgpr_count 2
  .amdhsa_user_sgpr_kernarg_segment_ptr 1
  .amdhsa_system_sgpr_workgroup_id_x 1
.end_amdhsa_kernel
"""


def build(cfg):
    ref = open(f"cdna_kernels/{NAME}.s.ref").read().split("\n")
    head = [l for l in ref if l.startswith(";") and "@launch" not in l]
    s = "\n".join(head) + "\n"
    bodies = [(KN, gen_kernel(cfg))]
    if cfg.get("echo"):
        from echo import echo_kernel
        s += f"; @launch kernel={KN} grid=(256,1,1) block=(1024,1,1) lds=163840\n"
        s += "; @launch kernel=egnn_echo_kernel grid=(1,1,1) block=(64,1,1) lds=0\n"
        bodies.append(("egnn_echo_kernel", echo_kernel(cfg["echo"])))
    else:
        s += "; @launch grid=(256,1,1) block=(1024,1,1) lds=163840\n"
    s += '.amdgcn_target "amdgcn-amd-amdhsa--gfx950"\n.text\n'
    for k, b in bodies:
        s += f".globl {k}\n.p2align 8\n.type {k},@function\n{k}:\n{b}"
    s += '.section .rodata,"a"\n'
    for k, _ in bodies:
        s += ".p2align 6\n" + KD.format(name=k, vgpr=128)
    errs = lint(re.sub(r's_mem(real)?time.*', 's_nop 0', s), [KN])
    return s, errs


if __name__ == "__main__":
    cfg = {}
    out = "new.s"
    for arg in sys.argv[1:]:
        if "=" in arg:
            k, v = arg.split("=", 1)
            cfg[k] = int(v) if re.fullmatch(r"-?\d+", v) else v
        else:
            out = arg
    s, errs = build(cfg)
    for e in errs[:40]:
        print(e)
    open(out, "w").write(s)
    print("wrote", out, len(s), "bytes;", len(errs), "lint messages")
```

```python
from common import *

CAP = 2016
CNT, LUT = 0, 256
MR, MST = 8448, 288
SEL = MR + 64 * MST
PAC = SEL + 49 * 32
MISC = PAC + 52 * 16
OH = MISC + 16
WD, WX, FAKE = OH + 1024, OH + 1536, OH + 2048
OWN = OH + 2560
LIST = OWN + 53 * 16
WTP = HT2 = QTB = 32768
QTA = 46336
POSL = RING = OT = WS1 = 73984
PB = WS2 = WS1 + 32768
CNTP = OH
HT = PB + 40960
PT = 163840 - 49 * 288
OST = QST = 272
PADN = 52
FP, FQ = WS_SYNC, WS_SYNC + 8192
SPIN = 1 << 18
assert LIST + (CAP + 48) * 16 <= LUT + 65536 and POSL + 75008 <= PT and LIST <= WTP and HT % 256 == 0 and HT + 13312 <= 163840

sWV = 3
sW, sH, sO, sR, sMK = 24, 28, 32, 36, 40
sB, sNB, sNV, sRARE, sQW, sSRC, sLO, sWID = 44, 45, 46, 47, 48, 49, 50, 51
sTOT, sTS, sWT, sWEND, sN0, sNW, sEW, sEV = 52, 53, 54, 55, 56, 57, 58, 59
sNF, sNL, sMODE, sNWN, sC000, s128, s256, s192, sLAST = 60, 61, 62, 63, 64, 65, 66, 68, 69
sM0, sG3 = 70, 74
sT, sQA, sQS = sO, sLAST, sTOT
sA, sB2, sC, sD = 76, 77, 78, 79
sP0, sP1, sP2, sP3, sP4 = 80, 82, 84, 86, 88
vRing, vLc, vMul, vIncl, vVoff = 1, 2, 3, 4, 5
vBX, vBS, vIX, vIS, vDa, vEa = 6, 7, 8, 9, 10, 11
vXa, vSa, vD, vDE, vIdx = 12, 13, 14, 15, 16
ZE, ZL, T, L, R, S, A, B, AC, Y = 20, 28, 32, 36, 40, 42, 44, 60, 84, 120
vFa, vG0, vG1 = 116, 117, 118
vDL, vT, W = 17, 18, 20
g3 = sr(sG3, 2)

PAT = "M1 h E Y1 E M2 E Y2 E 0 X X X X m P P P R s R l P P P v D V"
DORD = "SqxdL"
QF = os.environ.get("QF", "")


def dma(kc):
    soff = ["0", "64", f"s{s128}", f"s{s192}"][kc]
    return [f"s_mov_b32 m0, s{sM0 + kc}",
            f"buffer_load_dwordx4 v{vVoff}, s[{sW}:{sW + 3}], {soff} offen {QF}lds ; @w:ring{kc}"]


def rdq(kc, d=None):
    d = A + 2 + 6 * (kc & 1) if d is None else d
    return f"ds_read_b128 {vr(d, 4)}, v{vRing} offset:{1024 * kc} ; @r:ring{kc}"


def Kmf(u, z):
    a0 = A + 6 * ((u // 2) % 2) + (4 if u & 1 else 0)
    b0 = B + 6 * (u // 2) + (2 if u & 1 else 0)
    return f"v_mfma_f32_16x16x32_bf16 {vr(z, 4)}, {vr(a0, 4)}, {vr(b0, 4)}, 0"


def Ymf(u, b):
    return f"v_smfmac_f32_16x16x32_bf16 {vr(AC + 4 * u, 4)}, {vr(S, 2)}, {vr(b, 4)}, v{vIdx}"


def zero4(d):
    return f"v_mfma_f32_16x16x16_bf16 {vr(d, 4)}, {vr(S, 2)}, {vr(S, 2)}, 0"


def mf32(d, x, y, first=False):
    return f"v_mfma_f32_16x16x32_bf16 {vr(d, 4)}, {vr(x, 4)}, {vr(y, 4)}, {'0' if first else vr(d, 4)}"


def loop_body(pat, dord, lut):
    seq = []
    I = lambda t, tag=None: seq.append(("i", t, tag))
    NEED = lambda tag: seq.append(("n", tag, None))
    pk1 = lambda r: f"v_pk_add_f32 {vr(r, 2)}, {vr(r, 2)}, 1.0 op_sel_hi:[1,0]"
    for j in range(4):
        z, zn = ZE + 4 * (j & 1), ZE + 4 * ((j + 1) & 1)
        e = [f"v_exp_f32 v{T + (k ^ 2)}, v{z + k}" for k in range(4)]
        p = [pk1(T + 2),
             f"v_pk_fma_f32 {vr(R, 2)}, {vr(T + 2, 2)}, {vr(T, 2)}, {vr(T + 2, 2)}",
             f"v_pk_fma_f32 {vr(T, 2)}, {vr(z, 2)}, {vr(T, 2)}, {vr(z, 2)}",
             f"v_pk_mul_f32 {vr(T + 2, 2)}, {vr(z + 2, 2)}, {vr(T + 2, 2)}",
             f"v_pk_mul_f32 {vr(z, 2)}, {vr(T, 2)}, {vr(R, 2)}",
             f"v_pk_mul_f32 {vr(z + 2, 2)}, {vr(T + 2, 2)}, {vr(R, 2)}"]
        r = [f"v_rcp_f32 v{R}, v{R}", f"v_rcp_f32 v{R + 1}, v{R + 1}"]
        ix = [f"v_lshlrev_b32_sdwa v{ZL + k}, 1, v{ZL + k} {SD} src1_sel:WORD_1" for k in range(4)]
        d = dma((j + 1) % 4)
        for tok in pat.split():
            if tok == "M1":
                if j < 2:
                    NEED(f"x{j + 1}")
                I(Kmf(2 * j + 1, ZL))
            elif tok == "M2":
                NEED(f"q{(j + 1) % 4}")
                if j == 3:
                    NEED("x0")
                I(Kmf((2 * j + 2) % 8, zn))
            elif tok == "Y1":
                if j == 1:
                    NEED("S")
                I(Ymf((2 * j - 2) % 8, zn))
            elif tok == "Y2":
                if lut:
                    NEED("L")
                I(Ymf((2 * j - 1) % 8, L))
            elif tok == "E":
                I(e.pop(0))
            elif tok == "P":
                I(p.pop(0))
            elif tok == "R":
                I(r.pop(0))
            elif tok == "X":
                I(ix.pop(0))
            elif tok in ("Fa", "Fb"):
                src, dst = (z, z) if tok == "Fa" else (ZL, L)
                if tok == "Fb":
                    for k in range(4):
                        I(f"v_mul_f32 v{ZL + k}, {f32(2.0 ** 101)}, v{ZL + k}")
                for k in range(4):
                    I(f"v_exp_f32 v{T + k}, v{src + k}")
                I(pk1(T))
                I(pk1(T + 2))
                for k in range(4):
                    I(f"v_rcp_f32 v{T + k}, v{T + k}")
                for k in (0, 2):
                    I(f"v_pk_mul_f32 {vr(dst + k, 2)}, {vr(T + k, 2)}, {vr(src + k, 2)}")
            elif tok == "m":
                if j == 0:
                    NEED("dE")
                    I(f"v_mad_u32_u16 v{vXa}, v{vDE}, v{vMul}, v{vBX} op_sel:[1,0,0,0]")
                elif j == 1:
                    I(f"v_mad_u32_u16 v{vSa}, v{vD}, s{sC000}, v{vBS} op_sel:[1,0,0,0]")
                elif j == 2:
                    I(f"v_lshl_add_u64 v[{vDa}:{vEa}], v[{vDa}:{vEa}], 0, s[{s256}:{s256 + 1}]")
                    I(f"v_lshl_add_u64 v[{vBX}:{vBS}], v[{vBX}:{vBS}], 0, v[{vIX}:{vIS}]")
                else:
                    NEED("dD")
                    I(f"v_mad_u32_u16 v{vVoff}, v{vD}, s{s256}, v{vLc}")
            elif tok == "s":
                if j == 2:
                    I(f"s_add_u32 s{sTS}, s{sTS}, 16")
                if j == 3:
                    I(f"s_cmp_lt_i32 s{sTS}, s{sEV}")
            elif tok == "l":
                I("s_setprio 0")
            elif tok == "h":
                I("s_setprio 1")
            elif tok == "0":
                I(d[0])
            elif tok == "v":
                I("s_waitcnt vmcnt(2)")
            elif tok == "V":
                I(d[1])
            elif tok == "D":
                for c in dord:
                    if c == "S" and j == 0:
                        I(f"ds_read_b64_tr_b16 {vr(S, 2)}, v{vSa}", "S")
                    if c == "q":
                        I(rdq((j + 2) % 4), f"q{(j + 2) % 4}")
                    if c == "x" and j:
                        I(f"ds_read_b64 {vr(A + 6 * (j - 1), 2)}, v{vXa}", f"x{j - 1}")
                    if c == "d" and j == 1:
                        I(f"ds_read_b32 v{vD}, v{vDa}", "dD")
                    if c == "d" and j == 3:
                        I(f"ds_read_b32 v{vDE}, v{vEa}", "dE")
                    if c == "L" and lut:
                        for k in range(4):
                            I(f"ds_read_u16_d16_hi v{L + k}, v{ZL + k} offset:{LUT}", "L")
            else:
                raise ValueError(tok)
    q, out = [], []
    for rep in range(2):
        out = []
        for k, t, tag in seq:
            if k == "i":
                out.append(t)
                if t.startswith("ds_"):
                    q.append(tag)
            elif t in q:
                n = q[::-1].index(t)
                out.append(f"s_waitcnt lgkmcnt({n})")
                q = q[len(q) - n:]
    return "\n".join(out)


def ptrs(a):
    a(f"""
    s_lshl_b32 s{sA}, s{sTS}, 4
    s_add_u32 s{sA}, s{sA}, {LIST}
    v_and_b32 v18, -4, v0
    v_and_b32 v19, 15, v0
    v_lshl_add_u32 v{vDa}, v18, 2, s{sA}
    v_lshl_add_u32 v{vEa}, v19, 4, s{sA}
    s_cmp_lt_u32 s{sTS}, s{sWT}
    s_cselect_b64 s[{sP0}:{sP0 + 1}], -1, 0
    s_add_u32 s{sB2}, s{sTS}, 16
    s_cmp_lt_u32 s{sB2}, s{sWT}
    s_cselect_b64 s[{sP1}:{sP1 + 1}], -1, 0
    v_add_u32 v19, 256, v{vDa}
    v_cndmask_b32 v18, v{vFa}, v{vDa}, s[{sP0}:{sP0 + 1}]
    v_cndmask_b32 v19, v{vFa}, v19, s[{sP1}:{sP1 + 1}]
    """)


def list_reads(a):
    a(f"""
    ds_read_b32 v{vSa}, v18
    ds_read_b32 v{vD}, v19
    ds_read_b32 v{vXa}, v{vEa}
    ds_read_b32 v{vDE}, v{vEa} offset:256
    """)


def window(a):
    a(f"""
    s_add_u32 s{sA}, s{sNW}, 3
    v_readlane_b32 s{sEW}, v{vIncl}, s{sA}
    s_sub_u32 s{sB2}, s{sWT}, 32
    s_cmp_ge_u32 s{sEW}, s{sWEND}
    s_cselect_b32 s{sEW}, 0x7fffffff, s{sEW}
    s_sub_u32 s{sA}, s{sEW}, 15
    s_min_i32 s{sEV}, s{sA}, s{sB2}
    """)


def zero_init(a, n2):
    a(f"""
    v_mov_b32 v24, 0
    v_mov_b32 v25, 0
    v_mov_b32 v26, 0
    v_mov_b32 v27, 0
    v_cmp_gt_u32 vcc, {n2}, v{vT}
    ds_write_b128 v19, v[24:27] offset:{MR}
    v_lshlrev_b32 v28, 2, v0
    ds_write_b32 v28, v24 offset:{CNT}
    s_mov_b64 exec, vcc
    ds_write_b128 v19, v[24:27] offset:{MR + 16384}
    s_mov_b64 exec, -1
    """)


def rec_addr(a, r):
    a(f"""
    s_movk_i32 s{sB2}, 96
    s_mov_b32 vcc_lo, 0xc0c0c0c0
    s_mov_b32 vcc_hi, 0xc0c0c0c0
    v_lshrrev_b32 v{r}, 3, v{vT}
    v_lshlrev_b32 v{r + 1}, 2, v{vT}
    v_mad_u32_u24 v{r + 1}, v{r}, s{sB2}, v{r + 1}
    v_mul_i32_i24 v{r}, -96, v{r}
    v_add_u32 v{r}, {16000 - 128}, v{r}
    v_cndmask_b32 v{r}, 0, v{r}, vcc
    v_add_u32 v{r}, v{r}, v19
    v_cmp_gt_u32 vcc, 1000, v{vT}
    v_mov_b32 v{vDL}, 0xbfbfbfbf
    """)


def rec_load(a, r):
    a(f"""
    s_mov_b64 exec, vcc
    global_load_dword v{vDL}, v{r + 1}, s[{sR}:{sR + 1}] sc1
    global_load_dwordx4 {vr(W, 4)}, v{r}, s[{sR}:{sR + 1}] offset:32 sc1
    s_mov_b64 exec, -1
    """)


def pos_dma(a, tag, alt=None):
    srd(a, sT, 6, 75000)
    a(f"""
    s_cmp_ge_u32 s{sWV}, 10
    v_lshlrev_b32 v58, 4, v0
    s_cbranch_scc1 {alt or tag + '_E'}
    s_lshl_b32 s{sA}, s{sWV}, 13
    s_add_u32 m0, s{sA}, {POSL}
    s_cmp_eq_u32 s{sWV}, 9
    buffer_load_dwordx4 v58, s[{sT}:{sT + 3}], s{sA} offen lds
    s_cselect_b64 exec, 0xffff, -1
    buffer_load_dwordx4 v58, s[{sT}:{sT + 3}], s{sA} offen offset:1024 lds
    s_mov_b64 exec, -1
    s_cbranch_scc1 {tag}_E
    buffer_load_dwordx4 v58, s[{sT}:{sT + 3}], s{sA} offen offset:2048 lds
    buffer_load_dwordx4 v58, s[{sT}:{sT + 3}], s{sA} offen offset:3072 lds
    s_add_u32 m0, m0, 4096
    s_add_u32 s{sA}, s{sA}, 4096
    """)
    for i in range(4):
        a(f"buffer_load_dwordx4 v58, s[{sT}:{sT + 3}], s{sA} offen offset:{1024 * i} lds")
    a(f"{tag}_E:")


def poll(a, tag, ld, red, v, first=True):
    a(f"""
    s_mov_b32 s{sA}, {SPIN}
    {ld if first else ''}
    {tag}:
    s_waitcnt vmcnt(0)
    {red}
    v_cmp_eq_u32 vcc, 0, v{v}
    s_sub_u32 s{sA}, s{sA}, 1
    s_cbranch_vccz {tag}_E
    {ld}
    s_cbranch_scc0 {tag}
    s_waitcnt vmcnt(0)
    {tag}_E:
    """)


def poll128(a, tag, off, r):
    a(f"s_mov_b32 s{sA}, {off + 4096}\nv_lshl_add_u32 v{r}, v0, 6, s{sA}")
    ld = "\n".join(f"global_load_dword v{r + 1 + i}, v{r}, s[{sW}:{sW + 1}] offset:{4096 * (i - 1)} sc1" for i in range(2))
    poll(a, tag, ld, f"v_min_u32 v{r + 3}, v{r + 1}, v{r + 2}", r + 3)


def big_test(a, acc, lab):
    for k in range(4):
        p = vr(acc + 2 * k, 2)
        a(f"v_pk_mul_f32 v[36:37], {p}, {p}" if k == 0 else f"v_pk_fma_f32 v[36:37], {p}, {p}, v[36:37]")
    a(f"""
    v_add_f32 v36, v36, v37
    v_cmp_ngt_f32 vcc, {f32(64 * LN2 * LN2)}, v36
    s_cbranch_vccnz {lab}
    {lab}B:
    """)


def scale_store(a, acc, tmp, va, off=0):
    for t in range(2):
        for k in (0, 2):
            a(f"v_pk_mul_f32 {vr(tmp + 4 * t + k, 2)}, {vr(acc + 4 * t + k, 2)}, s[{sP0}:{sP0 + 1}] op_sel_hi:[1,0]")
        a(f"""
        v_cvt_pk_bf16_f32 v{tmp + 4 * t}, v{tmp + 4 * t}, v{tmp + 4 * t + 1}
        v_cvt_pk_bf16_f32 v{tmp + 4 * t + 1}, v{tmp + 4 * t + 2}, v{tmp + 4 * t + 3}
        ds_write_b64 v{va + t}, {vr(tmp + 4 * t, 2)} offset:{off}
        """)


def silu4(a, y, h, t):
    a(f"""
    v_pk_mul_f32 {vr(y, 2)}, {vr(y, 2)}, s[{sP0}:{sP0 + 1}] op_sel_hi:[1,0]
    v_pk_mul_f32 {vr(y + 2, 2)}, {vr(y + 2, 2)}, s[{sP0}:{sP0 + 1}] op_sel_hi:[1,0]
    """)
    for k in range(4):
        a(f"v_exp_f32 v{t + k}, v{y + k}")
    for k in (0, 2):
        a(f"v_pk_add_f32 {vr(t + k, 2)}, {vr(t + k, 2)}, 1.0 op_sel_hi:[1,0]")
    for k in range(4):
        a(f"v_rcp_f32 v{t + k}, v{t + k}")
    for k in (0, 2):
        a(f"v_pk_mul_f32 {vr(y + k, 2)}, {vr(y + k, 2)}, s[{sP0}:{sP0 + 1}] op_sel:[0,1] op_sel_hi:[1,1]")
    for k in (0, 2):
        a(f"v_pk_fma_f32 {vr(y + k, 2)}, {vr(y + k, 2)}, {vr(t + k, 2)}, {vr(h + k, 2)}")
    a(f"v_cvt_pk_bf16_f32 v{y}, v{y}, v{y + 1}\nv_cvt_pk_bf16_f32 v{y + 1}, v{y + 2}, v{y + 3}")


def gen_kernel(cfg):
    a = Asm()
    st = lambda i: stamp(a, cfg, i)
    pr = lambda nm: f"s_memrealtime s[{STAMP_REGS[15]}:{STAMP_REGS[15] + 1}]" if cfg.get("diag") and cfg.get("probe", "scat") == nm else ""
    YA, YB = Y, Y + 4
    nfin = 0
    HA_, HB_, WF, TF, GC, RA = AC, AC + 16, B, 24, 76, 6
    vWa, vWb, vQa, vPa, vHa, vQo, vZ, QR = 16, 3, 116, 118, 56, 14, 58, 48
    GA, LA, CA, BK, RK1, WBR = 46, 48, 50, 34, 38, 52
    cpf = ""
    if cfg.get("cpf"):
        cpf = f"""
        s_cmp_lg_u32 s{sWV}, 15
        s_cbranch_scc1 K_CP
        s_getpc_b64 s[{sP0}:{sP0 + 1}]
        v_lshlrev_b32 v2, 7, v0
        v_add_u32 v3, 0x2000, v2
        global_load_dword v126, v2, s[{sP0}:{sP0 + 1}]
        s_mov_b64 exec, 0xffff
        global_load_dword v127, v3, s[{sP0}:{sP0 + 1}]
        s_mov_b64 exec, -1
        K_CP:
        """
    a(f"""
    s_load_dwordx16 s[4:19], s[0:1], 0
    s_load_dwordx4 s[20:23], s[0:1], 64
    s_load_dwordx2 s[{sW}:{sW + 1}], s[0:1], 80
    v_lshrrev_b32 v1, 6, v0
    s_cmp_ge_u32 s2, 256
    s_cbranch_scc1 K_END
    v_readfirstlane_b32 s{sWV}, v1
    v_mov_b32 v{vT}, v0
    v_lshlrev_b32 v19, 4, v0
    v_and_b32 v0, 63, v0
    s_and_b32 s{sB}, s2, 7
    s_lshl_b32 s{sB}, s{sB}, 5
    s_lshr_b32 s{sD}, s2, 3
    s_add_u32 s{sB}, s{sB}, s{sD}
    s_mul_i32 s{sNB}, s{sB}, {NB}
    {cpf}
    s_lshl_b32 s{sA}, s{sWV}, 8
    s_or_b32 s{sA}, s{sA}, s2
    s_cmp_eq_u32 s{sA}, {12 * 256 + 127}
    s_cbranch_scc1 K_ZF
    s_cmp_ge_u32 s2, 125
    s_cbranch_scc1 K_LD ; @if:p=0
    s_mul_i32 s{sA}, s2, 12800
    v_add_u32 v2, s{sA}, v19
    v_lshrrev_b32 v3, 1, v2
    v_cmp_gt_u32 vcc, 800, v{vT}
    s_cmp_eq_u32 s{sWV}, 8
    s_mov_b32 s{sC}, {OOB}
    s_cmov_b32 s{sC}, {CNTP - 8192}
    s_cmp_lt_u32 s{sWV}, 8
    s_cselect_b32 s{sA}, 0xbfbfbfbf, 0
    s_cselect_b32 s{sB2}, 64, 0
    s_cmov_b32 s{sC}, {PB}
    v_and_b32 v14, 0x3fe, v{vT}
    v_mul_u32_u24 v14, s{sB2}, v14
    v_add3_u32 v14, v14, v19, s{sC}
    v_mov_b32 v20, s{sA}
    v_mov_b32 v21, s{sA}
    v_mov_b32 v22, s{sA}
    v_mov_b32 v23, s{sA}
    s_mov_b64 s[{sP4}:{sP4 + 1}], vcc
    s_mov_b64 exec, vcc
    s_waitcnt lgkmcnt(0)
    s_cbranch_execz K_PL ; @if:lo=0
    global_load_dwordx4 v[4:7], v2, s[12:13]
    global_load_dwordx4 v[8:11], v2, s[10:11]
    global_load_dwordx2 v[12:13], v3, s[8:9]
    K_PL:
    s_mov_b64 exec, -1
    ds_write_b128 v14, v[20:23]
    s_waitcnt lgkmcnt(0)
    s_barrier
    K_LD:
    s_sub_u32 s{sNV}, {N}, s{sNB}
    s_min_u32 s{sNV}, s{sNV}, {NB}
    s_lshl_b32 s{sC}, s{sNB}, 8
    s_lshl_b32 s{sH + 2}, s{sNV}, 8
    s_mov_b32 s{sH + 3}, 0x20000
    v_lshrrev_b32 v14, 4, v0
    v_and_b32 v15, 15, v0
    s_lshr_b32 s{sQS}, s2, 7
    s_add_u32 s{sA}, s{sWV}, s{sQS}
    s_waitcnt lgkmcnt(0)
    s_add_u32 s{sH}, s4, s{sC}
    s_addc_u32 s{sH + 1}, s5, 0
    s_cmp_lt_u32 s{sA}, 13
    s_cbranch_scc1 K_CH
    s_cmp_eq_u32 s{sA}, 14
    s_cselect_b32 s{sC}, {16 * NB * 256}, 0
    s_cselect_b32 s{sT + 2}, {NB * 256}, s{sH + 2}
    s_mov_b32 s{sP1}, {HT}
    s_cmov_b32 s{sP1}, {HT2}
    s_sub_u32 s{sT}, s{sH}, s{sC}
    s_subb_u32 s{sT + 1}, s{sH + 1}, 0
    s_and_b32 s{sA}, s{sWV}, 1
    s_lshl_b32 s{sA}, s{sA}, 14
    s_add_u32 s{sB2}, s{sA}, {WS1}
    s_lshl_b32 s{sC}, s{sQS}, 15
    s_add_u32 s{sA}, s{sA}, s{sC}
    s_and_b32 s{sD}, s{sD}, 3
    s_lshl_b32 s{sD}, s{sD}, 12
    s_cmp_lt_u32 s{sWV}, 14
    s_cselect_b64 s[{sT}:{sT + 1}], s[{sT}:{sT + 1}], s[14:15]
    s_cselect_b32 s{sT + 2}, s{sT + 2}, 0x10000
    s_mov_b32 s{sT + 3}, 0x20000
    s_cselect_b32 s{sP0}, 0, 1
    s_cselect_b32 s{sP0 + 1}, 64, 0
    s_cmov_b32 s{sA}, 0
    s_cmov_b32 s{sB2}, s{sP1}
    s_cmov_b32 s{sD}, 0
    v_lshlrev_b32 v20, s{sP0}, v14
    v_xor_b32 v20, v20, v15
    v_lshlrev_b32 v20, 4, v20
    v_lshl_add_u32 v20, v14, 8, v20
    v_xor_b32 v21, s{sP0 + 1}, v20
    v_xor_b32 v22, 0x80, v20
    v_xor_b32 v23, 0x80, v21
    K_LL:
    """)
    for k in range(4):
        a(f"s_add_u32 m0, s{sB2}, s{sD}\ns_add_u32 s{sC}, s{sA}, s{sD}")
        if k == 3:
            a(f"s_cmp_lt_u32 s{sWV}, 14")
        for i in range(4):
            a(f"buffer_load_dwordx4 v{20 + i}, s[{sT}:{sT + 3}], s{sC} offen offset:{1024 * i} lds")
            if k == 3 and i == 0:
                a("s_cbranch_scc1 K_CH")
            if k < 3 and i == 0:
                a(f"s_add_u32 s{sD}, s{sD}, 4096\ns_and_b32 s{sD}, s{sD}, 0x3fff")
    a(f"""
    s_mov_b64 s[{sT}:{sT + 1}], s[18:19]
    s_add_u32 s{sB2}, s{sA}, {WTP}
    s_cmp_eq_u32 s{sQS}, 0
    s_mov_b32 s{sQS}, 1
    s_cbranch_scc1 K_LL ; @once
    """)
    a("K_CH:\ns_setreg_imm32_b32 hwreg(HW_REG_MODE, 4, 2), 3")
    st(0)
    zero_init(a, (MISC + 16 - MR - 16384) // 16)
    a(f"""
    v_lshlrev_b32 v24, 18, v{vT}
    v_or_b32 v25, 0x18000, v24
    v_or_b32 v26, 0x28000, v24
    v_or_b32 v27, 0x38000, v24
    v_or_b32 v24, 0x8000, v24
    s_mov_b32 s{sP0}, {f32(2.0 ** 101)}
    s_mov_b32 s{sP0 + 1}, {f32(1 / (1 + DELTA))}
    v_pk_mul_f32 v[26:27], v[26:27], s[{sP0}:{sP0 + 1}] op_sel_hi:[1,0]
    v_pk_mul_f32 v[24:25], v[24:25], s[{sP0}:{sP0 + 1}] op_sel_hi:[1,0]
    """)
    for k in range(4):
        a(f"v_exp_f32 v{28 + k}, v{24 + k}")
    for k in (0, 2):
        a(f"v_pk_mul_f32 {vr(24 + k, 2)}, {vr(24 + k, 2)}, s[{sP0}:{sP0 + 1}] op_sel:[0,1] op_sel_hi:[1,1]")
    for k in (0, 2):
        a(f"v_pk_add_f32 {vr(28 + k, 2)}, {vr(28 + k, 2)}, 1.0 op_sel_hi:[1,0]")
    for k in range(4):
        a(f"v_rcp_f32 v{28 + k}, v{28 + k}")
    a(f"v_lshlrev_b32 v32, 3, v{vT}\nv_add_u32 v33, 0x10000, v32")
    for k in (0, 2):
        a(f"v_pk_mul_f32 {vr(28 + k, 2)}, {vr(28 + k, 2)}, {vr(24 + k, 2)}")
    for k in (0, 2):
        a(f"v_pk_add_f32 {vr(24 + k, 2)}, {vr(28 + k, 2)}, {vr(24 + k, 2)} neg_lo:[0,1] neg_hi:[0,1]")
    a(f"""
    v_cvt_pk_bf16_f32 v28, v28, v29
    v_cvt_pk_bf16_f32 v29, v30, v31
    v_cvt_pk_bf16_f32 v24, v24, v25
    v_cvt_pk_bf16_f32 v25, v26, v27
    ds_write_b64 v32, v[28:29] offset:{LUT}
    ds_write_b64 v33, v[24:25] offset:{LUT}
    """)
    a(f"""
    s_mov_b32 s{sW + 2}, {WS_END}
    s_mov_b32 s{sW + 3}, 0x20000
    s_lshr_b32 s{sD}, s{sWV}, 3
    s_and_b32 s{sC}, s{sWV}, 7
    s_sub_u32 s{sA}, s{sD}, 1
    v_and_b32 v17, s{sA}, v15
    s_lshl_b32 s{sA}, s{sD}, 4
    s_add_u32 s{sA}, s{sA}, 16
    v_add_u32 v24, s{sA}, v15
    s_mul_i32 s{sA}, s{sD}, 48
    v_add_u32 v25, s{sA}, v17
    s_mov_b32 s{sA}, {HT}
    v_xor_b32 v26, v14, v15
    v_xor_b32 v27, v14, v17
    v_lshl_add_u32 v26, v26, 4, s{sA}
    v_lshl_add_u32 v27, v27, 4, s{sA}
    v_lshl_add_u32 v{vHa}, v24, 8, v26
    v_lshl_add_u32 v{vHa + 1}, v25, 8, v27
    s_cmp_ge_u32 s2, 128
    s_cselect_b32 s{sA}, {HT - HT2}, 0
    s_mov_b32 s{sP1}, {WTP}
    s_cmov_b32 s{sP1}, {WS2}
    v_subrev_u32 v{HA_}, s{sA}, v{vHa}
    v_subrev_u32 v{HB_}, s{sA}, v{vHa + 1}
    """)
    for ks in range(1, 4):
        a(f"v_xor_b32 v{HA_ + 4 * ks}, {64 * ks}, v{HA_}\nv_xor_b32 v{HB_ + 4 * ks}, {64 * ks}, v{HB_}")
    a(f"""
    s_lshr_b32 s{sA}, s{sC}, 1
    s_mul_i32 s{sA}, s{sA}, 48
    s_lshl_b32 s{sB2}, s{sC}, 3
    s_add_u32 s{sA}, s{sA}, s{sB2}
    v_lshl_add_u32 v26, v14, 4, s{sA}
    s_movk_i32 s{sA}, {QST}
    v_mad_u32_u24 v{vQa}, v24, s{sA}, v26
    v_mad_u32_u24 v{vQa + 1}, v25, s{sA}, v26
    s_lshl_b32 s{sA}, s{sC}, 5
    s_add_u32 s{sA}, s{sA}, {PT}
    v_lshl_add_u32 v26, v14, 3, s{sA}
    s_movk_i32 s{sA}, 288
    v_mad_u32_u24 v{vPa}, v24, s{sA}, v26
    v_mad_u32_u24 v{vPa + 1}, v25, s{sA}, v26
    v_bfe_u32 v24, v0, 2, 2
    v_and_b32 v25, 1, v14
    v_lshl_or_b32 v25, v25, 2, v24
    v_xor_b32 v25, s{sC}, v25
    v_and_b32 v26, 3, v0
    v_lshlrev_b32 v26, 3, v26
    v_lshl_or_b32 v25, v25, 5, v26
    v_lshl_add_u32 v24, v14, 3, v24
    v_lshl_add_u32 v24, v24, 8, v25
    v_add_u32 v{vWa}, {WS1}, v24
    v_add_u32 v{vWb}, s{sP1}, v24
    v_mov_b32 v{vZ}, 0
    v_mov_b32 v{vZ + 1}, 0
    s_mov_b32 s{sQS}, 0
    v_lshlrev_b32 v1, 1, v14
    v_xor_b32 v1, v1, v15
    v_lshlrev_b32 v1, 4, v1
    v_lshl_add_u32 v1, v14, 8, v1
    v_xor_b32 v2, 0x80, v1
    s_bitcmp1_b32 s{sWV}, 0
    s_mov_b32 s{sP0}, {f32(-LOG2E)}
    s_cmov_b32 s{sP0}, {f32(-LOG2E * TINY)}
    s_mul_i32 s{sA}, s{sB}, {RST}
    s_add_u32 s{sA}, s{sA}, {WS_REC}
    s_add_u32 s{sR}, s{sW}, s{sA}
    s_addc_u32 s{sR + 1}, s{sW + 1}, 0
    s_cmp_ge_u32 s2, 125
    s_cbranch_scc1 K_NP ; @if:p=0
    """)
    a(f"""
    s_lshl_b32 s{sA}, s2, 7
    s_add_u32 s{sA}, s{sA}, {WS_REC}
    s_add_u32 s{sP3}, s{sW}, s{sA}
    s_addc_u32 s{sP3 + 1}, s{sW + 1}, 0
    s_movk_i32 s{sA}, {RST - 128}
    s_mov_b32 s{sP1}, {PB}
    v_lshrrev_b32 v24, 3, v{vT}
    v_mad_u32_u24 v{GA}, v24, s{sA}, v19
    v_add_u32 v{GA + 1}, {128 * RST}, v{GA}
    v_lshl_add_u32 v{LA}, v24, 5, v19
    v_add_u32 v{LA}, s{sP1}, v{LA}
    v_lshlrev_b32 v{CA}, 2, v24
    s_cmp_ge_u32 s{sWV}, 13
    s_cbranch_scc1 K_PLD ; @if:lo=0
    s_mov_b32 s{sA}, 342393
    s_movk_i32 s{sB2}, 12544
    s_mov_b32 s{sP1 + 1}, 0xffff0000
    v_mov_b32 v44, 1
    s_mov_b64 exec, s[{sP4}:{sP4 + 1}]
    s_waitcnt vmcnt(2)
    """)
    for j in range(4):
        a(f"""
        v_mul_u32_u24 v{4 + j}, s{sA}, v{4 + j}
        v_lshlrev_b32_sdwa v{BK + j}, 2, v{4 + j} {SD} src1_sel:BYTE_3
        ds_add_rtn_u32 v{RK1 + j}, v{BK + j}, v44 offset:{CNTP}
        """)
    for j in range(4):
        a(f"v_mul_hi_u32_u24 v{4 + j}, s{sB2}, v{4 + j}\nv_mad_u32_u24 v{BK + j}, v{BK + j}, 40, s{sP1}")
    a("s_waitcnt vmcnt(0)")
    for j in range(4):
        if j & 1:
            a(f"v_and_or_b32 v{8 + j}, v{12 + j // 2}, s{sP1 + 1}, v{8 + j}")
        else:
            a(f"v_lshl_or_b32 v{8 + j}, v{12 + j // 2}, 16, v{8 + j}")
    for j in range(4):
        a(f"""
        s_waitcnt lgkmcnt({3 + j})
        v_min_u32 v{RK1 + j}, 31, v{RK1 + j}
        v_add_u32 v42, v{BK + j}, v{RK1 + j}
        v_lshl_add_u32 v43, v{RK1 + j}, 2, v{BK + j}
        ds_write_b8 v42, v{4 + j}
        ds_write_b32 v43, v{8 + j} offset:32
        """)
    a(f"""
    s_mov_b64 exec, -1
    K_PB:
    s_waitcnt lgkmcnt(0)
    s_barrier
    """)
    a(pr("scat"))
    a(f"""
    ds_read_b32 v{CA + 1}, v{CA} offset:{CNTP + 512}
    ds_read_b32 v{CA}, v{CA} offset:{CNTP}
    ds_read_b128 v[4:7], v{LA}
    ds_read_b128 v[8:11], v{LA} offset:{128 * 160}
    s_waitcnt lgkmcnt(2)
    v_max_u32 v24, v{CA}, v{CA + 1}
    v_cmp_lt_u32 vcc, 24, v24
    s_cbranch_vccnz K_POV
    K_PST:
    s_waitcnt lgkmcnt(1)
    global_store_dwordx4 v{GA}, v[4:7], s[{sP3}:{sP3 + 1}] sc1
    s_waitcnt lgkmcnt(0)
    global_store_dwordx4 v{GA + 1}, v[8:11], s[{sP3}:{sP3 + 1}] sc1
    K_PH:
    v_mov_b32 v{vQo}, 2.0
    v_mov_b32 v{vQo + 1}, 2.0
    """)
    st(2)
    trd = lambda d, ks, va: "\n".join(f"ds_read_b64_tr_b16 {vr(d + 4 * ks + 2 * i, 2)}, v{va} offset:{8192 * ks + 1024 * i}" for i in range(2))
    hrd = lambda ks: f"ds_read_b128 {vr(HA_ + 4 * ks, 4)}, v{HA_ + 4 * ks}\nds_read_b128 {vr(HB_ + 4 * ks, 4)}, v{HB_ + 4 * ks}"
    sched = [cfg.get(k, d).lstrip("x") for k, d in (("qa", "1111222200000"), ("qb", "4" * 13))]
    qstore = lambda i: f"buffer_store_dwordx4 {vr(QR + 4 * i, 4)}, v{vQo + i}, s[{sW}:{sW + 3}], 0 offen sc1"

    def qst(k):
        t = ""
        for i in range(2):
            if str(k) in sched[i]:
                t += f"""
                s_bitcmp0_b32 s{sQS}, {8 * i + k}
                s_cbranch_scc1 K_QS{i}{k}
                {'s_waitcnt lgkmcnt(0)' if k == 1 else ''}
                {qstore(i)}
                v_mov_b32 v{vQo + i}, 2.0
                K_QS{i}{k}:
                """
        return t

    for ks in range(4):
        a(hrd(ks))
    a("s_waitcnt lgkmcnt(1)\nK_F:")
    for ks in range(4):
        a(trd(WF, ks, vWa))
    for ks in range(4):
        if ks == 3:
            a("s_waitcnt lgkmcnt(8)")
        a(trd(TF, ks, vWb))
    a(f"""
    s_cmp_ge_u32 s2, 128
    {pr("Ya")}
    s_cbranch_scc1 K_Y ; @if:q=1
    s_waitcnt vmcnt(0)
    K_Y:
    s_waitcnt lgkmcnt(0)
    {pr("Y")}
    s_barrier
    """)
    st(5)
    pos_dma(a, "K_PD", "K_JOB")
    a(qst(2))
    a(pr("PD"))
    for ks in range(4):
        a(mf32(GC, WF + 4 * ks, HA_ + 4 * ks, ks == 0))
        a(mf32(GC + 4, WF + 4 * ks, HB_ + 4 * ks, ks == 0))
    a(f"s_cmp_lg_u32 s{sD}, 0\ns_cbranch_scc1 K_GH1")
    for ks in range(4):
        a(mf32(YA, TF + 4 * ks, HA_ + 4 * ks, ks == 0))
        a(mf32(YB, TF + 4 * ks, HB_ + 4 * ks, ks == 0))
    a("s_branch K_GH2\nK_GH1:")
    for ks in range(4):
        a(mf32(YA, TF + 4 * ks, HA_ + 4 * ks, ks == 0))
        a(mf32(YB, HB_ + 4 * ks, TF + 4 * ks, ks == 0))
    a("K_GH2:\n" + pr("GH"))
    scale_store(a, GC, 40, vPa)
    a(f"s_mov_b32 s{sP0}, {f32(-LOG2E / (1 + DELTA))}")
    for k in range(4):
        a(f"v_pk_mul_f32 {vr(Y + 2 * k, 2)}, {vr(Y + 2 * k, 2)}, s[{sP0}:{sP0 + 1}] op_sel_hi:[1,0]")
    big_test(a, GC, "K_FP")
    a(f"""
    s_mov_b64 s[{sMK}:{sMK + 1}], 0
    s_mov_b64 s[{sMK + 2}:{sMK + 3}], 0
    s_mov_b32 s{sRARE}, 0
    s_mov_b32 s{sQW}, 1 ; @set:qw=1
    s_mov_b32 s{sSRC}, -1
    s_movk_i32 s{sWID}, 1024
    s_lshr_b32 s{sA}, s2, 7
    s_cmp_eq_u32 s{sWV}, 15
    s_cselect_b32 s{sQA}, s{sA}, 0
    s_cmp_ge_u32 s{sWV}, 10
    s_cbranch_scc1 K_JB2
    K_G0:
    {qst(3)}
    """)
    rec_addr(a, RA)
    a(f"""
    s_waitcnt lgkmcnt(0)
    {pr("G")}
    s_barrier
    """)
    st(6)
    rec_load(a, RA)
    for i in range(2):
        if "4" in sched[i]:
            a(qstore(i))
            nfin += 1
    a("K_B0:")
    a(f"""
    s_lshl_b32 s{sA}, s{sWV}, 12
    s_add_u32 s{sM0}, s{sA}, {RING}
    s_mov_b32 s{sC000}, 0xc000
    s_movk_i32 s{s128}, 128
    s_movk_i32 s{s192}, 192
    s_movk_i32 s{s256}, 256
    s_movk_i32 s{s256 + 1}, 256
    s_mov_b32 s{sG3}, 0
    s_mov_b32 s{sG3 + 1}, 0xffff0000
    s_add_u32 s{sM0 + 1}, s{sM0}, 1024
    s_add_u32 s{sM0 + 2}, s{sM0}, 2048
    s_add_u32 s{sM0 + 3}, s{sM0}, 3072
    v_and_b32 v34, 15, v0
    v_lshrrev_b32 v35, 4, v0
    v_lshrrev_b32 v36, 3, v34
    v_lshlrev_b32 v36, 1, v36
    v_xor_b32 v36, v36, v35
    v_lshl_add_u32 v36, v36, 4, s{sM0}
    v_lshl_add_u32 v{vRing}, v34, 6, v36
    v_and_b32 v36, 2, v35
    v_and_b32 v37, 3, v0
    v_xor_b32 v36, v36, v37
    v_lshlrev_b32 v{vLc}, 4, v36
    v_cndmask_b32 v{vMul}, 2, 0, {g3}
    v_mov_b32 v{vIS}, 256
    v_cndmask_b32 v{vIX}, 0, v{vIS}, {g3}
    v_mov_b32 v{vIdx}, 0xdd
    s_and_b32 s{sA}, s{sWV}, 7
    s_lshl_b32 s{sA}, s{sA}, 6
    s_add_u32 s{sA}, s{sA}, {FAKE}
    v_and_b32 v36, -4, v0
    v_add_u32 v{vFa}, s{sA}, v36
    v_mov_b32 v19, 1
    v_mov_b32 v48, {POSL}
    s_mov_b32 s{sC}, 0x40000
    s_mov_b32 s{sD}, 0x0c040100
    s_waitcnt vmcnt({nfin})
    """)
    st(7)
    AJ, RK, QD = 24, 28, 32
    for j in range(4):
        a(f"""
        v_lshlrev_b32_sdwa v{AJ + j}, 2, sext(v{vDL}) {SD} src1_sel:BYTE_{j}
        ds_add_rtn_u32 v{RK + j}, v{AJ + j}, v19 offset:{CNT}
        """)
    a(f"v_cmp_eq_u32 vcc, -1, v{vDL}")
    for j in range(4):
        q = QD + 4 * j
        a(f"""
        v_and_or_b32 v{q + 2}, v{AJ + j}, s{sC}, v48
        v_perm_b32 v{q}, v{AJ + j}, v{W + j}, s{sD}
        v_mad_u32_u16 v{q + 2}, v{W + j}, 6, v{q + 2}
        v_and_b32 v{q + 1}, 0xffff0000, v{W + j}
        v_and_b32 v{q + 2}, -4, v{q + 2}
        """)
    a(f"""
    s_cbranch_vccnz K_OVF
    K_OVFB:
    v_lshlrev_b32 v49, 2, v0
    s_cmp_eq_u32 s{sWV}, 13
    s_waitcnt lgkmcnt(0)
    s_barrier
    """)
    st(8)
    a(f"s_cbranch_scc1 K_OWN1 ; @if:w13=1\nK_OWN1B:\nds_read_b32 v49, v49 offset:{CNT}")
    for j in range(4):
        q = QD + 4 * j
        a(f"ds_read2_b32 {vr(q + 2, 2)}, v{q + 2} offset1:1")
    a(f"""
    s_waitcnt lgkmcnt(4)
    v_cmp_ne_u32 vcc, 0, v49
    s_mov_b32 s{sA}, {OOB}
    s_and_b32 s{sB2}, vcc_hi, 0xf00000
    s_cbranch_scc1 K_MASK
    K_MASKB:
    v_mov_b32 v{vIncl}, v49
    """)
    scan64(a, vIncl)
    a(f"""
    v_sub_u32 v49, v{vIncl}, v49
    v_readlane_b32 s{sTOT}, v{vIncl}, 63
    v_lshlrev_b32 v49, 4, v49
    v_writelane_b32 v49, s{sA}, 63
    """)
    for j in range(4):
        a(f"ds_bpermute_b32 v{AJ + j}, v{AJ + j}, v49")
    a(f"""
    s_cmp_gt_u32 s{sTOT}, {CAP}
    s_cbranch_scc1 K_SHRINK
    s_add_u32 s{sA}, s{sTOT}, 15
    s_lshr_b32 s{sA}, s{sA}, 4
    s_lshr_b32 s{sB2}, s{sA}, 4
    s_and_b32 s{sA}, s{sA}, 15
    s_mul_i32 s{sTS}, s{sB2}, s{sWV}
    s_min_u32 s{sC}, s{sWV}, s{sA}
    s_add_u32 s{sTS}, s{sTS}, s{sC}
    s_cmp_lt_u32 s{sWV}, s{sA}
    s_addc_u32 s{sD}, s{sB2}, 0
    s_lshl_b32 s{sTS}, s{sTS}, 4
    s_lshl_b32 s{sD}, s{sD}, 4
    s_add_u32 s{sWT}, s{sTS}, s{sD}
    s_min_u32 s{sWEND}, s{sWT}, s{sTOT}
    """)
    for j in range(4):
        a(f"""
        s_waitcnt lgkmcnt(3)
        v_lshl_add_u32 v{AJ + j}, v{RK + j}, 4, v{AJ + j}
        ds_write_b128 v{AJ + j}, {vr(QD + 4 * j, 4)} offset:{LIST}
        """)
    a(f"""
    v_cmp_ge_u32 vcc, s{sTS}, v{vIncl}
    v_cmp_gt_u32 s[{sP2}:{sP2 + 1}], s{sWEND}, v{vIncl}
    v_add_u32 v24, 64, v0
    v_cmp_gt_u32 s[{sP3}:{sP3 + 1}], s{sD}, v0
    v_cmp_gt_u32 s[{sP4}:{sP4 + 1}], s{sD}, v24
    s_bcnt1_i32_b64 s{sN0}, vcc
    s_bcnt1_i32_b64 s{sNL}, s[{sP2}:{sP2 + 1}]
    s_mov_b32 s{sNW}, s{sN0}
    """)
    ptrs(a)
    a(f"""
    v_mov_b32 v24, {OOB}
    v_lshl_add_u32 v{vG0}, v0, 4, s{sA}
    v_add_u32 v{vG1}, 1024, v{vG0}
    v_cndmask_b32 v{vG0}, v24, v{vG0}, s[{sP3}:{sP3 + 1}]
    v_cndmask_b32 v{vG1}, v24, v{vG1}, s[{sP4}:{sP4 + 1}]
    s_cmp_eq_u32 s{sD}, 0
    s_cselect_b32 s{sNF}, {OOB >> 5}, s{sN0}
    s_cmp_eq_u32 s{sWV}, 0
    s_cselect_b32 s{sA}, 48, s{sNF}
    s_cselect_b32 s{sNF}, 64, s{sNF}
    s_lshl_b32 s{sA}, s{sA}, 4
    s_add_u32 s{sA}, s{sA}, s{sWV}
    s_lshl_b32 s{sA}, s{sA}, 1
    v_mov_b32 v25, s{sA}
    v_mov_b32 v26, 0x3f80
    s_mov_b64 exec, 1
    ds_write_b16 v25, v26 offset:{SEL}
    s_mov_b64 exec, -1
    s_cmp_ge_u32 s{sWV}, 13
    s_cbranch_scc1 K_PAD ; @if:lo=0
    K_PADB:
    s_cmp_lg_u32 s{sQA}, 0
    {pr("B2a")}
    s_waitcnt vmcnt(0) lgkmcnt(0)
    {pr("B2")}
    s_barrier
    """)
    st(9)
    a(f"""
    s_cbranch_scc0 K_QN
    s_mov_b64 exec, 1
    global_store_dword v58, v57, s[{sW}:{sW + 1}] sc1
    s_mov_b64 exec, -1
    K_QN:
    """)
    list_reads(a)
    G, O, TH = 20, 28, 40
    a(f"""
    v_mov_b32 v{S}, 0
    ds_read_b64 {vr(TH, 2)}, v{S} offset:{MISC + 8}
    ds_read_b128 {vr(G, 4)}, v{vG0}
    ds_read_b128 {vr(G + 4, 4)}, v{vG1}
    v_mov_b32 v{S + 1}, 0
    v_bfe_u32 v17, v0, 2, 2
    v_lshrrev_b32 v18, 4, v0
    v_cmp_eq_u32 vcc, v17, v18
    v_mov_b32 v18, 0x3f80
    v_mov_b32 v19, 0
    v_cndmask_b32 v18, 0, v18, vcc
    v_lshlrev_b32 v17, 4, v0
    v_lshlrev_b64 v[{B + 2}:{B + 3}], v17, v[18:19]
    """)
    for p in range(2):
        a(f"""
        s_waitcnt lgkmcnt(1)
        v_lshlrev_b32_sdwa v{O + 4 * p}, 2, v{G + 4 * p} {SD} src1_sel:WORD_1
        ds_read_b128 {vr(O + 4 * p, 4)}, v{O + 4 * p} offset:{OWN}
        """)
    for u in range(8):
        a(zero4(AC + 4 * u))
        if u < 3:
            a(f"v_mov_b64 {vr(B + 6 * u + 8, 2)}, {vr(B + 2, 2)}")
    for p in range(2):
        g, o = G + 4 * p, O + 4 * p
        a(f"""
        v_lshlrev_b32 v38, 4, v{g}
        v_alignbit_b32 v37, v{g + 3}, v{g + 2}, v38
        v_lshrrev_b32_sdwa v{g + 3}, v38, v{g + 3} dst_sel:WORD_1 dst_unused:UNUSED_PAD src0_sel:DWORD src1_sel:DWORD
        v_lshlrev_b32 v36, 16, v37
        v_and_b32 v37, 0xffff0000, v37
        s_waitcnt lgkmcnt(1)
        v_pk_add_f32 {vr(o, 2)}, {vr(o, 2)}, v[36:37] neg_lo:[0,1] neg_hi:[0,1]
        v_sub_f32 v{o + 2}, v{o + 2}, v{g + 3}
        v_mul_f32 v{o + 3}, v{o}, v{o}
        v_fmac_f32 v{o + 3}, v{o + 1}, v{o + 1}
        v_fmac_f32 v{o + 3}, v{o + 2}, v{o + 2}
        v_cvt_pk_bf16_f32 v{g + 2}, 1.0, v{o}
        v_mul_f32 v{o + 3}, {f32(-LOG2E)}, v{o + 3}
        v_cvt_pk_bf16_f32 v{g + 3}, v{o + 1}, v{o + 2}
        v_cmp_nlt_f32 vcc, abs(v{g + 1}), v{TH + 1}
        v_cmp_nlt_f32 s[{sP0}:{sP0 + 1}], abs(v{o + 3}), v{TH}
        v_cvt_pk_bf16_f32 v{g + 1}, v{o + 3}, v{g + 1}
        ds_write_b128 v{vG0 + p}, {vr(g, 4)} ; nobar
        s_or_b64 vcc, vcc, s[{sP0}:{sP0 + 1}]
        s_and_b64 s[{sP3 + 2 * p}:{sP3 + 2 * p + 1}], s[{sP3 + 2 * p}:{sP3 + 2 * p + 1}], vcc
        """)
    a(f"""
    s_or_b64 s[{sP3}:{sP3 + 1}], s[{sP3}:{sP3 + 1}], s[{sP4}:{sP4 + 1}]
    s_cselect_b32 s{sMODE}, 1, 0
    """)
    a(f"""
    K_XFR:
    s_cmp_ge_u32 s{sTS}, s{sWT}
    v_mad_u32_u16 v{vVoff}, v{vSa}, s{s256}, v{vLc}
    s_cbranch_scc1 K_QW ; @if:nt=1
    v_lshrrev_b32 v17, 2, v0
    v_and_b32 v18, 3, v0
    v_add_u32 v19, s{sN0}, v17
    v_mul_u32_u24 v19, 288, v19
    v_add_u32 v19, {PT}, v19
    v_lshlrev_b32 v17, 8, v17
    v_add_u32 v17, {WD - 14 * 256}, v17
    v_cndmask_b32 v19, v19, v17, {g3}
    s_mov_b32 vcc_lo, 0
    s_mov_b32 vcc_hi, 0x00ff0000
    v_mov_b32 v17, {OOB}
    v_lshl_add_u32 v19, v18, 3, v19
    v_cndmask_b32 v19, v19, v17, vcc
    """)
    for u in range(8):
        a(f"ds_read_b64_tr_b16 {vr(B + 6 * (u // 2) + 4 * (u & 1), 2)}, v19 offset:{32 * u}")
    a(f"""
    s_lshl_b32 s{sA}, s{sN0}, 3
    s_sub_u32 s{sA}, {OH + 512}, s{sA}
    v_and_b32 v19, 48, v0
    v_lshlrev_b32 v19, 1, v19
    v_sub_u32 v19, s{sA}, v19
    v_cndmask_b32 v{vBX}, v19, v{vEa}, {g3}
    v_mad_u32_u16 v{vXa}, v{vXa}, v{vMul}, v{vBX} op_sel:[1,0,0,0]
    ds_read_b64 {vr(A, 2)}, v{vXa}
    ds_read_b64 {vr(A + 6, 2)}, v{vXa}
    ds_read_b64 {vr(A + 12, 2)}, v{vXa}
    v_subrev_u32 v18, s{sNW}, v18
    v_and_b32 v18, 3, v18
    v_add_u32 v18, s{sNW}, v18
    v_mul_u32_u24 v18, {OOB}, v18
    v_sub_u32 v18, v{vDa}, v18
    v_add_u32 v{vBS}, 8, v18
    v_mad_u32_u16 v{vSa}, v{vSa}, s{sC000}, v{vBS} op_sel:[1,0,0,0]
    {zero4(ZE + 4)}
    {zero4(L)}
    v_lshl_add_u64 v[{vBX}:{vBS}], v[{vBX}:{vBS}], 0, v[{vIX}:{vIS}]
    v_add_u32 v{vDa}, 512, v{vDa}
    v_add_u32 v{vEa}, 256, v{vEa}
    """)
    window(a)
    a(f"""
    K_QW:
    {dma(0)[0]}
    s_cmp_eq_u32 s{sQW}, 0
    s_cbranch_scc1 K_DMA ; @if:qw=0
    """)
    st(10)
    a(f"""
    s_cmp_eq_u32 s{sWV}, 14
    s_cbranch_scc1 K_QP ; @if:w14=1
    K_QB:
    s_mov_b32 s{sQW}, 0 ; @set:qw=0
    s_barrier
    """)
    st(11)
    a(f"K_DMA:\n{dma(0)[1]}")
    for kc in range(1, 4):
        a(f"{dma(kc)[0]}\ns_nop 0\n{dma(kc)[1]}")
    a(f"""
    s_cmp_ge_u32 s{sTS}, s{sWT}
    s_cbranch_scc1 K_NT0 ; @if:nt=1
    ds_read_b32 v17, v{S} offset:{MISC + 4}
    v_mad_u32_u16 v{vVoff}, v{vD}, s{s256}, v{vLc}
    {dma(0)[0]}
    s_waitcnt vmcnt(3)
    {rdq(0)}
    s_waitcnt vmcnt(2)
    {rdq(1)}
    s_waitcnt lgkmcnt(1)
    {Kmf(0, ZE)}
    {dma(0)[1]}
    v_readfirstlane_b32 s{sA}, v17
    s_or_b32 s{sMODE}, s{sMODE}, s{sA} ; @set:mode=x
    """)
    st(12)
    a(f"""
    s_waitcnt lgkmcnt(0)
    K_EV2:
    s_add_u32 s{sA}, s{sTS}, 32
    s_cmp_lt_u32 s{sA}, s{sWT}
    s_cbranch_scc1 K_GO
    v_mov_b32 v{vDa}, v{vFa}
    K_GO:
    s_cmp_lg_u32 s{sMODE}, 0
    s_cbranch_scc1 K_LOOPF ; @if:mode=1
    K_LOOP:
    {loop_body(cfg.get('pat', PAT), cfg.get('dord', DORD), True)}
    s_cbranch_scc1 K_LOOP
    K_EV:
    s_add_u32 s{sA}, s{sTS}, 16
    s_cmp_lt_u32 s{sEW}, s{sA}
    s_cbranch_scc1 K_WIN
    s_cmp_lt_u32 s{sTS}, s{sWT}
    s_cbranch_scc1 K_EV2
    """)
    st(13)
    WB = [A + 2, A + 8, B + 16, B + 20]
    HA, HB, HR = 60, 64, 68

    def exit_loads(tag):
        a(f"""
        s_lshr_b32 s{sD}, s{sWV}, 3
        s_and_b32 s{sC}, s{sWV}, 7
        s_lshl_b32 s{sC}, s{sC}, 5
        s_lshl_b32 s{sA}, s{sD}, 12
        s_add_u32 s{sA}, s{sA}, s{sC}
        v_and_b32 v5, 15, v0
        v_and_b32 v6, 48, v0
        v_lshrrev_b32 v8, 1, v6
        v_lshl_add_u32 v17, v5, 8, v8
        v_lshl_add_u32 v10, v5, 1, s{sC}
        s_add_u32 s{sA}, s{sA}, 4096
        s_movk_i32 s{sB2}, {48 * 256}
        s_cmp_lg_u32 s{sD}, 0
        buffer_load_dwordx2 {vr(HR, 2)}, v17, s[{sH}:{sH + 3}], s{sA} offen
        s_cbranch_scc1 {tag}1
        buffer_load_dwordx2 {vr(HR + 2, 2)}, v17, s[{sH}:{sH + 3}], s{sC} offen
        s_branch {tag}2
        {tag}1:
        buffer_load_ushort v{HR + 2}, v10, s[{sH}:{sH + 3}], s{sB2} offen
        {tag}2:
        """)

    exit_loads("K_XA")
    F = L
    a(f"""
    s_mov_b32 s{sLAST}, 1 ; @set:last=1
    s_movk_i32 s{sNWN}, 64
    K_FLUSH:
    v_and_b32 v17, 15, v0
    v_lshlrev_b32 v18, 5, v17
    ds_read_b128 {vr(T, 4)}, v18 offset:{WX}
    s_waitcnt lgkmcnt(1)
    {Ymf(6, ZE + 4)}
    {Ymf(7, L)}
    ds_read_b128 {vr(ZL, 4)}, v18 offset:{WX + 16}
    v_lshrrev_b32 v18, 4, v0
    v_subrev_u32 v18, s{sNW}, v18
    v_and_b32 v18, 3, v18
    v_add_u32 v18, s{sNW}, v18
    s_add_u32 s{sA}, s{sNL}, 1
    s_min_u32 s{sA}, s{sA}, s{sNWN}
    s_add_u32 s{sB2}, s{sWV}, 48
    v_cmp_eq_u32 vcc, s{sNF}, v18
    v_cmp_gt_u32 s[{sP0}:{sP0 + 1}], s{sA}, v18
    v_cmp_gt_u32 s[{sP1}:{sP1 + 1}], s{sNWN}, v18
    v_mov_b32 v19, s{sB2}
    v_cndmask_b32 v19, v18, v19, vcc
    v_mul_u32_u24 v19, {MST}, v19
    v_lshl_add_u32 v19, v17, 4, v19
    v_lshl_add_u32 v18, v18, 4, v17
    """)
    for k in range(4):
        a(f"v_cvt_pk_bf16_f32 v{ZE + 4 + k}, v{AC + 8 * k}, v{AC + 8 * k + 4}")
    a(f"""
    s_mov_b64 exec, s[{sP0}:{sP0 + 1}]
    ds_write_b128 v19, {vr(ZE + 4, 4)} offset:{MR}
    s_mov_b64 exec, -1
    s_waitcnt lgkmcnt(1)
    """)
    for u in range(8):
        w = (T if u < 4 else ZL) + (u & 3)
        wp, hi = w & ~1, w & 1
        if u == 0:
            a(f"v_pk_mul_f32 {vr(F + 2, 2)}, {vr(AC + 2, 2)}, {vr(wp, 2)} op_sel_hi:[1,0]")
            a(f"v_mul_f32 v{F + 1}, v{AC + 1}, v{w}")
        else:
            a(f"v_pk_fma_f32 {vr(F + 2, 2)}, {vr(AC + 4 * u + 2, 2)}, {vr(wp, 2)}, {vr(F + 2, 2)} op_sel:[0,{hi},0] op_sel_hi:[1,{hi},1]")
            a(f"v_fmac_f32 v{F + 1}, v{AC + 4 * u + 1}, v{w}")
    a(f"""
    s_and_b32 s{sP0}, s{sP0}, 0x01110111
    v_add_f32_dpp v{F + 2}, v{F + 2}, v{F + 2} row_ror:8 row_mask:0xf bank_mask:0xf
    v_add_f32_dpp v{F + 1}, v{F + 1}, v{F + 1} row_ror:8 row_mask:0xf bank_mask:0x3
    s_and_b32 s{sP0 + 1}, s{sP0 + 1}, 0x01110111
    v_add_f32_dpp v{F + 2}, v{F + 2}, v{F + 2} row_shr:4 row_mask:0xf bank_mask:0x2
    v_add_f32_dpp v{F + 1}, v{F + 3}, v{F + 3} row_ror:8 row_mask:0xf bank_mask:0xc
    s_nop 1
    v_add_f32_dpp v{F + 2}, v{F + 1}, v{F + 1} row_shl:4 row_mask:0xf bank_mask:0x5
    s_nop 1
    v_add_f32_dpp v{F + 2}, v{F + 2}, v{F + 2} quad_perm:[1,0,3,2] row_mask:0xf bank_mask:0xf
    s_nop 1
    v_add_f32_dpp v{F + 2}, v{F + 2}, v{F + 2} quad_perm:[2,3,0,1] row_mask:0xf bank_mask:0xf
    s_mov_b64 exec, s[{sP0}:{sP0 + 1}]
    ds_add_f32 v18, v{F + 2} offset:{PAC}
    s_mov_b64 exec, -1
    s_cmp_eq_u32 s{sLAST}, 0
    s_cbranch_scc1 K_SLIDE ; @if:last=0
    s_waitcnt vmcnt(3)
    K_POST:
    {rdq(2, WB[2])}
    {rdq(3, WB[3])}
    """)
    vMa, vM3, vSe, vOa = 1, 2, 3, 4
    Z, ZB, SA, SB, MB = 36, 40, 74, 56, 20
    a(f"""
    s_mul_i32 s{sA}, s{sD}, {16 * MST}
    v_mul_u32_u24 v{vM3}, {MST}, v5
    v_add_u32 v{vM3}, v{vM3}, v6
    v_add_u32 v{vMa}, s{sA}, v{vM3}
    s_lshl_b32 s{sA}, s{sD}, 9
    v_lshl_add_u32 v11, v5, 5, v8
    v_add_u32 v{vSe}, s{sA}, v11
    s_mul_i32 s{sA}, s{sD}, 1536
    v_add_u32 v11, s{sA}, v11
    s_mul_i32 s{sA}, s{sD}, {16 * OST}
    s_add_u32 s{sA}, s{sA}, s{sC}
    s_add_u32 s{sA}, s{sA}, {OT}
    v_mul_u32_u24 v{vOa}, {OST}, v5
    v_add3_u32 v{vOa}, v{vOa}, v8, s{sA}
    v_add_u32 v10, {OT + 48 * OST}, v10
    s_mov_b32 s{sP0}, {f32(1 + DELTA)}
    s_mov_b32 s{sP0 + 1}, {f32(-LN2)}
    s_cmp_lg_u32 s{sD}, 0
    s_waitcnt vmcnt(2) lgkmcnt(0)
    s_barrier
    """)
    st(14)
    for ks in range(4):
        a(f"ds_read_b128 {vr(AC + 4 * ks, 4)}, v{vM3} offset:{MR + 48 * MST + 64 * ks}")
    for ks in range(4):
        a(f"ds_read_b128 {vr(AC + 16 + 4 * ks, 4)}, v{vMa} offset:{MR + 16 * MST + 64 * ks}")
    a(f"""
    ds_read_b64 {vr(SA, 2)}, v{vSe} offset:{SEL + 512}
    ds_read_b64 {vr(SB, 2)}, v11 offset:{SEL}
    s_cbranch_scc1 K_E1
    """)
    mf16 = lambda d, x, y: f"v_mfma_f32_16x16x16_bf16 {vr(d, 4)}, {vr(x, 2)}, {vr(y, 2)}, {vr(d, 4)}"

    unpack = lambda n: "\n".join(f"v_lshlrev_b32 v{HA + 2 * k}, 16, v{HR + k}\nv_and_b32 v{HA + 2 * k + 1}, 0xffff0000, v{HR + k}" for k in range(n))

    def gemm_a(extra):
        for ks in range(4):
            a(f"s_waitcnt lgkmcnt({9 + extra - ks})\n" + mf32(Z, AC + 4 * ks, WB[ks], ks == 0))
        for ks in range(4):
            a(f"s_waitcnt lgkmcnt({5 + extra - ks})\n" + mf32(YA, WB[ks], AC + 16 + 4 * ks))
        a(f"v_cvt_pk_bf16_f32 v{ZB}, v{Z}, v{Z + 1}\nv_cvt_pk_bf16_f32 v{ZB + 1}, v{Z + 2}, v{Z + 3}")

    for ks in range(4):
        a(f"ds_read_b128 {vr(MB + 4 * ks, 4)}, v{vM3} offset:{MR + 64 * ks}")
    gemm_a(4)
    for ks in range(4):
        a(f"s_waitcnt lgkmcnt({3 - ks})\n" + mf32(YB, WB[ks], MB + 4 * ks))
        if ks == 2:
            a(mf16(YA, ZB, SA))
    a(f"""
    s_cmp_lg_u32 s{sRARE}, 0
    s_waitcnt vmcnt(0)
    {unpack(4)}
    {mf16(YB, ZB, SB)}
    s_cbranch_scc1 K_NEXT
    K_S0:
    """)
    silu4(a, YA, HA, 20)
    a(f"ds_write_b64 v{vOa}, {vr(YA, 2)} offset:{16 * OST}")
    silu4(a, YB, HB, 20)
    a(f"""
    ds_write_b64 v{vOa}, {vr(YB, 2)}
    K_OUT:
    s_lshl_b32 s{sC}, s{sNB}, 8
    s_add_u32 s{sO}, s20, s{sC}
    s_addc_u32 s{sO + 1}, s21, 0
    s_lshl_b32 s{sO + 2}, s{sNV}, 8
    s_mov_b32 s{sO + 3}, 0x20000
    s_lshl_b32 s{sA}, s{sWV}, 10
    v_lshl_add_u32 v7, v0, 4, s{sA}
    s_lshl_b32 s{sA}, s{sWV}, 6
    s_add_u32 s{sA}, s{sA}, {OT}
    v_add3_u32 v8, v7, v6, s{sA}
    s_cmp_ge_u32 s{sWV}, 13
    s_waitcnt lgkmcnt(0)
    s_barrier
    s_cbranch_scc1 K_FIN
    """)
    a(f"""
    ds_read_b128 v[20:23], v8
    s_waitcnt lgkmcnt(0)
    buffer_store_dwordx4 v[20:23], v7, s[{sO}:{sO + 3}], 0 offen sc1
    K_FIN:
    """)
    stamp_out(a, cfg, sW)
    a("K_END:\ns_endpgm")

    a("K_E1:")
    gemm_a(0)
    a(f"""
    s_waitcnt lgkmcnt(0)
    s_cmp_lg_u32 s{sRARE}, 0
    {mf16(YB, SB, ZB)}
    s_waitcnt vmcnt(0)
    {unpack(2)}
    {mf16(YA, ZB, SA)}
    v_lshlrev_b32 v{HB}, 16, v{HR + 2}
    s_cbranch_scc1 K_NEXT
    K_S1:
    s_sub_u32 s{sA}, s{sWV}, 13
    s_lshl_b32 s{sA}, s{sA}, 6
    v_add_u32 v11, s{sA}, v0
    v_mul_u32_u24 v12, 171, v11
    v_lshrrev_b32 v12, 9, v12
    v_add_lshl_u32 v13, v11, v12, 2
    ds_read_b32 v14, v13 offset:{PAC}
    ds_read_b32 v15, v13 offset:{OWN}
    """)
    silu4(a, YA, HA, 20)
    a(f"""
    ds_write_b64 v{vOa}, {vr(YA, 2)} offset:{16 * OST}
    v_mul_f32 v{YB}, s{sP0}, v{YB}
    v_exp_f32 v20, v{YB}
    v_mul_f32 v{YB}, s{sP0 + 1}, v{YB}
    v_add_f32 v20, 1.0, v20
    v_rcp_f32 v20, v20
    v_cmp_gt_u32 vcc, s{sNV}, v12
    v_fmac_f32 v{HB}, v20, v{YB}
    v_cvt_pk_bf16_f32 v{HB}, v{HB}, v{HB}
    s_mov_b64 exec, 0xffff
    ds_write_b16 v10, v{HB}
    s_mov_b64 exec, -1
    s_cmp_lt_u32 s{sWV}, 13
    s_cbranch_scc1 K_OUT
    s_mul_i32 s{sA}, s{sNB}, 6
    s_add_u32 s{sA}, s{sA}, {N * 256}
    v_lshl_add_u32 v11, v11, 1, s{sA}
    s_waitcnt lgkmcnt(2)
    v_add_f32 v14, v14, v15
    v_cvt_pk_bf16_f32 v14, v14, v14
    s_mov_b64 exec, vcc
    global_store_short v11, v14, s[20:21] sc1
    s_mov_b64 exec, -1
    s_branch K_OUT
    """)
    a(f"""
    K_NP:
    s_cmp_lt_u32 s2, 128
    s_cbranch_scc1 K_AUX ; @if:q=0
    s_mov_b32 s{sP1}, {sum(int(c) << (4 * w) for w, c in enumerate(sched[0][:8]))}
    s_mov_b32 s{sP1 + 1}, {sum(int(c) << (4 * w) for w, c in enumerate(sched[0][8:] + "444"))}
    s_mov_b32 s{sP2}, {sum(int(c) << (4 * w) for w, c in enumerate(sched[1][:8]))}
    s_mov_b32 s{sP2 + 1}, {sum(int(c) << (4 * w) for w, c in enumerate(sched[1][8:] + "444"))}
    s_lshl_b32 s{sA}, s{sWV}, 2
    s_lshr_b64 s[{sP1}:{sP1 + 1}], s[{sP1}:{sP1 + 1}], s{sA}
    s_lshr_b64 s[{sP2}:{sP2 + 1}], s[{sP2}:{sP2 + 1}], s{sA}
    s_and_b32 s{sP1}, s{sP1}, 7
    s_and_b32 s{sP2}, s{sP2}, 7
    s_add_u32 s{sP2}, s{sP2}, 8
    s_bitset1_b32 s{sQS}, s{sP1}
    s_bitset1_b32 s{sQS}, s{sP2}
    s_lshl_b32 s{sA}, s{sNB}, 8
    v_cmp_gt_u32 vcc, {NB * 16}, v{vT}
    v_add_u32 v5, s{sA}, v19
    v_subrev_u32 v4, {16 * NB * 256}, v5
    v_and_b32 v17, 0x3f0, v{vT}
    v_add_u32 v17, v17, v19
    v_cndmask_b32 v{vQo}, 2.0, v4, vcc
    v_cndmask_b32 v{vQo + 1}, 2.0, v5, vcc
    s_waitcnt vmcnt(0) lgkmcnt(0)
    s_barrier
    """)
    st(2)
    for ks in range(4):
        a(trd(WF, ks, vWa) + "\n" + hrd(ks))
        if ks == 2:
            a(f"s_waitcnt lgkmcnt(9)\n{mf32(GC, WF, HA_, True)}\ns_waitcnt lgkmcnt(8)\n{mf32(GC + 4, WF, HB_, True)}")
    for ks in range(1, 4):
        a(f"""
        s_waitcnt lgkmcnt({13 - 4 * ks})
        {mf32(GC, WF + 4 * ks, HA_ + 4 * ks)}
        s_waitcnt lgkmcnt({12 - 4 * ks})
        {mf32(GC + 4, WF + 4 * ks, HB_ + 4 * ks)}
        """)
    for ks in range(4):
        a(f"v_xor_b32 v{HA_ + 4 * ks}, {64 * ks}, v{vHa}\nv_xor_b32 v{HB_ + 4 * ks}, {64 * ks}, v{vHa + 1}")
    scale_store(a, GC, 24, vQa, QTA)
    big_test(a, GC, "K_FQ")
    a(f"""
    s_cmp_ge_u32 s{sWV}, 8
    s_waitcnt lgkmcnt(0)
    s_barrier
    """)
    st(3)
    a(f"ds_read_b128 {vr(QR, 4)}, v17 offset:{QTA}")
    for ks in range(4):
        a(hrd(ks))
    a(f"""
    s_cbranch_scc1 K_WE ; @if:w8=1
    s_cmp_lt_u32 s{sWV}, 4
    s_cselect_b64 s[{sT}:{sT + 1}], s[14:15], s[18:19]
    s_mov_b32 s{sT + 2}, 0x8000
    s_mov_b32 s{sT + 3}, 0x20000
    s_lshl_b32 s{sA}, s{sWV}, 13
    s_add_u32 m0, s{sA}, {WS1}
    s_and_b32 s{sA}, s{sA}, 0x7fff
    """)
    for i in range(8):
        if i == 4:
            a(f"s_add_u32 m0, m0, 4096\ns_add_u32 s{sA}, s{sA}, 4096")
        a(f"buffer_load_dwordx4 v{1 + (i >> 1 & 1)}, s[{sT}:{sT + 3}], s{sA} offen offset:{1024 * (i & 3)} lds")
    a(f"K_WE:\ns_waitcnt lgkmcnt(7)\n{qst(0)}")
    for ks in range(4):
        a(f"""
        s_waitcnt lgkmcnt({7 - 2 * ks})
        {mf32(GC, WF + 4 * ks, HA_ + 4 * ks, ks == 0)}
        s_waitcnt lgkmcnt({6 - 2 * ks})
        {mf32(GC + 4, WF + 4 * ks, HB_ + 4 * ks, ks == 0)}
        """)
    a("s_nop 5")
    scale_store(a, GC, 24, vQa, QTB)
    big_test(a, GC, "K_FR")
    a(f"""
    s_cmp_ge_u32 s{sWV}, 8
    s_cbranch_scc1 K_X3 ; @if:w8=1
    s_waitcnt vmcnt(0)
    K_X3:
    s_waitcnt lgkmcnt(0)
    {pr("X3")}
    s_barrier
    """)
    st(4)
    a(f"""
    ds_read_b128 {vr(QR + 4, 4)}, v17 offset:{QTB}
    {qst(1)}
    s_branch K_F
    K_AUX:
    s_mul_i32 s{sA}, s2, 13
    s_add_u32 s{sA}, s{sA}, s{sWV}
    s_sub_u32 s{sA}, s{sA}, {125 * 13}
    s_cmp_ge_u32 s{sWV}, 13
    s_cmov_b32 s{sA}, 64
    s_cmp_ge_u32 s{sA}, 32
    s_cbranch_scc1 K_AX2
    s_lshr_b32 s{sB2}, s{sA}, 2
    s_and_b32 s{sA}, s{sA}, 3
    s_lshl_b32 s{sP1}, s{sA}, 10
    s_lshl_b32 s{sP1 + 1}, s{sB2}, 5
    s_add_u32 s{sP1}, s{sP1}, s{sP1 + 1}
    s_add_u32 s{sP1}, s{sP1}, {32768 + 4096}
    v_lshlrev_b32 v24, 1, v15
    v_lshl_add_u32 v24, v14, 8, v24
    v_add_u32 v24, s{sP1}, v24
    """)
    for j in range(8):
        a(f"global_load_ushort v{4 + j}, v24, s[18:19] offset:{0 if j & 1 else -4096}")
        if j & 1 and j < 7:
            a("v_add_u32 v24, 0x2000, v24")
    a(f"""
    s_lshl_b32 s{sA}, s{sA}, 6
    s_lshl_b32 s{sB2}, s{sB2}, 12
    s_add_u32 s{sA}, s{sA}, s{sB2}
    s_add_u32 s{sA}, s{sA}, {QROWS * 256}
    v_lshl_add_u32 v25, v15, 8, s{sA}
    v_lshl_add_u32 v25, v14, 4, v25
    s_waitcnt vmcnt(0)
    """)
    for k in range(4):
        a(f"v_lshl_or_b32 v{4 + k}, v{4 + 2 * k + 1}, 16, v{4 + 2 * k}")
    a(f"""
    global_store_dwordx4 v25, v[4:7], s[{sW}:{sW + 1}] sc1
    K_AX2:
    s_waitcnt vmcnt(0) lgkmcnt(0)
    s_barrier
    s_branch K_PH
    K_ZF:
    s_mov_b32 s{sA}, {WS_SYNC + 4096}
    v_lshl_add_u32 v2, v0, 6, s{sA}
    v_add_u32 v3, 0x2000, v2
    v_mov_b32 v4, 0
    v_mov_b32 v5, 1
    s_waitcnt lgkmcnt(0)
    global_store_dword v2, v4, s[{sW}:{sW + 1}] offset:-4096 sc1
    global_store_dword v2, v4, s[{sW}:{sW + 1}] sc1
    global_store_dword v3, v4, s[{sW}:{sW + 1}] offset:-4096 sc1
    global_store_dword v3, v4, s[{sW}:{sW + 1}] sc1
    s_waitcnt vmcnt(0)
    s_mov_b64 exec, 1
    global_store_dword v4, v5, s[22:23] sc1
    s_mov_b64 exec, -1
    s_branch K_LD
    K_PLD:
    s_cmp_eq_u32 s{sWV}, 14
    s_waitcnt vmcnt(0)
    s_cbranch_scc0 K_PB ; @if:w14=0
    global_load_dword v{vZ + 1}, v{vZ}, s[22:23] sc1
    s_branch K_PB
    K_POV:
    ds_read_b128 v[20:23], v{LA} offset:128
    ds_read_b128 v[24:27], v{LA} offset:{128 * 160 + 128}
    s_mul_i32 s{sB2}, s2, -96
    s_add_u32 s{sB2}, s{sB2}, 16000
    s_mov_b32 s{sP1}, 0x03030303
    s_mov_b32 s{sP1 + 1}, 0x03030303
    v_add_u32 v28, s{sB2}, v{GA}
    v_add_u32 v29, s{sB2}, v{GA + 1}
    s_waitcnt lgkmcnt(0)
    """)
    for i in range(2):
        a(f"""
        v_cmp_lt_u32 vcc, 24, v{CA + i}
        s_and_b64 exec, vcc, s[{sP1}:{sP1 + 1}]
        s_cbranch_execz K_OV{i}
        global_store_dwordx4 v{28 + i}, {vr(20 + 4 * i, 4)}, s[{sP3}:{sP3 + 1}] sc1
        v_cmpx_lt_u32 vcc, 32, v{CA + i}
        """)
        for k in range(4):
            a(f"v_mov_b32 v{4 + 4 * i + k}, -1")
        a(f"K_OV{i}:\ns_mov_b64 exec, -1")
    a(f"""
    s_branch K_PST
    K_FQ:
    v_mov_b32 v36, {MISC}
    v_mov_b32 v37, 0x10000
    ds_write_b32 v36, v37
    s_branch K_FQB
    K_FR:
    v_mov_b32 v36, {MISC}
    v_mov_b32 v37, 0x10000
    ds_write_b32 v36, v37
    s_branch K_FRB
    K_FP:
    v_mov_b32 v36, {MISC + 4}
    ds_write_b32 v36, v36
    s_branch K_FPB
    K_JOB:
    s_cmp_lg_u32 s{sWV}, 14
    s_cbranch_scc1 K_JB0 ; @if:w14=0
    v_mov_b32 v{vZ}, 0
    s_mov_b64 exec, 1
    """)
    poll(a, "K_ZP", f"global_load_dword v{vZ + 1}, v{vZ}, s[22:23] sc1", "", vZ + 1, False)
    a(f"""
    s_lshl_b32 s{sA}, s2, 6
    s_add_u32 s{sA}, s{sA}, {FP}
    v_mov_b32 v{vZ}, s{sA}
    s_cmp_ge_u32 s2, 128
    s_cbranch_scc1 K_ZQ
    global_store_dword v{vZ}, v{vZ}, s[{sW}:{sW + 1}] sc1
    K_ZQ:
    s_mov_b64 exec, -1
    s_branch K_PD_E
    K_JB0:
    s_cmp_lt_u32 s{sWV}, 13
    s_cbranch_scc1 K_JB1 ; @if:lo=1
    v_cmp_eq_u32 vcc, 32, v0
    v_cmp_eq_u32 s[{sP1}:{sP1 + 1}], 33, v0
    v_mov_b32 v12, 0x3f80
    v_lshlrev_b32 v4, 4, v0
    v_cndmask_b32 v8, 0, v12, vcc
    v_cndmask_b32 v9, 0, v12, s[{sP1}:{sP1 + 1}]
    v_lshlrev_b32 v10, 16, v8
    v_lshlrev_b32 v11, 16, v9
    ds_write_b128 v4, v[8:11] offset:{OH}
    v_lshlrev_b32 v4, 3, v0
    v_lshlrev_b32 v12, 1, v0
    v_add_u32 v12, {QROWS}, v12
    v_add_u32 v13, 1, v12
    ds_write_b64 v4, v[12:13] offset:{FAKE}
    s_branch K_PD_E
    K_JB1:
    s_lshl_b32 s{sA}, s{sWV}, 8
    s_add_u32 s{sA}, s{sA}, {65536 - 2560}
    s_add_u32 s{sP1}, s14, s{sA}
    s_addc_u32 s{sP1 + 1}, s15, 0
    s_cmp_eq_u32 s{sWV}, 12
    s_cselect_b64 s[{sP1}:{sP1 + 1}], s[16:17], s[{sP1}:{sP1 + 1}]
    v_lshlrev_b32 v4, 2, v0
    global_load_dword v10, v4, s[{sP1}:{sP1 + 1}]
    s_branch K_PD_E
    K_JB2:
    s_cmp_ge_u32 s{sWV}, 13
    s_cbranch_scc1 K_JB4 ; @if:lo=0
    s_cmp_eq_u32 s{sWV}, 12
    v_lshrrev_b32 v8, 3, v0
    s_waitcnt vmcnt(0)
    v_and_b32 v11, 0xffff0000, v10
    v_lshlrev_b32 v10, 16, v10
    s_cbranch_scc1 K_JB3
    s_cmp_eq_u32 s{sWV}, 10
    s_cselect_b32 s{sA}, 1.0, {f32(-LOG2E)}
    s_mov_b32 s{sB2}, {f32(15.0)}
    s_cmov_b32 s{sB2}, {f32(32.0)}
    v_mul_f32 v10, s{sA}, v10
    v_mul_f32 v11, s{sA}, v11
    v_and_b32 v12, 0x7fffffff, v10
    v_and_b32 v13, 0x7fffffff, v11
    v_max_u32 v12, v12, v13
    v_and_b32 v8, 1, v8
    v_mul_i32_i24 v8, -101, v8
    v_ldexp_f32 v10, v10, v8
    v_ldexp_f32 v11, v11, v8
    v_cvt_pk_bf16_f32 v10, v10, v11
    s_lshl_b32 s{sA}, s{sWV}, 8
    v_add_u32 v4, s{sA}, v4
    ds_write_b32 v4, v10 offset:{WD - 2560}
    """)
    scan64(a, 12, "v_max_u32")
    a(f"""
    s_lshl_b32 s{sA}, s{sWV}, 2
    v_rcp_f32 v12, v12
    v_mov_b32 v4, s{sA}
    v_mul_f32 v12, s{sB2}, v12
    s_mov_b32 exec_lo, 0
    s_brev_b32 exec_hi, 1
    ds_write_b32 v4, v12 offset:{MISC + 8 - 40}
    s_mov_b64 exec, -1
    s_branch K_G0
    K_JB3:
    v_mul_f32 v10, {f32(-LN2 * (1 + DELTA))}, v10
    v_mul_f32 v11, {f32(-LN2 * (1 + DELTA))}, v11
    v_and_b32 v4, 7, v0
    v_lshlrev_b32 v4, 6, v4
    v_lshl_add_u32 v4, v8, 2, v4
    ds_write_b32 v4, v10 offset:{WX}
    ds_write_b32 v4, v11 offset:{WX + 32}
    s_branch K_G0
    K_JB4:
    s_cmp_eq_u32 s{sWV}, 14
    s_cbranch_scc0 K_G0 ; @if:w14=0
    """)
    poll128(a, "K_PP", FP, 8)
    a(f"""
    s_branch K_G0
    K_OWN1:
    v_add_u32 v50, s{sNB}, v0
    v_mad_u32_u24 v50, v50, 6, v48
    v_cmp_gt_u32 vcc, s{sNV}, v0
    v_mov_b32 v51, {OOB}
    v_mov_b32 v52, 0
    v_mov_b32 v53, 0
    v_mov_b32 v54, 0
    v_mov_b32 v55, 0
    v_cndmask_b32 v50, v51, v50, vcc
    ds_read_u16_d16_hi v52, v50
    ds_read_u16_d16_hi v53, v50 offset:2
    ds_read_u16_d16_hi v54, v50 offset:4
    s_branch K_OWN1B
    K_PAD:
    s_cmp_eq_u32 s{sWV}, 14
    s_cbranch_scc1 K_PADB ; @if:w14=1
    s_cmp_eq_u32 s{sWV}, 13
    s_cbranch_scc1 K_OWN2 ; @if:w13=1
    v_mov_b32 v53, 0
    ds_read_b32 v57, v53 offset:{MISC}
    v_add_lshl_u32 v25, v0, s{sTOT}, 4
    v_mov_b32 v52, {N | (4 * PADN) << 16}
    v_mov_b32 v54, 0
    v_mov_b32 v55, 0
    v_cndmask_b32 v25, v25, v24, {g3}
    ds_write_b128 v25, v[52:55] offset:{LIST}
    s_lshl_b32 s{sA}, s2, 6
    s_add_u32 s{sA}, s{sA}, {FP}
    v_mov_b32 v58, s{sA}
    s_waitcnt lgkmcnt(1)
    v_or_b32 v57, 1, v57
    s_branch K_PADB
    K_OWN2:
    v_lshlrev_b32 v25, 4, v0
    s_mov_b32 exec_hi, 0x1fffff
    ds_write_b128 v25, v[52:55] offset:{OWN}
    s_mov_b64 exec, -1
    s_branch K_PADB
    K_QP:
    """)
    poll128(a, "K_QPP", FQ, T)
    a(f"""
    v_or_b32 v{T}, v{T + 1}, v{T + 2}
    v_cmp_lt_u32 vcc, 0xffff, v{T}
    s_cbranch_vccz K_QB
    ds_write_b32 v{S}, v{vIS} offset:{MISC + 4}
    s_waitcnt lgkmcnt(0)
    s_branch K_QB
    K_NT0:
    s_waitcnt vmcnt(0)
    {rdq(0)}
    {rdq(1)}
    """)
    exit_loads("K_XB")
    a("s_branch K_POST")
    a(f"""
    K_WIN:
    s_min_u32 s{sA}, s{sEW}, s{sTS}
    v_cmp_ge_u32 vcc, s{sA}, v{vIncl}
    s_mov_b32 s{sLAST}, 0 ; @set:last=0
    s_bcnt1_i32_b64 s{sNWN}, vcc
    s_branch K_FLUSH
    K_SLIDE:
    v_mov_b32 v{S}, 0
    v_mov_b32 v{S + 1}, 0
    v_and_b32 v17, 3, v0
    v_subrev_u32 v18, s{sNW}, v17
    v_subrev_u32 v17, s{sNWN}, v17
    v_and_b32 v18, 3, v18
    v_and_b32 v17, 3, v17
    s_sub_u32 s{sA}, s{sNWN}, s{sNW}
    v_sub_u32 v17, v17, v18
    v_add_u32 v17, s{sA}, v17
    v_mul_u32_u24 v17, {OOB}, v17
    s_mov_b32 s{sNW}, s{sNWN}
    s_mov_b64 exec, s[{sP1}:{sP1 + 1}]
    """)
    for k in range(16):
        a(f"v_mov_b64 {vr(AC + 2 * k, 2)}, 0")
    a(f"""
    s_mov_b64 exec, -1
    s_cmp_lt_u32 s{sEW}, s{sTS}
    s_cbranch_scc1 K_REDO
    s_sub_u32 s{sA}, s{sNW}, s{sN0}
    s_cmp_gt_u32 s{sA}, 8
    s_cbranch_scc1 K_RESTART
    {zero4(ZE + 4)}
    {zero4(L)}
    v_sub_u32 v{vSa}, v{vSa}, v17
    v_sub_u32 v{vBS}, v{vBS}, v17
    """)
    window(a)
    a(f"""
    s_branch K_EV2
    K_REDO:
    s_sub_u32 s{sTS}, s{sTS}, 16
    K_RESTART:
    s_mov_b32 s{sN0}, s{sNW}
    """)
    ptrs(a)
    a("s_waitcnt vmcnt(0) lgkmcnt(0)")
    list_reads(a)
    a(f"""
    s_waitcnt lgkmcnt(0)
    s_branch K_XFR
    K_LOOPF:
    {loop_body('M1 Y1 M2 Y2 Fa Fb m s 0 v D V', DORD, False)}
    s_cbranch_scc1 K_LOOPF
    s_branch K_EV
    """)
    a(f"""
    K_OVF:
    v_lshrrev_b32 v49, 3, v{vT}
    v_lshlrev_b32 v56, v49, v19
    v_lshrrev_b32 v49, 5, v49
    v_lshlrev_b32 v49, 2, v49
    s_mov_b64 exec, vcc
    ds_or_b32 v49, v56 offset:{CNT + 208}
    s_mov_b64 exec, -1
    s_branch K_OVFB
    K_MASK:
    """)
    for k in range(4):
        a(f"v_readlane_b32 s{sMK + k}, v49, {52 + k}")
    a(f"""
    v_cmp_gt_u32 vcc, 52, v0
    s_mov_b32 s{sRARE}, 1
    s_nop 0
    v_cndmask_b32 v49, 0, v49, vcc
    s_branch K_MASKB
    K_SHRINK:
    s_movk_i32 s{sWID}, {CAP // 4}
    s_mov_b32 s{sLO}, 0
    s_mov_b32 s{sRARE}, 1
    s_branch K_ROUND
    K_NEXT:
    s_mov_b32 s{sQA}, 0
    s_add_u32 s{sLO}, s{sLO}, s{sWID}
    s_cmp_lt_u32 s{sWID}, 1024
    s_cselect_b32 s{sA}, s{sLO}, 1024
    s_cmp_lt_u32 s{sA}, 1000
    s_cbranch_scc1 K_ROUND
    s_mov_b32 s{sLO}, 0
    s_movk_i32 s{sWID}, 1024
    s_ff1_i32_b64 s{sSRC}, s[{sMK}:{sMK + 1}]
    s_cmp_lt_i32 s{sSRC}, 0
    s_cbranch_scc1 K_NEXT2
    s_bitset0_b64 s[{sMK}:{sMK + 1}], s{sSRC}
    s_branch K_ROUND
    K_NEXT2:
    s_ff1_i32_b64 s{sSRC}, s[{sMK + 2}:{sMK + 3}]
    s_cmp_lt_i32 s{sSRC}, 0
    s_cbranch_scc0 K_NEXT3
    s_cmp_lg_u32 s{sD}, 0
    s_cbranch_scc1 K_S1
    s_branch K_S0
    K_NEXT3:
    s_bitset0_b64 s[{sMK + 2}:{sMK + 3}], s{sSRC}
    s_add_u32 s{sSRC}, s{sSRC}, 64
    K_ROUND:
    s_load_dwordx2 s[6:7], s[0:1], 8
    s_load_dwordx4 s[8:11], s[0:1], 16
    s_load_dwordx2 s[12:13], s[0:1], 32
    s_lshl_b32 s{sA}, s{sWV}, 6
    v_add_u32 v{vT}, s{sA}, v0
    v_lshlrev_b32 v19, 4, v{vT}
    s_waitcnt vmcnt(0) lgkmcnt(0) ; @set:nt=x
    s_barrier
    """)
    zero_init(a, (PAC - MR - 16384) // 16)
    pos_dma(a, "K_PR")
    rec_addr(a, 28)
    a(f"""
    s_cmp_ge_i32 s{sSRC}, 0
    s_cbranch_scc1 K_RAW
    """)
    rec_load(a, 28)
    a(f"""
    s_waitcnt vmcnt(0)
    v_and_b32 v{vDL}, 0xbfbfbfbf, v{vDL}
    s_branch K_RANGE
    K_RAW:
    s_cmp_ge_u32 s{sWV}, 13
    s_cbranch_scc1 K_RANGE
    s_mul_i32 s{sA}, s{sSRC}, 12800
    v_cmp_gt_u32 vcc, 800, v{vT}
    v_add_u32 v28, s{sA}, v19
    v_lshrrev_b32 v29, 1, v28
    s_mov_b64 exec, vcc
    global_load_dwordx4 v[32:35], v28, s[12:13]
    global_load_dwordx4 {vr(W, 4)}, v28, s[10:11]
    global_load_dwordx2 v[36:37], v29, s[8:9]
    s_mov_b32 s{sA}, 342393
    s_mov_b32 s{sB2}, 0xffff0000
    v_mov_b32 v38, 0xbf
    s_waitcnt vmcnt(0)
    """)
    for j in range(4):
        a(f"""
        v_mul_u32_u24 v{32 + j}, s{sA}, v{32 + j}
        v_lshrrev_b32 v39, 24, v{32 + j}
        v_cmp_eq_u32 vcc, s{sB}, v39
        v_mul_hi_u32_u24 v{32 + j}, 12544, v{32 + j}
        """)
        if j & 1:
            a(f"v_and_or_b32 v{W + j}, v{36 + j // 2}, s{sB2}, v{W + j}")
        else:
            a(f"v_lshl_or_b32 v{W + j}, v{36 + j // 2}, 16, v{W + j}")
        a(f"v_cndmask_b32 v{32 + j}, v38, v{32 + j}, vcc")
    a(f"""
    v_lshl_or_b32 v32, v33, 8, v32
    v_lshl_or_b32 v34, v35, 8, v34
    v_lshl_or_b32 v{vDL}, v34, 16, v32
    s_mov_b64 exec, -1
    K_RANGE:
    v_subrev_u32 v28, s{sLO}, v{vT}
    v_cmp_gt_u32 vcc, s{sWID}, v28
    v_mov_b32 v28, 0xbfbfbfbf
    s_waitcnt vmcnt(0) lgkmcnt(0)
    v_cndmask_b32 v{vDL}, v28, v{vDL}, vcc
    s_barrier
    s_branch K_B0
    """)
    return a.text()
```

```python
import re
import sys

TRANS = ("v_exp_", "v_log_", "v_rcp_", "v_rsq_", "v_sqrt_", "v_sin_", "v_cos_")


def regs_of(tok):
    tok = tok.strip()
    neg = tok.startswith("-")
    if neg:
        tok = tok[1:]
    m = re.fullmatch(r"(?:abs|sext)\((.*)\)", tok)
    if m:
        tok = m.group(1)
    m = re.fullmatch(r"\|(.*)\|", tok)
    if m:
        tok = m.group(1)
    m = re.fullmatch(r"([vsa])\[(\d+):(\d+)\]", tok)
    if m:
        return [f"{m.group(1)}{i}" for i in range(int(m.group(2)), int(m.group(3)) + 1)]
    m = re.fullmatch(r"([vsa])(\d+)", tok)
    if m:
        return [tok]
    if tok == "vcc":
        return ["vcc"]
    if tok in ("vcc_lo", "vcc_hi"):
        return ["vcc"]
    if tok in ("exec", "exec_lo", "exec_hi"):
        return ["exec"]
    if tok == "m0":
        return ["m0"]
    return []


class Ins:
    def __init__(self, text, lineno):
        self.lineno = lineno
        self.text = text
        code, _, com = text.partition(";")
        self.tags_w = re.findall(r"@w:(\w+)", com)
        self.tags_r = re.findall(r"@r:(\w+)", com)
        self.sets = re.findall(r"@set:(\w+)=(\w+)", com)
        self.cond = re.findall(r"@if:(\w+)=(\d)", com)
        self.is_ = re.findall(r"@is:(\w+)=(\d)", com)
        code = code.strip()
        parts = code.split(None, 1)
        self.op = parts[0]
        rest = parts[1] if len(parts) > 1 else ""
        ops = []
        depth = 0
        cur = ""
        for ch in rest:
            if ch == "[":
                depth += 1
            if ch == "]":
                depth -= 1
            if ch == "," and depth == 0:
                ops.append(cur.strip())
                cur = ""
            else:
                cur += ch
        if cur.strip():
            ops.append(cur.strip())
        self.mods = ""
        if ops:
            last = ops[-1].split(None, 1)
            ops[-1] = last[0]
            self.mods = last[1] if len(last) > 1 else ""
        self.ops = ops
        self.classify()

    def classify(self):
        op, ops = self.op, self.ops
        R = [regs_of(o) for o in ops]
        self.kind = "other"
        self.dst, self.src = [], []
        self.srcC = []
        self.lanesel = []
        self.ws = 1
        self.target = None
        flat = lambda L: [x for l in L for x in l]
        if op == "s_nop":
            self.ws = int(ops[0], 0) + 1
            self.kind = "nop"
        elif op.startswith("v_mfma"):
            self.kind = "mfma"
            self.dst = R[0]
            self.src = R[1] + R[2] + R[3]
            self.srcAB = R[1] + R[2]
            self.srcC = R[3]
            self.passes = 8 if "32x32" in op else 4
        elif op.startswith("v_smfmac"):
            self.kind = "mfma"
            self.dst = R[0]
            self.src = R[0] + R[1] + R[2] + R[3]
            self.srcAB = R[1] + R[2] + R[3]
            self.srcC = R[0]
            self.passes = 4
        elif op.startswith("v_cmp"):
            self.kind = "valu"
            self.dst = R[0] + (["exec"] if op.startswith("v_cmpx") else [])
            self.src = flat(R[1:])
        elif op in ("v_readlane_b32", "v_readfirstlane_b32"):
            self.kind = "valu"
            self.dst = R[0]
            self.src = flat(R[1:])
            if op == "v_readlane_b32":
                self.lanesel = R[2]
        elif op == "v_writelane_b32":
            self.kind = "valu"
            self.dst = R[0]
            self.src = flat(R)
            self.lanesel = R[2]
        elif op.startswith("v_"):
            self.kind = "valu"
            self.dst = R[0]
            self.src = flat(R[1:])
            if "_co_" in op or op.startswith("v_mad_u64"):
                self.dst = R[0] + R[1]
                self.src = flat(R[2:])
            if op.startswith(("v_fmac", "v_pk_fmac", "v_dot2c")) or "_dpp" in op or "row_" in self.mods or "quad_perm" in self.mods:
                self.src = self.src + R[0]
            if "UNUSED_PRESERVE" in self.mods:
                self.src = self.src + R[0]
            if op.startswith("v_permlane") or op.startswith("v_swap"):
                self.dst = R[0] + R[1]
                self.src = R[0] + R[1]
        elif op.startswith("ds_"):
            self.kind = "ds"
            if op.startswith(("ds_read", "ds_bpermute", "ds_permute", "ds_swizzle")) or "_rtn" in op:
                self.dst = R[0]
                self.src = flat(R[1:])
                if "d16" in op:
                    self.partial = True
            else:
                self.src = flat(R)
        elif op.startswith(("buffer_", "global_")):
            self.kind = "vm"
            if " lds" in " " + self.mods:
                self.src = flat(R) + ["m0"]
                self.isdma = True
            elif "_load" in op:
                self.dst = R[0]
                self.src = flat(R[1:])
            else:
                self.src = flat(R)
                self.stdata = R[0] if op.startswith("buffer_") else R[1]
                if "atomic" in op and "sc0" in self.mods:
                    self.dst = R[0]
                    self.src = flat(R[1:])
        elif op.startswith(("s_load", "s_memtime", "s_memrealtime", "s_buffer_load")):
            self.kind = "smem"
            self.dst = R[0]
            self.src = flat(R[1:])
        elif op == "s_waitcnt":
            self.kind = "wait"
            t = " ".join(ops) + " " + self.mods
            m = re.search(r"vmcnt\((\d+)\)", t)
            self.vm = int(m.group(1)) if m else None
            m = re.search(r"lgkmcnt\((\d+)\)", t)
            self.lg = int(m.group(1)) if m else None
        elif op.startswith("s_cbranch") or op == "s_branch":
            self.kind = "branch"
            self.target = ops[0]
            if "vcc" in op:
                self.src = ["vcc"]
            if "exec" in op:
                self.src = ["exec"]
        elif op == "s_endpgm":
            self.kind = "end"
        elif op.startswith("s_cmp") or op.startswith("s_bitcmp"):
            self.kind = "salu"
            self.src = flat(R)
        elif op in ("s_barrier", "s_setprio", "s_sleep", "s_setreg_imm32_b32"):
            self.kind = "other"
        elif op.startswith("s_"):
            self.kind = "salu"
            self.dst = R[0] + (["exec"] if "saveexec" in op else [])
            self.src = flat(R[1:])
            if op in ("s_addk_i32", "s_mulk_i32", "s_bitset0_b32", "s_bitset1_b32", "s_bitset0_b64", "s_cmov_b32", "s_cmovk_i32"):
                self.src = self.src + R[0]
        else:
            raise ValueError(f"unknown op {op} line {self.lineno}")
        self.trans = op.startswith(TRANS)
        self.dpp = self.kind == "valu" and ("_dpp" in op or "row_" in self.mods or "quad_perm" in self.mods)
        self.dot = op.startswith("v_dot")
        m = re.search(r"dst_sel:(\w+)", self.mods)
        self.movesbits = bool(m and m.group(1) != "DWORD")
        m = re.search(r"op_sel:\[([\d,]+)\]", self.mods)
        if m and not op.startswith("v_pk_") and not self.dot and self.kind == "valu":
            bits = m.group(1).split(",")
            if len(bits) == len(self.ops) and bits[-1] == "1":
                self.movesbits = True


def parse(text):
    ins, labels = [], {}
    for n, line in enumerate(text.split("\n"), 1):
        s = line.strip()
        if not s or s.startswith((";", ".", "//")):
            continue
        m = re.fullmatch(r"([\w.$]+):\s*(;.*)?", s)
        if m:
            labels[m.group(1)] = len(ins)
            continue
        ins.append(Ins(s, n))
    return ins, labels


def succs(ins, labels, i):
    x = ins[i]
    if x.kind == "end":
        return []
    if x.kind == "branch":
        t = labels[x.target]
        return [t] if x.op == "s_branch" else [t, i + 1]
    return [i + 1] if i + 1 < len(ins) else []


def need(p, c):
    n = 0
    pd = set(p.dst)
    ov = lambda a, b: bool(set(a) & set(b))
    if p.kind == "valu":
        vd = {r for r in pd if r[0] in "va" and r != "vcc"}
        sd = {r for r in pd if r[0] == "s" or r == "vcc"}
        if c.kind == "mfma" and ov(vd, c.src):
            n = max(n, 3 if p.dot else 2)
        if c.kind == "mfma" and "exec" in pd:
            n = max(n, 4)
        if c.kind == "valu":
            if p.trans and not c.trans and ov(vd, c.src):
                n = max(n, 1)
            if p.movesbits and ov(vd, c.src + c.dst):
                n = max(n, 1)
            if c.op in ("v_readlane_b32", "v_readfirstlane_b32") and ov(vd, c.src):
                n = max(n, 1)
            if (c.dpp or c.op.startswith("v_permlane")) and ov(vd, c.src):
                n = max(n, 2)
            if ov(sd, c.src):
                n = max(n, 2)
            if ov(sd, c.lanesel):
                n = max(n, 4)
            if "exec" in pd and c.dpp:
                n = max(n, 5)
            if "exec" in pd and c.op.startswith(("v_readlane", "v_readfirstlane", "v_writelane", "v_permlane")):
                n = max(n, 4)
            if p.dot and ov(vd, c.src + c.dst):
                same = c.op == p.op and not ov(vd, regs_of(c.ops[1]) + regs_of(c.ops[2]))
                n = max(n, 0 if same else 3)
        if p.dot and c.kind in ("ds", "vm") and ov(vd, c.src + c.dst):
            n = max(n, 3)
        if c.kind == "vm" and ov(sd, c.src):
            n = max(n, 5)
        if c.kind in ("vm", "ds") and "exec" in pd:
            n = max(n, 5)
        if c.kind in ("salu", "branch", "smem") and ov(sd, c.src):
            n = max(n, 0)
    if p.kind in ("ds", "vm") and c.dpp and ov(pd, c.src):
        n = max(n, 0)
    if p.kind == "mfma":
        big = {4: 8, 8: 12}[p.passes]
        if c.kind == "mfma":
            if ov(pd, c.srcAB):
                n = max(n, big)
            if ov(pd, c.srcC):
                if not (c.srcC == p.dst and c.op == p.op):
                    n = max(n, {4: 8, 8: 12}[p.passes])
            elif ov(pd, c.dst):
                n = max(n, {4: 6, 8: 10}[p.passes])
        elif c.kind in ("valu", "ds", "vm"):
            if ov(pd, c.src + c.dst):
                n = max(n, big)
            if c.kind == "valu" and ov(p.srcC, c.dst):
                n = max(n, {4: 3, 8: 7}[p.passes])
    if p.kind == "salu" and "m0" in pd and c.kind == "vm" and getattr(c, "isdma", False):
        n = max(n, 1)
    if p.kind == "vm" and hasattr(p, "stdata") and len(p.stdata) >= 3 and ov(p.stdata, c.dst):
        n = max(n, 2 if c.kind in ("valu", "mfma") else 1)
    return n


def check_hazards(ins, labels):
    errs = []
    for i, p in enumerate(ins):
        if p.kind not in ("valu", "mfma", "salu", "vm"):
            continue
        stack = [(j, 0) for j in succs(ins, labels, i)]
        seen = {}
        while stack:
            j, d = stack.pop()
            if d >= 13 or seen.get(j, 99) <= d:
                continue
            seen[j] = d
            c = ins[j]
            k = need(p, c)
            if k > d:
                errs.append(f"hazard: line {p.lineno} `{p.text}` -> line {c.lineno} `{c.text}` need {k} have {d}")
            for q in succs(ins, labels, j):
                stack.append((q, d + c.ws))
    return errs


def check_waits(ins, labels, entry):
    errs = set()
    seen = set()
    stack = [(entry, (), (), (), ())]
    steps = 0
    while stack:
        i, vm, lg, sm, fl = stack.pop()
        key = (i, vm, lg, sm, fl)
        if key in seen:
            continue
        seen.add(key)
        steps += 1
        if steps > 3000000:
            errs.add("wait check: state limit reached")
            break
        x = ins[i]
        reads = set(x.src) | {"@" + t for t in x.tags_r}
        writes = set(x.dst) | {"@" + t for t in x.tags_w}
        for q, name in ((vm, "vm"), (lg, "lgkm"), (sm, "smem")):
            for j in q:
                o = ins[j]
                od = set(o.dst) | {"@" + t for t in o.tags_w}
                ord_ = {"@" + t for t in o.tags_r}
                samecls = (name == "vm" and x.kind == "vm") or (name == "lgkm" and x.kind == "ds")
                bad = od & reads
                if samecls and name == "lgkm":
                    bad = {r for r in bad if not r.startswith("@")}
                if not samecls:
                    bad = bad | (od & writes) | (ord_ & writes)
                if bad:
                    errs.add(f"wait: line {x.lineno} `{x.text}` uses {sorted(bad)} pending from line {o.lineno} `{o.text}` ({name})")
        if x.kind == "vm":
            vm = (vm + (i,))[-64:]
        elif x.kind == "ds":
            lg = (lg + (i,))[-40:]
        elif x.kind == "smem":
            sm = sm + (i,)
        elif x.kind == "wait":
            if x.vm is not None:
                vm = vm[len(vm) - x.vm:] if x.vm < len(vm) else vm
                if x.vm == 0:
                    vm = ()
            if x.lg is not None:
                if x.lg == 0:
                    lg, sm = (), ()
                elif not sm:
                    lg = lg[len(lg) - x.lg:] if x.lg < len(lg) else lg
                if x.lg > 15:
                    errs.add(f"lgkmcnt > 15 at line {x.lineno}")
        elif x.op == "s_barrier":
            for j in lg:
                o = ins[j]
                if not o.dst or "_rtn" in o.op:
                    if "nobar" not in o.text:
                        errs.add(f"barrier line {x.lineno}: LDS write pending from line {o.lineno} `{o.text}`")
        d = dict(fl)
        for k, v in x.sets:
            d.pop(k, None)
            if v != "x":
                d[k] = int(v)
        for n, q in enumerate(succs(ins, labels, i)):
            e = dict(d)
            ok = True
            for k, v in x.cond:
                want = int(v) if n == 0 else 1 - int(v)
                ok &= e.setdefault(k, want) == want
            for k, v in x.is_:
                ok &= (e[k] == int(v)) == (n == 0)
            if "@once" in x.text and n == 0:
                ok &= not e.get("once")
                e["once"] = 1
            ok &= not (e.get("p") == 1 and e.get("q") == 1)
            ok &= sum(e.get(k, 0) for k in ("lo", "w13", "w14", "w15")) <= 1
            if ok:
                stack.append((q, vm, lg, sm, tuple(sorted(e.items()))))
    return sorted(errs)


def lint(text, entries):
    ins, labels = parse(text)
    errs = check_hazards(ins, labels)
    for e in entries:
        errs += check_waits(ins, labels, labels[e])
    return errs


if __name__ == "__main__":
    t = open(sys.argv[1]).read()
    for e in lint(t, sys.argv[2:]):
        print(e)
```

```python
from common import *

CAP = 2016
CNT, LUT = 0, 256
MR, MST = 8448, 288
SEL = MR + 64 * MST
PAC = SEL + 49 * 32
MISC = PAC + 52 * 16
RDY = PAC + 12
OH = MISC + 16
WD, WX, FAKE = OH + 1024, OH + 1536, OH + 2048
OWN = OH + 2560
LIST = OWN + 53 * 16
HT2 = QTB = 32768
QTA = 46336
POSL = RING = OT = WS1 = 73984
PB = WS2 = WS1 + 32768
CNTP = OH
HT = PB + 40960
PT = 163840 - 49 * 288
OST = QST = 272
PADN = 52
FP, FQ = WS_SYNC, WS_SYNC + 8192
SPIN = 1 << 18
assert LIST + (CAP + 48) * 16 <= LUT + 65536 and POSL + 75008 <= PT and LIST <= HT2 and HT % 256 == 0 and HT + 13312 <= 163840

sWV = 3
sW, sH, sO, sR, sMK = 24, 28, 32, 36, 40
sB, sNB, sNV, sRARE, sQW, sSRC, sLO, sWID = 44, 45, 46, 47, 48, 49, 50, 51
sTOT, sTS, sWT, sWEND, sN0, sNW, sEW, sEV = 52, 53, 54, 55, 56, 57, 58, 59
sNF, sNL, sMODE, sNWN, sC000, s128, s256, s192, sLAST = 60, 61, 62, 63, 64, 65, 66, 68, 69
sM0, sG3 = 70, 74
sT, sQA, sQS, sGH = sO, sLAST, sTOT, sNWN
sA, sB2, sC, sD = 76, 77, 78, 79
sP0, sP1, sP2, sP3, sP4 = 80, 82, 84, 86, 88
vRing, vLc, vMul, vIncl, vVoff = 1, 2, 3, 4, 5
vBX, vBS, vIX, vIS, vDa, vEa = 6, 7, 8, 9, 10, 11
vXa, vSa, vD, vDE, vIdx = 12, 13, 14, 15, 16
ZE, ZL, T, L, R, S, A, B, AC, Y = 20, 28, 32, 36, 40, 42, 44, 60, 84, 120
vFa, vG0, vG1 = 116, 117, 118
vDL, vT, W = 17, 18, 20
g3 = sr(sG3, 2)

PAT = "M1 h E Y1 E M2 E Y2 E 0 X X X X m P P P R s R l P P P v D V"
DORD = "SqxdL"
QF = os.environ.get("QF", "")


def dma(kc):
    soff = ["0", "64", f"s{s128}", f"s{s192}"][kc]
    return [f"s_mov_b32 m0, s{sM0 + kc}",
            f"buffer_load_dwordx4 v{vVoff}, s[{sW}:{sW + 3}], {soff} offen {QF}lds ; @w:ring{kc}"]


def rdq(kc, d=None):
    d = A + 2 + 6 * (kc & 1) if d is None else d
    return f"ds_read_b128 {vr(d, 4)}, v{vRing} offset:{1024 * kc} ; @r:ring{kc}"


def Kmf(u, z):
    a0 = A + 6 * ((u // 2) % 2) + (4 if u & 1 else 0)
    b0 = B + 6 * (u // 2) + (2 if u & 1 else 0)
    return f"v_mfma_f32_16x16x32_bf16 {vr(z, 4)}, {vr(a0, 4)}, {vr(b0, 4)}, 0"


def Ymf(u, b):
    return f"v_smfmac_f32_16x16x32_bf16 {vr(AC + 4 * u, 4)}, {vr(S, 2)}, {vr(b, 4)}, v{vIdx}"


def zero4(d):
    return f"v_mfma_f32_16x16x16_bf16 {vr(d, 4)}, {vr(S, 2)}, {vr(S, 2)}, 0"


def mf32(d, x, y, first=False):
    return f"v_mfma_f32_16x16x32_bf16 {vr(d, 4)}, {vr(x, 4)}, {vr(y, 4)}, {'0' if first else vr(d, 4)}"


def loop_body(pat, dord, lut):
    seq = []
    I = lambda t, tag=None: seq.append(("i", t, tag))
    NEED = lambda tag: seq.append(("n", tag, None))
    pk1 = lambda r: f"v_pk_add_f32 {vr(r, 2)}, {vr(r, 2)}, 1.0 op_sel_hi:[1,0]"
    for j in range(4):
        z, zn = ZE + 4 * (j & 1), ZE + 4 * ((j + 1) & 1)
        e = [f"v_exp_f32 v{T + (k ^ 2)}, v{z + k}" for k in range(4)]
        p = [pk1(T + 2),
             f"v_pk_fma_f32 {vr(R, 2)}, {vr(T + 2, 2)}, {vr(T, 2)}, {vr(T + 2, 2)}",
             f"v_pk_fma_f32 {vr(T, 2)}, {vr(z, 2)}, {vr(T, 2)}, {vr(z, 2)}",
             f"v_pk_mul_f32 {vr(T + 2, 2)}, {vr(z + 2, 2)}, {vr(T + 2, 2)}",
             f"v_pk_mul_f32 {vr(z, 2)}, {vr(T, 2)}, {vr(R, 2)}",
             f"v_pk_mul_f32 {vr(z + 2, 2)}, {vr(T + 2, 2)}, {vr(R, 2)}"]
        r = [f"v_rcp_f32 v{R}, v{R}", f"v_rcp_f32 v{R + 1}, v{R + 1}"]
        ix = [f"v_lshlrev_b32_sdwa v{ZL + k}, 1, v{ZL + k} {SD} src1_sel:WORD_1" for k in range(4)]
        d = dma((j + 1) % 4)
        for tok in pat.split():
            if tok == "M1":
                if j < 2:
                    NEED(f"x{j + 1}")
                I(Kmf(2 * j + 1, ZL))
            elif tok == "M2":
                NEED(f"q{(j + 1) % 4}")
                if j == 3:
                    NEED("x0")
                I(Kmf((2 * j + 2) % 8, zn))
            elif tok == "Y1":
                if j == 1:
                    NEED("S")
                I(Ymf((2 * j - 2) % 8, zn))
            elif tok == "Y2":
                if lut:
                    NEED("L")
                I(Ymf((2 * j - 1) % 8, L))
            elif tok == "E":
                I(e.pop(0))
            elif tok == "P":
                I(p.pop(0))
            elif tok == "R":
                I(r.pop(0))
            elif tok == "X":
                I(ix.pop(0))
            elif tok in ("Fa", "Fb"):
                src, dst = (z, z) if tok == "Fa" else (ZL, L)
                if tok == "Fb":
                    for k in range(4):
                        I(f"v_mul_f32 v{ZL + k}, {f32(2.0 ** 101)}, v{ZL + k}")
                for k in range(4):
                    I(f"v_exp_f32 v{T + k}, v{src + k}")
                I(pk1(T))
                I(pk1(T + 2))
                for k in range(4):
                    I(f"v_rcp_f32 v{T + k}, v{T + k}")
                for k in (0, 2):
                    I(f"v_pk_mul_f32 {vr(dst + k, 2)}, {vr(T + k, 2)}, {vr(src + k, 2)}")
            elif tok == "m":
                if j == 0:
                    NEED("dE")
                    I(f"v_mad_u32_u16 v{vXa}, v{vDE}, v{vMul}, v{vBX} op_sel:[1,0,0,0]")
                elif j == 1:
                    I(f"v_mad_u32_u16 v{vSa}, v{vD}, s{sC000}, v{vBS} op_sel:[1,0,0,0]")
                elif j == 2:
                    I(f"v_lshl_add_u64 v[{vDa}:{vEa}], v[{vDa}:{vEa}], 0, s[{s256}:{s256 + 1}]")
                    I(f"v_lshl_add_u64 v[{vBX}:{vBS}], v[{vBX}:{vBS}], 0, v[{vIX}:{vIS}]")
                else:
                    NEED("dD")
                    I(f"v_mad_u32_u16 v{vVoff}, v{vD}, s{s256}, v{vLc}")
            elif tok == "s":
                if j == 2:
                    I(f"s_add_u32 s{sTS}, s{sTS}, 16")
                if j == 3:
                    I(f"s_cmp_lt_i32 s{sTS}, s{sEV}")
            elif tok == "l":
                I("s_setprio 0")
            elif tok == "h":
                I("s_setprio 1")
            elif tok == "0":
                I(d[0])
            elif tok == "v":
                I("s_waitcnt vmcnt(2)")
            elif tok == "V":
                I(d[1])
            elif tok == "D":
                for c in dord:
                    if c == "S" and j == 0:
                        I(f"ds_read_b64_tr_b16 {vr(S, 2)}, v{vSa}", "S")
                    if c == "q":
                        I(rdq((j + 2) % 4), f"q{(j + 2) % 4}")
                    if c == "x" and j:
                        I(f"ds_read_b64 {vr(A + 6 * (j - 1), 2)}, v{vXa}", f"x{j - 1}")
                    if c == "d" and j == 1:
                        I(f"ds_read_b32 v{vD}, v{vDa}", "dD")
                    if c == "d" and j == 3:
                        I(f"ds_read_b32 v{vDE}, v{vEa}", "dE")
                    if c == "L" and lut:
                        for k in range(4):
                            I(f"ds_read_u16_d16_hi v{L + k}, v{ZL + k} offset:{LUT}", "L")
            else:
                raise ValueError(tok)
    q, out = [], []
    for rep in range(2):
        out = []
        for k, t, tag in seq:
            if k == "i":
                out.append(t)
                if t.startswith("ds_"):
                    q.append(tag)
            elif t in q:
                n = q[::-1].index(t)
                out.append(f"s_waitcnt lgkmcnt({n})")
                q = q[len(q) - n:]
    return "\n".join(out)


def ptrs(a):
    a(f"""
    s_lshl_b32 s{sA}, s{sTS}, 4
    s_add_u32 s{sA}, s{sA}, {LIST}
    v_and_b32 v18, -4, v0
    v_and_b32 v19, 15, v0
    v_lshl_add_u32 v{vDa}, v18, 2, s{sA}
    v_lshl_add_u32 v{vEa}, v19, 4, s{sA}
    s_cmp_lt_u32 s{sTS}, s{sWT}
    s_cselect_b64 s[{sP0}:{sP0 + 1}], -1, 0
    s_add_u32 s{sB2}, s{sTS}, 16
    s_cmp_lt_u32 s{sB2}, s{sWT}
    s_cselect_b64 s[{sP1}:{sP1 + 1}], -1, 0
    v_add_u32 v19, 256, v{vDa}
    v_cndmask_b32 v18, v{vFa}, v{vDa}, s[{sP0}:{sP0 + 1}]
    v_cndmask_b32 v19, v{vFa}, v19, s[{sP1}:{sP1 + 1}]
    """)


def list_reads(a):
    a(f"""
    ds_read_b32 v{vSa}, v18
    ds_read_b32 v{vD}, v19
    ds_read_b32 v{vXa}, v{vEa}
    ds_read_b32 v{vDE}, v{vEa} offset:256
    """)


def window(a):
    a(f"""
    s_add_u32 s{sA}, s{sNW}, 3
    v_readlane_b32 s{sEW}, v{vIncl}, s{sA}
    s_sub_u32 s{sB2}, s{sWT}, 32
    s_cmp_ge_u32 s{sEW}, s{sWEND}
    s_cselect_b32 s{sEW}, 0x7fffffff, s{sEW}
    s_sub_u32 s{sA}, s{sEW}, 15
    s_min_i32 s{sEV}, s{sA}, s{sB2}
    """)


def zero_init(a, n2):
    a(f"""
    v_mov_b32 v24, 0
    v_mov_b32 v25, 0
    v_mov_b32 v26, 0
    v_mov_b32 v27, 0
    v_cmp_gt_u32 vcc, {n2}, v{vT}
    ds_write_b128 v19, v[24:27] offset:{MR}
    v_lshlrev_b32 v28, 2, v0
    ds_write_b32 v28, v24 offset:{CNT}
    s_mov_b64 exec, vcc
    ds_write_b128 v19, v[24:27] offset:{MR + 16384}
    s_mov_b64 exec, -1
    """)


def rec_addr(a, r):
    a(f"""
    s_movk_i32 s{sB2}, 96
    s_mov_b32 vcc_lo, 0xc0c0c0c0
    s_mov_b32 vcc_hi, 0xc0c0c0c0
    v_lshrrev_b32 v{r}, 3, v{vT}
    v_lshlrev_b32 v{r + 1}, 2, v{vT}
    v_mad_u32_u24 v{r + 1}, v{r}, s{sB2}, v{r + 1}
    v_mul_i32_i24 v{r}, -96, v{r}
    v_add_u32 v{r}, {16000 - 128}, v{r}
    v_cndmask_b32 v{r}, 0, v{r}, vcc
    v_add_u32 v{r}, v{r}, v19
    v_cmp_gt_u32 vcc, 1000, v{vT}
    v_mov_b32 v{vDL}, 0xbfbfbfbf
    """)


def rec_load(a, r):
    a(f"""
    s_mov_b64 exec, vcc
    global_load_dword v{vDL}, v{r + 1}, s[{sR}:{sR + 1}] sc1
    global_load_dwordx4 {vr(W, 4)}, v{r}, s[{sR}:{sR + 1}] offset:32 sc1
    s_mov_b64 exec, -1
    """)


def pos_dma(a, tag, alt=None):
    srd(a, sT, 6, 75000)
    a(f"""
    s_cmp_ge_u32 s{sWV}, 10
    v_lshlrev_b32 v58, 4, v0
    s_cbranch_scc1 {alt or tag + '_E'}
    s_lshl_b32 s{sA}, s{sWV}, 13
    s_add_u32 m0, s{sA}, {POSL}
    s_cmp_eq_u32 s{sWV}, 9
    buffer_load_dwordx4 v58, s[{sT}:{sT + 3}], s{sA} offen lds
    s_cselect_b64 exec, 0xffff, -1
    buffer_load_dwordx4 v58, s[{sT}:{sT + 3}], s{sA} offen offset:1024 lds
    s_mov_b64 exec, -1
    s_cbranch_scc1 {tag}_E
    buffer_load_dwordx4 v58, s[{sT}:{sT + 3}], s{sA} offen offset:2048 lds
    buffer_load_dwordx4 v58, s[{sT}:{sT + 3}], s{sA} offen offset:3072 lds
    s_add_u32 m0, m0, 4096
    s_add_u32 s{sA}, s{sA}, 4096
    """)
    for i in range(4):
        a(f"buffer_load_dwordx4 v58, s[{sT}:{sT + 3}], s{sA} offen offset:{1024 * i} lds")
    a(f"{tag}_E:")


def poll(a, tag, ld, red, v, first=True):
    a(f"""
    s_mov_b32 s{sA}, {SPIN}
    {ld if first else ''}
    {tag}:
    s_waitcnt vmcnt(0)
    {red}
    v_cmp_eq_u32 vcc, 0, v{v}
    s_sub_u32 s{sA}, s{sA}, 1
    s_cbranch_vccz {tag}_E
    {ld}
    s_cbranch_scc0 {tag}
    s_waitcnt vmcnt(0)
    {tag}_E:
    """)


def poll128(a, tag, off, r):
    a(f"s_mov_b32 s{sA}, {off + 4096}\nv_lshl_add_u32 v{r}, v0, 6, s{sA}")
    ld = "\n".join(f"global_load_dword v{r + 1 + i}, v{r}, s[{sW}:{sW + 1}] offset:{4096 * (i - 1)} sc1" for i in range(2))
    poll(a, tag, ld, f"v_min_u32 v{r + 3}, v{r + 1}, v{r + 2}", r + 3)


def big_test(a, acc, lab):
    for k in range(4):
        p = vr(acc + 2 * k, 2)
        a(f"v_pk_mul_f32 v[36:37], {p}, {p}" if k == 0 else f"v_pk_fma_f32 v[36:37], {p}, {p}, v[36:37]")
    a(f"""
    v_add_f32 v36, v36, v37
    v_cmp_ngt_f32 vcc, {f32(64 * LN2 * LN2)}, v36
    s_cbranch_vccnz {lab}
    {lab}B:
    """)


def scale_pack(a, acc, tmp):
    for t in range(2):
        for k in (0, 2):
            a(f"v_pk_mul_f32 {vr(tmp + 4 * t + k, 2)}, {vr(acc + 4 * t + k, 2)}, s[{sP0}:{sP0 + 1}] op_sel_hi:[1,0]")
        a(f"""
        v_cvt_pk_bf16_f32 v{tmp + 4 * t}, v{tmp + 4 * t}, v{tmp + 4 * t + 1}
        v_cvt_pk_bf16_f32 v{tmp + 4 * t + 1}, v{tmp + 4 * t + 2}, v{tmp + 4 * t + 3}
        """)


def tile_write(tmp, va, off=0):
    return "\n".join(f"ds_write_b64 v{va + t}, {vr(tmp + 4 * t, 2)} offset:{off}" for t in range(2))


def wdma(base, dst):
    return f"""
    s_mov_b64 s[{sT}:{sT + 1}], s[{base}:{base + 1}]
    s_lshl_b32 s{sA}, s{sWV}, 11
    s_add_u32 m0, s{sA}, {dst}
    s_nop 0
    buffer_load_dwordx4 v1, s[{sT}:{sT + 3}], s{sA} offen lds
    buffer_load_dwordx4 v1, s[{sT}:{sT + 3}], s{sA} offen offset:1024 lds
    """


def silu4(a, y, h, t):
    a(f"""
    v_pk_mul_f32 {vr(y, 2)}, {vr(y, 2)}, s[{sP0}:{sP0 + 1}] op_sel_hi:[1,0]
    v_pk_mul_f32 {vr(y + 2, 2)}, {vr(y + 2, 2)}, s[{sP0}:{sP0 + 1}] op_sel_hi:[1,0]
    """)
    for k in range(4):
        a(f"v_exp_f32 v{t + k}, v{y + k}")
    for k in (0, 2):
        a(f"v_pk_add_f32 {vr(t + k, 2)}, {vr(t + k, 2)}, 1.0 op_sel_hi:[1,0]")
    for k in range(4):
        a(f"v_rcp_f32 v{t + k}, v{t + k}")
    for k in (0, 2):
        a(f"v_pk_mul_f32 {vr(y + k, 2)}, {vr(y + k, 2)}, s[{sP0}:{sP0 + 1}] op_sel:[0,1] op_sel_hi:[1,1]")
    for k in (0, 2):
        a(f"v_pk_fma_f32 {vr(y + k, 2)}, {vr(y + k, 2)}, {vr(t + k, 2)}, {vr(h + k, 2)}")
    a(f"v_cvt_pk_bf16_f32 v{y}, v{y}, v{y + 1}\nv_cvt_pk_bf16_f32 v{y + 1}, v{y + 2}, v{y + 3}")


def gen_kernel(cfg):
    a = Asm()
    st = lambda i: stamp(a, cfg, i)
    pr = lambda nm: f"s_memrealtime s[{STAMP_REGS[15]}:{STAMP_REGS[15] + 1}]" if cfg.get("diag") and cfg.get("probe", "scat") == nm else ""
    YA, YB = Y, Y + 4
    nfin = 0
    HA_, HB_, WF, TF, GC, RA = AC, AC + 16, B, 24, 76, 6
    vWa, vWb, vQa, vPa, vHa, vQo, vZ, QR = 16, 3, 116, 118, 56, 14, 58, 48
    GA, LA, CA, BK, RK1, WBR = 46, 48, 50, 34, 38, 52
    cpf = ""
    if cfg.get("cpf"):
        cpf = f"""
        s_cmp_lg_u32 s{sWV}, 15
        s_cbranch_scc1 K_CP
        s_getpc_b64 s[{sP0}:{sP0 + 1}]
        v_lshlrev_b32 v2, 7, v0
        v_add_u32 v3, 0x2000, v2
        global_load_dword v126, v2, s[{sP0}:{sP0 + 1}]
        s_mov_b64 exec, 0xffff
        global_load_dword v127, v3, s[{sP0}:{sP0 + 1}]
        s_mov_b64 exec, -1
        K_CP:
        """
    a(f"""
    s_load_dwordx16 s[4:19], s[0:1], 0
    s_load_dwordx4 s[20:23], s[0:1], 64
    s_load_dwordx2 s[{sW}:{sW + 1}], s[0:1], 80
    v_lshrrev_b32 v1, 6, v0
    s_cmp_ge_u32 s2, 256
    s_cbranch_scc1 K_END
    v_readfirstlane_b32 s{sWV}, v1
    v_mov_b32 v{vT}, v0
    v_lshlrev_b32 v19, 4, v0
    v_and_b32 v0, 63, v0
    s_and_b32 s{sB}, s2, 7
    s_lshl_b32 s{sB}, s{sB}, 5
    s_lshr_b32 s{sD}, s2, 3
    s_add_u32 s{sB}, s{sB}, s{sD}
    s_mul_i32 s{sNB}, s{sB}, {NB}
    {cpf}
    s_lshl_b32 s{sA}, s{sWV}, 8
    s_or_b32 s{sA}, s{sA}, s2
    s_cmp_eq_u32 s{sA}, {12 * 256 + 127}
    s_cbranch_scc1 K_ZF
    s_cmp_ge_u32 s2, 125
    s_cbranch_scc1 K_LD ; @if:p=0
    s_mul_i32 s{sA}, s2, 12800
    v_add_u32 v2, s{sA}, v19
    v_lshrrev_b32 v3, 1, v2
    v_cmp_gt_u32 vcc, 800, v{vT}
    s_cmp_eq_u32 s{sWV}, 8
    s_mov_b32 s{sC}, {OOB}
    s_cmov_b32 s{sC}, {CNTP - 8192}
    s_cmp_lt_u32 s{sWV}, 8
    s_cselect_b32 s{sA}, 0xbfbfbfbf, 0
    s_cselect_b32 s{sB2}, 64, 0
    s_cmov_b32 s{sC}, {PB}
    v_and_b32 v14, 0x3fe, v{vT}
    v_mul_u32_u24 v14, s{sB2}, v14
    v_add3_u32 v14, v14, v19, s{sC}
    v_mov_b32 v20, s{sA}
    v_mov_b32 v21, s{sA}
    v_mov_b32 v22, s{sA}
    v_mov_b32 v23, s{sA}
    s_mov_b64 s[{sP4}:{sP4 + 1}], vcc
    s_mov_b64 exec, vcc
    s_waitcnt lgkmcnt(0)
    s_cbranch_execz K_PL ; @if:lo=0
    global_load_dwordx4 v[4:7], v2, s[12:13]
    global_load_dwordx4 v[8:11], v2, s[10:11]
    global_load_dwordx2 v[12:13], v3, s[8:9]
    K_PL:
    s_mov_b64 exec, -1
    ds_write_b128 v14, v[20:23]
    s_waitcnt lgkmcnt(0)
    s_barrier
    K_LD:
    s_sub_u32 s{sNV}, {N}, s{sNB}
    s_min_u32 s{sNV}, s{sNV}, {NB}
    s_lshl_b32 s{sC}, s{sNB}, 8
    s_lshl_b32 s{sH + 2}, s{sNV}, 8
    s_mov_b32 s{sH + 3}, 0x20000
    v_lshrrev_b32 v14, 4, v0
    v_and_b32 v15, 15, v0
    s_lshr_b32 s{sQS}, s2, 7
    s_add_u32 s{sA}, s{sWV}, s{sQS}
    s_waitcnt lgkmcnt(0)
    s_add_u32 s{sH}, s4, s{sC}
    s_addc_u32 s{sH + 1}, s5, 0
    s_cmp_lt_u32 s{sA}, 13
    s_cbranch_scc1 K_CH
    s_cmp_eq_u32 s{sA}, 14
    s_cselect_b32 s{sC}, {16 * NB * 256}, 0
    s_cselect_b32 s{sT + 2}, {NB * 256}, s{sH + 2}
    s_mov_b32 s{sP1}, {HT}
    s_cmov_b32 s{sP1}, {HT2}
    s_sub_u32 s{sT}, s{sH}, s{sC}
    s_subb_u32 s{sT + 1}, s{sH + 1}, 0
    s_and_b32 s{sA}, s{sWV}, 1
    s_lshl_b32 s{sA}, s{sA}, 14
    s_add_u32 s{sB2}, s{sA}, {WS1}
    s_lshl_b32 s{sC}, s{sQS}, 15
    s_add_u32 s{sA}, s{sA}, s{sC}
    s_and_b32 s{sD}, s{sD}, 3
    s_lshl_b32 s{sD}, s{sD}, 12
    s_cmp_lt_u32 s{sWV}, 14
    s_cselect_b64 s[{sT}:{sT + 1}], s[{sT}:{sT + 1}], s[14:15]
    s_cselect_b32 s{sT + 2}, s{sT + 2}, 0x10000
    s_mov_b32 s{sT + 3}, 0x20000
    s_cselect_b32 s{sP0}, 0, 1
    s_cselect_b32 s{sP0 + 1}, 64, 0
    s_cmov_b32 s{sA}, 0
    s_cmov_b32 s{sB2}, s{sP1}
    s_cmov_b32 s{sD}, 0
    v_lshlrev_b32 v20, s{sP0}, v14
    v_xor_b32 v20, v20, v15
    v_lshlrev_b32 v20, 4, v20
    v_lshl_add_u32 v20, v14, 8, v20
    v_xor_b32 v21, s{sP0 + 1}, v20
    v_xor_b32 v22, 0x80, v20
    v_xor_b32 v23, 0x80, v21
    """)
    for k in range(4):
        a(f"s_add_u32 m0, s{sB2}, s{sD}\ns_add_u32 s{sC}, s{sA}, s{sD}")
        if k == 3:
            a(f"s_cmp_lt_u32 s{sWV}, 14")
        for i in range(4):
            a(f"buffer_load_dwordx4 v{20 + i}, s[{sT}:{sT + 3}], s{sC} offen offset:{1024 * i} lds")
            if k == 3 and i == 0:
                a("s_cbranch_scc1 K_CH")
            if k < 3 and i == 0:
                a(f"s_add_u32 s{sD}, s{sD}, 4096\ns_and_b32 s{sD}, s{sD}, 0x3fff")
    a("K_CH:\ns_setreg_imm32_b32 hwreg(HW_REG_MODE, 4, 2), 3")
    st(0)
    zero_init(a, (MISC + 16 - MR - 16384) // 16)
    a(f"""
    v_lshlrev_b32 v24, 18, v{vT}
    v_or_b32 v25, 0x18000, v24
    v_or_b32 v26, 0x28000, v24
    v_or_b32 v27, 0x38000, v24
    v_or_b32 v24, 0x8000, v24
    s_mov_b32 s{sP0}, {f32(2.0 ** 101)}
    s_mov_b32 s{sP0 + 1}, {f32(1 / (1 + DELTA))}
    v_pk_mul_f32 v[26:27], v[26:27], s[{sP0}:{sP0 + 1}] op_sel_hi:[1,0]
    v_pk_mul_f32 v[24:25], v[24:25], s[{sP0}:{sP0 + 1}] op_sel_hi:[1,0]
    """)
    for k in range(4):
        a(f"v_exp_f32 v{28 + k}, v{24 + k}")
    for k in (0, 2):
        a(f"v_pk_mul_f32 {vr(24 + k, 2)}, {vr(24 + k, 2)}, s[{sP0}:{sP0 + 1}] op_sel:[0,1] op_sel_hi:[1,1]")
    for k in (0, 2):
        a(f"v_pk_add_f32 {vr(28 + k, 2)}, {vr(28 + k, 2)}, 1.0 op_sel_hi:[1,0]")
    for k in range(4):
        a(f"v_rcp_f32 v{28 + k}, v{28 + k}")
    a(f"v_lshlrev_b32 v32, 3, v{vT}\nv_add_u32 v33, 0x10000, v32")
    for k in (0, 2):
        a(f"v_pk_mul_f32 {vr(28 + k, 2)}, {vr(28 + k, 2)}, {vr(24 + k, 2)}")
    for k in (0, 2):
        a(f"v_pk_add_f32 {vr(24 + k, 2)}, {vr(28 + k, 2)}, {vr(24 + k, 2)} neg_lo:[0,1] neg_hi:[0,1]")
    a(f"""
    v_cvt_pk_bf16_f32 v28, v28, v29
    v_cvt_pk_bf16_f32 v29, v30, v31
    v_cvt_pk_bf16_f32 v24, v24, v25
    v_cvt_pk_bf16_f32 v25, v26, v27
    ds_write_b64 v32, v[28:29] offset:{LUT}
    ds_write_b64 v33, v[24:25] offset:{LUT}
    """)
    a(f"""
    s_mov_b32 s{sW + 2}, {WS_END}
    s_mov_b32 s{sW + 3}, 0x20000
    s_lshr_b32 s{sD}, s{sWV}, 3
    s_and_b32 s{sC}, s{sWV}, 7
    s_sub_u32 s{sA}, s{sD}, 1
    v_and_b32 v17, s{sA}, v15
    s_lshl_b32 s{sA}, s{sD}, 4
    s_add_u32 s{sA}, s{sA}, 16
    v_add_u32 v24, s{sA}, v15
    s_mul_i32 s{sA}, s{sD}, 48
    v_add_u32 v25, s{sA}, v17
    s_mov_b32 s{sA}, {HT}
    v_xor_b32 v26, v14, v15
    v_xor_b32 v27, v14, v17
    v_lshl_add_u32 v26, v26, 4, s{sA}
    v_lshl_add_u32 v27, v27, 4, s{sA}
    v_lshl_add_u32 v{vHa}, v24, 8, v26
    v_lshl_add_u32 v{vHa + 1}, v25, 8, v27
    s_cmp_ge_u32 s2, 128
    s_cselect_b32 s{sA}, {HT - HT2}, 0
    v_subrev_u32 v{HA_}, s{sA}, v{vHa}
    v_subrev_u32 v{HB_}, s{sA}, v{vHa + 1}
    """)
    for ks in range(1, 4):
        a(f"v_xor_b32 v{HA_ + 4 * ks}, {64 * ks}, v{HA_}\nv_xor_b32 v{HB_ + 4 * ks}, {64 * ks}, v{HB_}")
    a(f"""
    s_lshr_b32 s{sA}, s{sC}, 1
    s_mul_i32 s{sA}, s{sA}, 48
    s_lshl_b32 s{sB2}, s{sC}, 3
    s_add_u32 s{sA}, s{sA}, s{sB2}
    v_lshl_add_u32 v26, v14, 4, s{sA}
    s_movk_i32 s{sA}, {QST}
    v_mad_u32_u24 v{vQa}, v24, s{sA}, v26
    v_mad_u32_u24 v{vQa + 1}, v25, s{sA}, v26
    s_lshl_b32 s{sA}, s{sC}, 5
    s_add_u32 s{sA}, s{sA}, {PT}
    v_lshl_add_u32 v26, v14, 3, s{sA}
    s_movk_i32 s{sA}, 288
    v_mad_u32_u24 v{vPa}, v24, s{sA}, v26
    v_mad_u32_u24 v{vPa + 1}, v25, s{sA}, v26
    v_bfe_u32 v24, v0, 2, 2
    v_and_b32 v25, 1, v14
    v_lshl_or_b32 v25, v25, 2, v24
    v_xor_b32 v25, s{sC}, v25
    v_and_b32 v26, 3, v0
    v_lshlrev_b32 v26, 3, v26
    v_lshl_or_b32 v25, v25, 5, v26
    v_lshl_add_u32 v24, v14, 3, v24
    v_lshl_add_u32 v24, v24, 8, v25
    v_add_u32 v{vWa}, {WS1}, v24
    v_mov_b32 v{vZ}, 0
    s_sub_u32 s{sA}, s{sWV}, 14
    v_mov_b32 v{vZ + 1}, s{sA}
    s_mov_b32 s{sQS}, 0
    v_lshlrev_b32 v1, 1, v14
    v_xor_b32 v1, v1, v15
    v_lshlrev_b32 v1, 4, v1
    v_lshl_add_u32 v1, v14, 8, v1
    s_bitcmp1_b32 s{sWV}, 0
    s_cselect_b32 s{sA}, 0x80, 0
    v_xor_b32 v1, s{sA}, v1
    s_mov_b32 s{sT + 2}, 0x8000
    s_mov_b32 s{sT + 3}, 0x20000
    s_mov_b32 s{sP0}, {f32(-LOG2E)}
    s_cmov_b32 s{sP0}, {f32(-LOG2E * TINY)}
    s_mul_i32 s{sA}, s{sB}, {RST}
    s_add_u32 s{sA}, s{sA}, {WS_REC}
    s_add_u32 s{sR}, s{sW}, s{sA}
    s_addc_u32 s{sR + 1}, s{sW + 1}, 0
    s_cmp_ge_u32 s2, 125
    s_cbranch_scc1 K_NP ; @if:p=0
    """)
    a(f"""
    s_lshl_b32 s{sA}, s2, 7
    s_add_u32 s{sA}, s{sA}, {WS_REC}
    s_add_u32 s{sP3}, s{sW}, s{sA}
    s_addc_u32 s{sP3 + 1}, s{sW + 1}, 0
    s_movk_i32 s{sA}, {RST - 128}
    s_mov_b32 s{sP1}, {PB}
    v_lshrrev_b32 v24, 3, v{vT}
    v_mad_u32_u24 v{GA}, v24, s{sA}, v19
    v_add_u32 v{GA + 1}, {128 * RST}, v{GA}
    v_lshl_add_u32 v{LA}, v24, 5, v19
    v_add_u32 v{LA}, s{sP1}, v{LA}
    v_lshlrev_b32 v{CA}, 2, v24
    s_cmp_ge_u32 s{sWV}, 13
    s_cbranch_scc1 K_PLD ; @if:lo=0
    s_mov_b32 s{sA}, 342393
    s_movk_i32 s{sB2}, 12544
    s_mov_b32 s{sP1 + 1}, 0xffff0000
    v_mov_b32 v44, 1
    s_mov_b64 exec, s[{sP4}:{sP4 + 1}]
    s_waitcnt vmcnt(2)
    """)
    for j in range(4):
        a(f"""
        v_mul_u32_u24 v{4 + j}, s{sA}, v{4 + j}
        v_lshlrev_b32_sdwa v{BK + j}, 2, v{4 + j} {SD} src1_sel:BYTE_3
        ds_add_rtn_u32 v{RK1 + j}, v{BK + j}, v44 offset:{CNTP}
        """)
    for j in range(4):
        a(f"v_mul_hi_u32_u24 v{4 + j}, s{sB2}, v{4 + j}\nv_mad_u32_u24 v{BK + j}, v{BK + j}, 40, s{sP1}")
    a("s_waitcnt vmcnt(0)")
    for j in range(4):
        if j & 1:
            a(f"v_and_or_b32 v{8 + j}, v{12 + j // 2}, s{sP1 + 1}, v{8 + j}")
        else:
            a(f"v_lshl_or_b32 v{8 + j}, v{12 + j // 2}, 16, v{8 + j}")
    for j in range(4):
        a(f"""
        s_waitcnt lgkmcnt({3 + j})
        v_min_u32 v{RK1 + j}, 31, v{RK1 + j}
        v_add_u32 v42, v{BK + j}, v{RK1 + j}
        v_lshl_add_u32 v43, v{RK1 + j}, 2, v{BK + j}
        ds_write_b8 v42, v{4 + j}
        ds_write_b32 v43, v{8 + j} offset:32
        """)
    a(f"""
    s_mov_b64 exec, -1
    K_PB:
    s_setprio 2
    s_waitcnt lgkmcnt(0)
    s_barrier
    """)
    a(pr("scat"))
    a(f"""
    ds_read_b32 v{CA + 1}, v{CA} offset:{CNTP + 512}
    ds_read_b32 v{CA}, v{CA} offset:{CNTP}
    ds_read_b128 v[4:7], v{LA}
    ds_read_b128 v[8:11], v{LA} offset:{128 * 160}
    s_waitcnt lgkmcnt(2)
    v_max_u32 v24, v{CA}, v{CA + 1}
    v_cmp_lt_u32 vcc, 24, v24
    s_cbranch_vccnz K_POV
    K_PST:
    s_waitcnt lgkmcnt(1)
    global_store_dwordx4 v{GA}, v[4:7], s[{sP3}:{sP3 + 1}] sc1
    s_waitcnt lgkmcnt(0)
    global_store_dwordx4 v{GA + 1}, v[8:11], s[{sP3}:{sP3 + 1}] sc1
    K_PH:
    s_setprio 0
    v_mov_b32 v{vQo}, 2.0
    v_mov_b32 v{vQo + 1}, 2.0
    """)
    st(2)
    trd = lambda d, ks, va, off=0: "\n".join(f"ds_read_b64_tr_b16 {vr(d + 4 * ks + 2 * i, 2)}, v{va} offset:{off + 8192 * ks + 1024 * i}" for i in range(2))
    hrd = lambda ks: f"ds_read_b128 {vr(HA_ + 4 * ks, 4)}, v{HA_ + 4 * ks}\nds_read_b128 {vr(HB_ + 4 * ks, 4)}, v{HB_ + 4 * ks}"
    sched = [cfg.get(k, d).lstrip("x") for k, d in (("qa", "1111222200000"), ("qb", "4" * 13))]
    qstore = lambda i: f"buffer_store_dwordx4 {vr(QR + 4 * i, 4)}, v{vQo + i}, s[{sW}:{sW + 3}], 0 offen sc1"

    def qst(k):
        t = ""
        for i in range(2):
            if str(k) in sched[i]:
                t += f"""
                s_bitcmp0_b32 s{sQS}, {8 * i + k}
                s_cbranch_scc1 K_QS{i}{k}
                {'s_waitcnt lgkmcnt(0)' if k == 1 else ''}
                {qstore(i)}
                v_mov_b32 v{vQo + i}, 2.0
                K_QS{i}{k}:
                """
        return t

    def gemm1(w, acc):
        for ks in range(4):
            a(trd(w, ks, vWa) + "\n" + hrd(ks))
            if ks == 2:
                a(f"s_waitcnt lgkmcnt(9)\n{mf32(acc, w, HA_, True)}\ns_waitcnt lgkmcnt(8)\n{mf32(acc + 4, w, HB_, True)}")
        for ks in range(1, 4):
            a(f"""
            s_waitcnt lgkmcnt({13 - 4 * ks})
            {mf32(acc, w + 4 * ks, HA_ + 4 * ks)}
            s_waitcnt lgkmcnt({12 - 4 * ks})
            {mf32(acc + 4, w + 4 * ks, HB_ + 4 * ks)}
            """)

    gemm1(TF, Y)
    a(f"""
    s_lshl_b32 s{sA}, s2, 6
    s_add_u32 s{sA}, s{sA}, {FP}
    v_mov_b32 v2, s{sA}
    s_nop 2
    """)
    scale_pack(a, Y, 40)
    big_test(a, Y, "K_FP")
    a(f"""
    {pr("Sa")}
    s_waitcnt vmcnt(0)
    v_cmp_eq_u32 vcc, 0, v{vZ + 1}
    s_cbranch_vccnz K_ZW
    K_ZB:
    s_cmp_lg_u32 s{sWV}, 14
    s_waitcnt lgkmcnt(0)
    {pr("S")}
    s_barrier
    s_cbranch_scc1 K_F
    s_mov_b64 exec, 1
    global_store_dword v2, v2, s[{sW}:{sW + 1}] sc1
    s_mov_b64 exec, -1
    K_F:
    """)
    st(4)
    a(tile_write(40, vPa))
    pos_dma(a, "K_PD", "K_JOB")
    a(qst(2) + pr("PD"))
    a(f"""
    s_mov_b64 s[{sMK}:{sMK + 1}], 0
    s_mov_b64 s[{sMK + 2}:{sMK + 3}], 0
    s_mov_b32 s{sRARE}, 0
    s_mov_b32 s{sQW}, 1 ; @set:qw=1
    s_mov_b32 s{sSRC}, -1
    s_movk_i32 s{sWID}, 1024
    s_lshr_b32 s{sA}, s2, 7
    s_cmp_eq_u32 s{sWV}, 15
    s_cselect_b32 s{sQA}, s{sA}, 0
    s_mov_b32 s{sGH}, 0 ; @set:gh=1
    s_cmp_ge_u32 s{sWV}, 10
    s_cbranch_scc1 K_JB2
    K_G0:
    {qst(3)}
    """)
    rec_addr(a, RA)
    a(f"""
    s_waitcnt lgkmcnt(0)
    {pr("G")}
    s_barrier
    """)
    st(6)
    rec_load(a, RA)
    for i in range(2):
        if "4" in sched[i]:
            a(qstore(i))
            nfin += 1
    a("K_B0:")
    a(f"""
    s_lshl_b32 s{sA}, s{sWV}, 12
    s_add_u32 s{sM0}, s{sA}, {RING}
    s_mov_b32 s{sC000}, 0xc000
    s_movk_i32 s{s128}, 128
    s_movk_i32 s{s192}, 192
    s_movk_i32 s{s256}, 256
    s_movk_i32 s{s256 + 1}, 256
    s_mov_b32 s{sG3}, 0
    s_mov_b32 s{sG3 + 1}, 0xffff0000
    s_add_u32 s{sM0 + 1}, s{sM0}, 1024
    s_add_u32 s{sM0 + 2}, s{sM0}, 2048
    s_add_u32 s{sM0 + 3}, s{sM0}, 3072
    v_and_b32 v34, 15, v0
    v_lshrrev_b32 v35, 4, v0
    v_lshrrev_b32 v36, 3, v34
    v_lshlrev_b32 v36, 1, v36
    v_xor_b32 v36, v36, v35
    v_lshl_add_u32 v36, v36, 4, s{sM0}
    v_lshl_add_u32 v{vRing}, v34, 6, v36
    v_and_b32 v36, 2, v35
    v_and_b32 v37, 3, v0
    v_xor_b32 v36, v36, v37
    v_lshlrev_b32 v{vLc}, 4, v36
    v_cndmask_b32 v{vMul}, 2, 0, {g3}
    v_mov_b32 v{vIS}, 256
    v_cndmask_b32 v{vIX}, 0, v{vIS}, {g3}
    v_mov_b32 v{vIdx}, 0xdd
    s_and_b32 s{sA}, s{sWV}, 7
    s_lshl_b32 s{sA}, s{sA}, 6
    s_add_u32 s{sA}, s{sA}, {FAKE}
    v_and_b32 v36, -4, v0
    v_add_u32 v{vFa}, s{sA}, v36
    v_mov_b32 v19, 1
    s_mov_b32 s{sA}, {FQ + 4096}
    v_lshl_add_u32 v59, v0, 6, s{sA}
    v_mov_b32 v48, {POSL}
    s_mov_b32 s{sC}, 0x40000
    s_mov_b32 s{sD}, 0x0c040100
    s_waitcnt vmcnt({nfin})
    """)
    st(7)
    AJ, RK, QD = 24, 28, 32
    for j in range(4):
        a(f"""
        v_lshlrev_b32_sdwa v{AJ + j}, 2, sext(v{vDL}) {SD} src1_sel:BYTE_{j}
        ds_add_rtn_u32 v{RK + j}, v{AJ + j}, v19 offset:{CNT}
        """)
    a(f"""
    s_and_b32 s{sA}, s{sWV}, 7
    s_lshl_b32 s{sA}, s{sA}, 12
    s_add_u32 s{sA}, s{sA}, {WS_WT}
    """)
    for ks in range(4):
        a(f"buffer_load_dwordx4 {vr(WF + 4 * ks, 4)}, v58, s[{sW}:{sW + 3}], s{sA} offen offset:{1024 * ks}")
    a(f"v_cmp_eq_u32 vcc, -1, v{vDL}")
    for j in range(4):
        q = QD + 4 * j
        a(f"""
        v_and_or_b32 v{q + 2}, v{AJ + j}, s{sC}, v48
        v_perm_b32 v{q}, v{AJ + j}, v{W + j}, s{sD}
        v_mad_u32_u16 v{q + 2}, v{W + j}, 6, v{q + 2}
        v_and_b32 v{q + 1}, 0xffff0000, v{W + j}
        v_and_b32 v{q + 2}, -4, v{q + 2}
        """)
    a(f"""
    s_cbranch_vccnz K_OVF
    K_OVFB:
    v_lshlrev_b32 v49, 2, v0
    s_cmp_ge_u32 s{sWV}, 13
    s_waitcnt lgkmcnt(0)
    s_barrier
    """)
    st(8)
    a(f"s_cbranch_scc1 K_OWN1 ; @if:lo=0\nK_OWN1B:\nds_read_b32 v49, v49 offset:{CNT}")
    for j in range(4):
        q = QD + 4 * j
        a(f"ds_read2_b32 {vr(q + 2, 2)}, v{q + 2} offset1:1")
    a(f"""
    s_waitcnt lgkmcnt(4)
    v_cmp_ne_u32 vcc, 0, v49
    s_mov_b32 s{sA}, {OOB}
    s_and_b32 s{sB2}, vcc_hi, 0xf00000
    s_cbranch_scc1 K_MASK
    K_MASKB:
    v_mov_b32 v{vIncl}, v49
    """)
    scan64(a, vIncl)
    a(f"""
    v_sub_u32 v49, v{vIncl}, v49
    v_readlane_b32 s{sTOT}, v{vIncl}, 63
    v_lshlrev_b32 v49, 4, v49
    v_writelane_b32 v49, s{sA}, 63
    """)
    for j in range(4):
        a(f"ds_bpermute_b32 v{AJ + j}, v{AJ + j}, v49")
    a(f"""
    s_cmp_gt_u32 s{sTOT}, {CAP}
    s_cbranch_scc1 K_SHRINK
    s_cmp_lg_u32 s{sWV}, 14
    s_cbranch_scc1 K_QE ; @if:w14=0
    global_load_dword v53, v59, s[{sW}:{sW + 1}] offset:-4096 sc1
    global_load_dword v54, v59, s[{sW}:{sW + 1}] sc1
    K_QE:
    s_add_u32 s{sA}, s{sTOT}, 15
    s_lshr_b32 s{sA}, s{sA}, 4
    s_lshr_b32 s{sB2}, s{sA}, 4
    s_and_b32 s{sA}, s{sA}, 15
    s_mul_i32 s{sTS}, s{sB2}, s{sWV}
    s_min_u32 s{sC}, s{sWV}, s{sA}
    s_add_u32 s{sTS}, s{sTS}, s{sC}
    s_cmp_lt_u32 s{sWV}, s{sA}
    s_addc_u32 s{sD}, s{sB2}, 0
    s_lshl_b32 s{sTS}, s{sTS}, 4
    s_lshl_b32 s{sD}, s{sD}, 4
    s_add_u32 s{sWT}, s{sTS}, s{sD}
    s_min_u32 s{sWEND}, s{sWT}, s{sTOT}
    """)
    for j in range(4):
        a(f"""
        s_waitcnt lgkmcnt(3)
        v_lshl_add_u32 v{AJ + j}, v{RK + j}, 4, v{AJ + j}
        ds_write_b128 v{AJ + j}, {vr(QD + 4 * j, 4)} offset:{LIST}
        """)
    a(f"""
    v_cmp_ge_u32 vcc, s{sTS}, v{vIncl}
    v_cmp_gt_u32 s[{sP2}:{sP2 + 1}], s{sWEND}, v{vIncl}
    v_add_u32 v24, 64, v0
    v_cmp_gt_u32 s[{sP3}:{sP3 + 1}], s{sD}, v0
    v_cmp_gt_u32 s[{sP4}:{sP4 + 1}], s{sD}, v24
    s_bcnt1_i32_b64 s{sN0}, vcc
    s_bcnt1_i32_b64 s{sNL}, s[{sP2}:{sP2 + 1}]
    s_mov_b32 s{sNW}, s{sN0}
    """)
    ptrs(a)
    a(f"""
    v_mov_b32 v24, {OOB}
    v_lshl_add_u32 v{vG0}, v0, 4, s{sA}
    v_add_u32 v{vG1}, 1024, v{vG0}
    v_cndmask_b32 v{vG0}, v24, v{vG0}, s[{sP3}:{sP3 + 1}]
    v_cndmask_b32 v{vG1}, v24, v{vG1}, s[{sP4}:{sP4 + 1}]
    s_cmp_eq_u32 s{sD}, 0
    s_cselect_b32 s{sNF}, {OOB >> 5}, s{sN0}
    s_cmp_eq_u32 s{sWV}, 0
    s_cselect_b32 s{sA}, 48, s{sNF}
    s_cselect_b32 s{sNF}, 64, s{sNF}
    s_lshl_b32 s{sA}, s{sA}, 4
    s_add_u32 s{sA}, s{sA}, s{sWV}
    s_lshl_b32 s{sA}, s{sA}, 1
    v_mov_b32 v25, s{sA}
    v_mov_b32 v26, 0x3f80
    s_mov_b64 exec, 1
    ds_write_b16 v25, v26 offset:{SEL}
    s_mov_b64 exec, -1
    s_cmp_ge_u32 s{sWV}, 13
    s_cbranch_scc1 K_PAD ; @if:lo=0
    K_PADB:
    {pr("B2a")}
    s_waitcnt vmcnt(0) lgkmcnt(0)
    {pr("B2")}
    s_barrier
    """)
    st(9)
    qflag = lambda lab: f"""
    s_cmp_eq_u32 s{sQA}, 0
    s_cbranch_scc1 {lab}
    s_mov_b32 s{sQA}, 0
    s_mov_b64 exec, 1
    global_store_dword v56, v57, s[{sW}:{sW + 1}] sc1
    s_mov_b64 exec, -1
    """
    if nfin:
        a(qflag("K_QN") + "K_QN:")
    a(f"v_mov_b32 v{S}, 0\nds_read_b32 v17, v{S} offset:{RDY}")
    list_reads(a)
    a(f"""
    {dma(0)[0]}
    s_waitcnt lgkmcnt(3)
    v_readfirstlane_b32 s{sA}, v17
    v_mad_u32_u16 v{vVoff}, v{vSa}, s{s256}, v{vLc}
    s_cmp_lt_u32 s{sA}, s{sQW}
    s_cbranch_scc1 K_ND
    s_mov_b32 s{sQW}, 2 ; @set:qw=2
    {dma(0)[1]}
    """)
    for kc in range(1, 4):
        a(f"{dma(kc)[0]}\ns_nop 0\n{dma(kc)[1]}")
    st(5)
    a(f"""
    K_ND:
    s_cmp_lg_u32 s{sGH}, 0
    s_cbranch_scc1 K_GH3 ; @if:gh=0
    s_mov_b32 s{sGH}, 1 ; @set:gh=0
    s_cmp_ge_u32 s{sWV}, 8
    s_cbranch_scc1 K_GH1
    """)
    for ks in range(4):
        a(mf32(YA, WF + 4 * ks, HA_ + 4 * ks, ks == 0))
        a(mf32(YB, WF + 4 * ks, HB_ + 4 * ks, ks == 0))
    a("s_branch K_GH2\nK_GH1:")
    for ks in range(4):
        a(mf32(YA, WF + 4 * ks, HA_ + 4 * ks, ks == 0))
        a(mf32(YB, HB_ + 4 * ks, WF + 4 * ks, ks == 0))
    a(f"K_GH2:\ns_mov_b32 s{sP0}, {f32(-LOG2E / (1 + DELTA))}\ns_nop 6")
    for k in range(4):
        a(f"v_pk_mul_f32 {vr(Y + 2 * k, 2)}, {vr(Y + 2 * k, 2)}, s[{sP0}:{sP0 + 1}] op_sel_hi:[1,0]")
    a("K_GH3:")
    G, O, TH = 20, 28, 40
    a(f"""
    ds_read_b64 {vr(TH, 2)}, v{S} offset:{MISC + 8}
    ds_read_b128 {vr(G, 4)}, v{vG0}
    ds_read_b128 {vr(G + 4, 4)}, v{vG1}
    v_mov_b32 v{S + 1}, 0
    v_bfe_u32 v17, v0, 2, 2
    v_lshrrev_b32 v18, 4, v0
    v_cmp_eq_u32 vcc, v17, v18
    v_mov_b32 v18, 0x3f80
    v_mov_b32 v19, 0
    v_cndmask_b32 v18, 0, v18, vcc
    v_lshlrev_b32 v17, 4, v0
    v_lshlrev_b64 v[{B + 2}:{B + 3}], v17, v[18:19]
    """)
    for p in range(2):
        a(f"""
        s_waitcnt lgkmcnt(1)
        v_lshlrev_b32_sdwa v{O + 4 * p}, 2, v{G + 4 * p} {SD} src1_sel:WORD_1
        ds_read_b128 {vr(O + 4 * p, 4)}, v{O + 4 * p} offset:{OWN}
        """)
    for u in range(8):
        a(zero4(AC + 4 * u))
        if u < 3:
            a(f"v_mov_b64 {vr(B + 6 * u + 8, 2)}, {vr(B + 2, 2)}")
    for p in range(2):
        g, o = G + 4 * p, O + 4 * p
        a(f"""
        v_lshlrev_b32 v38, 4, v{g}
        v_alignbit_b32 v37, v{g + 3}, v{g + 2}, v38
        v_lshrrev_b32_sdwa v{g + 3}, v38, v{g + 3} dst_sel:WORD_1 dst_unused:UNUSED_PAD src0_sel:DWORD src1_sel:DWORD
        v_lshlrev_b32 v36, 16, v37
        v_and_b32 v37, 0xffff0000, v37
        s_waitcnt lgkmcnt(1)
        v_pk_add_f32 {vr(o, 2)}, {vr(o, 2)}, v[36:37] neg_lo:[0,1] neg_hi:[0,1]
        v_sub_f32 v{o + 2}, v{o + 2}, v{g + 3}
        v_mul_f32 v{o + 3}, v{o}, v{o}
        v_fmac_f32 v{o + 3}, v{o + 1}, v{o + 1}
        v_fmac_f32 v{o + 3}, v{o + 2}, v{o + 2}
        v_cvt_pk_bf16_f32 v{g + 2}, 1.0, v{o}
        v_mul_f32 v{o + 3}, {f32(-LOG2E)}, v{o + 3}
        v_cvt_pk_bf16_f32 v{g + 3}, v{o + 1}, v{o + 2}
        v_cmp_nlt_f32 vcc, abs(v{g + 1}), v{TH + 1}
        v_cmp_nlt_f32 s[{sP0}:{sP0 + 1}], abs(v{o + 3}), v{TH}
        v_cvt_pk_bf16_f32 v{g + 1}, v{o + 3}, v{g + 1}
        ds_write_b128 v{vG0 + p}, {vr(g, 4)} ; nobar
        s_or_b64 vcc, vcc, s[{sP0}:{sP0 + 1}]
        s_and_b64 s[{sP3 + 2 * p}:{sP3 + 2 * p + 1}], s[{sP3 + 2 * p}:{sP3 + 2 * p + 1}], vcc
        """)
    a(f"""
    s_or_b64 s[{sP3}:{sP3 + 1}], s[{sP3}:{sP3 + 1}], s[{sP4}:{sP4 + 1}]
    s_cselect_b32 s{sMODE}, 1, 0
    """)
    a(f"""
    K_XFR:
    s_cmp_ge_u32 s{sTS}, s{sWT}
    v_mad_u32_u16 v{vVoff}, v{vSa}, s{s256}, v{vLc}
    s_cbranch_scc1 K_QW ; @if:nt=1
    v_lshrrev_b32 v17, 2, v0
    v_and_b32 v18, 3, v0
    v_add_u32 v19, s{sN0}, v17
    v_mul_u32_u24 v19, 288, v19
    v_add_u32 v19, {PT}, v19
    v_lshlrev_b32 v17, 8, v17
    v_add_u32 v17, {WD - 14 * 256}, v17
    v_cndmask_b32 v19, v19, v17, {g3}
    s_mov_b32 vcc_lo, 0
    s_mov_b32 vcc_hi, 0x00ff0000
    v_mov_b32 v17, {OOB}
    v_lshl_add_u32 v19, v18, 3, v19
    v_cndmask_b32 v19, v19, v17, vcc
    """)
    for u in range(8):
        a(f"ds_read_b64_tr_b16 {vr(B + 6 * (u // 2) + 4 * (u & 1), 2)}, v19 offset:{32 * u}")
    a(f"""
    s_lshl_b32 s{sA}, s{sN0}, 3
    s_sub_u32 s{sA}, {OH + 512}, s{sA}
    v_and_b32 v19, 48, v0
    v_lshlrev_b32 v19, 1, v19
    v_sub_u32 v19, s{sA}, v19
    v_cndmask_b32 v{vBX}, v19, v{vEa}, {g3}
    v_mad_u32_u16 v{vXa}, v{vXa}, v{vMul}, v{vBX} op_sel:[1,0,0,0]
    ds_read_b64 {vr(A, 2)}, v{vXa}
    ds_read_b64 {vr(A + 6, 2)}, v{vXa}
    ds_read_b64 {vr(A + 12, 2)}, v{vXa}
    v_subrev_u32 v18, s{sNW}, v18
    v_and_b32 v18, 3, v18
    v_add_u32 v18, s{sNW}, v18
    v_mul_u32_u24 v18, {OOB}, v18
    v_sub_u32 v18, v{vDa}, v18
    v_add_u32 v{vBS}, 8, v18
    v_mad_u32_u16 v{vSa}, v{vSa}, s{sC000}, v{vBS} op_sel:[1,0,0,0]
    {zero4(ZE + 4)}
    {zero4(L)}
    v_lshl_add_u64 v[{vBX}:{vBS}], v[{vBX}:{vBS}], 0, v[{vIX}:{vIS}]
    v_add_u32 v{vDa}, 512, v{vDa}
    v_add_u32 v{vEa}, 256, v{vEa}
    """)
    window(a)
    a(f"""
    K_QW:
    {dma(0)[0]}
    """)
    st(10)
    a(f"""
    s_cmp_eq_u32 s{sQW}, 2
    s_cbranch_scc1 K_DM2 ; @is:qw=2
    s_cmp_eq_u32 s{sQW}, 0
    s_cbranch_scc1 K_DMA ; @is:qw=0
    """)
    a(f"""
    s_cmp_eq_u32 s{sWV}, 14
    s_cbranch_scc1 K_QP ; @if:w14=1
    K_QB:
    s_barrier
    """)
    st(5)
    a(f"K_DMA:\n{dma(0)[1]}")
    for kc in range(1, 4):
        a(f"{dma(kc)[0]}\ns_nop 0\n{dma(kc)[1]}")
    a("K_DM2:")
    st(11)
    a(f"""
    s_mov_b32 s{sQW}, 0 ; @set:qw=0
    s_cmp_ge_u32 s{sTS}, s{sWT}
    s_cbranch_scc1 K_NT0 ; @if:nt=1
    ds_read_b32 v17, v{S} offset:{MISC + 4}
    v_mad_u32_u16 v{vVoff}, v{vD}, s{s256}, v{vLc}
    {dma(0)[0]}
    s_waitcnt vmcnt(3)
    {rdq(0)}
    s_waitcnt vmcnt(2)
    {rdq(1)}
    s_waitcnt lgkmcnt(1)
    {Kmf(0, ZE)}
    {dma(0)[1]}
    v_readfirstlane_b32 s{sA}, v17
    s_or_b32 s{sMODE}, s{sMODE}, s{sA} ; @set:mode=x
    """)
    st(12)
    a(f"""
    s_waitcnt lgkmcnt(0)
    K_EV2:
    s_add_u32 s{sA}, s{sTS}, 32
    s_cmp_lt_u32 s{sA}, s{sWT}
    s_cbranch_scc1 K_GO
    v_mov_b32 v{vDa}, v{vFa}
    K_GO:
    s_cmp_lg_u32 s{sMODE}, 0
    s_cbranch_scc1 K_LOOPF ; @if:mode=1
    K_LOOP:
    {loop_body(cfg.get('pat', PAT), cfg.get('dord', DORD), True)}
    s_cbranch_scc1 K_LOOP
    K_EV:
    s_add_u32 s{sA}, s{sTS}, 16
    s_cmp_lt_u32 s{sEW}, s{sA}
    s_cbranch_scc1 K_WIN
    s_cmp_lt_u32 s{sTS}, s{sWT}
    s_cbranch_scc1 K_EV2
    """)
    st(13)
    WB = [A + 2, A + 8, B + 16, B + 20]
    HA, HB, HR = 60, 64, 68

    def exit_loads(tag):
        a(f"""
        s_lshr_b32 s{sD}, s{sWV}, 3
        s_and_b32 s{sC}, s{sWV}, 7
        s_lshl_b32 s{sC}, s{sC}, 5
        s_lshl_b32 s{sA}, s{sD}, 12
        s_add_u32 s{sA}, s{sA}, s{sC}
        v_and_b32 v5, 15, v0
        v_and_b32 v6, 48, v0
        v_lshrrev_b32 v8, 1, v6
        v_lshl_add_u32 v17, v5, 8, v8
        v_lshl_add_u32 v10, v5, 1, s{sC}
        s_add_u32 s{sA}, s{sA}, 4096
        s_movk_i32 s{sB2}, {48 * 256}
        s_cmp_lg_u32 s{sD}, 0
        buffer_load_dwordx2 {vr(HR, 2)}, v17, s[{sH}:{sH + 3}], s{sA} offen
        s_cbranch_scc1 {tag}1
        buffer_load_dwordx2 {vr(HR + 2, 2)}, v17, s[{sH}:{sH + 3}], s{sC} offen
        s_branch {tag}2
        {tag}1:
        buffer_load_ushort v{HR + 2}, v10, s[{sH}:{sH + 3}], s{sB2} offen
        {tag}2:
        """)

    exit_loads("K_XA")
    F = L
    a(f"""
    s_mov_b32 s{sLAST}, 1 ; @set:last=1
    s_movk_i32 s{sNWN}, 64
    K_FLUSH:
    v_and_b32 v17, 15, v0
    v_lshlrev_b32 v18, 5, v17
    ds_read_b128 {vr(T, 4)}, v18 offset:{WX}
    s_waitcnt lgkmcnt(1)
    {Ymf(6, ZE + 4)}
    {Ymf(7, L)}
    ds_read_b128 {vr(ZL, 4)}, v18 offset:{WX + 16}
    v_lshrrev_b32 v18, 4, v0
    v_subrev_u32 v18, s{sNW}, v18
    v_and_b32 v18, 3, v18
    v_add_u32 v18, s{sNW}, v18
    s_add_u32 s{sA}, s{sNL}, 1
    s_min_u32 s{sA}, s{sA}, s{sNWN}
    s_add_u32 s{sB2}, s{sWV}, 48
    v_cmp_eq_u32 vcc, s{sNF}, v18
    v_cmp_gt_u32 s[{sP0}:{sP0 + 1}], s{sA}, v18
    v_cmp_gt_u32 s[{sP1}:{sP1 + 1}], s{sNWN}, v18
    v_mov_b32 v19, s{sB2}
    v_cndmask_b32 v19, v18, v19, vcc
    v_mul_u32_u24 v19, {MST}, v19
    v_lshl_add_u32 v19, v17, 4, v19
    v_lshl_add_u32 v18, v18, 4, v17
    """)
    for k in range(4):
        a(f"v_cvt_pk_bf16_f32 v{ZE + 4 + k}, v{AC + 8 * k}, v{AC + 8 * k + 4}")
    a(f"""
    s_mov_b64 exec, s[{sP0}:{sP0 + 1}]
    ds_write_b128 v19, {vr(ZE + 4, 4)} offset:{MR}
    s_mov_b64 exec, -1
    s_waitcnt lgkmcnt(1)
    """)
    for u in range(8):
        w = (T if u < 4 else ZL) + (u & 3)
        wp, hi = w & ~1, w & 1
        if u == 0:
            a(f"v_pk_mul_f32 {vr(F + 2, 2)}, {vr(AC + 2, 2)}, {vr(wp, 2)} op_sel_hi:[1,0]")
            a(f"v_mul_f32 v{F + 1}, v{AC + 1}, v{w}")
        else:
            a(f"v_pk_fma_f32 {vr(F + 2, 2)}, {vr(AC + 4 * u + 2, 2)}, {vr(wp, 2)}, {vr(F + 2, 2)} op_sel:[0,{hi},0] op_sel_hi:[1,{hi},1]")
            a(f"v_fmac_f32 v{F + 1}, v{AC + 4 * u + 1}, v{w}")
    a(f"""
    s_and_b32 s{sP0}, s{sP0}, 0x01110111
    v_add_f32_dpp v{F + 2}, v{F + 2}, v{F + 2} row_ror:8 row_mask:0xf bank_mask:0xf
    v_add_f32_dpp v{F + 1}, v{F + 1}, v{F + 1} row_ror:8 row_mask:0xf bank_mask:0x3
    s_and_b32 s{sP0 + 1}, s{sP0 + 1}, 0x01110111
    v_add_f32_dpp v{F + 2}, v{F + 2}, v{F + 2} row_shr:4 row_mask:0xf bank_mask:0x2
    v_add_f32_dpp v{F + 1}, v{F + 3}, v{F + 3} row_ror:8 row_mask:0xf bank_mask:0xc
    s_nop 1
    v_add_f32_dpp v{F + 2}, v{F + 1}, v{F + 1} row_shl:4 row_mask:0xf bank_mask:0x5
    s_nop 1
    v_add_f32_dpp v{F + 2}, v{F + 2}, v{F + 2} quad_perm:[1,0,3,2] row_mask:0xf bank_mask:0xf
    s_nop 1
    v_add_f32_dpp v{F + 2}, v{F + 2}, v{F + 2} quad_perm:[2,3,0,1] row_mask:0xf bank_mask:0xf
    s_mov_b64 exec, s[{sP0}:{sP0 + 1}]
    ds_add_f32 v18, v{F + 2} offset:{PAC}
    s_mov_b64 exec, -1
    s_cmp_eq_u32 s{sLAST}, 0
    s_cbranch_scc1 K_SLIDE ; @if:last=0
    s_waitcnt vmcnt(3)
    K_POST:
    {rdq(2, WB[2])}
    {rdq(3, WB[3])}
    """)
    vMa, vM3, vSe, vOa = 1, 2, 3, 4
    Z, ZB, SA, SB, MB = 36, 40, 74, 56, 20
    a(f"""
    s_mul_i32 s{sA}, s{sD}, {16 * MST}
    v_mul_u32_u24 v{vM3}, {MST}, v5
    v_add_u32 v{vM3}, v{vM3}, v6
    v_add_u32 v{vMa}, s{sA}, v{vM3}
    s_lshl_b32 s{sA}, s{sD}, 9
    v_lshl_add_u32 v11, v5, 5, v8
    v_add_u32 v{vSe}, s{sA}, v11
    s_mul_i32 s{sA}, s{sD}, 1536
    v_add_u32 v11, s{sA}, v11
    s_mul_i32 s{sA}, s{sD}, {16 * OST}
    s_add_u32 s{sA}, s{sA}, s{sC}
    s_add_u32 s{sA}, s{sA}, {OT}
    v_mul_u32_u24 v{vOa}, {OST}, v5
    v_add3_u32 v{vOa}, v{vOa}, v8, s{sA}
    v_add_u32 v10, {OT + 48 * OST}, v10
    s_mov_b32 s{sP0}, {f32(1 + DELTA)}
    s_mov_b32 s{sP0 + 1}, {f32(-LN2)}
    s_cmp_lg_u32 s{sD}, 0
    s_waitcnt vmcnt(2) lgkmcnt(0)
    s_barrier
    """)
    st(14)
    for ks in range(4):
        a(f"ds_read_b128 {vr(AC + 4 * ks, 4)}, v{vM3} offset:{MR + 48 * MST + 64 * ks}")
    for ks in range(4):
        a(f"ds_read_b128 {vr(AC + 16 + 4 * ks, 4)}, v{vMa} offset:{MR + 16 * MST + 64 * ks}")
    a(f"""
    ds_read_b64 {vr(SA, 2)}, v{vSe} offset:{SEL + 512}
    ds_read_b64 {vr(SB, 2)}, v11 offset:{SEL}
    s_cbranch_scc1 K_E1
    """)
    mf16 = lambda d, x, y: f"v_mfma_f32_16x16x16_bf16 {vr(d, 4)}, {vr(x, 2)}, {vr(y, 2)}, {vr(d, 4)}"

    unpack = lambda n: "\n".join(f"v_lshlrev_b32 v{HA + 2 * k}, 16, v{HR + k}\nv_and_b32 v{HA + 2 * k + 1}, 0xffff0000, v{HR + k}" for k in range(n))

    def gemm_a(extra):
        for ks in range(4):
            a(f"s_waitcnt lgkmcnt({9 + extra - ks})\n" + mf32(Z, AC + 4 * ks, WB[ks], ks == 0))
        for ks in range(4):
            a(f"s_waitcnt lgkmcnt({5 + extra - ks})\n" + mf32(YA, WB[ks], AC + 16 + 4 * ks))
        a(f"v_cvt_pk_bf16_f32 v{ZB}, v{Z}, v{Z + 1}\nv_cvt_pk_bf16_f32 v{ZB + 1}, v{Z + 2}, v{Z + 3}")

    for ks in range(4):
        a(f"ds_read_b128 {vr(MB + 4 * ks, 4)}, v{vM3} offset:{MR + 64 * ks}")
    gemm_a(4)
    for ks in range(4):
        a(f"s_waitcnt lgkmcnt({3 - ks})\n" + mf32(YB, WB[ks], MB + 4 * ks))
        if ks == 2:
            a(mf16(YA, ZB, SA))
    a(f"""
    s_cmp_lg_u32 s{sRARE}, 0
    s_waitcnt vmcnt(0)
    {unpack(4)}
    {mf16(YB, ZB, SB)}
    s_cbranch_scc1 K_NEXT
    K_S0:
    """)
    silu4(a, YA, HA, 20)
    a(f"ds_write_b64 v{vOa}, {vr(YA, 2)} offset:{16 * OST}")
    silu4(a, YB, HB, 20)
    a(f"""
    ds_write_b64 v{vOa}, {vr(YB, 2)}
    K_OUT:
    s_lshl_b32 s{sC}, s{sNB}, 8
    s_add_u32 s{sO}, s20, s{sC}
    s_addc_u32 s{sO + 1}, s21, 0
    s_lshl_b32 s{sO + 2}, s{sNV}, 8
    s_mov_b32 s{sO + 3}, 0x20000
    s_lshl_b32 s{sA}, s{sWV}, 10
    v_lshl_add_u32 v7, v0, 4, s{sA}
    s_lshl_b32 s{sA}, s{sWV}, 6
    s_add_u32 s{sA}, s{sA}, {OT}
    v_add3_u32 v8, v7, v6, s{sA}
    s_cmp_ge_u32 s{sWV}, 13
    s_waitcnt lgkmcnt(0)
    s_barrier
    s_cbranch_scc1 K_FIN
    """)
    a(f"""
    ds_read_b128 v[20:23], v8
    s_waitcnt lgkmcnt(0)
    buffer_store_dwordx4 v[20:23], v7, s[{sO}:{sO + 3}], 0 offen sc1
    K_FIN:
    """)
    stamp_out(a, cfg, sW)
    a("K_END:\ns_endpgm")

    a("K_E1:")
    gemm_a(0)
    a(f"""
    s_waitcnt lgkmcnt(0)
    s_cmp_lg_u32 s{sRARE}, 0
    {mf16(YB, SB, ZB)}
    s_waitcnt vmcnt(0)
    {unpack(2)}
    {mf16(YA, ZB, SA)}
    v_lshlrev_b32 v{HB}, 16, v{HR + 2}
    s_cbranch_scc1 K_NEXT
    K_S1:
    s_sub_u32 s{sA}, s{sWV}, 13
    s_lshl_b32 s{sA}, s{sA}, 6
    v_add_u32 v11, s{sA}, v0
    v_mul_u32_u24 v12, 171, v11
    v_lshrrev_b32 v12, 9, v12
    v_add_lshl_u32 v13, v11, v12, 2
    ds_read_b32 v14, v13 offset:{PAC}
    ds_read_b32 v15, v13 offset:{OWN}
    """)
    silu4(a, YA, HA, 20)
    a(f"""
    ds_write_b64 v{vOa}, {vr(YA, 2)} offset:{16 * OST}
    v_mul_f32 v{YB}, s{sP0}, v{YB}
    v_exp_f32 v20, v{YB}
    v_mul_f32 v{YB}, s{sP0 + 1}, v{YB}
    v_add_f32 v20, 1.0, v20
    v_rcp_f32 v20, v20
    v_cmp_gt_u32 vcc, s{sNV}, v12
    v_fmac_f32 v{HB}, v20, v{YB}
    v_cvt_pk_bf16_f32 v{HB}, v{HB}, v{HB}
    s_mov_b64 exec, 0xffff
    ds_write_b16 v10, v{HB}
    s_mov_b64 exec, -1
    s_cmp_lt_u32 s{sWV}, 13
    s_cbranch_scc1 K_OUT
    s_mul_i32 s{sA}, s{sNB}, 6
    s_add_u32 s{sA}, s{sA}, {N * 256}
    v_lshl_add_u32 v11, v11, 1, s{sA}
    s_waitcnt lgkmcnt(2)
    v_add_f32 v14, v14, v15
    v_cvt_pk_bf16_f32 v14, v14, v14
    s_mov_b64 exec, vcc
    global_store_short v11, v14, s[20:21] sc1
    s_mov_b64 exec, -1
    s_branch K_OUT
    """)
    a(f"""
    K_NP:
    s_cmp_lt_u32 s2, 128
    s_cbranch_scc1 K_AUX ; @if:q=0
    s_mov_b32 s{sP1}, {sum(int(c) << (4 * w) for w, c in enumerate(sched[0][:8]))}
    s_mov_b32 s{sP1 + 1}, {sum(int(c) << (4 * w) for w, c in enumerate(sched[0][8:] + "444"))}
    s_mov_b32 s{sP2}, {sum(int(c) << (4 * w) for w, c in enumerate(sched[1][:8]))}
    s_mov_b32 s{sP2 + 1}, {sum(int(c) << (4 * w) for w, c in enumerate(sched[1][8:] + "444"))}
    s_lshl_b32 s{sA}, s{sWV}, 2
    s_lshr_b64 s[{sP1}:{sP1 + 1}], s[{sP1}:{sP1 + 1}], s{sA}
    s_lshr_b64 s[{sP2}:{sP2 + 1}], s[{sP2}:{sP2 + 1}], s{sA}
    s_and_b32 s{sP1}, s{sP1}, 7
    s_and_b32 s{sP2}, s{sP2}, 7
    s_add_u32 s{sP2}, s{sP2}, 8
    s_bitset1_b32 s{sQS}, s{sP1}
    s_bitset1_b32 s{sQS}, s{sP2}
    s_lshl_b32 s{sA}, s{sNB}, 8
    v_cmp_gt_u32 vcc, {NB * 16}, v{vT}
    v_add_u32 v5, s{sA}, v19
    v_subrev_u32 v4, {16 * NB * 256}, v5
    v_and_b32 v17, 0x3f0, v{vT}
    v_add_u32 v17, v17, v19
    v_cndmask_b32 v{vQo}, 2.0, v4, vcc
    v_cndmask_b32 v{vQo + 1}, 2.0, v5, vcc
    s_waitcnt vmcnt(0) lgkmcnt(0)
    s_barrier
    """)
    st(2)
    a(wdma(14, WS2))
    gemm1(WF, GC)
    for ks in range(4):
        a(f"v_xor_b32 v{HA_ + 4 * ks}, {64 * ks}, v{vHa}\nv_xor_b32 v{HB_ + 4 * ks}, {64 * ks}, v{vHa + 1}")
    scale_pack(a, GC, 24)
    a(tile_write(24, vQa, QTA))
    big_test(a, GC, "K_FQ")
    a(f"""
    s_bitcmp1_b32 s{sQS}, 0
    s_cselect_b64 vcc, -1, 0
    s_cmp_lg_u32 s{sWV}, 14
    v_cndmask_b32 v2, 2.0, v{vQo}, vcc
    v_cndmask_b32 v{vQo}, v{vQo}, 2.0, vcc
    s_waitcnt vmcnt(0) lgkmcnt(0)
    s_barrier
    """)
    st(3)
    a(f"""
    ds_read_b128 {vr(QR, 4)}, v17 offset:{QTA}
    {hrd(0)}
    {hrd(1)}
    s_cbranch_scc1 K_NZ
    global_load_dword v{vZ + 1}, v{vZ}, s[22:23] sc1
    K_NZ:
    {hrd(2)}
    {hrd(3)}
    s_waitcnt lgkmcnt(7)
    {qstore(0).replace(f"v{vQo},", "v2,")}
    """)
    for ks in range(4):
        a(trd(TF, ks, vWa, WS2 - WS1))
    for ks in range(4):
        a(f"""
        s_waitcnt lgkmcnt({15 - 2 * ks})
        {mf32(GC, WF + 4 * ks, HA_ + 4 * ks, ks == 0)}
        s_waitcnt lgkmcnt({14 - 2 * ks})
        {mf32(GC + 4, WF + 4 * ks, HB_ + 4 * ks, ks == 0)}
        """)
    for ks in range(4):
        a(f"""
        s_waitcnt lgkmcnt({6 - 2 * ks})
        {mf32(Y, TF + 4 * ks, HA_ + 4 * ks, ks == 0)}
        {mf32(Y + 4, TF + 4 * ks, HB_ + 4 * ks, ks == 0)}
        """)
    scale_pack(a, GC, 4)
    a(tile_write(4, vQa, QTB))
    big_test(a, GC, "K_FR")
    scale_pack(a, Y, 40)
    big_test(a, Y, "K_FS")
    a(f"""
    s_waitcnt vmcnt(1)
    v_cmp_eq_u32 vcc, 0, v{vZ + 1}
    s_cbranch_vccnz K_ZW
    K_X3:
    s_waitcnt lgkmcnt(0)
    {pr("S")}
    s_barrier
    ds_read_b128 {vr(QR + 4, 4)}, v17 offset:{QTB}
    {qst(1)}
    s_branch K_F
    K_ZW:
    """)
    poll(a, "K_ZP", f"global_load_dword v{vZ + 1}, v{vZ}, s[22:23] sc1", "", vZ + 1)
    a(f"""
    s_cmp_ge_u32 s2, 128
    s_cbranch_scc1 K_X3 ; @if:q=1
    s_branch K_ZB
    K_AUX:
    s_mul_i32 s{sA}, s2, 13
    s_add_u32 s{sA}, s{sA}, s{sWV}
    s_sub_u32 s{sA}, s{sA}, {125 * 13}
    s_cmp_ge_u32 s{sWV}, 13
    s_cmov_b32 s{sA}, 64
    s_cmp_ge_u32 s{sA}, 32
    s_cbranch_scc1 K_AX2
    s_lshr_b32 s{sB2}, s{sA}, 2
    s_and_b32 s{sA}, s{sA}, 3
    s_lshl_b32 s{sP1}, s{sA}, 10
    s_lshl_b32 s{sP1 + 1}, s{sB2}, 5
    s_add_u32 s{sP1}, s{sP1}, s{sP1 + 1}
    s_add_u32 s{sP1}, s{sP1}, {32768 + 4096}
    v_lshlrev_b32 v24, 1, v15
    v_lshl_add_u32 v24, v14, 8, v24
    v_add_u32 v24, s{sP1}, v24
    """)
    for j in range(8):
        a(f"global_load_ushort v{4 + j}, v24, s[18:19] offset:{0 if j & 1 else -4096}")
        if j & 1 and j < 7:
            a("v_add_u32 v24, 0x2000, v24")
    a(f"""
    s_lshl_b32 s{sP1}, s{sA}, 13
    s_add_u32 s{sP1}, s{sP1}, s{sP1 + 1}
    v_lshlrev_b32 v24, 1, v15
    v_lshl_add_u32 v24, v14, 11, v24
    v_add_u32 v24, s{sP1}, v24
    """)
    for j in range(8):
        a(f"global_load_ushort v{28 + j}, v24, s[18:19] offset:{256 * j}")
    a(f"""
    s_lshl_b32 s{sP1}, s{sA}, 10
    s_lshl_b32 s{sA}, s{sA}, 6
    s_lshl_b32 s{sB2}, s{sB2}, 12
    s_add_u32 s{sP1}, s{sP1}, s{sB2}
    s_add_u32 s{sP1}, s{sP1}, {WS_WT}
    v_lshl_add_u32 v26, v0, 4, s{sP1}
    s_add_u32 s{sA}, s{sA}, s{sB2}
    s_add_u32 s{sA}, s{sA}, {QROWS * 256}
    v_lshl_add_u32 v25, v15, 8, s{sA}
    v_lshl_add_u32 v25, v14, 4, v25
    s_waitcnt vmcnt(0)
    """)
    for k in range(4):
        a(f"v_lshl_or_b32 v{4 + k}, v{4 + 2 * k + 1}, 16, v{4 + 2 * k}")
    for k in range(4):
        a(f"v_lshl_or_b32 v{8 + k}, v{28 + 2 * k + 1}, 16, v{28 + 2 * k}")
    a(f"""
    global_store_dwordx4 v25, v[4:7], s[{sW}:{sW + 1}] sc1
    global_store_dwordx4 v26, v[8:11], s[{sW}:{sW + 1}] sc1
    s_branch K_AX3
    K_AX2:
    s_waitcnt vmcnt(0)
    K_AX3:
    s_waitcnt lgkmcnt(0)
    s_barrier
    s_branch K_PH
    K_ZF:
    s_mov_b32 s{sA}, {WS_SYNC + 4096}
    v_lshl_add_u32 v2, v0, 6, s{sA}
    v_add_u32 v3, 0x2000, v2
    v_mov_b32 v4, 0
    v_mov_b32 v5, 1
    s_waitcnt lgkmcnt(0)
    global_store_dword v2, v4, s[{sW}:{sW + 1}] offset:-4096 sc1
    global_store_dword v2, v4, s[{sW}:{sW + 1}] sc1
    global_store_dword v3, v4, s[{sW}:{sW + 1}] offset:-4096 sc1
    global_store_dword v3, v4, s[{sW}:{sW + 1}] sc1
    s_waitcnt vmcnt(0)
    s_mov_b64 exec, 1
    global_store_dword v4, v5, s[22:23] sc1
    s_mov_b64 exec, -1
    s_branch K_LD
    K_PLD:
    s_cmp_eq_u32 s{sWV}, 14
    s_waitcnt vmcnt(0)
    s_cbranch_scc0 K_PB ; @if:w14=0
    global_load_dword v{vZ + 1}, v{vZ}, s[22:23] sc1
    s_branch K_PB
    K_POV:
    ds_read_b128 v[20:23], v{LA} offset:128
    ds_read_b128 v[24:27], v{LA} offset:{128 * 160 + 128}
    s_mul_i32 s{sB2}, s2, -96
    s_add_u32 s{sB2}, s{sB2}, 16000
    s_mov_b32 s{sP1}, 0x03030303
    s_mov_b32 s{sP1 + 1}, 0x03030303
    v_add_u32 v28, s{sB2}, v{GA}
    v_add_u32 v29, s{sB2}, v{GA + 1}
    s_waitcnt lgkmcnt(0)
    """)
    for i in range(2):
        a(f"""
        v_cmp_lt_u32 vcc, 24, v{CA + i}
        s_and_b64 exec, vcc, s[{sP1}:{sP1 + 1}]
        s_cbranch_execz K_OV{i}
        global_store_dwordx4 v{28 + i}, {vr(20 + 4 * i, 4)}, s[{sP3}:{sP3 + 1}] sc1
        v_cmpx_lt_u32 vcc, 32, v{CA + i}
        """)
        for k in range(4):
            a(f"v_mov_b32 v{4 + 4 * i + k}, -1")
        a(f"K_OV{i}:\ns_mov_b64 exec, -1")
    a(f"""
    s_branch K_PST
    K_FQ:
    v_mov_b32 v36, {MISC}
    v_mov_b32 v37, 0x10000
    ds_write_b32 v36, v37
    s_branch K_FQB
    K_FR:
    v_mov_b32 v36, {MISC}
    v_mov_b32 v37, 0x10000
    ds_write_b32 v36, v37
    s_branch K_FRB
    K_FP:
    v_mov_b32 v36, {MISC + 4}
    ds_write_b32 v36, v36
    s_branch K_FPB
    K_FS:
    v_mov_b32 v36, {MISC + 4}
    ds_write_b32 v36, v36
    s_branch K_FSB
    K_JOB:
    s_cmp_ge_u32 s{sWV}, 14
    s_cbranch_scc1 K_PD_E
    s_cmp_lt_u32 s{sWV}, 13
    s_cbranch_scc1 K_JB1 ; @if:lo=1
    v_cmp_eq_u32 vcc, 32, v0
    v_cmp_eq_u32 s[{sP1}:{sP1 + 1}], 33, v0
    v_mov_b32 v12, 0x3f80
    v_lshlrev_b32 v4, 4, v0
    v_cndmask_b32 v8, 0, v12, vcc
    v_cndmask_b32 v9, 0, v12, s[{sP1}:{sP1 + 1}]
    v_lshlrev_b32 v10, 16, v8
    v_lshlrev_b32 v11, 16, v9
    ds_write_b128 v4, v[8:11] offset:{OH}
    v_lshlrev_b32 v4, 3, v0
    v_lshlrev_b32 v12, 1, v0
    v_add_u32 v12, {QROWS}, v12
    v_add_u32 v13, 1, v12
    ds_write_b64 v4, v[12:13] offset:{FAKE}
    s_branch K_PD_E
    K_JB1:
    s_lshl_b32 s{sA}, s{sWV}, 8
    s_add_u32 s{sA}, s{sA}, {65536 - 2560}
    s_add_u32 s{sP1}, s14, s{sA}
    s_addc_u32 s{sP1 + 1}, s15, 0
    s_cmp_eq_u32 s{sWV}, 12
    s_cselect_b64 s[{sP1}:{sP1 + 1}], s[16:17], s[{sP1}:{sP1 + 1}]
    v_lshlrev_b32 v4, 2, v0
    global_load_dword v10, v4, s[{sP1}:{sP1 + 1}]
    s_branch K_PD_E
    K_JB2:
    s_cmp_ge_u32 s{sWV}, 13
    s_cbranch_scc1 K_JB4 ; @if:lo=0
    s_cmp_eq_u32 s{sWV}, 12
    v_lshrrev_b32 v8, 3, v0
    s_waitcnt vmcnt(0)
    v_and_b32 v11, 0xffff0000, v10
    v_lshlrev_b32 v10, 16, v10
    s_cbranch_scc1 K_JB3
    s_cmp_eq_u32 s{sWV}, 10
    s_cselect_b32 s{sA}, 1.0, {f32(-LOG2E)}
    s_mov_b32 s{sB2}, {f32(15.0)}
    s_cmov_b32 s{sB2}, {f32(32.0)}
    v_mul_f32 v10, s{sA}, v10
    v_mul_f32 v11, s{sA}, v11
    v_and_b32 v12, 0x7fffffff, v10
    v_and_b32 v13, 0x7fffffff, v11
    v_max_u32 v12, v12, v13
    v_and_b32 v8, 1, v8
    v_mul_i32_i24 v8, -101, v8
    v_ldexp_f32 v10, v10, v8
    v_ldexp_f32 v11, v11, v8
    v_cvt_pk_bf16_f32 v10, v10, v11
    s_lshl_b32 s{sA}, s{sWV}, 8
    v_add_u32 v4, s{sA}, v4
    ds_write_b32 v4, v10 offset:{WD - 2560}
    """)
    scan64(a, 12, "v_max_u32")
    a(f"""
    s_lshl_b32 s{sA}, s{sWV}, 2
    v_rcp_f32 v12, v12
    v_mov_b32 v4, s{sA}
    v_mul_f32 v12, s{sB2}, v12
    s_mov_b32 exec_lo, 0
    s_brev_b32 exec_hi, 1
    ds_write_b32 v4, v12 offset:{MISC + 8 - 40}
    s_mov_b64 exec, -1
    s_branch K_G0
    K_JB3:
    v_mul_f32 v10, {f32(-LN2 * (1 + DELTA))}, v10
    v_mul_f32 v11, {f32(-LN2 * (1 + DELTA))}, v11
    v_and_b32 v4, 7, v0
    v_lshlrev_b32 v4, 6, v4
    v_lshl_add_u32 v4, v8, 2, v4
    ds_write_b32 v4, v10 offset:{WX}
    ds_write_b32 v4, v11 offset:{WX + 32}
    s_branch K_G0
    K_JB4:
    v_mov_b32 v57, 0
    ds_read_b32 v57, v57 offset:{MISC}
    s_lshl_b32 s{sA}, s2, 6
    s_add_u32 s{sA}, s{sA}, {FP}
    v_mov_b32 v56, s{sA}
    s_cmp_eq_u32 s{sWV}, 14
    s_waitcnt lgkmcnt(0)
    v_or_b32 v57, 1, v57
    s_cbranch_scc0 K_G0 ; @if:w14=0
    """)
    poll128(a, "K_PP", FP, 8)
    a(f"""
    s_branch K_G0
    K_OWN1:
    s_cmp_eq_u32 s{sWV}, 13
    s_cbranch_scc1 K_OWN0 ; @if:w13=1
    {"" if nfin else qflag("K_OWN1B")}
    s_branch K_OWN1B
    K_OWN0:
    v_add_u32 v50, s{sNB}, v0
    v_mad_u32_u24 v50, v50, 6, v48
    v_cmp_gt_u32 vcc, s{sNV}, v0
    v_mov_b32 v51, {OOB}
    v_mov_b32 v52, 0
    v_mov_b32 v53, 0
    v_mov_b32 v54, 0
    v_mov_b32 v55, 0
    v_cndmask_b32 v50, v51, v50, vcc
    ds_read_u16_d16_hi v52, v50
    ds_read_u16_d16_hi v53, v50 offset:2
    ds_read_u16_d16_hi v54, v50 offset:4
    s_branch K_OWN1B
    K_PAD:
    s_cmp_eq_u32 s{sWV}, 14
    s_cbranch_scc1 K_QP0 ; @if:w14=1
    s_cmp_eq_u32 s{sWV}, 13
    s_cbranch_scc1 K_OWN2 ; @if:w13=1
    v_add_lshl_u32 v25, v0, s{sTOT}, 4
    v_mov_b32 v52, {N | (4 * PADN) << 16}
    v_mov_b32 v53, 0
    v_mov_b32 v54, 0
    v_mov_b32 v55, 0
    v_cndmask_b32 v25, v25, v24, {g3}
    ds_write_b128 v25, v[52:55] offset:{LIST}
    s_branch K_PADB
    K_OWN2:
    v_lshlrev_b32 v25, 4, v0
    s_mov_b32 exec_hi, 0x1fffff
    ds_write_b128 v25, v[52:55] offset:{OWN}
    s_mov_b64 exec, -1
    s_branch K_PADB
    K_QP0:
    """)
    if cfg.get("qblock"):
        poll(a, "K_QBP", "\n".join(f"global_load_dword v{53 + i}, v59, s[{sW}:{sW + 1}] offset:{4096 * (i - 1)} sc1" for i in range(2)),
             "v_min_u32 v55, v53, v54", 55, False)
    a(f"""
    s_waitcnt vmcnt(0)
    v_min_u32 v55, v53, v54
    v_or_b32 v53, v53, v54
    v_cmp_eq_u32 vcc, 0, v55
    v_mov_b32 v55, 0
    s_cbranch_vccnz K_PADB
    v_cmp_lt_u32 vcc, 0xffff, v53
    ds_write_b32 v55, v{vIS} offset:{RDY}
    s_cbranch_vccz K_PADB
    ds_write_b32 v55, v{vIS} offset:{MISC + 4}
    s_branch K_PADB
    K_QP:
    """)
    poll128(a, "K_QPP", FQ, T)
    a(f"""
    v_or_b32 v{T}, v{T + 1}, v{T + 2}
    v_cmp_lt_u32 vcc, 0xffff, v{T}
    s_cbranch_vccz K_QB
    ds_write_b32 v{S}, v{vIS} offset:{MISC + 4}
    s_waitcnt lgkmcnt(0)
    s_branch K_QB
    K_NT0:
    s_waitcnt vmcnt(0)
    {rdq(0)}
    {rdq(1)}
    """)
    exit_loads("K_XB")
    a("s_branch K_POST")
    a(f"""
    K_WIN:
    s_min_u32 s{sA}, s{sEW}, s{sTS}
    v_cmp_ge_u32 vcc, s{sA}, v{vIncl}
    s_mov_b32 s{sLAST}, 0 ; @set:last=0
    s_bcnt1_i32_b64 s{sNWN}, vcc
    s_branch K_FLUSH
    K_SLIDE:
    v_mov_b32 v{S}, 0
    v_mov_b32 v{S + 1}, 0
    v_and_b32 v17, 3, v0
    v_subrev_u32 v18, s{sNW}, v17
    v_subrev_u32 v17, s{sNWN}, v17
    v_and_b32 v18, 3, v18
    v_and_b32 v17, 3, v17
    s_sub_u32 s{sA}, s{sNWN}, s{sNW}
    v_sub_u32 v17, v17, v18
    v_add_u32 v17, s{sA}, v17
    v_mul_u32_u24 v17, {OOB}, v17
    s_mov_b32 s{sNW}, s{sNWN}
    s_mov_b64 exec, s[{sP1}:{sP1 + 1}]
    """)
    for k in range(16):
        a(f"v_mov_b64 {vr(AC + 2 * k, 2)}, 0")
    a(f"""
    s_mov_b64 exec, -1
    s_cmp_lt_u32 s{sEW}, s{sTS}
    s_cbranch_scc1 K_REDO
    s_sub_u32 s{sA}, s{sNW}, s{sN0}
    s_cmp_gt_u32 s{sA}, 8
    s_cbranch_scc1 K_RESTART
    {zero4(ZE + 4)}
    {zero4(L)}
    v_sub_u32 v{vSa}, v{vSa}, v17
    v_sub_u32 v{vBS}, v{vBS}, v17
    """)
    window(a)
    a(f"""
    s_branch K_EV2
    K_REDO:
    s_sub_u32 s{sTS}, s{sTS}, 16
    K_RESTART:
    s_mov_b32 s{sN0}, s{sNW}
    """)
    ptrs(a)
    a("s_waitcnt vmcnt(0) lgkmcnt(0)")
    list_reads(a)
    a(f"""
    s_waitcnt lgkmcnt(0)
    s_branch K_XFR
    K_LOOPF:
    {loop_body('M1 Y1 M2 Y2 Fa Fb m s 0 v D V', DORD, False)}
    s_cbranch_scc1 K_LOOPF
    s_branch K_EV
    """)
    a(f"""
    K_OVF:
    v_lshrrev_b32 v49, 3, v{vT}
    v_lshlrev_b32 v55, v49, v19
    v_lshrrev_b32 v49, 5, v49
    v_lshlrev_b32 v49, 2, v49
    s_mov_b64 exec, vcc
    ds_or_b32 v49, v55 offset:{CNT + 208}
    s_mov_b64 exec, -1
    s_branch K_OVFB
    K_MASK:
    """)
    for k in range(4):
        a(f"v_readlane_b32 s{sMK + k}, v49, {52 + k}")
    a(f"""
    v_cmp_gt_u32 vcc, 52, v0
    s_mov_b32 s{sRARE}, 1
    s_nop 0
    v_cndmask_b32 v49, 0, v49, vcc
    s_branch K_MASKB
    K_SHRINK:
    s_movk_i32 s{sWID}, {CAP // 4}
    s_mov_b32 s{sLO}, 0
    s_mov_b32 s{sRARE}, 1
    s_branch K_ROUND
    K_NEXT:
    s_mov_b32 s{sQA}, 0
    s_add_u32 s{sLO}, s{sLO}, s{sWID}
    s_cmp_lt_u32 s{sWID}, 1024
    s_cselect_b32 s{sA}, s{sLO}, 1024
    s_cmp_lt_u32 s{sA}, 1000
    s_cbranch_scc1 K_ROUND
    s_mov_b32 s{sLO}, 0
    s_movk_i32 s{sWID}, 1024
    s_ff1_i32_b64 s{sSRC}, s[{sMK}:{sMK + 1}]
    s_cmp_lt_i32 s{sSRC}, 0
    s_cbranch_scc1 K_NEXT2
    s_bitset0_b64 s[{sMK}:{sMK + 1}], s{sSRC}
    s_branch K_ROUND
    K_NEXT2:
    s_ff1_i32_b64 s{sSRC}, s[{sMK + 2}:{sMK + 3}]
    s_cmp_lt_i32 s{sSRC}, 0
    s_cbranch_scc0 K_NEXT3
    s_cmp_lg_u32 s{sD}, 0
    s_cbranch_scc1 K_S1
    s_branch K_S0
    K_NEXT3:
    s_bitset0_b64 s[{sMK + 2}:{sMK + 3}], s{sSRC}
    s_add_u32 s{sSRC}, s{sSRC}, 64
    K_ROUND:
    s_load_dwordx2 s[6:7], s[0:1], 8
    s_load_dwordx4 s[8:11], s[0:1], 16
    s_load_dwordx2 s[12:13], s[0:1], 32
    s_lshl_b32 s{sA}, s{sWV}, 6
    v_add_u32 v{vT}, s{sA}, v0
    v_lshlrev_b32 v19, 4, v{vT}
    s_waitcnt vmcnt(0) lgkmcnt(0) ; @set:nt=x
    s_barrier
    """)
    zero_init(a, (PAC - MR - 16384) // 16)
    pos_dma(a, "K_PR")
    rec_addr(a, 28)
    a(f"""
    s_cmp_ge_i32 s{sSRC}, 0
    s_cbranch_scc1 K_RAW
    """)
    rec_load(a, 28)
    a(f"""
    s_waitcnt vmcnt(0)
    v_and_b32 v{vDL}, 0xbfbfbfbf, v{vDL}
    s_branch K_RANGE
    K_RAW:
    s_cmp_ge_u32 s{sWV}, 13
    s_cbranch_scc1 K_RANGE
    s_mul_i32 s{sA}, s{sSRC}, 12800
    v_cmp_gt_u32 vcc, 800, v{vT}
    v_add_u32 v28, s{sA}, v19
    v_lshrrev_b32 v29, 1, v28
    s_mov_b64 exec, vcc
    global_load_dwordx4 v[32:35], v28, s[12:13]
    global_load_dwordx4 {vr(W, 4)}, v28, s[10:11]
    global_load_dwordx2 v[36:37], v29, s[8:9]
    s_mov_b32 s{sA}, 342393
    s_mov_b32 s{sB2}, 0xffff0000
    v_mov_b32 v38, 0xbf
    s_waitcnt vmcnt(0)
    """)
    for j in range(4):
        a(f"""
        v_mul_u32_u24 v{32 + j}, s{sA}, v{32 + j}
        v_lshrrev_b32 v39, 24, v{32 + j}
        v_cmp_eq_u32 vcc, s{sB}, v39
        v_mul_hi_u32_u24 v{32 + j}, 12544, v{32 + j}
        """)
        if j & 1:
            a(f"v_and_or_b32 v{W + j}, v{36 + j // 2}, s{sB2}, v{W + j}")
        else:
            a(f"v_lshl_or_b32 v{W + j}, v{36 + j // 2}, 16, v{W + j}")
        a(f"v_cndmask_b32 v{32 + j}, v38, v{32 + j}, vcc")
    a(f"""
    v_lshl_or_b32 v32, v33, 8, v32
    v_lshl_or_b32 v34, v35, 8, v34
    v_lshl_or_b32 v{vDL}, v34, 16, v32
    s_mov_b64 exec, -1
    K_RANGE:
    v_subrev_u32 v28, s{sLO}, v{vT}
    v_cmp_gt_u32 vcc, s{sWID}, v28
    v_mov_b32 v28, 0xbfbfbfbf
    s_waitcnt vmcnt(0) lgkmcnt(0)
    v_cndmask_b32 v{vDL}, v28, v{vDL}, vcc
    s_barrier
    s_branch K_B0
    """)
    return a.text()
```

```python
from common import *

CAP = 2016
CNT, LUT = 0, 256
MR, MST = 8448, 288
SEL = MR + 64 * MST
PAC = SEL + 49 * 32
MISC = PAC + 52 * 16
RDY = PAC + 12
OH = MISC + 16
WD, WX, FAKE = OH + 1024, OH + 1536, OH + 2048
OWN = OH + 2560
LIST = OWN + 53 * 16
HT2 = QTB = 32768
QTA = 46336
POSL = RING = OT = WS1 = 73984
PB = WS2 = WS1 + 32768
CNTP = OH
HT = PB + 40960
PT = 163840 - 49 * 288
OST = QST = 272
PADN = 52
FP, FQ = WS_SYNC, WS_SYNC + 8192
SPIN = 1 << 18
assert LIST + (CAP + 48) * 16 <= LUT + 65536 and POSL + 75008 <= PT and LIST <= HT2 and HT % 256 == 0 and HT + 13312 <= 163840

sWV = 3
sW, sH, sO, sR, sMK = 24, 28, 32, 36, 40
sB, sNB, sNV, sRARE, sQW, sSRC, sLO, sWID = 44, 45, 46, 47, 48, 49, 50, 51
sTOT, sTS, sWT, sWEND, sN0, sNW, sEW, sEV = 52, 53, 54, 55, 56, 57, 58, 59
sNF, sNL, sMODE, sNWN, sC000, s128, s256, s192, sLAST = 60, 61, 62, 63, 64, 65, 66, 68, 69
sM0, sG3 = 70, 74
sT, sQA, sQS, sGH = sO, sLAST, sTOT, sNWN
sA, sB2, sC, sD = 76, 77, 78, 79
sP0, sP1, sP2, sP3, sP4 = 80, 82, 84, 86, 88
vRing, vLc, vMul, vIncl, vVoff = 1, 2, 3, 4, 5
vBX, vBS, vIX, vIS, vDa, vEa = 6, 7, 8, 9, 10, 11
vXa, vSa, vD, vDE, vIdx = 12, 13, 14, 15, 16
ZE, ZL, T, L, R, S, A, B, AC, Y = 20, 28, 32, 36, 40, 42, 44, 60, 84, 120
vFa, vG0, vG1 = 116, 117, 118
vDL, vT, W = 17, 18, 20
g3 = sr(sG3, 2)

PAT = "M1 h E Y1 E M2 E Y2 E 0 X X X X m P P P R s R l P P P v D V"
DORD = "SqxdL"
QF = os.environ.get("QF", "")
PMASK = int(os.environ.get("PMASK", "1"))


def dma(kc):
    soff = ["0", "64", f"s{s128}", f"s{s192}"][kc]
    return [f"s_mov_b32 m0, s{sM0 + kc}",
            f"buffer_load_dwordx4 v{vVoff}, s[{sW}:{sW + 3}], {soff} offen {QF}lds ; @w:ring{kc}"]


def rdq(kc, d=None):
    d = A + 2 + 6 * (kc & 1) if d is None else d
    return f"ds_read_b128 {vr(d, 4)}, v{vRing} offset:{1024 * kc} ; @r:ring{kc}"


def Kmf(u, z):
    a0 = A + 6 * ((u // 2) % 2) + (4 if u & 1 else 0)
    b0 = B + 6 * (u // 2) + (2 if u & 1 else 0)
    return f"v_mfma_f32_16x16x32_bf16 {vr(z, 4)}, {vr(a0, 4)}, {vr(b0, 4)}, 0"


def Ymf(u, b):
    return f"v_smfmac_f32_16x16x32_bf16 {vr(AC + 4 * u, 4)}, {vr(S, 2)}, {vr(b, 4)}, v{vIdx}"


def zero4(d):
    return f"v_mfma_f32_16x16x16_bf16 {vr(d, 4)}, {vr(S, 2)}, {vr(S, 2)}, 0"


def mf32(d, x, y, first=False):
    return f"v_mfma_f32_16x16x32_bf16 {vr(d, 4)}, {vr(x, 4)}, {vr(y, 4)}, {'0' if first else vr(d, 4)}"


def loop_body(pat, dord, lut):
    seq = []
    I = lambda t, tag=None: seq.append(("i", t, tag))
    NEED = lambda tag: seq.append(("n", tag, None))
    pk1 = lambda r: f"v_pk_add_f32 {vr(r, 2)}, {vr(r, 2)}, 1.0 op_sel_hi:[1,0]"
    for j in range(4):
        z, zn = ZE + 4 * (j & 1), ZE + 4 * ((j + 1) & 1)
        e = [f"v_exp_f32 v{T + (k ^ 2)}, v{z + k}" for k in range(4)]
        p = [pk1(T + 2),
             f"v_pk_fma_f32 {vr(R, 2)}, {vr(T + 2, 2)}, {vr(T, 2)}, {vr(T + 2, 2)}",
             f"v_pk_fma_f32 {vr(T, 2)}, {vr(z, 2)}, {vr(T, 2)}, {vr(z, 2)}",
             f"v_pk_mul_f32 {vr(T + 2, 2)}, {vr(z + 2, 2)}, {vr(T + 2, 2)}",
             f"v_pk_mul_f32 {vr(z, 2)}, {vr(T, 2)}, {vr(R, 2)}",
             f"v_pk_mul_f32 {vr(z + 2, 2)}, {vr(T + 2, 2)}, {vr(R, 2)}"]
        r = [f"v_rcp_f32 v{R}, v{R}", f"v_rcp_f32 v{R + 1}, v{R + 1}"]
        ix = [f"v_lshlrev_b32_sdwa v{ZL + k}, 1, v{ZL + k} {SD} src1_sel:WORD_1" for k in range(4)]
        d = dma((j + 1) % 4)
        for tok in pat.split():
            if tok == "M1":
                if j < 2:
                    NEED(f"x{j + 1}")
                I(Kmf(2 * j + 1, ZL))
            elif tok == "M2":
                NEED(f"q{(j + 1) % 4}")
                if j == 3:
                    NEED("x0")
                I(Kmf((2 * j + 2) % 8, zn))
            elif tok == "Y1":
                if j == 1:
                    NEED("S")
                I(Ymf((2 * j - 2) % 8, zn))
            elif tok == "Y2":
                if lut:
                    NEED("L")
                I(Ymf((2 * j - 1) % 8, L))
            elif tok == "E":
                I(e.pop(0))
            elif tok == "P":
                I(p.pop(0))
            elif tok == "R":
                I(r.pop(0))
            elif tok == "X":
                I(ix.pop(0))
            elif tok in ("Fa", "Fb"):
                src, dst = (z, z) if tok == "Fa" else (ZL, L)
                if tok == "Fb":
                    for k in range(4):
                        I(f"v_mul_f32 v{ZL + k}, {f32(2.0 ** 101)}, v{ZL + k}")
                for k in range(4):
                    I(f"v_exp_f32 v{T + k}, v{src + k}")
                I(pk1(T))
                I(pk1(T + 2))
                for k in range(4):
                    I(f"v_rcp_f32 v{T + k}, v{T + k}")
                for k in (0, 2):
                    I(f"v_pk_mul_f32 {vr(dst + k, 2)}, {vr(T + k, 2)}, {vr(src + k, 2)}")
            elif tok == "m":
                if j == 0:
                    NEED("dE")
                    I(f"v_mad_u32_u16 v{vXa}, v{vDE}, v{vMul}, v{vBX} op_sel:[1,0,0,0]")
                elif j == 1:
                    I(f"v_mad_u32_u16 v{vSa}, v{vD}, s{sC000}, v{vBS} op_sel:[1,0,0,0]")
                elif j == 2:
                    I(f"v_lshl_add_u64 v[{vDa}:{vEa}], v[{vDa}:{vEa}], 0, s[{s256}:{s256 + 1}]")
                    I(f"v_lshl_add_u64 v[{vBX}:{vBS}], v[{vBX}:{vBS}], 0, v[{vIX}:{vIS}]")
                else:
                    NEED("dD")
                    I(f"v_mad_u32_u16 v{vVoff}, v{vD}, s{s256}, v{vLc}")
            elif tok == "s":
                if j == 2:
                    I(f"s_add_u32 s{sTS}, s{sTS}, 16")
                if j == 3:
                    I(f"s_cmp_lt_i32 s{sTS}, s{sEV}")
            elif tok == "l":
                I("s_setprio 0")
            elif tok == "h":
                I("s_setprio 1")
            elif tok == "0":
                I(d[0])
            elif tok == "v":
                I("s_waitcnt vmcnt(2)")
            elif tok == "V":
                I(d[1])
            elif tok == "D":
                for c in dord:
                    if c == "S" and j == 0:
                        I(f"ds_read_b64_tr_b16 {vr(S, 2)}, v{vSa}", "S")
                    if c == "q":
                        I(rdq((j + 2) % 4), f"q{(j + 2) % 4}")
                    if c == "x" and j:
                        I(f"ds_read_b64 {vr(A + 6 * (j - 1), 2)}, v{vXa}", f"x{j - 1}")
                    if c == "d" and j == 1:
                        I(f"ds_read_b32 v{vD}, v{vDa}", "dD")
                    if c == "d" and j == 3:
                        I(f"ds_read_b32 v{vDE}, v{vEa}", "dE")
                    if c == "L" and lut:
                        for k in range(4):
                            I(f"ds_read_u16_d16_hi v{L + k}, v{ZL + k} offset:{LUT}", "L")
            else:
                raise ValueError(tok)
    q, out = [], []
    for rep in range(2):
        out = []
        for k, t, tag in seq:
            if k == "i":
                out.append(t)
                if t.startswith("ds_"):
                    q.append(tag)
            elif t in q:
                n = q[::-1].index(t)
                out.append(f"s_waitcnt lgkmcnt({n})")
                q = q[len(q) - n:]
    return "\n".join(out)


def ptrs(a):
    a(f"""
    s_lshl_b32 s{sA}, s{sTS}, 4
    s_add_u32 s{sA}, s{sA}, {LIST}
    v_and_b32 v18, -4, v0
    v_and_b32 v19, 15, v0
    v_lshl_add_u32 v{vDa}, v18, 2, s{sA}
    v_lshl_add_u32 v{vEa}, v19, 4, s{sA}
    s_cmp_lt_u32 s{sTS}, s{sWT}
    s_cselect_b64 s[{sP0}:{sP0 + 1}], -1, 0
    s_add_u32 s{sB2}, s{sTS}, 16
    s_cmp_lt_u32 s{sB2}, s{sWT}
    s_cselect_b64 s[{sP1}:{sP1 + 1}], -1, 0
    v_add_u32 v19, 256, v{vDa}
    v_cndmask_b32 v18, v{vFa}, v{vDa}, s[{sP0}:{sP0 + 1}]
    v_cndmask_b32 v19, v{vFa}, v19, s[{sP1}:{sP1 + 1}]
    """)


def list_reads(a):
    a(f"""
    ds_read_b32 v{vSa}, v18
    ds_read_b32 v{vD}, v19
    ds_read_b32 v{vXa}, v{vEa}
    ds_read_b32 v{vDE}, v{vEa} offset:256
    """)


def window(a):
    a(f"""
    s_add_u32 s{sA}, s{sNW}, 3
    v_readlane_b32 s{sEW}, v{vIncl}, s{sA}
    s_sub_u32 s{sB2}, s{sWT}, 32
    s_cmp_ge_u32 s{sEW}, s{sWEND}
    s_cselect_b32 s{sEW}, 0x7fffffff, s{sEW}
    s_sub_u32 s{sA}, s{sEW}, 15
    s_min_i32 s{sEV}, s{sA}, s{sB2}
    """)


def zero_init(a, n2):
    a(f"""
    v_mov_b32 v24, 0
    v_mov_b32 v25, 0
    v_mov_b32 v26, 0
    v_mov_b32 v27, 0
    v_cmp_gt_u32 vcc, {n2}, v{vT}
    ds_write_b128 v19, v[24:27] offset:{MR}
    v_lshlrev_b32 v28, 2, v0
    ds_write_b32 v28, v24 offset:{CNT}
    s_mov_b64 exec, vcc
    ds_write_b128 v19, v[24:27] offset:{MR + 16384}
    s_mov_b64 exec, -1
    """)


def rec_addr(a, r):
    a(f"""
    s_movk_i32 s{sB2}, 96
    s_mov_b32 vcc_lo, 0xc0c0c0c0
    s_mov_b32 vcc_hi, 0xc0c0c0c0
    v_lshrrev_b32 v{r}, 3, v{vT}
    v_lshlrev_b32 v{r + 1}, 2, v{vT}
    v_mad_u32_u24 v{r + 1}, v{r}, s{sB2}, v{r + 1}
    v_mul_i32_i24 v{r}, -96, v{r}
    v_add_u32 v{r}, {16000 - 128}, v{r}
    v_cndmask_b32 v{r}, 0, v{r}, vcc
    v_add_u32 v{r}, v{r}, v19
    v_cmp_gt_u32 vcc, 1000, v{vT}
    v_mov_b32 v{vDL}, 0xbfbfbfbf
    """)


def rec_load(a, r):
    a(f"""
    s_mov_b64 exec, vcc
    global_load_dword v{vDL}, v{r + 1}, s[{sR}:{sR + 1}] sc1
    global_load_dwordx4 {vr(W, 4)}, v{r}, s[{sR}:{sR + 1}] offset:32 sc1
    s_mov_b64 exec, -1
    """)


def pos_dma(a, tag, alt=None, skip=False):
    srd(a, sT, 6, 75000)
    a(f"""
    s_cmp_ge_u32 s{sWV}, 10
    v_lshlrev_b32 v58, 4, v0
    s_cbranch_scc1 {alt or tag + '_E'}
    """)
    if skip:
        a(f"""
        s_lshr_b32 s{sA}, s2, 7
        s_lshl_b32 s{sA}, s{sA}, 2
        s_cmp_lt_u32 s{sWV}, s{sA}
        s_cbranch_scc1 {tag}_E
        """)
    a(f"""
    s_lshl_b32 s{sA}, s{sWV}, 13
    s_add_u32 m0, s{sA}, {POSL}
    s_cmp_eq_u32 s{sWV}, 9
    buffer_load_dwordx4 v58, s[{sT}:{sT + 3}], s{sA} offen lds
    s_cselect_b64 exec, 0xffff, -1
    buffer_load_dwordx4 v58, s[{sT}:{sT + 3}], s{sA} offen offset:1024 lds
    s_mov_b64 exec, -1
    s_cbranch_scc1 {tag}_E
    buffer_load_dwordx4 v58, s[{sT}:{sT + 3}], s{sA} offen offset:2048 lds
    buffer_load_dwordx4 v58, s[{sT}:{sT + 3}], s{sA} offen offset:3072 lds
    s_add_u32 m0, m0, 4096
    s_add_u32 s{sA}, s{sA}, 4096
    """)
    for i in range(4):
        a(f"buffer_load_dwordx4 v58, s[{sT}:{sT + 3}], s{sA} offen offset:{1024 * i} lds")
    a(f"{tag}_E:")


def poll(a, tag, ld, red, v, first=True):
    a(f"""
    s_mov_b32 s{sA}, {SPIN}
    {ld if first else ''}
    {tag}:
    s_waitcnt vmcnt(0)
    {red}
    v_cmp_eq_u32 vcc, 0, v{v}
    s_sub_u32 s{sA}, s{sA}, 1
    s_cbranch_vccz {tag}_E
    {"s_mov_b64 exec, vcc" if PMASK else ""}
    {ld}
    s_cbranch_scc0 {tag}
    s_waitcnt vmcnt(0)
    {tag}_E:
    {"s_mov_b64 exec, -1" if PMASK else ""}
    """)


def poll128(a, tag, off, r):
    a(f"s_mov_b32 s{sA}, {off + 4096}\nv_lshl_add_u32 v{r}, v0, 6, s{sA}")
    ld = "\n".join(f"global_load_dword v{r + 1 + i}, v{r}, s[{sW}:{sW + 1}] offset:{4096 * (i - 1)} sc1" for i in range(2))
    poll(a, tag, ld, f"v_min_u32 v{r + 3}, v{r + 1}, v{r + 2}", r + 3)


def big_test(a, acc, lab):
    for k in range(4):
        p = vr(acc + 2 * k, 2)
        a(f"v_pk_mul_f32 v[36:37], {p}, {p}" if k == 0 else f"v_pk_fma_f32 v[36:37], {p}, {p}, v[36:37]")
    a(f"""
    v_add_f32 v36, v36, v37
    v_cmp_ngt_f32 vcc, {f32(64 * LN2 * LN2)}, v36
    s_cbranch_vccnz {lab}
    {lab}B:
    """)


def scale_pack(a, acc, tmp):
    for t in range(2):
        for k in (0, 2):
            a(f"v_pk_mul_f32 {vr(tmp + 4 * t + k, 2)}, {vr(acc + 4 * t + k, 2)}, s[{sP0}:{sP0 + 1}] op_sel_hi:[1,0]")
        a(f"""
        v_cvt_pk_bf16_f32 v{tmp + 4 * t}, v{tmp + 4 * t}, v{tmp + 4 * t + 1}
        v_cvt_pk_bf16_f32 v{tmp + 4 * t + 1}, v{tmp + 4 * t + 2}, v{tmp + 4 * t + 3}
        """)


def tile_write(tmp, va, off=0):
    return "\n".join(f"ds_write_b64 v{va + t}, {vr(tmp + 4 * t, 2)} offset:{off}" for t in range(2))


def wdma(base, dst):
    return f"""
    s_mov_b64 s[{sT}:{sT + 1}], s[{base}:{base + 1}]
    s_lshl_b32 s{sA}, s{sWV}, 11
    s_add_u32 m0, s{sA}, {dst}
    s_nop 0
    buffer_load_dwordx4 v1, s[{sT}:{sT + 3}], s{sA} offen lds
    buffer_load_dwordx4 v1, s[{sT}:{sT + 3}], s{sA} offen offset:1024 lds
    """


def silu4(a, y, h, t):
    a(f"""
    v_pk_mul_f32 {vr(y, 2)}, {vr(y, 2)}, s[{sP0}:{sP0 + 1}] op_sel_hi:[1,0]
    v_pk_mul_f32 {vr(y + 2, 2)}, {vr(y + 2, 2)}, s[{sP0}:{sP0 + 1}] op_sel_hi:[1,0]
    """)
    for k in range(4):
        a(f"v_exp_f32 v{t + k}, v{y + k}")
    for k in (0, 2):
        a(f"v_pk_add_f32 {vr(t + k, 2)}, {vr(t + k, 2)}, 1.0 op_sel_hi:[1,0]")
    for k in range(4):
        a(f"v_rcp_f32 v{t + k}, v{t + k}")
    for k in (0, 2):
        a(f"v_pk_mul_f32 {vr(y + k, 2)}, {vr(y + k, 2)}, s[{sP0}:{sP0 + 1}] op_sel:[0,1] op_sel_hi:[1,1]")
    for k in (0, 2):
        a(f"v_pk_fma_f32 {vr(y + k, 2)}, {vr(y + k, 2)}, {vr(t + k, 2)}, {vr(h + k, 2)}")
    a(f"v_cvt_pk_bf16_f32 v{y}, v{y}, v{y + 1}\nv_cvt_pk_bf16_f32 v{y + 1}, v{y + 2}, v{y + 3}")


def gen_kernel(cfg):
    a = Asm()
    st = lambda i: stamp(a, cfg, i)
    pr = lambda nm: f"s_memrealtime s[{STAMP_REGS[15]}:{STAMP_REGS[15] + 1}]" if cfg.get("diag") and cfg.get("probe", "scat") == nm else ""
    YA, YB = Y, Y + 4
    nfin = 0
    HA_, HB_, WF, TF, GC, RA = AC, AC + 16, B, 24, 76, 6
    vWa, vWb, vQa, vPa, vHa, vQo, vZ, QR = 16, 3, 116, 118, 56, 14, 58, 48
    GA, LA, CA, BK, RK1, WBR = 46, 48, 50, 34, 38, 52
    cpf = ""
    if cfg.get("cpf"):
        cpf = f"""
        s_cmp_lg_u32 s{sWV}, 15
        s_cbranch_scc1 K_CP
        s_getpc_b64 s[{sP0}:{sP0 + 1}]
        v_lshlrev_b32 v2, 7, v0
        v_add_u32 v3, 0x2000, v2
        global_load_dword v126, v2, s[{sP0}:{sP0 + 1}]
        s_mov_b64 exec, 0xffff
        global_load_dword v127, v3, s[{sP0}:{sP0 + 1}]
        s_mov_b64 exec, -1
        K_CP:
        """
    a(f"""
    s_load_dwordx16 s[4:19], s[0:1], 0
    s_load_dwordx4 s[20:23], s[0:1], 64
    s_load_dwordx2 s[{sW}:{sW + 1}], s[0:1], 80
    v_lshrrev_b32 v1, 6, v0
    s_cmp_ge_u32 s2, 256
    s_cbranch_scc1 K_END
    v_readfirstlane_b32 s{sWV}, v1
    v_mov_b32 v{vT}, v0
    v_lshlrev_b32 v19, 4, v0
    v_and_b32 v0, 63, v0
    s_and_b32 s{sB}, s2, 7
    s_lshl_b32 s{sB}, s{sB}, 5
    s_lshr_b32 s{sD}, s2, 3
    s_add_u32 s{sB}, s{sB}, s{sD}
    s_mul_i32 s{sNB}, s{sB}, {NB}
    {cpf}
    s_lshl_b32 s{sA}, s{sWV}, 8
    s_or_b32 s{sA}, s{sA}, s2
    s_cmp_eq_u32 s{sA}, {12 * 256 + 127}
    s_cbranch_scc1 K_ZF
    s_cmp_ge_u32 s2, 125
    s_cbranch_scc1 K_LD ; @if:p=0
    s_mul_i32 s{sA}, s2, 12800
    v_add_u32 v2, s{sA}, v19
    v_lshrrev_b32 v3, 1, v2
    v_cmp_gt_u32 vcc, 800, v{vT}
    s_cmp_eq_u32 s{sWV}, 8
    s_mov_b32 s{sC}, {OOB}
    s_cmov_b32 s{sC}, {CNTP - 8192}
    s_cmp_lt_u32 s{sWV}, 8
    s_cselect_b32 s{sA}, 0xbfbfbfbf, 0
    s_cselect_b32 s{sB2}, 64, 0
    s_cmov_b32 s{sC}, {PB}
    v_and_b32 v14, 0x3fe, v{vT}
    v_mul_u32_u24 v14, s{sB2}, v14
    v_add3_u32 v14, v14, v19, s{sC}
    v_mov_b32 v20, s{sA}
    v_mov_b32 v21, s{sA}
    v_mov_b32 v22, s{sA}
    v_mov_b32 v23, s{sA}
    s_mov_b64 s[{sP4}:{sP4 + 1}], vcc
    s_mov_b64 exec, vcc
    s_waitcnt lgkmcnt(0)
    s_cbranch_execz K_PL ; @if:lo=0
    global_load_dwordx4 v[4:7], v2, s[12:13]
    global_load_dwordx4 v[8:11], v2, s[10:11]
    global_load_dwordx2 v[12:13], v3, s[8:9]
    K_PL:
    s_mov_b64 exec, -1
    ds_write_b128 v14, v[20:23]
    s_waitcnt lgkmcnt(0)
    s_barrier
    K_LD:
    s_sub_u32 s{sNV}, {N}, s{sNB}
    s_min_u32 s{sNV}, s{sNV}, {NB}
    s_lshl_b32 s{sC}, s{sNB}, 8
    s_lshl_b32 s{sH + 2}, s{sNV}, 8
    s_mov_b32 s{sH + 3}, 0x20000
    v_lshrrev_b32 v14, 4, v0
    v_and_b32 v15, 15, v0
    s_lshr_b32 s{sQS}, s2, 7
    s_add_u32 s{sA}, s{sWV}, s{sQS}
    s_waitcnt lgkmcnt(0)
    s_add_u32 s{sH}, s4, s{sC}
    s_addc_u32 s{sH + 1}, s5, 0
    s_cmp_lt_u32 s{sA}, 13
    s_cbranch_scc1 K_CH
    s_cmp_eq_u32 s{sA}, 14
    s_cselect_b32 s{sC}, {16 * NB * 256}, 0
    s_cselect_b32 s{sT + 2}, {NB * 256}, s{sH + 2}
    s_mov_b32 s{sP1}, {HT}
    s_cmov_b32 s{sP1}, {HT2}
    s_sub_u32 s{sT}, s{sH}, s{sC}
    s_subb_u32 s{sT + 1}, s{sH + 1}, 0
    s_and_b32 s{sA}, s{sWV}, 1
    s_lshl_b32 s{sA}, s{sA}, 14
    s_add_u32 s{sB2}, s{sA}, {WS1}
    s_lshl_b32 s{sC}, s{sQS}, 15
    s_add_u32 s{sA}, s{sA}, s{sC}
    s_and_b32 s{sD}, s{sD}, 3
    s_lshl_b32 s{sD}, s{sD}, 12
    s_cmp_lt_u32 s{sWV}, 14
    s_cselect_b64 s[{sT}:{sT + 1}], s[{sT}:{sT + 1}], s[14:15]
    s_cselect_b32 s{sT + 2}, s{sT + 2}, 0x10000
    s_mov_b32 s{sT + 3}, 0x20000
    s_cselect_b32 s{sP0}, 0, 1
    s_cselect_b32 s{sP0 + 1}, 64, 0
    s_cmov_b32 s{sA}, 0
    s_cmov_b32 s{sB2}, s{sP1}
    s_cmov_b32 s{sD}, 0
    v_lshlrev_b32 v20, s{sP0}, v14
    v_xor_b32 v20, v20, v15
    v_lshlrev_b32 v20, 4, v20
    v_lshl_add_u32 v20, v14, 8, v20
    v_xor_b32 v21, s{sP0 + 1}, v20
    v_xor_b32 v22, 0x80, v20
    v_xor_b32 v23, 0x80, v21
    """)
    for k in range(4):
        a(f"s_add_u32 m0, s{sB2}, s{sD}\ns_add_u32 s{sC}, s{sA}, s{sD}")
        if k == 3:
            a(f"s_cmp_lt_u32 s{sWV}, 14")
        for i in range(4):
            a(f"buffer_load_dwordx4 v{20 + i}, s[{sT}:{sT + 3}], s{sC} offen offset:{1024 * i} lds")
            if k == 3 and i == 0:
                a("s_cbranch_scc1 K_WJ")
            if k < 3 and i == 0:
                a(f"s_add_u32 s{sD}, s{sD}, 4096\ns_and_b32 s{sD}, s{sD}, 0x3fff")
    a("K_CH:\ns_setreg_imm32_b32 hwreg(HW_REG_MODE, 4, 2), 3")
    st(0)
    zero_init(a, (MISC + 16 - MR - 16384) // 16)
    a(f"""
    v_lshlrev_b32 v24, 18, v{vT}
    v_or_b32 v25, 0x18000, v24
    v_or_b32 v26, 0x28000, v24
    v_or_b32 v27, 0x38000, v24
    v_or_b32 v24, 0x8000, v24
    s_mov_b32 s{sP0}, {f32(2.0 ** 101)}
    s_mov_b32 s{sP0 + 1}, {f32(1 / (1 + DELTA))}
    v_pk_mul_f32 v[26:27], v[26:27], s[{sP0}:{sP0 + 1}] op_sel_hi:[1,0]
    v_pk_mul_f32 v[24:25], v[24:25], s[{sP0}:{sP0 + 1}] op_sel_hi:[1,0]
    """)
    for k in range(4):
        a(f"v_exp_f32 v{28 + k}, v{24 + k}")
    for k in (0, 2):
        a(f"v_pk_mul_f32 {vr(24 + k, 2)}, {vr(24 + k, 2)}, s[{sP0}:{sP0 + 1}] op_sel:[0,1] op_sel_hi:[1,1]")
    for k in (0, 2):
        a(f"v_pk_add_f32 {vr(28 + k, 2)}, {vr(28 + k, 2)}, 1.0 op_sel_hi:[1,0]")
    for k in range(4):
        a(f"v_rcp_f32 v{28 + k}, v{28 + k}")
    a(f"v_lshlrev_b32 v32, 3, v{vT}\nv_add_u32 v33, 0x10000, v32")
    for k in (0, 2):
        a(f"v_pk_mul_f32 {vr(28 + k, 2)}, {vr(28 + k, 2)}, {vr(24 + k, 2)}")
    for k in (0, 2):
        a(f"v_pk_add_f32 {vr(24 + k, 2)}, {vr(28 + k, 2)}, {vr(24 + k, 2)} neg_lo:[0,1] neg_hi:[0,1]")
    a(f"""
    v_cvt_pk_bf16_f32 v28, v28, v29
    v_cvt_pk_bf16_f32 v29, v30, v31
    v_cvt_pk_bf16_f32 v24, v24, v25
    v_cvt_pk_bf16_f32 v25, v26, v27
    ds_write_b64 v32, v[28:29] offset:{LUT}
    ds_write_b64 v33, v[24:25] offset:{LUT}
    """)
    a(f"""
    s_mov_b32 s{sW + 2}, {WS_END}
    s_mov_b32 s{sW + 3}, 0x20000
    s_lshr_b32 s{sD}, s{sWV}, 3
    s_and_b32 s{sC}, s{sWV}, 7
    s_sub_u32 s{sA}, s{sD}, 1
    v_and_b32 v17, s{sA}, v15
    s_lshl_b32 s{sA}, s{sD}, 4
    s_add_u32 s{sA}, s{sA}, 16
    v_add_u32 v24, s{sA}, v15
    s_mul_i32 s{sA}, s{sD}, 48
    v_add_u32 v25, s{sA}, v17
    s_mov_b32 s{sA}, {HT}
    v_xor_b32 v26, v14, v15
    v_xor_b32 v27, v14, v17
    v_lshl_add_u32 v26, v26, 4, s{sA}
    v_lshl_add_u32 v27, v27, 4, s{sA}
    v_lshl_add_u32 v{vHa}, v24, 8, v26
    v_lshl_add_u32 v{vHa + 1}, v25, 8, v27
    s_cmp_ge_u32 s2, 128
    s_cselect_b32 s{sA}, {HT - HT2}, 0
    v_subrev_u32 v{HA_}, s{sA}, v{vHa}
    v_subrev_u32 v{HB_}, s{sA}, v{vHa + 1}
    """)
    for ks in range(1, 4):
        a(f"v_xor_b32 v{HA_ + 4 * ks}, {64 * ks}, v{HA_}\nv_xor_b32 v{HB_ + 4 * ks}, {64 * ks}, v{HB_}")
    a(f"""
    s_lshr_b32 s{sA}, s{sC}, 1
    s_mul_i32 s{sA}, s{sA}, 48
    s_lshl_b32 s{sB2}, s{sC}, 3
    s_add_u32 s{sA}, s{sA}, s{sB2}
    v_lshl_add_u32 v26, v14, 4, s{sA}
    s_movk_i32 s{sA}, {QST}
    v_mad_u32_u24 v{vQa}, v24, s{sA}, v26
    v_mad_u32_u24 v{vQa + 1}, v25, s{sA}, v26
    s_lshl_b32 s{sA}, s{sC}, 5
    s_add_u32 s{sA}, s{sA}, {PT}
    v_lshl_add_u32 v26, v14, 3, s{sA}
    s_movk_i32 s{sA}, 288
    v_mad_u32_u24 v{vPa}, v24, s{sA}, v26
    v_mad_u32_u24 v{vPa + 1}, v25, s{sA}, v26
    v_bfe_u32 v24, v0, 2, 2
    v_and_b32 v25, 1, v14
    v_lshl_or_b32 v25, v25, 2, v24
    v_xor_b32 v25, s{sC}, v25
    v_and_b32 v26, 3, v0
    v_lshlrev_b32 v26, 3, v26
    v_lshl_or_b32 v25, v25, 5, v26
    v_lshl_add_u32 v24, v14, 3, v24
    v_lshl_add_u32 v24, v24, 8, v25
    v_add_u32 v{vWa}, {WS1}, v24
    v_mov_b32 v{vZ}, 0
    s_sub_u32 s{sA}, s{sWV}, 14
    v_mov_b32 v{vZ + 1}, s{sA}
    s_mov_b32 s{sQS}, 0
    v_lshlrev_b32 v1, 1, v14
    v_xor_b32 v1, v1, v15
    v_lshlrev_b32 v1, 4, v1
    v_lshl_add_u32 v1, v14, 8, v1
    s_bitcmp1_b32 s{sWV}, 0
    s_cselect_b32 s{sA}, 0x80, 0
    v_xor_b32 v1, s{sA}, v1
    s_mov_b32 s{sT + 2}, 0x8000
    s_mov_b32 s{sT + 3}, 0x20000
    s_mov_b32 s{sP0}, {f32(-LOG2E)}
    s_cmov_b32 s{sP0}, {f32(-LOG2E * TINY)}
    s_mul_i32 s{sA}, s{sB}, {RST}
    s_add_u32 s{sA}, s{sA}, {WS_REC}
    s_add_u32 s{sR}, s{sW}, s{sA}
    s_addc_u32 s{sR + 1}, s{sW + 1}, 0
    s_cmp_ge_u32 s2, 125
    s_cbranch_scc1 K_NP ; @if:p=0
    """)
    a(f"""
    s_lshl_b32 s{sA}, s2, 7
    s_add_u32 s{sA}, s{sA}, {WS_REC}
    s_add_u32 s{sP3}, s{sW}, s{sA}
    s_addc_u32 s{sP3 + 1}, s{sW + 1}, 0
    s_movk_i32 s{sA}, {RST - 128}
    s_mov_b32 s{sP1}, {PB}
    v_lshrrev_b32 v24, 3, v{vT}
    v_mad_u32_u24 v{GA}, v24, s{sA}, v19
    v_add_u32 v{GA + 1}, {128 * RST}, v{GA}
    v_lshl_add_u32 v{LA}, v24, 5, v19
    v_add_u32 v{LA}, s{sP1}, v{LA}
    v_lshlrev_b32 v{CA}, 2, v24
    s_cmp_ge_u32 s{sWV}, 13
    s_cbranch_scc1 K_PLD ; @if:lo=0
    s_mov_b32 s{sA}, 342393
    s_movk_i32 s{sB2}, 12544
    s_mov_b32 s{sP1 + 1}, 0xffff0000
    v_mov_b32 v44, 1
    s_mov_b64 exec, s[{sP4}:{sP4 + 1}]
    s_waitcnt vmcnt(2)
    """)
    for j in range(4):
        a(f"""
        v_mul_u32_u24 v{4 + j}, s{sA}, v{4 + j}
        v_lshlrev_b32_sdwa v{BK + j}, 2, v{4 + j} {SD} src1_sel:BYTE_3
        ds_add_rtn_u32 v{RK1 + j}, v{BK + j}, v44 offset:{CNTP}
        """)
    for j in range(4):
        a(f"v_mul_hi_u32_u24 v{4 + j}, s{sB2}, v{4 + j}\nv_mad_u32_u24 v{BK + j}, v{BK + j}, 40, s{sP1}")
    a("s_waitcnt vmcnt(0)")
    for j in range(4):
        if j & 1:
            a(f"v_and_or_b32 v{8 + j}, v{12 + j // 2}, s{sP1 + 1}, v{8 + j}")
        else:
            a(f"v_lshl_or_b32 v{8 + j}, v{12 + j // 2}, 16, v{8 + j}")
    for j in range(4):
        a(f"""
        s_waitcnt lgkmcnt({3 + j})
        v_min_u32 v{RK1 + j}, 31, v{RK1 + j}
        v_add_u32 v42, v{BK + j}, v{RK1 + j}
        v_lshl_add_u32 v43, v{RK1 + j}, 2, v{BK + j}
        ds_write_b8 v42, v{4 + j}
        ds_write_b32 v43, v{8 + j} offset:32
        """)
    a(f"""
    s_mov_b64 exec, -1
    K_PB:
    s_setprio 2
    s_waitcnt lgkmcnt(0)
    s_barrier
    """)
    a(pr("scat"))
    a(f"""
    ds_read_b32 v{CA + 1}, v{CA} offset:{CNTP + 512}
    ds_read_b32 v{CA}, v{CA} offset:{CNTP}
    ds_read_b128 v[4:7], v{LA}
    ds_read_b128 v[8:11], v{LA} offset:{128 * 160}
    s_waitcnt lgkmcnt(2)
    v_max_u32 v24, v{CA}, v{CA + 1}
    v_cmp_lt_u32 vcc, 24, v24
    s_cbranch_vccnz K_POV
    K_PST:
    s_waitcnt lgkmcnt(1)
    global_store_dwordx4 v{GA}, v[4:7], s[{sP3}:{sP3 + 1}] {cfg.get('rs', 'sc1').replace('_', ' ')}
    s_waitcnt lgkmcnt(0)
    global_store_dwordx4 v{GA + 1}, v[8:11], s[{sP3}:{sP3 + 1}] {cfg.get('rs', 'sc1').replace('_', ' ')}
    K_PH:
    s_setprio 0
    v_mov_b32 v{vQo}, 2.0
    v_mov_b32 v{vQo + 1}, 2.0
    """)
    st(2)
    trd = lambda d, ks, va, off=0: "\n".join(f"ds_read_b64_tr_b16 {vr(d + 4 * ks + 2 * i, 2)}, v{va} offset:{off + 8192 * ks + 1024 * i}" for i in range(2))
    hrd = lambda ks: f"ds_read_b128 {vr(HA_ + 4 * ks, 4)}, v{HA_ + 4 * ks}\nds_read_b128 {vr(HB_ + 4 * ks, 4)}, v{HB_ + 4 * ks}"
    sched = [cfg.get(k, d).lstrip("x") for k, d in (("qa", "1111222200000"), ("qb", "4" * 13))]
    qstore = lambda i: f"buffer_store_dwordx4 {vr(QR + 4 * i, 4)}, v{vQo + i}, s[{sW}:{sW + 3}], 0 offen {cfg.get('qs', 'sc1').replace('_', ' ')}"

    def qst(k):
        t = ""
        for i in range(2):
            if str(k) in sched[i]:
                t += f"""
                s_bitcmp0_b32 s{sQS}, {8 * i + k}
                s_cbranch_scc1 K_QS{i}{k}
                {'s_waitcnt lgkmcnt(0)' if k == 1 else ''}
                {qstore(i)}
                v_mov_b32 v{vQo + i}, 2.0
                K_QS{i}{k}:
                """
        return t

    def gemm1(w, acc):
        for ks in range(4):
            a(trd(w, ks, vWa) + "\n" + hrd(ks))
            if ks == 2:
                a(f"s_waitcnt lgkmcnt(9)\n{mf32(acc, w, HA_, True)}\ns_waitcnt lgkmcnt(8)\n{mf32(acc + 4, w, HB_, True)}")
        for ks in range(1, 4):
            a(f"""
            s_waitcnt lgkmcnt({13 - 4 * ks})
            {mf32(acc, w + 4 * ks, HA_ + 4 * ks)}
            s_waitcnt lgkmcnt({12 - 4 * ks})
            {mf32(acc + 4, w + 4 * ks, HB_ + 4 * ks)}
            """)

    gemm1(TF, Y)
    a(f"""
    s_lshl_b32 s{sA}, s2, 6
    s_add_u32 s{sA}, s{sA}, {FP}
    v_mov_b32 v2, s{sA}
    s_nop 2
    """)
    scale_pack(a, Y, 40)
    big_test(a, Y, "K_FP")
    a(f"""
    {pr("Sa")}
    s_waitcnt vmcnt(0)
    v_cmp_eq_u32 vcc, 0, v{vZ + 1}
    s_cbranch_vccnz K_ZW
    K_ZB:
    s_cmp_lg_u32 s{sWV}, 14
    s_waitcnt lgkmcnt(0)
    {pr("S")}
    s_barrier
    s_cbranch_scc1 K_F
    s_mov_b64 exec, 1
    global_store_dword v2, v2, s[{sW}:{sW + 1}] sc1
    s_mov_b64 exec, -1
    K_F:
    """)
    st(4)
    a(tile_write(40, vPa))
    pos_dma(a, "K_PD", "K_JOB", cfg.get("pe"))
    a(qst(2) + pr("PD"))
    a(f"""
    s_mov_b64 s[{sMK}:{sMK + 1}], 0
    s_mov_b64 s[{sMK + 2}:{sMK + 3}], 0
    s_mov_b32 s{sRARE}, 0
    s_mov_b32 s{sQW}, 1 ; @set:qw=1
    s_mov_b32 s{sSRC}, -1
    s_movk_i32 s{sWID}, 1024
    s_lshr_b32 s{sA}, s2, 7
    s_cmp_eq_u32 s{sWV}, 15
    s_cselect_b32 s{sQA}, s{sA}, 0
    s_mov_b32 s{sGH}, 0 ; @set:gh=1
    s_cmp_ge_u32 s{sWV}, 10
    s_cbranch_scc1 K_JB2
    K_G0:
    {qst(3)}
    """)
    rec_addr(a, RA)
    qflag = lambda lab: f"""
    s_cmp_eq_u32 s{sQA}, 0
    s_cbranch_scc1 {lab}
    s_mov_b32 s{sQA}, 0
    s_mov_b64 exec, 1
    global_store_dword v56, v57, s[{sW}:{sW + 1}] sc1
    s_mov_b64 exec, -1
    """
    qg = cfg.get("qg")
    a(f"""
    s_waitcnt {"vmcnt(0) " if qg else ""}lgkmcnt(0)
    {pr("G")}
    s_barrier
    """)
    st(6)
    if qg:
        a(qflag("K_QG") + "K_QG:")
    rec_load(a, RA)
    for i in range(2):
        if "4" in sched[i]:
            a(qstore(i))
            nfin += 1
    a("K_B0:")
    a(f"""
    s_lshl_b32 s{sA}, s{sWV}, 12
    s_add_u32 s{sM0}, s{sA}, {RING}
    s_mov_b32 s{sC000}, 0xc000
    s_movk_i32 s{s128}, 128
    s_movk_i32 s{s192}, 192
    s_movk_i32 s{s256}, 256
    s_movk_i32 s{s256 + 1}, 256
    s_mov_b32 s{sG3}, 0
    s_mov_b32 s{sG3 + 1}, 0xffff0000
    s_add_u32 s{sM0 + 1}, s{sM0}, 1024
    s_add_u32 s{sM0 + 2}, s{sM0}, 2048
    s_add_u32 s{sM0 + 3}, s{sM0}, 3072
    v_and_b32 v34, 15, v0
    v_lshrrev_b32 v35, 4, v0
    v_lshrrev_b32 v36, 3, v34
    v_lshlrev_b32 v36, 1, v36
    v_xor_b32 v36, v36, v35
    v_lshl_add_u32 v36, v36, 4, s{sM0}
    v_lshl_add_u32 v{vRing}, v34, 6, v36
    v_and_b32 v36, 2, v35
    v_and_b32 v37, 3, v0
    v_xor_b32 v36, v36, v37
    v_lshlrev_b32 v{vLc}, 4, v36
    v_cndmask_b32 v{vMul}, 2, 0, {g3}
    v_mov_b32 v{vIS}, 256
    v_cndmask_b32 v{vIX}, 0, v{vIS}, {g3}
    v_mov_b32 v{vIdx}, 0xdd
    s_and_b32 s{sA}, s{sWV}, 7
    s_lshl_b32 s{sA}, s{sA}, 6
    s_add_u32 s{sA}, s{sA}, {FAKE}
    v_and_b32 v36, -4, v0
    v_add_u32 v{vFa}, s{sA}, v36
    v_mov_b32 v19, 1
    s_mov_b32 s{sA}, {FQ + 4096}
    v_lshl_add_u32 v59, v0, 6, s{sA}
    v_mov_b32 v48, {POSL}
    s_mov_b32 s{sC}, 0x40000
    s_mov_b32 s{sD}, 0x0c040100
    s_waitcnt vmcnt({nfin})
    """)
    st(7)
    AJ, RK, QD = 24, 28, 32
    for j in range(4):
        a(f"""
        v_lshlrev_b32_sdwa v{AJ + j}, 2, sext(v{vDL}) {SD} src1_sel:BYTE_{j}
        ds_add_rtn_u32 v{RK + j}, v{AJ + j}, v19 offset:{CNT}
        """)
    a(f"""
    s_and_b32 s{sA}, s{sWV}, 7
    s_lshl_b32 s{sA}, s{sA}, 12
    s_add_u32 s{sA}, s{sA}, {WS_WT}
    """)
    for ks in range(4):
        a(f"buffer_load_dwordx4 {vr(WF + 4 * ks, 4)}, v58, s[{sW}:{sW + 3}], s{sA} offen offset:{1024 * ks}")
    a(f"v_cmp_eq_u32 vcc, -1, v{vDL}")
    for j in range(4):
        q = QD + 4 * j
        a(f"""
        v_and_or_b32 v{q + 2}, v{AJ + j}, s{sC}, v48
        v_perm_b32 v{q}, v{AJ + j}, v{W + j}, s{sD}
        v_mad_u32_u16 v{q + 2}, v{W + j}, 6, v{q + 2}
        v_and_b32 v{q + 1}, 0xffff0000, v{W + j}
        v_and_b32 v{q + 2}, -4, v{q + 2}
        """)
    a(f"""
    s_cbranch_vccnz K_OVF
    K_OVFB:
    v_lshlrev_b32 v49, 2, v0
    s_cmp_ge_u32 s{sWV}, 13
    s_waitcnt lgkmcnt(0)
    s_barrier
    """)
    st(8)
    a(f"s_cbranch_scc1 K_OWN1 ; @if:lo=0\nK_OWN1B:\nds_read_b32 v49, v49 offset:{CNT}")
    for j in range(4):
        q = QD + 4 * j
        a(f"ds_read2_b32 {vr(q + 2, 2)}, v{q + 2} offset1:1")
    a(f"""
    s_waitcnt lgkmcnt(4)
    v_cmp_ne_u32 vcc, 0, v49
    s_mov_b32 s{sA}, {OOB}
    s_and_b32 s{sB2}, vcc_hi, 0xf00000
    s_cbranch_scc1 K_MASK
    K_MASKB:
    v_mov_b32 v{vIncl}, v49
    """)
    scan64(a, vIncl)
    a(f"""
    v_sub_u32 v49, v{vIncl}, v49
    v_readlane_b32 s{sTOT}, v{vIncl}, 63
    v_lshlrev_b32 v49, 4, v49
    v_writelane_b32 v49, s{sA}, 63
    """)
    for j in range(4):
        a(f"ds_bpermute_b32 v{AJ + j}, v{AJ + j}, v49")
    a(f"""
    s_cmp_gt_u32 s{sTOT}, {CAP}
    s_cbranch_scc1 K_SHRINK
    s_cmp_lg_u32 s{sWV}, 14
    s_cbranch_scc1 K_QE ; @if:w14=0
    global_load_dword v53, v59, s[{sW}:{sW + 1}] offset:-4096 sc1
    global_load_dword v54, v59, s[{sW}:{sW + 1}] sc1
    K_QE:
    s_add_u32 s{sA}, s{sTOT}, 15
    s_lshr_b32 s{sA}, s{sA}, 4
    s_lshr_b32 s{sB2}, s{sA}, 4
    s_and_b32 s{sA}, s{sA}, 15
    s_mul_i32 s{sTS}, s{sB2}, s{sWV}
    s_min_u32 s{sC}, s{sWV}, s{sA}
    s_add_u32 s{sTS}, s{sTS}, s{sC}
    s_cmp_lt_u32 s{sWV}, s{sA}
    s_addc_u32 s{sD}, s{sB2}, 0
    s_lshl_b32 s{sTS}, s{sTS}, 4
    s_lshl_b32 s{sD}, s{sD}, 4
    s_add_u32 s{sWT}, s{sTS}, s{sD}
    s_min_u32 s{sWEND}, s{sWT}, s{sTOT}
    """)
    for j in range(4):
        a(f"""
        s_waitcnt lgkmcnt(3)
        v_lshl_add_u32 v{AJ + j}, v{RK + j}, 4, v{AJ + j}
        ds_write_b128 v{AJ + j}, {vr(QD + 4 * j, 4)} offset:{LIST}
        """)
    a(f"""
    v_cmp_ge_u32 vcc, s{sTS}, v{vIncl}
    v_cmp_gt_u32 s[{sP2}:{sP2 + 1}], s{sWEND}, v{vIncl}
    v_add_u32 v24, 64, v0
    v_cmp_gt_u32 s[{sP3}:{sP3 + 1}], s{sD}, v0
    v_cmp_gt_u32 s[{sP4}:{sP4 + 1}], s{sD}, v24
    s_bcnt1_i32_b64 s{sN0}, vcc
    s_bcnt1_i32_b64 s{sNL}, s[{sP2}:{sP2 + 1}]
    s_mov_b32 s{sNW}, s{sN0}
    """)
    ptrs(a)
    a(f"""
    v_mov_b32 v24, {OOB}
    v_lshl_add_u32 v{vG0}, v0, 4, s{sA}
    v_add_u32 v{vG1}, 1024, v{vG0}
    v_cndmask_b32 v{vG0}, v24, v{vG0}, s[{sP3}:{sP3 + 1}]
    v_cndmask_b32 v{vG1}, v24, v{vG1}, s[{sP4}:{sP4 + 1}]
    s_cmp_eq_u32 s{sD}, 0
    s_cselect_b32 s{sNF}, {OOB >> 5}, s{sN0}
    s_cmp_eq_u32 s{sWV}, 0
    s_cselect_b32 s{sA}, 48, s{sNF}
    s_cselect_b32 s{sNF}, 64, s{sNF}
    s_lshl_b32 s{sA}, s{sA}, 4
    s_add_u32 s{sA}, s{sA}, s{sWV}
    s_lshl_b32 s{sA}, s{sA}, 1
    v_mov_b32 v25, s{sA}
    v_mov_b32 v26, 0x3f80
    s_mov_b64 exec, 1
    ds_write_b16 v25, v26 offset:{SEL}
    s_mov_b64 exec, -1
    s_cmp_ge_u32 s{sWV}, 13
    s_cbranch_scc1 K_PAD ; @if:lo=0
    K_PADB:
    {pr("B2a")}
    s_waitcnt vmcnt(0) lgkmcnt(0)
    {pr("B2")}
    s_barrier
    """)
    st(9)
    if nfin:
        a(qflag("K_QN") + "K_QN:")
    a(f"v_mov_b32 v{S}, 0\nds_read_b32 v17, v{S} offset:{RDY}")
    list_reads(a)
    a(f"""
    {dma(0)[0]}
    s_waitcnt lgkmcnt(3)
    v_readfirstlane_b32 s{sA}, v17
    v_mad_u32_u16 v{vVoff}, v{vSa}, s{s256}, v{vLc}
    s_cmp_lt_u32 s{sA}, s{sQW}
    s_cbranch_scc1 K_ND
    s_mov_b32 s{sQW}, 2 ; @set:qw=2
    {dma(0)[1]}
    """)
    for kc in range(1, 4):
        a(f"{dma(kc)[0]}\ns_nop 0\n{dma(kc)[1]}")
    st(5)
    a(f"""
    K_ND:
    s_cmp_lg_u32 s{sGH}, 0
    s_cbranch_scc1 K_GH3 ; @if:gh=0
    s_mov_b32 s{sGH}, 1 ; @set:gh=0
    s_cmp_ge_u32 s{sWV}, 8
    s_cbranch_scc1 K_GH1
    """)
    for ks in range(4):
        a(mf32(YA, WF + 4 * ks, HA_ + 4 * ks, ks == 0))
        a(mf32(YB, WF + 4 * ks, HB_ + 4 * ks, ks == 0))
    a("s_branch K_GH2\nK_GH1:")
    for ks in range(4):
        a(mf32(YA, WF + 4 * ks, HA_ + 4 * ks, ks == 0))
        a(mf32(YB, HB_ + 4 * ks, WF + 4 * ks, ks == 0))
    a(f"K_GH2:\ns_mov_b32 s{sP0}, {f32(-LOG2E / (1 + DELTA))}\ns_nop 6")
    for k in range(4):
        a(f"v_pk_mul_f32 {vr(Y + 2 * k, 2)}, {vr(Y + 2 * k, 2)}, s[{sP0}:{sP0 + 1}] op_sel_hi:[1,0]")
    a("K_GH3:")
    G, O, TH = 20, 28, 40
    a(f"""
    ds_read_b64 {vr(TH, 2)}, v{S} offset:{MISC + 8}
    ds_read_b128 {vr(G, 4)}, v{vG0}
    ds_read_b128 {vr(G + 4, 4)}, v{vG1}
    v_mov_b32 v{S + 1}, 0
    v_bfe_u32 v17, v0, 2, 2
    v_lshrrev_b32 v18, 4, v0
    v_cmp_eq_u32 vcc, v17, v18
    v_mov_b32 v18, 0x3f80
    v_mov_b32 v19, 0
    v_cndmask_b32 v18, 0, v18, vcc
    v_lshlrev_b32 v17, 4, v0
    v_lshlrev_b64 v[{B + 2}:{B + 3}], v17, v[18:19]
    """)
    for p in range(2):
        a(f"""
        s_waitcnt lgkmcnt(1)
        v_lshlrev_b32_sdwa v{O + 4 * p}, 2, v{G + 4 * p} {SD} src1_sel:WORD_1
        ds_read_b128 {vr(O + 4 * p, 4)}, v{O + 4 * p} offset:{OWN}
        """)
    for u in range(8):
        a(zero4(AC + 4 * u))
        if u < 3:
            a(f"v_mov_b64 {vr(B + 6 * u + 8, 2)}, {vr(B + 2, 2)}")
    for p in range(2):
        g, o = G + 4 * p, O + 4 * p
        a(f"""
        v_lshlrev_b32 v38, 4, v{g}
        v_alignbit_b32 v37, v{g + 3}, v{g + 2}, v38
        v_lshrrev_b32_sdwa v{g + 3}, v38, v{g + 3} dst_sel:WORD_1 dst_unused:UNUSED_PAD src0_sel:DWORD src1_sel:DWORD
        v_lshlrev_b32 v36, 16, v37
        v_and_b32 v37, 0xffff0000, v37
        s_waitcnt lgkmcnt(1)
        v_pk_add_f32 {vr(o, 2)}, {vr(o, 2)}, v[36:37] neg_lo:[0,1] neg_hi:[0,1]
        v_sub_f32 v{o + 2}, v{o + 2}, v{g + 3}
        v_mul_f32 v{o + 3}, v{o}, v{o}
        v_fmac_f32 v{o + 3}, v{o + 1}, v{o + 1}
        v_fmac_f32 v{o + 3}, v{o + 2}, v{o + 2}
        v_cvt_pk_bf16_f32 v{g + 2}, 1.0, v{o}
        v_mul_f32 v{o + 3}, {f32(-LOG2E)}, v{o + 3}
        v_cvt_pk_bf16_f32 v{g + 3}, v{o + 1}, v{o + 2}
        v_cmp_nlt_f32 vcc, abs(v{g + 1}), v{TH + 1}
        v_cmp_nlt_f32 s[{sP0}:{sP0 + 1}], abs(v{o + 3}), v{TH}
        v_cvt_pk_bf16_f32 v{g + 1}, v{o + 3}, v{g + 1}
        ds_write_b128 v{vG0 + p}, {vr(g, 4)} ; nobar
        s_or_b64 vcc, vcc, s[{sP0}:{sP0 + 1}]
        s_and_b64 s[{sP3 + 2 * p}:{sP3 + 2 * p + 1}], s[{sP3 + 2 * p}:{sP3 + 2 * p + 1}], vcc
        """)
    a(f"""
    s_or_b64 s[{sP3}:{sP3 + 1}], s[{sP3}:{sP3 + 1}], s[{sP4}:{sP4 + 1}]
    s_cselect_b32 s{sMODE}, 1, 0
    """)
    a(f"""
    K_XFR:
    s_cmp_ge_u32 s{sTS}, s{sWT}
    v_mad_u32_u16 v{vVoff}, v{vSa}, s{s256}, v{vLc}
    s_cbranch_scc1 K_QW ; @if:nt=1
    v_lshrrev_b32 v17, 2, v0
    v_and_b32 v18, 3, v0
    v_add_u32 v19, s{sN0}, v17
    v_mul_u32_u24 v19, 288, v19
    v_add_u32 v19, {PT}, v19
    v_lshlrev_b32 v17, 8, v17
    v_add_u32 v17, {WD - 14 * 256}, v17
    v_cndmask_b32 v19, v19, v17, {g3}
    s_mov_b32 vcc_lo, 0
    s_mov_b32 vcc_hi, 0x00ff0000
    v_mov_b32 v17, {OOB}
    v_lshl_add_u32 v19, v18, 3, v19
    v_cndmask_b32 v19, v19, v17, vcc
    """)
    for u in range(8):
        a(f"ds_read_b64_tr_b16 {vr(B + 6 * (u // 2) + 4 * (u & 1), 2)}, v19 offset:{32 * u}")
    a(f"""
    s_lshl_b32 s{sA}, s{sN0}, 3
    s_sub_u32 s{sA}, {OH + 512}, s{sA}
    v_and_b32 v19, 48, v0
    v_lshlrev_b32 v19, 1, v19
    v_sub_u32 v19, s{sA}, v19
    v_cndmask_b32 v{vBX}, v19, v{vEa}, {g3}
    v_mad_u32_u16 v{vXa}, v{vXa}, v{vMul}, v{vBX} op_sel:[1,0,0,0]
    ds_read_b64 {vr(A, 2)}, v{vXa}
    ds_read_b64 {vr(A + 6, 2)}, v{vXa}
    ds_read_b64 {vr(A + 12, 2)}, v{vXa}
    v_subrev_u32 v18, s{sNW}, v18
    v_and_b32 v18, 3, v18
    v_add_u32 v18, s{sNW}, v18
    v_mul_u32_u24 v18, {OOB}, v18
    v_sub_u32 v18, v{vDa}, v18
    v_add_u32 v{vBS}, 8, v18
    v_mad_u32_u16 v{vSa}, v{vSa}, s{sC000}, v{vBS} op_sel:[1,0,0,0]
    {zero4(ZE + 4)}
    {zero4(L)}
    v_lshl_add_u64 v[{vBX}:{vBS}], v[{vBX}:{vBS}], 0, v[{vIX}:{vIS}]
    v_add_u32 v{vDa}, 512, v{vDa}
    v_add_u32 v{vEa}, 256, v{vEa}
    """)
    window(a)
    a(f"""
    K_QW:
    {dma(0)[0]}
    """)
    st(10)
    a(f"""
    s_cmp_eq_u32 s{sQW}, 2
    s_cbranch_scc1 K_DM2 ; @is:qw=2
    s_cmp_eq_u32 s{sQW}, 0
    s_cbranch_scc1 K_DMA ; @is:qw=0
    """)
    a(f"""
    s_cmp_eq_u32 s{sWV}, 14
    s_cbranch_scc1 K_QP ; @if:w14=1
    K_QB:
    s_barrier
    """)
    st(5)
    a(f"K_DMA:\n{dma(0)[1]}")
    for kc in range(1, 4):
        a(f"{dma(kc)[0]}\ns_nop 0\n{dma(kc)[1]}")
    a("K_DM2:")
    st(11)
    a(f"""
    s_mov_b32 s{sQW}, 0 ; @set:qw=0
    s_cmp_ge_u32 s{sTS}, s{sWT}
    s_cbranch_scc1 K_NT0 ; @if:nt=1
    ds_read_b32 v17, v{S} offset:{MISC + 4}
    v_mad_u32_u16 v{vVoff}, v{vD}, s{s256}, v{vLc}
    {dma(0)[0]}
    s_waitcnt vmcnt(3)
    {rdq(0)}
    s_waitcnt vmcnt(2)
    {rdq(1)}
    s_waitcnt lgkmcnt(1)
    {Kmf(0, ZE)}
    {dma(0)[1]}
    v_readfirstlane_b32 s{sA}, v17
    s_or_b32 s{sMODE}, s{sMODE}, s{sA} ; @set:mode=x
    """)
    st(12)
    a(f"""
    s_waitcnt lgkmcnt(0)
    K_EV2:
    s_add_u32 s{sA}, s{sTS}, 32
    s_cmp_lt_u32 s{sA}, s{sWT}
    s_cbranch_scc1 K_GO
    v_mov_b32 v{vDa}, v{vFa}
    K_GO:
    s_cmp_lg_u32 s{sMODE}, 0
    s_cbranch_scc1 K_LOOPF ; @if:mode=1
    K_LOOP:
    {loop_body(cfg.get('pat', PAT), cfg.get('dord', DORD), True)}
    s_cbranch_scc1 K_LOOP
    K_EV:
    s_add_u32 s{sA}, s{sTS}, 16
    s_cmp_lt_u32 s{sEW}, s{sA}
    s_cbranch_scc1 K_WIN
    s_cmp_lt_u32 s{sTS}, s{sWT}
    s_cbranch_scc1 K_EV2
    """)
    st(13)
    WB = [A + 2, A + 8, B + 16, B + 20]
    HA, HB, HR = 60, 64, 68

    def exit_loads(tag):
        a(f"""
        s_lshr_b32 s{sD}, s{sWV}, 3
        s_and_b32 s{sC}, s{sWV}, 7
        s_lshl_b32 s{sC}, s{sC}, 5
        s_lshl_b32 s{sA}, s{sD}, 12
        s_add_u32 s{sA}, s{sA}, s{sC}
        v_and_b32 v5, 15, v0
        v_and_b32 v6, 48, v0
        v_lshrrev_b32 v8, 1, v6
        v_lshl_add_u32 v17, v5, 8, v8
        v_lshl_add_u32 v10, v5, 1, s{sC}
        s_add_u32 s{sA}, s{sA}, 4096
        s_movk_i32 s{sB2}, {48 * 256}
        s_cmp_lg_u32 s{sD}, 0
        buffer_load_dwordx2 {vr(HR, 2)}, v17, s[{sH}:{sH + 3}], s{sA} offen
        s_cbranch_scc1 {tag}1
        buffer_load_dwordx2 {vr(HR + 2, 2)}, v17, s[{sH}:{sH + 3}], s{sC} offen
        s_branch {tag}2
        {tag}1:
        buffer_load_ushort v{HR + 2}, v10, s[{sH}:{sH + 3}], s{sB2} offen
        {tag}2:
        """)

    exit_loads("K_XA")
    F = L
    a(f"""
    s_mov_b32 s{sLAST}, 1 ; @set:last=1
    s_movk_i32 s{sNWN}, 64
    K_FLUSH:
    v_and_b32 v17, 15, v0
    v_lshlrev_b32 v18, 5, v17
    ds_read_b128 {vr(T, 4)}, v18 offset:{WX}
    s_waitcnt lgkmcnt(1)
    {Ymf(6, ZE + 4)}
    {Ymf(7, L)}
    ds_read_b128 {vr(ZL, 4)}, v18 offset:{WX + 16}
    v_lshrrev_b32 v18, 4, v0
    v_subrev_u32 v18, s{sNW}, v18
    v_and_b32 v18, 3, v18
    v_add_u32 v18, s{sNW}, v18
    s_add_u32 s{sA}, s{sNL}, 1
    s_min_u32 s{sA}, s{sA}, s{sNWN}
    s_add_u32 s{sB2}, s{sWV}, 48
    v_cmp_eq_u32 vcc, s{sNF}, v18
    v_cmp_gt_u32 s[{sP0}:{sP0 + 1}], s{sA}, v18
    v_cmp_gt_u32 s[{sP1}:{sP1 + 1}], s{sNWN}, v18
    v_mov_b32 v19, s{sB2}
    v_cndmask_b32 v19, v18, v19, vcc
    v_mul_u32_u24 v19, {MST}, v19
    v_lshl_add_u32 v19, v17, 4, v19
    v_lshl_add_u32 v18, v18, 4, v17
    """)
    for k in range(4):
        a(f"v_cvt_pk_bf16_f32 v{ZE + 4 + k}, v{AC + 8 * k}, v{AC + 8 * k + 4}")
    a(f"""
    s_mov_b64 exec, s[{sP0}:{sP0 + 1}]
    ds_write_b128 v19, {vr(ZE + 4, 4)} offset:{MR}
    s_mov_b64 exec, -1
    s_waitcnt lgkmcnt(1)
    """)
    for u in range(8):
        w = (T if u < 4 else ZL) + (u & 3)
        wp, hi = w & ~1, w & 1
        if u == 0:
            a(f"v_pk_mul_f32 {vr(F + 2, 2)}, {vr(AC + 2, 2)}, {vr(wp, 2)} op_sel_hi:[1,0]")
            a(f"v_mul_f32 v{F + 1}, v{AC + 1}, v{w}")
        else:
            a(f"v_pk_fma_f32 {vr(F + 2, 2)}, {vr(AC + 4 * u + 2, 2)}, {vr(wp, 2)}, {vr(F + 2, 2)} op_sel:[0,{hi},0] op_sel_hi:[1,{hi},1]")
            a(f"v_fmac_f32 v{F + 1}, v{AC + 4 * u + 1}, v{w}")
    a(f"""
    s_and_b32 s{sP0}, s{sP0}, 0x01110111
    v_add_f32_dpp v{F + 2}, v{F + 2}, v{F + 2} row_ror:8 row_mask:0xf bank_mask:0xf
    v_add_f32_dpp v{F + 1}, v{F + 1}, v{F + 1} row_ror:8 row_mask:0xf bank_mask:0x3
    s_and_b32 s{sP0 + 1}, s{sP0 + 1}, 0x01110111
    v_add_f32_dpp v{F + 2}, v{F + 2}, v{F + 2} row_shr:4 row_mask:0xf bank_mask:0x2
    v_add_f32_dpp v{F + 1}, v{F + 3}, v{F + 3} row_ror:8 row_mask:0xf bank_mask:0xc
    s_nop 1
    v_add_f32_dpp v{F + 2}, v{F + 1}, v{F + 1} row_shl:4 row_mask:0xf bank_mask:0x5
    s_nop 1
    v_add_f32_dpp v{F + 2}, v{F + 2}, v{F + 2} quad_perm:[1,0,3,2] row_mask:0xf bank_mask:0xf
    s_nop 1
    v_add_f32_dpp v{F + 2}, v{F + 2}, v{F + 2} quad_perm:[2,3,0,1] row_mask:0xf bank_mask:0xf
    s_mov_b64 exec, s[{sP0}:{sP0 + 1}]
    ds_add_f32 v18, v{F + 2} offset:{PAC}
    s_mov_b64 exec, -1
    s_cmp_eq_u32 s{sLAST}, 0
    s_cbranch_scc1 K_SLIDE ; @if:last=0
    s_waitcnt vmcnt(3)
    K_POST:
    {rdq(2, WB[2])}
    {rdq(3, WB[3])}
    """)
    vMa, vM3, vSe, vOa = 1, 2, 3, 4
    Z, ZB, SA, SB, MB = 36, 40, 74, 56, 20
    a(f"""
    s_mul_i32 s{sA}, s{sD}, {16 * MST}
    v_mul_u32_u24 v{vM3}, {MST}, v5
    v_add_u32 v{vM3}, v{vM3}, v6
    v_add_u32 v{vMa}, s{sA}, v{vM3}
    s_lshl_b32 s{sA}, s{sD}, 9
    v_lshl_add_u32 v11, v5, 5, v8
    v_add_u32 v{vSe}, s{sA}, v11
    s_mul_i32 s{sA}, s{sD}, 1536
    v_add_u32 v11, s{sA}, v11
    s_mul_i32 s{sA}, s{sD}, {16 * OST}
    s_add_u32 s{sA}, s{sA}, s{sC}
    s_add_u32 s{sA}, s{sA}, {OT}
    v_mul_u32_u24 v{vOa}, {OST}, v5
    v_add3_u32 v{vOa}, v{vOa}, v8, s{sA}
    v_add_u32 v10, {OT + 48 * OST}, v10
    s_mov_b32 s{sP0}, {f32(1 + DELTA)}
    s_mov_b32 s{sP0 + 1}, {f32(-LN2)}
    s_cmp_lg_u32 s{sD}, 0
    s_waitcnt vmcnt(2) lgkmcnt(0)
    s_barrier
    """)
    st(14)
    for ks in range(4):
        a(f"ds_read_b128 {vr(AC + 4 * ks, 4)}, v{vM3} offset:{MR + 48 * MST + 64 * ks}")
    for ks in range(4):
        a(f"ds_read_b128 {vr(AC + 16 + 4 * ks, 4)}, v{vMa} offset:{MR + 16 * MST + 64 * ks}")
    a(f"""
    ds_read_b64 {vr(SA, 2)}, v{vSe} offset:{SEL + 512}
    ds_read_b64 {vr(SB, 2)}, v11 offset:{SEL}
    s_cbranch_scc1 K_E1
    """)
    mf16 = lambda d, x, y: f"v_mfma_f32_16x16x16_bf16 {vr(d, 4)}, {vr(x, 2)}, {vr(y, 2)}, {vr(d, 4)}"

    unpack = lambda n: "\n".join(f"v_lshlrev_b32 v{HA + 2 * k}, 16, v{HR + k}\nv_and_b32 v{HA + 2 * k + 1}, 0xffff0000, v{HR + k}" for k in range(n))

    def gemm_a(extra):
        for ks in range(4):
            a(f"s_waitcnt lgkmcnt({9 + extra - ks})\n" + mf32(Z, AC + 4 * ks, WB[ks], ks == 0))
        for ks in range(4):
            a(f"s_waitcnt lgkmcnt({5 + extra - ks})\n" + mf32(YA, WB[ks], AC + 16 + 4 * ks))
        a(f"v_cvt_pk_bf16_f32 v{ZB}, v{Z}, v{Z + 1}\nv_cvt_pk_bf16_f32 v{ZB + 1}, v{Z + 2}, v{Z + 3}")

    for ks in range(4):
        a(f"ds_read_b128 {vr(MB + 4 * ks, 4)}, v{vM3} offset:{MR + 64 * ks}")
    gemm_a(4)
    for ks in range(4):
        a(f"s_waitcnt lgkmcnt({3 - ks})\n" + mf32(YB, WB[ks], MB + 4 * ks))
        if ks == 2:
            a(mf16(YA, ZB, SA))
    a(f"""
    s_cmp_lg_u32 s{sRARE}, 0
    s_waitcnt vmcnt(0)
    {unpack(4)}
    {mf16(YB, ZB, SB)}
    s_cbranch_scc1 K_NEXT
    K_S0:
    """)
    silu4(a, YA, HA, 20)
    a(f"ds_write_b64 v{vOa}, {vr(YA, 2)} offset:{16 * OST}")
    silu4(a, YB, HB, 20)
    a(f"""
    ds_write_b64 v{vOa}, {vr(YB, 2)}
    K_OUT:
    s_lshl_b32 s{sC}, s{sNB}, 8
    s_add_u32 s{sO}, s20, s{sC}
    s_addc_u32 s{sO + 1}, s21, 0
    s_lshl_b32 s{sO + 2}, s{sNV}, 8
    s_mov_b32 s{sO + 3}, 0x20000
    s_lshl_b32 s{sA}, s{sWV}, 10
    v_lshl_add_u32 v7, v0, 4, s{sA}
    s_lshl_b32 s{sA}, s{sWV}, 6
    s_add_u32 s{sA}, s{sA}, {OT}
    v_add3_u32 v8, v7, v6, s{sA}
    s_cmp_ge_u32 s{sWV}, 13
    s_waitcnt lgkmcnt(0)
    s_barrier
    s_cbranch_scc1 K_FIN
    """)
    a(f"""
    ds_read_b128 v[20:23], v8
    s_waitcnt lgkmcnt(0)
    buffer_store_dwordx4 v[20:23], v7, s[{sO}:{sO + 3}], 0 offen sc1
    K_FIN:
    """)
    stamp_out(a, cfg, sW)
    a("K_END:\ns_endpgm")

    a("K_E1:")
    gemm_a(0)
    a(f"""
    s_waitcnt lgkmcnt(0)
    s_cmp_lg_u32 s{sRARE}, 0
    {mf16(YB, SB, ZB)}
    s_waitcnt vmcnt(0)
    {unpack(2)}
    {mf16(YA, ZB, SA)}
    v_lshlrev_b32 v{HB}, 16, v{HR + 2}
    s_cbranch_scc1 K_NEXT
    K_S1:
    s_sub_u32 s{sA}, s{sWV}, 13
    s_lshl_b32 s{sA}, s{sA}, 6
    v_add_u32 v11, s{sA}, v0
    v_mul_u32_u24 v12, 171, v11
    v_lshrrev_b32 v12, 9, v12
    v_add_lshl_u32 v13, v11, v12, 2
    ds_read_b32 v14, v13 offset:{PAC}
    ds_read_b32 v15, v13 offset:{OWN}
    """)
    silu4(a, YA, HA, 20)
    a(f"""
    ds_write_b64 v{vOa}, {vr(YA, 2)} offset:{16 * OST}
    v_mul_f32 v{YB}, s{sP0}, v{YB}
    v_exp_f32 v20, v{YB}
    v_mul_f32 v{YB}, s{sP0 + 1}, v{YB}
    v_add_f32 v20, 1.0, v20
    v_rcp_f32 v20, v20
    v_cmp_gt_u32 vcc, s{sNV}, v12
    v_fmac_f32 v{HB}, v20, v{YB}
    v_cvt_pk_bf16_f32 v{HB}, v{HB}, v{HB}
    s_mov_b64 exec, 0xffff
    ds_write_b16 v10, v{HB}
    s_mov_b64 exec, -1
    s_cmp_lt_u32 s{sWV}, 13
    s_cbranch_scc1 K_OUT
    s_mul_i32 s{sA}, s{sNB}, 6
    s_add_u32 s{sA}, s{sA}, {N * 256}
    v_lshl_add_u32 v11, v11, 1, s{sA}
    s_waitcnt lgkmcnt(2)
    v_add_f32 v14, v14, v15
    v_cvt_pk_bf16_f32 v14, v14, v14
    s_mov_b64 exec, vcc
    global_store_short v11, v14, s[20:21] sc1
    s_mov_b64 exec, -1
    s_branch K_OUT
    """)
    a(f"""
    K_NP:
    s_cmp_lt_u32 s2, 128
    s_cbranch_scc1 K_AUX ; @if:q=0
    s_mov_b32 s{sP1}, {sum(int(c) << (4 * w) for w, c in enumerate(sched[0][:8]))}
    s_mov_b32 s{sP1 + 1}, {sum(int(c) << (4 * w) for w, c in enumerate(sched[0][8:] + "444"))}
    s_mov_b32 s{sP2}, {sum(int(c) << (4 * w) for w, c in enumerate(sched[1][:8]))}
    s_mov_b32 s{sP2 + 1}, {sum(int(c) << (4 * w) for w, c in enumerate(sched[1][8:] + "444"))}
    s_lshl_b32 s{sA}, s{sWV}, 2
    s_lshr_b64 s[{sP1}:{sP1 + 1}], s[{sP1}:{sP1 + 1}], s{sA}
    s_lshr_b64 s[{sP2}:{sP2 + 1}], s[{sP2}:{sP2 + 1}], s{sA}
    s_and_b32 s{sP1}, s{sP1}, 7
    s_and_b32 s{sP2}, s{sP2}, 7
    s_add_u32 s{sP2}, s{sP2}, 8
    s_bitset1_b32 s{sQS}, s{sP1}
    s_bitset1_b32 s{sQS}, s{sP2}
    s_lshl_b32 s{sA}, s{sNB}, 8
    v_cmp_gt_u32 vcc, {NB * 16}, v{vT}
    v_add_u32 v5, s{sA}, v19
    v_subrev_u32 v4, {16 * NB * 256}, v5
    v_and_b32 v17, 0x3f0, v{vT}
    v_add_u32 v17, v17, v19
    v_cndmask_b32 v{vQo}, 2.0, v4, vcc
    v_cndmask_b32 v{vQo + 1}, 2.0, v5, vcc
    s_waitcnt vmcnt(0) lgkmcnt(0)
    s_barrier
    """)
    st(2)
    a(wdma(14, WS2))
    gemm1(WF, GC)
    for ks in range(4):
        a(f"v_xor_b32 v{HA_ + 4 * ks}, {64 * ks}, v{vHa}\nv_xor_b32 v{HB_ + 4 * ks}, {64 * ks}, v{vHa + 1}")
    scale_pack(a, GC, 24)
    a(tile_write(24, vQa, QTA))
    big_test(a, GC, "K_FQ")
    if cfg.get("pe"):
        a(f"""
        s_mov_b64 s[{sT}:{sT + 1}], s[6:7]
        s_lshl_b32 s{sB2}, s{sWV}, 10
        s_sub_u32 m0, m0, {WS2 - POSL}
        """)
    a(f"""
    s_bitcmp1_b32 s{sQS}, 0
    s_cselect_b64 vcc, -1, 0
    s_cmp_lg_u32 s{sWV}, 14
    v_cndmask_b32 v2, 2.0, v{vQo}, vcc
    v_cndmask_b32 v{vQo}, v{vQo}, 2.0, vcc
    s_waitcnt vmcnt(0) lgkmcnt(0)
    s_barrier
    """)
    st(3)
    pe = f"""
    buffer_load_dwordx4 v19, s[{sT}:{sT + 3}], s{sB2} offen lds
    buffer_load_dwordx4 v19, s[{sT}:{sT + 3}], s{sB2} offen offset:1024 lds
    """
    a(f"""
    {pe if cfg.get("pe") == 1 else ""}
    ds_read_b128 {vr(QR, 4)}, v17 offset:{QTA}
    {hrd(0)}
    {hrd(1)}
    s_cbranch_scc1 K_NZ
    global_load_dword v{vZ + 1}, v{vZ}, s[22:23] sc1
    K_NZ:
    {hrd(2)}
    {hrd(3)}
    s_waitcnt lgkmcnt(7)
    {qstore(0).replace(f"v{vQo},", "v2,")}
    {pe if cfg.get("pe") == 2 else ""}
    """)
    for ks in range(4):
        a(trd(TF, ks, vWa, WS2 - WS1))
    for ks in range(4):
        a(f"""
        s_waitcnt lgkmcnt({15 - 2 * ks})
        {mf32(GC, WF + 4 * ks, HA_ + 4 * ks, ks == 0)}
        s_waitcnt lgkmcnt({14 - 2 * ks})
        {mf32(GC + 4, WF + 4 * ks, HB_ + 4 * ks, ks == 0)}
        """)
    for ks in range(4):
        a(f"""
        s_waitcnt lgkmcnt({6 - 2 * ks})
        {mf32(Y, TF + 4 * ks, HA_ + 4 * ks, ks == 0)}
        {mf32(Y + 4, TF + 4 * ks, HB_ + 4 * ks, ks == 0)}
        """)
    scale_pack(a, GC, 4)
    a(tile_write(4, vQa, QTB))
    big_test(a, GC, "K_FR")
    scale_pack(a, Y, 40)
    big_test(a, Y, "K_FS")
    a(f"""
    s_waitcnt vmcnt({3 if cfg.get("pe") == 2 else 1})
    v_cmp_eq_u32 vcc, 0, v{vZ + 1}
    s_cbranch_vccnz K_ZW
    K_X3:
    s_waitcnt lgkmcnt(0)
    {pr("S")}
    s_barrier
    ds_read_b128 {vr(QR + 4, 4)}, v17 offset:{QTB}
    {qst(1)}
    s_branch K_F
    K_ZW:
    """)
    poll(a, "K_ZP", f"global_load_dword v{vZ + 1}, v{vZ}, s[22:23] sc1", "", vZ + 1)
    a(f"""
    s_cmp_ge_u32 s2, 128
    s_cbranch_scc1 K_X3 ; @if:q=1
    s_branch K_ZB
    K_AUX:
    s_waitcnt vmcnt(0) lgkmcnt(0)
    s_barrier
    s_branch K_PH
    K_WJ:
    s_cmp_ge_u32 s2, 64
    s_cbranch_scc1 K_CH ; @if:wj=0
    s_and_b32 s{sC}, s2, 28
    s_and_b32 s{sA}, s2, 3
    s_lshl_b32 s{sC}, s{sC}, 3
    v_lshl_add_u32 v24, v15, 1, s{sC}
    s_cmp_ge_u32 s2, 32
    s_cbranch_scc1 K_WJ1
    s_lshl_b32 s{sC}, s{sA}, 10
    s_add_u32 s{sC}, s{sC}, {32768 + 4096}
    v_lshl_add_u32 v24, v14, 8, v24
    v_add_u32 v24, s{sC}, v24
    """)
    for j in range(8):
        a(f"global_load_ushort v{WF + j}, v24, s[18:19] offset:{0 if j & 1 else -4096}")
        if j & 1 and j < 7:
            a("v_add_u32 v24, 0x2000, v24")
    a(f"""
    s_branch K_CH
    K_WJ1:
    s_lshl_b32 s{sC}, s{sA}, 13
    v_lshl_add_u32 v24, v14, 11, v24
    v_add_u32 v24, s{sC}, v24
    """)
    for j in range(8):
        a(f"global_load_ushort v{WF + j}, v24, s[18:19] offset:{256 * j}")
    a(f"""
    s_branch K_CH
    K_ZF:
    s_mov_b32 s{sA}, {WS_SYNC + 4096}
    v_lshl_add_u32 v2, v0, 6, s{sA}
    v_add_u32 v3, 0x2000, v2
    v_mov_b32 v4, 0
    v_mov_b32 v5, 1
    s_waitcnt lgkmcnt(0)
    global_store_dword v2, v4, s[{sW}:{sW + 1}] offset:-4096 sc1
    global_store_dword v2, v4, s[{sW}:{sW + 1}] sc1
    global_store_dword v3, v4, s[{sW}:{sW + 1}] offset:-4096 sc1
    global_store_dword v3, v4, s[{sW}:{sW + 1}] sc1
    s_waitcnt vmcnt(0)
    s_mov_b64 exec, 1
    global_store_dword v4, v5, s[22:23] sc1
    s_mov_b64 exec, -1
    s_branch K_LD
    K_PLD:
    s_lshl_b32 s{sA}, s{sWV}, 8
    s_or_b32 s{sA}, s{sA}, s2
    s_cmp_lt_u32 s{sA}, {13 * 256 + 64}
    s_cbranch_scc1 K_PL2 ; @if:wj=1
    s_cmp_eq_u32 s{sWV}, 14
    s_waitcnt vmcnt(0)
    s_cbranch_scc0 K_PB ; @if:w14=0
    global_load_dword v{vZ + 1}, v{vZ}, s[22:23] sc1
    s_branch K_PB
    K_PL2:
    s_and_b32 s{sA}, s2, 3
    s_mul_i32 s{sA}, s{sA}, {64 - 1024}
    v_lshl_add_u32 v12, v15, 8, s{sA}
    v_lshl_add_u32 v12, v14, 4, v12
    v_lshlrev_b32 v13, 4, v0
    s_cmp_ge_u32 s2, 32
    s_cselect_b64 vcc, -1, 0
    s_lshl_b32 s{sA}, s2, 10
    s_add_u32 s{sA}, s{sA}, {QROWS * 256}
    v_cndmask_b32 v12, v12, v13, vcc
    v_add_u32 v12, s{sA}, v12
    s_waitcnt vmcnt(0)
    """)
    for k in range(4):
        a(f"v_lshl_or_b32 v{WF + k}, v{WF + 2 * k + 1}, 16, v{WF + 2 * k}")
    a(f"""
    global_store_dwordx4 v12, {vr(WF, 4)}, s[{sW}:{sW + 1}] sc1
    s_branch K_PB
    K_POV:
    ds_read_b128 v[20:23], v{LA} offset:128
    ds_read_b128 v[24:27], v{LA} offset:{128 * 160 + 128}
    s_mul_i32 s{sB2}, s2, -96
    s_add_u32 s{sB2}, s{sB2}, 16000
    s_mov_b32 s{sP1}, 0x03030303
    s_mov_b32 s{sP1 + 1}, 0x03030303
    v_add_u32 v28, s{sB2}, v{GA}
    v_add_u32 v29, s{sB2}, v{GA + 1}
    s_waitcnt lgkmcnt(0)
    """)
    for i in range(2):
        a(f"""
        v_cmp_lt_u32 vcc, 24, v{CA + i}
        s_and_b64 exec, vcc, s[{sP1}:{sP1 + 1}]
        s_cbranch_execz K_OV{i}
        global_store_dwordx4 v{28 + i}, {vr(20 + 4 * i, 4)}, s[{sP3}:{sP3 + 1}] sc1
        v_cmpx_lt_u32 vcc, 32, v{CA + i}
        """)
        for k in range(4):
            a(f"v_mov_b32 v{4 + 4 * i + k}, -1")
        a(f"K_OV{i}:\ns_mov_b64 exec, -1")
    a(f"""
    s_branch K_PST
    K_FQ:
    v_mov_b32 v36, {MISC}
    v_mov_b32 v37, 0x10000
    ds_write_b32 v36, v37
    s_branch K_FQB
    K_FR:
    v_mov_b32 v36, {MISC}
    v_mov_b32 v37, 0x10000
    ds_write_b32 v36, v37
    s_branch K_FRB
    K_FP:
    v_mov_b32 v36, {MISC + 4}
    ds_write_b32 v36, v36
    s_branch K_FPB
    K_FS:
    v_mov_b32 v36, {MISC + 4}
    ds_write_b32 v36, v36
    s_branch K_FSB
    K_JOB:
    s_cmp_ge_u32 s{sWV}, 14
    s_cbranch_scc1 K_PD_E
    s_cmp_lt_u32 s{sWV}, 13
    s_cbranch_scc1 K_JB1 ; @if:lo=1
    v_cmp_eq_u32 vcc, 32, v0
    v_cmp_eq_u32 s[{sP1}:{sP1 + 1}], 33, v0
    v_mov_b32 v12, 0x3f80
    v_lshlrev_b32 v4, 4, v0
    v_cndmask_b32 v8, 0, v12, vcc
    v_cndmask_b32 v9, 0, v12, s[{sP1}:{sP1 + 1}]
    v_lshlrev_b32 v10, 16, v8
    v_lshlrev_b32 v11, 16, v9
    ds_write_b128 v4, v[8:11] offset:{OH}
    v_lshlrev_b32 v4, 3, v0
    v_lshlrev_b32 v12, 1, v0
    v_add_u32 v12, {QROWS}, v12
    v_add_u32 v13, 1, v12
    ds_write_b64 v4, v[12:13] offset:{FAKE}
    s_branch K_PD_E
    K_JB1:
    s_lshl_b32 s{sA}, s{sWV}, 8
    s_add_u32 s{sA}, s{sA}, {65536 - 2560}
    s_add_u32 s{sP1}, s14, s{sA}
    s_addc_u32 s{sP1 + 1}, s15, 0
    s_cmp_eq_u32 s{sWV}, 12
    s_cselect_b64 s[{sP1}:{sP1 + 1}], s[16:17], s[{sP1}:{sP1 + 1}]
    v_lshlrev_b32 v4, 2, v0
    global_load_dword v10, v4, s[{sP1}:{sP1 + 1}]
    s_branch K_PD_E
    K_JB2:
    s_cmp_ge_u32 s{sWV}, 13
    s_cbranch_scc1 K_JB4 ; @if:lo=0
    s_cmp_eq_u32 s{sWV}, 12
    v_lshrrev_b32 v8, 3, v0
    s_waitcnt vmcnt(0)
    v_and_b32 v11, 0xffff0000, v10
    v_lshlrev_b32 v10, 16, v10
    s_cbranch_scc1 K_JB3
    s_cmp_eq_u32 s{sWV}, 10
    s_cselect_b32 s{sA}, 1.0, {f32(-LOG2E)}
    s_mov_b32 s{sB2}, {f32(15.0)}
    s_cmov_b32 s{sB2}, {f32(32.0)}
    v_mul_f32 v10, s{sA}, v10
    v_mul_f32 v11, s{sA}, v11
    v_and_b32 v12, 0x7fffffff, v10
    v_and_b32 v13, 0x7fffffff, v11
    v_max_u32 v12, v12, v13
    v_and_b32 v8, 1, v8
    v_mul_i32_i24 v8, -101, v8
    v_ldexp_f32 v10, v10, v8
    v_ldexp_f32 v11, v11, v8
    v_cvt_pk_bf16_f32 v10, v10, v11
    s_lshl_b32 s{sA}, s{sWV}, 8
    v_add_u32 v4, s{sA}, v4
    ds_write_b32 v4, v10 offset:{WD - 2560}
    """)
    scan64(a, 12, "v_max_u32")
    a(f"""
    s_lshl_b32 s{sA}, s{sWV}, 2
    v_rcp_f32 v12, v12
    v_mov_b32 v4, s{sA}
    v_mul_f32 v12, s{sB2}, v12
    s_mov_b32 exec_lo, 0
    s_brev_b32 exec_hi, 1
    ds_write_b32 v4, v12 offset:{MISC + 8 - 40}
    s_mov_b64 exec, -1
    s_branch K_G0
    K_JB3:
    v_mul_f32 v10, {f32(-LN2 * (1 + DELTA))}, v10
    v_mul_f32 v11, {f32(-LN2 * (1 + DELTA))}, v11
    v_and_b32 v4, 7, v0
    v_lshlrev_b32 v4, 6, v4
    v_lshl_add_u32 v4, v8, 2, v4
    ds_write_b32 v4, v10 offset:{WX}
    ds_write_b32 v4, v11 offset:{WX + 32}
    s_branch K_G0
    K_JB4:
    v_mov_b32 v57, 0
    ds_read_b32 v57, v57 offset:{MISC}
    s_lshl_b32 s{sA}, s2, 6
    s_add_u32 s{sA}, s{sA}, {FP}
    v_mov_b32 v56, s{sA}
    s_cmp_eq_u32 s{sWV}, 14
    s_waitcnt lgkmcnt(0)
    v_or_b32 v57, 1, v57
    s_cbranch_scc0 K_G0 ; @if:w14=0
    """)
    poll128(a, "K_PP", FP, 8)
    a(f"""
    s_branch K_G0
    K_OWN1:
    s_cmp_eq_u32 s{sWV}, 13
    s_cbranch_scc1 K_OWN0 ; @if:w13=1
    {"" if nfin or qg else qflag("K_OWN1B")}
    s_branch K_OWN1B
    K_OWN0:
    v_add_u32 v50, s{sNB}, v0
    v_mad_u32_u24 v50, v50, 6, v48
    v_cmp_gt_u32 vcc, s{sNV}, v0
    v_mov_b32 v51, {OOB}
    v_mov_b32 v52, 0
    v_mov_b32 v53, 0
    v_mov_b32 v54, 0
    v_mov_b32 v55, 0
    v_cndmask_b32 v50, v51, v50, vcc
    ds_read_u16_d16_hi v52, v50
    ds_read_u16_d16_hi v53, v50 offset:2
    ds_read_u16_d16_hi v54, v50 offset:4
    s_branch K_OWN1B
    K_PAD:
    s_cmp_eq_u32 s{sWV}, 14
    s_cbranch_scc1 K_QP0 ; @if:w14=1
    s_cmp_eq_u32 s{sWV}, 13
    s_cbranch_scc1 K_OWN2 ; @if:w13=1
    v_add_lshl_u32 v25, v0, s{sTOT}, 4
    v_mov_b32 v52, {N | (4 * PADN) << 16}
    v_mov_b32 v53, 0
    v_mov_b32 v54, 0
    v_mov_b32 v55, 0
    v_cndmask_b32 v25, v25, v24, {g3}
    ds_write_b128 v25, v[52:55] offset:{LIST}
    s_branch K_PADB
    K_OWN2:
    v_lshlrev_b32 v25, 4, v0
    s_mov_b32 exec_hi, 0x1fffff
    ds_write_b128 v25, v[52:55] offset:{OWN}
    s_mov_b64 exec, -1
    s_branch K_PADB
    K_QP0:
    """)
    if cfg.get("qblock"):
        poll(a, "K_QBP", "\n".join(f"global_load_dword v{53 + i}, v59, s[{sW}:{sW + 1}] offset:{4096 * (i - 1)} sc1" for i in range(2)),
             "v_min_u32 v55, v53, v54", 55, False)
    a(f"""
    s_waitcnt vmcnt(0)
    v_min_u32 v55, v53, v54
    v_or_b32 v53, v53, v54
    v_cmp_eq_u32 vcc, 0, v55
    v_mov_b32 v55, 0
    s_cbranch_vccnz K_PADB
    v_cmp_lt_u32 vcc, 0xffff, v53
    ds_write_b32 v55, v{vIS} offset:{RDY}
    s_cbranch_vccz K_PADB
    ds_write_b32 v55, v{vIS} offset:{MISC + 4}
    s_branch K_PADB
    K_QP:
    """)
    poll128(a, "K_QPP", FQ, T)
    a(f"""
    v_or_b32 v{T}, v{T + 1}, v{T + 2}
    v_cmp_lt_u32 vcc, 0xffff, v{T}
    s_cbranch_vccz K_QB
    ds_write_b32 v{S}, v{vIS} offset:{MISC + 4}
    s_waitcnt lgkmcnt(0)
    s_branch K_QB
    K_NT0:
    s_waitcnt vmcnt(0)
    {rdq(0)}
    {rdq(1)}
    """)
    exit_loads("K_XB")
    a("s_branch K_POST")
    a(f"""
    K_WIN:
    s_min_u32 s{sA}, s{sEW}, s{sTS}
    v_cmp_ge_u32 vcc, s{sA}, v{vIncl}
    s_mov_b32 s{sLAST}, 0 ; @set:last=0
    s_bcnt1_i32_b64 s{sNWN}, vcc
    s_branch K_FLUSH
    K_SLIDE:
    v_mov_b32 v{S}, 0
    v_mov_b32 v{S + 1}, 0
    v_and_b32 v17, 3, v0
    v_subrev_u32 v18, s{sNW}, v17
    v_subrev_u32 v17, s{sNWN}, v17
    v_and_b32 v18, 3, v18
    v_and_b32 v17, 3, v17
    s_sub_u32 s{sA}, s{sNWN}, s{sNW}
    v_sub_u32 v17, v17, v18
    v_add_u32 v17, s{sA}, v17
    v_mul_u32_u24 v17, {OOB}, v17
    s_mov_b32 s{sNW}, s{sNWN}
    s_mov_b64 exec, s[{sP1}:{sP1 + 1}]
    """)
    for k in range(16):
        a(f"v_mov_b64 {vr(AC + 2 * k, 2)}, 0")
    a(f"""
    s_mov_b64 exec, -1
    s_cmp_lt_u32 s{sEW}, s{sTS}
    s_cbranch_scc1 K_REDO
    s_sub_u32 s{sA}, s{sNW}, s{sN0}
    s_cmp_gt_u32 s{sA}, 8
    s_cbranch_scc1 K_RESTART
    {zero4(ZE + 4)}
    {zero4(L)}
    v_sub_u32 v{vSa}, v{vSa}, v17
    v_sub_u32 v{vBS}, v{vBS}, v17
    """)
    window(a)
    a(f"""
    s_branch K_EV2
    K_REDO:
    s_sub_u32 s{sTS}, s{sTS}, 16
    K_RESTART:
    s_mov_b32 s{sN0}, s{sNW}
    """)
    ptrs(a)
    a("s_waitcnt vmcnt(0) lgkmcnt(0)")
    list_reads(a)
    a(f"""
    s_waitcnt lgkmcnt(0)
    s_branch K_XFR
    K_LOOPF:
    {loop_body('M1 Y1 M2 Y2 Fa Fb m s 0 v D V', DORD, False)}
    s_cbranch_scc1 K_LOOPF
    s_branch K_EV
    """)
    a(f"""
    K_OVF:
    v_lshrrev_b32 v49, 3, v{vT}
    v_lshlrev_b32 v55, v49, v19
    v_lshrrev_b32 v49, 5, v49
    v_lshlrev_b32 v49, 2, v49
    s_mov_b64 exec, vcc
    ds_or_b32 v49, v55 offset:{CNT + 208}
    s_mov_b64 exec, -1
    s_branch K_OVFB
    K_MASK:
    """)
    for k in range(4):
        a(f"v_readlane_b32 s{sMK + k}, v49, {52 + k}")
    a(f"""
    v_cmp_gt_u32 vcc, 52, v0
    s_mov_b32 s{sRARE}, 1
    s_nop 0
    v_cndmask_b32 v49, 0, v49, vcc
    s_branch K_MASKB
    K_SHRINK:
    s_movk_i32 s{sWID}, {CAP // 4}
    s_mov_b32 s{sLO}, 0
    s_mov_b32 s{sRARE}, 1
    s_branch K_ROUND
    K_NEXT:
    s_mov_b32 s{sQA}, 0
    s_add_u32 s{sLO}, s{sLO}, s{sWID}
    s_cmp_lt_u32 s{sWID}, 1024
    s_cselect_b32 s{sA}, s{sLO}, 1024
    s_cmp_lt_u32 s{sA}, 1000
    s_cbranch_scc1 K_ROUND
    s_mov_b32 s{sLO}, 0
    s_movk_i32 s{sWID}, 1024
    s_ff1_i32_b64 s{sSRC}, s[{sMK}:{sMK + 1}]
    s_cmp_lt_i32 s{sSRC}, 0
    s_cbranch_scc1 K_NEXT2
    s_bitset0_b64 s[{sMK}:{sMK + 1}], s{sSRC}
    s_branch K_ROUND
    K_NEXT2:
    s_ff1_i32_b64 s{sSRC}, s[{sMK + 2}:{sMK + 3}]
    s_cmp_lt_i32 s{sSRC}, 0
    s_cbranch_scc0 K_NEXT3
    s_cmp_lg_u32 s{sD}, 0
    s_cbranch_scc1 K_S1
    s_branch K_S0
    K_NEXT3:
    s_bitset0_b64 s[{sMK + 2}:{sMK + 3}], s{sSRC}
    s_add_u32 s{sSRC}, s{sSRC}, 64
    K_ROUND:
    s_load_dwordx2 s[6:7], s[0:1], 8
    s_load_dwordx4 s[8:11], s[0:1], 16
    s_load_dwordx2 s[12:13], s[0:1], 32
    s_lshl_b32 s{sA}, s{sWV}, 6
    v_add_u32 v{vT}, s{sA}, v0
    v_lshlrev_b32 v19, 4, v{vT}
    s_waitcnt vmcnt(0) lgkmcnt(0) ; @set:nt=x
    s_barrier
    """)
    zero_init(a, (PAC - MR - 16384) // 16)
    pos_dma(a, "K_PR")
    rec_addr(a, 28)
    a(f"""
    s_cmp_ge_i32 s{sSRC}, 0
    s_cbranch_scc1 K_RAW
    """)
    rec_load(a, 28)
    a(f"""
    s_waitcnt vmcnt(0)
    v_and_b32 v{vDL}, 0xbfbfbfbf, v{vDL}
    s_branch K_RANGE
    K_RAW:
    s_cmp_ge_u32 s{sWV}, 13
    s_cbranch_scc1 K_RANGE
    s_mul_i32 s{sA}, s{sSRC}, 12800
    v_cmp_gt_u32 vcc, 800, v{vT}
    v_add_u32 v28, s{sA}, v19
    v_lshrrev_b32 v29, 1, v28
    s_mov_b64 exec, vcc
    global_load_dwordx4 v[32:35], v28, s[12:13]
    global_load_dwordx4 {vr(W, 4)}, v28, s[10:11]
    global_load_dwordx2 v[36:37], v29, s[8:9]
    s_mov_b32 s{sA}, 342393
    s_mov_b32 s{sB2}, 0xffff0000
    v_mov_b32 v38, 0xbf
    s_waitcnt vmcnt(0)
    """)
    for j in range(4):
        a(f"""
        v_mul_u32_u24 v{32 + j}, s{sA}, v{32 + j}
        v_lshrrev_b32 v39, 24, v{32 + j}
        v_cmp_eq_u32 vcc, s{sB}, v39
        v_mul_hi_u32_u24 v{32 + j}, 12544, v{32 + j}
        """)
        if j & 1:
            a(f"v_and_or_b32 v{W + j}, v{36 + j // 2}, s{sB2}, v{W + j}")
        else:
            a(f"v_lshl_or_b32 v{W + j}, v{36 + j // 2}, 16, v{W + j}")
        a(f"v_cndmask_b32 v{32 + j}, v38, v{32 + j}, vcc")
    a(f"""
    v_lshl_or_b32 v32, v33, 8, v32
    v_lshl_or_b32 v34, v35, 8, v34
    v_lshl_or_b32 v{vDL}, v34, 16, v32
    s_mov_b64 exec, -1
    K_RANGE:
    v_subrev_u32 v28, s{sLO}, v{vT}
    v_cmp_gt_u32 vcc, s{sWID}, v28
    v_mov_b32 v28, 0xbfbfbfbf
    s_waitcnt vmcnt(0) lgkmcnt(0)
    v_cndmask_b32 v{vDL}, v28, v{vDL}, vcc
    s_barrier
    s_branch K_B0
    """)
    return a.text()
```

```python
from common import *

CAP = 2016
CNT, LUT = 0, 256
MR, MST = 8448, 288
SEL = MR + 64 * MST
PAC = SEL + 49 * 32
MISC = PAC + 52 * 16
RDY = PAC + 12
OH = MISC + 16
WD, WX, FAKE = OH + 1024, OH + 1536, OH + 2048
OWN = OH + 2560
LIST = OWN + 53 * 16
HT2 = QTB = 32768
QTA = 46336
POSL = RING = OT = WS1 = 73984
PB = WS2 = WS1 + 32768
CNTP = OH
HT = PB + 40960
PT = 163840 - 49 * 288
OST = QST = 272
PADN = 52
FP, FQ = WS_SYNC, WS_SYNC + 8192
SPIN = 1 << 18
assert LIST + (CAP + 48) * 16 <= LUT + 65536 and POSL + 75008 <= PT and LIST <= HT2 and HT % 256 == 0 and HT + 13312 <= 163840

sWV = 3
sW, sH, sO, sR, sMK = 24, 28, 32, 36, 40
sB, sNB, sNV, sRARE, sQW, sSRC, sLO, sWID = 44, 45, 46, 47, 48, 49, 50, 51
sTOT, sTS, sWT, sWEND, sN0, sNW, sEW, sEV = 52, 53, 54, 55, 56, 57, 58, 59
sNF, sNL, sMODE, sNWN, sC000, s128, s256, s192, sLAST = 60, 61, 62, 63, 64, 65, 66, 68, 69
sM0, sG3 = 70, 74
sT, sQA, sQS, sGH = sO, sLAST, sTOT, sNWN
sA, sB2, sC, sD = 76, 77, 78, 79
sP0, sP1, sP2, sP3, sP4 = 80, 82, 84, 86, 88
vRing, vLc, vMul, vIncl, vVoff = 1, 2, 3, 4, 5
vBX, vBS, vIX, vIS, vDa, vEa = 6, 7, 8, 9, 10, 11
vXa, vSa, vD, vDE, vIdx = 12, 13, 14, 15, 16
ZE, ZL, T, L, R, S, A, B, AC, Y = 20, 28, 32, 36, 40, 42, 44, 60, 84, 120
vFa, vG0, vG1 = 116, 117, 118
vDL, vT, W = 17, 18, 20
g3 = sr(sG3, 2)

PAT = "M1 h E Y1 E M2 E Y2 E 0 X X X X m P P P R s R l P P P v D V"
DORD = "SqxdL"
QF = os.environ.get("QF", "")
PMASK = int(os.environ.get("PMASK", "1"))


def dma(kc):
    soff = ["0", "64", f"s{s128}", f"s{s192}"][kc]
    return [f"s_mov_b32 m0, s{sM0 + kc}",
            f"buffer_load_dwordx4 v{vVoff}, s[{sW}:{sW + 3}], {soff} offen {QF}lds ; @w:ring{kc}"]


def rdq(kc, d=None):
    d = A + 2 + 6 * (kc & 1) if d is None else d
    return f"ds_read_b128 {vr(d, 4)}, v{vRing} offset:{1024 * kc} ; @r:ring{kc}"


def Kmf(u, z):
    a0 = A + 6 * ((u // 2) % 2) + (4 if u & 1 else 0)
    b0 = B + 6 * (u // 2) + (2 if u & 1 else 0)
    return f"v_mfma_f32_16x16x32_bf16 {vr(z, 4)}, {vr(a0, 4)}, {vr(b0, 4)}, 0"


def Ymf(u, b):
    return f"v_smfmac_f32_16x16x32_bf16 {vr(AC + 4 * u, 4)}, {vr(S, 2)}, {vr(b, 4)}, v{vIdx}"


def zero4(d):
    return f"v_mfma_f32_16x16x16_bf16 {vr(d, 4)}, {vr(S, 2)}, {vr(S, 2)}, 0"


def mf32(d, x, y, first=False):
    return f"v_mfma_f32_16x16x32_bf16 {vr(d, 4)}, {vr(x, 4)}, {vr(y, 4)}, {'0' if first else vr(d, 4)}"


def loop_body(pat, dord, lut):
    seq = []
    I = lambda t, tag=None: seq.append(("i", t, tag))
    NEED = lambda tag: seq.append(("n", tag, None))
    pk1 = lambda r: f"v_pk_add_f32 {vr(r, 2)}, {vr(r, 2)}, 1.0 op_sel_hi:[1,0]"
    for j in range(4):
        z, zn = ZE + 4 * (j & 1), ZE + 4 * ((j + 1) & 1)
        e = [f"v_exp_f32 v{T + (k ^ 2)}, v{z + k}" for k in range(4)]
        p = [pk1(T + 2),
             f"v_pk_fma_f32 {vr(R, 2)}, {vr(T + 2, 2)}, {vr(T, 2)}, {vr(T + 2, 2)}",
             f"v_pk_fma_f32 {vr(T, 2)}, {vr(z, 2)}, {vr(T, 2)}, {vr(z, 2)}",
             f"v_pk_mul_f32 {vr(T + 2, 2)}, {vr(z + 2, 2)}, {vr(T + 2, 2)}",
             f"v_pk_mul_f32 {vr(z, 2)}, {vr(T, 2)}, {vr(R, 2)}",
             f"v_pk_mul_f32 {vr(z + 2, 2)}, {vr(T + 2, 2)}, {vr(R, 2)}"]
        r = [f"v_rcp_f32 v{R}, v{R}", f"v_rcp_f32 v{R + 1}, v{R + 1}"]
        ix = [f"v_lshlrev_b32_sdwa v{ZL + k}, 1, v{ZL + k} {SD} src1_sel:WORD_1" for k in range(4)]
        d = dma((j + 1) % 4)
        for tok in pat.split():
            if tok == "M1":
                if j < 2:
                    NEED(f"x{j + 1}")
                I(Kmf(2 * j + 1, ZL))
            elif tok == "M2":
                NEED(f"q{(j + 1) % 4}")
                if j == 3:
                    NEED("x0")
                I(Kmf((2 * j + 2) % 8, zn))
            elif tok == "Y1":
                if j == 1:
                    NEED("S")
                I(Ymf((2 * j - 2) % 8, zn))
            elif tok == "Y2":
                if lut:
                    NEED("L")
                I(Ymf((2 * j - 1) % 8, L))
            elif tok == "E":
                I(e.pop(0))
            elif tok == "P":
                I(p.pop(0))
            elif tok == "R":
                I(r.pop(0))
            elif tok == "X":
                I(ix.pop(0))
            elif tok in ("Fa", "Fb"):
                src, dst = (z, z) if tok == "Fa" else (ZL, L)
                if tok == "Fb":
                    for k in range(4):
                        I(f"v_mul_f32 v{ZL + k}, {f32(2.0 ** 101)}, v{ZL + k}")
                for k in range(4):
                    I(f"v_exp_f32 v{T + k}, v{src + k}")
                I(pk1(T))
                I(pk1(T + 2))
                for k in range(4):
                    I(f"v_rcp_f32 v{T + k}, v{T + k}")
                for k in (0, 2):
                    I(f"v_pk_mul_f32 {vr(dst + k, 2)}, {vr(T + k, 2)}, {vr(src + k, 2)}")
            elif tok == "m":
                if j == 0:
                    NEED("dE")
                    I(f"v_mad_u32_u16 v{vXa}, v{vDE}, v{vMul}, v{vBX} op_sel:[1,0,0,0]")
                elif j == 1:
                    I(f"v_mad_u32_u16 v{vSa}, v{vD}, s{sC000}, v{vBS} op_sel:[1,0,0,0]")
                elif j == 2:
                    I(f"v_lshl_add_u64 v[{vDa}:{vEa}], v[{vDa}:{vEa}], 0, s[{s256}:{s256 + 1}]")
                    I(f"v_lshl_add_u64 v[{vBX}:{vBS}], v[{vBX}:{vBS}], 0, v[{vIX}:{vIS}]")
                else:
                    NEED("dD")
                    I(f"v_mad_u32_u16 v{vVoff}, v{vD}, s{s256}, v{vLc}")
            elif tok == "s":
                if j == 2:
                    I(f"s_add_u32 s{sTS}, s{sTS}, 16")
                if j == 3:
                    I(f"s_cmp_lt_i32 s{sTS}, s{sEV}")
            elif tok == "l":
                I("s_setprio 0")
            elif tok == "h":
                I("s_setprio 1")
            elif tok == "0":
                I(d[0])
            elif tok == "v":
                I("s_waitcnt vmcnt(2)")
            elif tok == "V":
                I(d[1])
            elif tok == "D":
                for c in dord:
                    if c == "S" and j == 0:
                        I(f"ds_read_b64_tr_b16 {vr(S, 2)}, v{vSa}", "S")
                    if c == "q":
                        I(rdq((j + 2) % 4), f"q{(j + 2) % 4}")
                    if c == "x" and j:
                        I(f"ds_read_b64 {vr(A + 6 * (j - 1), 2)}, v{vXa}", f"x{j - 1}")
                    if c == "d" and j == 1:
                        I(f"ds_read_b32 v{vD}, v{vDa}", "dD")
                    if c == "d" and j == 3:
                        I(f"ds_read_b32 v{vDE}, v{vEa}", "dE")
                    if c == "L" and lut:
                        for k in range(4):
                            I(f"ds_read_u16_d16_hi v{L + k}, v{ZL + k} offset:{LUT}", "L")
            else:
                raise ValueError(tok)
    q, out = [], []
    for rep in range(2):
        out = []
        for k, t, tag in seq:
            if k == "i":
                out.append(t)
                if t.startswith("ds_"):
                    q.append(tag)
            elif t in q:
                n = q[::-1].index(t)
                out.append(f"s_waitcnt lgkmcnt({n})")
                q = q[len(q) - n:]
    return "\n".join(out)


def ptrs(a):
    a(f"""
    s_lshl_b32 s{sA}, s{sTS}, 4
    s_add_u32 s{sA}, s{sA}, {LIST}
    v_and_b32 v18, -4, v0
    v_and_b32 v19, 15, v0
    v_lshl_add_u32 v{vDa}, v18, 2, s{sA}
    v_lshl_add_u32 v{vEa}, v19, 4, s{sA}
    s_cmp_lt_u32 s{sTS}, s{sWT}
    s_cselect_b64 s[{sP0}:{sP0 + 1}], -1, 0
    s_add_u32 s{sB2}, s{sTS}, 16
    s_cmp_lt_u32 s{sB2}, s{sWT}
    s_cselect_b64 s[{sP1}:{sP1 + 1}], -1, 0
    v_add_u32 v19, 256, v{vDa}
    v_cndmask_b32 v18, v{vFa}, v{vDa}, s[{sP0}:{sP0 + 1}]
    v_cndmask_b32 v19, v{vFa}, v19, s[{sP1}:{sP1 + 1}]
    """)


def list_reads(a):
    a(f"""
    ds_read_b32 v{vSa}, v18
    ds_read_b32 v{vD}, v19
    ds_read_b32 v{vXa}, v{vEa}
    ds_read_b32 v{vDE}, v{vEa} offset:256
    """)


def window(a):
    a(f"""
    s_add_u32 s{sA}, s{sNW}, 3
    v_readlane_b32 s{sEW}, v{vIncl}, s{sA}
    s_sub_u32 s{sB2}, s{sWT}, 32
    s_cmp_ge_u32 s{sEW}, s{sWEND}
    s_cselect_b32 s{sEW}, 0x7fffffff, s{sEW}
    s_sub_u32 s{sA}, s{sEW}, 15
    s_min_i32 s{sEV}, s{sA}, s{sB2}
    """)


def zero_init(a, n2):
    a(f"""
    v_mov_b32 v24, 0
    v_mov_b32 v25, 0
    v_mov_b32 v26, 0
    v_mov_b32 v27, 0
    v_cmp_gt_u32 vcc, {n2}, v{vT}
    ds_write_b128 v19, v[24:27] offset:{MR}
    v_lshlrev_b32 v28, 2, v0
    ds_write_b32 v28, v24 offset:{CNT}
    s_mov_b64 exec, vcc
    ds_write_b128 v19, v[24:27] offset:{MR + 16384}
    s_mov_b64 exec, -1
    """)


def rec_addr(a, r):
    a(f"""
    s_movk_i32 s{sB2}, 96
    s_mov_b32 vcc_lo, 0xc0c0c0c0
    s_mov_b32 vcc_hi, 0xc0c0c0c0
    v_lshrrev_b32 v{r}, 3, v{vT}
    v_lshlrev_b32 v{r + 1}, 2, v{vT}
    v_mad_u32_u24 v{r + 1}, v{r}, s{sB2}, v{r + 1}
    v_mul_i32_i24 v{r}, -96, v{r}
    v_add_u32 v{r}, {16000 - 128}, v{r}
    v_cndmask_b32 v{r}, 0, v{r}, vcc
    v_add_u32 v{r}, v{r}, v19
    v_cmp_gt_u32 vcc, 1000, v{vT}
    v_mov_b32 v{vDL}, 0xbfbfbfbf
    """)


def rec_load(a, r):
    a(f"""
    s_mov_b64 exec, vcc
    global_load_dword v{vDL}, v{r + 1}, s[{sR}:{sR + 1}] sc1
    global_load_dwordx4 {vr(W, 4)}, v{r}, s[{sR}:{sR + 1}] offset:32 sc1
    s_mov_b64 exec, -1
    """)


def pos_dma(a, tag, alt=None, skip=False):
    srd(a, sT, 6, 75000)
    a(f"""
    s_cmp_ge_u32 s{sWV}, 10
    v_lshlrev_b32 v58, 4, v0
    s_cbranch_scc1 {alt or tag + '_E'}
    """)
    if skip:
        a(f"""
        s_lshr_b32 s{sA}, s2, 7
        s_lshl_b32 s{sA}, s{sA}, 2
        s_cmp_lt_u32 s{sWV}, s{sA}
        s_cbranch_scc1 {tag}_E
        """)
    a(f"""
    s_lshl_b32 s{sA}, s{sWV}, 13
    s_add_u32 m0, s{sA}, {POSL}
    s_cmp_eq_u32 s{sWV}, 9
    buffer_load_dwordx4 v58, s[{sT}:{sT + 3}], s{sA} offen lds
    s_cselect_b64 exec, 0xffff, -1
    buffer_load_dwordx4 v58, s[{sT}:{sT + 3}], s{sA} offen offset:1024 lds
    s_mov_b64 exec, -1
    s_cbranch_scc1 {tag}_E
    buffer_load_dwordx4 v58, s[{sT}:{sT + 3}], s{sA} offen offset:2048 lds
    buffer_load_dwordx4 v58, s[{sT}:{sT + 3}], s{sA} offen offset:3072 lds
    s_add_u32 m0, m0, 4096
    s_add_u32 s{sA}, s{sA}, 4096
    """)
    for i in range(4):
        a(f"buffer_load_dwordx4 v58, s[{sT}:{sT + 3}], s{sA} offen offset:{1024 * i} lds")
    a(f"{tag}_E:")


def poll(a, tag, ld, red, v, first=True):
    a(f"""
    s_mov_b32 s{sA}, {SPIN}
    {ld if first else ''}
    {tag}:
    s_waitcnt vmcnt(0)
    {red}
    v_cmp_eq_u32 vcc, 0, v{v}
    s_sub_u32 s{sA}, s{sA}, 1
    s_cbranch_vccz {tag}_E
    {"s_mov_b64 exec, vcc" if PMASK else ""}
    {ld}
    s_cbranch_scc0 {tag}
    s_waitcnt vmcnt(0)
    {tag}_E:
    {"s_mov_b64 exec, -1" if PMASK else ""}
    """)


def poll128(a, tag, off, r):
    a(f"s_mov_b32 s{sA}, {off + 4096}\nv_lshl_add_u32 v{r}, v0, 6, s{sA}")
    ld = "\n".join(f"global_load_dword v{r + 1 + i}, v{r}, s[{sW}:{sW + 1}] offset:{4096 * (i - 1)} sc1" for i in range(2))
    poll(a, tag, ld, f"v_min_u32 v{r + 3}, v{r + 1}, v{r + 2}", r + 3)


def big_test(a, acc, lab):
    for k in range(4):
        p = vr(acc + 2 * k, 2)
        a(f"v_pk_mul_f32 v[36:37], {p}, {p}" if k == 0 else f"v_pk_fma_f32 v[36:37], {p}, {p}, v[36:37]")
    a(f"""
    v_add_f32 v36, v36, v37
    v_cmp_ngt_f32 vcc, {f32(64 * LN2 * LN2)}, v36
    s_cbranch_vccnz {lab}
    {lab}B:
    """)


def scale_pack(a, acc, tmp):
    for t in range(2):
        for k in (0, 2):
            a(f"v_pk_mul_f32 {vr(tmp + 4 * t + k, 2)}, {vr(acc + 4 * t + k, 2)}, s[{sP0}:{sP0 + 1}] op_sel_hi:[1,0]")
        a(f"""
        v_cvt_pk_bf16_f32 v{tmp + 4 * t}, v{tmp + 4 * t}, v{tmp + 4 * t + 1}
        v_cvt_pk_bf16_f32 v{tmp + 4 * t + 1}, v{tmp + 4 * t + 2}, v{tmp + 4 * t + 3}
        """)


def tile_write(tmp, va, off=0):
    return "\n".join(f"ds_write_b64 v{va + t}, {vr(tmp + 4 * t, 2)} offset:{off}" for t in range(2))


def wdma(base, dst):
    return f"""
    s_mov_b64 s[{sT}:{sT + 1}], s[{base}:{base + 1}]
    s_lshl_b32 s{sA}, s{sWV}, 11
    s_add_u32 m0, s{sA}, {dst}
    s_nop 0
    buffer_load_dwordx4 v1, s[{sT}:{sT + 3}], s{sA} offen lds
    buffer_load_dwordx4 v1, s[{sT}:{sT + 3}], s{sA} offen offset:1024 lds
    """


def silu4(a, y, h, t):
    a(f"""
    v_pk_mul_f32 {vr(y, 2)}, {vr(y, 2)}, s[{sP0}:{sP0 + 1}] op_sel_hi:[1,0]
    v_pk_mul_f32 {vr(y + 2, 2)}, {vr(y + 2, 2)}, s[{sP0}:{sP0 + 1}] op_sel_hi:[1,0]
    """)
    for k in range(4):
        a(f"v_exp_f32 v{t + k}, v{y + k}")
    for k in (0, 2):
        a(f"v_pk_add_f32 {vr(t + k, 2)}, {vr(t + k, 2)}, 1.0 op_sel_hi:[1,0]")
    for k in range(4):
        a(f"v_rcp_f32 v{t + k}, v{t + k}")
    for k in (0, 2):
        a(f"v_pk_mul_f32 {vr(y + k, 2)}, {vr(y + k, 2)}, s[{sP0}:{sP0 + 1}] op_sel:[0,1] op_sel_hi:[1,1]")
    for k in (0, 2):
        a(f"v_pk_fma_f32 {vr(y + k, 2)}, {vr(y + k, 2)}, {vr(t + k, 2)}, {vr(h + k, 2)}")
    a(f"v_cvt_pk_bf16_f32 v{y}, v{y}, v{y + 1}\nv_cvt_pk_bf16_f32 v{y + 1}, v{y + 2}, v{y + 3}")


def gen_kernel(cfg):
    a = Asm()
    st = lambda i: stamp(a, cfg, i)
    pr = lambda nm: f"s_memrealtime s[{STAMP_REGS[15]}:{STAMP_REGS[15] + 1}]" if cfg.get("diag") and cfg.get("probe", "scat") == nm else ""
    YA, YB = Y, Y + 4
    nfin = 0
    HA_, HB_, WF, TF, GC, RA = AC, AC + 16, B, 24, 76, 6
    vWa, vWb, vQa, vPa, vHa, vQo, vZ, QR = 16, 3, 116, 118, 56, 14, 58, 48
    GA, LA, CA, BK, RK1, WBR = 46, 48, 50, 34, 38, 52
    cpf = ""
    wo = f"s_waitcnt lgkmcnt(0)\ns_add_u32 s{sW}, s{sW}, {cfg['wo'] << 20}\ns_addc_u32 s{sW + 1}, s{sW + 1}, 0" if "wo" in cfg else ""
    if cfg.get("cpf"):
        cpf = f"""
        s_cmp_lg_u32 s{sWV}, 15
        s_cbranch_scc1 K_CP
        s_getpc_b64 s[{sP0}:{sP0 + 1}]
        v_lshlrev_b32 v2, 7, v0
        v_add_u32 v3, 0x2000, v2
        global_load_dword v126, v2, s[{sP0}:{sP0 + 1}]
        s_mov_b64 exec, 0xffff
        global_load_dword v127, v3, s[{sP0}:{sP0 + 1}]
        s_mov_b64 exec, -1
        K_CP:
        """
    a(f"""
    s_load_dwordx16 s[4:19], s[0:1], 0
    s_load_dwordx4 s[20:23], s[0:1], 64
    s_load_dwordx2 s[{sW}:{sW + 1}], s[0:1], 80
    v_lshrrev_b32 v1, 6, v0
    s_cmp_ge_u32 s2, 256
    s_cbranch_scc1 K_END
    v_readfirstlane_b32 s{sWV}, v1
    v_mov_b32 v{vT}, v0
    v_lshlrev_b32 v19, 4, v0
    v_and_b32 v0, 63, v0
    s_and_b32 s{sB}, s2, 7
    s_lshl_b32 s{sB}, s{sB}, 5
    s_lshr_b32 s{sD}, s2, 3
    s_add_u32 s{sB}, s{sB}, s{sD}
    s_mul_i32 s{sNB}, s{sB}, {NB}
    {cpf}
    {wo}
    s_lshl_b32 s{sA}, s{sWV}, 8
    s_or_b32 s{sA}, s{sA}, s2
    s_cmp_eq_u32 s{sA}, {12 * 256 + 127}
    s_cbranch_scc1 K_ZF
    s_cmp_ge_u32 s2, 125
    s_cbranch_scc1 K_LD ; @if:p=0
    s_mul_i32 s{sA}, s2, 12800
    v_add_u32 v2, s{sA}, v19
    v_lshrrev_b32 v3, 1, v2
    v_cmp_gt_u32 vcc, 800, v{vT}
    s_cmp_eq_u32 s{sWV}, 8
    s_mov_b32 s{sC}, {OOB}
    s_cmov_b32 s{sC}, {CNTP - 8192}
    s_cmp_lt_u32 s{sWV}, 8
    s_cselect_b32 s{sA}, 0xbfbfbfbf, 0
    s_cselect_b32 s{sB2}, 64, 0
    s_cmov_b32 s{sC}, {PB}
    v_and_b32 v14, 0x3fe, v{vT}
    v_mul_u32_u24 v14, s{sB2}, v14
    v_add3_u32 v14, v14, v19, s{sC}
    v_mov_b32 v20, s{sA}
    v_mov_b32 v21, s{sA}
    v_mov_b32 v22, s{sA}
    v_mov_b32 v23, s{sA}
    s_mov_b64 s[{sP4}:{sP4 + 1}], vcc
    s_mov_b64 exec, vcc
    s_waitcnt lgkmcnt(0)
    s_cbranch_execz K_PL ; @if:lo=0
    global_load_dwordx4 v[4:7], v2, s[12:13]
    global_load_dwordx4 v[8:11], v2, s[10:11]
    global_load_dwordx2 v[12:13], v3, s[8:9]
    K_PL:
    s_mov_b64 exec, -1
    ds_write_b128 v14, v[20:23]
    s_waitcnt lgkmcnt(0)
    s_barrier
    K_LD:
    s_sub_u32 s{sNV}, {N}, s{sNB}
    s_min_u32 s{sNV}, s{sNV}, {NB}
    s_lshl_b32 s{sC}, s{sNB}, 8
    s_lshl_b32 s{sH + 2}, s{sNV}, 8
    s_mov_b32 s{sH + 3}, 0x20000
    v_lshrrev_b32 v14, 4, v0
    v_and_b32 v15, 15, v0
    s_lshr_b32 s{sQS}, s2, 7
    s_add_u32 s{sA}, s{sWV}, s{sQS}
    s_waitcnt lgkmcnt(0)
    s_add_u32 s{sH}, s4, s{sC}
    s_addc_u32 s{sH + 1}, s5, 0
    s_cmp_lt_u32 s{sA}, 13
    s_cbranch_scc1 K_CH
    s_cmp_eq_u32 s{sA}, 14
    s_cselect_b32 s{sC}, {16 * NB * 256}, 0
    s_cselect_b32 s{sT + 2}, {NB * 256}, s{sH + 2}
    s_mov_b32 s{sP1}, {HT}
    s_cmov_b32 s{sP1}, {HT2}
    s_sub_u32 s{sT}, s{sH}, s{sC}
    s_subb_u32 s{sT + 1}, s{sH + 1}, 0
    s_and_b32 s{sA}, s{sWV}, 1
    s_lshl_b32 s{sA}, s{sA}, 14
    s_add_u32 s{sB2}, s{sA}, {WS1}
    s_lshl_b32 s{sC}, s{sQS}, 15
    s_add_u32 s{sA}, s{sA}, s{sC}
    s_and_b32 s{sD}, s{sD}, 3
    s_lshl_b32 s{sD}, s{sD}, 12
    s_cmp_lt_u32 s{sWV}, 14
    s_cselect_b64 s[{sT}:{sT + 1}], s[{sT}:{sT + 1}], s[14:15]
    s_cselect_b32 s{sT + 2}, s{sT + 2}, 0x10000
    s_mov_b32 s{sT + 3}, 0x20000
    s_cselect_b32 s{sP0}, 0, 1
    s_cselect_b32 s{sP0 + 1}, 64, 0
    s_cmov_b32 s{sA}, 0
    s_cmov_b32 s{sB2}, s{sP1}
    s_cmov_b32 s{sD}, 0
    v_lshlrev_b32 v20, s{sP0}, v14
    v_xor_b32 v20, v20, v15
    v_lshlrev_b32 v20, 4, v20
    v_lshl_add_u32 v20, v14, 8, v20
    v_xor_b32 v21, s{sP0 + 1}, v20
    v_xor_b32 v22, 0x80, v20
    v_xor_b32 v23, 0x80, v21
    """)
    for k in range(4):
        a(f"s_add_u32 m0, s{sB2}, s{sD}\ns_add_u32 s{sC}, s{sA}, s{sD}")
        if k == 3:
            a(f"s_cmp_lt_u32 s{sWV}, 14")
        for i in range(4):
            a(f"buffer_load_dwordx4 v{20 + i}, s[{sT}:{sT + 3}], s{sC} offen offset:{1024 * i} lds")
            if k == 3 and i == 0:
                a("s_cbranch_scc1 K_WJ")
            if k < 3 and i == 0:
                a(f"s_add_u32 s{sD}, s{sD}, 4096\ns_and_b32 s{sD}, s{sD}, 0x3fff")
    a("K_CH:\ns_setreg_imm32_b32 hwreg(HW_REG_MODE, 4, 2), 3")
    st(0)
    zero_init(a, (MISC + 16 - MR - 16384) // 16)
    a(f"""
    v_lshlrev_b32 v24, 18, v{vT}
    v_or_b32 v25, 0x18000, v24
    v_or_b32 v26, 0x28000, v24
    v_or_b32 v27, 0x38000, v24
    v_or_b32 v24, 0x8000, v24
    s_mov_b32 s{sP0}, {f32(2.0 ** 101)}
    s_mov_b32 s{sP0 + 1}, {f32(1 / (1 + DELTA))}
    v_pk_mul_f32 v[26:27], v[26:27], s[{sP0}:{sP0 + 1}] op_sel_hi:[1,0]
    v_pk_mul_f32 v[24:25], v[24:25], s[{sP0}:{sP0 + 1}] op_sel_hi:[1,0]
    """)
    for k in range(4):
        a(f"v_exp_f32 v{28 + k}, v{24 + k}")
    for k in (0, 2):
        a(f"v_pk_mul_f32 {vr(24 + k, 2)}, {vr(24 + k, 2)}, s[{sP0}:{sP0 + 1}] op_sel:[0,1] op_sel_hi:[1,1]")
    for k in (0, 2):
        a(f"v_pk_add_f32 {vr(28 + k, 2)}, {vr(28 + k, 2)}, 1.0 op_sel_hi:[1,0]")
    for k in range(4):
        a(f"v_rcp_f32 v{28 + k}, v{28 + k}")
    a(f"v_lshlrev_b32 v32, 3, v{vT}\nv_add_u32 v33, 0x10000, v32")
    for k in (0, 2):
        a(f"v_pk_mul_f32 {vr(28 + k, 2)}, {vr(28 + k, 2)}, {vr(24 + k, 2)}")
    for k in (0, 2):
        a(f"v_pk_add_f32 {vr(24 + k, 2)}, {vr(28 + k, 2)}, {vr(24 + k, 2)} neg_lo:[0,1] neg_hi:[0,1]")
    a(f"""
    v_cvt_pk_bf16_f32 v28, v28, v29
    v_cvt_pk_bf16_f32 v29, v30, v31
    v_cvt_pk_bf16_f32 v24, v24, v25
    v_cvt_pk_bf16_f32 v25, v26, v27
    ds_write_b64 v32, v[28:29] offset:{LUT}
    ds_write_b64 v33, v[24:25] offset:{LUT}
    """)
    a(f"""
    s_mov_b32 s{sW + 2}, {WS_END}
    s_mov_b32 s{sW + 3}, 0x20000
    s_lshr_b32 s{sD}, s{sWV}, 3
    s_and_b32 s{sC}, s{sWV}, 7
    s_sub_u32 s{sA}, s{sD}, 1
    v_and_b32 v17, s{sA}, v15
    s_lshl_b32 s{sA}, s{sD}, 4
    s_add_u32 s{sA}, s{sA}, 16
    v_add_u32 v24, s{sA}, v15
    s_mul_i32 s{sA}, s{sD}, 48
    v_add_u32 v25, s{sA}, v17
    s_mov_b32 s{sA}, {HT}
    v_xor_b32 v26, v14, v15
    v_xor_b32 v27, v14, v17
    v_lshl_add_u32 v26, v26, 4, s{sA}
    v_lshl_add_u32 v27, v27, 4, s{sA}
    v_lshl_add_u32 v{vHa}, v24, 8, v26
    v_lshl_add_u32 v{vHa + 1}, v25, 8, v27
    s_cmp_ge_u32 s2, 128
    s_cselect_b32 s{sA}, {HT - HT2}, 0
    v_subrev_u32 v{HA_}, s{sA}, v{vHa}
    v_subrev_u32 v{HB_}, s{sA}, v{vHa + 1}
    """)
    for ks in range(1, 4):
        a(f"v_xor_b32 v{HA_ + 4 * ks}, {64 * ks}, v{HA_}\nv_xor_b32 v{HB_ + 4 * ks}, {64 * ks}, v{HB_}")
    a(f"""
    s_lshr_b32 s{sA}, s{sC}, 1
    s_mul_i32 s{sA}, s{sA}, 48
    s_lshl_b32 s{sB2}, s{sC}, 3
    s_add_u32 s{sA}, s{sA}, s{sB2}
    v_lshl_add_u32 v26, v14, 4, s{sA}
    s_movk_i32 s{sA}, {QST}
    v_mad_u32_u24 v{vQa}, v24, s{sA}, v26
    v_mad_u32_u24 v{vQa + 1}, v25, s{sA}, v26
    s_lshl_b32 s{sA}, s{sC}, 5
    s_add_u32 s{sA}, s{sA}, {PT}
    v_lshl_add_u32 v26, v14, 3, s{sA}
    s_movk_i32 s{sA}, 288
    v_mad_u32_u24 v{vPa}, v24, s{sA}, v26
    v_mad_u32_u24 v{vPa + 1}, v25, s{sA}, v26
    v_bfe_u32 v24, v0, 2, 2
    v_and_b32 v25, 1, v14
    v_lshl_or_b32 v25, v25, 2, v24
    v_xor_b32 v25, s{sC}, v25
    v_and_b32 v26, 3, v0
    v_lshlrev_b32 v26, 3, v26
    v_lshl_or_b32 v25, v25, 5, v26
    v_lshl_add_u32 v24, v14, 3, v24
    v_lshl_add_u32 v24, v24, 8, v25
    v_add_u32 v{vWa}, {WS1}, v24
    v_mov_b32 v{vZ}, 0
    s_sub_u32 s{sA}, s{sWV}, 14
    v_mov_b32 v{vZ + 1}, s{sA}
    s_mov_b32 s{sQS}, 0
    v_lshlrev_b32 v1, 1, v14
    v_xor_b32 v1, v1, v15
    v_lshlrev_b32 v1, 4, v1
    v_lshl_add_u32 v1, v14, 8, v1
    s_bitcmp1_b32 s{sWV}, 0
    s_cselect_b32 s{sA}, 0x80, 0
    v_xor_b32 v1, s{sA}, v1
    s_mov_b32 s{sT + 2}, 0x8000
    s_mov_b32 s{sT + 3}, 0x20000
    s_mov_b32 s{sP0}, {f32(-LOG2E)}
    s_cmov_b32 s{sP0}, {f32(-LOG2E * TINY)}
    s_mul_i32 s{sA}, s{sB}, {RST}
    s_add_u32 s{sA}, s{sA}, {WS_REC}
    s_add_u32 s{sR}, s{sW}, s{sA}
    s_addc_u32 s{sR + 1}, s{sW + 1}, 0
    s_cmp_ge_u32 s2, 125
    s_cbranch_scc1 K_NP ; @if:p=0
    """)
    a(f"""
    s_lshl_b32 s{sA}, s2, 7
    s_add_u32 s{sA}, s{sA}, {WS_REC}
    s_add_u32 s{sP3}, s{sW}, s{sA}
    s_addc_u32 s{sP3 + 1}, s{sW + 1}, 0
    s_movk_i32 s{sA}, {RST - 128}
    s_mov_b32 s{sP1}, {PB}
    v_lshrrev_b32 v24, 3, v{vT}
    v_mad_u32_u24 v{GA}, v24, s{sA}, v19
    v_add_u32 v{GA + 1}, {128 * RST}, v{GA}
    v_lshl_add_u32 v{LA}, v24, 5, v19
    v_add_u32 v{LA}, s{sP1}, v{LA}
    v_lshlrev_b32 v{CA}, 2, v24
    {f"v_and_b32 v45, {cfg['rm']}, v0" if cfg.get("rm") else ""}
    {"v_lshl_add_u32 v45, v45, 2, -8" if cfg.get("rm") else ""}
    s_cmp_ge_u32 s{sWV}, 13
    s_cbranch_scc1 K_PLD ; @if:lo=0
    s_mov_b32 s{sA}, 342393
    s_movk_i32 s{sB2}, 12544
    s_mov_b32 s{sP1 + 1}, 0xffff0000
    v_mov_b32 v44, 1
    s_mov_b64 exec, s[{sP4}:{sP4 + 1}]
    s_waitcnt vmcnt(2)
    """)
    for j in range(4):
        a(f"""
        v_mul_u32_u24 v{4 + j}, s{sA}, v{4 + j}
        v_lshlrev_b32_sdwa v{BK + j}, 2, v{4 + j} {SD} src1_sel:BYTE_3
        ds_add_rtn_u32 v{RK1 + j}, v{BK + j}, v44 offset:{CNTP}
        """)
    for j in range(4):
        a(f"v_mul_hi_u32_u24 v{4 + j}, s{sB2}, v{4 + j}\nv_mad_u32_u24 v{BK + j}, v{BK + j}, 40, s{sP1}")
    a("s_waitcnt vmcnt(0)")
    for j in range(4):
        if j & 1:
            a(f"v_and_or_b32 v{8 + j}, v{12 + j // 2}, s{sP1 + 1}, v{8 + j}")
        else:
            a(f"v_lshl_or_b32 v{8 + j}, v{12 + j // 2}, 16, v{8 + j}")
    for j in range(4):
        a(f"""
        s_waitcnt lgkmcnt({3 + j})
        v_min_u32 v{RK1 + j}, 31, v{RK1 + j}
        v_add_u32 v42, v{BK + j}, v{RK1 + j}
        v_lshl_add_u32 v43, v{RK1 + j}, 2, v{BK + j}
        ds_write_b8 v42, v{4 + j}
        ds_write_b32 v43, v{8 + j} offset:32
        """)
    a(f"""
    s_mov_b64 exec, -1
    K_PB:
    s_setprio 2
    s_waitcnt lgkmcnt(0)
    s_barrier
    """)
    a(pr("scat"))
    a(f"""
    ds_read_b32 v{CA + 1}, v{CA} offset:{CNTP + 512}
    ds_read_b32 v{CA}, v{CA} offset:{CNTP}
    ds_read_b128 v[4:7], v{LA}
    ds_read_b128 v[8:11], v{LA} offset:{128 * 160}
    s_waitcnt lgkmcnt(2)
    v_max_u32 v24, v{CA}, v{CA + 1}
    v_cmp_lt_u32 vcc, 24, v24
    s_cbranch_vccnz K_POV
    K_PST:
    {f"v_cmp_lt_i32 vcc, v45, v{CA}" if cfg.get("rm") else ""}
    {f"v_cmp_lt_i32 s[{sP1}:{sP1 + 1}], v45, v{CA + 1}" if cfg.get("rm") else ""}
    s_waitcnt lgkmcnt(1)
    {"s_mov_b64 exec, vcc" if cfg.get("rm") else ""}
    global_store_dwordx4 v{GA}, v[4:7], s[{sP3}:{sP3 + 1}] {cfg.get('rs', 'sc1').replace('_', ' ')}
    s_waitcnt lgkmcnt(0)
    {f"s_mov_b64 exec, s[{sP1}:{sP1 + 1}]" if cfg.get("rm") else ""}
    global_store_dwordx4 v{GA + 1}, v[8:11], s[{sP3}:{sP3 + 1}] {cfg.get('rs', 'sc1').replace('_', ' ')}
    {"s_mov_b64 exec, -1" if cfg.get("rm") else ""}
    K_PH:
    s_setprio 0
    v_mov_b32 v{vQo}, 2.0
    v_mov_b32 v{vQo + 1}, 2.0
    """)
    st(2)
    trd = lambda d, ks, va, off=0: "\n".join(f"ds_read_b64_tr_b16 {vr(d + 4 * ks + 2 * i, 2)}, v{va} offset:{off + 8192 * ks + 1024 * i}" for i in range(2))
    hrd = lambda ks: f"ds_read_b128 {vr(HA_ + 4 * ks, 4)}, v{HA_ + 4 * ks}\nds_read_b128 {vr(HB_ + 4 * ks, 4)}, v{HB_ + 4 * ks}"
    sched = [cfg.get(k, d).lstrip("x") for k, d in (("qa", "1111222200000"), ("qb", "4" * 13))]
    qstore = lambda i: f"buffer_store_dwordx4 {vr(QR + 4 * i, 4)}, v{vQo + i}, s[{sW}:{sW + 3}], 0 offen {cfg.get('qs', 'sc1').replace('_', ' ')}"

    def qst(k):
        t = ""
        for i in range(2):
            if str(k) in sched[i]:
                t += f"""
                s_bitcmp0_b32 s{sQS}, {8 * i + k}
                s_cbranch_scc1 K_QS{i}{k}
                {'s_waitcnt lgkmcnt(0)' if k == 1 else ''}
                {qstore(i)}
                v_mov_b32 v{vQo + i}, 2.0
                K_QS{i}{k}:
                """
        return t

    def gemm1(w, acc):
        for ks in range(4):
            a(trd(w, ks, vWa) + "\n" + hrd(ks))
            if ks == 2:
                a(f"s_waitcnt lgkmcnt(9)\n{mf32(acc, w, HA_, True)}\ns_waitcnt lgkmcnt(8)\n{mf32(acc + 4, w, HB_, True)}")
        for ks in range(1, 4):
            a(f"""
            s_waitcnt lgkmcnt({13 - 4 * ks})
            {mf32(acc, w + 4 * ks, HA_ + 4 * ks)}
            s_waitcnt lgkmcnt({12 - 4 * ks})
            {mf32(acc + 4, w + 4 * ks, HB_ + 4 * ks)}
            """)

    gemm1(TF, Y)
    a(f"""
    s_lshl_b32 s{sA}, s2, 6
    s_add_u32 s{sA}, s{sA}, {FP}
    v_mov_b32 v2, s{sA}
    s_nop 2
    """)
    scale_pack(a, Y, 40)
    big_test(a, Y, "K_FP")
    a(f"""
    {pr("Sa")}
    s_waitcnt vmcnt(0)
    v_cmp_eq_u32 vcc, 0, v{vZ + 1}
    s_cbranch_vccnz K_ZW
    K_ZB:
    s_cmp_lg_u32 s{sWV}, 14
    s_waitcnt lgkmcnt(0)
    {pr("S")}
    s_barrier
    s_cbranch_scc1 K_F
    s_mov_b64 exec, 1
    global_store_dword v2, v2, s[{sW}:{sW + 1}] sc1
    s_mov_b64 exec, -1
    K_F:
    """)
    st(4)
    a(tile_write(40, vPa))
    pos_dma(a, "K_PD", "K_JOB", cfg.get("pe"))
    a(qst(2) + pr("PD"))
    a(f"""
    s_mov_b64 s[{sMK}:{sMK + 1}], 0
    s_mov_b64 s[{sMK + 2}:{sMK + 3}], 0
    s_mov_b32 s{sRARE}, 0
    s_mov_b32 s{sQW}, 1 ; @set:qw=1
    s_mov_b32 s{sSRC}, -1
    s_movk_i32 s{sWID}, 1024
    s_lshr_b32 s{sA}, s2, 7
    s_cmp_eq_u32 s{sWV}, 15
    s_cselect_b32 s{sQA}, s{sA}, 0
    s_mov_b32 s{sGH}, 0 ; @set:gh=1
    s_cmp_ge_u32 s{sWV}, 10
    s_cbranch_scc1 K_JB2
    K_G0:
    {qst(3)}
    """)
    rec_addr(a, RA)
    qflag = lambda lab: f"""
    s_cmp_eq_u32 s{sQA}, 0
    s_cbranch_scc1 {lab}
    s_mov_b32 s{sQA}, 0
    s_mov_b64 exec, 1
    global_store_dword v56, v57, s[{sW}:{sW + 1}] sc1
    s_mov_b64 exec, -1
    """
    qg = cfg.get("qg")
    a(f"""
    s_waitcnt {"vmcnt(0) " if qg else ""}lgkmcnt(0)
    {pr("G")}
    s_barrier
    """)
    st(6)
    if qg:
        a(qflag("K_QG") + "K_QG:")
    rec_load(a, RA)
    for i in range(2):
        if "4" in sched[i]:
            a(qstore(i))
            nfin += 1
    a("K_B0:")
    a(f"""
    s_lshl_b32 s{sA}, s{sWV}, 12
    s_add_u32 s{sM0}, s{sA}, {RING}
    s_mov_b32 s{sC000}, 0xc000
    s_movk_i32 s{s128}, 128
    s_movk_i32 s{s192}, 192
    s_movk_i32 s{s256}, 256
    s_movk_i32 s{s256 + 1}, 256
    s_mov_b32 s{sG3}, 0
    s_mov_b32 s{sG3 + 1}, 0xffff0000
    s_add_u32 s{sM0 + 1}, s{sM0}, 1024
    s_add_u32 s{sM0 + 2}, s{sM0}, 2048
    s_add_u32 s{sM0 + 3}, s{sM0}, 3072
    v_and_b32 v34, 15, v0
    v_lshrrev_b32 v35, 4, v0
    v_lshrrev_b32 v36, 3, v34
    v_lshlrev_b32 v36, 1, v36
    v_xor_b32 v36, v36, v35
    v_lshl_add_u32 v36, v36, 4, s{sM0}
    v_lshl_add_u32 v{vRing}, v34, 6, v36
    v_and_b32 v36, 2, v35
    v_and_b32 v37, 3, v0
    v_xor_b32 v36, v36, v37
    v_lshlrev_b32 v{vLc}, 4, v36
    v_cndmask_b32 v{vMul}, 2, 0, {g3}
    v_mov_b32 v{vIS}, 256
    v_cndmask_b32 v{vIX}, 0, v{vIS}, {g3}
    v_mov_b32 v{vIdx}, 0xdd
    s_and_b32 s{sA}, s{sWV}, 7
    s_lshl_b32 s{sA}, s{sA}, 6
    s_add_u32 s{sA}, s{sA}, {FAKE}
    v_and_b32 v36, -4, v0
    v_add_u32 v{vFa}, s{sA}, v36
    v_mov_b32 v19, 1
    s_mov_b32 s{sA}, {FQ + 4096}
    v_lshl_add_u32 v59, v0, 6, s{sA}
    v_mov_b32 v48, {POSL}
    s_mov_b32 s{sC}, 0x40000
    s_mov_b32 s{sD}, 0x0c040100
    s_waitcnt vmcnt({nfin})
    """)
    st(7)
    AJ, RK, QD = 24, 28, 32
    for j in range(4):
        a(f"""
        v_lshlrev_b32_sdwa v{AJ + j}, 2, sext(v{vDL}) {SD} src1_sel:BYTE_{j}
        ds_add_rtn_u32 v{RK + j}, v{AJ + j}, v19 offset:{CNT}
        """)
    a(f"""
    s_and_b32 s{sA}, s{sWV}, 7
    s_lshl_b32 s{sA}, s{sA}, 12
    s_add_u32 s{sA}, s{sA}, {WS_WT}
    """)
    for ks in range(4):
        a(f"buffer_load_dwordx4 {vr(WF + 4 * ks, 4)}, v58, s[{sW}:{sW + 3}], s{sA} offen offset:{1024 * ks}")
    a(f"v_cmp_eq_u32 vcc, -1, v{vDL}")
    for j in range(4):
        q = QD + 4 * j
        a(f"""
        v_and_or_b32 v{q + 2}, v{AJ + j}, s{sC}, v48
        v_perm_b32 v{q}, v{AJ + j}, v{W + j}, s{sD}
        v_mad_u32_u16 v{q + 2}, v{W + j}, 6, v{q + 2}
        v_and_b32 v{q + 1}, 0xffff0000, v{W + j}
        v_and_b32 v{q + 2}, -4, v{q + 2}
        """)
    a(f"""
    s_cbranch_vccnz K_OVF
    K_OVFB:
    v_lshlrev_b32 v49, 2, v0
    s_cmp_ge_u32 s{sWV}, 13
    s_waitcnt lgkmcnt(0)
    s_barrier
    """)
    st(8)
    a(f"s_cbranch_scc1 K_OWN1 ; @if:lo=0\nK_OWN1B:\nds_read_b32 v49, v49 offset:{CNT}")
    for j in range(4):
        q = QD + 4 * j
        a(f"ds_read2_b32 {vr(q + 2, 2)}, v{q + 2} offset1:1")
    a(f"""
    s_waitcnt lgkmcnt(4)
    v_cmp_ne_u32 vcc, 0, v49
    s_mov_b32 s{sA}, {OOB}
    s_and_b32 s{sB2}, vcc_hi, 0xf00000
    s_cbranch_scc1 K_MASK
    K_MASKB:
    v_mov_b32 v{vIncl}, v49
    """)
    scan64(a, vIncl)
    a(f"""
    v_sub_u32 v49, v{vIncl}, v49
    v_readlane_b32 s{sTOT}, v{vIncl}, 63
    v_lshlrev_b32 v49, 4, v49
    v_writelane_b32 v49, s{sA}, 63
    """)
    for j in range(4):
        a(f"ds_bpermute_b32 v{AJ + j}, v{AJ + j}, v49")
    a(f"""
    s_cmp_gt_u32 s{sTOT}, {CAP}
    s_cbranch_scc1 K_SHRINK
    s_cmp_lg_u32 s{sWV}, 14
    s_cbranch_scc1 K_QE ; @if:w14=0
    global_load_dword v53, v59, s[{sW}:{sW + 1}] offset:-4096 sc1
    global_load_dword v54, v59, s[{sW}:{sW + 1}] sc1
    K_QE:
    s_add_u32 s{sA}, s{sTOT}, 15
    s_lshr_b32 s{sA}, s{sA}, 4
    s_lshr_b32 s{sB2}, s{sA}, 4
    s_and_b32 s{sA}, s{sA}, 15
    s_mul_i32 s{sTS}, s{sB2}, s{sWV}
    s_min_u32 s{sC}, s{sWV}, s{sA}
    s_add_u32 s{sTS}, s{sTS}, s{sC}
    s_cmp_lt_u32 s{sWV}, s{sA}
    s_addc_u32 s{sD}, s{sB2}, 0
    s_lshl_b32 s{sTS}, s{sTS}, 4
    s_lshl_b32 s{sD}, s{sD}, 4
    s_add_u32 s{sWT}, s{sTS}, s{sD}
    s_min_u32 s{sWEND}, s{sWT}, s{sTOT}
    """)
    for j in range(4):
        a(f"""
        s_waitcnt lgkmcnt(3)
        v_lshl_add_u32 v{AJ + j}, v{RK + j}, 4, v{AJ + j}
        ds_write_b128 v{AJ + j}, {vr(QD + 4 * j, 4)} offset:{LIST}
        """)
    a(f"""
    v_cmp_ge_u32 vcc, s{sTS}, v{vIncl}
    v_cmp_gt_u32 s[{sP2}:{sP2 + 1}], s{sWEND}, v{vIncl}
    v_add_u32 v24, 64, v0
    v_cmp_gt_u32 s[{sP3}:{sP3 + 1}], s{sD}, v0
    v_cmp_gt_u32 s[{sP4}:{sP4 + 1}], s{sD}, v24
    s_bcnt1_i32_b64 s{sN0}, vcc
    s_bcnt1_i32_b64 s{sNL}, s[{sP2}:{sP2 + 1}]
    s_mov_b32 s{sNW}, s{sN0}
    """)
    ptrs(a)
    a(f"""
    v_mov_b32 v24, {OOB}
    v_lshl_add_u32 v{vG0}, v0, 4, s{sA}
    v_add_u32 v{vG1}, 1024, v{vG0}
    v_cndmask_b32 v{vG0}, v24, v{vG0}, s[{sP3}:{sP3 + 1}]
    v_cndmask_b32 v{vG1}, v24, v{vG1}, s[{sP4}:{sP4 + 1}]
    s_cmp_eq_u32 s{sD}, 0
    s_cselect_b32 s{sNF}, {OOB >> 5}, s{sN0}
    s_cmp_eq_u32 s{sWV}, 0
    s_cselect_b32 s{sA}, 48, s{sNF}
    s_cselect_b32 s{sNF}, 64, s{sNF}
    s_lshl_b32 s{sA}, s{sA}, 4
    s_add_u32 s{sA}, s{sA}, s{sWV}
    s_lshl_b32 s{sA}, s{sA}, 1
    v_mov_b32 v25, s{sA}
    v_mov_b32 v26, 0x3f80
    s_mov_b64 exec, 1
    ds_write_b16 v25, v26 offset:{SEL}
    s_mov_b64 exec, -1
    s_cmp_ge_u32 s{sWV}, 13
    s_cbranch_scc1 K_PAD ; @if:lo=0
    K_PADB:
    {pr("B2a")}
    s_waitcnt vmcnt(0) lgkmcnt(0)
    {pr("B2")}
    s_barrier
    """)
    st(9)
    if nfin:
        a(qflag("K_QN") + "K_QN:")
    a(f"v_mov_b32 v{S}, 0\nds_read_b32 v17, v{S} offset:{RDY}")
    list_reads(a)
    a(f"""
    {dma(0)[0]}
    s_waitcnt lgkmcnt(3)
    v_readfirstlane_b32 s{sA}, v17
    v_mad_u32_u16 v{vVoff}, v{vSa}, s{s256}, v{vLc}
    s_cmp_lt_u32 s{sA}, s{sQW}
    s_cbranch_scc1 K_ND
    s_mov_b32 s{sQW}, 2 ; @set:qw=2
    {dma(0)[1]}
    """)
    for kc in range(1, 4):
        a(f"{dma(kc)[0]}\ns_nop 0\n{dma(kc)[1]}")
    st(5)
    a(f"""
    K_ND:
    s_cmp_lg_u32 s{sGH}, 0
    s_cbranch_scc1 K_GH3 ; @if:gh=0
    s_mov_b32 s{sGH}, 1 ; @set:gh=0
    s_cmp_ge_u32 s{sWV}, 8
    s_cbranch_scc1 K_GH1
    """)
    for ks in range(4):
        a(mf32(YA, WF + 4 * ks, HA_ + 4 * ks, ks == 0))
        a(mf32(YB, WF + 4 * ks, HB_ + 4 * ks, ks == 0))
    a("s_branch K_GH2\nK_GH1:")
    for ks in range(4):
        a(mf32(YA, WF + 4 * ks, HA_ + 4 * ks, ks == 0))
        a(mf32(YB, HB_ + 4 * ks, WF + 4 * ks, ks == 0))
    a(f"K_GH2:\ns_mov_b32 s{sP0}, {f32(-LOG2E / (1 + DELTA))}\ns_nop 6")
    for k in range(4):
        a(f"v_pk_mul_f32 {vr(Y + 2 * k, 2)}, {vr(Y + 2 * k, 2)}, s[{sP0}:{sP0 + 1}] op_sel_hi:[1,0]")
    a("K_GH3:")
    G, O, TH = 20, 28, 40
    a(f"""
    ds_read_b64 {vr(TH, 2)}, v{S} offset:{MISC + 8}
    ds_read_b128 {vr(G, 4)}, v{vG0}
    ds_read_b128 {vr(G + 4, 4)}, v{vG1}
    v_mov_b32 v{S + 1}, 0
    v_bfe_u32 v17, v0, 2, 2
    v_lshrrev_b32 v18, 4, v0
    v_cmp_eq_u32 vcc, v17, v18
    v_mov_b32 v18, 0x3f80
    v_mov_b32 v19, 0
    v_cndmask_b32 v18, 0, v18, vcc
    v_lshlrev_b32 v17, 4, v0
    v_lshlrev_b64 v[{B + 2}:{B + 3}], v17, v[18:19]
    """)
    for p in range(2):
        a(f"""
        s_waitcnt lgkmcnt(1)
        v_lshlrev_b32_sdwa v{O + 4 * p}, 2, v{G + 4 * p} {SD} src1_sel:WORD_1
        ds_read_b128 {vr(O + 4 * p, 4)}, v{O + 4 * p} offset:{OWN}
        """)
    for u in range(8):
        a(zero4(AC + 4 * u))
        if u < 3:
            a(f"v_mov_b64 {vr(B + 6 * u + 8, 2)}, {vr(B + 2, 2)}")
    for p in range(2):
        g, o = G + 4 * p, O + 4 * p
        a(f"""
        v_lshlrev_b32 v38, 4, v{g}
        v_alignbit_b32 v37, v{g + 3}, v{g + 2}, v38
        v_lshrrev_b32_sdwa v{g + 3}, v38, v{g + 3} dst_sel:WORD_1 dst_unused:UNUSED_PAD src0_sel:DWORD src1_sel:DWORD
        v_lshlrev_b32 v36, 16, v37
        v_and_b32 v37, 0xffff0000, v37
        s_waitcnt lgkmcnt(1)
        v_pk_add_f32 {vr(o, 2)}, {vr(o, 2)}, v[36:37] neg_lo:[0,1] neg_hi:[0,1]
        v_sub_f32 v{o + 2}, v{o + 2}, v{g + 3}
        v_mul_f32 v{o + 3}, v{o}, v{o}
        v_fmac_f32 v{o + 3}, v{o + 1}, v{o + 1}
        v_fmac_f32 v{o + 3}, v{o + 2}, v{o + 2}
        v_cvt_pk_bf16_f32 v{g + 2}, 1.0, v{o}
        v_mul_f32 v{o + 3}, {f32(-LOG2E)}, v{o + 3}
        v_cvt_pk_bf16_f32 v{g + 3}, v{o + 1}, v{o + 2}
        v_cmp_nlt_f32 vcc, abs(v{g + 1}), v{TH + 1}
        v_cmp_nlt_f32 s[{sP0}:{sP0 + 1}], abs(v{o + 3}), v{TH}
        v_cvt_pk_bf16_f32 v{g + 1}, v{o + 3}, v{g + 1}
        ds_write_b128 v{vG0 + p}, {vr(g, 4)} ; nobar
        s_or_b64 vcc, vcc, s[{sP0}:{sP0 + 1}]
        s_and_b64 s[{sP3 + 2 * p}:{sP3 + 2 * p + 1}], s[{sP3 + 2 * p}:{sP3 + 2 * p + 1}], vcc
        """)
    a(f"""
    s_or_b64 s[{sP3}:{sP3 + 1}], s[{sP3}:{sP3 + 1}], s[{sP4}:{sP4 + 1}]
    s_cselect_b32 s{sMODE}, 1, 0
    """)
    a(f"""
    K_XFR:
    s_cmp_ge_u32 s{sTS}, s{sWT}
    v_mad_u32_u16 v{vVoff}, v{vSa}, s{s256}, v{vLc}
    s_cbranch_scc1 K_QW ; @if:nt=1
    v_lshrrev_b32 v17, 2, v0
    v_and_b32 v18, 3, v0
    v_add_u32 v19, s{sN0}, v17
    v_mul_u32_u24 v19, 288, v19
    v_add_u32 v19, {PT}, v19
    v_lshlrev_b32 v17, 8, v17
    v_add_u32 v17, {WD - 14 * 256}, v17
    v_cndmask_b32 v19, v19, v17, {g3}
    s_mov_b32 vcc_lo, 0
    s_mov_b32 vcc_hi, 0x00ff0000
    v_mov_b32 v17, {OOB}
    v_lshl_add_u32 v19, v18, 3, v19
    v_cndmask_b32 v19, v19, v17, vcc
    """)
    for u in range(8):
        a(f"ds_read_b64_tr_b16 {vr(B + 6 * (u // 2) + 4 * (u & 1), 2)}, v19 offset:{32 * u}")
    a(f"""
    s_lshl_b32 s{sA}, s{sN0}, 3
    s_sub_u32 s{sA}, {OH + 512}, s{sA}
    v_and_b32 v19, 48, v0
    v_lshlrev_b32 v19, 1, v19
    v_sub_u32 v19, s{sA}, v19
    v_cndmask_b32 v{vBX}, v19, v{vEa}, {g3}
    v_mad_u32_u16 v{vXa}, v{vXa}, v{vMul}, v{vBX} op_sel:[1,0,0,0]
    ds_read_b64 {vr(A, 2)}, v{vXa}
    ds_read_b64 {vr(A + 6, 2)}, v{vXa}
    ds_read_b64 {vr(A + 12, 2)}, v{vXa}
    v_subrev_u32 v18, s{sNW}, v18
    v_and_b32 v18, 3, v18
    v_add_u32 v18, s{sNW}, v18
    v_mul_u32_u24 v18, {OOB}, v18
    v_sub_u32 v18, v{vDa}, v18
    v_add_u32 v{vBS}, 8, v18
    v_mad_u32_u16 v{vSa}, v{vSa}, s{sC000}, v{vBS} op_sel:[1,0,0,0]
    {zero4(ZE + 4)}
    {zero4(L)}
    v_lshl_add_u64 v[{vBX}:{vBS}], v[{vBX}:{vBS}], 0, v[{vIX}:{vIS}]
    v_add_u32 v{vDa}, 512, v{vDa}
    v_add_u32 v{vEa}, 256, v{vEa}
    """)
    window(a)
    a(f"""
    K_QW:
    {dma(0)[0]}
    """)
    st(10)
    a(f"""
    s_cmp_eq_u32 s{sQW}, 2
    s_cbranch_scc1 K_DM2 ; @is:qw=2
    s_cmp_eq_u32 s{sQW}, 0
    s_cbranch_scc1 K_DMA ; @is:qw=0
    """)
    a(f"""
    s_cmp_eq_u32 s{sWV}, 14
    s_cbranch_scc1 K_QP ; @if:w14=1
    K_QB:
    s_barrier
    """)
    st(5)
    a(f"K_DMA:\n{dma(0)[1]}")
    for kc in range(1, 4):
        a(f"{dma(kc)[0]}\ns_nop 0\n{dma(kc)[1]}")
    a("K_DM2:")
    st(11)
    a(f"""
    s_mov_b32 s{sQW}, 0 ; @set:qw=0
    s_cmp_ge_u32 s{sTS}, s{sWT}
    s_cbranch_scc1 K_NT0 ; @if:nt=1
    ds_read_b32 v17, v{S} offset:{MISC + 4}
    v_mad_u32_u16 v{vVoff}, v{vD}, s{s256}, v{vLc}
    {dma(0)[0]}
    s_waitcnt vmcnt(3)
    {rdq(0)}
    s_waitcnt vmcnt(2)
    {rdq(1)}
    s_waitcnt lgkmcnt(1)
    {Kmf(0, ZE)}
    {dma(0)[1]}
    v_readfirstlane_b32 s{sA}, v17
    s_or_b32 s{sMODE}, s{sMODE}, s{sA} ; @set:mode=x
    """)
    st(12)
    a(f"""
    s_waitcnt lgkmcnt(0)
    K_EV2:
    s_add_u32 s{sA}, s{sTS}, 32
    s_cmp_lt_u32 s{sA}, s{sWT}
    s_cbranch_scc1 K_GO
    v_mov_b32 v{vDa}, v{vFa}
    K_GO:
    s_cmp_lg_u32 s{sMODE}, 0
    s_cbranch_scc1 K_LOOPF ; @if:mode=1
    K_LOOP:
    {loop_body(cfg.get('pat', PAT), cfg.get('dord', DORD), True)}
    s_cbranch_scc1 K_LOOP
    K_EV:
    s_add_u32 s{sA}, s{sTS}, 16
    s_cmp_lt_u32 s{sEW}, s{sA}
    s_cbranch_scc1 K_WIN
    s_cmp_lt_u32 s{sTS}, s{sWT}
    s_cbranch_scc1 K_EV2
    """)
    st(13)
    WB = [A + 2, A + 8, B + 16, B + 20]
    HA, HB, HR = 60, 64, 68

    def exit_loads(tag):
        a(f"""
        s_lshr_b32 s{sD}, s{sWV}, 3
        s_and_b32 s{sC}, s{sWV}, 7
        s_lshl_b32 s{sC}, s{sC}, 5
        s_lshl_b32 s{sA}, s{sD}, 12
        s_add_u32 s{sA}, s{sA}, s{sC}
        v_and_b32 v5, 15, v0
        v_and_b32 v6, 48, v0
        v_lshrrev_b32 v8, 1, v6
        v_lshl_add_u32 v17, v5, 8, v8
        v_lshl_add_u32 v10, v5, 1, s{sC}
        s_add_u32 s{sA}, s{sA}, 4096
        s_movk_i32 s{sB2}, {48 * 256}
        s_cmp_lg_u32 s{sD}, 0
        buffer_load_dwordx2 {vr(HR, 2)}, v17, s[{sH}:{sH + 3}], s{sA} offen
        s_cbranch_scc1 {tag}1
        buffer_load_dwordx2 {vr(HR + 2, 2)}, v17, s[{sH}:{sH + 3}], s{sC} offen
        s_branch {tag}2
        {tag}1:
        buffer_load_ushort v{HR + 2}, v10, s[{sH}:{sH + 3}], s{sB2} offen
        {tag}2:
        """)

    exit_loads("K_XA")
    F = L
    a(f"""
    s_mov_b32 s{sLAST}, 1 ; @set:last=1
    s_movk_i32 s{sNWN}, 64
    K_FLUSH:
    v_and_b32 v17, 15, v0
    v_lshlrev_b32 v18, 5, v17
    ds_read_b128 {vr(T, 4)}, v18 offset:{WX}
    s_waitcnt lgkmcnt(1)
    {Ymf(6, ZE + 4)}
    {Ymf(7, L)}
    ds_read_b128 {vr(ZL, 4)}, v18 offset:{WX + 16}
    v_lshrrev_b32 v18, 4, v0
    v_subrev_u32 v18, s{sNW}, v18
    v_and_b32 v18, 3, v18
    v_add_u32 v18, s{sNW}, v18
    s_add_u32 s{sA}, s{sNL}, 1
    s_min_u32 s{sA}, s{sA}, s{sNWN}
    s_add_u32 s{sB2}, s{sWV}, 48
    v_cmp_eq_u32 vcc, s{sNF}, v18
    v_cmp_gt_u32 s[{sP0}:{sP0 + 1}], s{sA}, v18
    v_cmp_gt_u32 s[{sP1}:{sP1 + 1}], s{sNWN}, v18
    v_mov_b32 v19, s{sB2}
    v_cndmask_b32 v19, v18, v19, vcc
    v_mul_u32_u24 v19, {MST}, v19
    v_lshl_add_u32 v19, v17, 4, v19
    v_lshl_add_u32 v18, v18, 4, v17
    """)
    for k in range(4):
        a(f"v_cvt_pk_bf16_f32 v{ZE + 4 + k}, v{AC + 8 * k}, v{AC + 8 * k + 4}")
    a(f"""
    s_mov_b64 exec, s[{sP0}:{sP0 + 1}]
    ds_write_b128 v19, {vr(ZE + 4, 4)} offset:{MR}
    s_mov_b64 exec, -1
    s_waitcnt lgkmcnt(1)
    """)
    for u in range(8):
        w = (T if u < 4 else ZL) + (u & 3)
        wp, hi = w & ~1, w & 1
        if u == 0:
            a(f"v_pk_mul_f32 {vr(F + 2, 2)}, {vr(AC + 2, 2)}, {vr(wp, 2)} op_sel_hi:[1,0]")
            a(f"v_mul_f32 v{F + 1}, v{AC + 1}, v{w}")
        else:
            a(f"v_pk_fma_f32 {vr(F + 2, 2)}, {vr(AC + 4 * u + 2, 2)}, {vr(wp, 2)}, {vr(F + 2, 2)} op_sel:[0,{hi},0] op_sel_hi:[1,{hi},1]")
            a(f"v_fmac_f32 v{F + 1}, v{AC + 4 * u + 1}, v{w}")
    a(f"""
    s_and_b32 s{sP0}, s{sP0}, 0x01110111
    v_add_f32_dpp v{F + 2}, v{F + 2}, v{F + 2} row_ror:8 row_mask:0xf bank_mask:0xf
    v_add_f32_dpp v{F + 1}, v{F + 1}, v{F + 1} row_ror:8 row_mask:0xf bank_mask:0x3
    s_and_b32 s{sP0 + 1}, s{sP0 + 1}, 0x01110111
    v_add_f32_dpp v{F + 2}, v{F + 2}, v{F + 2} row_shr:4 row_mask:0xf bank_mask:0x2
    v_add_f32_dpp v{F + 1}, v{F + 3}, v{F + 3} row_ror:8 row_mask:0xf bank_mask:0xc
    s_nop 1
    v_add_f32_dpp v{F + 2}, v{F + 1}, v{F + 1} row_shl:4 row_mask:0xf bank_mask:0x5
    s_nop 1
    v_add_f32_dpp v{F + 2}, v{F + 2}, v{F + 2} quad_perm:[1,0,3,2] row_mask:0xf bank_mask:0xf
    s_nop 1
    v_add_f32_dpp v{F + 2}, v{F + 2}, v{F + 2} quad_perm:[2,3,0,1] row_mask:0xf bank_mask:0xf
    s_mov_b64 exec, s[{sP0}:{sP0 + 1}]
    ds_add_f32 v18, v{F + 2} offset:{PAC}
    s_mov_b64 exec, -1
    s_cmp_eq_u32 s{sLAST}, 0
    s_cbranch_scc1 K_SLIDE ; @if:last=0
    s_waitcnt vmcnt(3)
    K_POST:
    {rdq(2, WB[2])}
    {rdq(3, WB[3])}
    """)
    vMa, vM3, vSe, vOa = 1, 2, 3, 4
    Z, ZB, SA, SB, MB = 36, 40, 74, 56, 20
    a(f"""
    s_mul_i32 s{sA}, s{sD}, {16 * MST}
    v_mul_u32_u24 v{vM3}, {MST}, v5
    v_add_u32 v{vM3}, v{vM3}, v6
    v_add_u32 v{vMa}, s{sA}, v{vM3}
    s_lshl_b32 s{sA}, s{sD}, 9
    v_lshl_add_u32 v11, v5, 5, v8
    v_add_u32 v{vSe}, s{sA}, v11
    s_mul_i32 s{sA}, s{sD}, 1536
    v_add_u32 v11, s{sA}, v11
    s_mul_i32 s{sA}, s{sD}, {16 * OST}
    s_add_u32 s{sA}, s{sA}, s{sC}
    s_add_u32 s{sA}, s{sA}, {OT}
    v_mul_u32_u24 v{vOa}, {OST}, v5
    v_add3_u32 v{vOa}, v{vOa}, v8, s{sA}
    v_add_u32 v10, {OT + 48 * OST}, v10
    s_mov_b32 s{sP0}, {f32(1 + DELTA)}
    s_mov_b32 s{sP0 + 1}, {f32(-LN2)}
    s_cmp_lg_u32 s{sD}, 0
    s_waitcnt vmcnt(2) lgkmcnt(0)
    s_barrier
    """)
    st(14)
    for ks in range(4):
        a(f"ds_read_b128 {vr(AC + 4 * ks, 4)}, v{vM3} offset:{MR + 48 * MST + 64 * ks}")
    for ks in range(4):
        a(f"ds_read_b128 {vr(AC + 16 + 4 * ks, 4)}, v{vMa} offset:{MR + 16 * MST + 64 * ks}")
    a(f"""
    ds_read_b64 {vr(SA, 2)}, v{vSe} offset:{SEL + 512}
    ds_read_b64 {vr(SB, 2)}, v11 offset:{SEL}
    s_cbranch_scc1 K_E1
    """)
    mf16 = lambda d, x, y: f"v_mfma_f32_16x16x16_bf16 {vr(d, 4)}, {vr(x, 2)}, {vr(y, 2)}, {vr(d, 4)}"

    unpack = lambda n: "\n".join(f"v_lshlrev_b32 v{HA + 2 * k}, 16, v{HR + k}\nv_and_b32 v{HA + 2 * k + 1}, 0xffff0000, v{HR + k}" for k in range(n))

    def gemm_a(extra):
        for ks in range(4):
            a(f"s_waitcnt lgkmcnt({9 + extra - ks})\n" + mf32(Z, AC + 4 * ks, WB[ks], ks == 0))
        for ks in range(4):
            a(f"s_waitcnt lgkmcnt({5 + extra - ks})\n" + mf32(YA, WB[ks], AC + 16 + 4 * ks))
        a(f"v_cvt_pk_bf16_f32 v{ZB}, v{Z}, v{Z + 1}\nv_cvt_pk_bf16_f32 v{ZB + 1}, v{Z + 2}, v{Z + 3}")

    for ks in range(4):
        a(f"ds_read_b128 {vr(MB + 4 * ks, 4)}, v{vM3} offset:{MR + 64 * ks}")
    gemm_a(4)
    for ks in range(4):
        a(f"s_waitcnt lgkmcnt({3 - ks})\n" + mf32(YB, WB[ks], MB + 4 * ks))
        if ks == 2:
            a(mf16(YA, ZB, SA))
    a(f"""
    s_cmp_lg_u32 s{sRARE}, 0
    s_waitcnt vmcnt(0)
    {unpack(4)}
    {mf16(YB, ZB, SB)}
    s_cbranch_scc1 K_NEXT
    K_S0:
    """)
    silu4(a, YA, HA, 20)
    a(f"ds_write_b64 v{vOa}, {vr(YA, 2)} offset:{16 * OST}")
    silu4(a, YB, HB, 20)
    a(f"""
    ds_write_b64 v{vOa}, {vr(YB, 2)}
    K_OUT:
    s_lshl_b32 s{sC}, s{sNB}, 8
    s_add_u32 s{sO}, s20, s{sC}
    s_addc_u32 s{sO + 1}, s21, 0
    s_lshl_b32 s{sO + 2}, s{sNV}, 8
    s_mov_b32 s{sO + 3}, 0x20000
    s_lshl_b32 s{sA}, s{sWV}, 10
    v_lshl_add_u32 v7, v0, 4, s{sA}
    s_lshl_b32 s{sA}, s{sWV}, 6
    s_add_u32 s{sA}, s{sA}, {OT}
    v_add3_u32 v8, v7, v6, s{sA}
    s_cmp_ge_u32 s{sWV}, 13
    s_waitcnt lgkmcnt(0)
    s_barrier
    s_cbranch_scc1 K_FIN
    """)
    a(f"""
    ds_read_b128 v[20:23], v8
    s_waitcnt lgkmcnt(0)
    buffer_store_dwordx4 v[20:23], v7, s[{sO}:{sO + 3}], 0 offen sc1
    K_FIN:
    """)
    stamp_out(a, cfg, sW)
    a("K_END:\ns_endpgm")

    a("K_E1:")
    gemm_a(0)
    a(f"""
    s_waitcnt lgkmcnt(0)
    s_cmp_lg_u32 s{sRARE}, 0
    {mf16(YB, SB, ZB)}
    s_waitcnt vmcnt(0)
    {unpack(2)}
    {mf16(YA, ZB, SA)}
    v_lshlrev_b32 v{HB}, 16, v{HR + 2}
    s_cbranch_scc1 K_NEXT
    K_S1:
    s_sub_u32 s{sA}, s{sWV}, 13
    s_lshl_b32 s{sA}, s{sA}, 6
    v_add_u32 v11, s{sA}, v0
    v_mul_u32_u24 v12, 171, v11
    v_lshrrev_b32 v12, 9, v12
    v_add_lshl_u32 v13, v11, v12, 2
    ds_read_b32 v14, v13 offset:{PAC}
    ds_read_b32 v15, v13 offset:{OWN}
    """)
    silu4(a, YA, HA, 20)
    a(f"""
    ds_write_b64 v{vOa}, {vr(YA, 2)} offset:{16 * OST}
    v_mul_f32 v{YB}, s{sP0}, v{YB}
    v_exp_f32 v20, v{YB}
    v_mul_f32 v{YB}, s{sP0 + 1}, v{YB}
    v_add_f32 v20, 1.0, v20
    v_rcp_f32 v20, v20
    v_cmp_gt_u32 vcc, s{sNV}, v12
    v_fmac_f32 v{HB}, v20, v{YB}
    v_cvt_pk_bf16_f32 v{HB}, v{HB}, v{HB}
    s_mov_b64 exec, 0xffff
    ds_write_b16 v10, v{HB}
    s_mov_b64 exec, -1
    s_cmp_lt_u32 s{sWV}, 13
    s_cbranch_scc1 K_OUT
    s_mul_i32 s{sA}, s{sNB}, 6
    s_add_u32 s{sA}, s{sA}, {N * 256}
    v_lshl_add_u32 v11, v11, 1, s{sA}
    s_waitcnt lgkmcnt(2)
    v_add_f32 v14, v14, v15
    v_cvt_pk_bf16_f32 v14, v14, v14
    s_mov_b64 exec, vcc
    global_store_short v11, v14, s[20:21] sc1
    s_mov_b64 exec, -1
    s_branch K_OUT
    """)
    a(f"""
    K_NP:
    s_cmp_lt_u32 s2, 128
    s_cbranch_scc1 K_AUX ; @if:q=0
    s_mov_b32 s{sP1}, {sum(int(c) << (4 * w) for w, c in enumerate(sched[0][:8]))}
    s_mov_b32 s{sP1 + 1}, {sum(int(c) << (4 * w) for w, c in enumerate(sched[0][8:] + "444"))}
    s_mov_b32 s{sP2}, {sum(int(c) << (4 * w) for w, c in enumerate(sched[1][:8]))}
    s_mov_b32 s{sP2 + 1}, {sum(int(c) << (4 * w) for w, c in enumerate(sched[1][8:] + "444"))}
    s_lshl_b32 s{sA}, s{sWV}, 2
    s_lshr_b64 s[{sP1}:{sP1 + 1}], s[{sP1}:{sP1 + 1}], s{sA}
    s_lshr_b64 s[{sP2}:{sP2 + 1}], s[{sP2}:{sP2 + 1}], s{sA}
    s_and_b32 s{sP1}, s{sP1}, 7
    s_and_b32 s{sP2}, s{sP2}, 7
    s_add_u32 s{sP2}, s{sP2}, 8
    s_bitset1_b32 s{sQS}, s{sP1}
    s_bitset1_b32 s{sQS}, s{sP2}
    s_lshl_b32 s{sA}, s{sNB}, 8
    v_cmp_gt_u32 vcc, {NB * 16}, v{vT}
    v_add_u32 v5, s{sA}, v19
    v_subrev_u32 v4, {16 * NB * 256}, v5
    v_and_b32 v17, 0x3f0, v{vT}
    v_add_u32 v17, v17, v19
    v_cndmask_b32 v{vQo}, 2.0, v4, vcc
    v_cndmask_b32 v{vQo + 1}, 2.0, v5, vcc
    s_waitcnt vmcnt(0) lgkmcnt(0)
    s_barrier
    """)
    st(2)
    a(wdma(14, WS2))
    gemm1(WF, GC)
    for ks in range(4):
        a(f"v_xor_b32 v{HA_ + 4 * ks}, {64 * ks}, v{vHa}\nv_xor_b32 v{HB_ + 4 * ks}, {64 * ks}, v{vHa + 1}")
    scale_pack(a, GC, 24)
    a(tile_write(24, vQa, QTA))
    big_test(a, GC, "K_FQ")
    if cfg.get("pe"):
        a(f"""
        s_mov_b64 s[{sT}:{sT + 1}], s[6:7]
        s_lshl_b32 s{sB2}, s{sWV}, 10
        s_sub_u32 m0, m0, {WS2 - POSL}
        """)
    a(f"""
    s_bitcmp1_b32 s{sQS}, 0
    s_cselect_b64 vcc, -1, 0
    s_cmp_lg_u32 s{sWV}, 14
    v_cndmask_b32 v2, 2.0, v{vQo}, vcc
    v_cndmask_b32 v{vQo}, v{vQo}, 2.0, vcc
    s_waitcnt vmcnt(0) lgkmcnt(0)
    s_barrier
    """)
    st(3)
    pe = f"""
    buffer_load_dwordx4 v19, s[{sT}:{sT + 3}], s{sB2} offen lds
    buffer_load_dwordx4 v19, s[{sT}:{sT + 3}], s{sB2} offen offset:1024 lds
    """
    a(f"""
    {pe if cfg.get("pe") == 1 else ""}
    ds_read_b128 {vr(QR, 4)}, v17 offset:{QTA}
    {hrd(0)}
    {hrd(1)}
    s_cbranch_scc1 K_NZ
    global_load_dword v{vZ + 1}, v{vZ}, s[22:23] sc1
    K_NZ:
    {hrd(2)}
    {hrd(3)}
    s_waitcnt lgkmcnt(7)
    {qstore(0).replace(f"v{vQo},", "v2,")}
    {pe if cfg.get("pe") == 2 else ""}
    """)
    for ks in range(4):
        a(trd(TF, ks, vWa, WS2 - WS1))
    for ks in range(4):
        a(f"""
        s_waitcnt lgkmcnt({15 - 2 * ks})
        {mf32(GC, WF + 4 * ks, HA_ + 4 * ks, ks == 0)}
        s_waitcnt lgkmcnt({14 - 2 * ks})
        {mf32(GC + 4, WF + 4 * ks, HB_ + 4 * ks, ks == 0)}
        """)
    for ks in range(4):
        a(f"""
        s_waitcnt lgkmcnt({6 - 2 * ks})
        {mf32(Y, TF + 4 * ks, HA_ + 4 * ks, ks == 0)}
        {mf32(Y + 4, TF + 4 * ks, HB_ + 4 * ks, ks == 0)}
        """)
    scale_pack(a, GC, 4)
    a(tile_write(4, vQa, QTB))
    big_test(a, GC, "K_FR")
    scale_pack(a, Y, 40)
    big_test(a, Y, "K_FS")
    a(f"""
    s_waitcnt vmcnt({3 if cfg.get("pe") == 2 else 1})
    v_cmp_eq_u32 vcc, 0, v{vZ + 1}
    s_cbranch_vccnz K_ZW
    K_X3:
    s_waitcnt lgkmcnt(0)
    {pr("S")}
    s_barrier
    ds_read_b128 {vr(QR + 4, 4)}, v17 offset:{QTB}
    {qst(1)}
    s_branch K_F
    K_ZW:
    """)
    poll(a, "K_ZP", f"global_load_dword v{vZ + 1}, v{vZ}, s[22:23] sc1", "", vZ + 1)
    a(f"""
    s_cmp_ge_u32 s2, 128
    s_cbranch_scc1 K_X3 ; @if:q=1
    s_branch K_ZB
    K_AUX:
    s_waitcnt vmcnt(0) lgkmcnt(0)
    s_barrier
    s_branch K_PH
    K_WJ:
    s_cmp_ge_u32 s2, 64
    s_cbranch_scc1 K_CH ; @if:wj=0
    s_and_b32 s{sC}, s2, 28
    s_and_b32 s{sA}, s2, 3
    s_lshl_b32 s{sC}, s{sC}, 3
    v_lshl_add_u32 v24, v15, 1, s{sC}
    s_cmp_ge_u32 s2, 32
    s_cbranch_scc1 K_WJ1
    s_lshl_b32 s{sC}, s{sA}, 10
    s_add_u32 s{sC}, s{sC}, {32768 + 4096}
    v_lshl_add_u32 v24, v14, 8, v24
    v_add_u32 v24, s{sC}, v24
    """)
    for j in range(8):
        a(f"global_load_ushort v{WF + j}, v24, s[18:19] offset:{0 if j & 1 else -4096}")
        if j & 1 and j < 7:
            a("v_add_u32 v24, 0x2000, v24")
    a(f"""
    s_branch K_CH
    K_WJ1:
    s_lshl_b32 s{sC}, s{sA}, 13
    v_lshl_add_u32 v24, v14, 11, v24
    v_add_u32 v24, s{sC}, v24
    """)
    for j in range(8):
        a(f"global_load_ushort v{WF + j}, v24, s[18:19] offset:{256 * j}")
    a(f"""
    s_branch K_CH
    K_ZF:
    s_mov_b32 s{sA}, {WS_SYNC + 4096}
    v_lshl_add_u32 v2, v0, 6, s{sA}
    v_add_u32 v3, 0x2000, v2
    v_mov_b32 v4, 0
    v_mov_b32 v5, 1
    s_waitcnt lgkmcnt(0)
    global_store_dword v2, v4, s[{sW}:{sW + 1}] offset:-4096 sc1
    global_store_dword v2, v4, s[{sW}:{sW + 1}] sc1
    global_store_dword v3, v4, s[{sW}:{sW + 1}] offset:-4096 sc1
    global_store_dword v3, v4, s[{sW}:{sW + 1}] sc1
    s_waitcnt vmcnt(0)
    s_mov_b64 exec, 1
    global_store_dword v4, v5, s[22:23] sc1
    s_mov_b64 exec, -1
    s_branch K_LD
    K_PLD:
    s_lshl_b32 s{sA}, s{sWV}, 8
    s_or_b32 s{sA}, s{sA}, s2
    s_cmp_lt_u32 s{sA}, {13 * 256 + 64}
    s_cbranch_scc1 K_PL2 ; @if:wj=1
    s_cmp_eq_u32 s{sWV}, 14
    s_waitcnt vmcnt(0)
    s_cbranch_scc0 K_PB ; @if:w14=0
    global_load_dword v{vZ + 1}, v{vZ}, s[22:23] sc1
    s_branch K_PB
    K_PL2:
    s_and_b32 s{sA}, s2, 3
    s_mul_i32 s{sA}, s{sA}, {64 - 1024}
    v_lshl_add_u32 v12, v15, 8, s{sA}
    v_lshl_add_u32 v12, v14, 4, v12
    v_lshlrev_b32 v13, 4, v0
    s_cmp_ge_u32 s2, 32
    s_cselect_b64 vcc, -1, 0
    s_lshl_b32 s{sA}, s2, 10
    s_add_u32 s{sA}, s{sA}, {QROWS * 256}
    v_cndmask_b32 v12, v12, v13, vcc
    v_add_u32 v12, s{sA}, v12
    s_waitcnt vmcnt(0)
    """)
    for k in range(4):
        a(f"v_lshl_or_b32 v{WF + k}, v{WF + 2 * k + 1}, 16, v{WF + 2 * k}")
    a(f"""
    global_store_dwordx4 v12, {vr(WF, 4)}, s[{sW}:{sW + 1}] sc1
    s_branch K_PB
    K_POV:
    ds_read_b128 v[20:23], v{LA} offset:128
    ds_read_b128 v[24:27], v{LA} offset:{128 * 160 + 128}
    s_mul_i32 s{sB2}, s2, -96
    s_add_u32 s{sB2}, s{sB2}, 16000
    s_mov_b32 s{sP1}, 0x03030303
    s_mov_b32 s{sP1 + 1}, 0x03030303
    v_add_u32 v28, s{sB2}, v{GA}
    v_add_u32 v29, s{sB2}, v{GA + 1}
    s_waitcnt lgkmcnt(0)
    """)
    for i in range(2):
        a(f"""
        v_cmp_lt_u32 vcc, 24, v{CA + i}
        s_and_b64 exec, vcc, s[{sP1}:{sP1 + 1}]
        s_cbranch_execz K_OV{i}
        global_store_dwordx4 v{28 + i}, {vr(20 + 4 * i, 4)}, s[{sP3}:{sP3 + 1}] sc1
        v_cmpx_lt_u32 vcc, 32, v{CA + i}
        """)
        for k in range(4):
            a(f"v_mov_b32 v{4 + 4 * i + k}, -1")
        a(f"K_OV{i}:\ns_mov_b64 exec, -1")
    a(f"""
    s_branch K_PST
    K_FQ:
    v_mov_b32 v36, {MISC}
    v_mov_b32 v37, 0x10000
    ds_write_b32 v36, v37
    s_branch K_FQB
    K_FR:
    v_mov_b32 v36, {MISC}
    v_mov_b32 v37, 0x10000
    ds_write_b32 v36, v37
    s_branch K_FRB
    K_FP:
    v_mov_b32 v36, {MISC + 4}
    ds_write_b32 v36, v36
    s_branch K_FPB
    K_FS:
    v_mov_b32 v36, {MISC + 4}
    ds_write_b32 v36, v36
    s_branch K_FSB
    K_JOB:
    s_cmp_ge_u32 s{sWV}, 14
    s_cbranch_scc1 K_PD_E
    s_cmp_lt_u32 s{sWV}, 13
    s_cbranch_scc1 K_JB1 ; @if:lo=1
    v_cmp_eq_u32 vcc, 32, v0
    v_cmp_eq_u32 s[{sP1}:{sP1 + 1}], 33, v0
    v_mov_b32 v12, 0x3f80
    v_lshlrev_b32 v4, 4, v0
    v_cndmask_b32 v8, 0, v12, vcc
    v_cndmask_b32 v9, 0, v12, s[{sP1}:{sP1 + 1}]
    v_lshlrev_b32 v10, 16, v8
    v_lshlrev_b32 v11, 16, v9
    ds_write_b128 v4, v[8:11] offset:{OH}
    v_lshlrev_b32 v4, 3, v0
    v_lshlrev_b32 v12, 1, v0
    v_add_u32 v12, {QROWS}, v12
    v_add_u32 v13, 1, v12
    ds_write_b64 v4, v[12:13] offset:{FAKE}
    s_branch K_PD_E
    K_JB1:
    s_lshl_b32 s{sA}, s{sWV}, 8
    s_add_u32 s{sA}, s{sA}, {65536 - 2560}
    s_add_u32 s{sP1}, s14, s{sA}
    s_addc_u32 s{sP1 + 1}, s15, 0
    s_cmp_eq_u32 s{sWV}, 12
    s_cselect_b64 s[{sP1}:{sP1 + 1}], s[16:17], s[{sP1}:{sP1 + 1}]
    v_lshlrev_b32 v4, 2, v0
    global_load_dword v10, v4, s[{sP1}:{sP1 + 1}]
    s_branch K_PD_E
    K_JB2:
    s_cmp_ge_u32 s{sWV}, 13
    s_cbranch_scc1 K_JB4 ; @if:lo=0
    s_cmp_eq_u32 s{sWV}, 12
    v_lshrrev_b32 v8, 3, v0
    s_waitcnt vmcnt(0)
    v_and_b32 v11, 0xffff0000, v10
    v_lshlrev_b32 v10, 16, v10
    s_cbranch_scc1 K_JB3
    s_cmp_eq_u32 s{sWV}, 10
    s_cselect_b32 s{sA}, 1.0, {f32(-LOG2E)}
    s_mov_b32 s{sB2}, {f32(15.0)}
    s_cmov_b32 s{sB2}, {f32(32.0)}
    v_mul_f32 v10, s{sA}, v10
    v_mul_f32 v11, s{sA}, v11
    v_and_b32 v12, 0x7fffffff, v10
    v_and_b32 v13, 0x7fffffff, v11
    v_max_u32 v12, v12, v13
    v_and_b32 v8, 1, v8
    v_mul_i32_i24 v8, -101, v8
    v_ldexp_f32 v10, v10, v8
    v_ldexp_f32 v11, v11, v8
    v_cvt_pk_bf16_f32 v10, v10, v11
    s_lshl_b32 s{sA}, s{sWV}, 8
    v_add_u32 v4, s{sA}, v4
    ds_write_b32 v4, v10 offset:{WD - 2560}
    """)
    scan64(a, 12, "v_max_u32")
    a(f"""
    s_lshl_b32 s{sA}, s{sWV}, 2
    v_rcp_f32 v12, v12
    v_mov_b32 v4, s{sA}
    v_mul_f32 v12, s{sB2}, v12
    s_mov_b32 exec_lo, 0
    s_brev_b32 exec_hi, 1
    ds_write_b32 v4, v12 offset:{MISC + 8 - 40}
    s_mov_b64 exec, -1
    s_branch K_G0
    K_JB3:
    v_mul_f32 v10, {f32(-LN2 * (1 + DELTA))}, v10
    v_mul_f32 v11, {f32(-LN2 * (1 + DELTA))}, v11
    v_and_b32 v4, 7, v0
    v_lshlrev_b32 v4, 6, v4
    v_lshl_add_u32 v4, v8, 2, v4
    ds_write_b32 v4, v10 offset:{WX}
    ds_write_b32 v4, v11 offset:{WX + 32}
    s_branch K_G0
    K_JB4:
    v_mov_b32 v57, 0
    ds_read_b32 v57, v57 offset:{MISC}
    s_lshl_b32 s{sA}, s2, 6
    s_add_u32 s{sA}, s{sA}, {FP}
    v_mov_b32 v56, s{sA}
    s_cmp_eq_u32 s{sWV}, 14
    s_waitcnt lgkmcnt(0)
    v_or_b32 v57, 1, v57
    s_cbranch_scc0 K_G0 ; @if:w14=0
    """)
    poll128(a, "K_PP", FP, 8)
    a(f"""
    s_branch K_G0
    K_OWN1:
    s_cmp_eq_u32 s{sWV}, 13
    s_cbranch_scc1 K_OWN0 ; @if:w13=1
    {"" if nfin or qg else qflag("K_OWN1B")}
    s_branch K_OWN1B
    K_OWN0:
    v_add_u32 v50, s{sNB}, v0
    v_mad_u32_u24 v50, v50, 6, v48
    v_cmp_gt_u32 vcc, s{sNV}, v0
    v_mov_b32 v51, {OOB}
    v_mov_b32 v52, 0
    v_mov_b32 v53, 0
    v_mov_b32 v54, 0
    v_mov_b32 v55, 0
    v_cndmask_b32 v50, v51, v50, vcc
    ds_read_u16_d16_hi v52, v50
    ds_read_u16_d16_hi v53, v50 offset:2
    ds_read_u16_d16_hi v54, v50 offset:4
    s_branch K_OWN1B
    K_PAD:
    s_cmp_eq_u32 s{sWV}, 14
    s_cbranch_scc1 K_QP0 ; @if:w14=1
    s_cmp_eq_u32 s{sWV}, 13
    s_cbranch_scc1 K_OWN2 ; @if:w13=1
    v_add_lshl_u32 v25, v0, s{sTOT}, 4
    v_mov_b32 v52, {N | (4 * PADN) << 16}
    v_mov_b32 v53, 0
    v_mov_b32 v54, 0
    v_mov_b32 v55, 0
    v_cndmask_b32 v25, v25, v24, {g3}
    ds_write_b128 v25, v[52:55] offset:{LIST}
    s_branch K_PADB
    K_OWN2:
    v_lshlrev_b32 v25, 4, v0
    s_mov_b32 exec_hi, 0x1fffff
    ds_write_b128 v25, v[52:55] offset:{OWN}
    s_mov_b64 exec, -1
    s_branch K_PADB
    K_QP0:
    """)
    if cfg.get("qblock"):
        poll(a, "K_QBP", "\n".join(f"global_load_dword v{53 + i}, v59, s[{sW}:{sW + 1}] offset:{4096 * (i - 1)} sc1" for i in range(2)),
             "v_min_u32 v55, v53, v54", 55, False)
    a(f"""
    s_waitcnt vmcnt(0)
    v_min_u32 v55, v53, v54
    v_or_b32 v53, v53, v54
    v_cmp_eq_u32 vcc, 0, v55
    v_mov_b32 v55, 0
    s_cbranch_vccnz K_PADB
    v_cmp_lt_u32 vcc, 0xffff, v53
    ds_write_b32 v55, v{vIS} offset:{RDY}
    s_cbranch_vccz K_PADB
    ds_write_b32 v55, v{vIS} offset:{MISC + 4}
    s_branch K_PADB
    K_QP:
    """)
    poll128(a, "K_QPP", FQ, T)
    a(f"""
    v_or_b32 v{T}, v{T + 1}, v{T + 2}
    v_cmp_lt_u32 vcc, 0xffff, v{T}
    s_cbranch_vccz K_QB
    ds_write_b32 v{S}, v{vIS} offset:{MISC + 4}
    s_waitcnt lgkmcnt(0)
    s_branch K_QB
    K_NT0:
    s_waitcnt vmcnt(0)
    {rdq(0)}
    {rdq(1)}
    """)
    exit_loads("K_XB")
    a("s_branch K_POST")
    a(f"""
    K_WIN:
    s_min_u32 s{sA}, s{sEW}, s{sTS}
    v_cmp_ge_u32 vcc, s{sA}, v{vIncl}
    s_mov_b32 s{sLAST}, 0 ; @set:last=0
    s_bcnt1_i32_b64 s{sNWN}, vcc
    s_branch K_FLUSH
    K_SLIDE:
    v_mov_b32 v{S}, 0
    v_mov_b32 v{S + 1}, 0
    v_and_b32 v17, 3, v0
    v_subrev_u32 v18, s{sNW}, v17
    v_subrev_u32 v17, s{sNWN}, v17
    v_and_b32 v18, 3, v18
    v_and_b32 v17, 3, v17
    s_sub_u32 s{sA}, s{sNWN}, s{sNW}
    v_sub_u32 v17, v17, v18
    v_add_u32 v17, s{sA}, v17
    v_mul_u32_u24 v17, {OOB}, v17
    s_mov_b32 s{sNW}, s{sNWN}
    s_mov_b64 exec, s[{sP1}:{sP1 + 1}]
    """)
    for k in range(16):
        a(f"v_mov_b64 {vr(AC + 2 * k, 2)}, 0")
    a(f"""
    s_mov_b64 exec, -1
    s_cmp_lt_u32 s{sEW}, s{sTS}
    s_cbranch_scc1 K_REDO
    s_sub_u32 s{sA}, s{sNW}, s{sN0}
    s_cmp_gt_u32 s{sA}, 8
    s_cbranch_scc1 K_RESTART
    {zero4(ZE + 4)}
    {zero4(L)}
    v_sub_u32 v{vSa}, v{vSa}, v17
    v_sub_u32 v{vBS}, v{vBS}, v17
    """)
    window(a)
    a(f"""
    s_branch K_EV2
    K_REDO:
    s_sub_u32 s{sTS}, s{sTS}, 16
    K_RESTART:
    s_mov_b32 s{sN0}, s{sNW}
    """)
    ptrs(a)
    a("s_waitcnt vmcnt(0) lgkmcnt(0)")
    list_reads(a)
    a(f"""
    s_waitcnt lgkmcnt(0)
    s_branch K_XFR
    K_LOOPF:
    {loop_body('M1 Y1 M2 Y2 Fa Fb m s 0 v D V', DORD, False)}
    s_cbranch_scc1 K_LOOPF
    s_branch K_EV
    """)
    a(f"""
    K_OVF:
    v_lshrrev_b32 v49, 3, v{vT}
    v_lshlrev_b32 v55, v49, v19
    v_lshrrev_b32 v49, 5, v49
    v_lshlrev_b32 v49, 2, v49
    s_mov_b64 exec, vcc
    ds_or_b32 v49, v55 offset:{CNT + 208}
    s_mov_b64 exec, -1
    s_branch K_OVFB
    K_MASK:
    """)
    for k in range(4):
        a(f"v_readlane_b32 s{sMK + k}, v49, {52 + k}")
    a(f"""
    v_cmp_gt_u32 vcc, 52, v0
    s_mov_b32 s{sRARE}, 1
    s_nop 0
    v_cndmask_b32 v49, 0, v49, vcc
    s_branch K_MASKB
    K_SHRINK:
    s_movk_i32 s{sWID}, {CAP // 4}
    s_mov_b32 s{sLO}, 0
    s_mov_b32 s{sRARE}, 1
    s_branch K_ROUND
    K_NEXT:
    s_mov_b32 s{sQA}, 0
    s_add_u32 s{sLO}, s{sLO}, s{sWID}
    s_cmp_lt_u32 s{sWID}, 1024
    s_cselect_b32 s{sA}, s{sLO}, 1024
    s_cmp_lt_u32 s{sA}, 1000
    s_cbranch_scc1 K_ROUND
    s_mov_b32 s{sLO}, 0
    s_movk_i32 s{sWID}, 1024
    s_ff1_i32_b64 s{sSRC}, s[{sMK}:{sMK + 1}]
    s_cmp_lt_i32 s{sSRC}, 0
    s_cbranch_scc1 K_NEXT2
    s_bitset0_b64 s[{sMK}:{sMK + 1}], s{sSRC}
    s_branch K_ROUND
    K_NEXT2:
    s_ff1_i32_b64 s{sSRC}, s[{sMK + 2}:{sMK + 3}]
    s_cmp_lt_i32 s{sSRC}, 0
    s_cbranch_scc0 K_NEXT3
    s_cmp_lg_u32 s{sD}, 0
    s_cbranch_scc1 K_S1
    s_branch K_S0
    K_NEXT3:
    s_bitset0_b64 s[{sMK + 2}:{sMK + 3}], s{sSRC}
    s_add_u32 s{sSRC}, s{sSRC}, 64
    K_ROUND:
    s_load_dwordx2 s[6:7], s[0:1], 8
    s_load_dwordx4 s[8:11], s[0:1], 16
    s_load_dwordx2 s[12:13], s[0:1], 32
    s_lshl_b32 s{sA}, s{sWV}, 6
    v_add_u32 v{vT}, s{sA}, v0
    v_lshlrev_b32 v19, 4, v{vT}
    s_waitcnt vmcnt(0) lgkmcnt(0) ; @set:nt=x
    s_barrier
    """)
    zero_init(a, (PAC - MR - 16384) // 16)
    pos_dma(a, "K_PR")
    rec_addr(a, 28)
    a(f"""
    s_cmp_ge_i32 s{sSRC}, 0
    s_cbranch_scc1 K_RAW
    """)
    rec_load(a, 28)
    a(f"""
    s_waitcnt vmcnt(0)
    v_and_b32 v{vDL}, 0xbfbfbfbf, v{vDL}
    s_branch K_RANGE
    K_RAW:
    s_cmp_ge_u32 s{sWV}, 13
    s_cbranch_scc1 K_RANGE
    s_mul_i32 s{sA}, s{sSRC}, 12800
    v_cmp_gt_u32 vcc, 800, v{vT}
    v_add_u32 v28, s{sA}, v19
    v_lshrrev_b32 v29, 1, v28
    s_mov_b64 exec, vcc
    global_load_dwordx4 v[32:35], v28, s[12:13]
    global_load_dwordx4 {vr(W, 4)}, v28, s[10:11]
    global_load_dwordx2 v[36:37], v29, s[8:9]
    s_mov_b32 s{sA}, 342393
    s_mov_b32 s{sB2}, 0xffff0000
    v_mov_b32 v38, 0xbf
    s_waitcnt vmcnt(0)
    """)
    for j in range(4):
        a(f"""
        v_mul_u32_u24 v{32 + j}, s{sA}, v{32 + j}
        v_lshrrev_b32 v39, 24, v{32 + j}
        v_cmp_eq_u32 vcc, s{sB}, v39
        v_mul_hi_u32_u24 v{32 + j}, 12544, v{32 + j}
        """)
        if j & 1:
            a(f"v_and_or_b32 v{W + j}, v{36 + j // 2}, s{sB2}, v{W + j}")
        else:
            a(f"v_lshl_or_b32 v{W + j}, v{36 + j // 2}, 16, v{W + j}")
        a(f"v_cndmask_b32 v{32 + j}, v38, v{32 + j}, vcc")
    a(f"""
    v_lshl_or_b32 v32, v33, 8, v32
    v_lshl_or_b32 v34, v35, 8, v34
    v_lshl_or_b32 v{vDL}, v34, 16, v32
    s_mov_b64 exec, -1
    K_RANGE:
    v_subrev_u32 v28, s{sLO}, v{vT}
    v_cmp_gt_u32 vcc, s{sWID}, v28
    v_mov_b32 v28, 0xbfbfbfbf
    s_waitcnt vmcnt(0) lgkmcnt(0)
    v_cndmask_b32 v{vDL}, v28, v{vDL}, vcc
    s_barrier
    s_branch K_B0
    """)
    return a.text()
```

```python
from common import *

CAP = 2016
CNT, LUT = 0, 256
MR, MST = 8448, 288
SEL = MR + 64 * MST
PAC = SEL + 49 * 32
MISC = PAC + 52 * 16
RDY = PAC + 12
OH = MISC + 16
WD, WX, FAKE = OH + 1024, OH + 1536, OH + 2048
OWN = OH + 2560
LIST = OWN + 53 * 16
HT2 = QTB = 32768
QTA = 46336
POSL = RING = OT = WS1 = 73984
PB = WS2 = WS1 + 32768
CNTP = OH
HT = PB + 40960
PT = 163840 - 49 * 288
OST = QST = 272
PADN = 52
FP, FQ = WS_SYNC, WS_SYNC + 8192
SPIN = 1 << 18
assert LIST + (CAP + 48) * 16 <= LUT + 65536 and POSL + 75008 <= PT and LIST <= HT2 and HT % 256 == 0 and HT + 13312 <= 163840

sWV = 3
sW, sH, sO, sR, sMK = 24, 28, 32, 36, 40
sB, sNB, sNV, sRARE, sQW, sSRC, sLO, sWID = 44, 45, 46, 47, 48, 49, 50, 51
sTOT, sTS, sWT, sWEND, sN0, sNW, sEW, sEV = 52, 53, 54, 55, 56, 57, 58, 59
sNF, sNL, sMODE, sNWN, sC000, s128, s256, s192, sLAST = 60, 61, 62, 63, 64, 65, 66, 68, 69
sM0, sG3 = 70, 74
sT, sQA, sQS, sGH = sO, sLAST, sTOT, sNWN
sA, sB2, sC, sD = 76, 77, 78, 79
sP0, sP1, sP2, sP3, sP4 = 80, 82, 84, 86, 88
vRing, vLc, vMul, vIncl, vVoff = 1, 2, 3, 4, 5
vBX, vBS, vIX, vIS, vDa, vEa = 6, 7, 8, 9, 10, 11
vXa, vSa, vD, vDE, vIdx = 12, 13, 14, 15, 16
ZE, ZL, T, L, R, S, A, B, AC, Y = 20, 28, 32, 36, 40, 42, 44, 60, 84, 120
vFa, vG0, vG1 = 116, 117, 118
vDL, vT, W = 17, 18, 20
g3 = sr(sG3, 2)

PAT = "M1 h E Y1 E M2 E Y2 E 0 X X X X m P P P R s R l P P P v D V"
DORD = "SqxdL"
QF = os.environ.get("QF", "")
PMASK = int(os.environ.get("PMASK", "1"))


def dma(kc):
    soff = ["0", "64", f"s{s128}", f"s{s192}"][kc]
    return [f"s_mov_b32 m0, s{sM0 + kc}",
            f"buffer_load_dwordx4 v{vVoff}, s[{sW}:{sW + 3}], {soff} offen {QF}lds ; @w:ring{kc}"]


def rdq(kc, d=None):
    d = A + 2 + 6 * (kc & 1) if d is None else d
    return f"ds_read_b128 {vr(d, 4)}, v{vRing} offset:{1024 * kc} ; @r:ring{kc}"


def Kmf(u, z):
    a0 = A + 6 * ((u // 2) % 2) + (4 if u & 1 else 0)
    b0 = B + 6 * (u // 2) + (2 if u & 1 else 0)
    return f"v_mfma_f32_16x16x32_bf16 {vr(z, 4)}, {vr(a0, 4)}, {vr(b0, 4)}, 0"


def Ymf(u, b):
    return f"v_smfmac_f32_16x16x32_bf16 {vr(AC + 4 * u, 4)}, {vr(S, 2)}, {vr(b, 4)}, v{vIdx}"


def zero4(d):
    return f"v_mfma_f32_16x16x16_bf16 {vr(d, 4)}, {vr(S, 2)}, {vr(S, 2)}, 0"


def mf32(d, x, y, first=False):
    return f"v_mfma_f32_16x16x32_bf16 {vr(d, 4)}, {vr(x, 4)}, {vr(y, 4)}, {'0' if first else vr(d, 4)}"


def loop_body(pat, dord, lut):
    seq = []
    I = lambda t, tag=None: seq.append(("i", t, tag))
    NEED = lambda tag: seq.append(("n", tag, None))
    pk1 = lambda r: f"v_pk_add_f32 {vr(r, 2)}, {vr(r, 2)}, 1.0 op_sel_hi:[1,0]"
    for j in range(4):
        z, zn = ZE + 4 * (j & 1), ZE + 4 * ((j + 1) & 1)
        e = [f"v_exp_f32 v{T + (k ^ 2)}, v{z + k}" for k in range(4)]
        p = [pk1(T + 2),
             f"v_pk_fma_f32 {vr(R, 2)}, {vr(T + 2, 2)}, {vr(T, 2)}, {vr(T + 2, 2)}",
             f"v_pk_fma_f32 {vr(T, 2)}, {vr(z, 2)}, {vr(T, 2)}, {vr(z, 2)}",
             f"v_pk_mul_f32 {vr(T + 2, 2)}, {vr(z + 2, 2)}, {vr(T + 2, 2)}",
             f"v_pk_mul_f32 {vr(z, 2)}, {vr(T, 2)}, {vr(R, 2)}",
             f"v_pk_mul_f32 {vr(z + 2, 2)}, {vr(T + 2, 2)}, {vr(R, 2)}"]
        r = [f"v_rcp_f32 v{R}, v{R}", f"v_rcp_f32 v{R + 1}, v{R + 1}"]
        ix = [f"v_lshlrev_b32_sdwa v{ZL + k}, 1, v{ZL + k} {SD} src1_sel:WORD_1" for k in range(4)]
        d = dma((j + 1) % 4)
        for tok in pat.split():
            if tok == "M1":
                if j < 2:
                    NEED(f"x{j + 1}")
                I(Kmf(2 * j + 1, ZL))
            elif tok == "M2":
                NEED(f"q{(j + 1) % 4}")
                if j == 3:
                    NEED("x0")
                I(Kmf((2 * j + 2) % 8, zn))
            elif tok == "Y1":
                if j == 1:
                    NEED("S")
                I(Ymf((2 * j - 2) % 8, zn))
            elif tok == "Y2":
                if lut:
                    NEED("L")
                I(Ymf((2 * j - 1) % 8, L))
            elif tok == "E":
                I(e.pop(0))
            elif tok == "P":
                I(p.pop(0))
            elif tok == "R":
                I(r.pop(0))
            elif tok == "X":
                I(ix.pop(0))
            elif tok in ("Fa", "Fb"):
                src, dst = (z, z) if tok == "Fa" else (ZL, L)
                if tok == "Fb":
                    for k in range(4):
                        I(f"v_mul_f32 v{ZL + k}, {f32(2.0 ** 101)}, v{ZL + k}")
                for k in range(4):
                    I(f"v_exp_f32 v{T + k}, v{src + k}")
                I(pk1(T))
                I(pk1(T + 2))
                for k in range(4):
                    I(f"v_rcp_f32 v{T + k}, v{T + k}")
                for k in (0, 2):
                    I(f"v_pk_mul_f32 {vr(dst + k, 2)}, {vr(T + k, 2)}, {vr(src + k, 2)}")
            elif tok == "m":
                if j == 0:
                    NEED("dE")
                    I(f"v_mad_u32_u16 v{vXa}, v{vDE}, v{vMul}, v{vBX} op_sel:[1,0,0,0]")
                elif j == 1:
                    I(f"v_mad_u32_u16 v{vSa}, v{vD}, s{sC000}, v{vBS} op_sel:[1,0,0,0]")
                elif j == 2:
                    I(f"v_lshl_add_u64 v[{vDa}:{vEa}], v[{vDa}:{vEa}], 0, s[{s256}:{s256 + 1}]")
                    I(f"v_lshl_add_u64 v[{vBX}:{vBS}], v[{vBX}:{vBS}], 0, v[{vIX}:{vIS}]")
                else:
                    NEED("dD")
                    I(f"v_mad_u32_u16 v{vVoff}, v{vD}, s{s256}, v{vLc}")
            elif tok == "s":
                if j == 2:
                    I(f"s_add_u32 s{sTS}, s{sTS}, 16")
                if j == 3:
                    I(f"s_cmp_lt_i32 s{sTS}, s{sEV}")
            elif tok == "l":
                I("s_setprio 0")
            elif tok == "h":
                I("s_setprio 1")
            elif tok == "0":
                I(d[0])
            elif tok == "v":
                I("s_waitcnt vmcnt(2)")
            elif tok == "V":
                I(d[1])
            elif tok == "D":
                for c in dord:
                    if c == "S" and j == 0:
                        I(f"ds_read_b64_tr_b16 {vr(S, 2)}, v{vSa}", "S")
                    if c == "q":
                        I(rdq((j + 2) % 4), f"q{(j + 2) % 4}")
                    if c == "x" and j:
                        I(f"ds_read_b64 {vr(A + 6 * (j - 1), 2)}, v{vXa}", f"x{j - 1}")
                    if c == "d" and j == 1:
                        I(f"ds_read_b32 v{vD}, v{vDa}", "dD")
                    if c == "d" and j == 3:
                        I(f"ds_read_b32 v{vDE}, v{vEa}", "dE")
                    if c == "L" and lut:
                        for k in range(4):
                            I(f"ds_read_u16_d16_hi v{L + k}, v{ZL + k} offset:{LUT}", "L")
            else:
                raise ValueError(tok)
    q, out = [], []
    for rep in range(2):
        out = []
        for k, t, tag in seq:
            if k == "i":
                out.append(t)
                if t.startswith("ds_"):
                    q.append(tag)
            elif t in q:
                n = q[::-1].index(t)
                out.append(f"s_waitcnt lgkmcnt({n})")
                q = q[len(q) - n:]
    return "\n".join(out)


def ptrs(a):
    a(f"""
    s_lshl_b32 s{sA}, s{sTS}, 4
    s_add_u32 s{sA}, s{sA}, {LIST}
    v_and_b32 v18, -4, v0
    v_and_b32 v19, 15, v0
    v_lshl_add_u32 v{vDa}, v18, 2, s{sA}
    v_lshl_add_u32 v{vEa}, v19, 4, s{sA}
    s_cmp_lt_u32 s{sTS}, s{sWT}
    s_cselect_b64 s[{sP0}:{sP0 + 1}], -1, 0
    s_add_u32 s{sB2}, s{sTS}, 16
    s_cmp_lt_u32 s{sB2}, s{sWT}
    s_cselect_b64 s[{sP1}:{sP1 + 1}], -1, 0
    v_add_u32 v19, 256, v{vDa}
    v_cndmask_b32 v18, v{vFa}, v{vDa}, s[{sP0}:{sP0 + 1}]
    v_cndmask_b32 v19, v{vFa}, v19, s[{sP1}:{sP1 + 1}]
    """)


def list_reads(a):
    a(f"""
    ds_read_b32 v{vSa}, v18
    ds_read_b32 v{vD}, v19
    ds_read_b32 v{vXa}, v{vEa}
    ds_read_b32 v{vDE}, v{vEa} offset:256
    """)


def window(a):
    a(f"""
    s_add_u32 s{sA}, s{sNW}, 3
    v_readlane_b32 s{sEW}, v{vIncl}, s{sA}
    s_sub_u32 s{sB2}, s{sWT}, 32
    s_cmp_ge_u32 s{sEW}, s{sWEND}
    s_cselect_b32 s{sEW}, 0x7fffffff, s{sEW}
    s_sub_u32 s{sA}, s{sEW}, 15
    s_min_i32 s{sEV}, s{sA}, s{sB2}
    """)


def zero_init(a, n2):
    a(f"""
    v_mov_b32 v24, 0
    v_mov_b32 v25, 0
    v_mov_b32 v26, 0
    v_mov_b32 v27, 0
    v_cmp_gt_u32 vcc, {n2}, v{vT}
    ds_write_b128 v19, v[24:27] offset:{MR}
    v_lshlrev_b32 v28, 2, v0
    ds_write_b32 v28, v24 offset:{CNT}
    s_mov_b64 exec, vcc
    ds_write_b128 v19, v[24:27] offset:{MR + 16384}
    s_mov_b64 exec, -1
    """)


def rec_addr(a, r):
    a(f"""
    s_movk_i32 s{sB2}, 96
    s_mov_b32 vcc_lo, 0xc0c0c0c0
    s_mov_b32 vcc_hi, 0xc0c0c0c0
    v_lshrrev_b32 v{r}, 3, v{vT}
    v_lshlrev_b32 v{r + 1}, 2, v{vT}
    v_mad_u32_u24 v{r + 1}, v{r}, s{sB2}, v{r + 1}
    v_mul_i32_i24 v{r}, -96, v{r}
    v_add_u32 v{r}, {16000 - 128}, v{r}
    v_cndmask_b32 v{r}, 0, v{r}, vcc
    v_add_u32 v{r}, v{r}, v19
    v_cmp_gt_u32 vcc, 1000, v{vT}
    v_mov_b32 v{vDL}, 0xbfbfbfbf
    """)


def rec_load(a, r):
    a(f"""
    s_mov_b64 exec, vcc
    global_load_dword v{vDL}, v{r + 1}, s[{sR}:{sR + 1}] sc1
    global_load_dwordx4 {vr(W, 4)}, v{r}, s[{sR}:{sR + 1}] offset:32 sc1
    s_mov_b64 exec, -1
    """)


def pos_dma(a, tag, alt=None, skip=False):
    srd(a, sT, 6, 75000)
    a(f"""
    s_cmp_ge_u32 s{sWV}, 10
    v_lshlrev_b32 v58, 4, v0
    s_cbranch_scc1 {alt or tag + '_E'}
    """)
    if skip:
        a(f"""
        s_lshr_b32 s{sA}, s2, 7
        s_lshl_b32 s{sA}, s{sA}, 2
        s_cmp_lt_u32 s{sWV}, s{sA}
        s_cbranch_scc1 {tag}_E
        """)
    a(f"""
    s_lshl_b32 s{sA}, s{sWV}, 13
    s_add_u32 m0, s{sA}, {POSL}
    s_cmp_eq_u32 s{sWV}, 9
    buffer_load_dwordx4 v58, s[{sT}:{sT + 3}], s{sA} offen lds
    s_cselect_b64 exec, 0xffff, -1
    buffer_load_dwordx4 v58, s[{sT}:{sT + 3}], s{sA} offen offset:1024 lds
    s_mov_b64 exec, -1
    s_cbranch_scc1 {tag}_E
    buffer_load_dwordx4 v58, s[{sT}:{sT + 3}], s{sA} offen offset:2048 lds
    buffer_load_dwordx4 v58, s[{sT}:{sT + 3}], s{sA} offen offset:3072 lds
    s_add_u32 m0, m0, 4096
    s_add_u32 s{sA}, s{sA}, 4096
    """)
    for i in range(4):
        a(f"buffer_load_dwordx4 v58, s[{sT}:{sT + 3}], s{sA} offen offset:{1024 * i} lds")
    a(f"{tag}_E:")


def poll(a, tag, ld, red, v, first=True):
    a(f"""
    s_mov_b32 s{sA}, {SPIN}
    {ld if first else ''}
    {tag}:
    s_waitcnt vmcnt(0)
    {red}
    v_cmp_eq_u32 vcc, 0, v{v}
    s_sub_u32 s{sA}, s{sA}, 1
    s_cbranch_vccz {tag}_E
    {"s_mov_b64 exec, vcc" if PMASK else ""}
    {ld}
    s_cbranch_scc0 {tag}
    s_waitcnt vmcnt(0)
    {tag}_E:
    {"s_mov_b64 exec, -1" if PMASK else ""}
    """)


def poll128(a, tag, off, r):
    a(f"s_mov_b32 s{sA}, {off + 4096}\nv_lshl_add_u32 v{r}, v0, 6, s{sA}")
    ld = "\n".join(f"global_load_dword v{r + 1 + i}, v{r}, s[{sW}:{sW + 1}] offset:{4096 * (i - 1)} sc1" for i in range(2))
    poll(a, tag, ld, f"v_min_u32 v{r + 3}, v{r + 1}, v{r + 2}", r + 3)


def big_test(a, acc, lab):
    for k in range(4):
        p = vr(acc + 2 * k, 2)
        a(f"v_pk_mul_f32 v[36:37], {p}, {p}" if k == 0 else f"v_pk_fma_f32 v[36:37], {p}, {p}, v[36:37]")
    a(f"""
    v_add_f32 v36, v36, v37
    v_cmp_ngt_f32 vcc, {f32(64 * LN2 * LN2)}, v36
    s_cbranch_vccnz {lab}
    {lab}B:
    """)


def scale_pack(a, acc, tmp):
    for t in range(2):
        for k in (0, 2):
            a(f"v_pk_mul_f32 {vr(tmp + 4 * t + k, 2)}, {vr(acc + 4 * t + k, 2)}, s[{sP0}:{sP0 + 1}] op_sel_hi:[1,0]")
        a(f"""
        v_cvt_pk_bf16_f32 v{tmp + 4 * t}, v{tmp + 4 * t}, v{tmp + 4 * t + 1}
        v_cvt_pk_bf16_f32 v{tmp + 4 * t + 1}, v{tmp + 4 * t + 2}, v{tmp + 4 * t + 3}
        """)


def tile_write(tmp, va, off=0):
    return "\n".join(f"ds_write_b64 v{va + t}, {vr(tmp + 4 * t, 2)} offset:{off}" for t in range(2))


def wdma(base, dst):
    return f"""
    s_mov_b64 s[{sT}:{sT + 1}], s[{base}:{base + 1}]
    s_lshl_b32 s{sA}, s{sWV}, 11
    s_add_u32 m0, s{sA}, {dst}
    s_nop 0
    buffer_load_dwordx4 v1, s[{sT}:{sT + 3}], s{sA} offen lds
    buffer_load_dwordx4 v1, s[{sT}:{sT + 3}], s{sA} offen offset:1024 lds
    """


def silu4(a, y, h, t):
    a(f"""
    v_pk_mul_f32 {vr(y, 2)}, {vr(y, 2)}, s[{sP0}:{sP0 + 1}] op_sel_hi:[1,0]
    v_pk_mul_f32 {vr(y + 2, 2)}, {vr(y + 2, 2)}, s[{sP0}:{sP0 + 1}] op_sel_hi:[1,0]
    """)
    for k in range(4):
        a(f"v_exp_f32 v{t + k}, v{y + k}")
    for k in (0, 2):
        a(f"v_pk_add_f32 {vr(t + k, 2)}, {vr(t + k, 2)}, 1.0 op_sel_hi:[1,0]")
    for k in range(4):
        a(f"v_rcp_f32 v{t + k}, v{t + k}")
    for k in (0, 2):
        a(f"v_pk_mul_f32 {vr(y + k, 2)}, {vr(y + k, 2)}, s[{sP0}:{sP0 + 1}] op_sel:[0,1] op_sel_hi:[1,1]")
    for k in (0, 2):
        a(f"v_pk_fma_f32 {vr(y + k, 2)}, {vr(y + k, 2)}, {vr(t + k, 2)}, {vr(h + k, 2)}")
    a(f"v_cvt_pk_bf16_f32 v{y}, v{y}, v{y + 1}\nv_cvt_pk_bf16_f32 v{y + 1}, v{y + 2}, v{y + 3}")


def gen_kernel(cfg):
    a = Asm()
    st = lambda i: stamp(a, cfg, i)
    pr = lambda nm: f"s_memrealtime s[{STAMP_REGS[15]}:{STAMP_REGS[15] + 1}]" if cfg.get("diag") and cfg.get("probe", "scat") == nm else ""
    YA, YB = Y, Y + 4
    nfin = 0
    HA_, HB_, WF, TF, GC, RA = AC, AC + 16, B, 24, 76, 6
    vWa, vWb, vQa, vPa, vHa, vQo, vZ, QR = 16, 3, 116, 118, 56, 14, 58, 48
    GA, LA, CA, BK, RK1, WBR = 46, 48, 50, 34, 38, 52
    cpf = ""
    pp, pq = cfg.get("pp", "-"), cfg.get("pq", "-")
    ppa, pqa = 2 * (pp[0] == "a"), 2 * (pq[0] == "a")

    def pre(spec, at, ins, back="-1"):
        if spec[0] != at:
            return ""
        m, w = spec[1:3], int(spec[3])
        d, sfx = vr(20, w), "" if w == 1 else f"x{w}"
        return f"s_mov_b32 exec_lo, 0x{m * 4}\ns_mov_b32 exec_hi, 0x{m * 4}\n" + "\n".join(ins(i, d, sfx) for i in range(2)) + f"\ns_mov_b64 exec, {back}"

    prep = lambda at, back="-1": pre(pp, at, lambda i, d, x: f"global_store_dword{x} v{GA + i}, {d}, s[{sP3}:{sP3 + 1}] sc1", back)
    preq = lambda at: pre(pq, at, lambda i, d, x: f"buffer_store_dword{x} {d}, v{vQo + i}, s[{sW}:{sW + 3}], 0 offen sc1")
    if cfg.get("cpf"):
        cpf = f"""
        s_cmp_lg_u32 s{sWV}, 15
        s_cbranch_scc1 K_CP
        s_getpc_b64 s[{sP0}:{sP0 + 1}]
        v_lshlrev_b32 v2, 7, v0
        v_add_u32 v3, 0x2000, v2
        global_load_dword v126, v2, s[{sP0}:{sP0 + 1}]
        s_mov_b64 exec, 0xffff
        global_load_dword v127, v3, s[{sP0}:{sP0 + 1}]
        s_mov_b64 exec, -1
        K_CP:
        """
    a(f"""
    s_load_dwordx16 s[4:19], s[0:1], 0
    s_load_dwordx4 s[20:23], s[0:1], 64
    s_load_dwordx2 s[{sW}:{sW + 1}], s[0:1], 80
    v_lshrrev_b32 v1, 6, v0
    s_cmp_ge_u32 s2, 256
    s_cbranch_scc1 K_END
    v_readfirstlane_b32 s{sWV}, v1
    v_mov_b32 v{vT}, v0
    v_lshlrev_b32 v19, 4, v0
    v_and_b32 v0, 63, v0
    s_and_b32 s{sB}, s2, 7
    s_lshl_b32 s{sB}, s{sB}, 5
    s_lshr_b32 s{sD}, s2, 3
    s_add_u32 s{sB}, s{sB}, s{sD}
    s_mul_i32 s{sNB}, s{sB}, {NB}
    {cpf}
    s_lshl_b32 s{sA}, s{sWV}, 8
    s_or_b32 s{sA}, s{sA}, s2
    s_cmp_eq_u32 s{sA}, {12 * 256 + 127}
    s_cbranch_scc1 K_ZF
    s_cmp_ge_u32 s2, 125
    s_cbranch_scc1 K_LD ; @if:p=0
    s_mul_i32 s{sA}, s2, 12800
    v_add_u32 v2, s{sA}, v19
    v_lshrrev_b32 v3, 1, v2
    v_cmp_gt_u32 vcc, 800, v{vT}
    s_cmp_eq_u32 s{sWV}, 8
    s_mov_b32 s{sC}, {OOB}
    s_cmov_b32 s{sC}, {CNTP - 8192}
    s_cmp_lt_u32 s{sWV}, 8
    s_cselect_b32 s{sA}, 0xbfbfbfbf, 0
    s_cselect_b32 s{sB2}, 64, 0
    s_cmov_b32 s{sC}, {PB}
    v_and_b32 v14, 0x3fe, v{vT}
    v_mul_u32_u24 v14, s{sB2}, v14
    v_add3_u32 v14, v14, v19, s{sC}
    v_mov_b32 v20, s{sA}
    v_mov_b32 v21, s{sA}
    v_mov_b32 v22, s{sA}
    v_mov_b32 v23, s{sA}
    s_mov_b64 s[{sP4}:{sP4 + 1}], vcc
    s_mov_b64 exec, vcc
    s_waitcnt lgkmcnt(0)
    s_cbranch_execz K_PL ; @if:lo=0
    global_load_dwordx4 v[4:7], v2, s[12:13]
    global_load_dwordx4 v[8:11], v2, s[10:11]
    global_load_dwordx2 v[12:13], v3, s[8:9]
    K_PL:
    s_mov_b64 exec, -1
    ds_write_b128 v14, v[20:23]
    s_waitcnt lgkmcnt(0)
    s_barrier
    K_LD:
    s_sub_u32 s{sNV}, {N}, s{sNB}
    s_min_u32 s{sNV}, s{sNV}, {NB}
    s_lshl_b32 s{sC}, s{sNB}, 8
    s_lshl_b32 s{sH + 2}, s{sNV}, 8
    s_mov_b32 s{sH + 3}, 0x20000
    v_lshrrev_b32 v14, 4, v0
    v_and_b32 v15, 15, v0
    s_lshr_b32 s{sQS}, s2, 7
    s_add_u32 s{sA}, s{sWV}, s{sQS}
    s_waitcnt lgkmcnt(0)
    s_add_u32 s{sH}, s4, s{sC}
    s_addc_u32 s{sH + 1}, s5, 0
    s_cmp_lt_u32 s{sA}, 13
    s_cbranch_scc1 K_CH
    s_cmp_eq_u32 s{sA}, 14
    s_cselect_b32 s{sC}, {16 * NB * 256}, 0
    s_cselect_b32 s{sT + 2}, {NB * 256}, s{sH + 2}
    s_mov_b32 s{sP1}, {HT}
    s_cmov_b32 s{sP1}, {HT2}
    s_sub_u32 s{sT}, s{sH}, s{sC}
    s_subb_u32 s{sT + 1}, s{sH + 1}, 0
    s_and_b32 s{sA}, s{sWV}, 1
    s_lshl_b32 s{sA}, s{sA}, 14
    s_add_u32 s{sB2}, s{sA}, {WS1}
    s_lshl_b32 s{sC}, s{sQS}, 15
    s_add_u32 s{sA}, s{sA}, s{sC}
    s_and_b32 s{sD}, s{sD}, 3
    s_lshl_b32 s{sD}, s{sD}, 12
    s_cmp_lt_u32 s{sWV}, 14
    s_cselect_b64 s[{sT}:{sT + 1}], s[{sT}:{sT + 1}], s[14:15]
    s_cselect_b32 s{sT + 2}, s{sT + 2}, 0x10000
    s_mov_b32 s{sT + 3}, 0x20000
    s_cselect_b32 s{sP0}, 0, 1
    s_cselect_b32 s{sP0 + 1}, 64, 0
    s_cmov_b32 s{sA}, 0
    s_cmov_b32 s{sB2}, s{sP1}
    s_cmov_b32 s{sD}, 0
    v_lshlrev_b32 v20, s{sP0}, v14
    v_xor_b32 v20, v20, v15
    v_lshlrev_b32 v20, 4, v20
    v_lshl_add_u32 v20, v14, 8, v20
    v_xor_b32 v21, s{sP0 + 1}, v20
    v_xor_b32 v22, 0x80, v20
    v_xor_b32 v23, 0x80, v21
    """)
    for k in range(4):
        a(f"s_add_u32 m0, s{sB2}, s{sD}\ns_add_u32 s{sC}, s{sA}, s{sD}")
        if k == 3:
            a(f"s_cmp_lt_u32 s{sWV}, 14")
        for i in range(4):
            a(f"buffer_load_dwordx4 v{20 + i}, s[{sT}:{sT + 3}], s{sC} offen offset:{1024 * i} lds")
            if k == 3 and i == 0:
                a("s_cbranch_scc1 K_WJ")
            if k < 3 and i == 0:
                a(f"s_add_u32 s{sD}, s{sD}, 4096\ns_and_b32 s{sD}, s{sD}, 0x3fff")
    a("K_CH:\ns_setreg_imm32_b32 hwreg(HW_REG_MODE, 4, 2), 3")
    st(0)
    zero_init(a, (MISC + 16 - MR - 16384) // 16)
    a(f"""
    v_lshlrev_b32 v24, 18, v{vT}
    v_or_b32 v25, 0x18000, v24
    v_or_b32 v26, 0x28000, v24
    v_or_b32 v27, 0x38000, v24
    v_or_b32 v24, 0x8000, v24
    s_mov_b32 s{sP0}, {f32(2.0 ** 101)}
    s_mov_b32 s{sP0 + 1}, {f32(1 / (1 + DELTA))}
    v_pk_mul_f32 v[26:27], v[26:27], s[{sP0}:{sP0 + 1}] op_sel_hi:[1,0]
    v_pk_mul_f32 v[24:25], v[24:25], s[{sP0}:{sP0 + 1}] op_sel_hi:[1,0]
    """)
    for k in range(4):
        a(f"v_exp_f32 v{28 + k}, v{24 + k}")
    for k in (0, 2):
        a(f"v_pk_mul_f32 {vr(24 + k, 2)}, {vr(24 + k, 2)}, s[{sP0}:{sP0 + 1}] op_sel:[0,1] op_sel_hi:[1,1]")
    for k in (0, 2):
        a(f"v_pk_add_f32 {vr(28 + k, 2)}, {vr(28 + k, 2)}, 1.0 op_sel_hi:[1,0]")
    for k in range(4):
        a(f"v_rcp_f32 v{28 + k}, v{28 + k}")
    a(f"v_lshlrev_b32 v32, 3, v{vT}\nv_add_u32 v33, 0x10000, v32")
    for k in (0, 2):
        a(f"v_pk_mul_f32 {vr(28 + k, 2)}, {vr(28 + k, 2)}, {vr(24 + k, 2)}")
    for k in (0, 2):
        a(f"v_pk_add_f32 {vr(24 + k, 2)}, {vr(28 + k, 2)}, {vr(24 + k, 2)} neg_lo:[0,1] neg_hi:[0,1]")
    a(f"""
    v_cvt_pk_bf16_f32 v28, v28, v29
    v_cvt_pk_bf16_f32 v29, v30, v31
    v_cvt_pk_bf16_f32 v24, v24, v25
    v_cvt_pk_bf16_f32 v25, v26, v27
    ds_write_b64 v32, v[28:29] offset:{LUT}
    ds_write_b64 v33, v[24:25] offset:{LUT}
    """)
    a(f"""
    s_mov_b32 s{sW + 2}, {WS_END}
    s_mov_b32 s{sW + 3}, 0x20000
    s_lshr_b32 s{sD}, s{sWV}, 3
    s_and_b32 s{sC}, s{sWV}, 7
    s_sub_u32 s{sA}, s{sD}, 1
    v_and_b32 v17, s{sA}, v15
    s_lshl_b32 s{sA}, s{sD}, 4
    s_add_u32 s{sA}, s{sA}, 16
    v_add_u32 v24, s{sA}, v15
    s_mul_i32 s{sA}, s{sD}, 48
    v_add_u32 v25, s{sA}, v17
    s_mov_b32 s{sA}, {HT}
    v_xor_b32 v26, v14, v15
    v_xor_b32 v27, v14, v17
    v_lshl_add_u32 v26, v26, 4, s{sA}
    v_lshl_add_u32 v27, v27, 4, s{sA}
    v_lshl_add_u32 v{vHa}, v24, 8, v26
    v_lshl_add_u32 v{vHa + 1}, v25, 8, v27
    s_cmp_ge_u32 s2, 128
    s_cselect_b32 s{sA}, {HT - HT2}, 0
    v_subrev_u32 v{HA_}, s{sA}, v{vHa}
    v_subrev_u32 v{HB_}, s{sA}, v{vHa + 1}
    """)
    for ks in range(1, 4):
        a(f"v_xor_b32 v{HA_ + 4 * ks}, {64 * ks}, v{HA_}\nv_xor_b32 v{HB_ + 4 * ks}, {64 * ks}, v{HB_}")
    a(f"""
    s_lshr_b32 s{sA}, s{sC}, 1
    s_mul_i32 s{sA}, s{sA}, 48
    s_lshl_b32 s{sB2}, s{sC}, 3
    s_add_u32 s{sA}, s{sA}, s{sB2}
    v_lshl_add_u32 v26, v14, 4, s{sA}
    s_movk_i32 s{sA}, {QST}
    v_mad_u32_u24 v{vQa}, v24, s{sA}, v26
    v_mad_u32_u24 v{vQa + 1}, v25, s{sA}, v26
    s_lshl_b32 s{sA}, s{sC}, 5
    s_add_u32 s{sA}, s{sA}, {PT}
    v_lshl_add_u32 v26, v14, 3, s{sA}
    s_movk_i32 s{sA}, 288
    v_mad_u32_u24 v{vPa}, v24, s{sA}, v26
    v_mad_u32_u24 v{vPa + 1}, v25, s{sA}, v26
    v_bfe_u32 v24, v0, 2, 2
    v_and_b32 v25, 1, v14
    v_lshl_or_b32 v25, v25, 2, v24
    v_xor_b32 v25, s{sC}, v25
    v_and_b32 v26, 3, v0
    v_lshlrev_b32 v26, 3, v26
    v_lshl_or_b32 v25, v25, 5, v26
    v_lshl_add_u32 v24, v14, 3, v24
    v_lshl_add_u32 v24, v24, 8, v25
    v_add_u32 v{vWa}, {WS1}, v24
    v_mov_b32 v{vZ}, 0
    s_sub_u32 s{sA}, s{sWV}, 14
    v_mov_b32 v{vZ + 1}, s{sA}
    s_mov_b32 s{sQS}, 0
    v_lshlrev_b32 v1, 1, v14
    v_xor_b32 v1, v1, v15
    v_lshlrev_b32 v1, 4, v1
    v_lshl_add_u32 v1, v14, 8, v1
    s_bitcmp1_b32 s{sWV}, 0
    s_cselect_b32 s{sA}, 0x80, 0
    v_xor_b32 v1, s{sA}, v1
    s_mov_b32 s{sT + 2}, 0x8000
    s_mov_b32 s{sT + 3}, 0x20000
    s_mov_b32 s{sP0}, {f32(-LOG2E)}
    s_cmov_b32 s{sP0}, {f32(-LOG2E * TINY)}
    s_mul_i32 s{sA}, s{sB}, {RST}
    s_add_u32 s{sA}, s{sA}, {WS_REC}
    s_add_u32 s{sR}, s{sW}, s{sA}
    s_addc_u32 s{sR + 1}, s{sW + 1}, 0
    s_cmp_ge_u32 s2, 125
    s_cbranch_scc1 K_NP ; @if:p=0
    """)
    a(f"""
    s_lshl_b32 s{sA}, s2, 7
    s_add_u32 s{sA}, s{sA}, {WS_REC}
    s_add_u32 s{sP3}, s{sW}, s{sA}
    s_addc_u32 s{sP3 + 1}, s{sW + 1}, 0
    s_movk_i32 s{sA}, {RST - 128}
    s_mov_b32 s{sP1}, {PB}
    v_lshrrev_b32 v24, 3, v{vT}
    v_mad_u32_u24 v{GA}, v24, s{sA}, v19
    v_add_u32 v{GA + 1}, {128 * RST}, v{GA}
    v_lshl_add_u32 v{LA}, v24, 5, v19
    v_add_u32 v{LA}, s{sP1}, v{LA}
    v_lshlrev_b32 v{CA}, 2, v24
    {f"v_and_b32 v45, {cfg['rm']}, v0" if cfg.get("rm") else ""}
    {"v_lshl_add_u32 v45, v45, 2, -8" if cfg.get("rm") else ""}
    {prep("a")}
    s_cmp_ge_u32 s{sWV}, 13
    s_cbranch_scc1 K_PLD ; @if:lo=0
    s_mov_b32 s{sA}, 342393
    s_movk_i32 s{sB2}, 12544
    s_mov_b32 s{sP1 + 1}, 0xffff0000
    v_mov_b32 v44, 1
    s_mov_b64 exec, s[{sP4}:{sP4 + 1}]
    s_waitcnt vmcnt({2 + ppa})
    {prep("b", sr(sP4, 2))}
    """)
    for j in range(4):
        a(f"""
        v_mul_u32_u24 v{4 + j}, s{sA}, v{4 + j}
        v_lshlrev_b32_sdwa v{BK + j}, 2, v{4 + j} {SD} src1_sel:BYTE_3
        ds_add_rtn_u32 v{RK1 + j}, v{BK + j}, v44 offset:{CNTP}
        """)
    for j in range(4):
        a(f"v_mul_hi_u32_u24 v{4 + j}, s{sB2}, v{4 + j}\nv_mad_u32_u24 v{BK + j}, v{BK + j}, 40, s{sP1}")
    a(f"s_waitcnt vmcnt({2 if pp[0] in 'ab' else 0})\n" + prep("c", sr(sP4, 2)))
    for j in range(4):
        if j & 1:
            a(f"v_and_or_b32 v{8 + j}, v{12 + j // 2}, s{sP1 + 1}, v{8 + j}")
        else:
            a(f"v_lshl_or_b32 v{8 + j}, v{12 + j // 2}, 16, v{8 + j}")
    for j in range(4):
        a(f"""
        s_waitcnt lgkmcnt({3 + j})
        v_min_u32 v{RK1 + j}, 31, v{RK1 + j}
        v_add_u32 v42, v{BK + j}, v{RK1 + j}
        v_lshl_add_u32 v43, v{RK1 + j}, 2, v{BK + j}
        ds_write_b8 v42, v{4 + j}
        ds_write_b32 v43, v{8 + j} offset:32
        """)
    a(f"""
    s_mov_b64 exec, -1
    K_PB:
    s_setprio 2
    s_waitcnt lgkmcnt(0)
    s_barrier
    """)
    a(pr("scat"))
    a(f"""
    ds_read_b32 v{CA + 1}, v{CA} offset:{CNTP + 512}
    ds_read_b32 v{CA}, v{CA} offset:{CNTP}
    ds_read_b128 v[4:7], v{LA}
    ds_read_b128 v[8:11], v{LA} offset:{128 * 160}
    s_waitcnt lgkmcnt(2)
    v_max_u32 v24, v{CA}, v{CA + 1}
    v_cmp_lt_u32 vcc, 24, v24
    s_cbranch_vccnz K_POV
    K_PST:
    {f"v_cmp_lt_i32 vcc, v45, v{CA}" if cfg.get("rm") else ""}
    {f"v_cmp_lt_i32 s[{sP1}:{sP1 + 1}], v45, v{CA + 1}" if cfg.get("rm") else ""}
    s_waitcnt lgkmcnt(1)
    {"s_mov_b64 exec, vcc" if cfg.get("rm") else ""}
    global_store_dwordx4 v{GA}, v[4:7], s[{sP3}:{sP3 + 1}] {cfg.get('rs', 'sc1').replace('_', ' ')}
    s_waitcnt lgkmcnt(0)
    {f"s_mov_b64 exec, s[{sP1}:{sP1 + 1}]" if cfg.get("rm") else ""}
    global_store_dwordx4 v{GA + 1}, v[8:11], s[{sP3}:{sP3 + 1}] {cfg.get('rs', 'sc1').replace('_', ' ')}
    {"s_mov_b64 exec, -1" if cfg.get("rm") else ""}
    K_PH:
    s_setprio 0
    v_mov_b32 v{vQo}, 2.0
    v_mov_b32 v{vQo + 1}, 2.0
    """)
    st(2)
    trd = lambda d, ks, va, off=0: "\n".join(f"ds_read_b64_tr_b16 {vr(d + 4 * ks + 2 * i, 2)}, v{va} offset:{off + 8192 * ks + 1024 * i}" for i in range(2))
    hrd = lambda ks: f"ds_read_b128 {vr(HA_ + 4 * ks, 4)}, v{HA_ + 4 * ks}\nds_read_b128 {vr(HB_ + 4 * ks, 4)}, v{HB_ + 4 * ks}"
    sched = [cfg.get(k, d).lstrip("x") for k, d in (("qa", "1111222200000"), ("qb", "4" * 13))]
    qstore = lambda i: f"buffer_store_dwordx4 {vr(QR + 4 * i, 4)}, v{vQo + i}, s[{sW}:{sW + 3}], 0 offen {cfg.get('qs', 'sc1').replace('_', ' ')}"

    def qst(k):
        t = ""
        for i in range(2):
            if str(k) in sched[i]:
                t += f"""
                s_bitcmp0_b32 s{sQS}, {8 * i + k}
                s_cbranch_scc1 K_QS{i}{k}
                {'s_waitcnt lgkmcnt(0)' if k == 1 else ''}
                {qstore(i)}
                v_mov_b32 v{vQo + i}, 2.0
                K_QS{i}{k}:
                """
        return t

    def gemm1(w, acc):
        for ks in range(4):
            a(trd(w, ks, vWa) + "\n" + hrd(ks))
            if ks == 2:
                a(f"s_waitcnt lgkmcnt(9)\n{mf32(acc, w, HA_, True)}\ns_waitcnt lgkmcnt(8)\n{mf32(acc + 4, w, HB_, True)}")
        for ks in range(1, 4):
            a(f"""
            s_waitcnt lgkmcnt({13 - 4 * ks})
            {mf32(acc, w + 4 * ks, HA_ + 4 * ks)}
            s_waitcnt lgkmcnt({12 - 4 * ks})
            {mf32(acc + 4, w + 4 * ks, HB_ + 4 * ks)}
            """)

    gemm1(TF, Y)
    a(f"""
    s_lshl_b32 s{sA}, s2, 6
    s_add_u32 s{sA}, s{sA}, {FP}
    v_mov_b32 v2, s{sA}
    s_nop 2
    """)
    scale_pack(a, Y, 40)
    big_test(a, Y, "K_FP")
    a(f"""
    {pr("Sa")}
    s_waitcnt vmcnt(0)
    v_cmp_eq_u32 vcc, 0, v{vZ + 1}
    s_cbranch_vccnz K_ZW
    K_ZB:
    s_cmp_lg_u32 s{sWV}, 14
    s_waitcnt lgkmcnt(0)
    {pr("S")}
    s_barrier
    s_cbranch_scc1 K_F
    s_mov_b64 exec, 1
    global_store_dword v2, v2, s[{sW}:{sW + 1}] sc1
    s_mov_b64 exec, -1
    K_F:
    """)
    st(4)
    a(tile_write(40, vPa))
    pos_dma(a, "K_PD", "K_JOB", cfg.get("pe"))
    a(qst(2) + pr("PD"))
    a(f"""
    s_mov_b64 s[{sMK}:{sMK + 1}], 0
    s_mov_b64 s[{sMK + 2}:{sMK + 3}], 0
    s_mov_b32 s{sRARE}, 0
    s_mov_b32 s{sQW}, 1 ; @set:qw=1
    s_mov_b32 s{sSRC}, -1
    s_movk_i32 s{sWID}, 1024
    s_lshr_b32 s{sA}, s2, 7
    s_cmp_eq_u32 s{sWV}, 15
    s_cselect_b32 s{sQA}, s{sA}, 0
    s_mov_b32 s{sGH}, 0 ; @set:gh=1
    s_cmp_ge_u32 s{sWV}, 10
    s_cbranch_scc1 K_JB2
    K_G0:
    {qst(3)}
    """)
    rec_addr(a, RA)
    qflag = lambda lab: f"""
    s_cmp_eq_u32 s{sQA}, 0
    s_cbranch_scc1 {lab}
    s_mov_b32 s{sQA}, 0
    s_mov_b64 exec, 1
    global_store_dword v56, v57, s[{sW}:{sW + 1}] sc1
    s_mov_b64 exec, -1
    """
    qg = cfg.get("qg")
    a(f"""
    s_waitcnt {"vmcnt(0) " if qg else ""}lgkmcnt(0)
    {pr("G")}
    s_barrier
    """)
    st(6)
    if qg:
        a(qflag("K_QG") + "K_QG:")
    rec_load(a, RA)
    for i in range(2):
        if "4" in sched[i]:
            a(qstore(i))
            nfin += 1
    a("K_B0:")
    a(f"""
    s_lshl_b32 s{sA}, s{sWV}, 12
    s_add_u32 s{sM0}, s{sA}, {RING}
    s_mov_b32 s{sC000}, 0xc000
    s_movk_i32 s{s128}, 128
    s_movk_i32 s{s192}, 192
    s_movk_i32 s{s256}, 256
    s_movk_i32 s{s256 + 1}, 256
    s_mov_b32 s{sG3}, 0
    s_mov_b32 s{sG3 + 1}, 0xffff0000
    s_add_u32 s{sM0 + 1}, s{sM0}, 1024
    s_add_u32 s{sM0 + 2}, s{sM0}, 2048
    s_add_u32 s{sM0 + 3}, s{sM0}, 3072
    v_and_b32 v34, 15, v0
    v_lshrrev_b32 v35, 4, v0
    v_lshrrev_b32 v36, 3, v34
    v_lshlrev_b32 v36, 1, v36
    v_xor_b32 v36, v36, v35
    v_lshl_add_u32 v36, v36, 4, s{sM0}
    v_lshl_add_u32 v{vRing}, v34, 6, v36
    v_and_b32 v36, 2, v35
    v_and_b32 v37, 3, v0
    v_xor_b32 v36, v36, v37
    v_lshlrev_b32 v{vLc}, 4, v36
    v_cndmask_b32 v{vMul}, 2, 0, {g3}
    v_mov_b32 v{vIS}, 256
    v_cndmask_b32 v{vIX}, 0, v{vIS}, {g3}
    v_mov_b32 v{vIdx}, 0xdd
    s_and_b32 s{sA}, s{sWV}, 7
    s_lshl_b32 s{sA}, s{sA}, 6
    s_add_u32 s{sA}, s{sA}, {FAKE}
    v_and_b32 v36, -4, v0
    v_add_u32 v{vFa}, s{sA}, v36
    v_mov_b32 v19, 1
    s_mov_b32 s{sA}, {FQ + 4096}
    v_lshl_add_u32 v59, v0, 6, s{sA}
    v_mov_b32 v48, {POSL}
    s_mov_b32 s{sC}, 0x40000
    s_mov_b32 s{sD}, 0x0c040100
    s_waitcnt vmcnt({nfin})
    """)
    st(7)
    AJ, RK, QD = 24, 28, 32
    for j in range(4):
        a(f"""
        v_lshlrev_b32_sdwa v{AJ + j}, 2, sext(v{vDL}) {SD} src1_sel:BYTE_{j}
        ds_add_rtn_u32 v{RK + j}, v{AJ + j}, v19 offset:{CNT}
        """)
    a(f"""
    s_and_b32 s{sA}, s{sWV}, 7
    s_lshl_b32 s{sA}, s{sA}, 12
    s_add_u32 s{sA}, s{sA}, {WS_WT}
    """)
    for ks in range(4):
        a(f"buffer_load_dwordx4 {vr(WF + 4 * ks, 4)}, v58, s[{sW}:{sW + 3}], s{sA} offen offset:{1024 * ks}")
    a(f"v_cmp_eq_u32 vcc, -1, v{vDL}")
    for j in range(4):
        q = QD + 4 * j
        a(f"""
        v_and_or_b32 v{q + 2}, v{AJ + j}, s{sC}, v48
        v_perm_b32 v{q}, v{AJ + j}, v{W + j}, s{sD}
        v_mad_u32_u16 v{q + 2}, v{W + j}, 6, v{q + 2}
        v_and_b32 v{q + 1}, 0xffff0000, v{W + j}
        v_and_b32 v{q + 2}, -4, v{q + 2}
        """)
    a(f"""
    s_cbranch_vccnz K_OVF
    K_OVFB:
    v_lshlrev_b32 v49, 2, v0
    s_cmp_ge_u32 s{sWV}, 13
    s_waitcnt lgkmcnt(0)
    s_barrier
    """)
    st(8)
    a(f"s_cbranch_scc1 K_OWN1 ; @if:lo=0\nK_OWN1B:\nds_read_b32 v49, v49 offset:{CNT}")
    for j in range(4):
        q = QD + 4 * j
        a(f"ds_read2_b32 {vr(q + 2, 2)}, v{q + 2} offset1:1")
    a(f"""
    s_waitcnt lgkmcnt(4)
    v_cmp_ne_u32 vcc, 0, v49
    s_mov_b32 s{sA}, {OOB}
    s_and_b32 s{sB2}, vcc_hi, 0xf00000
    s_cbranch_scc1 K_MASK
    K_MASKB:
    v_mov_b32 v{vIncl}, v49
    """)
    scan64(a, vIncl)
    a(f"""
    v_sub_u32 v49, v{vIncl}, v49
    v_readlane_b32 s{sTOT}, v{vIncl}, 63
    v_lshlrev_b32 v49, 4, v49
    v_writelane_b32 v49, s{sA}, 63
    """)
    for j in range(4):
        a(f"ds_bpermute_b32 v{AJ + j}, v{AJ + j}, v49")
    a(f"""
    s_cmp_gt_u32 s{sTOT}, {CAP}
    s_cbranch_scc1 K_SHRINK
    s_cmp_lg_u32 s{sWV}, 14
    s_cbranch_scc1 K_QE ; @if:w14=0
    global_load_dword v53, v59, s[{sW}:{sW + 1}] offset:-4096 sc1
    global_load_dword v54, v59, s[{sW}:{sW + 1}] sc1
    K_QE:
    s_add_u32 s{sA}, s{sTOT}, 15
    s_lshr_b32 s{sA}, s{sA}, 4
    s_lshr_b32 s{sB2}, s{sA}, 4
    s_and_b32 s{sA}, s{sA}, 15
    s_mul_i32 s{sTS}, s{sB2}, s{sWV}
    s_min_u32 s{sC}, s{sWV}, s{sA}
    s_add_u32 s{sTS}, s{sTS}, s{sC}
    s_cmp_lt_u32 s{sWV}, s{sA}
    s_addc_u32 s{sD}, s{sB2}, 0
    s_lshl_b32 s{sTS}, s{sTS}, 4
    s_lshl_b32 s{sD}, s{sD}, 4
    s_add_u32 s{sWT}, s{sTS}, s{sD}
    s_min_u32 s{sWEND}, s{sWT}, s{sTOT}
    """)
    for j in range(4):
        a(f"""
        s_waitcnt lgkmcnt(3)
        v_lshl_add_u32 v{AJ + j}, v{RK + j}, 4, v{AJ + j}
        ds_write_b128 v{AJ + j}, {vr(QD + 4 * j, 4)} offset:{LIST}
        """)
    a(f"""
    v_cmp_ge_u32 vcc, s{sTS}, v{vIncl}
    v_cmp_gt_u32 s[{sP2}:{sP2 + 1}], s{sWEND}, v{vIncl}
    v_add_u32 v24, 64, v0
    v_cmp_gt_u32 s[{sP3}:{sP3 + 1}], s{sD}, v0
    v_cmp_gt_u32 s[{sP4}:{sP4 + 1}], s{sD}, v24
    s_bcnt1_i32_b64 s{sN0}, vcc
    s_bcnt1_i32_b64 s{sNL}, s[{sP2}:{sP2 + 1}]
    s_mov_b32 s{sNW}, s{sN0}
    """)
    ptrs(a)
    a(f"""
    v_mov_b32 v24, {OOB}
    v_lshl_add_u32 v{vG0}, v0, 4, s{sA}
    v_add_u32 v{vG1}, 1024, v{vG0}
    v_cndmask_b32 v{vG0}, v24, v{vG0}, s[{sP3}:{sP3 + 1}]
    v_cndmask_b32 v{vG1}, v24, v{vG1}, s[{sP4}:{sP4 + 1}]
    s_cmp_eq_u32 s{sD}, 0
    s_cselect_b32 s{sNF}, {OOB >> 5}, s{sN0}
    s_cmp_eq_u32 s{sWV}, 0
    s_cselect_b32 s{sA}, 48, s{sNF}
    s_cselect_b32 s{sNF}, 64, s{sNF}
    s_lshl_b32 s{sA}, s{sA}, 4
    s_add_u32 s{sA}, s{sA}, s{sWV}
    s_lshl_b32 s{sA}, s{sA}, 1
    v_mov_b32 v25, s{sA}
    v_mov_b32 v26, 0x3f80
    s_mov_b64 exec, 1
    ds_write_b16 v25, v26 offset:{SEL}
    s_mov_b64 exec, -1
    s_cmp_ge_u32 s{sWV}, 13
    s_cbranch_scc1 K_PAD ; @if:lo=0
    K_PADB:
    {pr("B2a")}
    s_waitcnt vmcnt(0) lgkmcnt(0)
    {pr("B2")}
    s_barrier
    """)
    st(9)
    if nfin:
        a(qflag("K_QN") + "K_QN:")
    a(f"v_mov_b32 v{S}, 0\nds_read_b32 v17, v{S} offset:{RDY}")
    list_reads(a)
    a(f"""
    {dma(0)[0]}
    s_waitcnt lgkmcnt(3)
    v_readfirstlane_b32 s{sA}, v17
    v_mad_u32_u16 v{vVoff}, v{vSa}, s{s256}, v{vLc}
    s_cmp_lt_u32 s{sA}, s{sQW}
    s_cbranch_scc1 K_ND
    s_mov_b32 s{sQW}, 2 ; @set:qw=2
    {dma(0)[1]}
    """)
    for kc in range(1, 4):
        a(f"{dma(kc)[0]}\ns_nop 0\n{dma(kc)[1]}")
    st(5)
    a(f"""
    K_ND:
    s_cmp_lg_u32 s{sGH}, 0
    s_cbranch_scc1 K_GH3 ; @if:gh=0
    s_mov_b32 s{sGH}, 1 ; @set:gh=0
    s_cmp_ge_u32 s{sWV}, 8
    s_cbranch_scc1 K_GH1
    """)
    for ks in range(4):
        a(mf32(YA, WF + 4 * ks, HA_ + 4 * ks, ks == 0))
        a(mf32(YB, WF + 4 * ks, HB_ + 4 * ks, ks == 0))
    a("s_branch K_GH2\nK_GH1:")
    for ks in range(4):
        a(mf32(YA, WF + 4 * ks, HA_ + 4 * ks, ks == 0))
        a(mf32(YB, HB_ + 4 * ks, WF + 4 * ks, ks == 0))
    a(f"K_GH2:\ns_mov_b32 s{sP0}, {f32(-LOG2E / (1 + DELTA))}\ns_nop 6")
    for k in range(4):
        a(f"v_pk_mul_f32 {vr(Y + 2 * k, 2)}, {vr(Y + 2 * k, 2)}, s[{sP0}:{sP0 + 1}] op_sel_hi:[1,0]")
    a("K_GH3:")
    G, O, TH = 20, 28, 40
    a(f"""
    ds_read_b64 {vr(TH, 2)}, v{S} offset:{MISC + 8}
    ds_read_b128 {vr(G, 4)}, v{vG0}
    ds_read_b128 {vr(G + 4, 4)}, v{vG1}
    v_mov_b32 v{S + 1}, 0
    v_bfe_u32 v17, v0, 2, 2
    v_lshrrev_b32 v18, 4, v0
    v_cmp_eq_u32 vcc, v17, v18
    v_mov_b32 v18, 0x3f80
    v_mov_b32 v19, 0
    v_cndmask_b32 v18, 0, v18, vcc
    v_lshlrev_b32 v17, 4, v0
    v_lshlrev_b64 v[{B + 2}:{B + 3}], v17, v[18:19]
    """)
    for p in range(2):
        a(f"""
        s_waitcnt lgkmcnt(1)
        v_lshlrev_b32_sdwa v{O + 4 * p}, 2, v{G + 4 * p} {SD} src1_sel:WORD_1
        ds_read_b128 {vr(O + 4 * p, 4)}, v{O + 4 * p} offset:{OWN}
        """)
    for u in range(8):
        a(zero4(AC + 4 * u))
        if u < 3:
            a(f"v_mov_b64 {vr(B + 6 * u + 8, 2)}, {vr(B + 2, 2)}")
    for p in range(2):
        g, o = G + 4 * p, O + 4 * p
        a(f"""
        v_lshlrev_b32 v38, 4, v{g}
        v_alignbit_b32 v37, v{g + 3}, v{g + 2}, v38
        v_lshrrev_b32_sdwa v{g + 3}, v38, v{g + 3} dst_sel:WORD_1 dst_unused:UNUSED_PAD src0_sel:DWORD src1_sel:DWORD
        v_lshlrev_b32 v36, 16, v37
        v_and_b32 v37, 0xffff0000, v37
        s_waitcnt lgkmcnt(1)
        v_pk_add_f32 {vr(o, 2)}, {vr(o, 2)}, v[36:37] neg_lo:[0,1] neg_hi:[0,1]
        v_sub_f32 v{o + 2}, v{o + 2}, v{g + 3}
        v_mul_f32 v{o + 3}, v{o}, v{o}
        v_fmac_f32 v{o + 3}, v{o + 1}, v{o + 1}
        v_fmac_f32 v{o + 3}, v{o + 2}, v{o + 2}
        v_cvt_pk_bf16_f32 v{g + 2}, 1.0, v{o}
        v_mul_f32 v{o + 3}, {f32(-LOG2E)}, v{o + 3}
        v_cvt_pk_bf16_f32 v{g + 3}, v{o + 1}, v{o + 2}
        v_cmp_nlt_f32 vcc, abs(v{g + 1}), v{TH + 1}
        v_cmp_nlt_f32 s[{sP0}:{sP0 + 1}], abs(v{o + 3}), v{TH}
        v_cvt_pk_bf16_f32 v{g + 1}, v{o + 3}, v{g + 1}
        ds_write_b128 v{vG0 + p}, {vr(g, 4)} ; nobar
        s_or_b64 vcc, vcc, s[{sP0}:{sP0 + 1}]
        s_and_b64 s[{sP3 + 2 * p}:{sP3 + 2 * p + 1}], s[{sP3 + 2 * p}:{sP3 + 2 * p + 1}], vcc
        """)
    a(f"""
    s_or_b64 s[{sP3}:{sP3 + 1}], s[{sP3}:{sP3 + 1}], s[{sP4}:{sP4 + 1}]
    s_cselect_b32 s{sMODE}, 1, 0
    """)
    a(f"""
    K_XFR:
    s_cmp_ge_u32 s{sTS}, s{sWT}
    v_mad_u32_u16 v{vVoff}, v{vSa}, s{s256}, v{vLc}
    s_cbranch_scc1 K_QW ; @if:nt=1
    v_lshrrev_b32 v17, 2, v0
    v_and_b32 v18, 3, v0
    v_add_u32 v19, s{sN0}, v17
    v_mul_u32_u24 v19, 288, v19
    v_add_u32 v19, {PT}, v19
    v_lshlrev_b32 v17, 8, v17
    v_add_u32 v17, {WD - 14 * 256}, v17
    v_cndmask_b32 v19, v19, v17, {g3}
    s_mov_b32 vcc_lo, 0
    s_mov_b32 vcc_hi, 0x00ff0000
    v_mov_b32 v17, {OOB}
    v_lshl_add_u32 v19, v18, 3, v19
    v_cndmask_b32 v19, v19, v17, vcc
    """)
    for u in range(8):
        a(f"ds_read_b64_tr_b16 {vr(B + 6 * (u // 2) + 4 * (u & 1), 2)}, v19 offset:{32 * u}")
    a(f"""
    s_lshl_b32 s{sA}, s{sN0}, 3
    s_sub_u32 s{sA}, {OH + 512}, s{sA}
    v_and_b32 v19, 48, v0
    v_lshlrev_b32 v19, 1, v19
    v_sub_u32 v19, s{sA}, v19
    v_cndmask_b32 v{vBX}, v19, v{vEa}, {g3}
    v_mad_u32_u16 v{vXa}, v{vXa}, v{vMul}, v{vBX} op_sel:[1,0,0,0]
    ds_read_b64 {vr(A, 2)}, v{vXa}
    ds_read_b64 {vr(A + 6, 2)}, v{vXa}
    ds_read_b64 {vr(A + 12, 2)}, v{vXa}
    v_subrev_u32 v18, s{sNW}, v18
    v_and_b32 v18, 3, v18
    v_add_u32 v18, s{sNW}, v18
    v_mul_u32_u24 v18, {OOB}, v18
    v_sub_u32 v18, v{vDa}, v18
    v_add_u32 v{vBS}, 8, v18
    v_mad_u32_u16 v{vSa}, v{vSa}, s{sC000}, v{vBS} op_sel:[1,0,0,0]
    {zero4(ZE + 4)}
    {zero4(L)}
    v_lshl_add_u64 v[{vBX}:{vBS}], v[{vBX}:{vBS}], 0, v[{vIX}:{vIS}]
    v_add_u32 v{vDa}, 512, v{vDa}
    v_add_u32 v{vEa}, 256, v{vEa}
    """)
    window(a)
    a(f"""
    K_QW:
    {dma(0)[0]}
    """)
    st(10)
    a(f"""
    s_cmp_eq_u32 s{sQW}, 2
    s_cbranch_scc1 K_DM2 ; @is:qw=2
    s_cmp_eq_u32 s{sQW}, 0
    s_cbranch_scc1 K_DMA ; @is:qw=0
    """)
    a(f"""
    s_cmp_eq_u32 s{sWV}, 14
    s_cbranch_scc1 K_QP ; @if:w14=1
    K_QB:
    s_barrier
    """)
    st(5)
    a(f"K_DMA:\n{dma(0)[1]}")
    for kc in range(1, 4):
        a(f"{dma(kc)[0]}\ns_nop 0\n{dma(kc)[1]}")
    a("K_DM2:")
    st(11)
    a(f"""
    s_mov_b32 s{sQW}, 0 ; @set:qw=0
    s_cmp_ge_u32 s{sTS}, s{sWT}
    s_cbranch_scc1 K_NT0 ; @if:nt=1
    ds_read_b32 v17, v{S} offset:{MISC + 4}
    v_mad_u32_u16 v{vVoff}, v{vD}, s{s256}, v{vLc}
    {dma(0)[0]}
    s_waitcnt vmcnt(3)
    {rdq(0)}
    s_waitcnt vmcnt(2)
    {rdq(1)}
    s_waitcnt lgkmcnt(1)
    {Kmf(0, ZE)}
    {dma(0)[1]}
    v_readfirstlane_b32 s{sA}, v17
    s_or_b32 s{sMODE}, s{sMODE}, s{sA} ; @set:mode=x
    """)
    st(12)
    a(f"""
    s_waitcnt lgkmcnt(0)
    K_EV2:
    s_add_u32 s{sA}, s{sTS}, 32
    s_cmp_lt_u32 s{sA}, s{sWT}
    s_cbranch_scc1 K_GO
    v_mov_b32 v{vDa}, v{vFa}
    K_GO:
    s_cmp_lg_u32 s{sMODE}, 0
    s_cbranch_scc1 K_LOOPF ; @if:mode=1
    K_LOOP:
    {loop_body(cfg.get('pat', PAT), cfg.get('dord', DORD), True)}
    s_cbranch_scc1 K_LOOP
    K_EV:
    s_add_u32 s{sA}, s{sTS}, 16
    s_cmp_lt_u32 s{sEW}, s{sA}
    s_cbranch_scc1 K_WIN
    s_cmp_lt_u32 s{sTS}, s{sWT}
    s_cbranch_scc1 K_EV2
    """)
    st(13)
    WB = [A + 2, A + 8, B + 16, B + 20]
    HA, HB, HR = 60, 64, 68

    def exit_loads(tag):
        a(f"""
        s_lshr_b32 s{sD}, s{sWV}, 3
        s_and_b32 s{sC}, s{sWV}, 7
        s_lshl_b32 s{sC}, s{sC}, 5
        s_lshl_b32 s{sA}, s{sD}, 12
        s_add_u32 s{sA}, s{sA}, s{sC}
        v_and_b32 v5, 15, v0
        v_and_b32 v6, 48, v0
        v_lshrrev_b32 v8, 1, v6
        v_lshl_add_u32 v17, v5, 8, v8
        v_lshl_add_u32 v10, v5, 1, s{sC}
        s_add_u32 s{sA}, s{sA}, 4096
        s_movk_i32 s{sB2}, {48 * 256}
        s_cmp_lg_u32 s{sD}, 0
        buffer_load_dwordx2 {vr(HR, 2)}, v17, s[{sH}:{sH + 3}], s{sA} offen
        s_cbranch_scc1 {tag}1
        buffer_load_dwordx2 {vr(HR + 2, 2)}, v17, s[{sH}:{sH + 3}], s{sC} offen
        s_branch {tag}2
        {tag}1:
        buffer_load_ushort v{HR + 2}, v10, s[{sH}:{sH + 3}], s{sB2} offen
        {tag}2:
        """)

    exit_loads("K_XA")
    F = L
    a(f"""
    s_mov_b32 s{sLAST}, 1 ; @set:last=1
    s_movk_i32 s{sNWN}, 64
    K_FLUSH:
    v_and_b32 v17, 15, v0
    v_lshlrev_b32 v18, 5, v17
    ds_read_b128 {vr(T, 4)}, v18 offset:{WX}
    s_waitcnt lgkmcnt(1)
    {Ymf(6, ZE + 4)}
    {Ymf(7, L)}
    ds_read_b128 {vr(ZL, 4)}, v18 offset:{WX + 16}
    v_lshrrev_b32 v18, 4, v0
    v_subrev_u32 v18, s{sNW}, v18
    v_and_b32 v18, 3, v18
    v_add_u32 v18, s{sNW}, v18
    s_add_u32 s{sA}, s{sNL}, 1
    s_min_u32 s{sA}, s{sA}, s{sNWN}
    s_add_u32 s{sB2}, s{sWV}, 48
    v_cmp_eq_u32 vcc, s{sNF}, v18
    v_cmp_gt_u32 s[{sP0}:{sP0 + 1}], s{sA}, v18
    v_cmp_gt_u32 s[{sP1}:{sP1 + 1}], s{sNWN}, v18
    v_mov_b32 v19, s{sB2}
    v_cndmask_b32 v19, v18, v19, vcc
    v_mul_u32_u24 v19, {MST}, v19
    v_lshl_add_u32 v19, v17, 4, v19
    v_lshl_add_u32 v18, v18, 4, v17
    """)
    for k in range(4):
        a(f"v_cvt_pk_bf16_f32 v{ZE + 4 + k}, v{AC + 8 * k}, v{AC + 8 * k + 4}")
    a(f"""
    s_mov_b64 exec, s[{sP0}:{sP0 + 1}]
    ds_write_b128 v19, {vr(ZE + 4, 4)} offset:{MR}
    s_mov_b64 exec, -1
    s_waitcnt lgkmcnt(1)
    """)
    for u in range(8):
        w = (T if u < 4 else ZL) + (u & 3)
        wp, hi = w & ~1, w & 1
        if u == 0:
            a(f"v_pk_mul_f32 {vr(F + 2, 2)}, {vr(AC + 2, 2)}, {vr(wp, 2)} op_sel_hi:[1,0]")
            a(f"v_mul_f32 v{F + 1}, v{AC + 1}, v{w}")
        else:
            a(f"v_pk_fma_f32 {vr(F + 2, 2)}, {vr(AC + 4 * u + 2, 2)}, {vr(wp, 2)}, {vr(F + 2, 2)} op_sel:[0,{hi},0] op_sel_hi:[1,{hi},1]")
            a(f"v_fmac_f32 v{F + 1}, v{AC + 4 * u + 1}, v{w}")
    a(f"""
    s_and_b32 s{sP0}, s{sP0}, 0x01110111
    v_add_f32_dpp v{F + 2}, v{F + 2}, v{F + 2} row_ror:8 row_mask:0xf bank_mask:0xf
    v_add_f32_dpp v{F + 1}, v{F + 1}, v{F + 1} row_ror:8 row_mask:0xf bank_mask:0x3
    s_and_b32 s{sP0 + 1}, s{sP0 + 1}, 0x01110111
    v_add_f32_dpp v{F + 2}, v{F + 2}, v{F + 2} row_shr:4 row_mask:0xf bank_mask:0x2
    v_add_f32_dpp v{F + 1}, v{F + 3}, v{F + 3} row_ror:8 row_mask:0xf bank_mask:0xc
    s_nop 1
    v_add_f32_dpp v{F + 2}, v{F + 1}, v{F + 1} row_shl:4 row_mask:0xf bank_mask:0x5
    s_nop 1
    v_add_f32_dpp v{F + 2}, v{F + 2}, v{F + 2} quad_perm:[1,0,3,2] row_mask:0xf bank_mask:0xf
    s_nop 1
    v_add_f32_dpp v{F + 2}, v{F + 2}, v{F + 2} quad_perm:[2,3,0,1] row_mask:0xf bank_mask:0xf
    s_mov_b64 exec, s[{sP0}:{sP0 + 1}]
    ds_add_f32 v18, v{F + 2} offset:{PAC}
    s_mov_b64 exec, -1
    s_cmp_eq_u32 s{sLAST}, 0
    s_cbranch_scc1 K_SLIDE ; @if:last=0
    s_waitcnt vmcnt(3)
    K_POST:
    {rdq(2, WB[2])}
    {rdq(3, WB[3])}
    """)
    vMa, vM3, vSe, vOa = 1, 2, 3, 4
    Z, ZB, SA, SB, MB = 36, 40, 74, 56, 20
    a(f"""
    s_mul_i32 s{sA}, s{sD}, {16 * MST}
    v_mul_u32_u24 v{vM3}, {MST}, v5
    v_add_u32 v{vM3}, v{vM3}, v6
    v_add_u32 v{vMa}, s{sA}, v{vM3}
    s_lshl_b32 s{sA}, s{sD}, 9
    v_lshl_add_u32 v11, v5, 5, v8
    v_add_u32 v{vSe}, s{sA}, v11
    s_mul_i32 s{sA}, s{sD}, 1536
    v_add_u32 v11, s{sA}, v11
    s_mul_i32 s{sA}, s{sD}, {16 * OST}
    s_add_u32 s{sA}, s{sA}, s{sC}
    s_add_u32 s{sA}, s{sA}, {OT}
    v_mul_u32_u24 v{vOa}, {OST}, v5
    v_add3_u32 v{vOa}, v{vOa}, v8, s{sA}
    v_add_u32 v10, {OT + 48 * OST}, v10
    s_mov_b32 s{sP0}, {f32(1 + DELTA)}
    s_mov_b32 s{sP0 + 1}, {f32(-LN2)}
    s_cmp_lg_u32 s{sD}, 0
    s_waitcnt vmcnt(2) lgkmcnt(0)
    s_barrier
    """)
    st(14)
    for ks in range(4):
        a(f"ds_read_b128 {vr(AC + 4 * ks, 4)}, v{vM3} offset:{MR + 48 * MST + 64 * ks}")
    for ks in range(4):
        a(f"ds_read_b128 {vr(AC + 16 + 4 * ks, 4)}, v{vMa} offset:{MR + 16 * MST + 64 * ks}")
    a(f"""
    ds_read_b64 {vr(SA, 2)}, v{vSe} offset:{SEL + 512}
    ds_read_b64 {vr(SB, 2)}, v11 offset:{SEL}
    s_cbranch_scc1 K_E1
    """)
    mf16 = lambda d, x, y: f"v_mfma_f32_16x16x16_bf16 {vr(d, 4)}, {vr(x, 2)}, {vr(y, 2)}, {vr(d, 4)}"

    unpack = lambda n: "\n".join(f"v_lshlrev_b32 v{HA + 2 * k}, 16, v{HR + k}\nv_and_b32 v{HA + 2 * k + 1}, 0xffff0000, v{HR + k}" for k in range(n))

    def gemm_a(extra):
        for ks in range(4):
            a(f"s_waitcnt lgkmcnt({9 + extra - ks})\n" + mf32(Z, AC + 4 * ks, WB[ks], ks == 0))
        for ks in range(4):
            a(f"s_waitcnt lgkmcnt({5 + extra - ks})\n" + mf32(YA, WB[ks], AC + 16 + 4 * ks))
        a(f"v_cvt_pk_bf16_f32 v{ZB}, v{Z}, v{Z + 1}\nv_cvt_pk_bf16_f32 v{ZB + 1}, v{Z + 2}, v{Z + 3}")

    for ks in range(4):
        a(f"ds_read_b128 {vr(MB + 4 * ks, 4)}, v{vM3} offset:{MR + 64 * ks}")
    gemm_a(4)
    for ks in range(4):
        a(f"s_waitcnt lgkmcnt({3 - ks})\n" + mf32(YB, WB[ks], MB + 4 * ks))
        if ks == 2:
            a(mf16(YA, ZB, SA))
    a(f"""
    s_cmp_lg_u32 s{sRARE}, 0
    s_waitcnt vmcnt(0)
    {unpack(4)}
    {mf16(YB, ZB, SB)}
    s_cbranch_scc1 K_NEXT
    K_S0:
    """)
    silu4(a, YA, HA, 20)
    a(f"ds_write_b64 v{vOa}, {vr(YA, 2)} offset:{16 * OST}")
    silu4(a, YB, HB, 20)
    a(f"""
    ds_write_b64 v{vOa}, {vr(YB, 2)}
    K_OUT:
    s_lshl_b32 s{sC}, s{sNB}, 8
    s_add_u32 s{sO}, s20, s{sC}
    s_addc_u32 s{sO + 1}, s21, 0
    s_lshl_b32 s{sO + 2}, s{sNV}, 8
    s_mov_b32 s{sO + 3}, 0x20000
    s_lshl_b32 s{sA}, s{sWV}, 10
    v_lshl_add_u32 v7, v0, 4, s{sA}
    s_lshl_b32 s{sA}, s{sWV}, 6
    s_add_u32 s{sA}, s{sA}, {OT}
    v_add3_u32 v8, v7, v6, s{sA}
    s_cmp_ge_u32 s{sWV}, 13
    s_waitcnt lgkmcnt(0)
    s_barrier
    s_cbranch_scc1 K_FIN
    """)
    a(f"""
    ds_read_b128 v[20:23], v8
    s_waitcnt lgkmcnt(0)
    buffer_store_dwordx4 v[20:23], v7, s[{sO}:{sO + 3}], 0 offen sc1
    K_FIN:
    """)
    stamp_out(a, cfg, sW)
    a("K_END:\ns_endpgm")

    a("K_E1:")
    gemm_a(0)
    a(f"""
    s_waitcnt lgkmcnt(0)
    s_cmp_lg_u32 s{sRARE}, 0
    {mf16(YB, SB, ZB)}
    s_waitcnt vmcnt(0)
    {unpack(2)}
    {mf16(YA, ZB, SA)}
    v_lshlrev_b32 v{HB}, 16, v{HR + 2}
    s_cbranch_scc1 K_NEXT
    K_S1:
    s_sub_u32 s{sA}, s{sWV}, 13
    s_lshl_b32 s{sA}, s{sA}, 6
    v_add_u32 v11, s{sA}, v0
    v_mul_u32_u24 v12, 171, v11
    v_lshrrev_b32 v12, 9, v12
    v_add_lshl_u32 v13, v11, v12, 2
    ds_read_b32 v14, v13 offset:{PAC}
    ds_read_b32 v15, v13 offset:{OWN}
    """)
    silu4(a, YA, HA, 20)
    a(f"""
    ds_write_b64 v{vOa}, {vr(YA, 2)} offset:{16 * OST}
    v_mul_f32 v{YB}, s{sP0}, v{YB}
    v_exp_f32 v20, v{YB}
    v_mul_f32 v{YB}, s{sP0 + 1}, v{YB}
    v_add_f32 v20, 1.0, v20
    v_rcp_f32 v20, v20
    v_cmp_gt_u32 vcc, s{sNV}, v12
    v_fmac_f32 v{HB}, v20, v{YB}
    v_cvt_pk_bf16_f32 v{HB}, v{HB}, v{HB}
    s_mov_b64 exec, 0xffff
    ds_write_b16 v10, v{HB}
    s_mov_b64 exec, -1
    s_cmp_lt_u32 s{sWV}, 13
    s_cbranch_scc1 K_OUT
    s_mul_i32 s{sA}, s{sNB}, 6
    s_add_u32 s{sA}, s{sA}, {N * 256}
    v_lshl_add_u32 v11, v11, 1, s{sA}
    s_waitcnt lgkmcnt(2)
    v_add_f32 v14, v14, v15
    v_cvt_pk_bf16_f32 v14, v14, v14
    s_mov_b64 exec, vcc
    global_store_short v11, v14, s[20:21] sc1
    s_mov_b64 exec, -1
    s_branch K_OUT
    """)
    a(f"""
    K_NP:
    s_cmp_lt_u32 s2, 128
    s_cbranch_scc1 K_AUX ; @if:q=0
    s_mov_b32 s{sP1}, {sum(int(c) << (4 * w) for w, c in enumerate(sched[0][:8]))}
    s_mov_b32 s{sP1 + 1}, {sum(int(c) << (4 * w) for w, c in enumerate(sched[0][8:] + "444"))}
    s_mov_b32 s{sP2}, {sum(int(c) << (4 * w) for w, c in enumerate(sched[1][:8]))}
    s_mov_b32 s{sP2 + 1}, {sum(int(c) << (4 * w) for w, c in enumerate(sched[1][8:] + "444"))}
    s_lshl_b32 s{sA}, s{sWV}, 2
    s_lshr_b64 s[{sP1}:{sP1 + 1}], s[{sP1}:{sP1 + 1}], s{sA}
    s_lshr_b64 s[{sP2}:{sP2 + 1}], s[{sP2}:{sP2 + 1}], s{sA}
    s_and_b32 s{sP1}, s{sP1}, 7
    s_and_b32 s{sP2}, s{sP2}, 7
    s_add_u32 s{sP2}, s{sP2}, 8
    s_bitset1_b32 s{sQS}, s{sP1}
    s_bitset1_b32 s{sQS}, s{sP2}
    s_lshl_b32 s{sA}, s{sNB}, 8
    v_cmp_gt_u32 vcc, {NB * 16}, v{vT}
    v_add_u32 v5, s{sA}, v19
    v_subrev_u32 v4, {16 * NB * 256}, v5
    v_and_b32 v17, 0x3f0, v{vT}
    v_add_u32 v17, v17, v19
    v_cndmask_b32 v{vQo}, 2.0, v4, vcc
    v_cndmask_b32 v{vQo + 1}, 2.0, v5, vcc
    {preq("a")}
    s_waitcnt vmcnt({pqa}) lgkmcnt(0)
    s_barrier
    """)
    st(2)
    a(wdma(14, WS2) + preq("b"))
    gemm1(WF, GC)
    for ks in range(4):
        a(f"v_xor_b32 v{HA_ + 4 * ks}, {64 * ks}, v{vHa}\nv_xor_b32 v{HB_ + 4 * ks}, {64 * ks}, v{vHa + 1}")
    scale_pack(a, GC, 24)
    a(tile_write(24, vQa, QTA))
    big_test(a, GC, "K_FQ")
    if cfg.get("pe"):
        a(f"""
        s_mov_b64 s[{sT}:{sT + 1}], s[6:7]
        s_lshl_b32 s{sB2}, s{sWV}, 10
        s_sub_u32 m0, m0, {WS2 - POSL}
        """)
    a(f"""
    s_bitcmp1_b32 s{sQS}, 0
    s_cselect_b64 vcc, -1, 0
    s_cmp_lg_u32 s{sWV}, 14
    v_cndmask_b32 v2, 2.0, v{vQo}, vcc
    v_cndmask_b32 v{vQo}, v{vQo}, 2.0, vcc
    s_waitcnt vmcnt({2 * (pq[0] == "b")}) lgkmcnt(0)
    s_barrier
    """)
    st(3)
    pe = f"""
    buffer_load_dwordx4 v19, s[{sT}:{sT + 3}], s{sB2} offen lds
    buffer_load_dwordx4 v19, s[{sT}:{sT + 3}], s{sB2} offen offset:1024 lds
    """
    a(f"""
    {pe if cfg.get("pe") == 1 else ""}
    ds_read_b128 {vr(QR, 4)}, v17 offset:{QTA}
    {hrd(0)}
    {hrd(1)}
    s_cbranch_scc1 K_NZ
    global_load_dword v{vZ + 1}, v{vZ}, s[22:23] sc1
    K_NZ:
    {hrd(2)}
    {hrd(3)}
    s_waitcnt lgkmcnt(7)
    {qstore(0).replace(f"v{vQo},", "v2,")}
    {pe if cfg.get("pe") == 2 else ""}
    """)
    for ks in range(4):
        a(trd(TF, ks, vWa, WS2 - WS1))
    for ks in range(4):
        a(f"""
        s_waitcnt lgkmcnt({15 - 2 * ks})
        {mf32(GC, WF + 4 * ks, HA_ + 4 * ks, ks == 0)}
        s_waitcnt lgkmcnt({14 - 2 * ks})
        {mf32(GC + 4, WF + 4 * ks, HB_ + 4 * ks, ks == 0)}
        """)
    for ks in range(4):
        a(f"""
        s_waitcnt lgkmcnt({6 - 2 * ks})
        {mf32(Y, TF + 4 * ks, HA_ + 4 * ks, ks == 0)}
        {mf32(Y + 4, TF + 4 * ks, HB_ + 4 * ks, ks == 0)}
        """)
    scale_pack(a, GC, 4)
    a(tile_write(4, vQa, QTB))
    big_test(a, GC, "K_FR")
    scale_pack(a, Y, 40)
    big_test(a, Y, "K_FS")
    a(f"""
    s_waitcnt vmcnt({3 if cfg.get("pe") == 2 else 1})
    v_cmp_eq_u32 vcc, 0, v{vZ + 1}
    s_cbranch_vccnz K_ZW
    K_X3:
    s_waitcnt lgkmcnt(0)
    {pr("S")}
    s_barrier
    ds_read_b128 {vr(QR + 4, 4)}, v17 offset:{QTB}
    {qst(1)}
    s_branch K_F
    K_ZW:
    """)
    poll(a, "K_ZP", f"global_load_dword v{vZ + 1}, v{vZ}, s[22:23] sc1", "", vZ + 1)
    a(f"""
    s_cmp_ge_u32 s2, 128
    s_cbranch_scc1 K_X3 ; @if:q=1
    s_branch K_ZB
    K_AUX:
    s_waitcnt vmcnt(0) lgkmcnt(0)
    s_barrier
    s_branch K_PH
    K_WJ:
    s_cmp_ge_u32 s2, 64
    s_cbranch_scc1 K_CH ; @if:wj=0
    s_and_b32 s{sC}, s2, 28
    s_and_b32 s{sA}, s2, 3
    s_lshl_b32 s{sC}, s{sC}, 3
    v_lshl_add_u32 v24, v15, 1, s{sC}
    s_cmp_ge_u32 s2, 32
    s_cbranch_scc1 K_WJ1
    s_lshl_b32 s{sC}, s{sA}, 10
    s_add_u32 s{sC}, s{sC}, {32768 + 4096}
    v_lshl_add_u32 v24, v14, 8, v24
    v_add_u32 v24, s{sC}, v24
    """)
    for j in range(8):
        a(f"global_load_ushort v{WF + j}, v24, s[18:19] offset:{0 if j & 1 else -4096}")
        if j & 1 and j < 7:
            a("v_add_u32 v24, 0x2000, v24")
    a(f"""
    s_branch K_CH
    K_WJ1:
    s_lshl_b32 s{sC}, s{sA}, 13
    v_lshl_add_u32 v24, v14, 11, v24
    v_add_u32 v24, s{sC}, v24
    """)
    for j in range(8):
        a(f"global_load_ushort v{WF + j}, v24, s[18:19] offset:{256 * j}")
    a(f"""
    s_branch K_CH
    K_ZF:
    s_mov_b32 s{sA}, {WS_SYNC + 4096}
    v_lshl_add_u32 v2, v0, 6, s{sA}
    v_add_u32 v3, 0x2000, v2
    v_mov_b32 v4, 0
    v_mov_b32 v5, 1
    s_waitcnt lgkmcnt(0)
    global_store_dword v2, v4, s[{sW}:{sW + 1}] offset:-4096 sc1
    global_store_dword v2, v4, s[{sW}:{sW + 1}] sc1
    global_store_dword v3, v4, s[{sW}:{sW + 1}] offset:-4096 sc1
    global_store_dword v3, v4, s[{sW}:{sW + 1}] sc1
    s_waitcnt vmcnt(0)
    s_mov_b64 exec, 1
    global_store_dword v4, v5, s[22:23] sc1
    s_mov_b64 exec, -1
    s_branch K_LD
    K_PLD:
    s_lshl_b32 s{sA}, s{sWV}, 8
    s_or_b32 s{sA}, s{sA}, s2
    s_cmp_lt_u32 s{sA}, {13 * 256 + 64}
    s_cbranch_scc1 K_PL2 ; @if:wj=1
    s_cmp_eq_u32 s{sWV}, 14
    s_waitcnt vmcnt({ppa})
    {prep("b")}{prep("c")}
    s_cbranch_scc0 K_PB ; @if:w14=0
    global_load_dword v{vZ + 1}, v{vZ}, s[22:23] sc1
    s_branch K_PB
    K_PL2:
    s_and_b32 s{sA}, s2, 3
    s_mul_i32 s{sA}, s{sA}, {64 - 1024}
    v_lshl_add_u32 v12, v15, 8, s{sA}
    v_lshl_add_u32 v12, v14, 4, v12
    v_lshlrev_b32 v13, 4, v0
    s_cmp_ge_u32 s2, 32
    s_cselect_b64 vcc, -1, 0
    s_lshl_b32 s{sA}, s2, 10
    s_add_u32 s{sA}, s{sA}, {QROWS * 256}
    v_cndmask_b32 v12, v12, v13, vcc
    v_add_u32 v12, s{sA}, v12
    s_waitcnt vmcnt({ppa})
    {prep("b")}{prep("c")}
    """)
    for k in range(4):
        a(f"v_lshl_or_b32 v{WF + k}, v{WF + 2 * k + 1}, 16, v{WF + 2 * k}")
    a(f"""
    global_store_dwordx4 v12, {vr(WF, 4)}, s[{sW}:{sW + 1}] sc1
    s_branch K_PB
    K_POV:
    ds_read_b128 v[20:23], v{LA} offset:128
    ds_read_b128 v[24:27], v{LA} offset:{128 * 160 + 128}
    s_mul_i32 s{sB2}, s2, -96
    s_add_u32 s{sB2}, s{sB2}, 16000
    s_mov_b32 s{sP1}, 0x03030303
    s_mov_b32 s{sP1 + 1}, 0x03030303
    v_add_u32 v28, s{sB2}, v{GA}
    v_add_u32 v29, s{sB2}, v{GA + 1}
    s_waitcnt lgkmcnt(0)
    """)
    for i in range(2):
        a(f"""
        v_cmp_lt_u32 vcc, 24, v{CA + i}
        s_and_b64 exec, vcc, s[{sP1}:{sP1 + 1}]
        s_cbranch_execz K_OV{i}
        global_store_dwordx4 v{28 + i}, {vr(20 + 4 * i, 4)}, s[{sP3}:{sP3 + 1}] sc1
        v_cmpx_lt_u32 vcc, 32, v{CA + i}
        """)
        for k in range(4):
            a(f"v_mov_b32 v{4 + 4 * i + k}, -1")
        a(f"K_OV{i}:\ns_mov_b64 exec, -1")
    a(f"""
    s_branch K_PST
    K_FQ:
    v_mov_b32 v36, {MISC}
    v_mov_b32 v37, 0x10000
    ds_write_b32 v36, v37
    s_branch K_FQB
    K_FR:
    v_mov_b32 v36, {MISC}
    v_mov_b32 v37, 0x10000
    ds_write_b32 v36, v37
    s_branch K_FRB
    K_FP:
    v_mov_b32 v36, {MISC + 4}
    ds_write_b32 v36, v36
    s_branch K_FPB
    K_FS:
    v_mov_b32 v36, {MISC + 4}
    ds_write_b32 v36, v36
    s_branch K_FSB
    K_JOB:
    s_cmp_ge_u32 s{sWV}, 14
    s_cbranch_scc1 K_PD_E
    s_cmp_lt_u32 s{sWV}, 13
    s_cbranch_scc1 K_JB1 ; @if:lo=1
    v_cmp_eq_u32 vcc, 32, v0
    v_cmp_eq_u32 s[{sP1}:{sP1 + 1}], 33, v0
    v_mov_b32 v12, 0x3f80
    v_lshlrev_b32 v4, 4, v0
    v_cndmask_b32 v8, 0, v12, vcc
    v_cndmask_b32 v9, 0, v12, s[{sP1}:{sP1 + 1}]
    v_lshlrev_b32 v10, 16, v8
    v_lshlrev_b32 v11, 16, v9
    ds_write_b128 v4, v[8:11] offset:{OH}
    v_lshlrev_b32 v4, 3, v0
    v_lshlrev_b32 v12, 1, v0
    v_add_u32 v12, {QROWS}, v12
    v_add_u32 v13, 1, v12
    ds_write_b64 v4, v[12:13] offset:{FAKE}
    s_branch K_PD_E
    K_JB1:
    s_lshl_b32 s{sA}, s{sWV}, 8
    s_add_u32 s{sA}, s{sA}, {65536 - 2560}
    s_add_u32 s{sP1}, s14, s{sA}
    s_addc_u32 s{sP1 + 1}, s15, 0
    s_cmp_eq_u32 s{sWV}, 12
    s_cselect_b64 s[{sP1}:{sP1 + 1}], s[16:17], s[{sP1}:{sP1 + 1}]
    v_lshlrev_b32 v4, 2, v0
    global_load_dword v10, v4, s[{sP1}:{sP1 + 1}]
    s_branch K_PD_E
    K_JB2:
    s_cmp_ge_u32 s{sWV}, 13
    s_cbranch_scc1 K_JB4 ; @if:lo=0
    s_cmp_eq_u32 s{sWV}, 12
    v_lshrrev_b32 v8, 3, v0
    s_waitcnt vmcnt(0)
    v_and_b32 v11, 0xffff0000, v10
    v_lshlrev_b32 v10, 16, v10
    s_cbranch_scc1 K_JB3
    s_cmp_eq_u32 s{sWV}, 10
    s_cselect_b32 s{sA}, 1.0, {f32(-LOG2E)}
    s_mov_b32 s{sB2}, {f32(15.0)}
    s_cmov_b32 s{sB2}, {f32(32.0)}
    v_mul_f32 v10, s{sA}, v10
    v_mul_f32 v11, s{sA}, v11
    v_and_b32 v12, 0x7fffffff, v10
    v_and_b32 v13, 0x7fffffff, v11
    v_max_u32 v12, v12, v13
    v_and_b32 v8, 1, v8
    v_mul_i32_i24 v8, -101, v8
    v_ldexp_f32 v10, v10, v8
    v_ldexp_f32 v11, v11, v8
    v_cvt_pk_bf16_f32 v10, v10, v11
    s_lshl_b32 s{sA}, s{sWV}, 8
    v_add_u32 v4, s{sA}, v4
    ds_write_b32 v4, v10 offset:{WD - 2560}
    """)
    scan64(a, 12, "v_max_u32")
    a(f"""
    s_lshl_b32 s{sA}, s{sWV}, 2
    v_rcp_f32 v12, v12
    v_mov_b32 v4, s{sA}
    v_mul_f32 v12, s{sB2}, v12
    s_mov_b32 exec_lo, 0
    s_brev_b32 exec_hi, 1
    ds_write_b32 v4, v12 offset:{MISC + 8 - 40}
    s_mov_b64 exec, -1
    s_branch K_G0
    K_JB3:
    v_mul_f32 v10, {f32(-LN2 * (1 + DELTA))}, v10
    v_mul_f32 v11, {f32(-LN2 * (1 + DELTA))}, v11
    v_and_b32 v4, 7, v0
    v_lshlrev_b32 v4, 6, v4
    v_lshl_add_u32 v4, v8, 2, v4
    ds_write_b32 v4, v10 offset:{WX}
    ds_write_b32 v4, v11 offset:{WX + 32}
    s_branch K_G0
    K_JB4:
    v_mov_b32 v57, 0
    ds_read_b32 v57, v57 offset:{MISC}
    s_lshl_b32 s{sA}, s2, 6
    s_add_u32 s{sA}, s{sA}, {FP}
    v_mov_b32 v56, s{sA}
    s_cmp_eq_u32 s{sWV}, 14
    s_waitcnt lgkmcnt(0)
    v_or_b32 v57, 1, v57
    s_cbranch_scc0 K_G0 ; @if:w14=0
    """)
    poll128(a, "K_PP", FP, 8)
    a(f"""
    s_branch K_G0
    K_OWN1:
    s_cmp_eq_u32 s{sWV}, 13
    s_cbranch_scc1 K_OWN0 ; @if:w13=1
    {"" if nfin or qg else qflag("K_OWN1B")}
    s_branch K_OWN1B
    K_OWN0:
    v_add_u32 v50, s{sNB}, v0
    v_mad_u32_u24 v50, v50, 6, v48
    v_cmp_gt_u32 vcc, s{sNV}, v0
    v_mov_b32 v51, {OOB}
    v_mov_b32 v52, 0
    v_mov_b32 v53, 0
    v_mov_b32 v54, 0
    v_mov_b32 v55, 0
    v_cndmask_b32 v50, v51, v50, vcc
    ds_read_u16_d16_hi v52, v50
    ds_read_u16_d16_hi v53, v50 offset:2
    ds_read_u16_d16_hi v54, v50 offset:4
    s_branch K_OWN1B
    K_PAD:
    s_cmp_eq_u32 s{sWV}, 14
    s_cbranch_scc1 K_QP0 ; @if:w14=1
    s_cmp_eq_u32 s{sWV}, 13
    s_cbranch_scc1 K_OWN2 ; @if:w13=1
    v_add_lshl_u32 v25, v0, s{sTOT}, 4
    v_mov_b32 v52, {N | (4 * PADN) << 16}
    v_mov_b32 v53, 0
    v_mov_b32 v54, 0
    v_mov_b32 v55, 0
    v_cndmask_b32 v25, v25, v24, {g3}
    ds_write_b128 v25, v[52:55] offset:{LIST}
    s_branch K_PADB
    K_OWN2:
    v_lshlrev_b32 v25, 4, v0
    s_mov_b32 exec_hi, 0x1fffff
    ds_write_b128 v25, v[52:55] offset:{OWN}
    s_mov_b64 exec, -1
    s_branch K_PADB
    K_QP0:
    """)
    if cfg.get("qblock"):
        poll(a, "K_QBP", "\n".join(f"global_load_dword v{53 + i}, v59, s[{sW}:{sW + 1}] offset:{4096 * (i - 1)} sc1" for i in range(2)),
             "v_min_u32 v55, v53, v54", 55, False)
    a(f"""
    s_waitcnt vmcnt(0)
    v_min_u32 v55, v53, v54
    v_or_b32 v53, v53, v54
    v_cmp_eq_u32 vcc, 0, v55
    v_mov_b32 v55, 0
    s_cbranch_vccnz K_PADB
    v_cmp_lt_u32 vcc, 0xffff, v53
    ds_write_b32 v55, v{vIS} offset:{RDY}
    s_cbranch_vccz K_PADB
    ds_write_b32 v55, v{vIS} offset:{MISC + 4}
    s_branch K_PADB
    K_QP:
    """)
    poll128(a, "K_QPP", FQ, T)
    a(f"""
    v_or_b32 v{T}, v{T + 1}, v{T + 2}
    v_cmp_lt_u32 vcc, 0xffff, v{T}
    s_cbranch_vccz K_QB
    ds_write_b32 v{S}, v{vIS} offset:{MISC + 4}
    s_waitcnt lgkmcnt(0)
    s_branch K_QB
    K_NT0:
    s_waitcnt vmcnt(0)
    {rdq(0)}
    {rdq(1)}
    """)
    exit_loads("K_XB")
    a("s_branch K_POST")
    a(f"""
    K_WIN:
    s_min_u32 s{sA}, s{sEW}, s{sTS}
    v_cmp_ge_u32 vcc, s{sA}, v{vIncl}
    s_mov_b32 s{sLAST}, 0 ; @set:last=0
    s_bcnt1_i32_b64 s{sNWN}, vcc
    s_branch K_FLUSH
    K_SLIDE:
    v_mov_b32 v{S}, 0
    v_mov_b32 v{S + 1}, 0
    v_and_b32 v17, 3, v0
    v_subrev_u32 v18, s{sNW}, v17
    v_subrev_u32 v17, s{sNWN}, v17
    v_and_b32 v18, 3, v18
    v_and_b32 v17, 3, v17
    s_sub_u32 s{sA}, s{sNWN}, s{sNW}
    v_sub_u32 v17, v17, v18
    v_add_u32 v17, s{sA}, v17
    v_mul_u32_u24 v17, {OOB}, v17
    s_mov_b32 s{sNW}, s{sNWN}
    s_mov_b64 exec, s[{sP1}:{sP1 + 1}]
    """)
    for k in range(16):
        a(f"v_mov_b64 {vr(AC + 2 * k, 2)}, 0")
    a(f"""
    s_mov_b64 exec, -1
    s_cmp_lt_u32 s{sEW}, s{sTS}
    s_cbranch_scc1 K_REDO
    s_sub_u32 s{sA}, s{sNW}, s{sN0}
    s_cmp_gt_u32 s{sA}, 8
    s_cbranch_scc1 K_RESTART
    {zero4(ZE + 4)}
    {zero4(L)}
    v_sub_u32 v{vSa}, v{vSa}, v17
    v_sub_u32 v{vBS}, v{vBS}, v17
    """)
    window(a)
    a(f"""
    s_branch K_EV2
    K_REDO:
    s_sub_u32 s{sTS}, s{sTS}, 16
    K_RESTART:
    s_mov_b32 s{sN0}, s{sNW}
    """)
    ptrs(a)
    a("s_waitcnt vmcnt(0) lgkmcnt(0)")
    list_reads(a)
    a(f"""
    s_waitcnt lgkmcnt(0)
    s_branch K_XFR
    K_LOOPF:
    {loop_body('M1 Y1 M2 Y2 Fa Fb m s 0 v D V', DORD, False)}
    s_cbranch_scc1 K_LOOPF
    s_branch K_EV
    """)
    a(f"""
    K_OVF:
    v_lshrrev_b32 v49, 3, v{vT}
    v_lshlrev_b32 v55, v49, v19
    v_lshrrev_b32 v49, 5, v49
    v_lshlrev_b32 v49, 2, v49
    s_mov_b64 exec, vcc
    ds_or_b32 v49, v55 offset:{CNT + 208}
    s_mov_b64 exec, -1
    s_branch K_OVFB
    K_MASK:
    """)
    for k in range(4):
        a(f"v_readlane_b32 s{sMK + k}, v49, {52 + k}")
    a(f"""
    v_cmp_gt_u32 vcc, 52, v0
    s_mov_b32 s{sRARE}, 1
    s_nop 0
    v_cndmask_b32 v49, 0, v49, vcc
    s_branch K_MASKB
    K_SHRINK:
    s_movk_i32 s{sWID}, {CAP // 4}
    s_mov_b32 s{sLO}, 0
    s_mov_b32 s{sRARE}, 1
    s_branch K_ROUND
    K_NEXT:
    s_mov_b32 s{sQA}, 0
    s_add_u32 s{sLO}, s{sLO}, s{sWID}
    s_cmp_lt_u32 s{sWID}, 1024
    s_cselect_b32 s{sA}, s{sLO}, 1024
    s_cmp_lt_u32 s{sA}, 1000
    s_cbranch_scc1 K_ROUND
    s_mov_b32 s{sLO}, 0
    s_movk_i32 s{sWID}, 1024
    s_ff1_i32_b64 s{sSRC}, s[{sMK}:{sMK + 1}]
    s_cmp_lt_i32 s{sSRC}, 0
    s_cbranch_scc1 K_NEXT2
    s_bitset0_b64 s[{sMK}:{sMK + 1}], s{sSRC}
    s_branch K_ROUND
    K_NEXT2:
    s_ff1_i32_b64 s{sSRC}, s[{sMK + 2}:{sMK + 3}]
    s_cmp_lt_i32 s{sSRC}, 0
    s_cbranch_scc0 K_NEXT3
    s_cmp_lg_u32 s{sD}, 0
    s_cbranch_scc1 K_S1
    s_branch K_S0
    K_NEXT3:
    s_bitset0_b64 s[{sMK + 2}:{sMK + 3}], s{sSRC}
    s_add_u32 s{sSRC}, s{sSRC}, 64
    K_ROUND:
    s_load_dwordx2 s[6:7], s[0:1], 8
    s_load_dwordx4 s[8:11], s[0:1], 16
    s_load_dwordx2 s[12:13], s[0:1], 32
    s_lshl_b32 s{sA}, s{sWV}, 6
    v_add_u32 v{vT}, s{sA}, v0
    v_lshlrev_b32 v19, 4, v{vT}
    s_waitcnt vmcnt(0) lgkmcnt(0) ; @set:nt=x
    s_barrier
    """)
    zero_init(a, (PAC - MR - 16384) // 16)
    pos_dma(a, "K_PR")
    rec_addr(a, 28)
    a(f"""
    s_cmp_ge_i32 s{sSRC}, 0
    s_cbranch_scc1 K_RAW
    """)
    rec_load(a, 28)
    a(f"""
    s_waitcnt vmcnt(0)
    v_and_b32 v{vDL}, 0xbfbfbfbf, v{vDL}
    s_branch K_RANGE
    K_RAW:
    s_cmp_ge_u32 s{sWV}, 13
    s_cbranch_scc1 K_RANGE
    s_mul_i32 s{sA}, s{sSRC}, 12800
    v_cmp_gt_u32 vcc, 800, v{vT}
    v_add_u32 v28, s{sA}, v19
    v_lshrrev_b32 v29, 1, v28
    s_mov_b64 exec, vcc
    global_load_dwordx4 v[32:35], v28, s[12:13]
    global_load_dwordx4 {vr(W, 4)}, v28, s[10:11]
    global_load_dwordx2 v[36:37], v29, s[8:9]
    s_mov_b32 s{sA}, 342393
    s_mov_b32 s{sB2}, 0xffff0000
    v_mov_b32 v38, 0xbf
    s_waitcnt vmcnt(0)
    """)
    for j in range(4):
        a(f"""
        v_mul_u32_u24 v{32 + j}, s{sA}, v{32 + j}
        v_lshrrev_b32 v39, 24, v{32 + j}
        v_cmp_eq_u32 vcc, s{sB}, v39
        v_mul_hi_u32_u24 v{32 + j}, 12544, v{32 + j}
        """)
        if j & 1:
            a(f"v_and_or_b32 v{W + j}, v{36 + j // 2}, s{sB2}, v{W + j}")
        else:
            a(f"v_lshl_or_b32 v{W + j}, v{36 + j // 2}, 16, v{W + j}")
        a(f"v_cndmask_b32 v{32 + j}, v38, v{32 + j}, vcc")
    a(f"""
    v_lshl_or_b32 v32, v33, 8, v32
    v_lshl_or_b32 v34, v35, 8, v34
    v_lshl_or_b32 v{vDL}, v34, 16, v32
    s_mov_b64 exec, -1
    K_RANGE:
    v_subrev_u32 v28, s{sLO}, v{vT}
    v_cmp_gt_u32 vcc, s{sWID}, v28
    v_mov_b32 v28, 0xbfbfbfbf
    s_waitcnt vmcnt(0) lgkmcnt(0)
    v_cndmask_b32 v{vDL}, v28, v{vDL}, vcc
    s_barrier
    s_branch K_B0
    """)
    return a.text()
```
